```python
import torch

def _softmax(x, axis=-1):
    return torch.softmax(x, dim=axis)
def _gelu(x):
    return torch.nn.functional.gelu(x, approximate="tanh")
def _silu(x):
    return torch.nn.functional.silu(x)
def _sigmoid(x):
    return torch.sigmoid(x)
def _layernorm(x, axis=-1, eps=1e-5):
    m = x.mean(dim=axis, keepdim=True)
    v = x.var(dim=axis, keepdim=True, unbiased=False)
    return (x - m) / torch.sqrt(v + eps)
def _scatter_add(tgt, idx, src, axis=0):
    return tgt.clone().index_add_(axis, idx, src)
def _segment_sum(src, seg, n):
    out = torch.zeros((n,) + src.shape[1:], dtype=src.dtype)
    return out.index_add_(0, seg, src)
def _pad(x, pw):
    flat = tuple(v for pair in reversed(pw) for v in pair)
    return torch.nn.functional.pad(x, flat)

kernel_name = 'gated_mix__softmax_full_mha__mixer_s_mlp__prompt'

def setup_inputs():

    _w = (lambda a: (lambda t: t.to(torch.bfloat16) if t.is_floating_point() else t)(torch.as_tensor(a)))
    def _A_setup():
        B, S, D = 1, 2048, 576
        return {
            "x": _w((lambda *s: torch.randn(*s, dtype=torch.bfloat16) * 0.05)(B, S, D)),
            "wqkv": _w((lambda *s: torch.randn(*s, dtype=torch.bfloat16) * 1.6)(D, 3 * D)),
            "wo": _w((lambda *s: torch.randn(*s, dtype=torch.bfloat16) * 0.1)(D, D)),
        }
    _A_in = _A_setup()

    def _B_setup():
        B, S, D, F = 1, 2048, 576, 4608
        return {
            "x":  _w((lambda *s: torch.randn(*s, dtype=torch.bfloat16) * 0.05)(B, S, D)),
            "w1": _w((lambda *s: torch.randn(*s, dtype=torch.bfloat16) * 3.2)(D, D) * (D ** -0.5)),
            "w2": _w((lambda *s: torch.randn(*s, dtype=torch.bfloat16) * 3.2)(D, D) * (D ** -0.5)),
            "w3": _w((lambda *s: torch.randn(*s, dtype=torch.bfloat16) * 3.2)(D, F) * (D ** -0.5)),
            "w4": _w((lambda *s: torch.randn(*s, dtype=torch.bfloat16) * 3.2)(F, D) * (F ** -0.5)),
        }
    _B_in = _B_setup()

    return {
        "A_x": _A_in["x"],
        "A_wqkv": _A_in["wqkv"],
        "A_wo": _A_in["wo"],
        "B_x": _B_in["x"],
        "B_w1": _B_in["w1"],
        "B_w2": _B_in["w2"],
        "B_w3": _B_in["w3"],
        "B_w4": _B_in["w4"],
        "gate_w": _w((lambda *s: torch.randn(*s, dtype=torch.bfloat16) * 0.05)(576) * 16.0),
    }

def reference(A_x, A_wqkv, A_wo, B_x, B_w1, B_w2, B_w3, B_w4, gate_w):
    def _A_ref(x, wqkv, wo):
        B, S, D = x.shape
        H = 32; Dh = D // H
        qkv = (lambda x, *d: x.permute(*d))((x @ wqkv).reshape(B, S, 3, H, Dh), 2, 0, 3, 1, 4)
        q, k, v = qkv[0], qkv[1], qkv[2]
        scale = Dh ** -0.5
        scores = torch.einsum("bhqd,bhkd->bhqk", q, k) * scale
        p = _softmax(scores, axis=-1)
        o = torch.einsum("bhqk,bhkd->bhqd", p, v)
        return (lambda x, *d: x.permute(*d))(o, 0, 2, 1, 3).reshape(B, S, D) @ wo

    def _B_ref(x, w1, w2, w3, w4):
        B, S, D = x.shape
        h = _gelu(_layernorm(x, axis=-1) @ w1)
        c = D // 4
        g0 = _pad(h[:, :, 0*c:1*c], ((0, 0), (1, 0), (0, 0)))[:, :S, :]
        g1 = _pad(h[:, :, 1*c:2*c], ((0, 0), (0, 1), (0, 0)))[:, 1:, :]
        g2 = _pad(h[:, :, 2*c:3*c], ((0, 0), (2, 0), (0, 0)))[:, :S, :]
        g3 = _pad(h[:, :, 3*c:   ], ((0, 0), (0, 2), (0, 0)))[:, 2:, :]
        hs = torch.concatenate([g0, g1, g2, g3], axis=-1) @ w2
        x1 = x + hs
        h2 = _gelu(_layernorm(x1, axis=-1) @ w3) @ w4
        return x1 + h2

    x = A_x
    g = _sigmoid((x * gate_w).sum(-1, keepdims=True))
    a = _A_ref(x, A_wqkv, A_wo)
    b = _B_ref(x, B_w1, B_w2, B_w3, B_w4)
    return g * a + (1 - g) * b
```

```python
import re, struct

def f32(x):
    return struct.unpack("<I", struct.pack("<f", x))[0]
def hexf(x):
    return "0x%08x" % f32(x)

class Emit:
    def __init__(self):
        self.L = []
    def __call__(self, s):
        for line in s.split("\n"):
            line = line.strip()
            if line:
                if line.endswith(":") or line.startswith("."):
                    self.L.append(line)
                else:
                    self.L.append("    " + line)
    def label(self, n):
        self.L.append(n + ":")
    def extend(self, lst):
        for s in lst: self(s)
    def text(self):
        return "\n".join(self.L) + "\n"

def vr(b, n=1):
    return f"v{b}" if n == 1 else f"v[{b}:{b+n-1}]"
def ar(b, n=1):
    return f"a{b}" if n == 1 else f"a[{b}:{b+n-1}]"
def sr(b, n=1):
    return f"s{b}" if n == 1 else f"s[{b}:{b+n-1}]"

COST = {"exp": 8}
def cost(ins):
    op = ins.split()[0]
    if op.startswith(("v_exp", "v_rcp", "v_rsq", "v_sqrt", "v_log")): return 8
    if op.startswith("v_mfma"): return 8
    if op == "s_nop": return 4 * (int(ins.split()[1]) + 1)
    return 4

def weave(mfmas, gaps):
    out = []
    out += gaps.get(-1, [])
    for i, m in enumerate(mfmas):
        out.append(m)
        out += gaps.get(i, [])
    return out

def spread(gaps, instrs, g0, g1, budget=24):
    n = g1 - g0
    load = [sum(cost(x) for x in gaps.get(g, [])) for g in range(g0, g1)]
    total = sum(load) + sum(cost(x) for x in instrs)
    target = total / n
    gi = 0
    cum_target = 0.0
    cum = 0.0
    idx = 0
    for gi in range(n):
        cum_target += target
        cum += load[gi]
        lst = gaps.setdefault(g0 + gi, [])
        while idx < len(instrs) and (cum + cost(instrs[idx]) / 2 <= cum_target or gi == n - 1):
            lst.append(instrs[idx]); cum += cost(instrs[idx]); idx += 1
    assert idx == len(instrs)

_reg = re.compile(r"^(v|a|s)(\d+)$|^(v|a|s)\[(\d+):(\d+)\]$")
def regs(tok):
    tok = tok.strip()
    if tok.startswith("-"): tok = tok[1:]
    if tok.startswith("abs(") and tok.endswith(")"): tok = tok[4:-1]
    if tok.startswith("|") and tok.endswith("|"): tok = tok[1:-1]
    m = _reg.match(tok)
    if m:
        if m.group(1): return {(m.group(1), int(m.group(2)))}
        return {(m.group(3), i) for i in range(int(m.group(4)), int(m.group(5)) + 1)}
    if tok == "vcc": return {("s", 106), ("s", 107)}
    if tok == "m0": return {("s", 124)}
    if tok == "exec": return {("s", 126), ("s", 127)}
    return set()

TRANS = ("v_exp_f32", "v_rcp_f32", "v_rsq_f32", "v_sqrt_f32", "v_log_f32", "v_exp_f16", "v_rcp_f16")
def passes(op):
    if "32x32x4_2b" in op: return 16
    if "32x32x16" in op or "32x32x8" in op: return 8
    if "16x16x32" in op or "16x16x16" in op: return 4
    raise ValueError(op)

class I: pass
def parse(line):
    s = line.split(";")[0].strip()
    if not s or s.endswith(":") or s.startswith("."): return None
    parts = s.split(None, 1)
    op = parts[0]
    for suf in ("_e32", "_e64"):
        if op.endswith(suf): op = op[:-4]
    rest = parts[1] if len(parts) > 1 else ""
    ops = []; depth = 0; cur = ""
    for ch in rest:
        if ch in "[(": depth += 1
        if ch in "])": depth -= 1
        if ch == "," and depth == 0: ops.append(cur.strip()); cur = ""
        else: cur += ch
    if cur.strip(): ops.append(cur.strip())
    mods = ""
    if ops:
        t = ops[-1].split()
        ops[-1] = t[0]; mods = " ".join(t[1:])
    i = I(); i.op = op; i.ops = ops; i.mods = mods; i.text = s
    i.dst = set(); i.src = set(); i.kind = "other"; i.srcC = set(); i.srcAB = set(); i.data=set(); i.addr=set()
    R = [regs(o) for o in ops]
    if op.startswith("v_mfma"):
        i.kind = "mfma"; i.dst = R[0]; i.srcAB = R[1] | R[2]; i.srcC = R[3]; i.src = i.srcAB | i.srcC; i.passes = passes(op)
    elif op.startswith("v_"):
        i.kind = "valu"
        if op.startswith("v_permlane") and "swap" in op:
            i.dst = R[0] | R[1]; i.src = R[0] | R[1]
        elif op.startswith("v_cmp"):
            i.dst = R[0]; i.src = set().union(*R[1:])
            if op.startswith("v_cmpx"): i.dst |= regs("exec")
        elif op.startswith(("v_add_co", "v_addc_co", "v_sub_co", "v_subb_co")):
            i.dst = R[0] | R[1]; i.src = set().union(*R[2:])
        else:
            i.dst = R[0]; i.src = set().union(*R[1:]) if len(R) > 1 else set()
            if op.startswith(("v_fmac", "v_dot2c", "v_mac")): i.src |= R[0]
            if op.startswith("v_cndmask") and len(ops) == 3: i.src |= regs("vcc")
            if "dpp" in op or "row_" in mods or "quad_perm" in mods: i.dpp = True
    elif op.startswith("ds_"):
        i.kind = "ds"
        if op.startswith("ds_read") or op.startswith("ds_bpermute") or op.startswith("ds_swizzle"):
            i.dst = R[0]; i.src = set().union(*R[1:]); i.addr = i.src
        else:
            i.src = set().union(*R); i.addr = R[0]; i.data = set().union(*R[1:])
    elif op in ("buffer_inv", "buffer_wbl2"):
        i.kind = "other"
    elif op.startswith(("buffer_", "global_")):
        i.kind = "vmem"
        lds = "lds" in mods.split() or "_lds_" in op
        if op.startswith("buffer_load"):
            if lds: i.src = set().union(*R) | regs("m0"); i.lds = True
            else: i.dst = R[0]; i.src = set().union(*R[1:])
        elif op.startswith("buffer_store") or op.startswith("buffer_atomic"):
            i.src = set().union(*R); i.data = R[0]
        elif op.startswith("global_load"):
            if lds: i.src = set().union(*R) | regs("m0"); i.lds = True
            else: i.dst = R[0]; i.src = set().union(*R[1:])
        else:
            i.src = set().union(*R); i.data = R[1]
    elif op.startswith("s_"):
        i.kind = "salu"
        if op in ("s_nop", "s_waitcnt", "s_barrier", "s_endpgm", "s_branch", "s_setprio", "s_sleep") or op.startswith("s_cbranch"):
            pass
        elif op.startswith("s_cmp"):
            i.src = set().union(*R)
        else:
            i.dst = R[0] if R else set(); i.src = set().union(*R[1:]) if len(R) > 1 else set()
            if "saveexec" in op: i.dst |= regs("exec"); i.src |= regs("exec")
    return i

def states(i):
    if i.op == "s_nop": return int(i.ops[0], 0) + 1
    return 1

def isv(s): return {r for r in s if r[0] in "va"}
def iss(s): return {r for r in s if r[0] == "s"}

def check(text, name=""):
    lines = text.split("\n")
    labels = {}
    for n, l in enumerate(lines):
        s = l.split(";")[0].strip()
        if s.endswith(":"): labels[s[:-1]] = n
    trace = []; n = 0; taken = set()
    while n < len(lines):
        i = parse(lines[n])
        if i is not None:
            i.line = n + 1
            trace.append(i)
            if (i.op.startswith("s_cbranch") or i.op == "s_branch") and i.ops[0] in labels:
                t = labels[i.ops[0]]
                if t <= n and n not in taken:
                    taken.add(n); n = t; continue
        n += 1
    errs = []
    W = 24
    for k, c in enumerate(trace):
        d = 0
        for j in range(k - 1, max(-1, k - 40), -1):
            p = trace[j]
            need = 0; why = ""
            def req(n_, w_):
                nonlocal need, why
                if n_ > need: need, why = n_, w_
            if p.kind == "valu":
                pd = isv(p.dst); ps = iss(p.dst)
                if c.kind == "mfma" and pd & c.src: req(2, "valu->mfma")
                if p.op in TRANS and c.kind == "valu" and c.op not in TRANS and pd & c.src: req(1, "trans->valu")
                if p.op in TRANS and c.kind == "valu" and c.op in TRANS and pd & c.src: req(1, "trans->trans(conservative)")
                if c.kind == "valu" and c.op.startswith("v_permlane") and pd & c.src: req(2, "valu->permlane")
                if c.kind == "valu" and c.op.startswith(("v_readlane", "v_readfirstlane")) and pd & c.src: req(1, "valu->readlane")
                if c.kind == "valu" and getattr(c, "dpp", False) and pd & c.src: req(2, "valu->dpp")
                if c.kind == "vmem" and ps & c.src: req(5, "valu sgpr->vmem")
                if c.kind == "valu" and ps & c.src: req(2, "valu sgpr->valu")
                if c.kind == "valu" and c.op.startswith(("v_readlane","v_writelane")) and ps & c.src: req(4, "valu sgpr->lane select")
                if p.op.startswith("v_cmpx") and c.kind == "mfma": req(4, "cmpx->mfma")
                if p.op.startswith("v_dot"):
                    if c.kind == "valu" and c.op == p.op:
                        if c.op.startswith("v_dot2c"):
                            ab = set().union(*[regs(o) for o in c.ops[1:]])
                        else:
                            ab = regs(c.ops[1]) | regs(c.ops[2])
                        if pd & ab: req(3, "dot->dot A/B")
                    elif pd & (c.src | c.dst): req(3, "dot->other")
            if p.kind == "mfma":
                pw = {2: 0, 4: 1, 8: 2, 16: 3}[p.passes]
                if c.kind == "mfma":
                    if p.dst & c.srcC:
                        if p.dst == c.srcC and p.passes == c.passes: req([2, 0, 0, 0][pw], "mfma->C same")
                        else: req([4, 6, 10, 18][pw], "mfma->C overlap")
                    if p.dst & c.srcAB: req([5, 8, 12, 20][pw], "mfma->A/B")
                    if p.dst & c.dst and not (p.dst & c.srcC): req([5, 8, 12, 20][pw], "mfma WAW mfma (conservative)")
                elif c.kind == "valu":
                    if p.dst & (c.src | c.dst): req([5, 8, 12, 20][pw], "mfma->valu")
                    if p.srcC & isv(c.dst): req([1, 3, 7, 15][pw], "mfma C WAR valu")
                elif c.kind in ("ds", "vmem"):
                    if p.dst & (c.src | c.dst): req([5, 8, 12, 20][pw], "mfma->mem")
            if p.kind == "salu":
                if ("s", 124) in p.dst and getattr(c, "lds", False): req(1, "m0->dma")
                if regs("exec") & p.dst and c.kind == "valu" and getattr(c, "dpp", False): req(1, "exec->dpp")
            if p.kind == "vmem" and p.data and len(p.data) >= 3:
                if c.kind == "valu" and p.data & c.dst: req(2, "store data WAR")
                elif c.kind in ("ds", "vmem") and p.data & c.dst: req(1, "store data WAR ld")
            if need > d:
                errs.append(f"{name} line {c.line}: '{c.text}' after line {p.line} '{p.text}': {why} needs {need} has {d}")
            d += states(p)
            if d > W: break
    return errs
```

```python
from gen_common import *
HEADER = open("gated_mix__softmax_full_mha__mixer_s_mlp__prompt.s.ref").read().split("; Override launch geometry")[0]
DOC = """;
"""
def build(kernels, path):
    s = HEADER
    for name, text, grid, block, lds, vgpr, accum in kernels:
        s += f"; @launch kernel={name} grid=({grid},1,1) block=({block},1,1) lds={lds}\n"
    s += DOC
    s += '.amdgcn_target "amdgcn-amd-amdhsa--gfx950"\n.text\n'
    seen = []
    for name, text, grid, block, lds, vgpr, accum in kernels:
        if name in seen: continue
        seen.append(name)
        s += text
    s += '.section .rodata,"a"\n'
    seen = []
    for name, text, grid, block, lds, vgpr, accum in kernels:
        if name in seen: continue
        seen.append(name)
        s += ".p2align 6\n" + kernel_desc(name, vgpr, accum)
    open(path, "w").write(s)
    return s
```

```python
from asmlib import *
import layouts as LY
import math

KA_XA, KA_WQKV, KA_WO, KA_XB, KA_W1, KA_W2, KA_W3, KA_W4, KA_GW, KA_OUT, KA_DBG, KA_WS = [8*i for i in range(12)]
WS_SIZE = 268435456

def kernel_head(e, name):
    e(f".globl {name}")
    e(".p2align 8")
    e(f".type {name},@function")
    e.label(name)

def kernel_desc(name, vgpr, accum, sgpr=96):
    return f""".amdhsa_kernel {name}
  .amdhsa_next_free_vgpr {vgpr}
  .amdhsa_next_free_sgpr {sgpr}
  .amdhsa_accum_offset {accum}
  .amdhsa_group_segment_fixed_size 0
  .amdhsa_kernarg_size 96
  .amdhsa_user_sgpr_count 2
  .amdhsa_user_sgpr_kernarg_segment_ptr 1
  .amdhsa_system_sgpr_workgroup_id_x 1
  .amdhsa_float_denorm_mode_32 3
.end_amdhsa_kernel
"""

def make_srd(e, dst, ptr, size):
    if dst != ptr: e(f"s_mov_b32 s{dst}, s{ptr}")
    e(f"s_and_b32 s{dst+1}, s{ptr+1}, 0xffff")
    e(f"s_mov_b32 s{dst+2}, {size}")
    e(f"s_mov_b32 s{dst+3}, 0x20000")

GELU_C0 = -2.0 * math.sqrt(2.0 / math.pi) * math.log2(math.e)
GELU_C1 = GELU_C0 * 0.044715
```

```python
from gen_common import *
NAME = "l1_kernel"
SLOT = 36864
GW_OFF = 4 * SLOT
XCH_OFF = GW_OFF + 2048
LDS_BYTES = XCH_OFF + 5120
S_WS = 12; S_X = 16; S_W = 20; S_GW = 24
V_L16 = 1
V_XO = 2
V_WO = 6
V_XA = 11
V_WA = 15
V_GA = 20
V_ST = 22
V_CS = 24
ACC = 32
XF = 112
WF = 120
GF = 160
QSCALE = math.log2(math.e) / math.sqrt(18.0)
S_WV, S_RB, S_CT, S_CQ = 8, 9, 10, 11
S_RS = 28
S_XO = 29
S_WO = 30
S_XM = 31
S_ST = 32
S_DL = 33
S_WSTEP = 34
S_SLOTD = 35
S_T = 36

def dma_stage(e_list, with_slot_update=True):
    o = []
    o.append([f"s_add_u32 m0, s{S_SLOTD}, s{S_XM}", "s_nop 0", f"buffer_load_dwordx4 v{V_XO}, s[{S_X}:{S_X+3}], s{S_XO} offen lds"])
    for i in range(1, 4):
        o.append([f"buffer_load_dwordx4 v{V_XO+i}, s[{S_X}:{S_X+3}], s{S_XO} offen offset:{i*1024} lds"])
    o.append([f"s_add_u32 m0, s{S_SLOTD}, s{S_T}", "s_nop 0", f"buffer_load_dwordx4 v{V_WO}, s[{S_W}:{S_W+3}], s{S_WO} offen lds"])
    for i in range(1, 4):
        o.append([f"buffer_load_dwordx4 v{V_WO+i}, s[{S_W}:{S_W+3}], s{S_WO} offen offset:{i*1024} lds"])
    o.append([f"s_add_u32 m0, m0, 4096", "s_nop 0", f"buffer_load_dwordx4 v{V_WO+4}, s[{S_W}:{S_W+3}], s{S_WO} offen lds"])
    o.append([f"s_add_u32 s{S_XO}, s{S_XO}, 128", f"s_add_u32 s{S_WO}, s{S_WO}, s{S_WSTEP}",
              f"s_add_u32 s{S_SLOTD}, s{S_SLOTD}, {SLOT}", f"s_cmp_eq_u32 s{S_SLOTD}, {4*SLOT}", f"s_cselect_b32 s{S_SLOTD}, 0, s{S_SLOTD}"])
    return o

def reads(s, variant):
    o = [f"ds_read_b128 {vr(XF+4*(s%2),4)}, v{V_XA+s}"]
    if variant == "qk": o.append(f"ds_read_b128 {vr(GF+4*(s%2),4)}, v{V_GA} offset:{32*s}")
    for T in range(5):
        for q in range(2):
            o.append(f"ds_read_b64_tr_b16 {vr(WF+20*(s%2)+4*T+2*q,2)}, v{V_WA+T} offset:{(16*s+4*q)*320}")
    return o

def main_loop(e, variant):
    lab = f"L1_loop_{variant}"
    e(f"s_mov_b32 s{S_ST}, 0")
    e(".p2align 6")
    e.label(lab)
    e("s_waitcnt vmcnt(18)")
    e("s_barrier")
    e(f"s_cmp_lt_u32 s{S_ST}, 6")
    e(f"s_cselect_b32 s{S_XO}, s{S_XO}, 0x40000000")
    e(f"s_cselect_b32 s{S_WO}, s{S_WO}, 0x40000000")
    e.extend(reads(0, variant))
    dma = dma_stage(None)
    di = 0
    for s in range(4):
        e("s_waitcnt lgkmcnt(0)")
        rd = reads(s + 1, variant) if s < 3 else []
        xf = vr(XF + 4 * (s % 2), 4)
        extra = []
        if variant == "qk":
            extra = [f"v_dot2c_f32_bf16 v{V_ST}, v{GF+4*(s%2)+j}, v{XF+4*(s%2)+j}" for j in range(4)]
        if variant == "h":
            for j in range(4):
                extra.append(f"v_dot2c_f32_bf16 v{V_ST}, s40, v{XF+4*(s%2)+j}")
                extra.append(f"v_dot2c_f32_bf16 v{V_ST+1}, v{XF+4*(s%2)+j}, v{XF+4*(s%2)+j}")
        n = len(rd)
        cuts = [0, (n + 4) // 5, 2 * ((n + 4) // 5), 3 * ((n + 4) // 5), 4 * ((n + 4) // 5), n]
        cuts = [min(c, n) for c in cuts]
        for T in range(5):
            wf = vr(WF + 20 * (s % 2) + 4 * T, 4); a = vr(ACC + 16 * T, 16)
            if variant == "v": e(f"v_mfma_f32_32x32x16_bf16 {a}, {xf}, {wf}, {a}")
            else: e(f"v_mfma_f32_32x32x16_bf16 {a}, {wf}, {xf}, {a}")
            e.extend(rd[cuts[T]:cuts[T + 1]])
            if extra:
                k0 = T * len(extra) // 5; k1 = (T + 1) * len(extra) // 5
                e.extend(extra[k0:k1])
            if T in (1, 3) and di < len(dma) :
                e.extend(dma[di]); di += 1
            if s == 3 and T in (0, 2, 4) and di < len(dma):
                e.extend(dma[di]); di += 1
        if variant == "h":
            e(f"s_cmp_eq_u32 s{S_WV}, {s}")
            e(f"s_cbranch_scc0 {lab}_cs{s}")
            for T in range(5):
                for j in range(4): e(f"v_dot2c_f32_bf16 v{V_CS+T}, s40, v{WF+20*(s%2)+4*T+j}")
            e.label(f"{lab}_cs{s}")
    while di < len(dma):
        e.extend(dma[di]); di += 1
    e(f"s_add_u32 s{S_ST}, s{S_ST}, 1")
    e(f"s_and_b32 s{S_DL}, s{S_ST}, 3")
    e(f"s_cmp_eq_u32 s{S_DL}, 0")
    e(f"s_cselect_b32 s{S_DL}, s68, s67")
    for r in list(range(V_XA, V_XA + 4)) + list(range(V_WA, V_WA + 5)): e(f"v_add_u32 v{r}, s{S_DL}, v{r}")
    if variant == "qk": e(f"v_add_u32 v{V_GA}, 128, v{V_GA}")
    e(f"s_cmp_lt_u32 s{S_ST}, 9")
    e(f"s_cbranch_scc1 {lab}")
    e("s_waitcnt vmcnt(0)")
    e("s_nop 7")

def setup_common(e):
    for i in range(4):
        e("v_lshrrev_b32 v21, 3, v0"); e(f"v_add_u32 v21, {8*i}, v21")
        e("v_lshrrev_b32 v22, 1, v21"); e("v_and_b32 v22, 7, v22"); e("v_and_b32 v23, 7, v0"); e("v_xor_b32 v22, v22, v23")
        e("v_mul_u32_u24 v21, 1152, v21"); e("v_lshlrev_b32 v22, 4, v22"); e("v_add_u32 v21, v21, v22")
        e(f"v_subrev_u32 v{V_XO+i}, {1024*i}, v21")
    e(f"s_mul_i32 s{S_T}, s{S_WV}, 320")
    for i in range(5):
        e(f"v_add_u32 v21, s{S_T}, v0"); e(f"v_add_u32 v21, {64*i}, v21")
        e("v_mul_u32_u24 v22, 3277, v21"); e("v_lshrrev_b32 v22, 16, v22")
        e("v_mul_u32_u24 v23, 20, v22"); e("v_sub_u32 v23, v21, v23")
        e(f"v_mul_lo_u32 v22, v22, s{S_RS}")
        e("v_cmp_lt_u32 vcc, 17, v23"); e("v_subrev_u32 v24, 2, v23"); e("s_nop 0"); e("v_cndmask_b32 v24, v23, v24, vcc")
        e("v_lshlrev_b32 v24, 4, v24"); e("v_add_u32 v22, v22, v24")
        if i % 4: e(f"v_subrev_u32 v22, {1024*(i%4)}, v22")
        e("v_and_b32 v24, 30, v23"); e("v_cmp_eq_u32 vcc, 16, v24"); e("v_mov_b32 v25, 0x40000000"); e("s_nop 0")
        e(f"v_cndmask_b32 v{V_WO+i}, v22, v25, vcc")
    e("v_and_b32 v21, 31, v0"); e("v_lshrrev_b32 v22, 5, v0")
    e("v_lshrrev_b32 v23, 1, v21"); e("v_and_b32 v23, 7, v23"); e("v_xor_b32 v23, v23, v22"); e("v_lshlrev_b32 v23, 4, v23")
    e("v_lshlrev_b32 v24, 7, v21"); e("v_add_u32 v23, v23, v24")
    e(f"s_lshl_b32 s{S_XM}, s{S_WV}, 12"); e(f"v_add_u32 v{V_XA}, s{S_XM}, v23")
    for s in range(1, 4): e(f"v_xor_b32 v{V_XA+s}, {32*s}, v{V_XA}")
    e(f"s_mul_i32 s{S_T}, s{S_WV}, 5120"); e(f"s_add_u32 s{S_T}, s{S_T}, 16384")

def lane_parts(e):
    e("v_lshrrev_b32 v21, 5, v0"); e("v_bfe_u32 v22, v0, 4, 1"); e("v_bfe_u32 v23, v0, 2, 2"); e("v_and_b32 v24, 3, v0")
    e("v_and_b32 v25, 1, v0"); e("v_lshlrev_b32 v25, 1, v25"); e("v_bfe_u32 v26, v0, 1, 1"); e("v_or_b32 v25, v25, v26")
    e("v_lshlrev_b32 v26, 3, v21"); e("v_add_u32 v26, v26, v23"); e("v_mul_u32_u24 v26, 320, v26"); e("v_add_u32 v26, 16384, v26")

def waddr_heads(e, swap):
    lane_parts(e)
    q = 25 if swap else 24
    e(f"v_lshlrev_b32 v27, 3, v{q}"); e("v_add_u32 v27, v27, v26")
    e("v_mul_u32_u24 v28, 288, v22"); e(f"v_add_u32 v{V_WA}, v27, v28")
    e("v_lshlrev_b32 v28, 5, v22"); e("v_add_u32 v27, v27, v28")
    for T in range(1, 4): e(f"v_add_u32 v{V_WA+T}, {40+72*(T-1)}, v27")
    e("v_mul_u32_u24 v28, 72, v24"); e("v_add_u32 v28, v28, v26"); e(f"v_add_u32 v{V_WA+4}, 32, v28")
def waddr_dense(e):
    lane_parts(e)
    e("v_lshlrev_b32 v27, 3, v25"); e("v_add_u32 v27, v27, v26")
    e(f"v_add_u32 v{V_WA+4}, 288, v27")
    e("v_lshlrev_b32 v28, 5, v22"); e("v_add_u32 v27, v27, v28")
    for T in range(4): e(f"v_add_u32 v{V_WA+T}, {64*T}, v27")

def zero_acc(e):
    for i in range(4): e(f"v_mov_b32 v{XF+i}, 0")
    e("s_nop 1")
    for T in range(5): e(f"v_mfma_f32_32x32x16_bf16 {vr(ACC+16*T,16)}, {vr(XF,4)}, {vr(XF,4)}, 0")

def prologue_dma(e):
    e(f"s_mov_b32 s{S_SLOTD}, 0")
    for st in range(3):
        for grp in dma_stage(None): e.extend(grp)

HEADS = [(0, 7), (1, 2), (3, 4), (5, 6)]
def epi_qk(e):
    e(f"s_lshl_b32 s44, s{S_RB}, 2"); e(f"s_add_u32 s44, s44, s{S_WV}")
    e(f"s_lshl_b32 s45, s{S_CQ}, 3")
    e("s_lshl_b32 s46, s45, 16"); e("s_lshl_b32 s47, s44, 10"); e("s_add_u32 s46, s46, s47"); e("s_add_u32 s46, s46, s42")
    P = 112
    for T in range(4):
        for i in range(16): e(f"v_mul_f32 v{ACC+16*T+i}, s41, v{ACC+16*T+i}")
        for hh in range(2):
            p = P + 8 * (T % 2) + 4 * hh
            for j in range(4): e(f"v_cvt_pk_bf16_f32 v{p+j}, v{ACC+16*T+8*hh+2*j}, v{ACC+16*T+8*hh+2*j+1}")
            e(f"s_add_u32 s47, s46, {HEADS[T][hh]*65536}")
            e(f"buffer_store_dwordx4 {vr(p,4)}, v{V_L16}, s[{S_WS}:{S_WS+3}], s47 offen")
    for i in range(8): e(f"v_mul_f32 v{ACC+64+i}, s41, v{ACC+64+i}")
    for j in range(4): e(f"v_cvt_pk_bf16_f32 v{128+j}, v{ACC+64+2*j}, v{ACC+64+2*j+1}")
    e("v_and_b32 v21, 31, v0"); e("v_lshlrev_b32 v21, 2, v21"); e("v_lshrrev_b32 v29, 5, v0"); e("v_lshlrev_b32 v29, 14, v29"); e("v_add_u32 v21, v21, v29")
    e("s_lshl_b32 s46, s45, 13"); e("s_lshl_b32 s47, s44, 7"); e("s_add_u32 s46, s46, s47"); e("s_add_u32 s46, s46, s43")
    for j, hoff in enumerate([0, 1, 4, 5]):
        e(f"s_add_u32 s47, s46, {hoff*8192}")
        e(f"buffer_store_dword v{128+j}, v21, s[{S_WS}:{S_WS+3}], s47 offen")
    e(f"s_cmp_eq_u32 s{S_CT}, 0")
    e("s_cbranch_scc0 L1_exit")
    e(f"v_mov_b32 v23, v{V_ST}"); e(f"v_mov_b32 v24, v{V_ST}"); e("s_nop 1"); e("v_permlane32_swap_b32 v23, v24"); e("v_add_f32 v23, v23, v24")
    e(f"v_mul_f32 v23, {hexf(-math.log2(math.e))}, v23"); e("v_exp_f32 v23, v23"); e("s_nop 0"); e("v_add_f32 v23, 1.0, v23"); e("v_rcp_f32 v23, v23")
    e("v_and_b32 v21, 31, v0"); e("v_lshlrev_b32 v21, 2, v21")
    e("s_lshl_b32 s47, s44, 7"); e(f"s_add_u32 s47, s47, {LY.G}")
    e("s_mov_b64 exec, 0xffffffff")
    e(f"buffer_store_dword v23, v21, s[{S_WS}:{S_WS+3}], s47 offen")
    e("s_endpgm")

def epi_v(e):
    e(f"s_lshl_b32 s44, s{S_RB}, 2"); e(f"s_add_u32 s44, s44, s{S_WV}")
    e(f"s_lshl_b32 s45, s{S_CQ}, 3")
    e(f"s_mul_i32 s46, s45, {LY.VHEAD}"); e("s_mul_i32 s47, s44, 1216"); e("s_add_u32 s46, s46, s47"); e(f"s_add_u32 s46, s46, {LY.VF}")
    e("v_lshrrev_b32 v21, 5, v0"); e("v_mul_u32_u24 v21, 304, v21")
    e("v_and_b32 v22, 15, v0"); e("v_lshlrev_b32 v22, 4, v22"); e("v_add_u32 v22, v22, v21")
    e("v_bfe_u32 v23, v0, 4, 1")
    e(f"s_mov_b32 s47, {LY.VHEAD}")
    e("v_mul_lo_u32 v24, v23, s47")
    e("v_add_u32 v25, v22, v24")
    e("v_mul_u32_u24 v24, 7, v24"); e("v_add_u32 v26, v22, v24")
    P = 112
    for T in range(4):
        ad = 26 if T == 0 else 25
        hb = 0 if T == 0 else HEADS[T][0]
        e(f"s_add_u32 s47, s46, {hb*LY.VHEAD}")
        for hh in range(2):
            p = P + 8 * (T % 2) + 4 * hh
            for j in range(4): e(f"v_cvt_pk_bf16_f32 v{p+j}, v{ACC+16*T+8*hh+2*j}, v{ACC+16*T+8*hh+2*j+1}")
            e(f"buffer_store_dwordx4 {vr(p,4)}, v{ad}, s[{S_WS}:{S_WS+3}], s47 offen offset:{608*hh}")
    e("v_and_b32 v22, 31, v0")
    e("v_lshrrev_b32 v23, 2, v22"); e("v_lshlrev_b32 v23, 1, v23"); e("v_bfe_u32 v24, v22, 1, 1"); e("v_add_u32 v23, v23, v24")
    e("v_and_b32 v24, 1, v22"); e("v_add_u32 v24, 16, v24")
    e("v_cmp_lt_u32 vcc, 15, v22"); e("v_subrev_u32 v25, 16, v22"); e("v_mov_b32 v27, 18")
    e("v_cndmask_b32 v23, v23, v25, vcc"); e("v_cndmask_b32 v24, v24, v27, vcc")
    e(f"s_mov_b32 s47, {LY.VHEAD}"); e("v_mul_lo_u32 v23, v23, s47"); e("v_lshlrev_b32 v24, 4, v24"); e("v_add3_u32 v23, v23, v24, v21")
    e("v_mov_b32 v27, 0x3f803f80")
    for hh in range(2):
        for j in range(4):
            e(f"v_cvt_pk_bf16_f32 v{128+4*hh+j}, v{ACC+64+8*hh+2*j}, v{ACC+64+8*hh+2*j+1}")
            e(f"v_cndmask_b32 v{128+4*hh+j}, v{128+4*hh+j}, v27, vcc")
    e("v_cmp_gt_u32 vcc, 24, v22"); e("s_nop 1")
    e("s_and_saveexec_b64 s[48:49], vcc")
    for hh in range(2):
        e(f"buffer_store_dwordx4 {vr(128+4*hh,4)}, v23, s[{S_WS}:{S_WS+3}], s46 offen offset:{608*hh}")
    e("s_endpgm")

def epi_h(e):
    e(f"v_mov_b32 v21, v{V_ST}"); e(f"v_mov_b32 v29, v{V_ST+1}"); e("s_nop 1")
    e(f"v_permlane32_swap_b32 v21, v{V_ST}"); e(f"v_permlane32_swap_b32 v29, v{V_ST+1}")
    e(f"v_add_f32 v{V_ST}, v21, v{V_ST}"); e(f"v_add_f32 v{V_ST+1}, v29, v{V_ST+1}")
    e(f"v_mul_f32 v{V_ST}, {hexf(1/576)}, v{V_ST}"); e(f"v_mul_f32 v{V_ST+1}, {hexf(1/576)}, v{V_ST+1}")
    e(f"v_fma_f32 v{V_ST+1}, -v{V_ST}, v{V_ST}, v{V_ST+1}"); e(f"v_max_f32 v{V_ST+1}, 0, v{V_ST+1}"); e(f"v_add_f32 v{V_ST+1}, {hexf(1e-5)}, v{V_ST+1}")
    for T in range(5):
        e(f"v_mov_b32 v{112+T}, v{V_CS+T}")
    e("s_nop 0")
    for T in range(5):
        e(f"v_permlane32_swap_b32 v{112+T}, v{V_CS+T}")
    for T in range(5):
        e(f"v_add_f32 v{V_CS+T}, v{112+T}, v{V_CS+T}")
    e("v_and_b32 v21, 31, v0"); e("v_lshlrev_b32 v21, 2, v21")
    e(f"s_mul_i32 s44, s{S_WV}, 640"); e(f"s_add_u32 s44, s44, {XCH_OFF}"); e("v_add_u32 v29, s44, v21")
    for T in range(5): e(f"ds_write_b32 v29, v{V_CS+T} offset:{128*T}")
    SG, RR, AA, BB, MM = 118, 119, 120, 122, 124
    e(f"v_sqrt_f32 v{SG}, v{V_ST+1}"); e("s_nop 0"); e(f"v_rcp_f32 v{RR}, v{SG}"); e("s_nop 0")
    e(f"v_mul_f32 v{BB}, {hexf(GELU_C0)}, v{RR}"); e(f"v_mul_f32 v{AA}, v{RR}, v{RR}"); e(f"v_mul_f32 v{AA}, v{AA}, v{RR}"); e(f"v_mul_f32 v{AA}, {hexf(GELU_C1)}, v{AA}")
    e(f"v_mov_b32 v{AA+1}, v{AA}"); e(f"v_mov_b32 v{BB+1}, v{BB}"); e(f"v_mov_b32 v126, v{SG}"); e(f"v_mov_b32 v127, v{SG}")
    e(f"v_sub_f32 v{MM}, 0, v{V_ST}"); e(f"v_mov_b32 v{MM+1}, v{MM}")
    e("s_waitcnt lgkmcnt(0)"); e("s_barrier")
    e(f"v_add_u32 v29, {XCH_OFF}, v21")
    for T in range(5):
        for wv in range(4): e(f"ds_read_b32 v{128+4*T+wv}, v29 offset:{640*wv+128*T}")
        if T == 2: e("s_waitcnt lgkmcnt(0)")
    e("s_waitcnt lgkmcnt(0)")
    for T in range(5):
        e(f"v_add_f32 v{128+4*T}, v{128+4*T}, v{129+4*T}"); e(f"v_add_f32 v{130+4*T}, v{130+4*T}, v{131+4*T}"); e(f"v_add_f32 v{128+4*T}, v{128+4*T}, v{130+4*T}")
    e(f"s_mul_i32 s44, s{S_WV}, 640"); e(f"s_add_u32 s44, s44, {XCH_OFF+2560}"); e("v_add_u32 v29, s44, v21")
    for T in range(5): e(f"ds_write_b32 v29, v{128+4*T} offset:{128*T}")
    e("v_lshrrev_b32 v21, 5, v0"); e("v_lshlrev_b32 v21, 4, v21"); e("v_add_u32 v29, s44, v21")
    e("s_waitcnt lgkmcnt(0)")
    e(f"s_lshl_b32 s45, s{S_RB}, 7"); e(f"s_lshl_b32 s46, s{S_WV}, 5"); e("s_add_u32 s45, s45, s46")
    e(f"s_lshr_b32 s46, s{S_CQ}, 1"); e("s_add_u32 s46, s46, 1"); e("s_sub_u32 s47, 0, s46"); e(f"s_bitcmp1_b32 s{S_CQ}, 0"); e("s_cselect_b32 s46, s47, s46")
    e("s_add_u32 s45, s45, s46")
    e("v_and_b32 v21, 31, v0"); e("v_add_u32 v21, s45, v21")
    e("v_cmp_gt_u32 vcc, 2048, v21")
    e("v_and_b32 v21, 2047, v21")
    e("v_lshrrev_b32 v30, 5, v21"); e("s_mov_b32 s47, 36864"); e("v_mul_lo_u32 v30, v30, s47")
    e("v_and_b32 v21, 31, v21"); e("v_lshlrev_b32 v21, 4, v21"); e("v_add_u32 v30, v30, v21")
    e("v_lshrrev_b32 v21, 5, v0"); e("v_lshlrev_b32 v21, 9, v21"); e("v_add_u32 v30, v30, v21")
    e("s_mov_b64 s[50:51], vcc")
    e(f"s_mul_i32 s47, s{S_CQ}, 9216"); e(f"s_add_u32 s47, s47, {LY.HS}")
    CS = 128; TT = 144
    def pk(op, d, a, b, c=None):
        s = f"v_pk_{op}_f32 {vr(d,2)}, {vr(a,2)}, {vr(b,2)}"
        if c is not None: s += f", {vr(c,2)}"
        return s
    u = 0
    for T in range(5):
        nj = 4 if T < 4 else 2
        for j in range(nj): e(f"ds_read_b128 {vr(CS+4*j,4)}, v29 offset:{128*T+32*j}")
        e("s_waitcnt lgkmcnt(0)")
        for half in range(nj // 2):
            a = ACC + 16 * T + 8 * half; cs = CS + 8 * half
            for i in range(0, 8, 2): e(pk("fma", a + i, MM, cs + i, a + i))
            for i in range(0, 8, 2): e(pk("mul", TT + i, a + i, a + i))
            for i in range(0, 8, 2): e(pk("fma", TT + i, TT + i, AA, BB))
            for i in range(0, 8, 2): e(pk("mul", TT + i, a + i, TT + i))
            for i in range(8): e(f"v_exp_f32 v{TT+i}, v{TT+i}")
            for i in range(0, 8, 2): e(pk("fma", TT + i, TT + i, 126, 126))
            for i in range(8): e(f"v_rcp_f32 v{TT+i}, v{TT+i}")
            for i in range(0, 8, 2): e(pk("mul", a + i, a + i, TT + i))
            p = 152 + 4 * (u % 2)
            for j in range(4): e(f"v_cvt_pk_bf16_f32 v{p+j}, v{a+2*j}, v{a+2*j+1}")
            for j in range(4): e(f"v_cndmask_b32 v{p+j}, 0, v{p+j}, s[50:51]")
            e(f"buffer_store_dwordx4 {vr(p,4)}, v30, s[{S_WS}:{S_WS+3}], s47 offen offset:{(u%4)*1024}")
            if u % 4 == 3: e("s_add_u32 s47, s47, 4096")
            u += 1
    e("s_endpgm")

def gen():
    e = Emit()
    kernel_head(e, NAME)
    e("s_cmp_ge_u32 s2, 256")
    e("s_cbranch_scc1 L1_exit")
    e(f"s_load_dwordx2 s[4:5], s[0:1], {KA_WS}")
    e(f"s_load_dwordx4 s[52:55], s[0:1], {KA_XA}")
    e(f"s_load_dwordx2 s[58:59], s[0:1], {KA_W1}")
    e(f"s_load_dwordx2 s[60:61], s[0:1], {KA_GW}")
    e("s_and_b32 s6, s2, 7"); e("s_lshr_b32 s7, s2, 3")
    e("v_lshrrev_b32 v1, 6, v0"); e("v_and_b32 v0, 63, v0")
    e(f"v_readfirstlane_b32 s{S_WV}, v1")
    e(f"s_and_b32 s{S_RB}, s6, 1"); e(f"s_lshl_b32 s{S_RB}, s{S_RB}, 3"); e("s_and_b32 s3, s7, 7"); e(f"s_add_u32 s{S_RB}, s{S_RB}, s3")
    e(f"s_lshr_b32 s{S_CQ}, s7, 3"); e("s_lshr_b32 s3, s6, 1"); e(f"s_lshl_b32 s{S_CT}, s3, 2"); e(f"s_add_u32 s{S_CT}, s{S_CT}, s{S_CQ}")
    e(f"v_lshlrev_b32 v{V_L16}, 4, v0")
    e("s_waitcnt lgkmcnt(0)")
    make_srd(e, S_WS, 4, LY.WS_END)
    e("s_cmp_eq_u32 s3, 3")
    e("s_cselect_b32 s64, s58, s54"); e("s_cselect_b32 s65, s59, s55")
    e(f"s_movk_i32 s{S_RS}, 3456"); e(f"s_cselect_b32 s{S_RS}, 1152, s{S_RS}")
    e(f"s_mov_b32 s67, {SLOT}"); e(f"s_mov_b32 s68, {(-3*SLOT) & 0xffffffff}")
    e(f"s_cselect_b32 s66, s{S_CQ}, s{S_CT}")
    make_srd(e, S_X, 52, 2048 * 576 * 2)
    e(f"s_mov_b32 s{S_W}, s64"); e(f"s_and_b32 s{S_W+1}, s65, 0xffff"); e(f"s_mul_i32 s{S_W+2}, s{S_RS}, 576"); e(f"s_mov_b32 s{S_W+3}, 0x20000")
    make_srd(e, S_GW, 60, 1152)
    e(f"s_lshl_b32 s{S_XO}, s{S_RB}, 2"); e(f"s_add_u32 s{S_XO}, s{S_XO}, s{S_WV}"); e(f"s_mul_i32 s{S_XO}, s{S_XO}, 36864")
    e(f"s_mul_i32 s{S_WO}, s66, 288")
    e(f"s_lshl_b32 s{S_WSTEP}, s{S_RS}, 6")
    setup_common(e)
    e("s_mov_b32 s40, 0x3f803f80")
    e("s_cmp_eq_u32 s3, 2"); e("s_cbranch_scc1 L1_v")
    e("s_cmp_eq_u32 s3, 3"); e("s_cbranch_scc1 L1_h")
    e(f"s_mov_b32 m0, {GW_OFF}"); e("s_nop 0")
    e(f"buffer_load_dwordx4 v{V_L16}, s[{S_GW}:{S_GW+3}], 0 offen lds")
    e(f"buffer_load_dwordx4 v{V_L16}, s[{S_GW}:{S_GW+3}], 0 offen offset:1024 lds")
    prologue_dma(e)
    waddr_heads(e, True)
    e("v_lshrrev_b32 v21, 5, v0"); e("v_lshlrev_b32 v21, 4, v21"); e(f"v_add_u32 v{V_GA}, {GW_OFF}, v21")
    e(f"v_mov_b32 v{V_ST}, 0")
    zero_acc(e)
    e("s_cmp_eq_u32 s3, 0")
    e(f"s_cselect_b32 s41, {hexf(QSCALE)}, 1.0"); e(f"s_mov_b32 s42, {LY.KF0}"); e(f"s_cselect_b32 s42, {LY.QF0}, s42"); e(f"s_mov_b32 s43, {LY.KX}"); e(f"s_cselect_b32 s43, {LY.QX}, s43")
    main_loop(e, "qk")
    epi_qk(e)
    e.label("L1_v")
    prologue_dma(e)
    waddr_heads(e, False)
    zero_acc(e)
    main_loop(e, "v")
    epi_v(e)
    e.label("L1_h")
    prologue_dma(e)
    waddr_dense(e)
    for i in range(7): e(f"v_mov_b32 v{V_ST+i}, 0")
    zero_acc(e)
    main_loop(e, "h")
    epi_h(e)
    e.label("L1_exit")
    e("s_endpgm")
    return e.text()
if __name__ == "__main__":
    t = gen()
    errs = check(t, "l1")
    for x in errs: print(x)
    print("instrs", sum(1 for l in t.split("\n") if l.startswith("    ")), "hazard errs", len(errs))
    assert all((n*3277)>>16 == n//20 for n in range(1280))
    open("l1.s","w").write(t)
```

```python
from gen_common import *
NAME = "l2_kernel"
LDS_BYTES = 110592
S_WS = 12
S_SRC = 16
S_XB = 20

def lane_tr_parts(e, vhf, vsub, vr_, vsig):
    e(f"v_lshrrev_b32 v{vhf}, 5, v0")
    e(f"v_bfe_u32 v{vsub}, v0, 4, 1")
    e(f"v_bfe_u32 v{vr_}, v0, 2, 2")
    e(f"v_and_b32 v{vsig}, 1, v0")
    e(f"v_lshlrev_b32 v{vsig}, 1, v{vsig}")
    e(f"v_bfe_u32 v15, v0, 1, 1")
    e(f"v_or_b32 v{vsig}, v{vsig}, v15")

def gen_gemm(e):
    e.label("L2_gemm")
    e("s_cmp_ge_u32 s7, 6"); e("s_cselect_b32 s9, 1, 0"); e("s_mul_i32 s10, s9, 6"); e("s_sub_u32 s10, s7, s10")
    e("s_lshl_b32 s11, s6, 1"); e("s_add_u32 s9, s9, s11")
    e("s_lshl_b32 s9, s9, 2"); e("s_add_u32 s9, s9, s8")
    e(f"s_load_dwordx2 s[24:25], s[0:1], {KA_W2}")
    e(f"s_load_dwordx2 s[26:27], s[0:1], {KA_XA}")
    e("v_lshlrev_b32 v1, 4, v0")
    for i in range(3):
        e(f"v_add_u32 v5, {64*i}, v0")
        e("v_mul_u32_u24 v6, 171, v5"); e("v_lshrrev_b32 v6, 11, v6")
        e("v_mul_u32_u24 v7, 12, v6"); e("v_sub_u32 v7, v5, v7")
        e("v_mul_u32_u24 v6, 1152, v6"); e("v_lshlrev_b32 v7, 4, v7"); e("v_add_u32 v6, v6, v7")
        e(f"v_subrev_u32 v{2+i}, {1024*i}, v6")
    lane_tr_parts(e, 5, 6, 7, 8)
    e("v_lshlrev_b32 v9, 3, v5"); e("v_add_u32 v9, v9, v7"); e("v_mul_u32_u24 v9, 192, v9")
    e("v_lshlrev_b32 v10, 5, v6"); e("v_add_u32 v9, v9, v10"); e("v_lshlrev_b32 v10, 3, v8"); e("v_add_u32 v9, v9, v10")
    e(f"v_add_u32 v10, {18*3072}, v9")
    TR = [9, 10]
    e("s_waitcnt lgkmcnt(0)")
    make_srd(e, S_SRC, 24, 576 * 576 * 2)
    make_srd(e, S_XB, 26, 2048 * 576 * 2)
    e("s_mul_i32 s28, s8, 18432"); e("s_mul_i32 s29, s10, 192"); e("s_add_u32 s28, s28, s29")
    e("s_mul_i32 s29, s8, 3072")
    e("s_mul_i32 s30, s9, 36864"); e(f"s_add_u32 s30, s30, {LY.HS}")
    for st in range(3):
        for i in range(3):
            g = 12 * st + 4 * i
            e(f"s_add_u32 m0, s29, {g*3072}")
            e(f"s_add_u32 s31, s28, {g*18432}")
            for k in range(3):
                e(f"buffer_load_dwordx4 v{2+k}, s[{S_SRC}:{S_SRC+3}], s31 offen offset:{k*1024} lds")
        for j in range(12 * st, 12 * st + 12):
            e(f"buffer_load_dwordx4 {ar(4*j,4)}, v1, s[{S_WS}:{S_WS+3}], s30 offen offset:{(j%4)*1024}")
            if j % 4 == 3: e("s_add_u32 s30, s30, 4096")
    ACC = 16; WB = 64; XB = 100
    def reads(ks):
        o = []
        b = WB + 12 * (ks % 3); tr = TR[ks // 18]; kk = ks % 18
        for T in range(3):
            for q in range(2):
                o.append(f"ds_read_b64_tr_b16 {vr(b+4*T+2*q,2)}, v{tr} offset:{kk*3072 + q*768 + 64*T}")
        return o
    e("v_and_b32 v11, 31, v0"); e("s_movk_i32 s32, 1152"); e("v_mul_lo_u32 v12, v11, s32"); e("v_lshlrev_b32 v13, 4, v5"); e("v_add_u32 v12, v12, v13")
    e("s_mul_i32 s33, s9, 36864"); e("s_mul_i32 s34, s10, 192"); e("s_add_u32 s33, s33, s34")
    for st in range(3):
        e(f"s_waitcnt vmcnt({[42, 27, 6][st]})")
        e("s_barrier")
        if st == 0:
            for u in range(6):
                e(f"buffer_load_dwordx4 {vr(XB+4*u,4)}, v12, s[{S_XB}:{S_XB+3}], s33 offen offset:{u*32}")
        k0 = 12 * st
        e.extend(reads(k0)); e.extend(reads(k0 + 1))
        for ks in range(k0, k0 + 12):
            nxt = ks + 2 < k0 + 12
            e(f"s_waitcnt lgkmcnt({6 if ks + 1 < k0 + 12 else 0})")
            b = WB + 12 * (ks % 3)
            rd = reads(ks + 2) if nxt else []
            for T in range(3):
                e(f"v_mfma_f32_32x32x16_bf16 {vr(ACC+16*T,16)}, {vr(b+4*T,4)}, {ar(4*ks,4)}, " + ("0" if ks == 0 else vr(ACC + 16 * T, 16)))
                e.extend(rd[2 * T:2 * T + 2])
    e("s_mov_b32 s34, 0x00003f80"); e("s_mov_b32 s35, 0x3f800000"); e("s_mov_b32 s36, 0x3f803f80")
    e("s_mul_i32 s37, s9, 36"); e("s_mul_i32 s38, s10, 6"); e("s_add_u32 s37, s37, s38"); e("s_lshl_b32 s37, s37, 10"); e(f"s_add_u32 s37, s37, {LY.X1F}")
    e("v_mov_b32 v2, 0"); e("v_mov_b32 v3, 0")
    e("s_waitcnt vmcnt(0)")
    e("s_nop 7")
    for u in range(6):
        T, hq = divmod(u, 2); b = ACC + 16 * T + 8 * hq; x = XB + 4 * u; P = 64 + 4 * u
        for j in range(4):
            e(f"v_dot2c_f32_bf16 v{b+2*j}, s34, v{x+j}")
            e(f"v_dot2c_f32_bf16 v{b+2*j+1}, s35, v{x+j}")
        e("s_nop 2")
        for j in range(4): e(f"v_cvt_pk_bf16_f32 v{P+j}, v{b+2*j}, v{b+2*j+1}")
        e(f"buffer_store_dwordx4 {vr(P,4)}, v1, s[{S_WS}:{S_WS+3}], s37 offen offset:{(u%4)*1024}")
        if u == 3: e("s_add_u32 s37, s37, 4096")
        for j in range(4):
            e(f"v_dot2c_f32_bf16 v2, s36, v{P+j}")
            e(f"v_dot2c_f32_bf16 v3, v{P+j}, v{P+j}")
    e("v_lshlrev_b32 v4, 14, v5"); e("v_lshlrev_b32 v6, 3, v11"); e("v_add_u32 v4, v4, v6")
    e("s_lshl_b32 s38, s10, 15"); e("s_lshl_b32 s39, s9, 8"); e("s_add_u32 s38, s38, s39"); e(f"s_add_u32 s38, s38, {LY.ST2}")
    e("s_nop 1")
    e(f"buffer_store_dwordx2 v[2:3], v4, s[{S_WS}:{S_WS+3}], s38 offen")
    e("s_endpgm")

def slice_phase(e, sft, kind, sdst):
    e(f"s_mul_i32 s40, s{sft}, 3641"); e("s_lshr_b32 s40, s40, 16")
    e(f"s_mul_i32 s41, s40, 18"); e(f"s_sub_u32 s41, s{sft}, s41")
    if kind == "S1":
        e("s_lshl_b32 s42, s41, 1"); e("s_sub_u32 s42, s42, 1")
        e("s_cmp_lt_u32 s41, 2"); e("s_cselect_b32 s42, s41, s42")
    else:
        e("s_lshl_b32 s42, s41, 1"); e("s_add_u32 s42, s42, 2"); e("s_min_u32 s42, s42, 35")
    e("s_mul_i32 s40, s40, 36"); e("s_add_u32 s40, s40, s42"); e(f"s_mul_i32 s{sdst}, s40, 36864"); e(f"s_add_u32 s{sdst}, s{sdst}, {LY.W34}")

def dma_rows128(e, rowbytes, swz):
    e("v_lshrrev_b32 v5, 3, v0"); e("v_and_b32 v6, 7, v0")
    if swz:
        e("v_bfe_u32 v7, v0, 4, 1"); e("v_lshlrev_b32 v7, 2, v7"); e("v_xor_b32 v6, v6, v7")
    e(f"s_mov_b32 s32, {rowbytes}"); e("v_mul_lo_u32 v5, v5, s32"); e("v_lshlrev_b32 v6, 4, v6"); e("v_add_u32 v2, v5, v6")
    e(f"s_mul_i32 s29, s8, {144*rowbytes}"); e("s_add_u32 s29, s29, s28")
    e("s_mul_i32 s31, s8, 18432")
    for i in range(18):
        e(f"s_add_u32 m0, s31, {i*1024}")
        e(f"s_add_u32 s30, s29, {i*8*rowbytes}")
        e(f"buffer_load_dwordx4 v2, s[{S_SRC}:{S_SRC+3}], s30 offen lds")

def gen_w3(e):
    e.label("L2_w3")
    e(f"s_load_dwordx2 s[24:25], s[0:1], {KA_W3}")
    e("v_lshlrev_b32 v1, 4, v0")
    e("s_lshl_b32 s28, s9, 7")
    e("s_waitcnt lgkmcnt(0)")
    make_srd(e, S_SRC, 24, 576 * 4608 * 2)
    dma_rows128(e, 9216, True)
    lane_tr_parts(e, 5, 6, 7, 8)
    e("s_and_b32 s33, s8, 1"); e("s_lshr_b32 s34, s8, 1")
    e("v_lshlrev_b32 v9, 1, v6"); e("v_lshrrev_b32 v10, 1, v8"); e("v_add_u32 v9, v9, v10")
    e("s_lshl_b32 s35, s33, 2"); e("v_add_u32 v9, s35, v9")
    e("v_lshrrev_b32 v10, 1, v7"); e("v_lshlrev_b32 v10, 2, v10"); e("v_xor_b32 v9, v9, v10")
    e("v_lshlrev_b32 v9, 4, v9"); e("v_and_b32 v10, 1, v8"); e("v_lshlrev_b32 v10, 3, v10"); e("v_add_u32 v9, v9, v10")
    e("v_lshlrev_b32 v10, 3, v5"); e("v_add_u32 v10, v10, v7"); e("v_lshlrev_b32 v10, 7, v10"); e("v_add_u32 v9, v9, v10")
    e("s_mul_i32 s35, s34, 36864"); e("v_add_u32 v9, s35, v9")
    F = 16
    e("s_waitcnt vmcnt(0)"); e("s_barrier")
    for k in range(18):
        for q in range(2):
            e(f"ds_read_b64_tr_b16 {vr(F+4*k+2*q,2)}, v9 offset:{k*2048+q*512}")
    e("s_mov_b32 s36, 0x3f803f80"); e("s_mov_b32 s37, 0x00003f80"); e("s_mov_b32 s38, 0x3f800000")
    for a in range(4): e(f"v_mov_b32 v{10+a}, 0")
    for k in range(18):
        if k % 3 == 0: e(f"s_waitcnt lgkmcnt({min(15, 36 - 2*(k+3))})")
        for j in range(4): e(f"v_dot2c_f32_bf16 v{10+j}, s36, v{F+4*k+j}")
    e("s_nop 2")
    e("v_add_f32 v10, v10, v11"); e("v_add_f32 v12, v12, v13"); e("v_add_f32 v10, v10, v12")
    e("v_mov_b32 v11, v10"); e("s_nop 1"); e("v_permlane32_swap_b32 v10, v11"); e("v_add_f32 v10, v10, v11")
    e("v_lshlrev_b32 v12, 2, v0"); e("s_lshl_b32 s35, s8, 8"); e("s_add_u32 s35, s35, 73728"); e("v_add_u32 v13, s35, v12")
    e("ds_write_b32 v13, v10")
    e("s_xor_b32 s35, s8, 2"); e("s_lshl_b32 s35, s35, 8"); e("s_add_u32 s35, s35, 73728"); e("v_add_u32 v13, s35, v12")
    e("s_waitcnt lgkmcnt(0)"); e("s_barrier")
    e("ds_read_b32 v11, v13"); e("s_waitcnt lgkmcnt(0)")
    e("v_add_f32 v10, v10, v11"); e(f"v_mul_f32 v10, {hexf(-1/576)}, v10")
    e("s_lshl_b32 s39, s9, 1"); e("s_add_u32 s39, s39, s33")
    slice_phase(e, 39, "S1", 43)
    e("s_mul_i32 s35, s34, 18432"); e("s_add_u32 s43, s43, s35")
    TS = [88, 96]
    def fin(k):
        t = TS[k % 2]
        for j in range(4): e(f"v_cvt_pk_bf16_f32 v{F+4*k+j}, v{t+2*j}, v{t+2*j+1}")
        e(f"buffer_store_dwordx4 {vr(F+4*k,4)}, v1, s[{S_WS}:{S_WS+3}], s43 offen offset:{(k%4)*1024}")
        if k % 4 == 3: e("s_add_u32 s43, s43, 4096")
    for k in range(18):
        t = TS[k % 2]
        for j in range(4):
            e(f"v_dot2_f32_bf16 v{t+2*j}, v{F+4*k+j}, s37, v10")
            e(f"v_dot2_f32_bf16 v{t+2*j+1}, v{F+4*k+j}, s38, v10")
        if k > 0: fin(k - 1)
    e("s_nop 2")
    fin(17)
    e("s_endpgm")

def gen_w4(e):
    e.label("L2_w4")
    e(f"s_load_dwordx2 s[24:25], s[0:1], {KA_W4}")
    e("v_lshlrev_b32 v1, 4, v0")
    for i in range(9):
        e("v_lshrrev_b32 v5, 3, v0"); e(f"v_add_u32 v5, {8*i}, v5")
        e("v_mul_u32_u24 v6, 57, v5"); e("v_lshrrev_b32 v6, 9, v6")
        e("v_mul_u32_u24 v7, 9, v6"); e("v_sub_u32 v7, v5, v7")
        e("v_and_b32 v8, 7, v0"); e("v_bfe_u32 v9, v6, 1, 1"); e("v_lshlrev_b32 v9, 2, v9"); e("v_xor_b32 v8, v8, v9")
        e("v_mul_u32_u24 v6, 1152, v6"); e("v_lshlrev_b32 v7, 7, v7"); e("v_lshlrev_b32 v8, 4, v8")
        e(f"v_add3_u32 v{16+i}, v6, v7, v8")
    e("s_waitcnt lgkmcnt(0)")
    make_srd(e, S_SRC, 24, 576 * 4608 * 2)
    e("s_lshl_b32 s28, s9, 2"); e("s_add_u32 s28, s28, s8"); e("s_mul_i32 s28, s28, 18432")
    e("s_mul_i32 s31, s8, 18432")
    for h in range(2):
        e(f"s_add_u32 s30, s28, {h*9216}")
        for i in range(9):
            e(f"s_add_u32 m0, s31, {h*9216+i*1024}")
            e("s_nop 0")
            e(f"buffer_load_dwordx4 v{16+i}, s[{S_SRC}:{S_SRC+3}], s30 offen lds")
    lane_tr_parts(e, 5, 6, 7, 8)
    e("v_lshlrev_b32 v9, 1, v6"); e("v_lshrrev_b32 v10, 1, v8"); e("v_add_u32 v9, v9, v10")
    e("v_lshrrev_b32 v10, 1, v7"); e("v_lshlrev_b32 v10, 2, v10")
    e("v_xor_b32 v11, v9, v10"); e("v_xor_b32 v12, 4, v11")
    e("v_and_b32 v13, 1, v8"); e("v_lshlrev_b32 v13, 3, v13")
    e("v_lshlrev_b32 v14, 3, v5"); e("v_add_u32 v14, v14, v7"); e("v_mul_u32_u24 v14, 1152, v14"); e("v_add_u32 v14, v14, v13"); e("v_add_u32 v14, s31, v14")
    e("v_lshlrev_b32 v11, 4, v11"); e("v_lshlrev_b32 v12, 4, v12"); e("v_add_u32 v11, v11, v14"); e("v_add_u32 v12, v12, v14")
    F = 32
    e("s_waitcnt vmcnt(0)")
    for dt in range(18):
        for q in range(2):
            e(f"ds_read_b64_tr_b16 {vr(F+4*dt+2*q,2)}, v{11+(dt&1)} offset:{(dt>>1)*128 + q*4608}")
    e("s_lshl_b32 s39, s9, 1"); e("s_lshr_b32 s35, s8, 1"); e("s_add_u32 s39, s39, s35")
    slice_phase(e, 39, "S2", 43)
    e("s_and_b32 s35, s8, 1"); e("s_mul_i32 s35, s35, 18432"); e("s_add_u32 s43, s43, s35")
    for dt in range(18):
        if dt % 3 == 0: e(f"s_waitcnt lgkmcnt({min(15, 36 - 2*(dt+3))})")
        e(f"buffer_store_dwordx4 {vr(F+4*dt,4)}, v1, s[{S_WS}:{S_WS+3}], s43 offen offset:{(dt%4)*1024}")
        if dt % 4 == 3: e("s_add_u32 s43, s43, 4096")
    e("s_endpgm")

def gen_wo(e):
    e.label("L2_wo")
    e(f"s_load_dwordx2 s[24:25], s[0:1], {KA_WO}")
    e("v_lshlrev_b32 v1, 4, v0")
    e("s_mul_i32 s10, s9, 86"); e("s_lshr_b32 s10, s10, 8")
    e("s_mul_i32 s11, s10, 3"); e("s_sub_u32 s11, s9, s11")
    e("s_mul_i32 s28, s10, 288"); e("s_lshl_b32 s29, s11, 7"); e("s_add_u32 s28, s28, s29")
    e("s_waitcnt lgkmcnt(0)")
    make_srd(e, S_SRC, 24, 576 * 576 * 2)
    dma_rows128(e, 1152, False)
    lane_tr_parts(e, 5, 6, 7, 8)
    e("s_and_b32 s33, s8, 1"); e("s_lshr_b32 s34, s8, 1")
    e("v_lshlrev_b32 v9, 5, v6"); e("v_lshlrev_b32 v10, 3, v8"); e("v_add_u32 v9, v9, v10"); e("s_lshl_b32 s35, s33, 6"); e("v_add_u32 v9, s35, v9")
    e("v_lshlrev_b32 v10, 2, v5"); e("v_add_u32 v10, v10, v7"); e("v_lshlrev_b32 v10, 7, v10"); e("v_add_u32 v10, v10, v9")
    e(f"s_mul_i32 s35, s34, {324*128}"); e("v_add_u32 v10, s35, v10")
    e("v_lshrrev_b32 v11, 1, v7"); e("v_lshlrev_b32 v12, 2, v5"); e("v_add_u32 v12, v12, v11"); e("v_mul_u32_u24 v12, 18, v12")
    e("v_xor_b32 v11, 1, v11"); e("v_lshlrev_b32 v11, 4, v11"); e("v_add_u32 v12, v12, v11"); e("v_and_b32 v11, 1, v7"); e("v_add_u32 v12, v12, v11")
    e("v_lshlrev_b32 v12, 7, v12"); e("v_add_u32 v12, v12, v9")
    F = 16
    e("s_waitcnt vmcnt(0)"); e("s_barrier")
    for k in range(14):
        for q in range(2):
            e(f"ds_read_b64_tr_b16 {vr(F+4*k+2*q,2)}, v10 offset:{(18*k + 8*q + 2*(k&1))*128}")
    e("s_cmp_eq_u32 s34, 0"); e("s_cbranch_scc0 L2_wo_x")
    for k in range(14, 18):
        for q in range(2):
            e(f"ds_read_b64_tr_b16 {vr(F+4*k+2*q,2)}, v10 offset:{(18*k + 8*q + 2*(k&1))*128}")
    e("s_branch L2_wo_y")
    e.label("L2_wo_x")
    for k in range(14, 18):
        for q in range(2):
            e(f"ds_read_b64_tr_b16 {vr(F+4*k+2*q,2)}, v12 offset:{18*(8*(k-14) + 2*q)*128}")
    e.label("L2_wo_y")
    e("s_lshl_b32 s35, s11, 1"); e("s_add_u32 s35, s35, s33")
    e("s_cmp_eq_u32 s35, 5"); e("s_cbranch_scc1 L2_exit")
    e("s_mul_i32 s36, s10, 5"); e("s_add_u32 s36, s36, s35"); e("s_mul_i32 s36, s36, 36"); e("s_mul_i32 s37, s34, 18"); e("s_add_u32 s36, s36, s37")
    e("s_lshl_b32 s43, s36, 10"); e(f"s_add_u32 s43, s43, {LY.WOP}")
    e("s_waitcnt lgkmcnt(0)")
    for k in range(18):
        e(f"buffer_store_dwordx4 {vr(F+4*k,4)}, v1, s[{S_WS}:{S_WS+3}], s43 offen offset:{(k%4)*1024}")
        if k % 4 == 3: e("s_add_u32 s43, s43, 4096")
    e("s_endpgm")

def gen():
    e = Emit()
    kernel_head(e, NAME)
    e("s_cmp_ge_u32 s2, 256")
    e("s_cbranch_scc1 L2_exit")
    e(f"s_load_dwordx2 s[4:5], s[0:1], {KA_WS}")
    e("s_and_b32 s6, s2, 7")
    e("s_lshr_b32 s7, s2, 3")
    e("v_lshrrev_b32 v1, 6, v0")
    e("v_and_b32 v0, 63, v0")
    e("v_readfirstlane_b32 s8, v1")
    e("s_waitcnt lgkmcnt(0)")
    make_srd(e, S_WS, 4, LY.WS_END)
    e("s_cmp_lt_u32 s7, 12")
    e("s_cbranch_scc1 L2_gemm")
    e("s_sub_u32 s9, s2, 96")
    e("s_cmp_lt_u32 s9, 72")
    e("s_cbranch_scc1 L2_w3")
    e("s_sub_u32 s9, s9, 72")
    e("s_cmp_lt_u32 s9, 72")
    e("s_cbranch_scc1 L2_w4")
    e("s_sub_u32 s9, s9, 72")
    e("s_cmp_lt_u32 s9, 12")
    e("s_cbranch_scc1 L2_wo")
    e("s_endpgm")
    gen_gemm(e); gen_w3(e); gen_w4(e); gen_wo(e)
    e.label("L2_exit")
    e("s_endpgm")
    return e.text()
if __name__ == "__main__":
    t = gen()
    errs = check(t, "l2")
    for x in errs: print(x)
    print("instrs", sum(1 for l in t.split("\n") if l.startswith("    ")), "hazard errs", len(errs))
    assert all((n*171)>>11 == n//12 for n in range(192))
    assert all((n*57)>>9 == n//9 for n in range(72))
    assert all((n*3641)>>16 == n//18 for n in range(144))
    assert all((n*86)>>8 == n//3 for n in range(12))
```

```python
from gen_common import *

NAME = "l3_kernel"
LDS_BYTES = 4 * 36864

V_LANE16 = 1
V_DMA    = 2
V_A, V_B, V_S = 3, 4, 5
V_T = 6
V_RD = 14
V_SLOT = [12+0, 12+1, 12+2, 12+3]
V_T0 = [6, 7, 8, 9]
V_W = 16
NB = 6
V_HP = 40
V_H = [48, 64]
def OUT(dt):
    return (True, 80 + 16 * dt) if dt < 11 else (False, 144 + 16 * (dt - 11))
def outreg(dt):
    isv_, b = OUT(dt)
    return vr(b, 16) if isv_ else ar(b, 16)
S_SRD = 12
S_W, S_J = 8, 7
S_M0B = 18
S_D0, S_D1, S_D2 = 19, 20, 21
S_CNT = 22

def gelu_group(H, elems, temps):
    o = []
    for e_, t in zip(elems, temps): o.append(f"v_mul_f32 v{t}, v{H+e_}, v{H+e_}")
    for e_, t in zip(elems, temps): o.append(f"v_fma_f32 v{t}, v{t}, v{V_A}, v{V_B}")
    for e_, t in zip(elems, temps): o.append(f"v_mul_f32 v{t}, v{H+e_}, v{t}")
    for e_, t in zip(elems, temps): o.append(f"v_exp_f32 v{t}, v{t}")
    for e_, t in zip(elems, temps): o.append(f"v_fma_f32 v{t}, v{t}, v{V_S}, v{V_S}")
    for e_, t in zip(elems, temps): o.append(f"v_rcp_f32 v{t}, v{t}")
    for e_, t in zip(elems, temps): o.append(f"v_mul_f32 v{H+e_}, v{H+e_}, v{t}")
    return o
TA = [6, 7, 8, 9]
def gelu_groups(H, gs):
    o = []
    for g in gs: o += gelu_group(H, range(4 * g, 4 * g + 4), TA)
    return o
def cvts(H, js):
    return [f"v_cvt_pk_bf16_f32 v{V_HP+j}, v{H+2*j}, v{H+2*j+1}" for j in js]

def s1_mfmas(c):
    H = V_H[c & 1]
    return [f"v_mfma_f32_32x32x16_bf16 {vr(H,16)}, {vr(V_W+4*(j%NB),4)}, {ar(4*j,4)}, " + ("0" if j == 0 else vr(H, 16)) for j in range(36)]
def s2_mfmas():
    o = []
    for m in range(36):
        q, dt = divmod(m, 18)
        o.append(f"v_mfma_f32_32x32x16_bf16 {outreg(dt)}, {vr(V_W+4*(m%NB),4)}, {vr(V_HP+4*q,4)}, {outreg(dt)}")
    return o

def rd(slot, m):
    return f"ds_read_b128 {vr(V_W+4*(m%NB),4)}, v{V_SLOT[slot]} offset:{m*1024}"

def dma_instrs(slot):
    g = []
    for i in range(9):
        grp, k = divmod(i, 4)
        pre = []
        if k == 0:
            pre.append(f"s_add_u32 m0, s{S_M0B}, {slot*36864 + grp*4096}")
            pre.append("s_nop 0") if False else None
        sreg = [S_D0, S_D1, S_D2][grp]
        g.append((pre, f"buffer_load_dwordx4 v{V_DMA}, s[{S_SRD}:{S_SRD+3}], s{sreg} offen offset:{k*1024} lds"))
    return g
def dma_advance():
    return [f"s_add_u32 s{S_D0}, s{S_D0}, 36864", f"s_add_u32 s{S_D1}, s{S_D1}, 36864", f"s_add_u32 s{S_D2}, s{S_D2}, 36864"]

def phase(e, mf, slot, has_next, dma_slot, fill, fill_range, last_vm=9, tail=None):
    gaps = {}
    nslot = (slot + 1) % 4
    for j in range(36):
        L = gaps.setdefault(j, [])
        m = j + NB
        if j == 36 - NB - 1 + 0 and False: pass
        if m < 36:
            L.append(rd(slot, m))
        elif has_next:
            if m == 36:
                L.append(f"s_waitcnt vmcnt({last_vm})")
                L.append("s_barrier")
            L.append(rd(nslot, m - 36))
    if dma_slot is not None:
        d = dma_instrs(dma_slot)
        pos = [1, 4, 7, 10, 13, 16, 19, 22, 25]
        for (pre, ld), p in zip(d, pos):
            if pre: gaps[p - 1] += pre
            gaps[p].append(ld)
        gaps[27] += dma_advance()
    if fill:
        spread(gaps, fill, fill_range[0], fill_range[1])
    for j in range(36):
        nxt = j + 1
        if nxt % 2 == 0:
            if nxt < 36:
                last_issued = j + NB if (has_next or j + NB < 36) else 35
                allowed = last_issued - (nxt + 1)
                gaps[j].append(f"s_waitcnt lgkmcnt({allowed})")
            elif has_next:
                gaps[j].append(f"s_waitcnt lgkmcnt({NB-2})")
    e.extend(weave(mf, gaps))
    if tail: e.extend(tail)

def gen_mlp(e):
    e.label("L3_mlp")
    e(f"s_lshl_b32 s9, s7, 2")
    e(f"s_add_u32 s9, s9, s{S_W}")
    e(f"s_mul_i32 s{S_M0B}, s{S_W}, 9216")
    e(f"s_mul_i32 s10, s6, {36*36864}")
    e(f"s_add_u32 s{S_D0}, s10, {LY.W34}")
    e(f"s_add_u32 s{S_D1}, s{S_D0}, 4096")
    e(f"s_add_u32 s{S_D2}, s{S_D0}, 8192")
    e(f"v_lshlrev_b32 v{V_LANE16}, 4, v0")
    e(f"v_add_u32 v{V_DMA}, s{S_M0B}, v{V_LANE16}")
    for s in range(4):
        e(f"v_add_u32 v{V_SLOT[s]}, {s*36864}, v{V_LANE16}")
    for pre, ld in dma_instrs(0):
        for p in pre: e(p)
        if pre: e("s_nop 0")
        e(ld)
    for a in dma_advance(): e(a)
    e(f"s_mul_i32 s16, s9, 36864")
    e(f"s_add_u32 s16, s16, {LY.X1F}")
    for j in range(36):
        e(f"buffer_load_dwordx4 {ar(4*j,4)}, v{V_LANE16}, s[{S_SRD}:{S_SRD+3}], s16 offen offset:{(j%4)*1024}")
        if j % 4 == 3 and j != 35: e("s_add_u32 s16, s16, 4096")
    e("v_and_b32 v6, 31, v0")
    e("v_lshlrev_b32 v6, 3, v6")
    e("s_lshl_b32 s17, s9, 8")
    e(f"s_add_u32 s17, s17, {LY.ST2}")
    for p in range(12):
        e(f"buffer_load_dwordx2 {vr(48+2*p,2)}, v6, s[{S_SRD}:{S_SRD+3}], s17 offen")
        if p != 11: e("s_add_u32 s17, s17, 16384")
    for pre, ld in dma_instrs(1):
        for p in pre: e(p)
        if pre: e("s_nop 0")
        e(ld)
    for a in dma_advance(): e(a)
    for i in range(4): e(f"v_mov_b32 v{V_W+i}, 0")
    e("s_nop 1")
    for dt in range(18):
        e(f"v_mfma_f32_32x32x16_bf16 {outreg(dt)}, {vr(V_W,4)}, {vr(V_W,4)}, 0")
    e("s_waitcnt vmcnt(9)")
    for p in range(1, 12):
        e(f"v_add_f32 v48, v48, v{48+2*p}")
        e(f"v_add_f32 v49, v49, v{49+2*p}")
    e(f"v_mul_f32 v48, {hexf(1/576)}, v48")
    e(f"v_mul_f32 v49, {hexf(1/576)}, v49")
    e(f"v_fma_f32 v49, -v48, v48, v49")
    e(f"v_max_f32 v49, 0, v49")
    e(f"v_add_f32 v49, {hexf(1e-5)}, v49")
    e(f"v_sqrt_f32 v{V_S}, v49")
    e("s_nop 0")
    e(f"v_rcp_f32 v50, v{V_S}")
    e("s_nop 0")
    e(f"v_mul_f32 v{V_B}, {hexf(GELU_C0)}, v50")
    e(f"v_mul_f32 v51, v50, v50")
    e(f"v_mul_f32 v51, v51, v50")
    e(f"v_mul_f32 v{V_A}, {hexf(GELU_C1)}, v51")
    e("s_barrier")
    for m in range(NB): e(rd(0, m))
    e(f"s_waitcnt lgkmcnt({NB-2})")
    phase(e, s1_mfmas(0), 0, True, 2, None, None)
    phase(e, s1_mfmas(1), 1, True, 3, gelu_groups(V_H[0], range(4)) + cvts(V_H[0], range(8)), (3, 35))
    e(f"s_mov_b32 s{S_CNT}, 8")
    e(".p2align 6")
    e.label("L3_mlp_loop")
    for half in range(2):
        Hn = V_H[(half + 1) & 1]
        sl = 2 + 2 * half
        phase(e, s2_mfmas(), sl % 4, True, (sl + 2) % 4, gelu_groups(Hn, [0, 1]), (3, 36))
        phase(e, s1_mfmas(half), (sl + 1) % 4, True, (sl + 3) % 4, cvts(Hn, range(2)) + gelu_groups(Hn, [2]) + cvts(Hn, range(2, 4)) + gelu_groups(Hn, [3]) + cvts(Hn, range(4, 8)), (0, 35))
    e(f"s_sub_u32 s{S_CNT}, s{S_CNT}, 1")
    e(f"s_cmp_lg_u32 s{S_CNT}, 0")
    e("s_cbranch_scc1 L3_mlp_loop")
    H = V_H[1]
    phase(e, s2_mfmas(), 2, True, None, gelu_groups(H, range(4)), (3, 36), last_vm=0, tail=cvts(H, range(8)) + ["s_nop 1"])
    phase(e, s2_mfmas(), 3, False, None, None, None)
    e(f"s_lshl_b32 s10, s6, 6")
    e(f"s_add_u32 s10, s10, s9")
    e(f"s_mul_i32 s10, s10, 36864")
    e(f"s_add_u32 s10, s10, {LY.PART}")
    e("s_nop 9")
    tb = [48, 56, 64, 72]
    for dt in range(18):
        isv_, b = OUT(dt)
        t = tb[dt % 4]
        if isv_:
            for j in range(8): e(f"v_cvt_pk_bf16_f32 v{t+j}, v{b+2*j}, v{b+2*j+1}")
        else:
            for j in range(16): e(f"v_accvgpr_read_b32 v{16+j}, a{b+j}")
            for j in range(8): e(f"v_cvt_pk_bf16_f32 v{t+j}, v{16+2*j}, v{16+2*j+1}")
        ks = 2 * dt
        e(f"buffer_store_dwordx4 {vr(t,4)}, v{V_LANE16}, s[{S_SRD}:{S_SRD+3}], s10 offen offset:{(ks%4)*1024}")
        e(f"buffer_store_dwordx4 {vr(t+4,4)}, v{V_LANE16}, s[{S_SRD}:{S_SRD+3}], s10 offen offset:{(ks%4+1)*1024}")
        if dt % 2 == 1 and dt != 17: e("s_add_u32 s10, s10, 4096")
    e("s_endpgm")

A_K0OFF, A_KXOFF, A_VOFF = 1, 2, 3
A_Q0 = 8
A_QX = 24
A_O = 32
A_S = [96, 112]
A_P = [128, 136]
A_SET = 144
def SET(i): return A_SET + 16 * (i % 4)
SA_K, SA_KX, SA_V = 16, 17, 18
SA_CNT = 22

def attn_loads(kt_set):
    b = SET(kt_set)
    return [f"buffer_load_dwordx4 {vr(b,4)}, v{A_K0OFF}, s[{S_SRD}:{S_SRD+3}], s{SA_K} offen",
            f"buffer_load_dword v{b+12}, v{A_KXOFF}, s[{S_SRD}:{S_SRD+3}], s{SA_KX} offen",
            f"buffer_load_dwordx4 {vr(b+4,4)}, v{A_VOFF}, s[{S_SRD}:{S_SRD+3}], s{SA_V} offen",
            f"buffer_load_dwordx4 {vr(b+8,4)}, v{A_VOFF}, s[{S_SRD}:{S_SRD+3}], s{SA_V} offen offset:608",
            f"s_add_u32 s{SA_K}, s{SA_K}, 1024",
            f"s_add_u32 s{SA_KX}, s{SA_KX}, 128",
            f"s_add_u32 s{SA_V}, s{SA_V}, 1216"]
def qk(n):
    kt, qi = divmod(n, 4); b = SET(kt); S = A_S[n & 1]
    return [f"v_mfma_f32_32x32x16_bf16 {vr(S,16)}, {vr(b,4)}, {vr(A_Q0+4*qi,4)}, 0",
            f"v_mfma_f32_32x32x8_bf16 {vr(S,16)}, {vr(b+12,2)}, {vr(A_QX+2*qi,2)}, {vr(S,16)}"]
def pv(n):
    kt, qi = divmod(n, 4); b = SET(kt); P = A_P[n & 1]; O = A_O + 16 * qi
    return [f"v_mfma_f32_32x32x16_bf16 {vr(O,16)}, {vr(b+4,4)}, {vr(P,4)}, {vr(O,16)}",
            f"v_mfma_f32_32x32x16_bf16 {vr(O,16)}, {vr(b+8,4)}, {vr(P+4,4)}, {vr(O,16)}"]
def expcvt(n):
    S = A_S[n & 1]; P = A_P[n & 1]
    ex = [f"v_exp_f32 v{S+i}, v{S+i}" for i in range(16)]
    cv = [f"v_cvt_pk_bf16_f32 v{P+j}, v{S+2*j}, v{S+2*j+1}" for j in range(8)]
    o = []
    o += ex[0:3] + [cv[0]]
    for j in range(1, 7): o += ex[2*j+1:2*j+3] + [cv[j]]
    o += [ex[15]]
    return o, cv[7]

def gen_attn(e, force_slow=False):
    e.label("L3_attn")
    e("s_sub_u32 s7, s7, 16")
    e("s_lshr_b32 s9, s7, 2")
    e("s_lshl_b32 s10, s6, 2")
    e("s_add_u32 s9, s9, s10")
    e("s_and_b32 s10, s7, 3")
    e("s_lshl_b32 s10, s10, 2")
    e(f"s_add_u32 s10, s10, s{S_W}")
    e("s_lshl_b32 s10, s10, 2")
    e(f"v_lshlrev_b32 v{A_K0OFF}, 4, v0")
    e("v_and_b32 v4, 31, v0")
    e(f"v_lshlrev_b32 v{A_KXOFF}, 2, v4")
    e("v_min_u32 v5, 18, v4")
    e("v_lshlrev_b32 v5, 4, v5")
    e("v_lshrrev_b32 v6, 5, v0")
    e("v_mul_u32_u24 v7, 304, v6")
    e(f"v_add_u32 v{A_VOFF}, v5, v7")
    e("s_lshl_b32 s11, s9, 16")
    e("s_lshl_b32 s23, s10, 10")
    e("s_add_u32 s23, s23, s11")
    e(f"s_add_u32 s23, s23, {LY.QF0}")
    for qi in range(4):
        e(f"buffer_load_dwordx4 {vr(A_Q0+4*qi,4)}, v{A_K0OFF}, s[{S_SRD}:{S_SRD+3}], s23 offen offset:{qi*1024}")
    e("s_lshl_b32 s24, s9, 13")
    e("s_lshl_b32 s23, s10, 7")
    e("s_add_u32 s23, s23, s24")
    e(f"s_add_u32 s23, s23, {LY.QX}")
    for qi in range(4):
        e(f"buffer_load_dword v{A_QX+2*qi}, v{A_KXOFF}, s[{S_SRD}:{S_SRD+3}], s23 offen offset:{qi*128}")
    e(f"s_add_u32 s{SA_K}, s11, {LY.KF0}")
    e(f"s_add_u32 s{SA_KX}, s24, {LY.KX}")
    e(f"s_mul_i32 s{SA_V}, s9, {LY.VHEAD}")
    e(f"s_add_u32 s{SA_V}, s{SA_V}, {LY.VF}")
    e("s_mov_b32 s26, s16"); e("s_mov_b32 s27, s17"); e("s_mov_b32 s28, s18")
    for kt in range(3):
        for x in attn_loads(kt): e(x)
    for i in range(64): e(f"v_mov_b32 v{A_O+i}, 0")
    for i in range(8): e(f"v_mov_b32 v{A_P[1]+i}, 0")
    for i in range(8): e(f"v_mov_b32 v{SET(3)+4+i}, 0")
    for s in range(4): e(f"v_mov_b32 v{SET(s)+13}, 0")
    for qi in range(4): e(f"v_mov_b32 v{A_QX+2*qi+1}, 0")
    e("v_cmp_gt_u32 vcc, 32, v0")
    e("s_waitcnt vmcnt(12)")
    e("s_nop 0")
    for qi in range(4): e(f"v_cndmask_b32 v{A_QX+2*qi}, 0, v{A_QX+2*qi}, vcc")
    e("s_waitcnt vmcnt(8)")
    for m in qk(0): e(m)
    e("s_nop 11")
    e(f"s_mov_b32 s{SA_CNT}, 16")
    e(".p2align 6")
    e.label("L3_attn_loop")
    for n in range(16):
        kt, qi = divmod(n, 4)
        q = qk((n + 1) % 16); p = pv((n - 1) % 16)
        va, last = expcvt(n)
        pre = []
        if qi == 3: pre = ["s_waitcnt vmcnt(8)"]
        seq = pre + [q[0]] + va[0:6] + [q[1]] + va[6:12] + [p[0]] + va[12:18] + [p[1]] + va[18:]
        if qi == 1:
            ld = attn_loads(kt + 3)
            seq += [ld[0], last] + ld[1:]
        else:
            seq += ["s_nop 0", last]
        e.extend(seq)
    e(f"s_sub_u32 s{SA_CNT}, s{SA_CNT}, 1")
    e(f"s_cmp_lg_u32 s{SA_CNT}, 0")
    e("s_cbranch_scc1 L3_attn_loop")
    e("s_nop 0")
    for m in pv(15): e(m)
    e("s_nop 15")
    e.label("L3_attn_fin")
    e("s_mul_i32 s23, s10, 36864")
    e(f"s_add_u32 s23, s23, {LY.OF}")
    e("s_lshl_b32 s24, s9, 10")
    e("s_add_u32 s24, s24, s23")
    e("s_lshr_b32 s25, s9, 3")
    e("s_add_u32 s25, s25, 32")
    e("s_lshl_b32 s25, s25, 10")
    e("s_add_u32 s25, s25, s23")
    e("s_lshr_b32 s29, s9, 2"); e("s_and_b32 s29, s29, 1"); e("s_lshl_b32 s29, s29, 9")
    e("s_add_u32 s25, s25, s29")
    e("s_and_b32 s29, s9, 3"); e("s_lshl_b32 s29, s29, 2")
    e("s_add_u32 s25, s25, s29")
    e("s_mov_b64 s[32:33], %d" % (0 if force_slow else -1))
    for qi in range(4):
        O = A_O + 16 * qi
        e(f"v_mov_b32 v4, v{O+10}")
        e(f"v_mov_b32 v5, v{O+10}")
        e("s_nop 1")
        e("v_permlane32_swap_b32 v4, v5")
        e(f"v_cmp_le_f32 vcc, {hexf(2.0**-60)}, v4")
        e("s_and_b64 s[32:33], s[32:33], vcc")
        e(f"v_cmp_ge_f32 vcc, {hexf(2.0**100)}, v4")
        e("s_and_b64 s[32:33], s[32:33], vcc")
        e("v_rcp_f32 v5, v4")
        e("s_nop 0")
        for r in range(10): e(f"v_mul_f32 v{O+r}, v{O+r}, v5")
        e("v_mov_b32 v6, 0")
        for r in range(10): e(f"v_fmac_f32 v6, 0, v{O+r}")
        e("v_cmp_o_f32 vcc, v6, v6")
        e("s_and_b64 s[32:33], s[32:33], vcc")
    e("s_cmp_eq_u32 s30, 0")
    e("s_cbranch_scc0 L3_attn_store")
    e("s_cmp_eq_u64 s[32:33], exec")
    e("s_cbranch_scc0 L3_attn_slow")
    e.label("L3_attn_store")
    e("v_and_b32 v4, 31, v0")
    e("v_lshlrev_b32 v4, 4, v4")
    for qi in range(4):
        O = A_O + 16 * qi
        t = A_S[0] + 8 * (qi % 2) + 0
        t = [96, 104, 112, 120][qi]
        for j in range(5): e(f"v_cvt_pk_bf16_f32 v{t+j}, v{O+2*j}, v{O+2*j+1}")
        e(f"buffer_store_dwordx4 {vr(t,4)}, v{A_K0OFF}, s[{S_SRD}:{S_SRD+3}], s24 offen")
        e("s_mov_b64 exec, 0xffffffff")
        e(f"buffer_store_dword v{t+4}, v4, s[{S_SRD}:{S_SRD+3}], s25 offen")
        e("s_mov_b64 exec, -1")
        if qi != 3:
            e("s_add_u32 s24, s24, 36864")
            e("s_add_u32 s25, s25, 36864")
    e("s_endpgm")
    e.label("L3_attn_slow")
    M = 144 + 64
    e("s_mov_b32 s30, 1")
    e("s_mov_b32 s16, s26"); e("s_mov_b32 s17, s27"); e("s_mov_b32 s18, s28")
    for i in range(64): e(f"v_mov_b32 v{A_O+i}, 0")
    for qi in range(4): e(f"v_mov_b32 v{M+qi}, 0xff800000")
    e(f"v_mov_b32 v{SET(0)+13}, 0")
    e(f"s_mov_b32 s{SA_CNT}, 64")
    e.label("L3_attn_slow_loop")
    e("s_waitcnt vmcnt(0)")
    for x in attn_loads(0): e(x)
    e("s_waitcnt vmcnt(0)")
    for qi in range(4):
        S = A_S[0]; P = A_P[0]; O = A_O + 16 * qi; b = SET(0)
        e(f"v_mfma_f32_32x32x16_bf16 {vr(S,16)}, {vr(b,4)}, {vr(A_Q0+4*qi,4)}, 0")
        e(f"v_mfma_f32_32x32x8_bf16 {vr(S,16)}, {vr(b+12,2)}, {vr(A_QX+2*qi,2)}, {vr(S,16)}")
        e("s_nop 11")
        e(f"v_max3_f32 v4, v{S}, v{S+1}, v{S+2}")
        for i in range(3, 15, 2): e(f"v_max3_f32 v4, v4, v{S+i}, v{S+i+1}")
        e(f"v_max_f32 v4, v4, v{S+15}")
        e("v_mov_b32 v5, v4")
        e("s_nop 1")
        e("v_permlane32_swap_b32 v4, v5")
        e("v_max_f32 v4, v4, v5")
        e(f"v_max_f32 v4, v4, v{M+qi}")
        e(f"v_sub_f32 v5, v{M+qi}, v4")
        e("v_exp_f32 v5, v5")
        e(f"v_mov_b32 v{M+qi}, v4")
        for i in range(16): e(f"v_sub_f32 v{S+i}, v{S+i}, v4")
        for i in range(16): e(f"v_exp_f32 v{S+i}, v{S+i}")
        for i in range(16): e(f"v_mul_f32 v{O+i}, v{O+i}, v5")
        for j in range(8): e(f"v_cvt_pk_bf16_f32 v{P+j}, v{S+2*j}, v{S+2*j+1}")
        e("s_nop 1")
        e(f"v_mfma_f32_32x32x16_bf16 {vr(O,16)}, {vr(b+4,4)}, {vr(P,4)}, {vr(O,16)}")
        e(f"v_mfma_f32_32x32x16_bf16 {vr(O,16)}, {vr(b+8,4)}, {vr(P+4,4)}, {vr(O,16)}")
        e("s_nop 11")
    e(f"s_sub_u32 s{SA_CNT}, s{SA_CNT}, 1")
    e(f"s_cmp_lg_u32 s{SA_CNT}, 0")
    e("s_cbranch_scc1 L3_attn_slow_loop")
    e("s_nop 7")
    e("s_branch L3_attn_fin")

def gen(force_slow=False, only=None, stamp=False):
    e = Emit()
    kernel_head(e, NAME)
    e("s_cmp_ge_u32 s2, 256")
    e("s_cbranch_scc1 L3_exit")
    e(f"s_load_dwordx2 s[4:5], s[0:1], {KA_WS}")
    e("s_and_b32 s6, s2, 7")
    e("s_lshr_b32 s7, s2, 3")
    e("v_lshrrev_b32 v1, 6, v0")
    e("v_and_b32 v0, 63, v0")
    e(f"v_readfirstlane_b32 s{S_W}, v1")
    e("s_mov_b32 s30, 0")
    e("s_waitcnt lgkmcnt(0)")
    make_srd(e, S_SRD, 4, LY.WS_END)
    if stamp:
        e("s_memtime s[40:41]")
        e("s_memrealtime s[48:49]")
        e(f"s_load_dwordx2 s[44:45], s[0:1], {KA_DBG}")
        e("s_waitcnt lgkmcnt(0)")
    e("s_cmp_lt_u32 s7, 16")
    if only == "mlp":
        e("s_cbranch_scc0 L3_exit")
    else:
        e("s_cbranch_scc0 L3_attn")
    if only == "attn":
        e("s_branch L3_exit")
    gen_mlp(e)
    gen_attn(e, force_slow)
    e.label("L3_exit")
    e("s_endpgm")
    t = e.text()
    if stamp:
        st = '''    s_waitcnt vmcnt(0)
    s_memtime s[42:43]
    s_memrealtime s[50:51]
    s_waitcnt lgkmcnt(0)
    s_sub_u32 s42, s42, s40
    s_sub_u32 s51, s50, s48
    s_lshl_b32 s46, s2, 2
    s_add_u32 s46, s46, s8
    s_lshl_b32 s46, s46, 4
    v_mov_b32 v1, s46
    v_mov_b32 v2, s42
    v_mov_b32 v3, s51
    v_mov_b32 v4, s48
    v_mov_b32 v5, s50
    global_store_dwordx4 v1, v[2:5], s[44:45]
    s_endpgm
'''
        parts = t.split("    s_endpgm\n")
        t = parts[0] + st + parts[1] + st + parts[2] + "    s_endpgm\n" + "".join(parts[3:])
    return t

if __name__ == "__main__":
    t = gen()
    errs = check(t, "l3")
    for x in errs: print(x)
    print("instrs", sum(1 for l in t.split("\n") if l.startswith("    ")), "hazard errs", len(errs))
    open("l3.s", "w").write(t)
```

```python
from gen_common import *
NAME = "l4_kernel"
LDS_BYTES = 4 * 18 * 1024
S_WS = 12; S_OUT = 16
def gen():
    e = Emit()
    kernel_head(e, NAME)
    e("s_cmp_ge_u32 s2, 256")
    e("s_cbranch_scc1 L4_exit")
    e(f"s_load_dwordx2 s[4:5], s[0:1], {KA_WS}")
    e(f"s_load_dwordx2 s[6:7], s[0:1], {KA_OUT}")
    e("v_lshrrev_b32 v1, 6, v0")
    e("v_and_b32 v0, 63, v0")
    e("v_readfirstlane_b32 s8, v1")
    e("s_lshr_b32 s9, s2, 5"); e("s_lshl_b32 s9, s9, 3"); e("s_and_b32 s10, s2, 7"); e("s_add_u32 s9, s9, s10")
    e("s_lshr_b32 s10, s2, 3"); e("s_and_b32 s10, s10, 3")
    e("v_lshlrev_b32 v1, 4, v0")
    e("s_waitcnt lgkmcnt(0)")
    make_srd(e, S_WS, 4, LY.WS_END)
    make_srd(e, S_OUT, 6, 2048 * 576 * 2)
    W = lambda T, k: 4 * (9 * T + k)
    OFR = 8
    ACC = 44
    PB = 124
    VG = 2
    e("s_mul_i32 s20, s9, 36"); e("s_mul_i32 s21, s8, 9"); e("s_add_u32 s20, s20, s21"); e("s_lshl_b32 s20, s20, 10")
    e(f"s_add_u32 s22, s20, {LY.OF}")
    e("s_mul_i32 s23, s10, 180"); e("s_add_u32 s23, s23, s21"); e("s_lshl_b32 s23, s23, 10"); e(f"s_add_u32 s23, s23, {LY.WOP}")
    for k in range(9):
        e(f"buffer_load_dwordx4 {vr(OFR+4*k,4)}, v1, s[{S_WS}:{S_WS+3}], s22 offen offset:{(k%4)*1024}")
        if k % 4 == 3: e("s_add_u32 s22, s22, 4096")
    sreg = [24, 25, 26, 27, 28]
    for T in range(5):
        e(f"s_add_u32 s{sreg[T]}, s23, {T*36*1024}")
    for k in range(9):
        for T in range(5):
            e(f"buffer_load_dwordx4 {ar(W(T,k),4)}, v1, s[{S_WS}:{S_WS+3}], s{sreg[T]} offen offset:{(k%4)*1024}")
        if k % 4 == 3:
            for T in range(5): e(f"s_add_u32 s{sreg[T]}, s{sreg[T]}, 4096")
    e("v_and_b32 v3, 31, v0"); e("v_lshlrev_b32 v4, 2, v3")
    e("s_lshl_b32 s29, s9, 7"); e(f"s_add_u32 s29, s29, {LY.G}")
    total = 54
    def mf(T, k):
        return f"v_mfma_f32_32x32x16_bf16 {vr(ACC+16*T,16)}, {ar(W(T,k),4)}, {vr(OFR+4*k,4)}, " + ("0" if k == 0 else vr(ACC + 16 * T, 16))
    e("s_mul_i32 s30, s9, 36"); e("s_mul_i32 s31, s10, 9"); e("s_add_u32 s30, s30, s31"); e("s_add_u32 s30, s30, s8"); e("s_lshl_b32 s30, s30, 10")
    def unit_loads(i):
        o = []
        o.append(f"s_add_u32 s32, s30, {LY.X1F + i*4096}")
        o.append(f"buffer_load_dwordx4 {vr(PB+36*i,4)}, v1, s[{S_WS}:{S_WS+3}], s32 offen")
        for s in range(8):
            o.append(f"s_add_u32 s32, s30, {LY.PART + s*64*36*1024 + i*4096}")
            o.append(f"buffer_load_dwordx4 {vr(PB+36*i+4*(s+1),4)}, v1, s[{S_WS}:{S_WS+3}], s32 offen")
        return o
    issued = total
    extra = 0
    for k in range(9):
        need_done = 9 + 5 * (k + 1)
        e(f"s_waitcnt vmcnt({min(63, total + extra - need_done)})")
        for T in range(5): e(mf(T, k))
        if k == 2:
            e(f"buffer_load_dword v{VG}, v4, s[{S_WS}:{S_WS+3}], s29 offen"); extra += 1
            e.extend(unit_loads(0)); extra += 9
        if k == 4:
            e.extend(unit_loads(1)); extra += 9
    e("s_cmp_eq_u32 s8, 0")
    e("s_cbranch_scc0 L4_no3a")
    e.extend(unit_loads(2))
    e.label("L4_no3a")
    e("s_mul_i32 s33, s8, 18432")
    e("v_add_u32 v5, s33, v1")
    e("s_nop 7")
    for u in range(9):
        T, hfq = divmod(u, 2)
        b = ACC + 16 * T + 8 * hfq
        e(f"ds_write_b128 v5, {vr(b,4)} offset:{(2*u)*1024}")
        e(f"ds_write_b128 v5, {vr(b+4,4)} offset:{(2*u+1)*1024}")
    e("s_waitcnt lgkmcnt(0)")
    e("s_barrier")
    e("s_lshl_b32 s33, s8, 11")
    e("v_add_u32 v5, s33, v1")
    e("v_add_u32 v9, 36864, v5")
    e("s_mov_b32 s34, 0x00003f80"); e("s_mov_b32 s35, 0x3f800000")
    e("v_lshrrev_b32 v6, 5, v0"); e("v_lshlrev_b32 v6, 4, v6")
    e("s_movk_i32 s36, 1152")
    e("v_mul_lo_u32 v7, v3, s36"); e("v_add_u32 v7, v7, v6")
    e("s_mul_i32 s37, s9, 36864"); e("s_mul_i32 s38, s10, 288"); e("s_add_u32 s37, s37, s38"); e("s_lshl_b32 s38, s8, 5"); e("s_add_u32 s37, s37, s38")
    def unit2(i, R, B, src, vm):
        e(f"s_waitcnt vmcnt({vm})")
        for j in range(4):
            e(f"v_lshlrev_b32 v{B+2*j}, 16, v{src+j}")
            e(f"v_and_b32 v{B+2*j+1}, 0xffff0000, v{src+j}")
        for s in range(8):
            for j in range(4):
                e(f"v_dot2c_f32_bf16 v{B+2*j}, s34, v{src+4*(s+1)+j}")
                e(f"v_dot2c_f32_bf16 v{B+2*j+1}, s35, v{src+4*(s+1)+j}")
        e("s_waitcnt lgkmcnt(0)")
        for j in range(8):
            e(f"v_add_f32 v{R+j}, v{R+j}, v{R+8+j}")
            e(f"v_add_f32 v{R+16+j}, v{R+16+j}, v{R+24+j}")
        for j in range(8): e(f"v_add_f32 v{R+j}, v{R+j}, v{R+16+j}")
        for j in range(8): e(f"v_sub_f32 v{R+j}, v{R+j}, v{B+j}")
        for j in range(8): e(f"v_fma_f32 v{R+j}, v{R+j}, v{VG}, v{B+j}")
        for j in range(4): e(f"v_cvt_pk_bf16_f32 v{88+j}, v{R+2*j}, v{R+2*j+1}")
        e(f"buffer_store_dwordx4 v[88:91], v7, s[{S_OUT}:{S_OUT+3}], s37 offen offset:{i*128}")
    def reads(i):
        for wv in range(4):
            ad = "v5" if wv < 2 else "v9"
            e(f"ds_read_b128 {vr(44+8*wv,4)}, {ad} offset:{(wv%2)*18432 + (8*i)*1024}")
            e(f"ds_read_b128 {vr(44+8*wv+4,4)}, {ad} offset:{(wv%2)*18432 + (8*i+1)*1024}")
    e("s_cmp_eq_u32 s8, 0")
    e("s_cbranch_scc0 L4_two")
    reads(0); unit2(0, 44, 80, PB, 18)
    reads(1); unit2(1, 44, 80, PB + 36, 10)
    reads(2); unit2(2, 44, 80, PB + 72, 2)
    e("s_endpgm")
    e.label("L4_two")
    reads(0); unit2(0, 44, 80, PB, 9)
    reads(1); unit2(1, 44, 80, PB + 36, 1)
    e.label("L4_exit")
    e("s_endpgm")
    return e.text()
if __name__ == "__main__":
    t = gen()
    errs = check(t, "l4")
    for x in errs: print(x)
    print("instrs", sum(1 for l in t.split("\n") if l.startswith("    ")), "hazard errs", len(errs))
```

```python
import numpy as np
T=2048; D=576; H=32; DH=18; F=4608
KB=1024
def _al(x,a=4096): return (x+a-1)//a*a
off=0
def take(n):
    global off
    o=off; off=_al(off+n); return o
QF0 = take(H*64*1024)
QX  = take(H*T*4)
KF0 = take(H*64*1024)
KX  = take(H*T*4)
VF  = take(H*128*608)
HS  = take(64*36*1024)
G   = take(T*4)
X1F = take(64*36*1024)
ST2 = take(12*T*8)
W34 = take(8*36*36*1024)
WOP = take(4*5*36*1024)
OF  = take(64*36*1024)
PART= take(8*64*36*1024)
WS_END = off
VHEAD = 128*608

def pi16(s):
    return (s & 3) | ((s >> 1) & 4) | ((s << 1) & 8) | (s & ~15)
def dmap(h, dp):
    return dp if h % 2 == 0 else (dp + 2) % 18

def f2bf(x):
    x = np.ascontiguousarray(x, dtype=np.float32)
    u = x.view(np.uint32).astype(np.uint64)
    return ((u + 0x7FFF + ((u >> 16) & 1)) >> 16).astype(np.uint16)
def bf2f(u):
    return (np.ascontiguousarray(u, dtype=np.uint16).astype(np.uint32) << 16).view(np.float32)

L = np.arange(64); LT = L & 31; LH = L >> 5; E = np.arange(8)

def pack_act(x):
    x = x.reshape(64, 32, 36, 2, 8)
    return np.ascontiguousarray(x.transpose(0, 2, 3, 1, 4).reshape(64, 36, 64, 8))
def unpack_act(a):
    a = a.reshape(64, 36, 2, 32, 8)
    return np.ascontiguousarray(a.transpose(0, 3, 1, 2, 4).reshape(2048, 576))

DP = np.array([[dmap(h, dp) for dp in range(18)] for h in range(H)])

def split_heads(m):
    m = m.reshape(T, H, DH).transpose(1, 0, 2)
    return np.stack([m[h][:, DP[h]] for h in range(H)])
def pack_qk(m):
    s = split_heads(m)
    main = s[:, :, :16].reshape(H, 64, 32, 2, 8).transpose(0, 1, 3, 2, 4).reshape(H, 64, 64, 8)
    return np.ascontiguousarray(main), np.ascontiguousarray(s[:, :, 16:18])
def unpack_qk(f0, x):
    main = f0.reshape(H, 64, 2, 32, 8).transpose(0, 1, 3, 2, 4).reshape(H, T, 16)
    return np.concatenate([main, x.reshape(H, T, 2)], axis=2)
PI16 = np.array([pi16(s) for s in range(16)])
def pack_v(m):
    s = split_heads(m)
    s = np.concatenate([s, np.ones((H, T, 1), s.dtype)], axis=2)
    s = s.reshape(H, 128, 16, 19)[:, :, PI16, :]
    s = s.reshape(H, 128, 2, 8, 19).transpose(0, 1, 2, 4, 3)
    return np.ascontiguousarray(s)
def pack_o(o):
    s = split_heads(o)
    out = np.zeros((64, 36, 64, 8), o.dtype)
    st = s.reshape(H, 64, 32, 18)
    for h in range(H):
        main = st[h][:, :, :16][:, :, PI16]
        out[:, h] = main.reshape(64, 32, 2, 8).transpose(0, 2, 1, 3).reshape(64, 64, 8)
        j = h >> 3; hf = (h >> 2) & 1; q = h & 3
        out[:, 32 + j, 32 * hf:32 * hf + 32, 2 * q:2 * q + 2] = st[h][:, :, 16:18]
    return out
def unpack_o(a):
    o = np.zeros((T, H, DH), a.dtype)
    for h in range(H):
        main = a[:, h].reshape(64, 2, 32, 8).transpose(0, 2, 1, 3).reshape(T, 16)
        dp = np.zeros((T, 18), a.dtype)
        dp[:, PI16] = main
        j = h >> 3; hf = (h >> 2) & 1; q = h & 3
        dp[:, 16:18] = a[:, 32 + j, 32 * hf:32 * hf + 32, 2 * q:2 * q + 2].reshape(T, 2)
        o[:, h, DP[h]] = dp
    return o.reshape(T, D)
PI32 = np.array([pi16(i & 15) | (i & 16) for i in range(32)])
def mlp_phase_order():
    order = [("S1", 0), ("S1", 1)]
    for c in range(16): order += [("S2", c), ("S1", c + 2)]
    order += [("S2", 16), ("S2", 17)]
    return order
def pack_w34(w3c, w4):
    out = np.zeros((8, 36, 36, 64, 8), w3c.dtype)
    for s in range(8):
        for p, (kind, c) in enumerate(mlp_phase_order()):
            f0 = 576 * s + 32 * c
            if kind == "S1":
                blk = w3c[:, f0:f0 + 32][:, PI32]
                blk = blk.reshape(36, 2, 8, 32).transpose(0, 1, 3, 2)
                out[s, p] = blk.reshape(36, 64, 8)
            else:
                blk = w4[f0:f0 + 32, :].reshape(2, 2, 8, 18, 32)[:, :, :, :, PI32]
                blk = blk.transpose(0, 3, 1, 4, 2)
                out[s, p] = blk.reshape(36, 64, 8)
    return out
def wo_rows():
    r = np.zeros((36, 16), np.int64)
    for h in range(32):
        for s in range(16): r[h, s] = 18 * h + dmap(h, pi16(s))
    for j in range(4):
        for s in range(16):
            hf = s >> 3; e = s & 7
            h = 8 * j + 4 * hf + (e >> 1)
            r[32 + j, s] = 18 * h + dmap(h, 16 + (e & 1))
    return r
def pack_wo(wo):
    out = np.zeros((4, 5, 36, 64, 8), wo.dtype)
    rows = wo_rows()
    for ct in range(4):
        for Tt in range(5):
            cols = 32 * Tt + PI32
            valid = cols < 144
            cc = 144 * ct + np.where(valid, cols, 0)
            blk = wo[rows.reshape(-1)][:, cc] * valid[None, :]
            blk = blk.reshape(36, 2, 8, 32).transpose(0, 1, 3, 2)
            out[ct, Tt] = blk.reshape(36, 64, 8)
    return out
if __name__ == "__main__":
    print("WS_END", WS_END, hex(WS_END))
    for n in "QF0 QX KF0 KX VF HS G X1F ST2 W34 WOP OF PART".split(): print(n, hex(globals()[n]))
    rng = np.random.default_rng(0)
    x = rng.standard_normal((T, D)).astype(np.float32)
    assert (unpack_act(pack_act(x)) == x).all()
    assert (unpack_o(pack_o(x)) == x).all()
    f0, xx = pack_qk(x)
    assert (unpack_qk(f0, xx) == split_heads(x)).all()
    print("ok")
```

```python
import sys
import build, gen_l1, gen_l2, gen_l3, gen_l4
from asmlib import check
def kernels(**kw):
    ks = [(gen_l1.NAME, gen_l1.gen(), 256, 256, gen_l1.LDS_BYTES, 168, 168),
          (gen_l2.NAME, gen_l2.gen(), 256, 256, gen_l2.LDS_BYTES, 400, 256),
          (gen_l3.NAME, gen_l3.gen(**kw), 256, 256, gen_l3.LDS_BYTES, 512, 256),
          (gen_l4.NAME, gen_l4.gen(), 256, 256, gen_l4.LDS_BYTES, 440, 256)]
    for k in ks:
        errs = check(k[1], k[0])
        for x in errs: print(x)
        assert not errs
    return ks
if __name__ == "__main__":
    out = sys.argv[1] if len(sys.argv) > 1 else "gated_mix__softmax_full_mha__mixer_s_mlp__prompt.s"
    s = build.build(kernels(), out)
    print("wrote", out, len(s), "bytes")
```

```python
from asmlib import *
import layouts as LY
import math

KA_XA, KA_WQKV, KA_WO, KA_XB, KA_W1, KA_W2, KA_W3, KA_W4, KA_GW, KA_OUT, KA_DBG, KA_WS = [8*i for i in range(12)]
WS_SIZE = 268435456

def kernel_head(e, name):
    e(f".globl {name}")
    e(".p2align 8")
    e(f".type {name},@function")
    e.label(name)

def kernel_desc(name, vgpr, accum, sgpr=96):
    return f""".amdhsa_kernel {name}
  .amdhsa_next_free_vgpr {vgpr}
  .amdhsa_next_free_sgpr {sgpr}
  .amdhsa_accum_offset {accum}
  .amdhsa_group_segment_fixed_size 0
  .amdhsa_kernarg_size 96
  .amdhsa_user_sgpr_count 2
  .amdhsa_user_sgpr_kernarg_segment_ptr 1
  .amdhsa_system_sgpr_workgroup_id_x 1
  .amdhsa_float_denorm_mode_32 3
.end_amdhsa_kernel
"""

def make_srd(e, dst, ptr, size):
    if dst != ptr: e(f"s_mov_b32 s{dst}, s{ptr}")
    e(f"s_and_b32 s{dst+1}, s{ptr+1}, 0xffff")
    e(f"s_mov_b32 s{dst+2}, {size}")
    e(f"s_mov_b32 s{dst+3}, 0x20000")

GELU_C0 = -2.0 * math.sqrt(2.0 / math.pi) * math.log2(math.e)
GELU_C1 = GELU_C0 * 0.044715

class Diag:
    on = False
    kid = 0
STAMP_BASE = 0x8000000
def stamp(e, i):
    if Diag.on:
        e(f"s_memrealtime s[{70+2*i}:{71+2*i}]")
        if i == 2: e("s_memtime s[92:93]")
        if i == 5: e("s_memtime s[94:95]")
        e("s_waitcnt lgkmcnt(0)")
def fin(e, wave_sgpr=8):
    if Diag.on:
        stamp(e, 7)
        e("s_waitcnt vmcnt(0)")
        e("s_memrealtime s[86:87]")
        e("s_waitcnt lgkmcnt(0)")
        e("s_mov_b64 exec, -1")
        e(f"s_lshl_b32 s88, s2, 2"); e(f"s_add_u32 s88, s88, s{wave_sgpr}"); e("s_lshl_b32 s88, s88, 6")
        e(f"s_add_u32 s88, s88, {STAMP_BASE + Diag.kid * 0x20000}")
        for i in range(8): e(f"v_mov_b32 v{4+i}, s{70+2*i}")
        e("v_mov_b32 v12, s86")
        e("s_sub_u32 s94, s94, s92")
        e("v_mov_b32 v14, s94")
        e("v_mov_b32 v13, s88")
        e("global_store_dwordx4 v13, v[4:7], s[4:5] offset:0")
        e("global_store_dwordx4 v13, v[8:11], s[4:5] offset:16")
        e("global_store_dword v13, v12, s[4:5] offset:32")
        e("global_store_dword v13, v14, s[4:5] offset:36")
    e("s_endpgm")

class Opt:
    code_pf = True
    l1_touch = False
    late_touch = True
    rotate = True
    touch64 = False
def code_prefetch(e, start_label, end_label, nblk, vaddr, vtmp, vdst, sp):
    if not Opt.code_pf: return
    lab = f"{start_label}_pc{len(e.L)}"
    e(f"s_getpc_b64 s[{sp}:{sp+1}]")
    e.label(lab)
    e(f"s_sub_u32 s{sp}, s{sp}, {lab}-{start_label}")
    e(f"s_subb_u32 s{sp+1}, s{sp+1}, 0")
    e(f"v_lshlrev_b32 v{vaddr}, 7, v0")
    for i in range(nblk):
        e(f"v_min_u32 v{vtmp}, {end_label}-{start_label}-4, v{vaddr}")
        e(f"global_load_dword v{vdst}, v{vtmp}, s[{sp}:{sp+1}]")
        if i + 1 < nblk: e(f"v_add_u32 v{vaddr}, 0x2000, v{vaddr}")

STORE_MOD = "sc1"
```

```python
from gen_common import *
NAME = "l1_kernel"
SLOT = 36864
GW_OFF = 4 * SLOT
XCH_OFF = GW_OFF + 2048
LDS_BYTES = XCH_OFF + 5120
S_WS = 12; S_X = 16; S_W = 20; S_GW = 24
V_L16 = 1
V_XO = 2
V_WO = 6
V_XA = 11
V_WA = 15
V_GA = 20
V_ST = 22
V_CS = 24
ACC = 32
XF = 112
WF = 128
GF = 208
EX0 = 224
EX1 = 240
AG_CS = 0
AG_ONE = 32
AG_CF = 36
V_WC = 21
NVGPR = 256 + 52
NACC = 256
QSCALE = math.log2(math.e) / math.sqrt(18.0)
S_WV, S_RB, S_CT, S_CQ = 8, 9, 10, 11
S_RS = 28
S_XO = 29
S_WO = 30
S_XM = 31
S_ST = 32
S_DL = 33
S_WSTEP = 34
S_SLX = 35
S_SLW = 38
S_T = 36
S_T2 = 37
S_KX, S_KW, S_KC, S_GD = 39, 64, 65, 66
S_WBACK, S_C128 = 60, 61

def dma_x():
    o = [[f"s_add_u32 m0, s{S_SLX}, s{S_XM}", "s_nop 0", f"buffer_load_dwordx4 v{V_XO}, s[{S_X}:{S_X+3}], s{S_XO} offen lds"]]
    for i in range(1, 4):
        o.append([f"buffer_load_dwordx4 v{V_XO+i}, s[{S_X}:{S_X+3}], s{S_XO} offen offset:{i*1024} lds"])
    o[-1] += [f"s_add_u32 s{S_KX}, s{S_KX}, 1", f"s_cmp_eq_u32 s{S_KX}, 9", f"s_cselect_b32 s{S_KX}, 0, s{S_KX}", f"s_cselect_b32 s69, {(-1024) & 0xffffffff}, s{S_C128}",
              f"s_add_u32 s{S_XO}, s{S_XO}, s69",
              f"s_add_u32 s{S_SLX}, s{S_SLX}, {SLOT}", f"s_cmp_eq_u32 s{S_SLX}, {4*SLOT}", f"s_cselect_b32 s{S_SLX}, 0, s{S_SLX}"]
    return o
def dma_w():
    o = [[f"s_add_u32 m0, s{S_SLW}, s{S_T}", "s_nop 0", f"buffer_load_dwordx4 v{V_WO}, s[{S_W}:{S_W+3}], s{S_WO} offen lds"]]
    for i in range(1, 4):
        o.append([f"buffer_load_dwordx4 v{V_WO+i}, s[{S_W}:{S_W+3}], s{S_WO} offen offset:{i*1024} lds"])
    o.append([f"s_add_u32 m0, m0, 4096", "s_nop 0", f"buffer_load_dwordx4 v{V_WO+4}, s[{S_W}:{S_W+3}], s{S_WO} offen lds",
              f"s_add_u32 s{S_KW}, s{S_KW}, 1", f"s_cmp_eq_u32 s{S_KW}, 9", f"s_cselect_b32 s{S_KW}, 0, s{S_KW}", f"s_cselect_b32 s69, s{S_WBACK}, s{S_WSTEP}",
              f"s_add_u32 s{S_WO}, s{S_WO}, s69",
              f"s_add_u32 s{S_SLW}, s{S_SLW}, {SLOT}", f"s_cmp_eq_u32 s{S_SLW}, {4*SLOT}", f"s_cselect_b32 s{S_SLW}, 0, s{S_SLW}"])
    return o

def reads(s, variant):
    o = [f"ds_read_b128 {vr(XF+4*s,4)}, v{V_XA+s}"]
    if variant == "q0": o.append(f"ds_read_b128 {vr(GF+4*s,4)}, v{V_GA} offset:{32*s}")
    for T in range(5):
        for q in range(2):
            o.append(f"ds_read_b64_tr_b16 {vr(WF+20*s+4*T+2*q,2)}, v{V_WA+T} offset:{(16*s+4*q)*320}")
    if variant == "h":
        for q in range(2):
            o.append(f"ds_read_b64_tr_b16 {ar(AG_CF+4*s+2*q,2)}, v{V_WC} offset:{(16*s+4*q)*320}")
    return o

def advance_addrs(variant):
    o = [f"v_add_u32 v{r}, s{S_DL}, v{r}" for r in list(range(V_XA, V_XA + 4)) + list(range(V_WA, V_WA + 5))]
    if variant == "h": o.append(f"v_add_u32 v{V_WC}, s{S_DL}, v{V_WC}")
    if variant == "q0":
        o += [f"s_add_u32 s{S_KC}, s{S_KC}, 1", f"s_cmp_eq_u32 s{S_KC}, 9", f"s_cselect_b32 s{S_KC}, 0, s{S_KC}",
              f"s_cselect_b32 s{S_GD}, {(-1024) & 0xffffffff}, s{S_C128}", f"v_add_u32 v{V_GA}, s{S_GD}, v{V_GA}"]
    return o

def main_loop(e, variant):
    lab = f"L1_loop_{variant}"
    nrd = {"q0": 12, "h": 13}.get(variant, 11)
    e(f"s_mov_b32 s{S_ST}, 0")
    e("s_waitcnt vmcnt(13)")
    e("s_barrier")
    stamp(e, 2)
    e.extend(reads(0, variant)); e.extend(reads(1, variant))
    e(".p2align 6")
    e.label(lab)
    dx = dma_x(); dw = dma_w()
    place = {(0, 0): dw[0], (0, 2): dw[1], (0, 4): dw[2], (1, 1): dw[3], (1, 3): dw[4], (2, 2): dx[0], (2, 4): dx[1], (3, 1): dx[2], (3, 3): dx[3]}
    for s in range(4):
        pre = []
        lt = Opt.late_touch and variant != "h"
        if s == 2:
            w = ["s_waitcnt vmcnt(9)"]
            if lt:
                w = [f"s_cmp_ge_u32 s{S_ST}, 6", f"s_cbranch_scc1 {lab}_w11", "s_waitcnt vmcnt(9)", f"s_branch {lab}_wb", f"{lab}_w11:",
                     f"s_cmp_eq_u32 s{S_ST}, 8", f"s_cbranch_scc1 {lab}_wb", "s_waitcnt vmcnt(11)", f"{lab}_wb:"]
            pre = w + ["s_barrier",
                   f"s_cmp_lt_u32 s{S_ST}, 6", f"s_cselect_b32 s{S_XO}, s{S_XO}, 0x40000000", f"s_cselect_b32 s{S_WO}, s{S_WO}, 0x40000000"]
        rd = reads((s + 2) % 4, variant)
        e(f"s_waitcnt lgkmcnt({nrd})")
        xf = vr(XF + 4 * s, 4)
        mfs = []
        for T in range(5):
            wf = vr(WF + 20 * s + 4 * T, 4); a = vr(ACC + 16 * T, 16)
            mfs.append(f"v_mfma_f32_32x32x16_bf16 {a}, {xf}, {wf}, {a}" if variant == "v" else f"v_mfma_f32_32x32x16_bf16 {a}, {wf}, {xf}, {a}")
        if variant == "q0":
            mfs.append(f"v_mfma_f32_32x32x16_bf16 {vr(EX0,16)}, {vr(GF+4*s,4)}, {xf}, {vr(EX0,16)}")
        if variant == "h":
            mfs.append(f"v_mfma_f32_32x32x16_bf16 {vr(EX0,16)}, {ar(AG_ONE,4)}, {xf}, {vr(EX0,16)}")
            mfs.append(f"v_mfma_f32_32x32x16_bf16 {vr(EX1,16)}, {xf}, {xf}, {vr(EX1,16)}")
            mfs.append(f"v_mfma_f32_32x32x16_bf16 {ar(AG_CS,16)}, {ar(AG_CF+4*s,4)}, {ar(AG_ONE,4)}, {ar(AG_CS,16)}")
            mfs.append(f"v_mfma_f32_32x32x16_bf16 {ar(AG_CS+16,16)}, {vr(WF+20*s+16,4)}, {ar(AG_ONE,4)}, {ar(AG_CS+16,16)}")
        n = len(rd); nm = len(mfs)
        per = (n + nm - 2) // (nm - 1)
        for T in range(nm):
            e(mfs[T])
            if T == 0: e.extend(pre)
            e.extend(rd[T * per:(T + 1) * per])
            e.extend(place.get((s, T), []))
        if s == 1 and lt:
            e(f"s_cmp_eq_u32 s{S_ST}, 6"); e(f"s_cbranch_scc0 {lab}_nt")
            e.extend(late_issue())
            e.label(f"{lab}_nt")
        if s == 1:
            e(f"s_add_u32 s{S_T2}, s{S_ST}, 1")
            e(f"s_and_b32 s{S_DL}, s{S_T2}, 3")
            e(f"s_cmp_eq_u32 s{S_DL}, 0")
            e(f"s_cselect_b32 s{S_DL}, s68, s67")
            e.extend(advance_addrs(variant))
    e(f"s_add_u32 s{S_ST}, s{S_ST}, 1")
    e(f"s_cmp_lt_u32 s{S_ST}, 9")
    e(f"s_cbranch_scc1 {lab}")
    stamp(e, 3)
    e("s_waitcnt lgkmcnt(0)")
    e("s_nop 7")

def setup_common(e):
    for i in range(4):
        e("v_lshrrev_b32 v21, 3, v0"); e(f"v_add_u32 v21, {8*i}, v21")
        e("v_lshrrev_b32 v22, 1, v21"); e("v_and_b32 v22, 7, v22"); e("v_and_b32 v23, 7, v0"); e("v_xor_b32 v22, v22, v23")
        e("v_mul_u32_u24 v21, 1152, v21"); e("v_lshlrev_b32 v22, 4, v22"); e("v_add_u32 v21, v21, v22")
        e(f"v_subrev_u32 v{V_XO+i}, {1024*i}, v21")
    e(f"s_mul_i32 s{S_T}, s{S_WV}, 320")
    for i in range(5):
        e(f"v_add_u32 v21, s{S_T}, v0"); e(f"v_add_u32 v21, {64*i}, v21")
        e("v_mul_u32_u24 v22, 3277, v21"); e("v_lshrrev_b32 v22, 16, v22")
        e("v_mul_u32_u24 v23, 20, v22"); e("v_sub_u32 v23, v21, v23")
        e(f"v_mul_lo_u32 v22, v22, s{S_RS}")
        e("v_cmp_lt_u32 vcc, 17, v23"); e("v_subrev_u32 v24, 2, v23"); e("s_nop 0"); e("v_cndmask_b32 v24, v23, v24, vcc")
        e("v_lshlrev_b32 v24, 4, v24"); e("v_add_u32 v22, v22, v24")
        if i % 4: e(f"v_subrev_u32 v22, {1024*(i%4)}, v22")
        e("v_and_b32 v24, 30, v23"); e("v_cmp_eq_u32 vcc, 16, v24"); e("v_mov_b32 v25, 0x40000000"); e("s_nop 0")
        e(f"v_cndmask_b32 v{V_WO+i}, v22, v25, vcc")
    e("v_and_b32 v21, 31, v0"); e("v_lshrrev_b32 v22, 5, v0")
    e("v_lshrrev_b32 v23, 1, v21"); e("v_and_b32 v23, 7, v23"); e("v_xor_b32 v23, v23, v22"); e("v_lshlrev_b32 v23, 4, v23")
    e("v_lshlrev_b32 v24, 7, v21"); e("v_add_u32 v23, v23, v24")
    e(f"s_lshl_b32 s{S_XM}, s{S_WV}, 12"); e(f"v_add_u32 v{V_XA}, s{S_XM}, v23")
    for s in range(1, 4): e(f"v_xor_b32 v{V_XA+s}, {32*s}, v{V_XA}")
    e(f"s_mul_i32 s{S_T}, s{S_WV}, 5120"); e(f"s_add_u32 s{S_T}, s{S_T}, 16384")

def lane_parts(e):
    e("v_lshrrev_b32 v21, 5, v0"); e("v_bfe_u32 v22, v0, 4, 1"); e("v_bfe_u32 v23, v0, 2, 2"); e("v_and_b32 v24, 3, v0")
    e("v_and_b32 v25, 1, v0"); e("v_lshlrev_b32 v25, 1, v25"); e("v_bfe_u32 v26, v0, 1, 1"); e("v_or_b32 v25, v25, v26")
    e("v_lshlrev_b32 v26, 3, v21"); e("v_add_u32 v26, v26, v23"); e("v_mul_u32_u24 v26, 320, v26"); e("v_add_u32 v26, 16384, v26")

def waddr_heads(e, swap):
    lane_parts(e)
    q = 25 if swap else 24
    e(f"v_lshlrev_b32 v27, 3, v{q}"); e("v_add_u32 v27, v27, v26")
    e("v_mul_u32_u24 v28, 288, v22"); e(f"v_add_u32 v{V_WA}, v27, v28")
    e("v_lshlrev_b32 v28, 5, v22"); e("v_add_u32 v27, v27, v28")
    for T in range(1, 4): e(f"v_add_u32 v{V_WA+T}, {40+72*(T-1)}, v27")
    e("v_mul_u32_u24 v28, 72, v24"); e("v_add_u32 v28, v28, v26"); e(f"v_add_u32 v{V_WA+4}, 32, v28")
def waddr_dense(e):
    lane_parts(e)
    e("v_lshlrev_b32 v27, 3, v25"); e("v_add_u32 v27, v27, v26")
    e(f"v_add_u32 v{V_WA+4}, 288, v27")
    e("v_lshlrev_b32 v28, 5, v22"); e("v_add_u32 v27, v27, v28")
    for T in range(4): e(f"v_add_u32 v{V_WA+T}, {64*T}, v27")

def touches(e):
    e(f"s_lshl_b32 s{S_T}, s7, 2"); e(f"s_add_u32 s{S_T}, s{S_T}, s{S_WV}"); e(f"s_lshl_b32 s{S_T}, s{S_T}, 6")
    e(f"v_add_u32 v28, s{S_T}, v0")
    e("v_mul_u32_u24 v29, 7282, v28"); e("v_lshrrev_b32 v29, 16, v29")
    e("v_mul_u32_u24 v30, 9, v29"); e("v_sub_u32 v30, v28, v30"); e("v_lshlrev_b32 v30, 7, v30")
    e(f"v_mul_lo_u32 v29, v29, s{S_RS}"); e("v_add_u32 v29, v29, v30")
    e("s_cmp_eq_u32 s3, 3"); e("s_cselect_b32 s69, 0, s3"); e("s_mul_i32 s69, s69, 1152")
    e(f"buffer_load_dword v31, v29, s[{S_W}:{S_W+3}], s69 offen")
    if Opt.touch64: e(f"buffer_load_dword v31, v29, s[{S_W}:{S_W+3}], s69 offen offset:64")
    e("v_lshlrev_b32 v29, 7, v28"); e("s_and_b32 s69, s6, 1"); e("s_mul_i32 s69, s69, 1179648")
    e(f"buffer_load_dword v31, v29, s[{S_X}:{S_X+3}], s69 offen")
    if Opt.touch64: e(f"buffer_load_dword v31, v29, s[{S_X}:{S_X+3}], s69 offen offset:64")
    e("s_cmp_lt_u32 s7, 4"); e("s_cbranch_scc0 L1_touch_done")
    e("s_add_u32 s69, s69, 1048576")
    e(f"buffer_load_dword v31, v29, s[{S_X}:{S_X+3}], s69 offen")
    if Opt.touch64: e(f"buffer_load_dword v31, v29, s[{S_X}:{S_X+3}], s69 offen offset:64")
    e.label("L1_touch_done")

def zero_acc(e, variant):
    for i in range(4): e(f"v_mov_b32 v{XF+i}, 0")
    if variant == "h":
        for i in range(4): e(f"v_accvgpr_write_b32 a{AG_ONE+i}, s40")
    e("s_nop 1")
    z = vr(XF, 4)
    for T in range(5): e(f"v_mfma_f32_32x32x16_bf16 {vr(ACC+16*T,16)}, {z}, {z}, 0")
    if variant in ("q0", "h"): e(f"v_mfma_f32_32x32x16_bf16 {vr(EX0,16)}, {z}, {z}, 0")
    if variant == "h":
        e(f"v_mfma_f32_32x32x16_bf16 {vr(EX1,16)}, {z}, {z}, 0")
        e(f"v_mfma_f32_32x32x16_bf16 {ar(AG_CS,16)}, {z}, {z}, 0")
        e(f"v_mfma_f32_32x32x16_bf16 {ar(AG_CS+16,16)}, {z}, {z}, 0")

def late_setup(e):
    if not Opt.late_touch: return
    e(f"s_load_dwordx2 s[52:53], s[0:1], {KA_W3}"); e(f"s_load_dwordx2 s[54:55], s[0:1], {KA_W4}")
    e(f"s_load_dwordx2 s[56:57], s[0:1], {KA_W2}"); e(f"s_load_dwordx2 s[58:59], s[0:1], {KA_WO}")
    e(f"s_lshl_b32 s44, s{S_WV}, 6"); e("v_add_u32 v30, s44, v0"); e("v_lshlrev_b32 v30, 7, v30")
    e(f"s_lshl_b32 s69, s{S_CT}, 4"); e(f"s_add_u32 s69, s69, s{S_RB}")
    e("s_waitcnt lgkmcnt(0)")
    for rep, (srd, so) in enumerate(((44, 62), (48, 63))):
        if rep == 1: e("s_add_u32 s69, s69, 192")
        e(f"s_mov_b32 s{srd}, s52"); e(f"s_mov_b32 s{srd+1}, s53"); e(f"s_mov_b32 s{srd+2}, {576*4608*2}"); e(f"s_mov_b32 s{so}, s69")
        for lo, p, size in ((162, 54, 576*4608*2), (324, 56, 576*576*2), (345, 58, 576*576*2)):
            e(f"s_cmp_ge_u32 s69, {lo}")
            e(f"s_cselect_b32 s{srd}, s{p}, s{srd}"); e(f"s_cselect_b32 s{srd+1}, s{p+1}, s{srd+1}")
            if size != 576*4608*2:
                e(f"s_cselect_b32 s{srd+2}, {size}, s{srd+2}")
            e(f"s_cselect_b32 s{S_T2}, {lo}, 0");
            e(f"s_sub_u32 s{S_T2}, s69, s{S_T2}"); e(f"s_cmp_ge_u32 s69, {lo}"); e(f"s_cselect_b32 s{so}, s{S_T2}, s{so}")
        e(f"s_and_b32 s{srd+1}, s{srd+1}, 0xffff"); e(f"s_mov_b32 s{srd+3}, 0x20000")
        e(f"s_lshl_b32 s{so}, s{so}, 15")
def late_issue():
    return ["buffer_load_dword v31, v30, s[44:47], s62 offen", "buffer_load_dword v31, v30, s[48:51], s63 offen"]

def prologue_rot(e):
    e("s_and_b32 s69, s7, 3"); e("s_lshl_b32 s69, s69, 1"); e(f"s_lshr_b32 s{S_KX}, s7, 2"); e(f"s_add_u32 s{S_KX}, s{S_KX}, s69")
    e(f"s_cmp_ge_u32 s{S_KX}, 9"); e(f"s_cselect_b32 s69, 9, 0"); e(f"s_sub_u32 s{S_KX}, s{S_KX}, s69")
    if not Opt.rotate: e(f"s_mov_b32 s{S_KX}, 0")
    e(f"s_mov_b32 s{S_KW}, s{S_KX}"); e(f"s_mov_b32 s{S_KC}, s{S_KX}")
    e(f"s_lshl_b32 s69, s{S_KX}, 7"); e(f"s_add_u32 s{S_XO}, s{S_XO}, s69")
    e(f"s_mul_i32 s69, s{S_KX}, s{S_WSTEP}"); e(f"s_add_u32 s{S_WO}, s{S_WO}, s69")
    e(f"s_mul_i32 s{S_WBACK}, s{S_WSTEP}, -8"); e(f"s_movk_i32 s{S_C128}, 128")

def prologue_dma(e):
    e(f"s_mov_b32 s{S_SLX}, 0"); e(f"s_mov_b32 s{S_SLW}, 0")
    for st in range(3):
        for grp in dma_x(): e.extend(grp)
        if st < 2:
            for grp in dma_w(): e.extend(grp)
    stamp(e, 1)

HEADS = [(0, 7), (1, 2), (3, 4), (5, 6)]
def epi_qk(e, gate):
    e(f"s_lshl_b32 s44, s{S_RB}, 2"); e(f"s_add_u32 s44, s44, s{S_WV}")
    e(f"s_lshl_b32 s45, s{S_CQ}, 3")
    e("s_lshl_b32 s46, s45, 16"); e("s_lshl_b32 s47, s44, 10"); e("s_add_u32 s46, s46, s47"); e("s_add_u32 s46, s46, s42")
    P = 112
    for T in range(4):
        for i in range(16): e(f"v_mul_f32 v{ACC+16*T+i}, s41, v{ACC+16*T+i}")
        for hh in range(2):
            p = P + 8 * (T % 2) + 4 * hh
            for j in range(4): e(f"v_cvt_pk_bf16_f32 v{p+j}, v{ACC+16*T+8*hh+2*j}, v{ACC+16*T+8*hh+2*j+1}")
            e(f"s_add_u32 s47, s46, {HEADS[T][hh]*65536}")
            e(f"buffer_store_dwordx4 {vr(p,4)}, v{V_L16}, s[{S_WS}:{S_WS+3}], s47 offen")
    for i in range(8): e(f"v_mul_f32 v{ACC+64+i}, s41, v{ACC+64+i}")
    for j in range(4): e(f"v_cvt_pk_bf16_f32 v{128+j}, v{ACC+64+2*j}, v{ACC+64+2*j+1}")
    e("v_and_b32 v21, 31, v0"); e("v_lshlrev_b32 v21, 2, v21"); e("v_lshrrev_b32 v29, 5, v0"); e("v_lshlrev_b32 v29, 14, v29"); e("v_add_u32 v21, v21, v29")
    e("s_lshl_b32 s46, s45, 13"); e("s_lshl_b32 s47, s44, 7"); e("s_add_u32 s46, s46, s47"); e("s_add_u32 s46, s46, s43")
    for j, hoff in enumerate([0, 1, 4, 5]):
        e(f"s_add_u32 s47, s46, {hoff*8192}")
        e(f"buffer_store_dword v{128+j}, v21, s[{S_WS}:{S_WS+3}], s47 offen")
    if gate:
        e(f"v_mul_f32 v23, {hexf(-math.log2(math.e))}, v{EX0}"); e("v_exp_f32 v23, v23"); e("s_nop 0"); e("v_add_f32 v23, 1.0, v23"); e("v_rcp_f32 v23, v23")
        e("v_and_b32 v21, 31, v0"); e("v_lshlrev_b32 v21, 2, v21")
        e("s_lshl_b32 s47, s44, 7"); e(f"s_add_u32 s47, s47, {LY.G}")
        e("s_mov_b64 exec, 0xffffffff")
        e(f"buffer_store_dword v23, v21, s[{S_WS}:{S_WS+3}], s47 offen")
    fin(e)

def epi_v(e):
    e(f"s_lshl_b32 s44, s{S_RB}, 2"); e(f"s_add_u32 s44, s44, s{S_WV}")
    e(f"s_lshl_b32 s45, s{S_CQ}, 3")
    e(f"s_mul_i32 s46, s45, {LY.VHEAD}"); e("s_mul_i32 s47, s44, 1216"); e("s_add_u32 s46, s46, s47"); e(f"s_add_u32 s46, s46, {LY.VF}")
    e("v_lshrrev_b32 v21, 5, v0"); e("v_mul_u32_u24 v21, 304, v21")
    e("v_and_b32 v22, 15, v0"); e("v_lshlrev_b32 v22, 4, v22"); e("v_add_u32 v22, v22, v21")
    e("v_bfe_u32 v23, v0, 4, 1")
    e(f"s_mov_b32 s47, {LY.VHEAD}")
    e("v_mul_lo_u32 v24, v23, s47")
    e("v_add_u32 v25, v22, v24")
    e("v_mul_u32_u24 v24, 7, v24"); e("v_add_u32 v26, v22, v24")
    P = 112
    for T in range(4):
        ad = 26 if T == 0 else 25
        hb = 0 if T == 0 else HEADS[T][0]
        e(f"s_add_u32 s47, s46, {hb*LY.VHEAD}")
        for hh in range(2):
            p = P + 8 * (T % 2) + 4 * hh
            for j in range(4): e(f"v_cvt_pk_bf16_f32 v{p+j}, v{ACC+16*T+8*hh+2*j}, v{ACC+16*T+8*hh+2*j+1}")
            e(f"buffer_store_dwordx4 {vr(p,4)}, v{ad}, s[{S_WS}:{S_WS+3}], s47 offen offset:{608*hh}")
    e("v_and_b32 v22, 31, v0")
    e("v_lshrrev_b32 v23, 2, v22"); e("v_lshlrev_b32 v23, 1, v23"); e("v_bfe_u32 v24, v22, 1, 1"); e("v_add_u32 v23, v23, v24")
    e("v_and_b32 v24, 1, v22"); e("v_add_u32 v24, 16, v24")
    e("v_cmp_lt_u32 vcc, 15, v22"); e("v_subrev_u32 v25, 16, v22"); e("v_mov_b32 v27, 18")
    e("v_cndmask_b32 v23, v23, v25, vcc"); e("v_cndmask_b32 v24, v24, v27, vcc")
    e(f"s_mov_b32 s47, {LY.VHEAD}"); e("v_mul_lo_u32 v23, v23, s47"); e("v_lshlrev_b32 v24, 4, v24"); e("v_add3_u32 v23, v23, v24, v21")
    e("v_mov_b32 v27, 0x3f803f80")
    for hh in range(2):
        for j in range(4):
            e(f"v_cvt_pk_bf16_f32 v{128+4*hh+j}, v{ACC+64+8*hh+2*j}, v{ACC+64+8*hh+2*j+1}")
            e(f"v_cndmask_b32 v{128+4*hh+j}, v{128+4*hh+j}, v27, vcc")
    e("v_cmp_gt_u32 vcc, 24, v22"); e("s_nop 1")
    e("s_and_saveexec_b64 s[48:49], vcc")
    for hh in range(2):
        e(f"buffer_store_dwordx4 {vr(128+4*hh,4)}, v23, s[{S_WS}:{S_WS+3}], s46 offen offset:{608*hh}")
    fin(e)

def epi_h(e):
    e("v_lshrrev_b32 v21, 5, v0"); e("v_lshlrev_b32 v21, 4, v21"); e(f"v_add_u32 v29, {XCH_OFF}, v21")
    e(f"s_lshl_b32 s44, s{S_WV}, 7"); e("v_add_u32 v28, s44, v29")
    e("s_mov_b32 exec_lo, 1"); e("s_mov_b32 exec_hi, 1")
    for j in range(4): e(f"ds_write_b128 v28, {ar(AG_CS+4*j,4)} offset:{32*j}")
    for j in range(2): e(f"ds_write_b128 v29, {ar(AG_CS+16+4*j,4)} offset:{512+32*j}")
    e("s_mov_b64 exec, -1")
    for b, (bit, sp) in enumerate(((0, 44), (1, 46), (3, 48), (4, 52))):
        e(f"v_bfe_u32 v28, v0, {bit}, 1"); e(f"v_cmp_eq_u32 s[{sp}:{sp+1}], 1, v28")
    e("v_bfe_u32 v28, v0, 2, 1"); e("v_lshrrev_b32 v27, 5, v0"); e("v_cmp_eq_u32 vcc, v27, v28")
    e("s_nop 0")
    for i in range(8): e(f"v_cndmask_b32 v{EX1+i}, v{EX1+2*i}, v{EX1+2*i+1}, s[44:45]")
    for i in range(4): e(f"v_cndmask_b32 v{EX1+i}, v{EX1+2*i}, v{EX1+2*i+1}, s[46:47]")
    for i in range(2): e(f"v_cndmask_b32 v{EX1+i}, v{EX1+2*i}, v{EX1+2*i+1}, s[48:49]")
    e(f"v_cndmask_b32 v{EX1}, v{EX1}, v{EX1+1}, s[52:53]")
    e(f"v_cndmask_b32 v{V_ST+1}, 0, v{EX1}, vcc")
    e(f"v_mov_b32 v28, v{V_ST+1}"); e(f"v_mul_f32 v{V_ST}, {hexf(1/576)}, v{EX0}"); e("s_nop 0")
    e(f"v_permlane32_swap_b32 v28, v{V_ST+1}")
    e(f"v_add_f32 v{V_ST+1}, v28, v{V_ST+1}")
    e(f"v_mul_f32 v{V_ST+1}, {hexf(1/576)}, v{V_ST+1}")
    e(f"v_fma_f32 v{V_ST+1}, -v{V_ST}, v{V_ST}, v{V_ST+1}"); e(f"v_max_f32 v{V_ST+1}, 0, v{V_ST+1}"); e(f"v_add_f32 v{V_ST+1}, {hexf(1e-5)}, v{V_ST+1}")
    SG, RR, AA, BB, MM = 118, 119, 120, 122, 124
    e(f"v_sqrt_f32 v{SG}, v{V_ST+1}"); e("s_nop 0"); e(f"v_rcp_f32 v{RR}, v{SG}"); e("s_nop 0")
    e(f"v_mul_f32 v{BB}, {hexf(GELU_C0)}, v{RR}"); e(f"v_mul_f32 v{AA}, v{RR}, v{RR}"); e(f"v_mul_f32 v{AA}, v{AA}, v{RR}"); e(f"v_mul_f32 v{AA}, {hexf(GELU_C1)}, v{AA}")
    e(f"v_mov_b32 v{AA+1}, v{AA}"); e(f"v_mov_b32 v{BB+1}, v{BB}"); e(f"v_mov_b32 v126, v{SG}"); e(f"v_mov_b32 v127, v{SG}")
    e(f"v_sub_f32 v{MM}, 0, v{V_ST}"); e(f"v_mov_b32 v{MM+1}, v{MM}")
    e("s_waitcnt lgkmcnt(0)"); e("s_barrier")
    e(f"s_lshl_b32 s45, s{S_RB}, 7"); e(f"s_lshl_b32 s46, s{S_WV}, 5"); e("s_add_u32 s45, s45, s46")
    e(f"s_lshr_b32 s46, s{S_CQ}, 1"); e("s_add_u32 s46, s46, 1"); e("s_sub_u32 s47, 0, s46"); e(f"s_bitcmp1_b32 s{S_CQ}, 0"); e("s_cselect_b32 s46, s47, s46")
    e("s_add_u32 s45, s45, s46")
    e("v_and_b32 v21, 31, v0"); e("v_add_u32 v21, s45, v21")
    e("v_cmp_gt_u32 vcc, 2048, v21")
    e("v_and_b32 v21, 2047, v21")
    e("v_lshrrev_b32 v30, 5, v21"); e("s_mov_b32 s47, 36864"); e("v_mul_lo_u32 v30, v30, s47")
    e("v_and_b32 v21, 31, v21"); e("v_lshlrev_b32 v21, 4, v21"); e("v_add_u32 v30, v30, v21")
    e("v_lshrrev_b32 v21, 5, v0"); e("v_lshlrev_b32 v21, 9, v21"); e("v_add_u32 v30, v30, v21")
    e("s_mov_b64 s[50:51], vcc")
    e(f"s_mul_i32 s47, s{S_CQ}, 9216"); e(f"s_add_u32 s47, s47, {LY.HS}")
    CS = 128; TT = 144
    def pk(op, d, a, b, c=None):
        s = f"v_pk_{op}_f32 {vr(d,2)}, {vr(a,2)}, {vr(b,2)}"
        if c is not None: s += f", {vr(c,2)}"
        return s
    u = 0
    for T in range(5):
        nj = 4 if T < 4 else 2
        for j in range(nj): e(f"ds_read_b128 {vr(CS+4*j,4)}, v29 offset:{128*T+32*j}")
        e("s_waitcnt lgkmcnt(0)")
        for half in range(nj // 2):
            a = ACC + 16 * T + 8 * half; cs = CS + 8 * half
            for i in range(0, 8, 2): e(pk("fma", a + i, MM, cs + i, a + i))
            for i in range(0, 8, 2): e(pk("mul", TT + i, a + i, a + i))
            for i in range(0, 8, 2): e(pk("fma", TT + i, TT + i, AA, BB))
            for i in range(0, 8, 2): e(pk("mul", TT + i, a + i, TT + i))
            for i in range(8): e(f"v_exp_f32 v{TT+i}, v{TT+i}")
            for i in range(0, 8, 2): e(pk("fma", TT + i, TT + i, 126, 126))
            for i in range(8): e(f"v_rcp_f32 v{TT+i}, v{TT+i}")
            for i in range(0, 8, 2): e(pk("mul", a + i, a + i, TT + i))
            p = 152 + 4 * (u % 2)
            for j in range(4): e(f"v_cvt_pk_bf16_f32 v{p+j}, v{a+2*j}, v{a+2*j+1}")
            for j in range(4): e(f"v_cndmask_b32 v{p+j}, 0, v{p+j}, s[50:51]")
            e(f"buffer_store_dwordx4 {vr(p,4)}, v30, s[{S_WS}:{S_WS+3}], s47 offen offset:{(u%4)*1024}")
            if u % 4 == 3: e("s_add_u32 s47, s47, 4096")
            u += 1
    fin(e)

def gen():
    e = Emit()
    kernel_head(e, NAME)
    Diag.kid = 0
    e("s_cmp_ge_u32 s2, 256")
    e("s_cbranch_scc1 L1_exit")
    e(f"s_load_dwordx2 s[4:5], s[0:1], {KA_WS}")
    e(f"s_load_dwordx4 s[52:55], s[0:1], {KA_XA}")
    e(f"s_load_dwordx2 s[58:59], s[0:1], {KA_W1}")
    e(f"s_load_dwordx2 s[60:61], s[0:1], {KA_GW}")
    e("s_and_b32 s6, s2, 7"); e("s_lshr_b32 s7, s2, 3")
    e("v_lshrrev_b32 v1, 6, v0"); e("v_and_b32 v0, 63, v0")
    e(f"v_readfirstlane_b32 s{S_WV}, v1")
    e(f"s_and_b32 s{S_RB}, s6, 3"); e(f"s_lshl_b32 s{S_RB}, s{S_RB}, 2"); e("s_and_b32 s3, s7, 3"); e(f"s_add_u32 s{S_RB}, s{S_RB}, s3")
    e(f"s_lshr_b32 s{S_CQ}, s6, 2"); e(f"s_lshl_b32 s{S_CQ}, s{S_CQ}, 1"); e("s_bfe_u32 s3, s7, 0x10002"); e(f"s_add_u32 s{S_CQ}, s{S_CQ}, s3")
    e("s_lshr_b32 s3, s7, 3"); e(f"s_lshl_b32 s{S_CT}, s3, 2"); e(f"s_add_u32 s{S_CT}, s{S_CT}, s{S_CQ}")
    e(f"v_lshlrev_b32 v{V_L16}, 4, v0")
    code_prefetch(e, NAME, "L1_exit", 2, vaddr=28, vtmp=29, vdst=31, sp=62)
    e("s_waitcnt lgkmcnt(0)")
    make_srd(e, S_WS, 4, LY.WS_END)
    stamp(e, 0)
    e("s_cmp_eq_u32 s3, 3")
    e("s_cselect_b32 s64, s58, s54"); e("s_cselect_b32 s65, s59, s55")
    e(f"s_movk_i32 s{S_RS}, 3456"); e(f"s_cselect_b32 s{S_RS}, 1152, s{S_RS}")
    e(f"s_mov_b32 s67, {SLOT}"); e(f"s_mov_b32 s68, {(-3*SLOT) & 0xffffffff}")
    e(f"s_cselect_b32 s66, s{S_CQ}, s{S_CT}")
    make_srd(e, S_X, 52, 2048 * 576 * 2)
    e(f"s_mov_b32 s{S_W}, s64"); e(f"s_and_b32 s{S_W+1}, s65, 0xffff"); e(f"s_mul_i32 s{S_W+2}, s{S_RS}, 576"); e(f"s_mov_b32 s{S_W+3}, 0x20000")
    make_srd(e, S_GW, 60, 1152)
    e(f"s_lshl_b32 s{S_XO}, s{S_RB}, 2"); e(f"s_add_u32 s{S_XO}, s{S_XO}, s{S_WV}"); e(f"s_mul_i32 s{S_XO}, s{S_XO}, 36864")
    e(f"s_mul_i32 s{S_WO}, s66, 288")
    e(f"s_lshl_b32 s{S_WSTEP}, s{S_RS}, 6")
    if Opt.l1_touch: touches(e)
    prologue_rot(e)
    setup_common(e)
    e("s_mov_b32 s40, 0x3f803f80")
    e("s_cmp_eq_u32 s3, 2"); e("s_cbranch_scc1 L1_v")
    e("s_cmp_eq_u32 s3, 3"); e("s_cbranch_scc1 L1_h")
    e(f"s_cmp_eq_u32 s{S_CT}, 0"); e("s_cbranch_scc0 L1_qk")
    e(f"s_mov_b32 m0, {GW_OFF}"); e("s_nop 0")
    e(f"buffer_load_dwordx4 v{V_L16}, s[{S_GW}:{S_GW+3}], 0 offen lds")
    e(f"buffer_load_dwordx4 v{V_L16}, s[{S_GW}:{S_GW+3}], 0 offen offset:1024 lds")
    for variant in ("q0", "qk"):
        if variant == "qk": e.label("L1_qk")
        prologue_dma(e)
        waddr_heads(e, True)
        if variant == "q0":
            e("v_lshrrev_b32 v21, 5, v0"); e("v_lshlrev_b32 v21, 4, v21"); e(f"v_add_u32 v{V_GA}, {GW_OFF}, v21")
            e(f"s_lshl_b32 s69, s{S_KC}, 7"); e(f"v_add_u32 v{V_GA}, s69, v{V_GA}")
        late_setup(e)
        zero_acc(e, variant)
        e("s_cmp_eq_u32 s3, 0")
        e(f"s_cselect_b32 s41, {hexf(QSCALE)}, 1.0"); e(f"s_mov_b32 s42, {LY.KF0}"); e(f"s_cselect_b32 s42, {LY.QF0}, s42"); e(f"s_mov_b32 s43, {LY.KX}"); e(f"s_cselect_b32 s43, {LY.QX}, s43")
        main_loop(e, variant)
        epi_qk(e, variant == "q0")
    e.label("L1_v")
    prologue_dma(e)
    waddr_heads(e, False)
    late_setup(e)
    zero_acc(e, "v")
    main_loop(e, "v")
    epi_v(e)
    e.label("L1_h")
    prologue_dma(e)
    waddr_dense(e)
    e(f"s_lshl_b32 s69, s{S_WV}, 6"); e(f"v_add_u32 v{V_WC}, s69, v{V_WA}")
    zero_acc(e, "h")
    main_loop(e, "h")
    epi_h(e)
    e.label("L1_exit")
    e("s_endpgm")
    return e.text()
if __name__ == "__main__":
    t = gen()
    errs = check(t, "l1")
    for x in errs: print(x)
    print("instrs", sum(1 for l in t.split("\n") if l.startswith("    ")), "hazard errs", len(errs))
    assert all((n*3277)>>16 == n//20 for n in range(1280))
    open("l1.s","w").write(t)
```

```python
from gen_common import *
NAME = "l2_kernel"
LDS_BYTES = 110592
S_WS = 12
S_SRC = 16
S_XB = 20

def lane_tr_parts(e, vhf, vsub, vr_, vsig):
    e(f"v_lshrrev_b32 v{vhf}, 5, v0")
    e(f"v_bfe_u32 v{vsub}, v0, 4, 1")
    e(f"v_bfe_u32 v{vr_}, v0, 2, 2")
    e(f"v_and_b32 v{vsig}, 1, v0")
    e(f"v_lshlrev_b32 v{vsig}, 1, v{vsig}")
    e(f"v_bfe_u32 v15, v0, 1, 1")
    e(f"v_or_b32 v{vsig}, v{vsig}, v15")

def gen_gemm(e):
    e.label("L2_gemm")
    e("s_cmp_ge_u32 s7, 6"); e("s_cselect_b32 s9, 1, 0"); e("s_mul_i32 s10, s9, 6"); e("s_sub_u32 s10, s7, s10")
    e("s_lshl_b32 s11, s6, 1"); e("s_add_u32 s9, s9, s11")
    e("s_lshl_b32 s9, s9, 2"); e("s_add_u32 s9, s9, s8")
    e(f"s_load_dwordx2 s[24:25], s[0:1], {KA_W2}")
    e(f"s_load_dwordx2 s[26:27], s[0:1], {KA_XA}")
    e("v_lshlrev_b32 v1, 4, v0")
    for i in range(3):
        e(f"v_add_u32 v5, {64*i}, v0")
        e("v_mul_u32_u24 v6, 171, v5"); e("v_lshrrev_b32 v6, 11, v6")
        e("v_mul_u32_u24 v7, 12, v6"); e("v_sub_u32 v7, v5, v7")
        e("v_mul_u32_u24 v6, 1152, v6"); e("v_lshlrev_b32 v7, 4, v7"); e("v_add_u32 v6, v6, v7")
        e(f"v_subrev_u32 v{2+i}, {1024*i}, v6")
    lane_tr_parts(e, 5, 6, 7, 8)
    e("v_lshlrev_b32 v9, 3, v5"); e("v_add_u32 v9, v9, v7"); e("v_mul_u32_u24 v9, 192, v9")
    e("v_lshlrev_b32 v10, 5, v6"); e("v_add_u32 v9, v9, v10"); e("v_lshlrev_b32 v10, 3, v8"); e("v_add_u32 v9, v9, v10")
    e(f"v_add_u32 v10, {18*3072}, v9")
    TR = [9, 10]
    e("s_waitcnt lgkmcnt(0)")
    make_srd(e, S_SRC, 24, 576 * 576 * 2)
    make_srd(e, S_XB, 26, 2048 * 576 * 2)
    e("s_mul_i32 s28, s8, 18432"); e("s_mul_i32 s29, s10, 192"); e("s_add_u32 s28, s28, s29")
    e("s_mul_i32 s29, s8, 3072")
    e("s_mul_i32 s30, s9, 36864"); e(f"s_add_u32 s30, s30, {LY.HS}")
    for st in range(3):
        for i in range(3):
            g = 12 * st + 4 * i
            e(f"s_add_u32 m0, s29, {g*3072}")
            e(f"s_add_u32 s31, s28, {g*18432}")
            for k in range(3):
                e(f"buffer_load_dwordx4 v{2+k}, s[{S_SRC}:{S_SRC+3}], s31 offen offset:{k*1024} lds")
        for j in range(12 * st, 12 * st + 12):
            e(f"buffer_load_dwordx4 {ar(4*j,4)}, v1, s[{S_WS}:{S_WS+3}], s30 offen offset:{(j%4)*1024}")
            if j % 4 == 3: e("s_add_u32 s30, s30, 4096")
    stamp(e, 1)
    ACC = 16; WB = 64; XB = 100
    def reads(ks):
        o = []
        b = WB + 12 * (ks % 3); tr = TR[ks // 18]; kk = ks % 18
        for T in range(3):
            for q in range(2):
                o.append(f"ds_read_b64_tr_b16 {vr(b+4*T+2*q,2)}, v{tr} offset:{kk*3072 + q*768 + 64*T}")
        return o
    e("v_and_b32 v11, 31, v0"); e("s_movk_i32 s32, 1152"); e("v_mul_lo_u32 v12, v11, s32"); e("v_lshlrev_b32 v13, 4, v5"); e("v_add_u32 v12, v12, v13")
    e("s_mul_i32 s33, s9, 36864"); e("s_mul_i32 s34, s10, 192"); e("s_add_u32 s33, s33, s34")
    for st in range(3):
        e(f"s_waitcnt vmcnt({[42, 27, 6][st]})")
        e("s_barrier")
        stamp(e, 2 + st)
        if st == 0:
            for u in range(6):
                e(f"buffer_load_dwordx4 {vr(XB+4*u,4)}, v12, s[{S_XB}:{S_XB+3}], s33 offen offset:{u*32}")
        k0 = 12 * st
        e.extend(reads(k0)); e.extend(reads(k0 + 1))
        for ks in range(k0, k0 + 12):
            nxt = ks + 2 < k0 + 12
            e(f"s_waitcnt lgkmcnt({6 if ks + 1 < k0 + 12 else 0})")
            b = WB + 12 * (ks % 3)
            rd = reads(ks + 2) if nxt else []
            for T in range(3):
                e(f"v_mfma_f32_32x32x16_bf16 {vr(ACC+16*T,16)}, {vr(b+4*T,4)}, {ar(4*ks,4)}, " + ("0" if ks == 0 else vr(ACC + 16 * T, 16)))
                e.extend(rd[2 * T:2 * T + 2])
    stamp(e, 5)
    e("s_mov_b32 s34, 0x00003f80"); e("s_mov_b32 s35, 0x3f800000"); e("s_mov_b32 s36, 0x3f803f80")
    e("s_mul_i32 s37, s9, 36"); e("s_mul_i32 s38, s10, 6"); e("s_add_u32 s37, s37, s38"); e("s_lshl_b32 s37, s37, 10"); e(f"s_add_u32 s37, s37, {LY.X1F}")
    e("v_mov_b32 v2, 0"); e("v_mov_b32 v3, 0")
    e("s_waitcnt vmcnt(0)")
    e("s_nop 7")
    for u in range(6):
        T, hq = divmod(u, 2); b = ACC + 16 * T + 8 * hq; x = XB + 4 * u; P = 64 + 4 * u
        for j in range(4):
            e(f"v_dot2c_f32_bf16 v{b+2*j}, s34, v{x+j}")
            e(f"v_dot2c_f32_bf16 v{b+2*j+1}, s35, v{x+j}")
        e("s_nop 2")
        for j in range(4): e(f"v_cvt_pk_bf16_f32 v{P+j}, v{b+2*j}, v{b+2*j+1}")
        e(f"buffer_store_dwordx4 {vr(P,4)}, v1, s[{S_WS}:{S_WS+3}], s37 offen offset:{(u%4)*1024}")
        if u == 3: e("s_add_u32 s37, s37, 4096")
        for j in range(4):
            e(f"v_dot2c_f32_bf16 v2, s36, v{P+j}")
            e(f"v_dot2c_f32_bf16 v3, v{P+j}, v{P+j}")
    e("v_lshlrev_b32 v4, 14, v5"); e("v_lshlrev_b32 v6, 3, v11"); e("v_add_u32 v4, v4, v6")
    e("s_lshl_b32 s38, s10, 15"); e("s_lshl_b32 s39, s9, 8"); e("s_add_u32 s38, s38, s39"); e(f"s_add_u32 s38, s38, {LY.ST2}")
    e("s_nop 1")
    e(f"buffer_store_dwordx2 v[2:3], v4, s[{S_WS}:{S_WS+3}], s38 offen")
    fin(e)

def slice_phase(e, sft, kind, sdst):
    e(f"s_mul_i32 s40, s{sft}, 3641"); e("s_lshr_b32 s40, s40, 16")
    e(f"s_mul_i32 s41, s40, 18"); e(f"s_sub_u32 s41, s{sft}, s41")
    if kind == "S1":
        e("s_lshl_b32 s42, s41, 1"); e("s_sub_u32 s42, s42, 1")
        e("s_cmp_lt_u32 s41, 2"); e("s_cselect_b32 s42, s41, s42")
    else:
        e("s_lshl_b32 s42, s41, 1"); e("s_add_u32 s42, s42, 2"); e("s_min_u32 s42, s42, 35")
    e("s_mul_i32 s40, s40, 36"); e("s_add_u32 s40, s40, s42"); e(f"s_mul_i32 s{sdst}, s40, 36864"); e(f"s_add_u32 s{sdst}, s{sdst}, {LY.W34}")

def dma_rows128(e, rowbytes, swz):
    e("v_lshrrev_b32 v5, 3, v0"); e("v_and_b32 v6, 7, v0")
    if swz:
        e("v_bfe_u32 v7, v0, 4, 1"); e("v_lshlrev_b32 v7, 2, v7"); e("v_xor_b32 v6, v6, v7")
    e(f"s_mov_b32 s32, {rowbytes}"); e("v_mul_lo_u32 v5, v5, s32"); e("v_lshlrev_b32 v6, 4, v6"); e("v_add_u32 v2, v5, v6")
    e(f"s_mul_i32 s29, s8, {144*rowbytes}"); e("s_add_u32 s29, s29, s28")
    e("s_mul_i32 s31, s8, 18432")
    for i in range(18):
        e(f"s_add_u32 m0, s31, {i*1024}")
        e(f"s_add_u32 s30, s29, {i*8*rowbytes}")
        e(f"buffer_load_dwordx4 v2, s[{S_SRC}:{S_SRC+3}], s30 offen lds")

def gen_w3(e):
    e.label("L2_w3")
    e(f"s_load_dwordx2 s[24:25], s[0:1], {KA_W3}")
    e("v_lshlrev_b32 v1, 4, v0")
    e("s_lshl_b32 s28, s9, 7")
    e("s_waitcnt lgkmcnt(0)")
    make_srd(e, S_SRC, 24, 576 * 4608 * 2)
    dma_rows128(e, 9216, True)
    lane_tr_parts(e, 5, 6, 7, 8)
    e("s_and_b32 s33, s8, 1"); e("s_lshr_b32 s34, s8, 1")
    e("v_lshlrev_b32 v9, 1, v6"); e("v_lshrrev_b32 v10, 1, v8"); e("v_add_u32 v9, v9, v10")
    e("s_lshl_b32 s35, s33, 2"); e("v_add_u32 v9, s35, v9")
    e("v_lshrrev_b32 v10, 1, v7"); e("v_lshlrev_b32 v10, 2, v10"); e("v_xor_b32 v9, v9, v10")
    e("v_lshlrev_b32 v9, 4, v9"); e("v_and_b32 v10, 1, v8"); e("v_lshlrev_b32 v10, 3, v10"); e("v_add_u32 v9, v9, v10")
    e("v_lshlrev_b32 v10, 3, v5"); e("v_add_u32 v10, v10, v7"); e("v_lshlrev_b32 v10, 7, v10"); e("v_add_u32 v9, v9, v10")
    e("s_mul_i32 s35, s34, 36864"); e("v_add_u32 v9, s35, v9")
    F = 16
    stamp(e, 1)
    e("s_waitcnt vmcnt(0)"); e("s_barrier")
    stamp(e, 2)
    for k in range(18):
        for q in range(2):
            e(f"ds_read_b64_tr_b16 {vr(F+4*k+2*q,2)}, v9 offset:{k*2048+q*512}")
    e("s_mov_b32 s36, 0x3f803f80"); e("s_mov_b32 s37, 0x00003f80"); e("s_mov_b32 s38, 0x3f800000")
    for a in range(4): e(f"v_mov_b32 v{10+a}, 0")
    for k in range(18):
        if k % 3 == 0: e(f"s_waitcnt lgkmcnt({min(15, 36 - 2*(k+3))})")
        for j in range(4): e(f"v_dot2c_f32_bf16 v{10+j}, s36, v{F+4*k+j}")
    e("s_nop 2")
    e("v_add_f32 v10, v10, v11"); e("v_add_f32 v12, v12, v13"); e("v_add_f32 v10, v10, v12")
    e("v_mov_b32 v11, v10"); e("s_nop 1"); e("v_permlane32_swap_b32 v10, v11"); e("v_add_f32 v10, v10, v11")
    e("v_lshlrev_b32 v12, 2, v0"); e("s_lshl_b32 s35, s8, 8"); e("s_add_u32 s35, s35, 73728"); e("v_add_u32 v13, s35, v12")
    e("ds_write_b32 v13, v10")
    e("s_xor_b32 s35, s8, 2"); e("s_lshl_b32 s35, s35, 8"); e("s_add_u32 s35, s35, 73728"); e("v_add_u32 v13, s35, v12")
    e("s_waitcnt lgkmcnt(0)"); e("s_barrier")
    e("ds_read_b32 v11, v13"); e("s_waitcnt lgkmcnt(0)")
    e("v_add_f32 v10, v10, v11"); e(f"v_mul_f32 v10, {hexf(-1/576)}, v10")
    e("s_lshl_b32 s39, s9, 1"); e("s_add_u32 s39, s39, s33")
    slice_phase(e, 39, "S1", 43)
    e("s_mul_i32 s35, s34, 18432"); e("s_add_u32 s43, s43, s35")
    TS = [88, 96]
    def fink(k):
        t = TS[k % 2]
        for j in range(4): e(f"v_cvt_pk_bf16_f32 v{F+4*k+j}, v{t+2*j}, v{t+2*j+1}")
        e(f"buffer_store_dwordx4 {vr(F+4*k,4)}, v1, s[{S_WS}:{S_WS+3}], s43 offen offset:{(k%4)*1024}")
        if k % 4 == 3: e("s_add_u32 s43, s43, 4096")
    for k in range(18):
        t = TS[k % 2]
        for j in range(4):
            e(f"v_dot2_f32_bf16 v{t+2*j}, v{F+4*k+j}, s37, v10")
            e(f"v_dot2_f32_bf16 v{t+2*j+1}, v{F+4*k+j}, s38, v10")
        if k > 0: fink(k - 1)
    e("s_nop 2")
    fink(17)
    fin(e)

def gen_w4(e):
    e.label("L2_w4")
    e(f"s_load_dwordx2 s[24:25], s[0:1], {KA_W4}")
    e("v_lshlrev_b32 v1, 4, v0")
    for i in range(9):
        e("v_lshrrev_b32 v5, 3, v0"); e(f"v_add_u32 v5, {8*i}, v5")
        e("v_mul_u32_u24 v6, 57, v5"); e("v_lshrrev_b32 v6, 9, v6")
        e("v_mul_u32_u24 v7, 9, v6"); e("v_sub_u32 v7, v5, v7")
        e("v_and_b32 v8, 7, v0"); e("v_bfe_u32 v9, v6, 1, 1"); e("v_lshlrev_b32 v9, 2, v9"); e("v_xor_b32 v8, v8, v9")
        e("v_mul_u32_u24 v6, 1152, v6"); e("v_lshlrev_b32 v7, 7, v7"); e("v_lshlrev_b32 v8, 4, v8")
        e(f"v_add3_u32 v{16+i}, v6, v7, v8")
    e("s_waitcnt lgkmcnt(0)")
    make_srd(e, S_SRC, 24, 576 * 4608 * 2)
    e("s_lshl_b32 s28, s9, 2"); e("s_add_u32 s28, s28, s8"); e("s_mul_i32 s28, s28, 18432")
    e("s_mul_i32 s31, s8, 18432")
    for h in range(2):
        e(f"s_add_u32 s30, s28, {h*9216}")
        for i in range(9):
            e(f"s_add_u32 m0, s31, {h*9216+i*1024}")
            e("s_nop 0")
            e(f"buffer_load_dwordx4 v{16+i}, s[{S_SRC}:{S_SRC+3}], s30 offen lds")
    lane_tr_parts(e, 5, 6, 7, 8)
    e("v_lshlrev_b32 v9, 1, v6"); e("v_lshrrev_b32 v10, 1, v8"); e("v_add_u32 v9, v9, v10")
    e("v_lshrrev_b32 v10, 1, v7"); e("v_lshlrev_b32 v10, 2, v10")
    e("v_xor_b32 v11, v9, v10"); e("v_xor_b32 v12, 4, v11")
    e("v_and_b32 v13, 1, v8"); e("v_lshlrev_b32 v13, 3, v13")
    e("v_lshlrev_b32 v14, 3, v5"); e("v_add_u32 v14, v14, v7"); e("v_mul_u32_u24 v14, 1152, v14"); e("v_add_u32 v14, v14, v13"); e("v_add_u32 v14, s31, v14")
    e("v_lshlrev_b32 v11, 4, v11"); e("v_lshlrev_b32 v12, 4, v12"); e("v_add_u32 v11, v11, v14"); e("v_add_u32 v12, v12, v14")
    F = 32
    stamp(e, 1)
    e("s_waitcnt vmcnt(0)")
    stamp(e, 2)
    for dt in range(18):
        for q in range(2):
            e(f"ds_read_b64_tr_b16 {vr(F+4*dt+2*q,2)}, v{11+(dt&1)} offset:{(dt>>1)*128 + q*4608}")
    e("s_lshl_b32 s39, s9, 1"); e("s_lshr_b32 s35, s8, 1"); e("s_add_u32 s39, s39, s35")
    slice_phase(e, 39, "S2", 43)
    e("s_and_b32 s35, s8, 1"); e("s_mul_i32 s35, s35, 18432"); e("s_add_u32 s43, s43, s35")
    for dt in range(18):
        if dt % 3 == 0: e(f"s_waitcnt lgkmcnt({min(15, 36 - 2*(dt+3))})")
        e(f"buffer_store_dwordx4 {vr(F+4*dt,4)}, v1, s[{S_WS}:{S_WS+3}], s43 offen offset:{(dt%4)*1024}")
        if dt % 4 == 3: e("s_add_u32 s43, s43, 4096")
    fin(e)

def gen_wo(e):
    e.label("L2_wo")
    e(f"s_load_dwordx2 s[24:25], s[0:1], {KA_WO}")
    e("v_lshlrev_b32 v1, 4, v0")
    e("s_mul_i32 s10, s9, 86"); e("s_lshr_b32 s10, s10, 8")
    e("s_mul_i32 s11, s10, 3"); e("s_sub_u32 s11, s9, s11")
    e("s_mul_i32 s28, s10, 288"); e("s_lshl_b32 s29, s11, 7"); e("s_add_u32 s28, s28, s29")
    e("s_waitcnt lgkmcnt(0)")
    make_srd(e, S_SRC, 24, 576 * 576 * 2)
    dma_rows128(e, 1152, False)
    lane_tr_parts(e, 5, 6, 7, 8)
    e("s_and_b32 s33, s8, 1"); e("s_lshr_b32 s34, s8, 1")
    e("v_lshlrev_b32 v9, 5, v6"); e("v_lshlrev_b32 v10, 3, v8"); e("v_add_u32 v9, v9, v10"); e("s_lshl_b32 s35, s33, 6"); e("v_add_u32 v9, s35, v9")
    e("v_lshlrev_b32 v10, 2, v5"); e("v_add_u32 v10, v10, v7"); e("v_lshlrev_b32 v10, 7, v10"); e("v_add_u32 v10, v10, v9")
    e(f"s_mul_i32 s35, s34, {324*128}"); e("v_add_u32 v10, s35, v10")
    e("v_lshrrev_b32 v11, 1, v7"); e("v_lshlrev_b32 v12, 2, v5"); e("v_add_u32 v12, v12, v11"); e("v_mul_u32_u24 v12, 18, v12")
    e("v_xor_b32 v11, 1, v11"); e("v_lshlrev_b32 v11, 4, v11"); e("v_add_u32 v12, v12, v11"); e("v_and_b32 v11, 1, v7"); e("v_add_u32 v12, v12, v11")
    e("v_lshlrev_b32 v12, 7, v12"); e("v_add_u32 v12, v12, v9")
    F = 16
    e("s_waitcnt vmcnt(0)"); e("s_barrier")
    for k in range(14):
        for q in range(2):
            e(f"ds_read_b64_tr_b16 {vr(F+4*k+2*q,2)}, v10 offset:{(18*k + 8*q + 2*(k&1))*128}")
    e("s_cmp_eq_u32 s34, 0"); e("s_cbranch_scc0 L2_wo_x")
    for k in range(14, 18):
        for q in range(2):
            e(f"ds_read_b64_tr_b16 {vr(F+4*k+2*q,2)}, v10 offset:{(18*k + 8*q + 2*(k&1))*128}")
    e("s_branch L2_wo_y")
    e.label("L2_wo_x")
    for k in range(14, 18):
        for q in range(2):
            e(f"ds_read_b64_tr_b16 {vr(F+4*k+2*q,2)}, v12 offset:{18*(8*(k-14) + 2*q)*128}")
    e.label("L2_wo_y")
    e("s_lshl_b32 s35, s11, 1"); e("s_add_u32 s35, s35, s33")
    e("s_cmp_eq_u32 s35, 5"); e("s_cbranch_scc1 L2_exit")
    e("s_mul_i32 s36, s10, 5"); e("s_add_u32 s36, s36, s35"); e("s_mul_i32 s36, s36, 36"); e("s_mul_i32 s37, s34, 18"); e("s_add_u32 s36, s36, s37")
    e("s_lshl_b32 s43, s36, 10"); e(f"s_add_u32 s43, s43, {LY.WOP}")
    e("s_waitcnt lgkmcnt(0)")
    for k in range(18):
        e(f"buffer_store_dwordx4 {vr(F+4*k,4)}, v1, s[{S_WS}:{S_WS+3}], s43 offen offset:{(k%4)*1024}")
        if k % 4 == 3: e("s_add_u32 s43, s43, 4096")
    fin(e)

def gen():
    e = Emit()
    kernel_head(e, NAME)
    Diag.kid = 1
    e("s_cmp_ge_u32 s2, 256")
    e("s_cbranch_scc1 L2_exit")
    e(f"s_load_dwordx2 s[4:5], s[0:1], {KA_WS}")
    e("s_and_b32 s6, s2, 7")
    e("s_lshr_b32 s7, s2, 3")
    e("v_lshrrev_b32 v1, 6, v0")
    e("v_and_b32 v0, 63, v0")
    e("v_readfirstlane_b32 s8, v1")
    code_prefetch(e, NAME, "L2_exit", 2, vaddr=250, vtmp=251, vdst=252, sp=60)
    e("s_waitcnt lgkmcnt(0)")
    make_srd(e, S_WS, 4, LY.WS_END)
    stamp(e, 0)
    e("s_cmp_lt_u32 s7, 12")
    e("s_cbranch_scc1 L2_gemm")
    e("s_sub_u32 s9, s2, 96")
    e("s_cmp_lt_u32 s9, 72")
    e("s_cbranch_scc1 L2_w3")
    e("s_sub_u32 s9, s9, 72")
    e("s_cmp_lt_u32 s9, 72")
    e("s_cbranch_scc1 L2_w4")
    e("s_sub_u32 s9, s9, 72")
    e("s_cmp_lt_u32 s9, 12")
    e("s_cbranch_scc1 L2_wo")
    e("s_endpgm")
    gen_gemm(e); gen_w3(e); gen_w4(e); gen_wo(e)
    e.label("L2_exit")
    e("s_endpgm")
    return e.text()
if __name__ == "__main__":
    t = gen()
    errs = check(t, "l2")
    for x in errs: print(x)
    print("instrs", sum(1 for l in t.split("\n") if l.startswith("    ")), "hazard errs", len(errs))
    assert all((n*171)>>11 == n//12 for n in range(192))
    assert all((n*57)>>9 == n//9 for n in range(72))
    assert all((n*3641)>>16 == n//18 for n in range(144))
    assert all((n*86)>>8 == n//3 for n in range(12))
```

```python
from gen_common import *
import os

NAME = "l3_kernel"
LDS_BYTES = 4 * 36864

V_LANE16 = 1
V_DMA    = 2
V_A, V_B, V_S = 3, 4, 5
V_T = 6
V_RD = 14
V_SLOT = [12+0, 12+1, 12+2, 12+3]
V_T0 = [6, 7, 8, 9]
V_W = 16
NB = 6
V_HP = 40
V_H = [48, 64]
def OUT(dt):
    return (True, 80 + 16 * dt) if dt < 11 else (False, 144 + 16 * (dt - 11))
def outreg(dt):
    isv_, b = OUT(dt)
    return vr(b, 16) if isv_ else ar(b, 16)
S_SRD = 12
S_W, S_J = 8, 7
S_M0B = 18
S_D0, S_D1, S_D2 = 19, 20, 21
S_CNT = 22

def gelu_group(H, elems, temps):
    o = []
    for e_, t in zip(elems, temps): o.append(f"v_mul_f32 v{t}, v{H+e_}, v{H+e_}")
    for e_, t in zip(elems, temps): o.append(f"v_fma_f32 v{t}, v{t}, v{V_A}, v{V_B}")
    for e_, t in zip(elems, temps): o.append(f"v_mul_f32 v{t}, v{H+e_}, v{t}")
    for e_, t in zip(elems, temps): o.append(f"v_exp_f32 v{t}, v{t}")
    for e_, t in zip(elems, temps): o.append(f"v_fma_f32 v{t}, v{t}, v{V_S}, v{V_S}")
    for e_, t in zip(elems, temps): o.append(f"v_rcp_f32 v{t}, v{t}")
    for e_, t in zip(elems, temps): o.append(f"v_mul_f32 v{H+e_}, v{H+e_}, v{t}")
    return o
TA = [6, 7, 8, 9]
def gelu_groups(H, gs):
    o = []
    for g in gs: o += gelu_group(H, range(4 * g, 4 * g + 4), TA)
    return o
def cvts(H, js):
    return [f"v_cvt_pk_bf16_f32 v{V_HP+j}, v{H+2*j}, v{H+2*j+1}" for j in js]

def s1_mfmas(c):
    H = V_H[c & 1]
    return [f"v_mfma_f32_32x32x16_bf16 {vr(H,16)}, {vr(V_W+4*(j%NB),4)}, {ar(4*j,4)}, " + ("0" if j == 0 else vr(H, 16)) for j in range(36)]
def s2_mfmas():
    o = []
    for m in range(36):
        q, dt = divmod(m, 18)
        o.append(f"v_mfma_f32_32x32x16_bf16 {outreg(dt)}, {vr(V_W+4*(m%NB),4)}, {vr(V_HP+4*q,4)}, {outreg(dt)}")
    return o

def rd(slot, m):
    return f"ds_read_b128 {vr(V_W+4*(m%NB),4)}, v{V_SLOT[slot]} offset:{m*1024}"

def dma_instrs(slot):
    g = []
    for i in range(9):
        grp, k = divmod(i, 4)
        pre = []
        if k == 0:
            pre.append(f"s_add_u32 m0, s{S_M0B}, {slot*36864 + grp*4096}")
            pre.append("s_nop 0") if False else None
        sreg = [S_D0, S_D1, S_D2][grp]
        g.append((pre, f"buffer_load_dwordx4 v{V_DMA}, s[{S_SRD}:{S_SRD+3}], s{sreg} offen offset:{k*1024} lds"))
    return g
def dma_advance():
    return [f"s_add_u32 s{S_D0}, s{S_D0}, 36864", f"s_add_u32 s{S_D1}, s{S_D1}, 36864", f"s_add_u32 s{S_D2}, s{S_D2}, 36864"]

def phase(e, mf, slot, has_next, dma_slot, fill, fill_range, last_vm=9, tail=None):
    gaps = {}
    nslot = (slot + 1) % 4
    for j in range(36):
        L = gaps.setdefault(j, [])
        m = j + NB
        if j == 36 - NB - 1 + 0 and False: pass
        if m < 36:
            L.append(rd(slot, m))
        elif has_next:
            if m == 36:
                L.append(f"s_waitcnt vmcnt({last_vm})")
                L.append("s_barrier")
            L.append(rd(nslot, m - 36))
    if dma_slot is not None:
        d = dma_instrs(dma_slot)
        pos = [1, 4, 7, 10, 13, 16, 19, 22, 25]
        for (pre, ld), p in zip(d, pos):
            if pre: gaps[p - 1] += pre
            gaps[p].append(ld)
        gaps[27] += dma_advance()
    if fill:
        spread(gaps, fill, fill_range[0], fill_range[1])
    for j in range(36):
        nxt = j + 1
        if nxt % 2 == 0:
            if nxt < 36:
                last_issued = j + NB if (has_next or j + NB < 36) else 35
                allowed = last_issued - (nxt + 1)
                gaps[j].append(f"s_waitcnt lgkmcnt({allowed})")
            elif has_next:
                gaps[j].append(f"s_waitcnt lgkmcnt({NB-2})")
    e.extend(weave(mf, gaps))
    if tail: e.extend(tail)

def gen_mlp(e):
    e.label("L3_mlp")
    e(f"s_lshl_b32 s9, s7, 2")
    e(f"s_add_u32 s9, s9, s{S_W}")
    e(f"s_mul_i32 s{S_M0B}, s{S_W}, 9216")
    e(f"s_mul_i32 s10, s6, {36*36864}")
    e(f"s_add_u32 s{S_D0}, s10, {LY.W34}")
    e(f"s_add_u32 s{S_D1}, s{S_D0}, 4096")
    e(f"s_add_u32 s{S_D2}, s{S_D0}, 8192")
    e(f"v_lshlrev_b32 v{V_LANE16}, 4, v0")
    e(f"v_add_u32 v{V_DMA}, s{S_M0B}, v{V_LANE16}")
    for s in range(4):
        e(f"v_add_u32 v{V_SLOT[s]}, {s*36864}, v{V_LANE16}")
    for pre, ld in dma_instrs(0):
        for p in pre: e(p)
        if pre: e("s_nop 0")
        e(ld)
    for a in dma_advance(): e(a)
    e(f"s_mul_i32 s16, s9, 36864")
    e(f"s_add_u32 s16, s16, {LY.X1F}")
    for j in range(36):
        e(f"buffer_load_dwordx4 {ar(4*j,4)}, v{V_LANE16}, s[{S_SRD}:{S_SRD+3}], s16 offen offset:{(j%4)*1024}")
        if j % 4 == 3 and j != 35: e("s_add_u32 s16, s16, 4096")
    e("v_and_b32 v6, 31, v0")
    e("v_lshlrev_b32 v6, 3, v6")
    e("s_lshl_b32 s17, s9, 8")
    e(f"s_add_u32 s17, s17, {LY.ST2}")
    for p in range(12):
        e(f"buffer_load_dwordx2 {vr(48+2*p,2)}, v6, s[{S_SRD}:{S_SRD+3}], s17 offen")
        if p != 11: e("s_add_u32 s17, s17, 16384")
    for pre, ld in dma_instrs(1):
        for p in pre: e(p)
        if pre: e("s_nop 0")
        e(ld)
    for a in dma_advance(): e(a)
    stamp(e, 1)
    for i in range(4): e(f"v_mov_b32 v{V_W+i}, 0")
    e("s_nop 1")
    for dt in range(18):
        e(f"v_mfma_f32_32x32x16_bf16 {outreg(dt)}, {vr(V_W,4)}, {vr(V_W,4)}, 0")
    e("s_waitcnt vmcnt(9)")
    for p in range(1, 12):
        e(f"v_add_f32 v48, v48, v{48+2*p}")
        e(f"v_add_f32 v49, v49, v{49+2*p}")
    e(f"v_mul_f32 v48, {hexf(1/576)}, v48")
    e(f"v_mul_f32 v49, {hexf(1/576)}, v49")
    e(f"v_fma_f32 v49, -v48, v48, v49")
    e(f"v_max_f32 v49, 0, v49")
    e(f"v_add_f32 v49, {hexf(1e-5)}, v49")
    e(f"v_sqrt_f32 v{V_S}, v49")
    e("s_nop 0")
    e(f"v_rcp_f32 v50, v{V_S}")
    e("s_nop 0")
    e(f"v_mul_f32 v{V_B}, {hexf(GELU_C0)}, v50")
    e(f"v_mul_f32 v51, v50, v50")
    e(f"v_mul_f32 v51, v51, v50")
    e(f"v_mul_f32 v{V_A}, {hexf(GELU_C1)}, v51")
    e("s_barrier")
    stamp(e, 2)
    for m in range(NB): e(rd(0, m))
    e(f"s_waitcnt lgkmcnt({NB-2})")
    phase(e, s1_mfmas(0), 0, True, 2, None, None)
    phase(e, s1_mfmas(1), 1, True, 3, gelu_groups(V_H[0], range(4)) + cvts(V_H[0], range(8)), (3, 35))
    if Diag.on:
        stamp(e, 3)
    e(f"s_mov_b32 s{S_CNT}, 8")
    e(".p2align 6")
    e.label("L3_mlp_loop")
    for half in range(2):
        Hn = V_H[(half + 1) & 1]
        sl = 2 + 2 * half
        phase(e, s2_mfmas(), sl % 4, True, (sl + 2) % 4, gelu_groups(Hn, [0, 1]), (3, 36))
        phase(e, s1_mfmas(half), (sl + 1) % 4, True, (sl + 3) % 4, cvts(Hn, range(2)) + gelu_groups(Hn, [2]) + cvts(Hn, range(2, 4)) + gelu_groups(Hn, [3]) + cvts(Hn, range(4, 8)), (0, 35))
    e(f"s_sub_u32 s{S_CNT}, s{S_CNT}, 1")
    e(f"s_cmp_lg_u32 s{S_CNT}, 0")
    e("s_cbranch_scc1 L3_mlp_loop")
    stamp(e, 4)
    H = V_H[1]
    phase(e, s2_mfmas(), 2, True, None, gelu_groups(H, range(4)), (3, 36), last_vm=0, tail=cvts(H, range(8)) + ["s_nop 1"])
    phase(e, s2_mfmas(), 3, False, None, None, None)
    stamp(e, 5)
    e(f"s_lshl_b32 s10, s6, 6")
    e(f"s_add_u32 s10, s10, s9")
    e(f"s_mul_i32 s10, s10, 36864")
    e(f"s_add_u32 s10, s10, {LY.PART}")
    e("s_nop 9")
    tb = [48, 56, 64, 72]
    for dt in range(18):
        isv_, b = OUT(dt)
        t = tb[dt % 4]
        if isv_:
            for j in range(8): e(f"v_cvt_pk_bf16_f32 v{t+j}, v{b+2*j}, v{b+2*j+1}")
        else:
            for j in range(16): e(f"v_accvgpr_read_b32 v{16+j}, a{b+j}")
            for j in range(8): e(f"v_cvt_pk_bf16_f32 v{t+j}, v{16+2*j}, v{16+2*j+1}")
        ks = 2 * dt
        e(f"buffer_store_dwordx4 {vr(t,4)}, v{V_LANE16}, s[{S_SRD}:{S_SRD+3}], s10 offen offset:{(ks%4)*1024}")
        e(f"buffer_store_dwordx4 {vr(t+4,4)}, v{V_LANE16}, s[{S_SRD}:{S_SRD+3}], s10 offen offset:{(ks%4+1)*1024}")
        if dt % 2 == 1 and dt != 17: e("s_add_u32 s10, s10, 4096")
    fin(e)

A_K0OFF, A_KXOFF, A_VOFF = 1, 2, 3
A_M = 8
A_O = 32
A_S = [160, 192]
A_P = [224, 240]
NSET = 2
AG_SET = 0
def SET(i): return AG_SET + 28 * (i % NSET)
AG_Q0 = 56
AG_QX = 88
SA_K, SA_KX, SA_V = 16, 17, 18
SA_CNT = 22
NQ = 8

def attn_loads(st):
    b = SET(st); R = f"s[{S_SRD}:{S_SRD+3}]"
    o = [f"buffer_load_dwordx4 {ar(b,4)}, v{A_K0OFF}, {R}, s{SA_K} offen",
         f"buffer_load_dwordx4 {ar(b+4,4)}, v{A_K0OFF}, {R}, s{SA_K} offen offset:1024",
         f"buffer_load_dword a{b+24}, v{A_KXOFF}, {R}, s{SA_KX} offen"]
    for i in range(4):
        o.append(f"buffer_load_dwordx4 {ar(b+8+4*i,4)}, v{A_VOFF}, {R}, s{SA_V} offen" + (f" offset:{608*i}" if i else ""))
    o += [f"s_add_u32 s{SA_K}, s{SA_K}, 2048", f"s_add_u32 s{SA_KX}, s{SA_KX}, 256", f"s_add_u32 s{SA_V}, s{SA_V}, 2432"]
    return o
def qk(kp, qi, S):
    b = SET(kp)
    return [f"v_mfma_f32_32x32x4_2b_bf16 {vr(S,32)}, {ar(b+24,2)}, {ar(AG_QX+2*qi,2)}, 0",
            f"v_mfma_f32_32x32x16_bf16 {vr(S,16)}, {ar(b,4)}, {ar(AG_Q0+4*qi,4)}, {vr(S,16)}",
            f"v_mfma_f32_32x32x16_bf16 {vr(S+16,16)}, {ar(b+4,4)}, {ar(AG_Q0+4*qi,4)}, {vr(S+16,16)}"]
def pv(kp, qi, P):
    b = SET(kp); O = A_O + 16 * qi
    return [f"v_mfma_f32_32x32x16_bf16 {vr(O,16)}, {ar(b+8+4*i,4)}, {vr(P+4*i,4)}, {vr(O,16)}" for i in range(4)]
def expcvt(n):
    S = A_S[n & 1]; P = A_P[n & 1]
    ex = [f"v_exp_f32 v{S+i}, v{S+i}" for i in range(32)]
    cv = [f"v_cvt_pk_bf16_f32 v{P+j}, v{S+2*j}, v{S+2*j+1}" for j in range(16)]
    o = ex[0:4]
    for j in range(14): o += [cv[j], ex[2*j+4], ex[2*j+5]]
    o += [cv[14], cv[15]]
    return o

def gen_attn(e, force_slow=False):
    R = f"s[{S_SRD}:{S_SRD+3}]"
    e.label("L3_attn")
    e("s_sub_u32 s7, s7, 16")
    e("s_lshr_b32 s9, s7, 2")
    e("s_lshl_b32 s10, s6, 2")
    e("s_add_u32 s9, s9, s10")
    e("s_and_b32 s10, s7, 3")
    e("s_lshl_b32 s10, s10, 4")
    e(f"s_and_b32 s31, s{S_W}, 1"); e("s_lshl_b32 s31, s31, 3"); e("s_add_u32 s10, s10, s31")
    e(f"s_lshr_b32 s31, s{S_W}, 1")
    e(f"v_lshlrev_b32 v{A_K0OFF}, 4, v0")
    e(f"v_lshlrev_b32 v{A_KXOFF}, 2, v0")
    e("v_and_b32 v4, 31, v0")
    e("v_lshlrev_b32 v5, 4, v4")
    e("v_lshrrev_b32 v6, 5, v0")
    e("v_mul_u32_u24 v7, 304, v6")
    e("v_add_u32 v5, v5, v7")
    e("v_cmp_lt_u32 vcc, 18, v4")
    e("v_mov_b32 v7, 0x40000000")
    e("v_lshlrev_b32 v12, 2, v4")
    e(f"v_cndmask_b32 v{A_VOFF}, v5, v7, vcc")
    e("s_lshl_b32 s11, s9, 16")
    e("s_lshl_b32 s24, s9, 13")
    e(f"s_add_u32 s26, s11, {LY.KF0}")
    e(f"s_add_u32 s27, s24, {LY.KX}")
    e(f"s_mul_i32 s28, s9, {LY.VHEAD}")
    e(f"s_add_u32 s28, s28, {LY.VF}")
    e("s_lshl_b32 s23, s31, 15"); e(f"s_add_u32 s{SA_K}, s26, s23")
    e("s_lshl_b32 s23, s31, 12"); e(f"s_add_u32 s{SA_KX}, s27, s23")
    e(f"s_mul_i32 s23, s31, {16*2432}"); e(f"s_add_u32 s{SA_V}, s28, s23")
    for x in attn_loads(0): e(x)
    e("s_lshl_b32 s23, s31, 2"); e("s_add_u32 s34, s10, s23")
    e("s_xor_b32 s23, s23, 4"); e("s_add_u32 s35, s10, s23")
    for g, sg in enumerate((34, 35)):
        e(f"s_lshl_b32 s23, s{sg}, 10"); e("s_add_u32 s23, s23, s11"); e(f"s_add_u32 s23, s23, {LY.QF0}")
        for qi in range(4):
            e(f"buffer_load_dwordx4 {ar(AG_Q0+4*(4*g+qi),4)}, v{A_K0OFF}, {R}, s23 offen offset:{qi*1024}")
        e(f"s_lshl_b32 s23, s{sg}, 7"); e("s_add_u32 s23, s23, s24"); e(f"s_add_u32 s23, s23, {LY.QX}")
        for qi in range(4):
            e(f"buffer_load_dword a{AG_QX+2*(4*g+qi)}, v12, {R}, s23 offen offset:{qi*128}")
    for i in range(16): e(f"v_mov_b32 v{A_P[1]+i}, 0")
    for i in range(16): e(f"v_accvgpr_write_b32 a{SET(1)+8+i}, 0")
    for s_ in range(NSET): e(f"v_accvgpr_write_b32 a{SET(s_)+25}, 0")
    for qi in range(NQ): e(f"v_accvgpr_write_b32 a{AG_QX+2*qi+1}, 0")
    for qi in range(NQ): e(f"v_mfma_f32_32x32x16_bf16 {vr(A_O+16*qi,16)}, {vr(A_P[1],4)}, {vr(A_P[1],4)}, 0")
    stamp(e, 1)
    e("s_waitcnt vmcnt(0)")
    stamp(e, 2)
    q0 = qk(0, 0, A_S[0])
    e(q0[0]); e("s_nop 15"); e("s_nop 1"); e(q0[1]); e(q0[2])
    e("s_nop 10")
    e(f"s_mov_b32 s{SA_CNT}, 8")
    e(".p2align 6")
    e.label("L3_attn_loop")
    NB_ = 2 * NQ
    for n in range(NB_):
        kp, qi = divmod(n, NQ)
        n1 = (n + 1) % NB_; n0 = (n - 1) % NB_
        X, Ma, Mb = qk(n1 // NQ, n1 % NQ, A_S[n1 & 1]); p = pv(n0 // NQ, n0 % NQ, A_P[n0 & 1])
        va = expcvt(n)
        seq = []
        ld = attn_loads(kp + 1)
        if qi == NQ - 1: seq.append("s_waitcnt vmcnt(4)")
        cuts = eval(os.environ.get('ATT_CUTS', '[0, 8, 15, 22, 29, 35, 42, 48]')) if qi < 7 else [0, 9, 16, 23, 30, 36, 42, 48]
        mf = [X, p[0], p[1], Ma, Mb, p[2], p[3]]
        for k in range(7):
            if k == 1 and qi == 1: seq.append("s_waitcnt vmcnt(2)")
            seq.append(mf[k])
            if k == 0 and qi < 7 and not os.environ.get('ATT_NOLOAD'): seq.append(ld[qi])
            if k == 0 and qi == 7: seq += ld[7:9]
            if k == 3 and qi == 7: seq += ld[9:10]
            seq += va[cuts[k]:cuts[k + 1]]
        e.extend(seq)
    e(f"s_sub_u32 s{SA_CNT}, s{SA_CNT}, 1")
    e(f"s_cmp_lg_u32 s{SA_CNT}, 0")
    e("s_cbranch_scc1 L3_attn_loop")
    e("s_nop 1")
    for m in pv(1, NQ - 1, A_P[1]): e(m)
    e("s_nop 15")
    stamp(e, 5)
    e(f"s_mul_i32 s23, s{S_W}, 12288"); e(f"v_add_u32 v4, s23, v{A_K0OFF}")
    for i in range(4):
        for q in range(3):
            e(f"ds_write_b128 v4, {vr(A_O+16*(4+i)+4*q,4)} offset:{(3*i+q)*1024}")
    e(f"s_xor_b32 s23, s{S_W}, 2"); e("s_mul_i32 s23, s23, 12288"); e(f"v_add_u32 v4, s23, v{A_K0OFF}")
    e("s_waitcnt lgkmcnt(0)"); e("s_barrier")
    for i in range(4):
        for q in range(3):
            e(f"ds_read_b128 {vr(A_S[0]+12*i+4*q,4)}, v4 offset:{(3*i+q)*1024}")
    e("s_waitcnt lgkmcnt(0)")
    for i in range(4):
        for r in range(11): e(f"v_add_f32 v{A_O+16*i+r}, v{A_O+16*i+r}, v{A_S[0]+12*i+r}")
    e.label("L3_attn_fin")
    e("s_mul_i32 s23, s34, 36864")
    e(f"s_add_u32 s23, s23, {LY.OF}")
    e("s_lshl_b32 s24, s9, 10")
    e("s_add_u32 s24, s24, s23")
    e("s_lshr_b32 s25, s9, 3")
    e("s_add_u32 s25, s25, 32")
    e("s_lshl_b32 s25, s25, 10")
    e("s_add_u32 s25, s25, s23")
    e("s_lshr_b32 s29, s9, 2"); e("s_and_b32 s29, s29, 1"); e("s_lshl_b32 s29, s29, 9")
    e("s_add_u32 s25, s25, s29")
    e("s_and_b32 s29, s9, 3"); e("s_lshl_b32 s29, s29, 2")
    e("s_add_u32 s25, s25, s29")
    e("s_mov_b64 s[32:33], %d" % (0 if force_slow else -1))
    for qi in range(4):
        O = A_O + 16 * qi
        e(f"v_mov_b32 v4, v{O+10}")
        e(f"v_mov_b32 v5, v{O+10}")
        e("s_nop 1")
        e("v_permlane32_swap_b32 v4, v5")
        e(f"v_cmp_le_f32 vcc, {hexf(2.0**-60)}, v4")
        e("s_and_b64 s[32:33], s[32:33], vcc")
        e(f"v_cmp_ge_f32 vcc, {hexf(2.0**100)}, v4")
        e("s_and_b64 s[32:33], s[32:33], vcc")
        e("v_rcp_f32 v5, v4")
        e("v_mov_b32 v6, 0")
        for r in range(10): e(f"v_mul_f32 v{O+r}, v{O+r}, v5")
        for r in range(10): e(f"v_fmac_f32 v6, 0, v{O+r}")
        e("v_cmp_o_f32 vcc, v6, v6")
        e("s_and_b64 s[32:33], s[32:33], vcc")
    e("s_cmp_eq_u32 s30, 0")
    e("s_cbranch_scc0 L3_attn_store")
    e("s_cmp_eq_u64 s[32:33], exec")
    e("s_cbranch_scc0 L3_attn_slow")
    e.label("L3_attn_store")
    e("v_and_b32 v4, 31, v0")
    e("v_lshlrev_b32 v4, 4, v4")
    for qi in range(4):
        O = A_O + 16 * qi
        t = A_P[0] + 8 * (qi % 4)
        for j in range(5): e(f"v_cvt_pk_bf16_f32 v{t+j}, v{O+2*j}, v{O+2*j+1}")
        e(f"buffer_store_dwordx4 {vr(t,4)}, v{A_K0OFF}, {R}, s24 offen")
        e("s_mov_b64 exec, 0xffffffff")
        e(f"buffer_store_dword v{t+4}, v4, {R}, s25 offen")
        e("s_mov_b64 exec, -1")
        if qi != 3:
            e("s_add_u32 s24, s24, 36864")
            e("s_add_u32 s25, s25, 36864")
    fin(e)
    e.label("L3_attn_slow")
    M = A_M
    e("s_mov_b32 s30, 1")
    e("s_mov_b32 s16, s26"); e("s_mov_b32 s17, s27"); e("s_mov_b32 s18, s28")
    for i in range(64): e(f"v_mov_b32 v{A_O+i}, 0")
    for qi in range(4): e(f"v_mov_b32 v{M+qi}, 0xff800000")
    e(f"s_mov_b32 s{SA_CNT}, 32")
    e.label("L3_attn_slow_loop")
    e("s_waitcnt vmcnt(0)")
    for x in attn_loads(0): e(x)
    e("s_waitcnt vmcnt(0)")
    for qi in range(4):
        S = A_S[0]; P = A_P[0]; O = A_O + 16 * qi
        X, Ma, Mb = qk(0, qi, S)
        e(X); e("s_nop 15"); e("s_nop 1"); e(Ma); e(Mb)
        e("s_nop 11")
        e(f"v_max3_f32 v4, v{S}, v{S+1}, v{S+2}")
        for i in range(3, 31, 2): e(f"v_max3_f32 v4, v4, v{S+i}, v{S+i+1}")
        e(f"v_max_f32 v4, v4, v{S+31}")
        e("v_mov_b32 v5, v4")
        e("s_nop 1")
        e("v_permlane32_swap_b32 v4, v5")
        e("v_max_f32 v4, v4, v5")
        e(f"v_max_f32 v4, v4, v{M+qi}")
        e(f"v_sub_f32 v5, v{M+qi}, v4")
        e("v_exp_f32 v5, v5")
        e(f"v_mov_b32 v{M+qi}, v4")
        for i in range(32): e(f"v_sub_f32 v{S+i}, v{S+i}, v4")
        for i in range(32): e(f"v_exp_f32 v{S+i}, v{S+i}")
        for i in range(16): e(f"v_mul_f32 v{O+i}, v{O+i}, v5")
        for j in range(16): e(f"v_cvt_pk_bf16_f32 v{P+j}, v{S+2*j}, v{S+2*j+1}")
        e("s_nop 1")
        for m in pv(0, qi, P): e(m)
        e("s_nop 11")
    e(f"s_sub_u32 s{SA_CNT}, s{SA_CNT}, 1")
    e(f"s_cmp_lg_u32 s{SA_CNT}, 0")
    e("s_cbranch_scc1 L3_attn_slow_loop")
    e("s_nop 7")
    e("s_branch L3_attn_fin")

def gen(force_slow=False, only=None):
    e = Emit()
    kernel_head(e, NAME)
    Diag.kid = 2
    e("s_cmp_ge_u32 s2, 256")
    e("s_cbranch_scc1 L3_exit")
    e(f"s_load_dwordx2 s[4:5], s[0:1], {KA_WS}")
    e("s_and_b32 s6, s2, 7")
    e("s_lshr_b32 s7, s2, 3")
    e("v_lshrrev_b32 v1, 6, v0")
    e("v_and_b32 v0, 63, v0")
    e(f"v_readfirstlane_b32 s{S_W}, v1")
    e("s_mov_b32 s30, 0")
    code_prefetch(e, NAME, "L3_exit", 3, vaddr=16, vtmp=17, vdst=20, sp=60)
    e("s_waitcnt lgkmcnt(0)")
    make_srd(e, S_SRD, 4, LY.WS_END)
    stamp(e, 0)
    e("s_cmp_lt_u32 s7, 16")
    if only == "mlp":
        e("s_cbranch_scc0 L3_exit")
    else:
        e("s_cbranch_scc0 L3_attn")
    if only == "attn":
        e("s_branch L3_exit")
    gen_mlp(e)
    gen_attn(e, force_slow)
    e.label("L3_exit")
    e("s_endpgm")
    return e.text()

if __name__ == "__main__":
    t = gen()
    errs = check(t, "l3")
    for x in errs: print(x)
    print("instrs", sum(1 for l in t.split("\n") if l.startswith("    ")), "hazard errs", len(errs))
    open("l3.s", "w").write(t)
```

```python
from gen_common import *
NAME = "l4_kernel"
LDS_BYTES = 4 * 18 * 1024
S_WS = 12; S_OUT = 16
def gen():
    e = Emit()
    kernel_head(e, NAME)
    Diag.kid = 3
    e("s_cmp_ge_u32 s2, 256")
    e("s_cbranch_scc1 L4_exit")
    e(f"s_load_dwordx2 s[4:5], s[0:1], {KA_WS}")
    e(f"s_load_dwordx2 s[6:7], s[0:1], {KA_OUT}")
    e("v_lshrrev_b32 v1, 6, v0")
    e("v_and_b32 v0, 63, v0")
    e("v_readfirstlane_b32 s8, v1")
    e("s_lshr_b32 s9, s2, 5"); e("s_lshl_b32 s9, s9, 3"); e("s_and_b32 s10, s2, 7"); e("s_add_u32 s9, s9, s10")
    e("s_lshr_b32 s10, s2, 3"); e("s_and_b32 s10, s10, 3")
    e("v_lshlrev_b32 v1, 4, v0")
    code_prefetch(e, NAME, "L4_exit", 1, vaddr=250, vtmp=251, vdst=252, sp=60)
    e("s_waitcnt lgkmcnt(0)")
    make_srd(e, S_WS, 4, LY.WS_END)
    make_srd(e, S_OUT, 6, 2048 * 576 * 2)
    stamp(e, 0)
    dbg_start(e)
    W = lambda T, k: 4 * (9 * T + k)
    OFR = 8
    ACC = 44
    PB = 124
    VG = 2
    e("s_mul_i32 s20, s9, 36"); e("s_mul_i32 s21, s8, 9"); e("s_add_u32 s20, s20, s21"); e("s_lshl_b32 s20, s20, 10")
    e(f"s_add_u32 s22, s20, {LY.OF}")
    e("s_mul_i32 s23, s10, 180"); e("s_add_u32 s23, s23, s21"); e("s_lshl_b32 s23, s23, 10"); e(f"s_add_u32 s23, s23, {LY.WOP}")
    for k in range(9):
        e(f"buffer_load_dwordx4 {vr(OFR+4*k,4)}, v1, s[{S_WS}:{S_WS+3}], s22 offen offset:{(k%4)*1024}")
        if k % 4 == 3: e("s_add_u32 s22, s22, 4096")
    sreg = [24, 25, 26, 27, 28]
    for T in range(5):
        e(f"s_add_u32 s{sreg[T]}, s23, {T*36*1024}")
    for k in range(9):
        for T in range(5):
            e(f"buffer_load_dwordx4 {ar(W(T,k),4)}, v1, s[{S_WS}:{S_WS+3}], s{sreg[T]} offen offset:{(k%4)*1024}")
        if k % 4 == 3:
            for T in range(5): e(f"s_add_u32 s{sreg[T]}, s{sreg[T]}, 4096")
    e("v_and_b32 v3, 31, v0"); e("v_lshlrev_b32 v4, 2, v3")
    e("s_lshl_b32 s29, s9, 7"); e(f"s_add_u32 s29, s29, {LY.G}")
    total = 54
    def mf(T, k):
        return f"v_mfma_f32_32x32x16_bf16 {vr(ACC+16*T,16)}, {ar(W(T,k),4)}, {vr(OFR+4*k,4)}, " + ("0" if k == 0 else vr(ACC + 16 * T, 16))
    e("s_mul_i32 s30, s9, 36"); e("s_mul_i32 s31, s10, 9"); e("s_add_u32 s30, s30, s31"); e("s_add_u32 s30, s30, s8"); e("s_lshl_b32 s30, s30, 10")
    def unit_loads(i):
        o = []
        o.append(f"s_add_u32 s32, s30, {LY.X1F + i*4096}")
        o.append(f"buffer_load_dwordx4 {vr(PB+36*i,4)}, v1, s[{S_WS}:{S_WS+3}], s32 offen")
        for s in range(8):
            o.append(f"s_add_u32 s32, s30, {LY.PART + s*64*36*1024 + i*4096}")
            o.append(f"buffer_load_dwordx4 {vr(PB+36*i+4*(s+1),4)}, v1, s[{S_WS}:{S_WS+3}], s32 offen")
        return o
    issued = total
    extra = 0
    stamp(e, 1)
    for k in range(9):
        need_done = 9 + 5 * (k + 1)
        e(f"s_waitcnt vmcnt({min(63, total + extra - need_done)})")
        if k == 0: stamp(e, 2)
        for T in range(5): e(mf(T, k))
        if k == 2:
            e(f"buffer_load_dword v{VG}, v4, s[{S_WS}:{S_WS+3}], s29 offen"); extra += 1
            e.extend(unit_loads(0)); extra += 9
        if k == 4:
            e.extend(unit_loads(1)); extra += 9
    stamp(e, 3)
    e("s_cmp_eq_u32 s8, 0")
    e("s_cbranch_scc0 L4_no3a")
    e.extend(unit_loads(2))
    e.label("L4_no3a")
    e("s_mul_i32 s33, s8, 18432")
    e("v_add_u32 v5, s33, v1")
    e("s_nop 7")
    for u in range(9):
        T, hfq = divmod(u, 2)
        b = ACC + 16 * T + 8 * hfq
        e(f"ds_write_b128 v5, {vr(b,4)} offset:{(2*u)*1024}")
        e(f"ds_write_b128 v5, {vr(b+4,4)} offset:{(2*u+1)*1024}")
    e("s_waitcnt lgkmcnt(0)")
    e("s_barrier")
    stamp(e, 4)
    e("s_lshl_b32 s33, s8, 11")
    e("v_add_u32 v5, s33, v1")
    e("v_add_u32 v9, 36864, v5")
    e("s_mov_b32 s34, 0x00003f80"); e("s_mov_b32 s35, 0x3f800000")
    e("v_lshrrev_b32 v6, 5, v0"); e("v_lshlrev_b32 v6, 4, v6")
    e("s_movk_i32 s36, 1152")
    e("v_mul_lo_u32 v7, v3, s36"); e("v_add_u32 v7, v7, v6")
    e("s_mul_i32 s37, s9, 36864"); e("s_mul_i32 s38, s10, 288"); e("s_add_u32 s37, s37, s38"); e("s_lshl_b32 s38, s8, 5"); e("s_add_u32 s37, s37, s38")
    def unit2(i, R, B, src, vm):
        e(f"s_waitcnt vmcnt({vm})")
        for j in range(4):
            e(f"v_lshlrev_b32 v{B+2*j}, 16, v{src+j}")
            e(f"v_and_b32 v{B+2*j+1}, 0xffff0000, v{src+j}")
        for s in range(8):
            for j in range(4):
                e(f"v_dot2c_f32_bf16 v{B+2*j}, s34, v{src+4*(s+1)+j}")
                e(f"v_dot2c_f32_bf16 v{B+2*j+1}, s35, v{src+4*(s+1)+j}")
        e("s_waitcnt lgkmcnt(0)")
        for j in range(8):
            e(f"v_add_f32 v{R+j}, v{R+j}, v{R+8+j}")
            e(f"v_add_f32 v{R+16+j}, v{R+16+j}, v{R+24+j}")
        for j in range(8): e(f"v_add_f32 v{R+j}, v{R+j}, v{R+16+j}")
        for j in range(8): e(f"v_sub_f32 v{R+j}, v{R+j}, v{B+j}")
        for j in range(8): e(f"v_fma_f32 v{R+j}, v{R+j}, v{VG}, v{B+j}")
        for j in range(4): e(f"v_cvt_pk_bf16_f32 v{88+j}, v{R+2*j}, v{R+2*j+1}")
        e(f"buffer_store_dwordx4 v[88:91], v7, s[{S_OUT}:{S_OUT+3}], s37 offen offset:{i*128}")
    def reads(i):
        for wv in range(4):
            ad = "v5" if wv < 2 else "v9"
            e(f"ds_read_b128 {vr(44+8*wv,4)}, {ad} offset:{(wv%2)*18432 + (8*i)*1024}")
            e(f"ds_read_b128 {vr(44+8*wv+4,4)}, {ad} offset:{(wv%2)*18432 + (8*i+1)*1024}")
    e("s_cmp_eq_u32 s8, 0")
    e("s_cbranch_scc0 L4_two")
    reads(0); unit2(0, 44, 80, PB, 18)
    reads(1); unit2(1, 44, 80, PB + 36, 10)
    reads(2); unit2(2, 44, 80, PB + 72, 2)
    fin(e)
    e.label("L4_two")
    reads(0); unit2(0, 44, 80, PB, 9)
    reads(1); unit2(1, 44, 80, PB + 36, 1)
    fin(e)
    e.label("L4_exit")
    e("s_endpgm")
    return e.text()
if __name__ == "__main__":
    t = gen()
    errs = check(t, "l4")
    for x in errs: print(x)
    print("instrs", sum(1 for l in t.split("\n") if l.startswith("    ")), "hazard errs", len(errs))
```

```python
import sys
import build, gen_l1b as gen_l1, gen_l2, gen_l3, gen_l4
from asmlib import check
def kernels(**kw):
    ks = [(gen_l1.NAME, gen_l1.gen(), 256, gen_l1.BLOCK, gen_l1.LDS_BYTES, gen_l1.NVGPR, gen_l1.NVGPR),
          (gen_l2.NAME, gen_l2.gen(), 256, 256, gen_l2.LDS_BYTES, 400, 256),
          (gen_l3.NAME, gen_l3.gen(**kw), 256, 256, gen_l3.LDS_BYTES, 512, 256),
          (gen_l4.NAME, gen_l4.gen(), 256, 256, gen_l4.LDS_BYTES, 440, 256)]
    import re, gen_common
    mod = getattr(gen_common, "STORE_MOD", "")
    if mod:
        ks = [(k[0], re.sub(r"(buffer_store_\w+ [^\n]*offen[^\n]*)", lambda m: m.group(1) + " " + mod, k[1]) if k[0] != "l4_kernel" else k[1]) + k[2:] for k in ks]
    for k in ks:
        errs = check(k[1], k[0])
        for x in errs: print(x)
        assert not errs
    return ks
if __name__ == "__main__":
    out = sys.argv[1] if len(sys.argv) > 1 else "gated_mix__softmax_full_mha__mixer_s_mlp__prompt.s"
    s = build.build(kernels(), out)
    print("wrote", out, len(s), "bytes")
```

```python
from asmlib import *
import layouts as LY
import math

KA_XA, KA_WQKV, KA_WO, KA_XB, KA_W1, KA_W2, KA_W3, KA_W4, KA_GW, KA_OUT, KA_DBG, KA_WS = [8*i for i in range(12)]
WS_SIZE = 268435456

def kernel_head(e, name):
    e(f".globl {name}")
    e(".p2align 8")
    e(f".type {name},@function")
    e.label(name)

def kernel_desc(name, vgpr, accum, sgpr=96):
    return f""".amdhsa_kernel {name}
  .amdhsa_next_free_vgpr {vgpr}
  .amdhsa_next_free_sgpr {sgpr}
  .amdhsa_accum_offset {accum}
  .amdhsa_group_segment_fixed_size 0
  .amdhsa_kernarg_size 96
  .amdhsa_user_sgpr_count 2
  .amdhsa_user_sgpr_kernarg_segment_ptr 1
  .amdhsa_system_sgpr_workgroup_id_x 1
  .amdhsa_float_denorm_mode_32 3
.end_amdhsa_kernel
"""

def make_srd(e, dst, ptr, size):
    if dst != ptr: e(f"s_mov_b32 s{dst}, s{ptr}")
    e(f"s_and_b32 s{dst+1}, s{ptr+1}, 0xffff")
    e(f"s_mov_b32 s{dst+2}, {size}")
    e(f"s_mov_b32 s{dst+3}, 0x20000")

GELU_C0 = -2.0 * math.sqrt(2.0 / math.pi) * math.log2(math.e)
GELU_C1 = GELU_C0 * 0.044715

class Diag:
    on = False
    kid = 0
STAMP_BASE = 0x8000000
def stamp(e, i):
    if Diag.on:
        e(f"s_memrealtime s[{70+2*i}:{71+2*i}]")
        if i == 2: e("s_memtime s[92:93]")
        if i == 5: e("s_memtime s[94:95]")
        e("s_waitcnt lgkmcnt(0)")
def fin(e, wave_sgpr=8):
    if Diag.on:
        stamp(e, 7)
        e("s_waitcnt vmcnt(0)")
        e("s_memrealtime s[86:87]")
        e("s_waitcnt lgkmcnt(0)")
        e("s_mov_b64 exec, -1")
        e(f"s_lshl_b32 s88, s2, 3"); e(f"s_add_u32 s88, s88, s{wave_sgpr}"); e("s_lshl_b32 s88, s88, 6")
        e(f"s_add_u32 s88, s88, {STAMP_BASE + Diag.kid * 0x20000}")
        for i in range(8): e(f"v_mov_b32 v{4+i}, s{70+2*i}")
        e("v_mov_b32 v12, s86")
        e("s_sub_u32 s94, s94, s92")
        e("v_mov_b32 v14, s94")
        e("v_mov_b32 v13, s88")
        e("global_store_dwordx4 v13, v[4:7], s[4:5] offset:0")
        e("global_store_dwordx4 v13, v[8:11], s[4:5] offset:16")
        e("global_store_dword v13, v12, s[4:5] offset:32")
        e("global_store_dword v13, v14, s[4:5] offset:36")
    e("s_endpgm")

class Opt:
    code_pf = True
    l1_touch = False
    late_touch = True
    late_sel = 'all'
    touch_in_loop = True
    touch_stages = (2, 5)
    rotate = True
    rotate2 = True
    touch64 = False
def code_prefetch(e, start_label, end_label, nblk, vaddr, vtmp, vdst, sp):
    if not Opt.code_pf: return
    lab = f"{start_label}_pc{len(e.L)}"
    e(f"s_getpc_b64 s[{sp}:{sp+1}]")
    e.label(lab)
    e(f"s_sub_u32 s{sp}, s{sp}, {lab}-{start_label}")
    e(f"s_subb_u32 s{sp+1}, s{sp+1}, 0")
    e(f"v_lshlrev_b32 v{vaddr}, 7, v0")
    for i in range(nblk):
        e(f"v_min_u32 v{vtmp}, {end_label}-{start_label}-4, v{vaddr}")
        e(f"global_load_dword v{vdst}, v{vtmp}, s[{sp}:{sp+1}]")
        if i + 1 < nblk: e(f"v_add_u32 v{vaddr}, 0x2000, v{vaddr}")

STORE_MOD = "sc1"
```

```python
from gen_common import *
NAME = "l1_kernel"
BLOCK = 512
SLOT = 36864
GW_OFF = 4 * SLOT
XCH_OFF = GW_OFF + 2048
LDS_BYTES = XCH_OFF + 3584 + 8*384
S_WS = 12; S_X = 16; S_W = 20; S_GW = 24
V_L16 = 1
V_XO = 2
V_WO = 6
V_XA = 216
V_WA = 11
V_GA = 14
V_ST = 15
V_CS = 212
ACC = 32
EX0 = 80
EX1 = 96
ECS = 112
XF = 128
WF = 144
GF = 192
ONE = 208
NVGPR = 220
QSCALE = math.log2(math.e) / math.sqrt(18.0)
TILES = {0: [0, 1], 1: [2, 3, 4]}
NWP = {0: 5, 1: 0}
S_WV, S_RB, S_CT, S_CQ = 8, 9, 10, 11
S_RS, S_XO, S_WO, S_XM, S_ST, S_DL, S_WSTEP, S_SLX, S_WM, S_T2, S_SLW, S_KX = 28, 29, 30, 31, 32, 33, 34, 35, 36, 37, 38, 39
S_KW, S_KC, S_GD, S_TT = 64, 65, 66, 56
S_WBACK, S_C128 = 60, 61
HEADS = [(0, 7), (1, 2), (3, 4), (5, 6)]

def dma_x(fg):
    if fg: return [[], [], [], []]
    o = [[f"s_add_u32 m0, s{S_SLX}, s{S_XM}", f"s_add_u32 s{S_KX}, s{S_KX}, 1", f"buffer_load_dwordx4 v{V_XO}, s[{S_X}:{S_X+3}], s{S_XO} offen lds"]]
    for i in range(1, 4):
        o.append([f"buffer_load_dwordx4 v{V_XO+i}, s[{S_X}:{S_X+3}], s{S_XO} offen offset:{i*1024} lds"])
    o[-1] += [f"s_cmp_eq_u32 s{S_KX}, 9", f"s_cselect_b32 s{S_KX}, 0, s{S_KX}", f"s_cselect_b32 s69, {(-1024) & 0xffffffff}, s{S_C128}", f"s_add_u32 s{S_XO}, s{S_XO}, s69",
              f"s_add_u32 s{S_SLX}, s{S_SLX}, {SLOT}", f"s_cmp_eq_u32 s{S_SLX}, {4*SLOT}", f"s_cselect_b32 s{S_SLX}, 0, s{S_SLX}"]
    return o
def dma_w(fg):
    if fg: return [[], [], [], [], []]
    o = [[f"s_add_u32 m0, s{S_SLW}, s{S_WM}", f"s_add_u32 s{S_KW}, s{S_KW}, 1", f"buffer_load_dwordx4 v{V_WO}, s[{S_W}:{S_W+3}], s{S_WO} offen lds"]]
    for i in range(1, 4):
        o.append([f"buffer_load_dwordx4 v{V_WO+i}, s[{S_W}:{S_W+3}], s{S_WO} offen offset:{i*1024} lds"])
    o.append(["s_add_u32 m0, m0, 4096", f"s_cmp_eq_u32 s{S_KW}, 9", f"buffer_load_dwordx4 v{V_WO+4}, s[{S_W}:{S_W+3}], s{S_WO} offen lds",
              f"s_cselect_b32 s{S_KW}, 0, s{S_KW}", f"s_cselect_b32 s69, s{S_WBACK}, s{S_WSTEP}", f"s_add_u32 s{S_WO}, s{S_WO}, s69",
              f"s_add_u32 s{S_SLW}, s{S_SLW}, {SLOT}", f"s_cmp_eq_u32 s{S_SLW}, {4*SLOT}", f"s_cselect_b32 s{S_SLW}, 0, s{S_SLW}"])
    return o

def reads(s, variant, fg):
    o = [f"ds_read_b128 {vr(XF+4*s,4)}, v{V_XA+s}"]
    if variant == "q0" and fg == 0: o.append(f"ds_read_b128 {vr(GF+4*s,4)}, v{V_GA} offset:{32*s}")
    for i, T in enumerate(TILES[fg]):
        for q in range(2):
            o.append(f"ds_read_b64_tr_b16 {vr(WF+12*s+4*i+2*q,2)}, v{V_WA+i} offset:{(16*s+4*q)*320}")
    return o

def advance_addrs(variant, fg):
    o = [f"v_add_u32 v{r}, s{S_DL}, v{r}" for r in list(range(V_XA, V_XA + 4)) + list(range(V_WA, V_WA + len(TILES[fg])))]
    if variant == "q0" and fg == 0:
        o += [f"s_add_u32 s{S_KC}, s{S_KC}, 1", f"s_cmp_eq_u32 s{S_KC}, 9", f"s_cselect_b32 s{S_KC}, 0, s{S_KC}",
              f"s_cselect_b32 s{S_GD}, {(-1024) & 0xffffffff}, s{S_C128}", f"v_add_u32 v{V_GA}, s{S_GD}, v{V_GA}"]
    return o

def mfmas(s, variant, fg):
    xf = vr(XF + 4 * s, 4); one = vr(ONE, 4)
    m = []
    for i, T in enumerate(TILES[fg]):
        wf = vr(WF + 12 * s + 4 * i, 4); a = vr(ACC + 16 * i, 16)
        m.append(f"v_mfma_f32_32x32x16_bf16 {a}, {xf}, {wf}, {a}" if variant == "v" else f"v_mfma_f32_32x32x16_bf16 {a}, {wf}, {xf}, {a}")
    if variant == "q0" and fg == 0:
        m.append(f"v_mfma_f32_32x32x16_bf16 {vr(EX0,16)}, {vr(GF+4*s,4)}, {xf}, {vr(EX0,16)}")
    if variant == "h" and fg == 0:
        m.append(f"v_mfma_f32_32x32x16_bf16 {vr(EX0,16)}, {one}, {xf}, {vr(EX0,16)}")
    return m

def main_loop(e, variant, fg):
    lab = f"L1_loop_{variant}{fg}"
    nrd = len(reads(0, variant, fg))
    nw = NWP[fg]
    e(f"s_mov_b32 s{S_ST}, 0")
    if fg == 0: e("s_waitcnt vmcnt(13)")
    e("s_barrier")
    stamp(e, 2)
    e.extend(reads(0, variant, fg)); e.extend(reads(1, variant, fg))
    e(".p2align 6")
    e.label(lab)
    dx = dma_x(fg); dw = dma_w(fg)
    place = {(0, 0): dw[0], (0, 1): dw[1] + dw[2], (1, 0): dw[3], (1, 1): dw[4], (2, 0): dx[0], (2, 1): dx[1], (3, 0): dx[2], (3, 1): dx[3]}
    touch = Opt.late_touch and Opt.touch_in_loop and fg == 1 and variant != "h"
    for s in range(4):
        pre = []
        if s == 2:
            if fg == 0:
                pre = ["s_waitcnt vmcnt(9)", "s_barrier",
                       f"s_cmp_lt_u32 s{S_ST}, 6", f"s_cselect_b32 s{S_XO}, s{S_XO}, 0x40000000", f"s_cselect_b32 s{S_WO}, s{S_WO}, 0x40000000"]
            else:
                pre = ["s_barrier"]
                if touch:
                    for k, stg in enumerate(Opt.touch_stages):
                        pre += [f"s_cmp_eq_u32 s{S_ST}, {stg}", f"s_cbranch_scc0 {lab}_t{k}", late_issue()[k], f"{lab}_t{k}:"]
        rd = reads((s + 2) % 4, variant, fg)
        e(f"s_waitcnt lgkmcnt({nrd})")
        mf = mfmas(s, variant, fg)
        n = len(rd); nm = len(mf)
        per = (n + nm - 1) // nm
        extra = []
        if variant == "h" and fg == 0:
            for j in range(4):
                extra += [f"v_lshlrev_b32 v{20+(j%2)}, 16, v{XF+4*s+j}", f"v_and_b32 v{26+(j%2)}, 0xffff0000, v{XF+4*s+j}",
                          f"v_fmac_f32 v{V_ST+2}, v{20+(j%2)}, v{20+(j%2)}", f"v_fmac_f32 v{V_ST+3}, v{26+(j%2)}, v{26+(j%2)}"]
        for T in range(nm):
            e(mf[T])
            if T == 0: e.extend(pre)
            e.extend(rd[T * per:(T + 1) * per])
            e.extend(extra[T * len(extra) // nm:(T + 1) * len(extra) // nm])
            e.extend(place.get((s, T), []))
        if variant == "h":
            e(f"s_cmp_eq_u32 s{S_TT}, {s}")
            e(f"s_cbranch_scc0 {lab}_cs{s}")
            for j in range(4):
                for i in range(len(TILES[fg])):
                    e(f"v_lshlrev_b32 v{22+i}, 16, v{WF+12*s+4*i+j}")
                for i in range(len(TILES[fg])):
                    e(f"v_add_f32 v{V_CS+i}, v{V_CS+i}, v{22+i}")
                for i in range(len(TILES[fg])):
                    e(f"v_and_b32 v{22+i}, 0xffff0000, v{WF+12*s+4*i+j}")
                for i in range(len(TILES[fg])):
                    e(f"v_add_f32 v{V_CS+i}, v{V_CS+i}, v{22+i}")
            e.label(f"{lab}_cs{s}")
        if s == 1:
            e(f"s_add_u32 s{S_T2}, s{S_ST}, 1")
            e(f"s_and_b32 s{S_DL}, s{S_T2}, 3")
            e(f"s_cmp_eq_u32 s{S_DL}, 0")
            e(f"s_cselect_b32 s{S_DL}, s68, s67")
            e.extend(advance_addrs(variant, fg))
    e(f"s_add_u32 s{S_ST}, s{S_ST}, 1")
    e(f"s_cmp_lt_u32 s{S_ST}, 9")
    e(f"s_cbranch_scc1 {lab}")
    stamp(e, 5)
    e("s_waitcnt lgkmcnt(0)")
    e("s_nop 7")

def setup_x(e, fg):
    for i in range(4):
        e("v_lshrrev_b32 v21, 3, v0"); e(f"v_add_u32 v21, {8*i}, v21")
        e("v_lshrrev_b32 v22, 1, v21"); e("v_and_b32 v22, 7, v22"); e("v_and_b32 v23, 7, v0"); e("v_xor_b32 v22, v22, v23")
        e("v_mul_u32_u24 v21, 1152, v21"); e("v_lshlrev_b32 v22, 4, v22"); e("v_add_u32 v21, v21, v22")
        if i: e(f"v_subrev_u32 v{V_XO+i}, {1024*i}, v21")
        else: e(f"v_mov_b32 v{V_XO}, v21")
    e(f"s_lshl_b32 s{S_XM}, s{S_TT}, 12")
def setup_w(e, fg):
    e(f"s_mul_i32 s{S_WM}, s{S_TT}, 5")
    e(f"s_lshl_b32 s69, s{S_WM}, 6")
    for i in range(5):
        e(f"v_add_u32 v21, s69, v0")
        if i: e(f"v_add_u32 v21, {64*i}, v21")
        e("v_mul_u32_u24 v22, 3277, v21"); e("v_lshrrev_b32 v22, 16, v22")
        e("v_mul_u32_u24 v23, 20, v22"); e("v_sub_u32 v23, v21, v23")
        e(f"v_mul_lo_u32 v22, v22, s{S_RS}")
        e("v_cmp_lt_u32 vcc, 17, v23"); e("v_subrev_u32 v24, 2, v23"); e("v_mov_b32 v25, 0x40000000"); e("v_cndmask_b32 v24, v23, v24, vcc")
        e("v_lshlrev_b32 v24, 4, v24"); e("v_add_u32 v22, v22, v24")
        e("v_and_b32 v24, 30, v23"); e("v_cmp_eq_u32 vcc, 16, v24")
        if i % 4: e(f"v_subrev_u32 v22, {1024*(i%4)}, v22")
        else: e("s_nop 0")
        e("s_nop 0")
        e(f"v_cndmask_b32 v{V_WO+i}, v22, v25, vcc")
    e(f"s_lshl_b32 s{S_WM}, s{S_WM}, 10"); e(f"s_add_u32 s{S_WM}, s{S_WM}, 16384")
def setup_xread(e):
    e("v_and_b32 v21, 31, v0"); e("v_lshrrev_b32 v22, 5, v0")
    e("v_lshrrev_b32 v23, 1, v21"); e("v_and_b32 v23, 7, v23"); e("v_xor_b32 v23, v23, v22"); e("v_lshlrev_b32 v23, 4, v23")
    e("v_lshlrev_b32 v24, 7, v21"); e("v_add_u32 v23, v23, v24")
    e(f"s_lshl_b32 s69, s{S_TT}, 12"); e(f"v_add_u32 v{V_XA}, s69, v23")
    for s in range(1, 4): e(f"v_xor_b32 v{V_XA+s}, {32*s}, v{V_XA}")

def lane_parts(e):
    e("v_lshrrev_b32 v21, 5, v0"); e("v_bfe_u32 v22, v0, 4, 1"); e("v_bfe_u32 v23, v0, 2, 2"); e("v_and_b32 v24, 3, v0")
    e("v_and_b32 v25, 1, v0"); e("v_lshlrev_b32 v25, 1, v25"); e("v_bfe_u32 v26, v0, 1, 1"); e("v_or_b32 v25, v25, v26")
    e("v_lshlrev_b32 v26, 3, v21"); e("v_add_u32 v26, v26, v23"); e("v_mul_u32_u24 v26, 320, v26"); e("v_add_u32 v26, 16384, v26")
def waddr(e, variant, fg):
    lane_parts(e)
    dense = variant == "h"
    q = 24 if variant == "v" else 25
    e(f"v_lshlrev_b32 v27, 3, v{q}"); e("v_add_u32 v27, v27, v26")
    e("v_lshlrev_b32 v28, 5, v22"); e("v_add_u32 v28, v27, v28")
    for i, T in enumerate(TILES[fg]):
        d = V_WA + i
        if dense:
            if T < 4: e(f"v_add_u32 v{d}, {64*T}, v28")
            else: e(f"v_add_u32 v{d}, 288, v27")
        else:
            if T == 0: e("v_mul_u32_u24 v29, 288, v22"); e(f"v_add_u32 v{d}, v27, v29")
            elif T < 4: e(f"v_add_u32 v{d}, {40+72*(T-1)}, v28")
            else: e("v_mul_u32_u24 v29, 72, v24"); e("v_add_u32 v29, v29, v26"); e(f"v_add_u32 v{d}, 32, v29")

def zero_acc(e, variant, fg):
    for i in range(4): e(f"v_mov_b32 v{XF+i}, 0")
    if variant == "h":
        for i in range(4): e(f"v_mov_b32 v{ONE+i}, 0x3f803f80")
        for i in range(4): e(f"v_mov_b32 v{V_ST+i}, 0")
        for i in range(3): e(f"v_mov_b32 v{V_CS+i}, 0")
    e("s_nop 1")
    z = vr(XF, 4)
    for i in range(len(TILES[fg])): e(f"v_mfma_f32_32x32x16_bf16 {vr(ACC+16*i,16)}, {z}, {z}, 0")
    if fg == 0 and variant in ("q0", "h"): e(f"v_mfma_f32_32x32x16_bf16 {vr(EX0,16)}, {z}, {z}, 0")

def prologue_dma(e, fg):
    if fg == 0:
        e(f"s_mov_b32 s{S_SLX}, 0"); e(f"s_mov_b32 s{S_SLW}, 0")
        setup_x(e, fg)
        for grp in dma_x(fg): e.extend(grp)
        setup_w(e, fg)
        for grp in dma_w(fg): e.extend(grp)
        for grp in dma_x(fg): e.extend(grp)
        for grp in dma_w(fg): e.extend(grp)
        for grp in dma_x(fg): e.extend(grp)
    stamp(e, 1)
    setup_xread(e)

def late_setup(e):
    e("s_mov_b64 exec, -1")
    e(f"s_load_dwordx2 s[52:53], s[0:1], {KA_W3}"); e(f"s_load_dwordx2 s[54:55], s[0:1], {KA_W4}")
    e(f"s_load_dwordx2 s[40:41], s[0:1], {KA_W2}"); e(f"s_load_dwordx2 s[58:59], s[0:1], {KA_WO}")
    e(f"s_lshl_b32 s44, s{S_TT}, 6"); e("v_add_u32 v30, s44, v0"); e("v_lshlrev_b32 v30, 7, v30")
    e(f"s_lshl_b32 s69, s{S_CT}, 4"); e(f"s_add_u32 s69, s69, s{S_RB}")
    e("s_waitcnt lgkmcnt(0)")
    for rep, (srd, so) in enumerate(((44, 62), (48, 63))):
        if rep == 0 and True:
            e("s_add_u32 s70x, s69, 0".replace("s70x", f"s{S_T2}"))
        u = f"s{S_GD}"
        if rep == 0: e(f"s_add_u32 {u}, s69, 192")
        else: e(f"s_mov_b32 {u}, s69")
        e(f"s_mov_b32 s{srd}, s52"); e(f"s_mov_b32 s{srd+1}, s53"); e(f"s_mov_b32 s{srd+2}, {576*4608*2}"); e(f"s_mov_b32 s{so}, {u}")
        for lo, p, size in ((162, 54, 576*4608*2), (324, 40, 576*576*2), (345, 58, 576*576*2)):
            e(f"s_cmp_ge_u32 {u}, {lo}")
            e(f"s_cselect_b32 s{srd}, s{p}, s{srd}"); e(f"s_cselect_b32 s{srd+1}, s{p+1}, s{srd+1}")
            if size != 576*4608*2: e(f"s_cselect_b32 s{srd+2}, {size}, s{srd+2}")
            e(f"s_sub_u32 s{S_T2}, {u}, {lo}"); e(f"s_cmp_ge_u32 {u}, {lo}"); e(f"s_cselect_b32 s{so}, s{S_T2}, s{so}")
        e(f"s_and_b32 s{srd+1}, s{srd+1}, 0xffff"); e(f"s_mov_b32 s{srd+3}, 0x20000")
        e(f"s_lshl_b32 s{so}, s{so}, 15")
def late_issue():
    return ["buffer_load_dword v31, v30, s[44:47], s62 offen", "buffer_load_dword v31, v30, s[48:51], s63 offen"]

def epi_qk(e, fg, gate):
    e(f"s_lshl_b32 s44, s{S_RB}, 2"); e(f"s_add_u32 s44, s44, s{S_TT}")
    e(f"s_lshl_b32 s45, s{S_CQ}, 3")
    e("s_lshl_b32 s46, s45, 16"); e("s_lshl_b32 s47, s44, 10"); e("s_add_u32 s46, s46, s47"); e("s_add_u32 s46, s46, s42")
    P = 128
    for i, T in enumerate(TILES[fg]):
        if T == 4: continue
        for j in range(16): e(f"v_mul_f32 v{ACC+16*i+j}, s41, v{ACC+16*i+j}")
        for hh in range(2):
            p = P + 8 * (i % 2) + 4 * hh
            for j in range(4): e(f"v_cvt_pk_bf16_f32 v{p+j}, v{ACC+16*i+8*hh+2*j}, v{ACC+16*i+8*hh+2*j+1}")
            e(f"s_add_u32 s47, s46, {HEADS[T][hh]*65536}")
            e(f"buffer_store_dwordx4 {vr(p,4)}, v{V_L16}, s[{S_WS}:{S_WS+3}], s47 offen")
    if fg == 1:
        a = ACC + 32
        for j in range(8): e(f"v_mul_f32 v{a+j}, s41, v{a+j}")
        for j in range(4): e(f"v_cvt_pk_bf16_f32 v{144+j}, v{a+2*j}, v{a+2*j+1}")
        e("v_and_b32 v21, 31, v0"); e("v_lshlrev_b32 v21, 2, v21"); e("v_lshrrev_b32 v29, 5, v0"); e("v_lshlrev_b32 v29, 14, v29"); e("v_add_u32 v21, v21, v29")
        e("s_lshl_b32 s46, s45, 13"); e("s_lshl_b32 s47, s44, 7"); e("s_add_u32 s46, s46, s47"); e("s_add_u32 s46, s46, s43")
        for j, hoff in enumerate([0, 1, 4, 5]):
            e(f"s_add_u32 s47, s46, {hoff*8192}")
            e(f"buffer_store_dword v{144+j}, v21, s[{S_WS}:{S_WS+3}], s47 offen")
    if gate:
        e(f"v_mul_f32 v23, {hexf(-math.log2(math.e))}, v{EX0}"); e("v_exp_f32 v23, v23"); e("s_nop 0"); e("v_add_f32 v23, 1.0, v23"); e("v_rcp_f32 v23, v23")
        e("v_and_b32 v21, 31, v0"); e("v_lshlrev_b32 v21, 2, v21")
        e("s_lshl_b32 s47, s44, 7"); e(f"s_add_u32 s47, s47, {LY.G}")
        e("s_mov_b64 exec, 0xffffffff")
        e(f"buffer_store_dword v23, v21, s[{S_WS}:{S_WS+3}], s47 offen")
    if Opt.late_touch and not Opt.touch_in_loop and fg == 1:
        late_setup(e); e.extend(late_issue())
    fin(e)

def epi_v(e, fg):
    e(f"s_lshl_b32 s44, s{S_RB}, 2"); e(f"s_add_u32 s44, s44, s{S_TT}")
    e(f"s_lshl_b32 s45, s{S_CQ}, 3")
    e(f"s_mul_i32 s46, s45, {LY.VHEAD}"); e("s_mul_i32 s47, s44, 1216"); e("s_add_u32 s46, s46, s47"); e(f"s_add_u32 s46, s46, {LY.VF}")
    e("v_lshrrev_b32 v21, 5, v0"); e("v_mul_u32_u24 v21, 304, v21")
    e("v_and_b32 v22, 15, v0"); e("v_lshlrev_b32 v22, 4, v22"); e("v_add_u32 v22, v22, v21")
    e("v_bfe_u32 v23, v0, 4, 1")
    e(f"s_mov_b32 s47, {LY.VHEAD}")
    e("v_mul_lo_u32 v24, v23, s47")
    e("v_add_u32 v25, v22, v24")
    if fg == 0: e("v_mul_u32_u24 v24, 7, v24"); e("v_add_u32 v26, v22, v24")
    P = 128
    for i, T in enumerate(TILES[fg]):
        if T == 4: continue
        ad = 26 if T == 0 else 25
        hb = 0 if T == 0 else HEADS[T][0]
        e(f"s_add_u32 s47, s46, {hb*LY.VHEAD}")
        for hh in range(2):
            p = P + 8 * (i % 2) + 4 * hh
            for j in range(4): e(f"v_cvt_pk_bf16_f32 v{p+j}, v{ACC+16*i+8*hh+2*j}, v{ACC+16*i+8*hh+2*j+1}")
            e(f"buffer_store_dwordx4 {vr(p,4)}, v{ad}, s[{S_WS}:{S_WS+3}], s47 offen offset:{608*hh}")
    if fg == 1:
        a = ACC + 32
        e("v_and_b32 v22, 31, v0")
        e("v_lshrrev_b32 v23, 2, v22"); e("v_lshlrev_b32 v23, 1, v23"); e("v_bfe_u32 v24, v22, 1, 1"); e("v_add_u32 v23, v23, v24")
        e("v_and_b32 v24, 1, v22"); e("v_add_u32 v24, 16, v24")
        e("v_cmp_lt_u32 vcc, 15, v22"); e("v_subrev_u32 v25, 16, v22"); e("v_mov_b32 v27, 18")
        e("v_cndmask_b32 v23, v23, v25, vcc"); e("v_cndmask_b32 v24, v24, v27, vcc")
        e(f"s_mov_b32 s47, {LY.VHEAD}"); e("v_mul_lo_u32 v23, v23, s47"); e("v_lshlrev_b32 v24, 4, v24"); e("v_add3_u32 v23, v23, v24, v21")
        e("v_mov_b32 v27, 0x3f803f80")
        for hh in range(2):
            for j in range(4):
                e(f"v_cvt_pk_bf16_f32 v{144+4*hh+j}, v{a+8*hh+2*j}, v{a+8*hh+2*j+1}")
                e(f"v_cndmask_b32 v{144+4*hh+j}, v{144+4*hh+j}, v27, vcc")
        e("v_cmp_gt_u32 vcc, 24, v22"); e("s_nop 1")
        e("s_and_saveexec_b64 s[48:49], vcc")
        for hh in range(2):
            e(f"buffer_store_dwordx4 {vr(144+4*hh,4)}, v23, s[{S_WS}:{S_WS+3}], s46 offen offset:{608*hh}")
    if Opt.late_touch and not Opt.touch_in_loop and fg == 1:
        late_setup(e); e.extend(late_issue())
    fin(e)

def epi_h(e, fg):
    ST = 22
    nT = len(TILES[fg]); T0 = TILES[fg][0]
    for i in range(nT): e(f"v_mov_b32 v{128+i}, v{V_CS+i}")
    e("v_and_b32 v21, 31, v0"); e("v_lshlrev_b32 v21, 2, v21")
    for i in range(nT): e(f"v_permlane32_swap_b32 v{128+i}, v{V_CS+i}")
    for i in range(nT): e(f"v_add_f32 v{V_CS+i}, v{128+i}, v{V_CS+i}")
    e(f"s_mul_i32 s44, s{S_TT}, 640"); e(f"s_add_u32 s44, s44, {XCH_OFF + 128*T0}"); e("v_add_u32 v29, s44, v21")
    for i in range(nT): e(f"ds_write_b32 v29, v{V_CS+i} offset:{128*i}")
    e("v_lshlrev_b32 v27, 1, v21"); e(f"s_lshl_b32 s44, s{S_TT}, 8"); e(f"s_add_u32 s44, s44, {XCH_OFF+2560}"); e("v_add_u32 v27, s44, v27")
    if fg == 0:
        e(f"v_add_f32 v{ST+1}, v{V_ST+2}, v{V_ST+3}")
        e(f"v_mov_b32 v25, v{ST+1}"); e(f"v_mul_f32 v{ST}, {hexf(1/576)}, v{EX0}"); e("s_nop 0")
        e(f"v_permlane32_swap_b32 v25, v{ST+1}")
        e(f"v_add_f32 v{ST+1}, v25, v{ST+1}")
        e(f"v_mul_f32 v{ST+1}, {hexf(1/576)}, v{ST+1}")
        e(f"v_fma_f32 v{ST+1}, -v{ST}, v{ST}, v{ST+1}"); e(f"v_max_f32 v{ST+1}, 0, v{ST+1}"); e(f"v_add_f32 v{ST+1}, {hexf(1e-5)}, v{ST+1}")
        e(f"ds_write_b64 v27, {vr(ST,2)}")
    e("s_waitcnt lgkmcnt(0)"); e("s_barrier")
    if fg == 1: e(f"ds_read_b64 {vr(ST,2)}, v27")
    e(f"v_add_u32 v29, {XCH_OFF + 128*T0}, v21")
    for i in range(nT):
        for wv in range(4): e(f"ds_read_b32 v{144+4*i+wv}, v29 offset:{640*wv+128*i}")
    e("s_waitcnt lgkmcnt(0)")
    for i in range(nT):
        e(f"v_add_f32 v{144+4*i}, v{144+4*i}, v{145+4*i}"); e(f"v_add_f32 v{146+4*i}, v{146+4*i}, v{147+4*i}"); e(f"v_add_f32 v{144+4*i}, v{144+4*i}, v{146+4*i}")
    e(f"s_mul_i32 s44, s{S_WV}, 384"); e(f"s_add_u32 s44, s44, {XCH_OFF+3584}"); e("v_add_u32 v29, s44, v21")
    for i in range(nT): e(f"ds_write_b32 v29, v{144+4*i} offset:{128*i}")
    e("v_lshrrev_b32 v21, 5, v0"); e("v_lshlrev_b32 v21, 4, v21"); e("v_add_u32 v29, s44, v21")
    e("s_waitcnt lgkmcnt(0)")
    SG, RR, AA, BB, MM, SS = 128, 129, 130, 132, 134, 136
    e(f"v_sqrt_f32 v{SG}, v{ST+1}"); e("s_nop 0"); e(f"v_rcp_f32 v{RR}, v{SG}"); e("s_nop 0")
    e(f"v_mul_f32 v{BB}, {hexf(GELU_C0)}, v{RR}"); e(f"v_mul_f32 v{AA}, v{RR}, v{RR}"); e(f"v_mul_f32 v{AA}, v{AA}, v{RR}"); e(f"v_mul_f32 v{AA}, {hexf(GELU_C1)}, v{AA}")
    e(f"v_mov_b32 v{AA+1}, v{AA}"); e(f"v_mov_b32 v{BB+1}, v{BB}"); e(f"v_mov_b32 v{SS}, v{SG}"); e(f"v_mov_b32 v{SS+1}, v{SG}")
    e(f"v_sub_f32 v{MM}, 0, v{ST}"); e(f"v_mov_b32 v{MM+1}, v{MM}")
    e(f"s_lshl_b32 s45, s{S_RB}, 7"); e(f"s_lshl_b32 s46, s{S_TT}, 5"); e("s_add_u32 s45, s45, s46")
    e(f"s_lshr_b32 s46, s{S_CQ}, 1"); e("s_add_u32 s46, s46, 1"); e("s_sub_u32 s47, 0, s46"); e(f"s_bitcmp1_b32 s{S_CQ}, 0"); e("s_cselect_b32 s46, s47, s46")
    e("s_add_u32 s45, s45, s46")
    e("v_and_b32 v21, 31, v0"); e("v_add_u32 v21, s45, v21")
    e("v_cmp_gt_u32 vcc, 2048, v21")
    e("v_and_b32 v21, 2047, v21")
    e("v_lshrrev_b32 v30, 5, v21"); e("s_mov_b32 s47, 36864"); e("v_mul_lo_u32 v30, v30, s47")
    e("v_and_b32 v21, 31, v21"); e("v_lshlrev_b32 v21, 4, v21"); e("v_add_u32 v30, v30, v21")
    e("v_lshrrev_b32 v21, 5, v0"); e("v_lshlrev_b32 v21, 9, v21"); e("v_add_u32 v30, v30, v21")
    e("s_mov_b64 s[50:51], vcc")
    u0 = 2 * TILES[fg][0]
    e(f"s_mul_i32 s47, s{S_CQ}, 9216"); e(f"s_add_u32 s47, s47, {LY.HS + u0*1024}")
    CS = 144; TT = 160
    def pk(op, d, a, b, c=None):
        s = f"v_pk_{op}_f32 {vr(d,2)}, {vr(a,2)}, {vr(b,2)}"
        if c is not None: s += f", {vr(c,2)}"
        return s
    u = 0
    for i, T in enumerate(TILES[fg]):
        nj = 4 if T < 4 else 2
        for j in range(nj): e(f"ds_read_b128 {vr(CS+4*j,4)}, v29 offset:{128*i+32*j}")
        e("s_waitcnt lgkmcnt(0)")
        for half in range(nj // 2):
            a = ACC + 16 * i + 8 * half; cs = CS + 8 * half
            for k in range(0, 8, 2): e(pk("fma", a + k, MM, cs + k, a + k))
            for k in range(0, 8, 2): e(pk("mul", TT + k, a + k, a + k))
            for k in range(0, 8, 2): e(pk("fma", TT + k, TT + k, AA, BB))
            for k in range(0, 8, 2): e(pk("mul", TT + k, a + k, TT + k))
            for k in range(8): e(f"v_exp_f32 v{TT+k}, v{TT+k}")
            for k in range(0, 8, 2): e(pk("fma", TT + k, TT + k, SS, SS))
            for k in range(8): e(f"v_rcp_f32 v{TT+k}, v{TT+k}")
            for k in range(0, 8, 2): e(pk("mul", a + k, a + k, TT + k))
            p = 168 + 4 * (u % 2)
            for j in range(4): e(f"v_cvt_pk_bf16_f32 v{p+j}, v{a+2*j}, v{a+2*j+1}")
            for j in range(4): e(f"v_cndmask_b32 v{p+j}, 0, v{p+j}, s[50:51]")
            e(f"buffer_store_dwordx4 {vr(p,4)}, v30, s[{S_WS}:{S_WS+3}], s47 offen offset:{(u%4)*1024}")
            if u % 4 == 3: e("s_add_u32 s47, s47, 4096")
            u += 1
    fin(e)

def role(e, variant, fg):
    if variant == "q0" and fg == 0:
        e(f"s_mov_b32 m0, {GW_OFF}"); e("s_nop 0")
        e(f"buffer_load_dwordx4 v{V_L16}, s[{S_GW}:{S_GW+3}], 0 offen lds")
        e(f"buffer_load_dwordx4 v{V_L16}, s[{S_GW}:{S_GW+3}], 0 offen offset:1024 lds")
    prologue_dma(e, fg)
    waddr(e, variant, fg)
    if variant == "q0" and fg == 0:
        e("v_lshrrev_b32 v21, 5, v0"); e("v_lshlrev_b32 v21, 4, v21"); e(f"v_add_u32 v{V_GA}, {GW_OFF}, v21")
        e(f"s_lshl_b32 s69, s{S_KC}, 7"); e(f"v_add_u32 v{V_GA}, s69, v{V_GA}")
    if Opt.late_touch and Opt.touch_in_loop and fg == 1 and variant != "h": late_setup(e)
    zero_acc(e, variant, fg)
    if variant in ("q0", "qk"):
        e("s_cmp_eq_u32 s3, 0")
        e(f"s_cselect_b32 s41, {hexf(QSCALE)}, 1.0"); e(f"s_mov_b32 s42, {LY.KF0}"); e(f"s_cselect_b32 s42, {LY.QF0}, s42"); e(f"s_mov_b32 s43, {LY.KX}"); e(f"s_cselect_b32 s43, {LY.QX}, s43")
    main_loop(e, variant, fg)
    if variant in ("q0", "qk"): epi_qk(e, fg, variant == "q0" and fg == 0)
    elif variant == "v": epi_v(e, fg)
    else: epi_h(e, fg)

def gen():
    e = Emit()
    kernel_head(e, NAME)
    Diag.kid = 0
    e("s_cmp_ge_u32 s2, 256")
    e("s_cbranch_scc1 L1_exit")
    e(f"s_load_dwordx2 s[4:5], s[0:1], {KA_WS}")
    e(f"s_load_dwordx4 s[52:55], s[0:1], {KA_XA}")
    e(f"s_load_dwordx2 s[58:59], s[0:1], {KA_W1}")
    e(f"s_load_dwordx2 s[60:61], s[0:1], {KA_GW}")
    e("s_and_b32 s6, s2, 7"); e("s_lshr_b32 s7, s2, 3")
    e("v_lshrrev_b32 v1, 6, v0"); e("v_and_b32 v0, 63, v0")
    e(f"v_readfirstlane_b32 s{S_WV}, v1")
    e(f"s_and_b32 s{S_RB}, s6, 3"); e(f"s_lshl_b32 s{S_RB}, s{S_RB}, 2"); e("s_and_b32 s3, s7, 3"); e(f"s_add_u32 s{S_RB}, s{S_RB}, s3")
    e(f"s_lshr_b32 s{S_CQ}, s6, 2"); e(f"s_lshl_b32 s{S_CQ}, s{S_CQ}, 1"); e("s_bfe_u32 s3, s7, 0x10002"); e(f"s_add_u32 s{S_CQ}, s{S_CQ}, s3")
    e("s_lshr_b32 s3, s7, 3"); e(f"s_lshl_b32 s{S_CT}, s3, 2"); e(f"s_add_u32 s{S_CT}, s{S_CT}, s{S_CQ}")
    e(f"v_lshlrev_b32 v{V_L16}, 4, v0")
    e(f"s_and_b32 s{S_TT}, s{S_WV}, 3")
    e("s_waitcnt lgkmcnt(0)")
    make_srd(e, S_WS, 4, LY.WS_END)
    stamp(e, 0)
    dbg_start(e)
    e("s_cmp_eq_u32 s3, 3")
    e("s_cselect_b32 s64, s58, s54"); e("s_cselect_b32 s65, s59, s55")
    e(f"s_movk_i32 s{S_RS}, 3456"); e(f"s_cselect_b32 s{S_RS}, 1152, s{S_RS}")
    e(f"s_mov_b32 s67, {SLOT}"); e(f"s_mov_b32 s68, {(-3*SLOT) & 0xffffffff}")
    e(f"s_cselect_b32 s66, s{S_CQ}, s{S_CT}")
    make_srd(e, S_X, 52, 2048 * 576 * 2)
    e(f"s_mov_b32 s{S_W}, s64"); e(f"s_and_b32 s{S_W+1}, s65, 0xffff"); e(f"s_mul_i32 s{S_W+2}, s{S_RS}, 576"); e(f"s_mov_b32 s{S_W+3}, 0x20000")
    make_srd(e, S_GW, 60, 1152)
    e(f"s_lshl_b32 s{S_XO}, s{S_RB}, 2"); e(f"s_add_u32 s{S_XO}, s{S_XO}, s{S_TT}"); e(f"s_mul_i32 s{S_XO}, s{S_XO}, 36864")
    e(f"s_mul_i32 s{S_WO}, s66, 288")
    e(f"s_lshl_b32 s{S_WSTEP}, s{S_RS}, 6")
    e("s_and_b32 s69, s7, 3"); e("s_lshl_b32 s69, s69, 1"); e(f"s_lshr_b32 s{S_KX}, s7, 2"); e(f"s_add_u32 s{S_KX}, s{S_KX}, s69")
    e(f"s_cmp_ge_u32 s{S_KX}, 9"); e(f"s_cselect_b32 s69, 9, 0"); e(f"s_sub_u32 s{S_KX}, s{S_KX}, s69")
    if not Opt.rotate: e(f"s_mov_b32 s{S_KX}, 0")
    e(f"s_mov_b32 s{S_KW}, s{S_KX}"); e(f"s_mov_b32 s{S_KC}, s{S_KX}")
    e(f"s_lshl_b32 s69, s{S_KX}, 7"); e(f"s_add_u32 s{S_XO}, s{S_XO}, s69")
    e(f"s_mul_i32 s69, s{S_KX}, s{S_WSTEP}"); e(f"s_add_u32 s{S_WO}, s{S_WO}, s69")
    e(f"s_mul_i32 s{S_WBACK}, s{S_WSTEP}, -8"); e(f"s_movk_i32 s{S_C128}, 128")
    e(f"s_cmp_ge_u32 s{S_WV}, 4"); e("s_cbranch_scc1 L1_fg1")
    code_prefetch(e, NAME, "L1_exit", 3, vaddr=28, vtmp=29, vdst=31, sp=62)
    e("s_cmp_eq_u32 s3, 2"); e("s_cbranch_scc1 L1_v0")
    e("s_cmp_eq_u32 s3, 3"); e("s_cbranch_scc1 L1_h0")
    e(f"s_cmp_eq_u32 s{S_CT}, 0"); e("s_cbranch_scc0 L1_qk0")
    role(e, "q0", 0)
    e.label("L1_qk0"); role(e, "qk", 0)
    e.label("L1_v0"); role(e, "v", 0)
    e.label("L1_h0"); role(e, "h", 0)
    e.label("L1_fg1")
    e("s_cmp_eq_u32 s3, 2"); e("s_cbranch_scc1 L1_v1")
    e("s_cmp_eq_u32 s3, 3"); e("s_cbranch_scc1 L1_h1")
    role(e, "qk", 1)
    e.label("L1_v1"); role(e, "v", 1)
    e.label("L1_h1"); role(e, "h", 1)
    e.label("L1_exit")
    e("s_endpgm")
    return e.text()
if __name__ == "__main__":
    t = gen()
    errs = check(t, "l1")
    for x in errs: print(x)
    print("instrs", sum(1 for l in t.split("\n") if l.startswith("    ")), "hazard errs", len(errs))
```

```python
from gen_common import *
NAME = "l2_kernel"
LDS_BYTES = 110592
S_WS = 12
S_SRC = 16
S_XB = 20

def lane_tr_parts(e, vhf, vsub, vr_, vsig):
    e(f"v_lshrrev_b32 v{vhf}, 5, v0")
    e(f"v_bfe_u32 v{vsub}, v0, 4, 1")
    e(f"v_bfe_u32 v{vr_}, v0, 2, 2")
    e(f"v_and_b32 v{vsig}, 1, v0")
    e(f"v_lshlrev_b32 v{vsig}, 1, v{vsig}")
    e(f"v_bfe_u32 v15, v0, 1, 1")
    e(f"v_or_b32 v{vsig}, v{vsig}, v15")

def gen_gemm(e):
    e.label("L2_gemm")
    e("s_cmp_ge_u32 s7, 6"); e("s_cselect_b32 s9, 1, 0"); e("s_mul_i32 s10, s9, 6"); e("s_sub_u32 s10, s7, s10")
    e("s_lshl_b32 s11, s6, 1"); e("s_add_u32 s9, s9, s11")
    e("s_lshl_b32 s9, s9, 2"); e("s_add_u32 s9, s9, s8")
    e(f"s_load_dwordx2 s[24:25], s[0:1], {KA_W2}")
    e(f"s_load_dwordx2 s[26:27], s[0:1], {KA_XA}")
    e("v_lshlrev_b32 v1, 4, v0")
    for i in range(3):
        e(f"v_add_u32 v5, {64*i}, v0")
        e("v_mul_u32_u24 v6, 171, v5"); e("v_lshrrev_b32 v6, 11, v6")
        e("v_mul_u32_u24 v7, 12, v6"); e("v_sub_u32 v7, v5, v7")
        e("v_mul_u32_u24 v6, 1152, v6"); e("v_lshlrev_b32 v7, 4, v7"); e("v_add_u32 v6, v6, v7")
        e(f"v_subrev_u32 v{2+i}, {1024*i}, v6")
    lane_tr_parts(e, 5, 6, 7, 8)
    e("v_lshlrev_b32 v9, 3, v5"); e("v_add_u32 v9, v9, v7"); e("v_mul_u32_u24 v9, 192, v9")
    e("v_lshlrev_b32 v10, 5, v6"); e("v_add_u32 v9, v9, v10"); e("v_lshlrev_b32 v10, 3, v8"); e("v_add_u32 v9, v9, v10")
    e(f"v_add_u32 v10, {18*3072}, v9")
    TR = [9, 10]
    e("s_waitcnt lgkmcnt(0)")
    make_srd(e, S_SRC, 24, 576 * 576 * 2)
    make_srd(e, S_XB, 26, 2048 * 576 * 2)
    e("s_mul_i32 s28, s8, 18432"); e("s_mul_i32 s29, s10, 192"); e("s_add_u32 s28, s28, s29")
    e("s_mul_i32 s29, s8, 3072")
    e("s_mul_i32 s30, s9, 36864"); e(f"s_add_u32 s30, s30, {LY.HS}")
    e("s_lshr_b32 s44, s9, 2"); e("s_and_b32 s44, s44, 1"); e("s_lshl_b32 s44, s44, 2"); e("s_add_u32 s44, s44, s10")
    e("s_cmp_ge_u32 s44, 9"); e("s_cselect_b32 s45, 9, 0"); e("s_sub_u32 s44, s44, s45")
    if not Opt.rotate2: e("s_mov_b32 s44, 0")
    for st in range(3):
        sx = []
        for i in range(3):
            ch = 3 * st + i
            e(f"s_mul_i32 s31, s44, {4*18432}"); e("s_add_u32 s31, s31, s28")
            e(f"s_add_u32 m0, s29, {4*ch*3072}")
            e(f"s_lshl_b32 s{46+i}, s44, 12"); e(f"s_add_u32 s{46+i}, s{46+i}, s30")
            for k in range(3):
                e(f"buffer_load_dwordx4 v{2+k}, s[{S_SRC}:{S_SRC+3}], s31 offen offset:{k*1024} lds")
            e("s_add_u32 s44, s44, 1"); e("s_cmp_eq_u32 s44, 9"); e("s_cselect_b32 s44, 0, s44")
        for i in range(3):
            ch = 3 * st + i
            for k in range(4):
                e(f"buffer_load_dwordx4 {ar(4*(4*ch+k),4)}, v1, s[{S_WS}:{S_WS+3}], s{46+i} offen offset:{k*1024}")
    stamp(e, 1)
    ACC = 16; WB = 64; XB = 100
    def reads(ks):
        o = []
        b = WB + 12 * (ks % 3); tr = TR[ks // 18]; kk = ks % 18
        for T in range(3):
            for q in range(2):
                o.append(f"ds_read_b64_tr_b16 {vr(b+4*T+2*q,2)}, v{tr} offset:{kk*3072 + q*768 + 64*T}")
        return o
    e("v_and_b32 v11, 31, v0"); e("s_movk_i32 s32, 1152"); e("v_mul_lo_u32 v12, v11, s32"); e("v_lshlrev_b32 v13, 4, v5"); e("v_add_u32 v12, v12, v13")
    e("s_mul_i32 s33, s9, 36864"); e("s_mul_i32 s34, s10, 192"); e("s_add_u32 s33, s33, s34")
    for st in range(3):
        e(f"s_waitcnt vmcnt({[42, 27, 6][st]})")
        e("s_barrier")
        stamp(e, 2 + st)
        if st == 0:
            for u in range(6):
                e(f"buffer_load_dwordx4 {vr(XB+4*u,4)}, v12, s[{S_XB}:{S_XB+3}], s33 offen offset:{u*32}")
        k0 = 12 * st
        e.extend(reads(k0)); e.extend(reads(k0 + 1))
        for ks in range(k0, k0 + 12):
            nxt = ks + 2 < k0 + 12
            e(f"s_waitcnt lgkmcnt({6 if ks + 1 < k0 + 12 else 0})")
            b = WB + 12 * (ks % 3)
            rd = reads(ks + 2) if nxt else []
            for T in range(3):
                e(f"v_mfma_f32_32x32x16_bf16 {vr(ACC+16*T,16)}, {vr(b+4*T,4)}, {ar(4*ks,4)}, " + ("0" if ks == 0 else vr(ACC + 16 * T, 16)))
                e.extend(rd[2 * T:2 * T + 2])
    stamp(e, 5)
    e("s_mov_b32 s34, 0x00003f80"); e("s_mov_b32 s35, 0x3f800000"); e("s_mov_b32 s36, 0x3f803f80")
    e("s_mul_i32 s37, s9, 36"); e("s_mul_i32 s38, s10, 6"); e("s_add_u32 s37, s37, s38"); e("s_lshl_b32 s37, s37, 10"); e(f"s_add_u32 s37, s37, {LY.X1F}")
    e("v_mov_b32 v2, 0"); e("v_mov_b32 v3, 0")
    e("s_waitcnt vmcnt(0)")
    e("s_nop 7")
    for u in range(6):
        T, hq = divmod(u, 2); b = ACC + 16 * T + 8 * hq; x = XB + 4 * u; P = 64 + 4 * u
        for j in range(4):
            e(f"v_dot2c_f32_bf16 v{b+2*j}, s34, v{x+j}")
            e(f"v_dot2c_f32_bf16 v{b+2*j+1}, s35, v{x+j}")
        e("s_nop 2")
        for j in range(4): e(f"v_cvt_pk_bf16_f32 v{P+j}, v{b+2*j}, v{b+2*j+1}")
        e(f"buffer_store_dwordx4 {vr(P,4)}, v1, s[{S_WS}:{S_WS+3}], s37 offen offset:{(u%4)*1024}")
        if u == 3: e("s_add_u32 s37, s37, 4096")
        for j in range(4):
            e(f"v_dot2c_f32_bf16 v2, s36, v{P+j}")
            e(f"v_dot2c_f32_bf16 v3, v{P+j}, v{P+j}")
    e("v_lshlrev_b32 v4, 14, v5"); e("v_lshlrev_b32 v6, 3, v11"); e("v_add_u32 v4, v4, v6")
    e("s_lshl_b32 s38, s10, 15"); e("s_lshl_b32 s39, s9, 8"); e("s_add_u32 s38, s38, s39"); e(f"s_add_u32 s38, s38, {LY.ST2}")
    e("s_nop 1")
    e(f"buffer_store_dwordx2 v[2:3], v4, s[{S_WS}:{S_WS+3}], s38 offen")
    fin(e)

def slice_phase(e, sft, kind, sdst):
    e(f"s_mul_i32 s40, s{sft}, 3641"); e("s_lshr_b32 s40, s40, 16")
    e(f"s_mul_i32 s41, s40, 18"); e(f"s_sub_u32 s41, s{sft}, s41")
    if kind == "S1":
        e("s_lshl_b32 s42, s41, 1"); e("s_sub_u32 s42, s42, 1")
        e("s_cmp_lt_u32 s41, 2"); e("s_cselect_b32 s42, s41, s42")
    else:
        e("s_lshl_b32 s42, s41, 1"); e("s_add_u32 s42, s42, 2"); e("s_min_u32 s42, s42, 35")
    e("s_mul_i32 s40, s40, 36"); e("s_add_u32 s40, s40, s42"); e(f"s_mul_i32 s{sdst}, s40, 36864"); e(f"s_add_u32 s{sdst}, s{sdst}, {LY.W34}")

def dma_rows128(e, rowbytes, swz):
    e("v_lshrrev_b32 v5, 3, v0"); e("v_and_b32 v6, 7, v0")
    if swz:
        e("v_bfe_u32 v7, v0, 4, 1"); e("v_lshlrev_b32 v7, 2, v7"); e("v_xor_b32 v6, v6, v7")
    e(f"s_mov_b32 s32, {rowbytes}"); e("v_mul_lo_u32 v5, v5, s32"); e("v_lshlrev_b32 v6, 4, v6"); e("v_add_u32 v2, v5, v6")
    e(f"s_mul_i32 s29, s8, {144*rowbytes}"); e("s_add_u32 s29, s29, s28")
    e("s_mul_i32 s31, s8, 18432")
    for i in range(18):
        e(f"s_add_u32 m0, s31, {i*1024}")
        e(f"s_add_u32 s30, s29, {i*8*rowbytes}")
        e(f"buffer_load_dwordx4 v2, s[{S_SRC}:{S_SRC+3}], s30 offen lds")

def gen_w3(e):
    e.label("L2_w3")
    e(f"s_load_dwordx2 s[24:25], s[0:1], {KA_W3}")
    e("v_lshlrev_b32 v1, 4, v0")
    e("s_lshl_b32 s28, s9, 7")
    e("s_waitcnt lgkmcnt(0)")
    make_srd(e, S_SRC, 24, 576 * 4608 * 2)
    dma_rows128(e, 9216, True)
    lane_tr_parts(e, 5, 6, 7, 8)
    e("s_and_b32 s33, s8, 1"); e("s_lshr_b32 s34, s8, 1")
    e("v_lshlrev_b32 v9, 1, v6"); e("v_lshrrev_b32 v10, 1, v8"); e("v_add_u32 v9, v9, v10")
    e("s_lshl_b32 s35, s33, 2"); e("v_add_u32 v9, s35, v9")
    e("v_lshrrev_b32 v10, 1, v7"); e("v_lshlrev_b32 v10, 2, v10"); e("v_xor_b32 v9, v9, v10")
    e("v_lshlrev_b32 v9, 4, v9"); e("v_and_b32 v10, 1, v8"); e("v_lshlrev_b32 v10, 3, v10"); e("v_add_u32 v9, v9, v10")
    e("v_lshlrev_b32 v10, 3, v5"); e("v_add_u32 v10, v10, v7"); e("v_lshlrev_b32 v10, 7, v10"); e("v_add_u32 v9, v9, v10")
    e("s_mul_i32 s35, s34, 36864"); e("v_add_u32 v9, s35, v9")
    F = 16
    stamp(e, 1)
    e("s_waitcnt vmcnt(0)"); e("s_barrier")
    stamp(e, 2)
    for k in range(18):
        for q in range(2):
            e(f"ds_read_b64_tr_b16 {vr(F+4*k+2*q,2)}, v9 offset:{k*2048+q*512}")
    e("s_mov_b32 s36, 0x3f803f80"); e("s_mov_b32 s37, 0x00003f80"); e("s_mov_b32 s38, 0x3f800000")
    for a in range(4): e(f"v_mov_b32 v{10+a}, 0")
    for k in range(18):
        if k % 3 == 0: e(f"s_waitcnt lgkmcnt({min(15, 36 - 2*(k+3))})")
        for j in range(4): e(f"v_dot2c_f32_bf16 v{10+j}, s36, v{F+4*k+j}")
    e("s_nop 2")
    e("v_add_f32 v10, v10, v11"); e("v_add_f32 v12, v12, v13"); e("v_add_f32 v10, v10, v12")
    e("v_mov_b32 v11, v10"); e("s_nop 1"); e("v_permlane32_swap_b32 v10, v11"); e("v_add_f32 v10, v10, v11")
    e("v_lshlrev_b32 v12, 2, v0"); e("s_lshl_b32 s35, s8, 8"); e("s_add_u32 s35, s35, 73728"); e("v_add_u32 v13, s35, v12")
    e("ds_write_b32 v13, v10")
    e("s_xor_b32 s35, s8, 2"); e("s_lshl_b32 s35, s35, 8"); e("s_add_u32 s35, s35, 73728"); e("v_add_u32 v13, s35, v12")
    e("s_waitcnt lgkmcnt(0)"); e("s_barrier")
    e("ds_read_b32 v11, v13"); e("s_waitcnt lgkmcnt(0)")
    e("v_add_f32 v10, v10, v11"); e(f"v_mul_f32 v10, {hexf(-1/576)}, v10")
    e("s_lshl_b32 s39, s9, 1"); e("s_add_u32 s39, s39, s33")
    slice_phase(e, 39, "S1", 43)
    e("s_mul_i32 s35, s34, 18432"); e("s_add_u32 s43, s43, s35")
    TS = [88, 96]
    def fink(k):
        t = TS[k % 2]
        for j in range(4): e(f"v_cvt_pk_bf16_f32 v{F+4*k+j}, v{t+2*j}, v{t+2*j+1}")
        e(f"buffer_store_dwordx4 {vr(F+4*k,4)}, v1, s[{S_WS}:{S_WS+3}], s43 offen offset:{(k%4)*1024}")
        if k % 4 == 3: e("s_add_u32 s43, s43, 4096")
    for k in range(18):
        t = TS[k % 2]
        for j in range(4):
            e(f"v_dot2_f32_bf16 v{t+2*j}, v{F+4*k+j}, s37, v10")
            e(f"v_dot2_f32_bf16 v{t+2*j+1}, v{F+4*k+j}, s38, v10")
        if k > 0: fink(k - 1)
    e("s_nop 2")
    fink(17)
    fin(e)

def gen_w4(e):
    e.label("L2_w4")
    e(f"s_load_dwordx2 s[24:25], s[0:1], {KA_W4}")
    e("v_lshlrev_b32 v1, 4, v0")
    for i in range(9):
        e("v_lshrrev_b32 v5, 3, v0"); e(f"v_add_u32 v5, {8*i}, v5")
        e("v_mul_u32_u24 v6, 57, v5"); e("v_lshrrev_b32 v6, 9, v6")
        e("v_mul_u32_u24 v7, 9, v6"); e("v_sub_u32 v7, v5, v7")
        e("v_and_b32 v8, 7, v0"); e("v_bfe_u32 v9, v6, 1, 1"); e("v_lshlrev_b32 v9, 2, v9"); e("v_xor_b32 v8, v8, v9")
        e("v_mul_u32_u24 v6, 1152, v6"); e("v_lshlrev_b32 v7, 7, v7"); e("v_lshlrev_b32 v8, 4, v8")
        e(f"v_add3_u32 v{16+i}, v6, v7, v8")
    e("s_waitcnt lgkmcnt(0)")
    make_srd(e, S_SRC, 24, 576 * 4608 * 2)
    e("s_lshl_b32 s28, s9, 2"); e("s_add_u32 s28, s28, s8"); e("s_mul_i32 s28, s28, 18432")
    e("s_mul_i32 s31, s8, 18432")
    for h in range(2):
        e(f"s_add_u32 s30, s28, {h*9216}")
        for i in range(9):
            e(f"s_add_u32 m0, s31, {h*9216+i*1024}")
            e("s_nop 0")
            e(f"buffer_load_dwordx4 v{16+i}, s[{S_SRC}:{S_SRC+3}], s30 offen lds")
    lane_tr_parts(e, 5, 6, 7, 8)
    e("v_lshlrev_b32 v9, 1, v6"); e("v_lshrrev_b32 v10, 1, v8"); e("v_add_u32 v9, v9, v10")
    e("v_lshrrev_b32 v10, 1, v7"); e("v_lshlrev_b32 v10, 2, v10")
    e("v_xor_b32 v11, v9, v10"); e("v_xor_b32 v12, 4, v11")
    e("v_and_b32 v13, 1, v8"); e("v_lshlrev_b32 v13, 3, v13")
    e("v_lshlrev_b32 v14, 3, v5"); e("v_add_u32 v14, v14, v7"); e("v_mul_u32_u24 v14, 1152, v14"); e("v_add_u32 v14, v14, v13"); e("v_add_u32 v14, s31, v14")
    e("v_lshlrev_b32 v11, 4, v11"); e("v_lshlrev_b32 v12, 4, v12"); e("v_add_u32 v11, v11, v14"); e("v_add_u32 v12, v12, v14")
    F = 32
    stamp(e, 1)
    e("s_waitcnt vmcnt(0)")
    stamp(e, 2)
    for dt in range(18):
        for q in range(2):
            e(f"ds_read_b64_tr_b16 {vr(F+4*dt+2*q,2)}, v{11+(dt&1)} offset:{(dt>>1)*128 + q*4608}")
    e("s_lshl_b32 s39, s9, 1"); e("s_lshr_b32 s35, s8, 1"); e("s_add_u32 s39, s39, s35")
    slice_phase(e, 39, "S2", 43)
    e("s_and_b32 s35, s8, 1"); e("s_mul_i32 s35, s35, 18432"); e("s_add_u32 s43, s43, s35")
    for dt in range(18):
        if dt % 3 == 0: e(f"s_waitcnt lgkmcnt({min(15, 36 - 2*(dt+3))})")
        e(f"buffer_store_dwordx4 {vr(F+4*dt,4)}, v1, s[{S_WS}:{S_WS+3}], s43 offen offset:{(dt%4)*1024}")
        if dt % 4 == 3: e("s_add_u32 s43, s43, 4096")
    fin(e)

def gen_wo(e):
    e.label("L2_wo")
    e(f"s_load_dwordx2 s[24:25], s[0:1], {KA_WO}")
    e("v_lshlrev_b32 v1, 4, v0")
    e("s_mul_i32 s10, s9, 86"); e("s_lshr_b32 s10, s10, 8")
    e("s_mul_i32 s11, s10, 3"); e("s_sub_u32 s11, s9, s11")
    e("s_mul_i32 s28, s10, 288"); e("s_lshl_b32 s29, s11, 7"); e("s_add_u32 s28, s28, s29")
    e("s_waitcnt lgkmcnt(0)")
    make_srd(e, S_SRC, 24, 576 * 576 * 2)
    dma_rows128(e, 1152, False)
    lane_tr_parts(e, 5, 6, 7, 8)
    e("s_and_b32 s33, s8, 1"); e("s_lshr_b32 s34, s8, 1")
    e("v_lshlrev_b32 v9, 5, v6"); e("v_lshlrev_b32 v10, 3, v8"); e("v_add_u32 v9, v9, v10"); e("s_lshl_b32 s35, s33, 6"); e("v_add_u32 v9, s35, v9")
    e("v_lshlrev_b32 v10, 2, v5"); e("v_add_u32 v10, v10, v7"); e("v_lshlrev_b32 v10, 7, v10"); e("v_add_u32 v10, v10, v9")
    e(f"s_mul_i32 s35, s34, {324*128}"); e("v_add_u32 v10, s35, v10")
    e("v_lshrrev_b32 v11, 1, v7"); e("v_lshlrev_b32 v12, 2, v5"); e("v_add_u32 v12, v12, v11"); e("v_mul_u32_u24 v12, 18, v12")
    e("v_xor_b32 v11, 1, v11"); e("v_lshlrev_b32 v11, 4, v11"); e("v_add_u32 v12, v12, v11"); e("v_and_b32 v11, 1, v7"); e("v_add_u32 v12, v12, v11")
    e("v_lshlrev_b32 v12, 7, v12"); e("v_add_u32 v12, v12, v9")
    F = 16
    e("s_waitcnt vmcnt(0)"); e("s_barrier")
    for k in range(14):
        for q in range(2):
            e(f"ds_read_b64_tr_b16 {vr(F+4*k+2*q,2)}, v10 offset:{(18*k + 8*q + 2*(k&1))*128}")
    e("s_cmp_eq_u32 s34, 0"); e("s_cbranch_scc0 L2_wo_x")
    for k in range(14, 18):
        for q in range(2):
            e(f"ds_read_b64_tr_b16 {vr(F+4*k+2*q,2)}, v10 offset:{(18*k + 8*q + 2*(k&1))*128}")
    e("s_branch L2_wo_y")
    e.label("L2_wo_x")
    for k in range(14, 18):
        for q in range(2):
            e(f"ds_read_b64_tr_b16 {vr(F+4*k+2*q,2)}, v12 offset:{18*(8*(k-14) + 2*q)*128}")
    e.label("L2_wo_y")
    e("s_lshl_b32 s35, s11, 1"); e("s_add_u32 s35, s35, s33")
    e("s_cmp_eq_u32 s35, 5"); e("s_cbranch_scc1 L2_exit")
    e("s_mul_i32 s36, s10, 5"); e("s_add_u32 s36, s36, s35"); e("s_mul_i32 s36, s36, 36"); e("s_mul_i32 s37, s34, 18"); e("s_add_u32 s36, s36, s37")
    e("s_lshl_b32 s43, s36, 10"); e(f"s_add_u32 s43, s43, {LY.WOP}")
    e("s_waitcnt lgkmcnt(0)")
    for k in range(18):
        e(f"buffer_store_dwordx4 {vr(F+4*k,4)}, v1, s[{S_WS}:{S_WS+3}], s43 offen offset:{(k%4)*1024}")
        if k % 4 == 3: e("s_add_u32 s43, s43, 4096")
    fin(e)

def gen():
    e = Emit()
    kernel_head(e, NAME)
    Diag.kid = 1
    e("s_cmp_ge_u32 s2, 256")
    e("s_cbranch_scc1 L2_exit")
    e(f"s_load_dwordx2 s[4:5], s[0:1], {KA_WS}")
    e("s_and_b32 s6, s2, 7")
    e("s_lshr_b32 s7, s2, 3")
    e("v_lshrrev_b32 v1, 6, v0")
    e("v_and_b32 v0, 63, v0")
    e("v_readfirstlane_b32 s8, v1")
    code_prefetch(e, NAME, "L2_exit", 2, vaddr=250, vtmp=251, vdst=252, sp=60)
    e("s_waitcnt lgkmcnt(0)")
    make_srd(e, S_WS, 4, LY.WS_END)
    stamp(e, 0)
    dbg_start(e)
    e("s_cmp_lt_u32 s7, 12")
    e("s_cbranch_scc1 L2_gemm")
    e("s_sub_u32 s9, s2, 96")
    e("s_cmp_lt_u32 s9, 72")
    e("s_cbranch_scc1 L2_w3")
    e("s_sub_u32 s9, s9, 72")
    e("s_cmp_lt_u32 s9, 72")
    e("s_cbranch_scc1 L2_w4")
    e("s_sub_u32 s9, s9, 72")
    e("s_cmp_lt_u32 s9, 12")
    e("s_cbranch_scc1 L2_wo")
    e("s_endpgm")
    gen_gemm(e); gen_w3(e); gen_w4(e); gen_wo(e)
    e.label("L2_exit")
    e("s_endpgm")
    return e.text()
if __name__ == "__main__":
    t = gen()
    errs = check(t, "l2")
    for x in errs: print(x)
    print("instrs", sum(1 for l in t.split("\n") if l.startswith("    ")), "hazard errs", len(errs))
    assert all((n*171)>>11 == n//12 for n in range(192))
    assert all((n*57)>>9 == n//9 for n in range(72))
    assert all((n*3641)>>16 == n//18 for n in range(144))
    assert all((n*86)>>8 == n//3 for n in range(12))
```

```python
from gen_common import *
import os

NAME = "l3_kernel"
LDS_BYTES = 4 * 36864

V_LANE16 = 1
V_DMA    = 2
V_A, V_B, V_S = 3, 4, 5
V_T = 6
V_RD = 14
V_SLOT = [12+0, 12+1, 12+2, 12+3]
V_T0 = [6, 7, 8, 9]
V_W = 16
NB = 6
V_HP = 40
V_H = [48, 64]
def OUT(dt):
    return (True, 80 + 16 * dt) if dt < 11 else (False, 144 + 16 * (dt - 11))
def outreg(dt):
    isv_, b = OUT(dt)
    return vr(b, 16) if isv_ else ar(b, 16)
S_SRD = 12
S_W, S_J = 8, 7
S_M0B = 18
S_D0, S_D1, S_D2 = 19, 20, 21
S_CNT = 22

def gelu_group(H, elems, temps):
    o = []
    for e_, t in zip(elems, temps): o.append(f"v_mul_f32 v{t}, v{H+e_}, v{H+e_}")
    for e_, t in zip(elems, temps): o.append(f"v_fma_f32 v{t}, v{t}, v{V_A}, v{V_B}")
    for e_, t in zip(elems, temps): o.append(f"v_mul_f32 v{t}, v{H+e_}, v{t}")
    for e_, t in zip(elems, temps): o.append(f"v_exp_f32 v{t}, v{t}")
    for e_, t in zip(elems, temps): o.append(f"v_fma_f32 v{t}, v{t}, v{V_S}, v{V_S}")
    for e_, t in zip(elems, temps): o.append(f"v_rcp_f32 v{t}, v{t}")
    for e_, t in zip(elems, temps): o.append(f"v_mul_f32 v{H+e_}, v{H+e_}, v{t}")
    return o
TA = [6, 7, 8, 9]
def gelu_groups(H, gs):
    o = []
    for g in gs: o += gelu_group(H, range(4 * g, 4 * g + 4), TA)
    return o
def cvts(H, js):
    return [f"v_cvt_pk_bf16_f32 v{V_HP+j}, v{H+2*j}, v{H+2*j+1}" for j in js]

def s1_mfmas(c):
    H = V_H[c & 1]
    return [f"v_mfma_f32_32x32x16_bf16 {vr(H,16)}, {vr(V_W+4*(j%NB),4)}, {ar(4*j,4)}, " + ("0" if j == 0 else vr(H, 16)) for j in range(36)]
def s2_mfmas():
    o = []
    for m in range(36):
        q, dt = divmod(m, 18)
        o.append(f"v_mfma_f32_32x32x16_bf16 {outreg(dt)}, {vr(V_W+4*(m%NB),4)}, {vr(V_HP+4*q,4)}, {outreg(dt)}")
    return o

def rd(slot, m):
    return f"ds_read_b128 {vr(V_W+4*(m%NB),4)}, v{V_SLOT[slot]} offset:{m*1024}"

def dma_instrs(slot):
    g = []
    for i in range(9):
        grp, k = divmod(i, 4)
        pre = []
        if k == 0:
            pre.append(f"s_add_u32 m0, s{S_M0B}, {slot*36864 + grp*4096}")
            pre.append("s_nop 0") if False else None
        sreg = [S_D0, S_D1, S_D2][grp]
        g.append((pre, f"buffer_load_dwordx4 v{V_DMA}, s[{S_SRD}:{S_SRD+3}], s{sreg} offen offset:{k*1024} lds"))
    return g
def dma_advance():
    return [f"s_add_u32 s{S_D0}, s{S_D0}, 36864", f"s_add_u32 s{S_D1}, s{S_D1}, 36864", f"s_add_u32 s{S_D2}, s{S_D2}, 36864"]

def phase(e, mf, slot, has_next, dma_slot, fill, fill_range, last_vm=9, tail=None, xwait=False):
    gaps = {}
    nslot = (slot + 1) % 4
    for j in range(36):
        L = gaps.setdefault(j, [])
        m = j + NB
        if j == 36 - NB - 1 + 0 and False: pass
        if m < 36:
            L.append(rd(slot, m))
        elif has_next:
            if m == 36:
                L.append(f"s_waitcnt vmcnt({last_vm})")
                L.append("s_barrier")
            L.append(rd(nslot, m - 36))
    if dma_slot is not None:
        d = dma_instrs(dma_slot)
        pos = [1, 4, 7, 10, 13, 16, 19, 22, 25]
        for (pre, ld), p in zip(d, pos):
            if pre: gaps[p - 1] += pre
            gaps[p].append(ld)
        gaps[27] += dma_advance()
    if xwait:
        pos = [1, 4, 7, 10, 13, 16, 19, 22, 25]
        for j in range(4, 36, 4):
            ndma = sum(1 for p in pos if p <= j - 1)
            allowed = (35 - (j + 3)) + 9 + ndma
            gaps[j - 1].append(f"s_waitcnt vmcnt({allowed})")
    if fill:
        spread(gaps, fill, fill_range[0], fill_range[1])
    for j in range(36):
        nxt = j + 1
        if nxt % 2 == 0:
            if nxt < 36:
                last_issued = j + NB if (has_next or j + NB < 36) else 35
                allowed = last_issued - (nxt + 1)
                gaps[j].append(f"s_waitcnt lgkmcnt({allowed})")
            elif has_next:
                gaps[j].append(f"s_waitcnt lgkmcnt({NB-2})")
    e.extend(weave(mf, gaps))
    if tail: e.extend(tail)

def gen_mlp(e):
    e.label("L3_mlp")
    e(f"s_lshl_b32 s9, s7, 2")
    e(f"s_add_u32 s9, s9, s{S_W}")
    e(f"s_mul_i32 s{S_M0B}, s{S_W}, 9216")
    e(f"s_mul_i32 s10, s6, {36*36864}")
    e(f"s_add_u32 s{S_D0}, s10, {LY.W34}")
    e(f"s_add_u32 s{S_D1}, s{S_D0}, 4096")
    e(f"s_add_u32 s{S_D2}, s{S_D0}, 8192")
    e(f"v_lshlrev_b32 v{V_LANE16}, 4, v0")
    e(f"v_add_u32 v{V_DMA}, s{S_M0B}, v{V_LANE16}")
    for s in range(4):
        e(f"v_add_u32 v{V_SLOT[s]}, {s*36864}, v{V_LANE16}")
    for pre, ld in dma_instrs(0):
        for p in pre: e(p)
        if pre: e("s_nop 0")
        e(ld)
    for a in dma_advance(): e(a)
    e("v_and_b32 v6, 31, v0")
    e("v_lshlrev_b32 v6, 3, v6")
    e("s_lshl_b32 s17, s9, 8")
    e(f"s_add_u32 s17, s17, {LY.ST2}")
    for p in range(12):
        e(f"buffer_load_dwordx2 {vr(64+2*p,2) if p < 8 else vr(40+2*(p-8),2)}, v6, s[{S_SRD}:{S_SRD+3}], s17 offen")
        if p != 11: e("s_add_u32 s17, s17, 16384")
    e(f"s_mul_i32 s16, s9, 36864")
    e(f"s_add_u32 s16, s16, {LY.X1F}")
    for j in range(36):
        e(f"buffer_load_dwordx4 {ar(4*j,4)}, v{V_LANE16}, s[{S_SRD}:{S_SRD+3}], s16 offen offset:{(j%4)*1024}")
        if j % 4 == 3 and j != 35: e("s_add_u32 s16, s16, 4096")
    for pre, ld in dma_instrs(1):
        for p in pre: e(p)
        if pre: e("s_nop 0")
        e(ld)
    for a in dma_advance(): e(a)
    stamp(e, 1)
    for i in range(4): e(f"v_mov_b32 v{V_W+i}, 0")
    e("s_nop 1")
    for dt in range(18):
        e(f"v_mfma_f32_32x32x16_bf16 {outreg(dt)}, {vr(V_W,4)}, {vr(V_W,4)}, 0")
    sreg = [64 + 2 * p for p in range(8)] + [40 + 2 * p for p in range(4)]
    st = []
    for p in sreg[1:]:
        st.append(f"v_add_f32 v64, v64, v{p}"); st.append(f"v_add_f32 v65, v65, v{p+1}")
    st += [f"v_mul_f32 v64, {hexf(1/576)}, v64", f"v_mul_f32 v65, {hexf(1/576)}, v65", "v_fma_f32 v65, -v64, v64, v65",
           "v_max_f32 v65, 0, v65", f"v_add_f32 v65, {hexf(1e-5)}, v65", f"v_sqrt_f32 v{V_S}, v65", "s_nop 0", f"v_rcp_f32 v66, v{V_S}", "s_nop 0",
           f"v_mul_f32 v{V_B}, {hexf(GELU_C0)}, v66", "v_mul_f32 v67, v66, v66", "v_mul_f32 v67, v67, v66", f"v_mul_f32 v{V_A}, {hexf(GELU_C1)}, v67"]
    e("s_waitcnt vmcnt(45)")
    e("s_barrier")
    stamp(e, 2)
    for m in range(NB): e(rd(0, m))
    e("s_waitcnt vmcnt(41)")
    e(f"s_waitcnt lgkmcnt({NB-2})")
    phase(e, s1_mfmas(0), 0, True, 2, st, (0, 30), xwait=True)
    phase(e, s1_mfmas(1), 1, True, 3, gelu_groups(V_H[0], range(4)) + cvts(V_H[0], range(8)), (3, 35))
    if Diag.on:
        stamp(e, 3)
    e(f"s_mov_b32 s{S_CNT}, 8")
    e(".p2align 6")
    e.label("L3_mlp_loop")
    for half in range(2):
        Hn = V_H[(half + 1) & 1]
        sl = 2 + 2 * half
        phase(e, s2_mfmas(), sl % 4, True, (sl + 2) % 4, gelu_groups(Hn, [0, 1]), (3, 36))
        phase(e, s1_mfmas(half), (sl + 1) % 4, True, (sl + 3) % 4, cvts(Hn, range(2)) + gelu_groups(Hn, [2]) + cvts(Hn, range(2, 4)) + gelu_groups(Hn, [3]) + cvts(Hn, range(4, 8)), (0, 35))
    e(f"s_sub_u32 s{S_CNT}, s{S_CNT}, 1")
    e(f"s_cmp_lg_u32 s{S_CNT}, 0")
    e("s_cbranch_scc1 L3_mlp_loop")
    stamp(e, 4)
    H = V_H[1]
    phase(e, s2_mfmas(), 2, True, None, gelu_groups(H, range(4)), (3, 36), last_vm=0, tail=cvts(H, range(8)) + ["s_nop 1"])
    phase(e, s2_mfmas(), 3, False, None, None, None)
    stamp(e, 5)
    e(f"s_lshl_b32 s10, s6, 6")
    e(f"s_add_u32 s10, s10, s9")
    e(f"s_mul_i32 s10, s10, 36864")
    e(f"s_add_u32 s10, s10, {LY.PART}")
    e("s_nop 9")
    tb = [48, 56, 64, 72]
    for dt in range(18):
        isv_, b = OUT(dt)
        t = tb[dt % 4]
        if isv_:
            for j in range(8): e(f"v_cvt_pk_bf16_f32 v{t+j}, v{b+2*j}, v{b+2*j+1}")
        else:
            for j in range(16): e(f"v_accvgpr_read_b32 v{16+j}, a{b+j}")
            for j in range(8): e(f"v_cvt_pk_bf16_f32 v{t+j}, v{16+2*j}, v{16+2*j+1}")
        ks = 2 * dt
        e(f"buffer_store_dwordx4 {vr(t,4)}, v{V_LANE16}, s[{S_SRD}:{S_SRD+3}], s10 offen offset:{(ks%4)*1024}")
        e(f"buffer_store_dwordx4 {vr(t+4,4)}, v{V_LANE16}, s[{S_SRD}:{S_SRD+3}], s10 offen offset:{(ks%4+1)*1024}")
        if dt % 2 == 1 and dt != 17: e("s_add_u32 s10, s10, 4096")
    fin(e)

A_K0OFF, A_KXOFF, A_VOFF = 1, 2, 3
A_M = 8
A_O = 32
A_S = [160, 192]
A_P = [224, 240]
NSET = 2
AG_SET = 0
def SET(i): return AG_SET + 28 * (i % NSET)
AG_Q0 = 56
AG_QX = 88
SA_K, SA_KX, SA_V = 16, 17, 18
SA_CNT = 22
NQ = 8

def attn_loads(st):
    b = SET(st); R = f"s[{S_SRD}:{S_SRD+3}]"
    o = [f"buffer_load_dwordx4 {ar(b,4)}, v{A_K0OFF}, {R}, s{SA_K} offen",
         f"buffer_load_dwordx4 {ar(b+4,4)}, v{A_K0OFF}, {R}, s{SA_K} offen offset:1024",
         f"buffer_load_dword a{b+24}, v{A_KXOFF}, {R}, s{SA_KX} offen"]
    for i in range(4):
        o.append(f"buffer_load_dwordx4 {ar(b+8+4*i,4)}, v{A_VOFF}, {R}, s{SA_V} offen" + (f" offset:{608*i}" if i else ""))
    o += [f"s_add_u32 s{SA_K}, s{SA_K}, 2048", f"s_add_u32 s{SA_KX}, s{SA_KX}, 256", f"s_add_u32 s{SA_V}, s{SA_V}, 2432"]
    return o
def qk(kp, qi, S):
    b = SET(kp)
    return [f"v_mfma_f32_32x32x4_2b_bf16 {vr(S,32)}, {ar(b+24,2)}, {ar(AG_QX+2*qi,2)}, 0",
            f"v_mfma_f32_32x32x16_bf16 {vr(S,16)}, {ar(b,4)}, {ar(AG_Q0+4*qi,4)}, {vr(S,16)}",
            f"v_mfma_f32_32x32x16_bf16 {vr(S+16,16)}, {ar(b+4,4)}, {ar(AG_Q0+4*qi,4)}, {vr(S+16,16)}"]
def pv(kp, qi, P):
    b = SET(kp); O = A_O + 16 * qi
    return [f"v_mfma_f32_32x32x16_bf16 {vr(O,16)}, {ar(b+8+4*i,4)}, {vr(P+4*i,4)}, {vr(O,16)}" for i in range(4)]
def expcvt(n):
    S = A_S[n & 1]; P = A_P[n & 1]
    ex = [f"v_exp_f32 v{S+i}, v{S+i}" for i in range(32)]
    cv = [f"v_cvt_pk_bf16_f32 v{P+j}, v{S+2*j}, v{S+2*j+1}" for j in range(16)]
    o = ex[0:4]
    for j in range(14): o += [cv[j], ex[2*j+4], ex[2*j+5]]
    o += [cv[14], cv[15]]
    return o

def gen_attn(e, force_slow=False):
    R = f"s[{S_SRD}:{S_SRD+3}]"
    e.label("L3_attn")
    e("s_sub_u32 s7, s7, 16")
    e("s_lshr_b32 s9, s7, 2")
    e("s_lshl_b32 s10, s6, 2")
    e("s_add_u32 s9, s9, s10")
    e("s_and_b32 s10, s7, 3")
    e("s_lshl_b32 s10, s10, 4")
    e(f"s_and_b32 s31, s{S_W}, 1"); e("s_lshl_b32 s31, s31, 3"); e("s_add_u32 s10, s10, s31")
    e(f"s_lshr_b32 s31, s{S_W}, 1")
    e(f"v_lshlrev_b32 v{A_K0OFF}, 4, v0")
    e(f"v_lshlrev_b32 v{A_KXOFF}, 2, v0")
    e("v_and_b32 v4, 31, v0")
    e("v_lshlrev_b32 v5, 4, v4")
    e("v_lshrrev_b32 v6, 5, v0")
    e("v_mul_u32_u24 v7, 304, v6")
    e("v_add_u32 v5, v5, v7")
    e("v_cmp_lt_u32 vcc, 18, v4")
    e("v_mov_b32 v7, 0x40000000")
    e("v_lshlrev_b32 v12, 2, v4")
    e(f"v_cndmask_b32 v{A_VOFF}, v5, v7, vcc")
    e("s_lshl_b32 s11, s9, 16")
    e("s_lshl_b32 s24, s9, 13")
    e(f"s_add_u32 s26, s11, {LY.KF0}")
    e(f"s_add_u32 s27, s24, {LY.KX}")
    e(f"s_mul_i32 s28, s9, {LY.VHEAD}")
    e(f"s_add_u32 s28, s28, {LY.VF}")
    e("s_lshl_b32 s23, s31, 15"); e(f"s_add_u32 s{SA_K}, s26, s23")
    e("s_lshl_b32 s23, s31, 12"); e(f"s_add_u32 s{SA_KX}, s27, s23")
    e(f"s_mul_i32 s23, s31, {16*2432}"); e(f"s_add_u32 s{SA_V}, s28, s23")
    for x in attn_loads(0): e(x)
    e("s_lshl_b32 s23, s31, 2"); e("s_add_u32 s34, s10, s23")
    e("s_xor_b32 s23, s23, 4"); e("s_add_u32 s35, s10, s23")
    for g, sg in enumerate((34, 35)):
        e(f"s_lshl_b32 s23, s{sg}, 10"); e("s_add_u32 s23, s23, s11"); e(f"s_add_u32 s23, s23, {LY.QF0}")
        for qi in range(4):
            e(f"buffer_load_dwordx4 {ar(AG_Q0+4*(4*g+qi),4)}, v{A_K0OFF}, {R}, s23 offen offset:{qi*1024}")
        e(f"s_lshl_b32 s23, s{sg}, 7"); e("s_add_u32 s23, s23, s24"); e(f"s_add_u32 s23, s23, {LY.QX}")
        for qi in range(4):
            e(f"buffer_load_dword a{AG_QX+2*(4*g+qi)}, v12, {R}, s23 offen offset:{qi*128}")
    for i in range(16): e(f"v_mov_b32 v{A_P[1]+i}, 0")
    for i in range(16): e(f"v_accvgpr_write_b32 a{SET(1)+8+i}, 0")
    for s_ in range(NSET): e(f"v_accvgpr_write_b32 a{SET(s_)+25}, 0")
    for qi in range(NQ): e(f"v_accvgpr_write_b32 a{AG_QX+2*qi+1}, 0")
    for qi in range(NQ): e(f"v_mfma_f32_32x32x16_bf16 {vr(A_O+16*qi,16)}, {vr(A_P[1],4)}, {vr(A_P[1],4)}, 0")
    stamp(e, 1)
    e("s_waitcnt vmcnt(0)")
    stamp(e, 2)
    q0 = qk(0, 0, A_S[0])
    e(q0[0]); e("s_nop 15"); e("s_nop 1"); e(q0[1]); e(q0[2])
    e("s_nop 10")
    e(f"s_mov_b32 s{SA_CNT}, 8")
    e(".p2align 6")
    e.label("L3_attn_loop")
    NB_ = 2 * NQ
    for n in range(NB_):
        kp, qi = divmod(n, NQ)
        n1 = (n + 1) % NB_; n0 = (n - 1) % NB_
        X, Ma, Mb = qk(n1 // NQ, n1 % NQ, A_S[n1 & 1]); p = pv(n0 // NQ, n0 % NQ, A_P[n0 & 1])
        va = expcvt(n)
        seq = []
        ld = attn_loads(kp + 1)
        if qi == NQ - 1: seq.append("s_waitcnt vmcnt(4)")
        cuts = eval(os.environ.get('ATT_CUTS', '[0, 8, 15, 22, 29, 35, 42, 48]')) if qi < 7 else [0, 9, 16, 23, 30, 36, 42, 48]
        mf = [X, p[0], p[1], Ma, Mb, p[2], p[3]]
        for k in range(7):
            if k == 1 and qi == 1: seq.append("s_waitcnt vmcnt(2)")
            seq.append(mf[k])
            if k == 0 and qi < 7 and not os.environ.get('ATT_NOLOAD'): seq.append(ld[qi])
            if k == 0 and qi == 7: seq += ld[7:9]
            if k == 3 and qi == 7: seq += ld[9:10]
            seq += va[cuts[k]:cuts[k + 1]]
        e.extend(seq)
    e(f"s_sub_u32 s{SA_CNT}, s{SA_CNT}, 1")
    e(f"s_cmp_lg_u32 s{SA_CNT}, 0")
    e("s_cbranch_scc1 L3_attn_loop")
    e("s_nop 1")
    for m in pv(1, NQ - 1, A_P[1]): e(m)
    e("s_nop 15")
    stamp(e, 5)
    e(f"s_mul_i32 s23, s{S_W}, 12288"); e(f"v_add_u32 v4, s23, v{A_K0OFF}")
    for i in range(4):
        for q in range(3):
            e(f"ds_write_b128 v4, {vr(A_O+16*(4+i)+4*q,4)} offset:{(3*i+q)*1024}")
    e(f"s_xor_b32 s23, s{S_W}, 2"); e("s_mul_i32 s23, s23, 12288"); e(f"v_add_u32 v4, s23, v{A_K0OFF}")
    e("s_waitcnt lgkmcnt(0)"); e("s_barrier")
    for i in range(4):
        for q in range(3):
            e(f"ds_read_b128 {vr(A_S[0]+12*i+4*q,4)}, v4 offset:{(3*i+q)*1024}")
    e("s_waitcnt lgkmcnt(0)")
    for i in range(4):
        for r in range(11): e(f"v_add_f32 v{A_O+16*i+r}, v{A_O+16*i+r}, v{A_S[0]+12*i+r}")
    e.label("L3_attn_fin")
    e("s_mul_i32 s23, s34, 36864")
    e(f"s_add_u32 s23, s23, {LY.OF}")
    e("s_lshl_b32 s24, s9, 10")
    e("s_add_u32 s24, s24, s23")
    e("s_lshr_b32 s25, s9, 3")
    e("s_add_u32 s25, s25, 32")
    e("s_lshl_b32 s25, s25, 10")
    e("s_add_u32 s25, s25, s23")
    e("s_lshr_b32 s29, s9, 2"); e("s_and_b32 s29, s29, 1"); e("s_lshl_b32 s29, s29, 9")
    e("s_add_u32 s25, s25, s29")
    e("s_and_b32 s29, s9, 3"); e("s_lshl_b32 s29, s29, 2")
    e("s_add_u32 s25, s25, s29")
    e("s_mov_b64 s[32:33], %d" % (0 if force_slow else -1))
    for qi in range(4):
        O = A_O + 16 * qi
        e(f"v_mov_b32 v4, v{O+10}")
        e(f"v_mov_b32 v5, v{O+10}")
        e("s_nop 1")
        e("v_permlane32_swap_b32 v4, v5")
        e(f"v_cmp_le_f32 vcc, {hexf(2.0**-60)}, v4")
        e("s_and_b64 s[32:33], s[32:33], vcc")
        e(f"v_cmp_ge_f32 vcc, {hexf(2.0**100)}, v4")
        e("s_and_b64 s[32:33], s[32:33], vcc")
        e("v_rcp_f32 v5, v4")
        e("v_mov_b32 v6, 0")
        for r in range(10): e(f"v_mul_f32 v{O+r}, v{O+r}, v5")
        for r in range(10): e(f"v_fmac_f32 v6, 0, v{O+r}")
        e("v_cmp_o_f32 vcc, v6, v6")
        e("s_and_b64 s[32:33], s[32:33], vcc")
    e("s_cmp_eq_u32 s30, 0")
    e("s_cbranch_scc0 L3_attn_store")
    e("s_cmp_eq_u64 s[32:33], exec")
    e("s_cbranch_scc0 L3_attn_slow")
    e.label("L3_attn_store")
    e("v_and_b32 v4, 31, v0")
    e("v_lshlrev_b32 v4, 4, v4")
    for qi in range(4):
        O = A_O + 16 * qi
        t = A_P[0] + 8 * (qi % 4)
        for j in range(5): e(f"v_cvt_pk_bf16_f32 v{t+j}, v{O+2*j}, v{O+2*j+1}")
        e(f"buffer_store_dwordx4 {vr(t,4)}, v{A_K0OFF}, {R}, s24 offen")
        e("s_mov_b64 exec, 0xffffffff")
        e(f"buffer_store_dword v{t+4}, v4, {R}, s25 offen")
        e("s_mov_b64 exec, -1")
        if qi != 3:
            e("s_add_u32 s24, s24, 36864")
            e("s_add_u32 s25, s25, 36864")
    fin(e)
    e.label("L3_attn_slow")
    M = A_M
    e("s_mov_b32 s30, 1")
    e("s_mov_b32 s16, s26"); e("s_mov_b32 s17, s27"); e("s_mov_b32 s18, s28")
    for i in range(64): e(f"v_mov_b32 v{A_O+i}, 0")
    for qi in range(4): e(f"v_mov_b32 v{M+qi}, 0xff800000")
    e(f"s_mov_b32 s{SA_CNT}, 32")
    e.label("L3_attn_slow_loop")
    e("s_waitcnt vmcnt(0)")
    for x in attn_loads(0): e(x)
    e("s_waitcnt vmcnt(0)")
    for qi in range(4):
        S = A_S[0]; P = A_P[0]; O = A_O + 16 * qi
        X, Ma, Mb = qk(0, qi, S)
        e(X); e("s_nop 15"); e("s_nop 1"); e(Ma); e(Mb)
        e("s_nop 11")
        e(f"v_max3_f32 v4, v{S}, v{S+1}, v{S+2}")
        for i in range(3, 31, 2): e(f"v_max3_f32 v4, v4, v{S+i}, v{S+i+1}")
        e(f"v_max_f32 v4, v4, v{S+31}")
        e("v_mov_b32 v5, v4")
        e("s_nop 1")
        e("v_permlane32_swap_b32 v4, v5")
        e("v_max_f32 v4, v4, v5")
        e(f"v_max_f32 v4, v4, v{M+qi}")
        e(f"v_sub_f32 v5, v{M+qi}, v4")
        e("v_exp_f32 v5, v5")
        e(f"v_mov_b32 v{M+qi}, v4")
        for i in range(32): e(f"v_sub_f32 v{S+i}, v{S+i}, v4")
        for i in range(32): e(f"v_exp_f32 v{S+i}, v{S+i}")
        for i in range(16): e(f"v_mul_f32 v{O+i}, v{O+i}, v5")
        for j in range(16): e(f"v_cvt_pk_bf16_f32 v{P+j}, v{S+2*j}, v{S+2*j+1}")
        e("s_nop 1")
        for m in pv(0, qi, P): e(m)
        e("s_nop 11")
    e(f"s_sub_u32 s{SA_CNT}, s{SA_CNT}, 1")
    e(f"s_cmp_lg_u32 s{SA_CNT}, 0")
    e("s_cbranch_scc1 L3_attn_slow_loop")
    e("s_nop 7")
    e("s_branch L3_attn_fin")

def gen(force_slow=False, only=None):
    e = Emit()
    kernel_head(e, NAME)
    Diag.kid = 2
    e("s_cmp_ge_u32 s2, 256")
    e("s_cbranch_scc1 L3_exit")
    e(f"s_load_dwordx2 s[4:5], s[0:1], {KA_WS}")
    e("s_and_b32 s6, s2, 7")
    e("s_lshr_b32 s7, s2, 3")
    e("v_lshrrev_b32 v1, 6, v0")
    e("v_and_b32 v0, 63, v0")
    e(f"v_readfirstlane_b32 s{S_W}, v1")
    e("s_mov_b32 s30, 0")
    code_prefetch(e, NAME, "L3_exit", 3, vaddr=16, vtmp=17, vdst=20, sp=60)
    e("s_waitcnt lgkmcnt(0)")
    make_srd(e, S_SRD, 4, LY.WS_END)
    stamp(e, 0)
    dbg_start(e)
    e("s_cmp_lt_u32 s7, 16")
    if only == "mlp":
        e("s_cbranch_scc0 L3_exit")
    else:
        e("s_cbranch_scc0 L3_attn")
    if only == "attn":
        e("s_branch L3_exit")
    gen_mlp(e)
    gen_attn(e, force_slow)
    e.label("L3_exit")
    e("s_endpgm")
    return e.text()

if __name__ == "__main__":
    t = gen()
    errs = check(t, "l3")
    for x in errs: print(x)
    print("instrs", sum(1 for l in t.split("\n") if l.startswith("    ")), "hazard errs", len(errs))
    open("l3.s", "w").write(t)
```

```python
import sys, gen_common, build, gen_all
for a in sys.argv[2:]:
    if a == 'plain': build.PLAIN = True; continue
    if a == 'dbg': gen_common.Diag.dbg = True; continue
    k, v = a.split("="); setattr(gen_common.Opt, k, eval(v))
s = build.build(gen_all.kernels(), sys.argv[1])
print("wrote", sys.argv[1], len(s))
```

```python
import sys
import build, gen_l1b, gen_l1 as gen_l1a, gen_l2, gen_l3, gen_l4, gen_common
from asmlib import check
def kernels(**kw):
    gen_l1 = gen_l1b if gen_common.Opt.l1_8wave else gen_l1a
    blk = 512 if gen_common.Opt.l1_8wave else 256
    acc = gen_l1.NVGPR if gen_common.Opt.l1_8wave else gen_l1a.NACC
    ks = [(gen_l1.NAME, gen_l1.gen(), 256, blk, gen_l1.LDS_BYTES, gen_l1.NVGPR, acc),
          (gen_l2.NAME, gen_l2.gen(), 144 if gen_common.Opt.repack_l1 else 256, 256, gen_l2.LDS_BYTES, 400, 256),
          (gen_l3.NAME, gen_l3.gen(**kw), 256, 256, gen_l3.LDS_BYTES, 512, 256),
          (gen_l4.NAME, gen_l4.gen(), 256, 256, gen_l4.LDS_BYTES, 440, 256)]
    import re
    mod = getattr(gen_common, "STORE_MOD", "")
    if mod:
        ks = [(k[0], re.sub(r"(buffer_store_\w+ [^\n]*offen[^\n]*)", lambda m: m.group(1) + " " + mod, k[1]) if k[0] != "l4_kernel" else k[1]) + k[2:] for k in ks]
    for k in ks:
        errs = check(k[1], k[0])
        for x in errs: print(x)
        assert not errs
    return ks
if __name__ == "__main__":
    out = sys.argv[1] if len(sys.argv) > 1 else "gated_mix__softmax_full_mha__mixer_s_mlp__prompt.s"
    s = build.build(kernels(), out)
    print("wrote", out, len(s), "bytes")
```

```python
from asmlib import *
import layouts as LY
import math

KA_XA, KA_WQKV, KA_WO, KA_XB, KA_W1, KA_W2, KA_W3, KA_W4, KA_GW, KA_OUT, KA_DBG, KA_WS = [8*i for i in range(12)]
WS_SIZE = 268435456

def kernel_head(e, name):
    e(f".globl {name}")
    e(".p2align 8")
    e(f".type {name},@function")
    e.label(name)

def kernel_desc(name, vgpr, accum, sgpr=102):
    return f""".amdhsa_kernel {name}
  .amdhsa_next_free_vgpr {vgpr}
  .amdhsa_next_free_sgpr {sgpr}
  .amdhsa_accum_offset {accum}
  .amdhsa_group_segment_fixed_size 0
  .amdhsa_kernarg_size 96
  .amdhsa_user_sgpr_count 2
  .amdhsa_user_sgpr_kernarg_segment_ptr 1
  .amdhsa_system_sgpr_workgroup_id_x 1
  .amdhsa_float_denorm_mode_32 3
.end_amdhsa_kernel
"""

def make_srd(e, dst, ptr, size):
    if dst != ptr: e(f"s_mov_b32 s{dst}, s{ptr}")
    e(f"s_and_b32 s{dst+1}, s{ptr+1}, 0xffff")
    e(f"s_mov_b32 s{dst+2}, {size}")
    e(f"s_mov_b32 s{dst+3}, 0x20000")

GELU_C0 = -2.0 * math.sqrt(2.0 / math.pi) * math.log2(math.e)
GELU_C1 = GELU_C0 * 0.044715

class Diag:
    on = False
    kid = 0
    dbg = False
STAMP_BASE = 0x8000000
def stamp(e, i):
    if Diag.on:
        e(f"s_memrealtime s[{70+2*i}:{71+2*i}]")
        if i == 2: e("s_memtime s[92:93]")
        if i == 5: e("s_memtime s[94:95]")
        e("s_waitcnt lgkmcnt(0)")
def dbg_start(e):
    if Diag.dbg:
        e("s_memrealtime s[96:97]")
        e(f"s_load_dwordx2 s[98:99], s[0:1], {KA_DBG}")
        e("s_waitcnt lgkmcnt(0)")
def fin(e, wave_sgpr=8):
    if Diag.dbg:
        e("s_waitcnt vmcnt(0)")
        e("s_memrealtime s[100:101]")
        e("s_waitcnt lgkmcnt(0)")
        e("s_mov_b64 exec, 1")
        e(f"s_sub_u32 s98, s98, {512 * Diag.kid}"); e("s_subb_u32 s99, s99, 0")
        e("s_not_b32 s96, s96")
        e("v_mov_b32 v2, s96"); e("v_mov_b32 v3, s100"); e("v_mov_b32 v4, 0")
        e(f"global_atomic_umax v4, v2, s[98:99] offset:{16 * Diag.kid}")
        e(f"global_atomic_umax v4, v3, s[98:99] offset:{16 * Diag.kid + 4}")
    if Diag.on:
        stamp(e, 7)
        e("s_waitcnt vmcnt(0)")
        e("s_memrealtime s[86:87]")
        e("s_waitcnt lgkmcnt(0)")
        e("s_mov_b64 exec, -1")
        e(f"s_lshl_b32 s88, s2, 3"); e(f"s_add_u32 s88, s88, s{wave_sgpr}"); e("s_lshl_b32 s88, s88, 6")
        e(f"s_add_u32 s88, s88, {STAMP_BASE + Diag.kid * 0x20000}")
        for i in range(8): e(f"v_mov_b32 v{4+i}, s{70+2*i}")
        e("v_mov_b32 v12, s86")
        e("s_sub_u32 s94, s94, s92")
        e("v_mov_b32 v14, s94")
        e("v_mov_b32 v13, s88")
        e("global_store_dwordx4 v13, v[4:7], s[4:5] offset:0")
        e("global_store_dwordx4 v13, v[8:11], s[4:5] offset:16")
        e("global_store_dword v13, v12, s[4:5] offset:32")
        e("global_store_dword v13, v14, s[4:5] offset:36")
    e("s_endpgm")

class Opt:
    code_pf = False
    l1_8wave = True
    l1_touch = False
    late_touch = False
    late_sel = 'all'
    touch_in_loop = True
    touch_stages = (2, 5)
    rotate = False
    rotate2 = True
    touch64 = False
def code_prefetch(e, start_label, end_label, nblk, vaddr, vtmp, vdst, sp):
    if not Opt.code_pf: return
    lab = f"{start_label}_pc{len(e.L)}"
    e(f"s_getpc_b64 s[{sp}:{sp+1}]")
    e.label(lab)
    e(f"s_sub_u32 s{sp}, s{sp}, {lab}-{start_label}")
    e(f"s_subb_u32 s{sp+1}, s{sp+1}, 0")
    e(f"v_lshlrev_b32 v{vaddr}, 7, v0")
    for i in range(nblk):
        e(f"v_min_u32 v{vtmp}, {end_label}-{start_label}-4, v{vaddr}")
        e(f"global_load_dword v{vdst}, v{vtmp}, s[{sp}:{sp+1}]")
        if i + 1 < nblk: e(f"v_add_u32 v{vaddr}, 0x2000, v{vaddr}")

STORE_MOD = "sc1"
```

```python
from gen_common import *
NAME = "l1_kernel"
SLOT = 36864
GW_OFF = 4 * SLOT
XCH_OFF = GW_OFF + 2048
LDS_BYTES = XCH_OFF + 5120
S_WS = 12; S_X = 16; S_W = 20; S_GW = 24
V_L16 = 1
V_XO = 2
V_WO = 6
V_XA = 11
V_WA = 15
V_GA = 20
V_ST = 22
V_CS = 24
ACC = 32
XF = 112
WF = 128
GF = 208
EX0 = 224
EX1 = 240
AG_CS = 0
AG_ONE = 32
AG_CF = 36
V_WC = 21
NVGPR = 256 + 52
NACC = 256
QSCALE = math.log2(math.e) / math.sqrt(18.0)
S_WV, S_RB, S_CT, S_CQ = 8, 9, 10, 11
S_RS = 28
S_XO = 29
S_WO = 30
S_XM = 31
S_ST = 32
S_DL = 33
S_WSTEP = 34
S_SLX = 35
S_SLW = 38
S_T = 36
S_T2 = 37
S_KX, S_KW, S_KC, S_GD = 39, 64, 65, 66
S_WBACK, S_C128 = 60, 61

def dma_x():
    o = [[f"s_add_u32 m0, s{S_SLX}, s{S_XM}", "s_nop 0", f"buffer_load_dwordx4 v{V_XO}, s[{S_X}:{S_X+3}], s{S_XO} offen lds"]]
    for i in range(1, 4):
        o.append([f"buffer_load_dwordx4 v{V_XO+i}, s[{S_X}:{S_X+3}], s{S_XO} offen offset:{i*1024} lds"])
    o[-1] += [f"s_add_u32 s{S_KX}, s{S_KX}, 1", f"s_cmp_eq_u32 s{S_KX}, 9", f"s_cselect_b32 s{S_KX}, 0, s{S_KX}", f"s_cselect_b32 s69, {(-1024) & 0xffffffff}, s{S_C128}",
              f"s_add_u32 s{S_XO}, s{S_XO}, s69",
              f"s_add_u32 s{S_SLX}, s{S_SLX}, {SLOT}", f"s_cmp_eq_u32 s{S_SLX}, {4*SLOT}", f"s_cselect_b32 s{S_SLX}, 0, s{S_SLX}"]
    return o
def dma_w():
    o = [[f"s_add_u32 m0, s{S_SLW}, s{S_T}", "s_nop 0", f"buffer_load_dwordx4 v{V_WO}, s[{S_W}:{S_W+3}], s{S_WO} offen lds"]]
    for i in range(1, 4):
        o.append([f"buffer_load_dwordx4 v{V_WO+i}, s[{S_W}:{S_W+3}], s{S_WO} offen offset:{i*1024} lds"])
    o.append([f"s_add_u32 m0, m0, 4096", "s_nop 0", f"buffer_load_dwordx4 v{V_WO+4}, s[{S_W}:{S_W+3}], s{S_WO} offen lds",
              f"s_add_u32 s{S_KW}, s{S_KW}, 1", f"s_cmp_eq_u32 s{S_KW}, 9", f"s_cselect_b32 s{S_KW}, 0, s{S_KW}", f"s_cselect_b32 s69, s{S_WBACK}, s{S_WSTEP}",
              f"s_add_u32 s{S_WO}, s{S_WO}, s69",
              f"s_add_u32 s{S_SLW}, s{S_SLW}, {SLOT}", f"s_cmp_eq_u32 s{S_SLW}, {4*SLOT}", f"s_cselect_b32 s{S_SLW}, 0, s{S_SLW}"])
    return o

def reads(s, variant):
    o = [f"ds_read_b128 {vr(XF+4*s,4)}, v{V_XA+s}"]
    if variant == "q0": o.append(f"ds_read_b128 {vr(GF+4*s,4)}, v{V_GA} offset:{32*s}")
    for T in range(5):
        for q in range(2):
            o.append(f"ds_read_b64_tr_b16 {vr(WF+20*s+4*T+2*q,2)}, v{V_WA+T} offset:{(16*s+4*q)*320}")
    if variant == "h":
        for q in range(2):
            o.append(f"ds_read_b64_tr_b16 {ar(AG_CF+4*s+2*q,2)}, v{V_WC} offset:{(16*s+4*q)*320}")
    return o

def advance_addrs(variant):
    o = [f"v_add_u32 v{r}, s{S_DL}, v{r}" for r in list(range(V_XA, V_XA + 4)) + list(range(V_WA, V_WA + 5))]
    if variant == "h": o.append(f"v_add_u32 v{V_WC}, s{S_DL}, v{V_WC}")
    if variant == "q0":
        o += [f"s_add_u32 s{S_KC}, s{S_KC}, 1", f"s_cmp_eq_u32 s{S_KC}, 9", f"s_cselect_b32 s{S_KC}, 0, s{S_KC}",
              f"s_cselect_b32 s{S_GD}, {(-1024) & 0xffffffff}, s{S_C128}", f"v_add_u32 v{V_GA}, s{S_GD}, v{V_GA}"]
    return o

def main_loop(e, variant):
    lab = f"L1_loop_{variant}"
    nrd = {"q0": 12, "h": 13}.get(variant, 11)
    e(f"s_mov_b32 s{S_ST}, 0")
    e("s_waitcnt vmcnt(13)")
    e("s_barrier")
    stamp(e, 2)
    e.extend(reads(0, variant)); e.extend(reads(1, variant))
    e(".p2align 6")
    e.label(lab)
    dx = dma_x(); dw = dma_w()
    place = {(0, 0): dw[0], (0, 2): dw[1], (0, 4): dw[2], (1, 1): dw[3], (1, 3): dw[4], (2, 2): dx[0], (2, 4): dx[1], (3, 1): dx[2], (3, 3): dx[3]}
    for s in range(4):
        pre = []
        lt = False
        if s == 2:
            w = ["s_waitcnt vmcnt(9)"]
            if lt:
                w = [f"s_cmp_ge_u32 s{S_ST}, 6", f"s_cbranch_scc1 {lab}_w11", "s_waitcnt vmcnt(9)", f"s_branch {lab}_wb", f"{lab}_w11:",
                     f"s_cmp_eq_u32 s{S_ST}, 8", f"s_cbranch_scc1 {lab}_wb", "s_waitcnt vmcnt(11)", f"{lab}_wb:"]
            pre = w + ["s_barrier",
                   f"s_cmp_lt_u32 s{S_ST}, 6", f"s_cselect_b32 s{S_XO}, s{S_XO}, 0x40000000", f"s_cselect_b32 s{S_WO}, s{S_WO}, 0x40000000"]
        rd = reads((s + 2) % 4, variant)
        e(f"s_waitcnt lgkmcnt({nrd})")
        xf = vr(XF + 4 * s, 4)
        mfs = []
        for T in range(5):
            wf = vr(WF + 20 * s + 4 * T, 4); a = vr(ACC + 16 * T, 16)
            mfs.append(f"v_mfma_f32_32x32x16_bf16 {a}, {xf}, {wf}, {a}" if variant == "v" else f"v_mfma_f32_32x32x16_bf16 {a}, {wf}, {xf}, {a}")
        if variant == "q0":
            mfs.append(f"v_mfma_f32_32x32x16_bf16 {vr(EX0,16)}, {vr(GF+4*s,4)}, {xf}, {vr(EX0,16)}")
        if variant == "h":
            mfs.append(f"v_mfma_f32_32x32x16_bf16 {vr(EX0,16)}, {ar(AG_ONE,4)}, {xf}, {vr(EX0,16)}")
            mfs.append(f"v_mfma_f32_32x32x16_bf16 {vr(EX1,16)}, {xf}, {xf}, {vr(EX1,16)}")
            mfs.append(f"v_mfma_f32_32x32x16_bf16 {ar(AG_CS,16)}, {ar(AG_CF+4*s,4)}, {ar(AG_ONE,4)}, {ar(AG_CS,16)}")
            mfs.append(f"v_mfma_f32_32x32x16_bf16 {ar(AG_CS+16,16)}, {vr(WF+20*s+16,4)}, {ar(AG_ONE,4)}, {ar(AG_CS+16,16)}")
        n = len(rd); nm = len(mfs)
        per = (n + nm - 2) // (nm - 1)
        for T in range(nm):
            e(mfs[T])
            if T == 0: e.extend(pre)
            e.extend(rd[T * per:(T + 1) * per])
            e.extend(place.get((s, T), []))
        if s == 1 and lt:
            e(f"s_cmp_eq_u32 s{S_ST}, 6"); e(f"s_cbranch_scc0 {lab}_nt")
            e.extend(late_issue())
            e.label(f"{lab}_nt")
        if s == 1:
            e(f"s_add_u32 s{S_T2}, s{S_ST}, 1")
            e(f"s_and_b32 s{S_DL}, s{S_T2}, 3")
            e(f"s_cmp_eq_u32 s{S_DL}, 0")
            e(f"s_cselect_b32 s{S_DL}, s68, s67")
            e.extend(advance_addrs(variant))
    e(f"s_add_u32 s{S_ST}, s{S_ST}, 1")
    e(f"s_cmp_lt_u32 s{S_ST}, 9")
    e(f"s_cbranch_scc1 {lab}")
    stamp(e, 3)
    e("s_waitcnt lgkmcnt(0)")
    e("s_nop 7")

def setup_common(e):
    for i in range(4):
        e("v_lshrrev_b32 v21, 3, v0"); e(f"v_add_u32 v21, {8*i}, v21")
        e("v_lshrrev_b32 v22, 1, v21"); e("v_and_b32 v22, 7, v22"); e("v_and_b32 v23, 7, v0"); e("v_xor_b32 v22, v22, v23")
        e("v_mul_u32_u24 v21, 1152, v21"); e("v_lshlrev_b32 v22, 4, v22"); e("v_add_u32 v21, v21, v22")
        e(f"v_subrev_u32 v{V_XO+i}, {1024*i}, v21")
    e(f"s_mul_i32 s{S_T}, s{S_WV}, 320")
    for i in range(5):
        e(f"v_add_u32 v21, s{S_T}, v0"); e(f"v_add_u32 v21, {64*i}, v21")
        e("v_mul_u32_u24 v22, 3277, v21"); e("v_lshrrev_b32 v22, 16, v22")
        e("v_mul_u32_u24 v23, 20, v22"); e("v_sub_u32 v23, v21, v23")
        e(f"v_mul_lo_u32 v22, v22, s{S_RS}")
        e("v_cmp_lt_u32 vcc, 17, v23"); e("v_subrev_u32 v24, 2, v23"); e("s_nop 0"); e("v_cndmask_b32 v24, v23, v24, vcc")
        e("v_lshlrev_b32 v24, 4, v24"); e("v_add_u32 v22, v22, v24")
        if i % 4: e(f"v_subrev_u32 v22, {1024*(i%4)}, v22")
        e("v_and_b32 v24, 30, v23"); e("v_cmp_eq_u32 vcc, 16, v24"); e("v_mov_b32 v25, 0x40000000"); e("s_nop 0")
        e(f"v_cndmask_b32 v{V_WO+i}, v22, v25, vcc")
    e("v_and_b32 v21, 31, v0"); e("v_lshrrev_b32 v22, 5, v0")
    e("v_lshrrev_b32 v23, 1, v21"); e("v_and_b32 v23, 7, v23"); e("v_xor_b32 v23, v23, v22"); e("v_lshlrev_b32 v23, 4, v23")
    e("v_lshlrev_b32 v24, 7, v21"); e("v_add_u32 v23, v23, v24")
    e(f"s_lshl_b32 s{S_XM}, s{S_WV}, 12"); e(f"v_add_u32 v{V_XA}, s{S_XM}, v23")
    for s in range(1, 4): e(f"v_xor_b32 v{V_XA+s}, {32*s}, v{V_XA}")
    e(f"s_mul_i32 s{S_T}, s{S_WV}, 5120"); e(f"s_add_u32 s{S_T}, s{S_T}, 16384")

def lane_parts(e):
    e("v_lshrrev_b32 v21, 5, v0"); e("v_bfe_u32 v22, v0, 4, 1"); e("v_bfe_u32 v23, v0, 2, 2"); e("v_and_b32 v24, 3, v0")
    e("v_and_b32 v25, 1, v0"); e("v_lshlrev_b32 v25, 1, v25"); e("v_bfe_u32 v26, v0, 1, 1"); e("v_or_b32 v25, v25, v26")
    e("v_lshlrev_b32 v26, 3, v21"); e("v_add_u32 v26, v26, v23"); e("v_mul_u32_u24 v26, 320, v26"); e("v_add_u32 v26, 16384, v26")

def waddr_heads(e, swap):
    lane_parts(e)
    q = 25 if swap else 24
    e(f"v_lshlrev_b32 v27, 3, v{q}"); e("v_add_u32 v27, v27, v26")
    e("v_mul_u32_u24 v28, 288, v22"); e(f"v_add_u32 v{V_WA}, v27, v28")
    e("v_lshlrev_b32 v28, 5, v22"); e("v_add_u32 v27, v27, v28")
    for T in range(1, 4): e(f"v_add_u32 v{V_WA+T}, {40+72*(T-1)}, v27")
    e("v_mul_u32_u24 v28, 72, v24"); e("v_add_u32 v28, v28, v26"); e(f"v_add_u32 v{V_WA+4}, 32, v28")
def waddr_dense(e):
    lane_parts(e)
    e("v_lshlrev_b32 v27, 3, v25"); e("v_add_u32 v27, v27, v26")
    e(f"v_add_u32 v{V_WA+4}, 288, v27")
    e("v_lshlrev_b32 v28, 5, v22"); e("v_add_u32 v27, v27, v28")
    for T in range(4): e(f"v_add_u32 v{V_WA+T}, {64*T}, v27")

def touches(e):
    e(f"s_lshl_b32 s{S_T}, s7, 2"); e(f"s_add_u32 s{S_T}, s{S_T}, s{S_WV}"); e(f"s_lshl_b32 s{S_T}, s{S_T}, 6")
    e(f"v_add_u32 v28, s{S_T}, v0")
    e("v_mul_u32_u24 v29, 7282, v28"); e("v_lshrrev_b32 v29, 16, v29")
    e("v_mul_u32_u24 v30, 9, v29"); e("v_sub_u32 v30, v28, v30"); e("v_lshlrev_b32 v30, 7, v30")
    e(f"v_mul_lo_u32 v29, v29, s{S_RS}"); e("v_add_u32 v29, v29, v30")
    e("s_cmp_eq_u32 s3, 3"); e("s_cselect_b32 s69, 0, s3"); e("s_mul_i32 s69, s69, 1152")
    e(f"buffer_load_dword v31, v29, s[{S_W}:{S_W+3}], s69 offen")
    if Opt.touch64: e(f"buffer_load_dword v31, v29, s[{S_W}:{S_W+3}], s69 offen offset:64")
    e("v_lshlrev_b32 v29, 7, v28"); e("s_and_b32 s69, s6, 1"); e("s_mul_i32 s69, s69, 1179648")
    e(f"buffer_load_dword v31, v29, s[{S_X}:{S_X+3}], s69 offen")
    if Opt.touch64: e(f"buffer_load_dword v31, v29, s[{S_X}:{S_X+3}], s69 offen offset:64")
    e("s_cmp_lt_u32 s7, 4"); e("s_cbranch_scc0 L1_touch_done")
    e("s_add_u32 s69, s69, 1048576")
    e(f"buffer_load_dword v31, v29, s[{S_X}:{S_X+3}], s69 offen")
    if Opt.touch64: e(f"buffer_load_dword v31, v29, s[{S_X}:{S_X+3}], s69 offen offset:64")
    e.label("L1_touch_done")

def zero_acc(e, variant):
    for i in range(4): e(f"v_mov_b32 v{XF+i}, 0")
    if variant == "h":
        for i in range(4): e(f"v_accvgpr_write_b32 a{AG_ONE+i}, s40")
    e("s_nop 1")
    z = vr(XF, 4)
    for T in range(5): e(f"v_mfma_f32_32x32x16_bf16 {vr(ACC+16*T,16)}, {z}, {z}, 0")
    if variant in ("q0", "h"): e(f"v_mfma_f32_32x32x16_bf16 {vr(EX0,16)}, {z}, {z}, 0")
    if variant == "h":
        e(f"v_mfma_f32_32x32x16_bf16 {vr(EX1,16)}, {z}, {z}, 0")
        e(f"v_mfma_f32_32x32x16_bf16 {ar(AG_CS,16)}, {z}, {z}, 0")
        e(f"v_mfma_f32_32x32x16_bf16 {ar(AG_CS+16,16)}, {z}, {z}, 0")

def late_setup(e):
    if not Opt.late_touch: return
    e(f"s_load_dwordx2 s[52:53], s[0:1], {KA_W3}"); e(f"s_load_dwordx2 s[54:55], s[0:1], {KA_W4}")
    e(f"s_load_dwordx2 s[56:57], s[0:1], {KA_W2}"); e(f"s_load_dwordx2 s[58:59], s[0:1], {KA_WO}")
    e(f"s_lshl_b32 s44, s{S_WV}, 6"); e("v_add_u32 v30, s44, v0"); e("v_lshlrev_b32 v30, 7, v30")
    e(f"s_lshl_b32 s69, s{S_CT}, 4"); e(f"s_add_u32 s69, s69, s{S_RB}")
    e("s_waitcnt lgkmcnt(0)")
    for rep, (srd, so) in enumerate(((44, 62), (48, 63))):
        if rep == 1: e("s_add_u32 s69, s69, 192")
        e(f"s_mov_b32 s{srd}, s52"); e(f"s_mov_b32 s{srd+1}, s53"); e(f"s_mov_b32 s{srd+2}, {576*4608*2}"); e(f"s_mov_b32 s{so}, s69")
        for lo, p, size in ((162, 54, 576*4608*2), (324, 56, 576*576*2), (345, 58, 576*576*2)):
            e(f"s_cmp_ge_u32 s69, {lo}")
            e(f"s_cselect_b32 s{srd}, s{p}, s{srd}"); e(f"s_cselect_b32 s{srd+1}, s{p+1}, s{srd+1}")
            if size != 576*4608*2:
                e(f"s_cselect_b32 s{srd+2}, {size}, s{srd+2}")
            e(f"s_cselect_b32 s{S_T2}, {lo}, 0");
            e(f"s_sub_u32 s{S_T2}, s69, s{S_T2}"); e(f"s_cmp_ge_u32 s69, {lo}"); e(f"s_cselect_b32 s{so}, s{S_T2}, s{so}")
        e(f"s_and_b32 s{srd+1}, s{srd+1}, 0xffff"); e(f"s_mov_b32 s{srd+3}, 0x20000")
        e(f"s_lshl_b32 s{so}, s{so}, 15")
def late_issue():
    return ["buffer_load_dword v31, v30, s[44:47], s62 offen", "buffer_load_dword v31, v30, s[48:51], s63 offen"]

def prologue_rot(e):
    e("s_and_b32 s69, s7, 3"); e("s_lshl_b32 s69, s69, 1"); e(f"s_lshr_b32 s{S_KX}, s7, 2"); e(f"s_add_u32 s{S_KX}, s{S_KX}, s69")
    e(f"s_cmp_ge_u32 s{S_KX}, 9"); e(f"s_cselect_b32 s69, 9, 0"); e(f"s_sub_u32 s{S_KX}, s{S_KX}, s69")
    if not Opt.rotate: e(f"s_mov_b32 s{S_KX}, 0")
    e(f"s_mov_b32 s{S_KW}, s{S_KX}"); e(f"s_mov_b32 s{S_KC}, s{S_KX}")
    e(f"s_lshl_b32 s69, s{S_KX}, 7"); e(f"s_add_u32 s{S_XO}, s{S_XO}, s69")
    e(f"s_mul_i32 s69, s{S_KX}, s{S_WSTEP}"); e(f"s_add_u32 s{S_WO}, s{S_WO}, s69")
    e(f"s_mul_i32 s{S_WBACK}, s{S_WSTEP}, -8"); e(f"s_movk_i32 s{S_C128}, 128")

def prologue_dma(e):
    e(f"s_mov_b32 s{S_SLX}, 0"); e(f"s_mov_b32 s{S_SLW}, 0")
    for st in range(3):
        for grp in dma_x(): e.extend(grp)
        if st < 2:
            for grp in dma_w(): e.extend(grp)
    stamp(e, 1)

HEADS = [(0, 7), (1, 2), (3, 4), (5, 6)]
def epi_qk(e, gate):
    e(f"s_lshl_b32 s44, s{S_RB}, 2"); e(f"s_add_u32 s44, s44, s{S_WV}")
    e(f"s_lshl_b32 s45, s{S_CQ}, 3")
    e("s_lshl_b32 s46, s45, 16"); e("s_lshl_b32 s47, s44, 10"); e("s_add_u32 s46, s46, s47"); e("s_add_u32 s46, s46, s42")
    P = 112
    for T in range(4):
        for i in range(16): e(f"v_mul_f32 v{ACC+16*T+i}, s41, v{ACC+16*T+i}")
        for hh in range(2):
            p = P + 8 * (T % 2) + 4 * hh
            for j in range(4): e(f"v_cvt_pk_bf16_f32 v{p+j}, v{ACC+16*T+8*hh+2*j}, v{ACC+16*T+8*hh+2*j+1}")
            e(f"s_add_u32 s47, s46, {HEADS[T][hh]*65536}")
            e(f"buffer_store_dwordx4 {vr(p,4)}, v{V_L16}, s[{S_WS}:{S_WS+3}], s47 offen")
    for i in range(8): e(f"v_mul_f32 v{ACC+64+i}, s41, v{ACC+64+i}")
    for j in range(4): e(f"v_cvt_pk_bf16_f32 v{128+j}, v{ACC+64+2*j}, v{ACC+64+2*j+1}")
    e("v_and_b32 v21, 31, v0"); e("v_lshlrev_b32 v21, 2, v21"); e("v_lshrrev_b32 v29, 5, v0"); e("v_lshlrev_b32 v29, 14, v29"); e("v_add_u32 v21, v21, v29")
    e("s_lshl_b32 s46, s45, 13"); e("s_lshl_b32 s47, s44, 7"); e("s_add_u32 s46, s46, s47"); e("s_add_u32 s46, s46, s43")
    for j, hoff in enumerate([0, 1, 4, 5]):
        e(f"s_add_u32 s47, s46, {hoff*8192}")
        e(f"buffer_store_dword v{128+j}, v21, s[{S_WS}:{S_WS+3}], s47 offen")
    if gate:
        e(f"v_mul_f32 v23, {hexf(-math.log2(math.e))}, v{EX0}"); e("v_exp_f32 v23, v23"); e("s_nop 0"); e("v_add_f32 v23, 1.0, v23"); e("v_rcp_f32 v23, v23")
        e("v_and_b32 v21, 31, v0"); e("v_lshlrev_b32 v21, 2, v21")
        e("s_lshl_b32 s47, s44, 7"); e(f"s_add_u32 s47, s47, {LY.G}")
        e("s_mov_b64 exec, 0xffffffff")
        e(f"buffer_store_dword v23, v21, s[{S_WS}:{S_WS+3}], s47 offen")
        e("s_mov_b64 exec, -1")
    if Opt.late_touch:
        late_setup(e); e.extend(late_issue())
    fin(e)

def epi_v(e):
    e(f"s_lshl_b32 s44, s{S_RB}, 2"); e(f"s_add_u32 s44, s44, s{S_WV}")
    e(f"s_lshl_b32 s45, s{S_CQ}, 3")
    e(f"s_mul_i32 s46, s45, {LY.VHEAD}"); e("s_mul_i32 s47, s44, 1216"); e("s_add_u32 s46, s46, s47"); e(f"s_add_u32 s46, s46, {LY.VF}")
    e("v_lshrrev_b32 v21, 5, v0"); e("v_mul_u32_u24 v21, 304, v21")
    e("v_and_b32 v22, 15, v0"); e("v_lshlrev_b32 v22, 4, v22"); e("v_add_u32 v22, v22, v21")
    e("v_bfe_u32 v23, v0, 4, 1")
    e(f"s_mov_b32 s47, {LY.VHEAD}")
    e("v_mul_lo_u32 v24, v23, s47")
    e("v_add_u32 v25, v22, v24")
    e("v_mul_u32_u24 v24, 7, v24"); e("v_add_u32 v26, v22, v24")
    P = 112
    for T in range(4):
        ad = 26 if T == 0 else 25
        hb = 0 if T == 0 else HEADS[T][0]
        e(f"s_add_u32 s47, s46, {hb*LY.VHEAD}")
        for hh in range(2):
            p = P + 8 * (T % 2) + 4 * hh
            for j in range(4): e(f"v_cvt_pk_bf16_f32 v{p+j}, v{ACC+16*T+8*hh+2*j}, v{ACC+16*T+8*hh+2*j+1}")
            e(f"buffer_store_dwordx4 {vr(p,4)}, v{ad}, s[{S_WS}:{S_WS+3}], s47 offen offset:{608*hh}")
    e("v_and_b32 v22, 31, v0")
    e("v_lshrrev_b32 v23, 2, v22"); e("v_lshlrev_b32 v23, 1, v23"); e("v_bfe_u32 v24, v22, 1, 1"); e("v_add_u32 v23, v23, v24")
    e("v_and_b32 v24, 1, v22"); e("v_add_u32 v24, 16, v24")
    e("v_cmp_lt_u32 vcc, 15, v22"); e("v_subrev_u32 v25, 16, v22"); e("v_mov_b32 v27, 18")
    e("v_cndmask_b32 v23, v23, v25, vcc"); e("v_cndmask_b32 v24, v24, v27, vcc")
    e(f"s_mov_b32 s47, {LY.VHEAD}"); e("v_mul_lo_u32 v23, v23, s47"); e("v_lshlrev_b32 v24, 4, v24"); e("v_add3_u32 v23, v23, v24, v21")
    e("v_mov_b32 v27, 0x3f803f80")
    for hh in range(2):
        for j in range(4):
            e(f"v_cvt_pk_bf16_f32 v{128+4*hh+j}, v{ACC+64+8*hh+2*j}, v{ACC+64+8*hh+2*j+1}")
            e(f"v_cndmask_b32 v{128+4*hh+j}, v{128+4*hh+j}, v27, vcc")
    e("v_cmp_gt_u32 vcc, 24, v22"); e("s_nop 1")
    e("s_and_saveexec_b64 s[48:49], vcc")
    for hh in range(2):
        e(f"buffer_store_dwordx4 {vr(128+4*hh,4)}, v23, s[{S_WS}:{S_WS+3}], s46 offen offset:{608*hh}")
    if Opt.late_touch:
        e("s_mov_b64 exec, -1")
        late_setup(e); e.extend(late_issue())
    fin(e)

def epi_h(e):
    e("v_lshrrev_b32 v21, 5, v0"); e("v_lshlrev_b32 v21, 4, v21"); e(f"v_add_u32 v29, {XCH_OFF}, v21")
    e(f"s_lshl_b32 s44, s{S_WV}, 7"); e("v_add_u32 v28, s44, v29")
    e("s_mov_b32 exec_lo, 1"); e("s_mov_b32 exec_hi, 1")
    for j in range(4): e(f"ds_write_b128 v28, {ar(AG_CS+4*j,4)} offset:{32*j}")
    for j in range(2): e(f"ds_write_b128 v29, {ar(AG_CS+16+4*j,4)} offset:{512+32*j}")
    e("s_mov_b64 exec, -1")
    for b, (bit, sp) in enumerate(((0, 44), (1, 46), (3, 48), (4, 52))):
        e(f"v_bfe_u32 v28, v0, {bit}, 1"); e(f"v_cmp_eq_u32 s[{sp}:{sp+1}], 1, v28")
    e("v_bfe_u32 v28, v0, 2, 1"); e("v_lshrrev_b32 v27, 5, v0"); e("v_cmp_eq_u32 vcc, v27, v28")
    e("s_nop 0")
    for i in range(8): e(f"v_cndmask_b32 v{EX1+i}, v{EX1+2*i}, v{EX1+2*i+1}, s[44:45]")
    for i in range(4): e(f"v_cndmask_b32 v{EX1+i}, v{EX1+2*i}, v{EX1+2*i+1}, s[46:47]")
    for i in range(2): e(f"v_cndmask_b32 v{EX1+i}, v{EX1+2*i}, v{EX1+2*i+1}, s[48:49]")
    e(f"v_cndmask_b32 v{EX1}, v{EX1}, v{EX1+1}, s[52:53]")
    e(f"v_cndmask_b32 v{V_ST+1}, 0, v{EX1}, vcc")
    e(f"v_mov_b32 v28, v{V_ST+1}"); e(f"v_mul_f32 v{V_ST}, {hexf(1/576)}, v{EX0}"); e("s_nop 0")
    e(f"v_permlane32_swap_b32 v28, v{V_ST+1}")
    e(f"v_add_f32 v{V_ST+1}, v28, v{V_ST+1}")
    e(f"v_mul_f32 v{V_ST+1}, {hexf(1/576)}, v{V_ST+1}")
    e(f"v_fma_f32 v{V_ST+1}, -v{V_ST}, v{V_ST}, v{V_ST+1}"); e(f"v_max_f32 v{V_ST+1}, 0, v{V_ST+1}"); e(f"v_add_f32 v{V_ST+1}, {hexf(1e-5)}, v{V_ST+1}")
    SG, RR, AA, BB, MM = 118, 119, 120, 122, 124
    e(f"v_sqrt_f32 v{SG}, v{V_ST+1}"); e("s_nop 0"); e(f"v_rcp_f32 v{RR}, v{SG}"); e("s_nop 0")
    e(f"v_mul_f32 v{BB}, {hexf(GELU_C0)}, v{RR}"); e(f"v_mul_f32 v{AA}, v{RR}, v{RR}"); e(f"v_mul_f32 v{AA}, v{AA}, v{RR}"); e(f"v_mul_f32 v{AA}, {hexf(GELU_C1)}, v{AA}")
    e(f"v_mov_b32 v{AA+1}, v{AA}"); e(f"v_mov_b32 v{BB+1}, v{BB}"); e(f"v_mov_b32 v126, v{SG}"); e(f"v_mov_b32 v127, v{SG}")
    e(f"v_sub_f32 v{MM}, 0, v{V_ST}"); e(f"v_mov_b32 v{MM+1}, v{MM}")
    e("s_waitcnt lgkmcnt(0)"); e("s_barrier")
    e(f"s_lshl_b32 s45, s{S_RB}, 7"); e(f"s_lshl_b32 s46, s{S_WV}, 5"); e("s_add_u32 s45, s45, s46")
    e(f"s_lshr_b32 s46, s{S_CQ}, 1"); e("s_add_u32 s46, s46, 1"); e("s_sub_u32 s47, 0, s46"); e(f"s_bitcmp1_b32 s{S_CQ}, 0"); e("s_cselect_b32 s46, s47, s46")
    e("s_add_u32 s45, s45, s46")
    e("v_and_b32 v21, 31, v0"); e("v_add_u32 v21, s45, v21")
    e("v_cmp_gt_u32 vcc, 2048, v21")
    e("v_and_b32 v21, 2047, v21")
    e("v_lshrrev_b32 v30, 5, v21"); e("s_mov_b32 s47, 36864"); e("v_mul_lo_u32 v30, v30, s47")
    e("v_and_b32 v21, 31, v21"); e("v_lshlrev_b32 v21, 4, v21"); e("v_add_u32 v30, v30, v21")
    e("v_lshrrev_b32 v21, 5, v0"); e("v_lshlrev_b32 v21, 9, v21"); e("v_add_u32 v30, v30, v21")
    e("s_mov_b64 s[50:51], vcc")
    e(f"s_mul_i32 s47, s{S_CQ}, 9216"); e(f"s_add_u32 s47, s47, {LY.HS}")
    CS = 128; TT = 144
    def pk(op, d, a, b, c=None):
        s = f"v_pk_{op}_f32 {vr(d,2)}, {vr(a,2)}, {vr(b,2)}"
        if c is not None: s += f", {vr(c,2)}"
        return s
    u = 0
    for T in range(5):
        nj = 4 if T < 4 else 2
        for j in range(nj): e(f"ds_read_b128 {vr(CS+4*j,4)}, v29 offset:{128*T+32*j}")
        e("s_waitcnt lgkmcnt(0)")
        for half in range(nj // 2):
            a = ACC + 16 * T + 8 * half; cs = CS + 8 * half
            for i in range(0, 8, 2): e(pk("fma", a + i, MM, cs + i, a + i))
            for i in range(0, 8, 2): e(pk("mul", TT + i, a + i, a + i))
            for i in range(0, 8, 2): e(pk("fma", TT + i, TT + i, AA, BB))
            for i in range(0, 8, 2): e(pk("mul", TT + i, a + i, TT + i))
            for i in range(8): e(f"v_exp_f32 v{TT+i}, v{TT+i}")
            for i in range(0, 8, 2): e(pk("fma", TT + i, TT + i, 126, 126))
            for i in range(8): e(f"v_rcp_f32 v{TT+i}, v{TT+i}")
            for i in range(0, 8, 2): e(pk("mul", a + i, a + i, TT + i))
            p = 152 + 4 * (u % 2)
            for j in range(4): e(f"v_cvt_pk_bf16_f32 v{p+j}, v{a+2*j}, v{a+2*j+1}")
            for j in range(4): e(f"v_cndmask_b32 v{p+j}, 0, v{p+j}, s[50:51]")
            e(f"buffer_store_dwordx4 {vr(p,4)}, v30, s[{S_WS}:{S_WS+3}], s47 offen offset:{(u%4)*1024}")
            if u % 4 == 3: e("s_add_u32 s47, s47, 4096")
            u += 1
    fin(e)

def gen():
    e = Emit()
    kernel_head(e, NAME)
    Diag.kid = 0
    e("s_cmp_ge_u32 s2, 256")
    e("s_cbranch_scc1 L1_exit")
    e(f"s_load_dwordx2 s[4:5], s[0:1], {KA_WS}")
    e(f"s_load_dwordx4 s[52:55], s[0:1], {KA_XA}")
    e(f"s_load_dwordx2 s[58:59], s[0:1], {KA_W1}")
    e(f"s_load_dwordx2 s[60:61], s[0:1], {KA_GW}")
    e("s_and_b32 s6, s2, 7"); e("s_lshr_b32 s7, s2, 3")
    e("v_lshrrev_b32 v1, 6, v0"); e("v_and_b32 v0, 63, v0")
    e(f"v_readfirstlane_b32 s{S_WV}, v1")
    e(f"s_and_b32 s{S_RB}, s6, 3"); e(f"s_lshl_b32 s{S_RB}, s{S_RB}, 2"); e("s_and_b32 s3, s7, 3"); e(f"s_add_u32 s{S_RB}, s{S_RB}, s3")
    e(f"s_lshr_b32 s{S_CQ}, s6, 2"); e(f"s_lshl_b32 s{S_CQ}, s{S_CQ}, 1"); e("s_bfe_u32 s3, s7, 0x10002"); e(f"s_add_u32 s{S_CQ}, s{S_CQ}, s3")
    e("s_lshr_b32 s3, s7, 3"); e(f"s_lshl_b32 s{S_CT}, s3, 2"); e(f"s_add_u32 s{S_CT}, s{S_CT}, s{S_CQ}")
    e(f"v_lshlrev_b32 v{V_L16}, 4, v0")
    code_prefetch(e, NAME, "L1_exit", 2, vaddr=28, vtmp=29, vdst=31, sp=62)
    e("s_waitcnt lgkmcnt(0)")
    make_srd(e, S_WS, 4, LY.WS_END)
    stamp(e, 0)
    e("s_cmp_eq_u32 s3, 3")
    e("s_cselect_b32 s64, s58, s54"); e("s_cselect_b32 s65, s59, s55")
    e(f"s_movk_i32 s{S_RS}, 3456"); e(f"s_cselect_b32 s{S_RS}, 1152, s{S_RS}")
    e(f"s_mov_b32 s67, {SLOT}"); e(f"s_mov_b32 s68, {(-3*SLOT) & 0xffffffff}")
    e(f"s_cselect_b32 s66, s{S_CQ}, s{S_CT}")
    make_srd(e, S_X, 52, 2048 * 576 * 2)
    e(f"s_mov_b32 s{S_W}, s64"); e(f"s_and_b32 s{S_W+1}, s65, 0xffff"); e(f"s_mul_i32 s{S_W+2}, s{S_RS}, 576"); e(f"s_mov_b32 s{S_W+3}, 0x20000")
    make_srd(e, S_GW, 60, 1152)
    e(f"s_lshl_b32 s{S_XO}, s{S_RB}, 2"); e(f"s_add_u32 s{S_XO}, s{S_XO}, s{S_WV}"); e(f"s_mul_i32 s{S_XO}, s{S_XO}, 36864")
    e(f"s_mul_i32 s{S_WO}, s66, 288")
    e(f"s_lshl_b32 s{S_WSTEP}, s{S_RS}, 6")
    if Opt.l1_touch: touches(e)
    prologue_rot(e)
    setup_common(e)
    e("s_mov_b32 s40, 0x3f803f80")
    e("s_cmp_eq_u32 s3, 2"); e("s_cbranch_scc1 L1_v")
    e("s_cmp_eq_u32 s3, 3"); e("s_cbranch_scc1 L1_h")
    e(f"s_cmp_eq_u32 s{S_CT}, 0"); e("s_cbranch_scc0 L1_qk")
    e(f"s_mov_b32 m0, {GW_OFF}"); e("s_nop 0")
    e(f"buffer_load_dwordx4 v{V_L16}, s[{S_GW}:{S_GW+3}], 0 offen lds")
    e(f"buffer_load_dwordx4 v{V_L16}, s[{S_GW}:{S_GW+3}], 0 offen offset:1024 lds")
    for variant in ("q0", "qk"):
        if variant == "qk": e.label("L1_qk")
        prologue_dma(e)
        waddr_heads(e, True)
        if variant == "q0":
            e("v_lshrrev_b32 v21, 5, v0"); e("v_lshlrev_b32 v21, 4, v21"); e(f"v_add_u32 v{V_GA}, {GW_OFF}, v21")
            e(f"s_lshl_b32 s69, s{S_KC}, 7"); e(f"v_add_u32 v{V_GA}, s69, v{V_GA}")
        zero_acc(e, variant)
        e("s_cmp_eq_u32 s3, 0")
        e(f"s_cselect_b32 s41, {hexf(QSCALE)}, 1.0"); e(f"s_mov_b32 s42, {LY.KF0}"); e(f"s_cselect_b32 s42, {LY.QF0}, s42"); e(f"s_mov_b32 s43, {LY.KX}"); e(f"s_cselect_b32 s43, {LY.QX}, s43")
        main_loop(e, variant)
        epi_qk(e, variant == "q0")
    e.label("L1_v")
    prologue_dma(e)
    waddr_heads(e, False)
    zero_acc(e, "v")
    main_loop(e, "v")
    epi_v(e)
    e.label("L1_h")
    prologue_dma(e)
    waddr_dense(e)
    e(f"s_lshl_b32 s69, s{S_WV}, 6"); e(f"v_add_u32 v{V_WC}, s69, v{V_WA}")
    zero_acc(e, "h")
    main_loop(e, "h")
    epi_h(e)
    e.label("L1_exit")
    e("s_endpgm")
    return e.text()
if __name__ == "__main__":
    t = gen()
    errs = check(t, "l1")
    for x in errs: print(x)
    print("instrs", sum(1 for l in t.split("\n") if l.startswith("    ")), "hazard errs", len(errs))
    assert all((n*3277)>>16 == n//20 for n in range(1280))
    open("l1.s","w").write(t)
```

```python
from asmlib import *
import layouts as LY
import math

KA_XA, KA_WQKV, KA_WO, KA_XB, KA_W1, KA_W2, KA_W3, KA_W4, KA_GW, KA_OUT, KA_DBG, KA_WS = [8*i for i in range(12)]
WS_SIZE = 268435456

def kernel_head(e, name):
    e(f".globl {name}")
    e(".p2align 8")
    e(f".type {name},@function")
    e.label(name)

def kernel_desc(name, vgpr, accum, sgpr=102):
    return f""".amdhsa_kernel {name}
  .amdhsa_next_free_vgpr {vgpr}
  .amdhsa_next_free_sgpr {sgpr}
  .amdhsa_accum_offset {accum}
  .amdhsa_group_segment_fixed_size 0
  .amdhsa_kernarg_size 96
  .amdhsa_user_sgpr_count 2
  .amdhsa_user_sgpr_kernarg_segment_ptr 1
  .amdhsa_system_sgpr_workgroup_id_x 1
  .amdhsa_float_denorm_mode_32 3
.end_amdhsa_kernel
"""

def make_srd(e, dst, ptr, size):
    if dst != ptr: e(f"s_mov_b32 s{dst}, s{ptr}")
    e(f"s_and_b32 s{dst+1}, s{ptr+1}, 0xffff")
    e(f"s_mov_b32 s{dst+2}, {size}")
    e(f"s_mov_b32 s{dst+3}, 0x20000")

GELU_C0 = -2.0 * math.sqrt(2.0 / math.pi) * math.log2(math.e)
GELU_C1 = GELU_C0 * 0.044715

class Diag:
    on = False
    kid = 0
    dbg = False
STAMP_BASE = 0x8000000
def stamp(e, i):
    if Diag.on:
        e(f"s_memrealtime s[{70+2*i}:{71+2*i}]")
        if i == 2: e("s_memtime s[92:93]")
        if i == 5: e("s_memtime s[94:95]")
        e("s_waitcnt lgkmcnt(0)")
def dbg_start(e):
    if Diag.dbg:
        e("s_memrealtime s[96:97]")
        e(f"s_load_dwordx2 s[98:99], s[0:1], {KA_DBG}")
        e("s_waitcnt lgkmcnt(0)")
def fin(e, wave_sgpr=8):
    if Diag.dbg:
        e("s_waitcnt vmcnt(0)")
        e("s_memrealtime s[100:101]")
        e("s_waitcnt lgkmcnt(0)")
        e(f"s_cmp_eq_u32 s{wave_sgpr}, 0"); e(f"s_cbranch_scc0 Ldbg_skip_{len(e.L)}")
        Diag.lab = f"Ldbg_skip_{len(e.L)-1}"
        e("s_mov_b64 exec, 1")
        e(f"s_sub_u32 s98, s98, {512 * Diag.kid}"); e("s_subb_u32 s99, s99, 0")
        e("s_not_b32 s96, s96")
        e("v_mov_b32 v2, s96"); e("v_mov_b32 v3, s100"); e("v_mov_b32 v4, 0")
        e(f"global_atomic_umax v4, v2, s[98:99] offset:{16 * Diag.kid}")
        e(f"global_atomic_umax v4, v3, s[98:99] offset:{16 * Diag.kid + 4}")
        e(f"global_atomic_umax v4, v2, s[98:99] offset:{1536 + 16 * Diag.kid}")
        e(f"global_atomic_umax v4, v3, s[98:99] offset:{1536 + 16 * Diag.kid + 4}")
        e.label(Diag.lab)
    if Diag.on:
        stamp(e, 7)
        e("s_waitcnt vmcnt(0)")
        e("s_memrealtime s[86:87]")
        e("s_waitcnt lgkmcnt(0)")
        e("s_mov_b64 exec, -1")
        e(f"s_lshl_b32 s88, s2, 3"); e(f"s_add_u32 s88, s88, s{wave_sgpr}"); e("s_lshl_b32 s88, s88, 6")
        e(f"s_add_u32 s88, s88, {STAMP_BASE + Diag.kid * 0x20000}")
        for i in range(8): e(f"v_mov_b32 v{4+i}, s{70+2*i}")
        e("v_mov_b32 v12, s86")
        e("s_sub_u32 s94, s94, s92")
        e("v_mov_b32 v14, s94")
        e("v_mov_b32 v13, s88")
        e("global_store_dwordx4 v13, v[4:7], s[4:5] offset:0")
        e("global_store_dwordx4 v13, v[8:11], s[4:5] offset:16")
        e("global_store_dword v13, v12, s[4:5] offset:32")
        e("global_store_dword v13, v14, s[4:5] offset:36")
    e("s_endpgm")

class Opt:
    code_pf = False
    l1_8wave = True
    l1_touch = False
    late_touch = False
    late_sel = 'all'
    touch_in_loop = True
    touch_stages = (2, 5)
    rotate = False
    rotate2 = True
    repack_l1 = True
    gelu_split = 2
    l2_only = None
    touch64 = False
def code_prefetch(e, start_label, end_label, nblk, vaddr, vtmp, vdst, sp):
    if not Opt.code_pf: return
    lab = f"{start_label}_pc{len(e.L)}"
    e(f"s_getpc_b64 s[{sp}:{sp+1}]")
    e.label(lab)
    e(f"s_sub_u32 s{sp}, s{sp}, {lab}-{start_label}")
    e(f"s_subb_u32 s{sp+1}, s{sp+1}, 0")
    e(f"v_lshlrev_b32 v{vaddr}, 7, v0")
    for i in range(nblk):
        e(f"v_min_u32 v{vtmp}, {end_label}-{start_label}-4, v{vaddr}")
        e(f"global_load_dword v{vdst}, v{vtmp}, s[{sp}:{sp+1}]")
        if i + 1 < nblk: e(f"v_add_u32 v{vaddr}, 0x2000, v{vaddr}")

STORE_MOD = "sc1"
```

```python
from gen_common import *
NAME = "l2_kernel"
LDS_BYTES = 74752
S_WS = 12
S_SRC = 16
S_XB = 20

def lane_tr_parts(e, vhf, vsub, vr_, vsig):
    e(f"v_lshrrev_b32 v{vhf}, 5, v0")
    e(f"v_bfe_u32 v{vsub}, v0, 4, 1")
    e(f"v_bfe_u32 v{vr_}, v0, 2, 2")
    e(f"v_and_b32 v{vsig}, 1, v0")
    e(f"v_lshlrev_b32 v{vsig}, 1, v{vsig}")
    e(f"v_bfe_u32 v15, v0, 1, 1")
    e(f"v_or_b32 v{vsig}, v{vsig}, v15")

def gen_gemm(e):
    e.label("L2_gemm")
    e("s_cmp_ge_u32 s7, 9"); e("s_cselect_b32 s9, 1, 0"); e("s_mul_i32 s10, s9, 9"); e("s_sub_u32 s10, s7, s10")
    e("s_lshl_b32 s11, s6, 1"); e("s_add_u32 s9, s9, s11")
    e("s_lshl_b32 s9, s9, 2"); e("s_add_u32 s9, s9, s8")
    e(f"s_load_dwordx2 s[24:25], s[0:1], {KA_W2}")
    e(f"s_load_dwordx2 s[26:27], s[0:1], {KA_XA}")
    e("v_lshlrev_b32 v1, 4, v0")
    e("v_lshrrev_b32 v5, 3, v0"); e("v_and_b32 v6, 7, v0"); e("v_bfe_u32 v7, v0, 4, 1"); e("v_lshlrev_b32 v7, 2, v7"); e("v_xor_b32 v6, v6, v7")
    e("v_mul_u32_u24 v5, 1152, v5"); e("v_lshlrev_b32 v6, 4, v6"); e("v_add_u32 v2, v5, v6"); e(f"v_add_u32 v3, {9216-1024}, v2")
    e("s_waitcnt lgkmcnt(0)")
    make_srd(e, S_SRC, 24, 576 * 576 * 2)
    make_srd(e, S_XB, 26, 2048 * 576 * 2)
    e("s_mul_i32 s28, s8, 18432"); e("s_lshl_b32 s29, s10, 7"); e("s_add_u32 s28, s28, s29")
    e("s_lshl_b32 s29, s8, 11")
    e("s_mul_i32 s30, s9, 36864"); e(f"s_add_u32 s30, s30, {LY.HS}")
    e("s_lshr_b32 s44, s9, 2"); e("s_and_b32 s44, s44, 1"); e("s_lshl_b32 s44, s44, 2"); e("s_add_u32 s44, s44, s10")
    e("s_cmp_ge_u32 s44, 9"); e("s_cselect_b32 s45, 9, 0"); e("s_sub_u32 s44, s44, s45")
    if not Opt.rotate2: e("s_mov_b32 s44, 0")
    for st in range(3):
        for i in range(3):
            ch = 3 * st + i
            e(f"s_mul_i32 s31, s44, {4*18432}"); e("s_add_u32 s31, s31, s28")
            e(f"s_add_u32 m0, s29, {4*ch*2048}")
            e(f"s_lshl_b32 s{46+i}, s44, 12"); e(f"s_add_u32 s{46+i}, s{46+i}, s30")
            e(f"buffer_load_dwordx4 v2, s[{S_SRC}:{S_SRC+3}], s31 offen lds")
            e(f"buffer_load_dwordx4 v3, s[{S_SRC}:{S_SRC+3}], s31 offen offset:1024 lds")
            e("s_add_u32 s44, s44, 1"); e("s_cmp_eq_u32 s44, 9"); e("s_cselect_b32 s44, 0, s44")
        for i in range(3):
            ch = 3 * st + i
            for k in range(4):
                e(f"buffer_load_dwordx4 {ar(4*(4*ch+k),4)}, v1, s[{S_WS}:{S_WS+3}], s{46+i} offen offset:{k*1024}")
    stamp(e, 1)
    lane_tr_parts(e, 5, 6, 7, 8)
    e("v_lshlrev_b32 v9, 1, v6"); e("v_lshrrev_b32 v10, 1, v8"); e("v_add_u32 v9, v9, v10")
    e("v_lshrrev_b32 v10, 1, v7"); e("v_lshlrev_b32 v10, 2, v10"); e("v_xor_b32 v9, v9, v10"); e("v_lshlrev_b32 v9, 4, v9")
    e("v_and_b32 v10, 1, v8"); e("v_lshlrev_b32 v10, 3, v10"); e("v_add_u32 v9, v9, v10")
    e("v_lshlrev_b32 v10, 3, v5"); e("v_add_u32 v10, v10, v7"); e("v_lshlrev_b32 v10, 7, v10"); e("v_add_u32 v9, v9, v10")
    e("v_xor_b32 v10, 64, v9"); e("v_add_u32 v13, 36864, v9"); e("v_add_u32 v14, 36864, v10")
    TR = [[9, 10], [13, 14]]
    ACC = 16; WB = 64; XB = 100
    def reads(ks):
        o = []
        b = WB + 8 * (ks % 4); kk = ks % 18
        for T in range(2):
            for q in range(2):
                o.append(f"ds_read_b64_tr_b16 {vr(b+4*T+2*q,2)}, v{TR[ks//18][T]} offset:{kk*2048 + q*512}")
        return o
    e("v_and_b32 v11, 31, v0"); e("s_movk_i32 s32, 1152"); e("v_mul_lo_u32 v12, v11, s32"); e("v_lshlrev_b32 v4, 4, v5"); e("v_add_u32 v12, v12, v4")
    e("s_mul_i32 s33, s9, 36864"); e("s_lshl_b32 s34, s10, 7"); e("s_add_u32 s33, s33, s34")
    for st in range(3):
        e(f"s_waitcnt vmcnt({[36, 22, 4][st]})")
        e("s_barrier")
        stamp(e, 2 + st)
        if st == 0:
            for u in range(4):
                e(f"buffer_load_dwordx4 {vr(XB+4*u,4)}, v12, s[{S_XB}:{S_XB+3}], s33 offen offset:{u*32}")
        k0 = 12 * st
        for k in range(3): e.extend(reads(k0 + k))
        for ks in range(k0, k0 + 12):
            left = k0 + 11 - ks
            e(f"s_waitcnt lgkmcnt({4 * min(2, left)})")
            b = WB + 8 * (ks % 4)
            rd = reads(ks + 3) if ks + 3 < k0 + 12 else []
            for T in range(2):
                e(f"v_mfma_f32_32x32x16_bf16 {vr(ACC+16*T,16)}, {vr(b+4*T,4)}, {ar(4*ks,4)}, " + ("0" if ks == 0 else vr(ACC + 16 * T, 16)))
                e.extend(rd[2 * T:2 * T + 2])
    stamp(e, 5)
    e("s_mov_b32 s34, 0x00003f80"); e("s_mov_b32 s35, 0x3f800000"); e("s_mov_b32 s36, 0x3f803f80")
    e("s_mul_i32 s37, s9, 36"); e("s_lshl_b32 s38, s10, 2"); e("s_add_u32 s37, s37, s38"); e("s_lshl_b32 s37, s37, 10"); e(f"s_add_u32 s37, s37, {LY.X1F}")
    e("v_mov_b32 v2, 0"); e("v_mov_b32 v3, 0")
    e("s_waitcnt vmcnt(0)")
    e("s_nop 7")
    for u in range(4):
        T, hq = divmod(u, 2); b = ACC + 16 * T + 8 * hq; x = XB + 4 * u; P = 64 + 4 * u
        for j in range(4):
            e(f"v_dot2c_f32_bf16 v{b+2*j}, s34, v{x+j}")
            e(f"v_dot2c_f32_bf16 v{b+2*j+1}, s35, v{x+j}")
        e("s_nop 2")
        for j in range(4): e(f"v_cvt_pk_bf16_f32 v{P+j}, v{b+2*j}, v{b+2*j+1}")
        e(f"buffer_store_dwordx4 {vr(P,4)}, v1, s[{S_WS}:{S_WS+3}], s37 offen offset:{u*1024}")
        for j in range(4):
            e(f"v_dot2c_f32_bf16 v2, s36, v{P+j}")
            e(f"v_dot2c_f32_bf16 v3, v{P+j}, v{P+j}")
    e("v_lshlrev_b32 v4, 14, v5"); e("v_lshlrev_b32 v6, 3, v11"); e("v_add_u32 v4, v4, v6")
    e("s_lshl_b32 s38, s10, 15"); e("s_lshl_b32 s39, s9, 8"); e("s_add_u32 s38, s38, s39"); e(f"s_add_u32 s38, s38, {LY.ST2}")
    e("s_nop 1")
    e(f"buffer_store_dwordx2 v[2:3], v4, s[{S_WS}:{S_WS+3}], s38 offen")
    fin(e)

def dma_rows128(e, rowbytes, swz):
    e("v_lshrrev_b32 v5, 3, v0"); e("v_and_b32 v6, 7, v0")
    if swz:
        e("v_bfe_u32 v7, v0, 4, 1"); e("v_lshlrev_b32 v7, 2, v7"); e("v_xor_b32 v6, v6, v7")
    e(f"s_mov_b32 s32, {rowbytes}"); e("v_mul_lo_u32 v5, v5, s32"); e("v_lshlrev_b32 v6, 4, v6"); e("v_add_u32 v2, v5, v6")
    e(f"s_mul_i32 s29, s8, {144*rowbytes}"); e("s_add_u32 s29, s29, s28")
    e("s_mul_i32 s31, s8, 18432")
    for i in range(18):
        e(f"s_add_u32 m0, s31, {i*1024}")
        e(f"s_add_u32 s30, s29, {i*8*rowbytes}")
        e(f"buffer_load_dwordx4 v2, s[{S_SRC}:{S_SRC+3}], s30 offen lds")

def gen_w3(e):
    e.label("L2_w3")
    e(f"s_load_dwordx2 s[24:25], s[0:1], {KA_W3}")
    e("v_lshlrev_b32 v1, 4, v0")
    e("s_lshl_b32 s28, s9, 7")
    e("s_waitcnt lgkmcnt(0)")
    make_srd(e, S_SRC, 24, 576 * 4608 * 2)
    dma_rows128(e, 9216, True)
    lane_tr_parts(e, 5, 6, 7, 8)
    e("s_and_b32 s33, s8, 1"); e("s_lshr_b32 s34, s8, 1")
    e("v_lshlrev_b32 v9, 1, v6"); e("v_lshrrev_b32 v10, 1, v8"); e("v_add_u32 v9, v9, v10")
    e("s_lshl_b32 s35, s33, 2"); e("v_add_u32 v9, s35, v9")
    e("v_lshrrev_b32 v10, 1, v7"); e("v_lshlrev_b32 v10, 2, v10"); e("v_xor_b32 v9, v9, v10")
    e("v_lshlrev_b32 v9, 4, v9"); e("v_and_b32 v10, 1, v8"); e("v_lshlrev_b32 v10, 3, v10"); e("v_add_u32 v9, v9, v10")
    e("v_lshlrev_b32 v10, 3, v5"); e("v_add_u32 v10, v10, v7"); e("v_lshlrev_b32 v10, 7, v10"); e("v_add_u32 v9, v9, v10")
    e("s_mul_i32 s35, s34, 36864"); e("v_add_u32 v9, s35, v9")
    F = 16
    stamp(e, 1)
    e("s_waitcnt vmcnt(0)"); e("s_barrier")
    stamp(e, 2)
    for k in range(18):
        for q in range(2):
            e(f"ds_read_b64_tr_b16 {vr(F+4*k+2*q,2)}, v9 offset:{k*2048+q*512}")
    e("s_mov_b32 s36, 0x3f803f80"); e("s_mov_b32 s37, 0x00003f80"); e("s_mov_b32 s38, 0x3f800000")
    for a in range(4): e(f"v_mov_b32 v{10+a}, 0")
    for k in range(18):
        if k % 3 == 0: e(f"s_waitcnt lgkmcnt({min(15, 36 - 2*(k+3))})")
        for j in range(4): e(f"v_dot2c_f32_bf16 v{10+j}, s36, v{F+4*k+j}")
    e("s_nop 2")
    e("v_add_f32 v10, v10, v11"); e("v_add_f32 v12, v12, v13"); e("v_add_f32 v10, v10, v12")
    e("v_mov_b32 v11, v10"); e("s_nop 1"); e("v_permlane32_swap_b32 v10, v11"); e("v_add_f32 v10, v10, v11")
    e("v_lshlrev_b32 v12, 2, v0"); e("s_lshl_b32 s35, s8, 8"); e("s_add_u32 s35, s35, 73728"); e("v_add_u32 v13, s35, v12")
    e("ds_write_b32 v13, v10")
    e("s_xor_b32 s35, s8, 2"); e("s_lshl_b32 s35, s35, 8"); e("s_add_u32 s35, s35, 73728"); e("v_add_u32 v13, s35, v12")
    e("s_waitcnt lgkmcnt(0)"); e("s_barrier")
    e("ds_read_b32 v11, v13"); e("s_waitcnt lgkmcnt(0)")
    e("v_add_f32 v10, v10, v11"); e(f"v_mul_f32 v10, {hexf(-1/576)}, v10")
    e("s_lshl_b32 s39, s9, 1"); e("s_add_u32 s39, s39, s33")
    e(f"s_mul_i32 s43, s39, 36864"); e(f"s_add_u32 s43, s43, {LY.W3P}")
    e("s_mul_i32 s35, s34, 18432"); e("s_add_u32 s43, s43, s35")
    TS = [88, 96]
    def fink(k):
        t = TS[k % 2]
        for j in range(4): e(f"v_cvt_pk_bf16_f32 v{F+4*k+j}, v{t+2*j}, v{t+2*j+1}")
        e(f"buffer_store_dwordx4 {vr(F+4*k,4)}, v1, s[{S_WS}:{S_WS+3}], s43 offen offset:{(k%4)*1024}")
        if k % 4 == 3: e("s_add_u32 s43, s43, 4096")
    for k in range(18):
        t = TS[k % 2]
        for j in range(4):
            e(f"v_dot2_f32_bf16 v{t+2*j}, v{F+4*k+j}, s37, v10")
            e(f"v_dot2_f32_bf16 v{t+2*j+1}, v{F+4*k+j}, s38, v10")
        if k > 0: fink(k - 1)
    e("s_nop 2")
    fink(17)
    fin(e)

def gen_wo(e):
    e.label("L2_wo")
    e(f"s_load_dwordx2 s[24:25], s[0:1], {KA_WO}")
    e("v_lshlrev_b32 v1, 4, v0")
    e("s_mul_i32 s10, s9, 86"); e("s_lshr_b32 s10, s10, 8")
    e("s_mul_i32 s11, s10, 3"); e("s_sub_u32 s11, s9, s11")
    e("s_mul_i32 s28, s10, 288"); e("s_lshl_b32 s29, s11, 7"); e("s_add_u32 s28, s28, s29")
    e("s_waitcnt lgkmcnt(0)")
    make_srd(e, S_SRC, 24, 576 * 576 * 2)
    dma_rows128(e, 1152, False)
    lane_tr_parts(e, 5, 6, 7, 8)
    e("s_and_b32 s33, s8, 1"); e("s_lshr_b32 s34, s8, 1")
    e("v_lshlrev_b32 v9, 5, v6"); e("v_lshlrev_b32 v10, 3, v8"); e("v_add_u32 v9, v9, v10"); e("s_lshl_b32 s35, s33, 6"); e("v_add_u32 v9, s35, v9")
    e("v_lshlrev_b32 v10, 2, v5"); e("v_add_u32 v10, v10, v7"); e("v_lshlrev_b32 v10, 7, v10"); e("v_add_u32 v10, v10, v9")
    e(f"s_mul_i32 s35, s34, {324*128}"); e("v_add_u32 v10, s35, v10")
    e("v_lshrrev_b32 v11, 1, v7"); e("v_lshlrev_b32 v12, 2, v5"); e("v_add_u32 v12, v12, v11"); e("v_mul_u32_u24 v12, 18, v12")
    e("v_xor_b32 v11, 1, v11"); e("v_lshlrev_b32 v11, 4, v11"); e("v_add_u32 v12, v12, v11"); e("v_and_b32 v11, 1, v7"); e("v_add_u32 v12, v12, v11")
    e("v_lshlrev_b32 v12, 7, v12"); e("v_add_u32 v12, v12, v9")
    F = 16
    e("s_waitcnt vmcnt(0)"); e("s_barrier")
    for k in range(14):
        for q in range(2):
            e(f"ds_read_b64_tr_b16 {vr(F+4*k+2*q,2)}, v10 offset:{(18*k + 8*q + 2*(k&1))*128}")
    e("s_cmp_eq_u32 s34, 0"); e("s_cbranch_scc0 L2_wo_x")
    for k in range(14, 18):
        for q in range(2):
            e(f"ds_read_b64_tr_b16 {vr(F+4*k+2*q,2)}, v10 offset:{(18*k + 8*q + 2*(k&1))*128}")
    e("s_branch L2_wo_y")
    e.label("L2_wo_x")
    for k in range(14, 18):
        for q in range(2):
            e(f"ds_read_b64_tr_b16 {vr(F+4*k+2*q,2)}, v12 offset:{18*(8*(k-14) + 2*q)*128}")
    e.label("L2_wo_y")
    e("s_lshl_b32 s35, s11, 1"); e("s_add_u32 s35, s35, s33")
    e("s_cmp_eq_u32 s35, 5"); e("s_cbranch_scc1 L2_exit")
    e("s_mul_i32 s36, s10, 5"); e("s_add_u32 s36, s36, s35"); e("s_mul_i32 s36, s36, 36"); e("s_mul_i32 s37, s34, 18"); e("s_add_u32 s36, s36, s37")
    e("s_lshl_b32 s43, s36, 10"); e(f"s_add_u32 s43, s43, {LY.WOP}")
    e("s_waitcnt lgkmcnt(0)")
    for k in range(18):
        e(f"buffer_store_dwordx4 {vr(F+4*k,4)}, v1, s[{S_WS}:{S_WS+3}], s43 offen offset:{(k%4)*1024}")
        if k % 4 == 3: e("s_add_u32 s43, s43, 4096")
    fin(e)

def gen():
    e = Emit()
    kernel_head(e, NAME)
    Diag.kid = 1
    e(f"s_cmp_ge_u32 s2, {144 if Opt.repack_l1 else 256}")
    e("s_cbranch_scc1 L2_exit")
    e(f"s_load_dwordx2 s[4:5], s[0:1], {KA_WS}")
    e("s_and_b32 s6, s2, 7")
    e("s_lshr_b32 s7, s2, 3")
    e("v_lshrrev_b32 v1, 6, v0")
    e("v_and_b32 v0, 63, v0")
    e("v_readfirstlane_b32 s8, v1")
    code_prefetch(e, NAME, "L2_exit", 2, vaddr=250, vtmp=251, vdst=252, sp=60)
    e("s_waitcnt lgkmcnt(0)")
    make_srd(e, S_WS, 4, LY.WS_END)
    stamp(e, 0)
    dbg_start(e)
    e("s_cmp_lt_u32 s7, 18")
    e("s_cbranch_scc1 L2_gemm" if Opt.l2_only != "repack" else "s_cbranch_scc1 L2_exit")
    if Opt.l2_only == "gemm": e("s_branch L2_exit")
    if Opt.l2_only == "w3":
        e("s_sub_u32 s9, s2, 144"); e("s_cmp_lt_u32 s9, 72"); e("s_cbranch_scc1 L2_w3"); e("s_branch L2_exit")
    if Opt.repack_l1: e("s_branch L2_exit")
    e("s_sub_u32 s9, s2, 144")
    e("s_cmp_lt_u32 s9, 72")
    e("s_cbranch_scc1 L2_w3")
    e("s_sub_u32 s9, s9, 72")
    e("s_cmp_lt_u32 s9, 12")
    e("s_cbranch_scc1 L2_wo")
    e("s_endpgm")
    gen_gemm(e); gen_w3(e); gen_wo(e)
    e.label("L2_exit")
    e("s_endpgm")
    return e.text()
if __name__ == "__main__":
    t = gen()
    errs = check(t, "l2")
    for x in errs: print(x)
    print("instrs", sum(1 for l in t.split("\n") if l.startswith("    ")), "hazard errs", len(errs))
    assert all((n*171)>>11 == n//12 for n in range(192))
    assert all((n*57)>>9 == n//9 for n in range(72))
    assert all((n*3641)>>16 == n//18 for n in range(144))
    assert all((n*86)>>8 == n//3 for n in range(12))
```

```python
from gen_common import *
import os

NAME = "l3_kernel"
LDS_BYTES = 4 * 36864

V_PA, V_PB = 0, 1
V_DMA    = 2
V_A, V_B, V_S = 3, 4, 5
TA = [6, 7, 8, 9]
V_P1, V_PC = 10, 11
V_RA, V_RB = 12, 13
V_E, V_O = 14, 15
V_W = 16
NB = 6
V_HP = 40
V_H = [48, 64]
SLOT = {"C": 0, "D": 36864, "A": 73728, "B": 110592}
def OUT(dt):
    return (True, 80 + 16 * dt) if dt < 11 else (False, 144 + 16 * (dt - 11))
def outreg(dt):
    isv_, b = OUT(dt)
    return vr(b, 16) if isv_ else ar(b, 16)
S_SRD = 12
S_W4 = 24
S_W, S_J = 8, 7
S_M0B = 18
S_D3 = [19, 20, 21]
S_D4 = [28, 29, 31]
S_CNT = 22

def gelu_group(H, elems, temps):
    o = []
    for e_, t in zip(elems, temps): o.append(f"v_mul_f32 v{t}, v{H+e_}, v{H+e_}")
    for e_, t in zip(elems, temps): o.append(f"v_fma_f32 v{t}, v{t}, v{V_A}, v{V_B}")
    for e_, t in zip(elems, temps): o.append(f"v_mul_f32 v{t}, v{H+e_}, v{t}")
    for e_, t in zip(elems, temps): o.append(f"v_exp_f32 v{t}, v{t}")
    for e_, t in zip(elems, temps): o.append(f"v_fma_f32 v{t}, v{t}, v{V_S}, v{V_S}")
    for e_, t in zip(elems, temps): o.append(f"v_rcp_f32 v{t}, v{t}")
    for e_, t in zip(elems, temps): o.append(f"v_mul_f32 v{H+e_}, v{H+e_}, v{t}")
    return o
def gelu_groups(H, gs):
    o = []
    for g in gs: o += gelu_group(H, range(4 * g, 4 * g + 4), TA)
    return o
def cvts(H, js):
    return [f"v_cvt_pk_bf16_f32 v{V_HP+j}, v{H+2*j}, v{H+2*j+1}" for j in js]

def s1_mfmas(c):
    H = V_H[c & 1]
    return [f"v_mfma_f32_32x32x16_bf16 {vr(H,16)}, {vr(V_W+4*(j%NB),4)}, {ar(4*j,4)}, " + ("0" if j == 0 else vr(H, 16)) for j in range(36)]
def s2_mfmas():
    o = []
    for m in range(36):
        q, dt = divmod(m, 18)
        o.append(f"v_mfma_f32_32x32x16_bf16 {outreg(dt)}, {vr(V_W+4*(m%NB),4)}, {vr(V_HP+4*q,4)}, {outreg(dt)}")
    return o

def rd(ph, m):
    kind, slot = ph[0], ph[1]
    b = V_W + 4 * (m % NB)
    if kind == "S1":
        reg = ph[2] if len(ph) > 2 else {"A": V_RA, "B": V_RB}[slot]
        return [f"ds_read_b128 {vr(b,4)}, v{reg} offset:{m*1024}"]
    q, dt = divmod(m, 18)
    reg = V_O if dt & 1 else V_E
    off = SLOT[slot] + q * 18432 + (dt >> 1) * 128
    return [f"ds_read_b64_tr_b16 {vr(b,2)}, v{reg} offset:{off}", f"ds_read_b64_tr_b16 {vr(b+2,2)}, v{reg} offset:{off + 4608}"]

W4PAT = [V_DMA, V_DMA, V_PA, V_P1, V_PB, V_DMA, V_PC, V_P1, V_P1]
def dma_instrs(kind, slot):
    g = []
    for i in range(9):
        grp, k = divmod(i, 4)
        pre = []
        if k == 0: pre.append(f"s_add_u32 m0, s{S_M0B}, {SLOT[slot] + grp*4096}")
        if kind == "S1":
            g.append((pre, f"buffer_load_dwordx4 v{V_DMA}, s[{S_SRD}:{S_SRD+3}], s{S_D3[grp]} offen offset:{k*1024} lds"))
        else:
            g.append((pre, f"buffer_load_dwordx4 v{W4PAT[i]}, s[{S_W4}:{S_W4+3}], s{S_D4[grp]} offen offset:{k*1024} lds"))
    return g
def dma_advance(kind):
    return [f"s_add_u32 s{r}, s{r}, 36864" for r in (S_D3 if kind == "S1" else S_D4)]

def phase(e, mf, ph, nxt, dma, fill, fill_range, last_vm=9, tail=None, xwait=False, early_dma=False, pre_next=None):
    gaps = {}
    issued = []
    for m in range(NB): issued.append((m, len(rd(ph, m))))
    waits = {}
    for j in range(36):
        L = gaps.setdefault(j, [])
        m = j + NB
        if m < 36:
            r = rd(ph, m); L += r; issued.append((m, len(r)))
        elif nxt is not None:
            if m == 36:
                if pre_next: L += pre_next
                L.append(f"s_waitcnt vmcnt({last_vm})")
                L.append("s_barrier")
            r = rd(nxt, m - 36); L += r; issued.append((m, len(r)))
        if (j + 1) % 2 == 0 and (j + 1 < 36 or nxt is not None):
            allowed = sum(n for (mm, n) in issued if mm > j + 2)
            waits[j] = f"s_waitcnt lgkmcnt({min(allowed, 15)})"
    pos = [1, 4, 7, 10, 13, 16, 19, 22, 25] if not early_dma else [0, 1, 2, 3, 4, 5, 6, 7, 8]
    if dma is not None:
        d = dma_instrs(*dma)
        for (pre, ld), p in zip(d, pos):
            if pre:
                if p > 0 and not early_dma: gaps[p - 1] += pre
                else: gaps[p] += pre + ["s_nop 0"]
            gaps[p].append(ld)
        gaps[27] += dma_advance(dma[0])
    if xwait:
        for j in range(4, 36, 4):
            ndma = sum(1 for p in pos if p <= j - 1)
            allowed = (35 - (j + 3)) + 9 + ndma
            gaps[j - 1].append(f"s_waitcnt vmcnt({allowed})")
    if fill:
        spread(gaps, fill, fill_range[0], fill_range[1])
    for j, w in waits.items(): gaps[j].append(w)
    e.extend(weave(mf, gaps))
    if tail: e.extend(tail)

def gen_mlp(e):
    R = f"s[{S_SRD}:{S_SRD+3}]"
    e.label("L3_mlp")
    e(f"s_load_dwordx2 s[32:33], s[0:1], {KA_W4}")
    e(f"s_lshl_b32 s9, s7, 2")
    e(f"s_add_u32 s9, s9, s{S_W}")
    e(f"s_mul_i32 s{S_M0B}, s{S_W}, 9216")
    e(f"s_mul_i32 s10, s6, {18*36864}")
    e(f"s_add_u32 s{S_D3[0]}, s10, {LY.W3P}")
    e(f"s_add_u32 s{S_D3[1]}, s{S_D3[0]}, 4096"); e(f"s_add_u32 s{S_D3[2]}, s{S_D3[0]}, 8192")
    e(f"s_mov_b32 s{S_D4[0]}, s10"); e(f"s_add_u32 s{S_D4[1]}, s10, 4096"); e(f"s_add_u32 s{S_D4[2]}, s10, 8192")
    LN = TA[1]
    e(f"v_lshlrev_b32 v{LN}, 4, v0")
    e(f"v_add_u32 v{V_DMA}, s{S_M0B}, v{LN}")
    e(f"v_add_u32 v{V_RA}, {SLOT['A']}, v{LN}"); e(f"v_add_u32 v{V_RB}, {SLOT['B']}, v{LN}")
    e(f"v_add_u32 v{TA[0]}, {SLOT['D']}, v{LN}")
    for pre, ld in dma_instrs("S1", "D"):
        for p in pre: e(p)
        if pre: e("s_nop 0")
        e(ld)
    for a in dma_advance("S1"): e(a)
    e("v_and_b32 v8, 31, v0")
    e("v_lshlrev_b32 v8, 3, v8")
    e("s_lshl_b32 s17, s9, 8")
    e(f"s_add_u32 s17, s17, {LY.ST2}")
    NST = LY.NSTAT
    sreg = [64 + 2 * p for p in range(8)] + [40 + 2 * p for p in range(4)] + [48 + 2 * p for p in range(8)]
    sreg = sreg[:NST]
    for p in range(NST):
        e(f"buffer_load_dwordx2 {vr(sreg[p],2)}, v8, {R}, s17 offen")
        if p != NST - 1: e("s_add_u32 s17, s17, 16384")
    e(f"s_mul_i32 s16, s9, 36864")
    e(f"s_add_u32 s16, s16, {LY.X1F}")
    for j in range(36):
        e(f"buffer_load_dwordx4 {ar(4*j,4)}, v{LN}, {R}, s16 offen offset:{(j%4)*1024}")
        if j % 4 == 3 and j != 35: e("s_add_u32 s16, s16, 4096")
    for pre, ld in dma_instrs("S1", "B"):
        for p in pre: e(p)
        if pre: e("s_nop 0")
        e(ld)
    for a in dma_advance("S1"): e(a)
    stamp(e, 1)
    e("v_lshrrev_b32 v9, 3, v0")
    e(f"v_xor_b32 v{V_P1}, 64, v{V_DMA}")
    e("v_cmp_lt_u32 vcc, 5, v9"); e("s_nop 1"); e(f"v_cndmask_b32 v{V_PC}, v{V_DMA}, v{V_P1}, vcc")
    e("v_cmp_gt_u32 vcc, 4, v9"); e("s_nop 1"); e(f"v_cndmask_b32 v{V_PB}, v{V_DMA}, v{V_P1}, vcc")
    e("v_lshrrev_b32 v16, 5, v0"); e("v_bfe_u32 v17, v0, 4, 1"); e("v_bfe_u32 v18, v0, 2, 2")
    e("v_and_b32 v19, 1, v0"); e("v_bfe_u32 v21, v0, 1, 1")
    e("v_lshlrev_b32 v17, 1, v17"); e("v_add_u32 v17, v17, v19")
    e("v_lshrrev_b32 v19, 1, v18"); e("v_lshlrev_b32 v19, 2, v19"); e("v_xor_b32 v17, v17, v19")
    e("v_lshlrev_b32 v16, 3, v16"); e("v_add_u32 v16, v16, v18"); e("v_mul_u32_u24 v16, 1152, v16")
    e("v_lshlrev_b32 v21, 3, v21"); e("v_add_u32 v16, v16, v21")
    e(f"v_lshlrev_b32 v17, 4, v17"); e(f"v_add_u32 v{V_E}, v16, v17"); e(f"v_xor_b32 v17, 64, v17"); e(f"v_add_u32 v{V_O}, v16, v17")
    e("v_cmp_lt_u32 vcc, 1, v9"); e("s_waitcnt lgkmcnt(0)"); e("s_nop 0"); e(f"v_cndmask_b32 v{V_PA}, v{V_DMA}, v{V_P1}, vcc")
    make_srd(e, S_W4, 32, 576 * 4608 * 2)
    for i in range(4): e(f"v_mov_b32 v{V_W+i}, 0")
    e("s_nop 1")
    for dt in range(18):
        e(f"v_mfma_f32_32x32x16_bf16 {outreg(dt)}, {vr(V_W,4)}, {vr(V_W,4)}, 0")
    st = []
    a0 = sreg[0]
    for p in sreg[1:]:
        st.append(f"v_add_f32 v{a0}, v{a0}, v{p}"); st.append(f"v_add_f32 v{a0+1}, v{a0+1}, v{p+1}")
    st += [f"v_mul_f32 v64, {hexf(1/576)}, v64", f"v_mul_f32 v65, {hexf(1/576)}, v65", "v_fma_f32 v65, -v64, v64, v65",
           "v_max_f32 v65, 0, v65", f"v_add_f32 v65, {hexf(1e-5)}, v65", f"v_sqrt_f32 v{V_S}, v65", "s_nop 0", f"v_rcp_f32 v66, v{V_S}", "s_nop 0",
           f"v_mul_f32 v{V_B}, {hexf(GELU_C0)}, v66", "v_mul_f32 v67, v66, v66", "v_mul_f32 v67, v67, v66", f"v_mul_f32 v{V_A}, {hexf(GELU_C1)}, v67"]
    if NST > 12:
        e("s_waitcnt vmcnt(45)")
        for x in st[:2 * (NST - 1)]: e(x)
        st = st[2 * (NST - 1):]
    e("s_waitcnt vmcnt(45)")
    e("s_barrier")
    stamp(e, 2)
    P0 = ("S1", "D", TA[0])
    for m in range(NB): e.extend(rd(P0, m))
    e("s_waitcnt vmcnt(41)")
    e(f"s_waitcnt lgkmcnt({NB-2})")
    phase(e, s1_mfmas(0), P0, ("S1", "B"), ("S2", "C"), st, (0, 30), xwait=True)
    phase(e, s1_mfmas(1), ("S1", "B"), ("S2", "C"), ("S1", "A"), gelu_groups(V_H[0], range(4)) + cvts(V_H[0], range(8)), (3, 35))
    stamp(e, 3)
    e(f"s_mov_b32 s{S_CNT}, 8")
    e(".p2align 6")
    e.label("L3_mlp_loop")
    GA = Opt.gelu_split
    for half in range(2):
        Hn = V_H[(half + 1) & 1]
        s2, s2n = ("C", "D") if half == 0 else ("D", "C")
        s1, s1n = ("A", "B") if half == 0 else ("B", "A")
        phase(e, s2_mfmas(), ("S2", s2), ("S1", s1), ("S2", s2n), gelu_groups(Hn, range(GA)), (3, 36))
        gb = cvts(Hn, range(2 * GA))
        for g in range(GA, 4): gb += gelu_groups(Hn, [g]) + cvts(Hn, range(2 * g, 2 * g + 2))
        phase(e, s1_mfmas(half), ("S1", s1), ("S2", s2n), ("S1", s1n), gb, (0, 35))
    e(f"s_sub_u32 s{S_CNT}, s{S_CNT}, 1")
    e(f"s_cmp_lg_u32 s{S_CNT}, 0")
    e("s_cbranch_scc1 L3_mlp_loop")
    stamp(e, 4)
    H = V_H[1]
    phase(e, s2_mfmas(), ("S2", "C"), ("S2", "D"), ("S2", "D"), gelu_groups(H, range(4)), (9, 36), last_vm=0, tail=cvts(H, range(8)) + ["s_nop 1"], early_dma=True)
    phase(e, s2_mfmas(), ("S2", "D"), None, None, None, None)
    stamp(e, 5)
    e(f"s_lshl_b32 s10, s6, 6")
    e(f"s_add_u32 s10, s10, s9")
    e(f"s_mul_i32 s10, s10, 36864")
    e(f"s_add_u32 s10, s10, {LY.PART}")
    e(f"v_subrev_u32 v{TA[0]}, s{S_M0B}, v{V_DMA}")
    e("s_nop 9")
    tb = [48, 56, 64, 72]
    for dt in range(18):
        isv_, b = OUT(dt)
        t = tb[dt % 4]
        if isv_:
            for j in range(8): e(f"v_cvt_pk_bf16_f32 v{t+j}, v{b+2*j}, v{b+2*j+1}")
        else:
            for j in range(16): e(f"v_accvgpr_read_b32 v{16+j}, a{b+j}")
            for j in range(8): e(f"v_cvt_pk_bf16_f32 v{t+j}, v{16+2*j}, v{16+2*j+1}")
        ks = 2 * dt
        e(f"buffer_store_dwordx4 {vr(t,4)}, v{TA[0]}, {R}, s10 offen offset:{(ks%4)*1024}")
        e(f"buffer_store_dwordx4 {vr(t+4,4)}, v{TA[0]}, {R}, s10 offen offset:{(ks%4+1)*1024}")
        if dt % 2 == 1 and dt != 17: e("s_add_u32 s10, s10, 4096")
    fin(e)

A_K0OFF, A_KXOFF, A_VOFF = 1, 2, 3
A_M = 8
A_O = 32
A_S = [160, 192]
A_P = [224, 240]
NSET = 2
AG_SET = 0
def SET(i): return AG_SET + 28 * (i % NSET)
AG_Q0 = 56
AG_QX = 88
SA_K, SA_KX, SA_V = 16, 17, 18
SA_CNT = 22
NQ = 8

def attn_loads(st):
    b = SET(st); R = f"s[{S_SRD}:{S_SRD+3}]"
    o = [f"buffer_load_dwordx4 {ar(b,4)}, v{A_K0OFF}, {R}, s{SA_K} offen",
         f"buffer_load_dwordx4 {ar(b+4,4)}, v{A_K0OFF}, {R}, s{SA_K} offen offset:1024",
         f"buffer_load_dword a{b+24}, v{A_KXOFF}, {R}, s{SA_KX} offen"]
    for i in range(4):
        o.append(f"buffer_load_dwordx4 {ar(b+8+4*i,4)}, v{A_VOFF}, {R}, s{SA_V} offen" + (f" offset:{608*i}" if i else ""))
    o += [f"s_add_u32 s{SA_K}, s{SA_K}, 2048", f"s_add_u32 s{SA_KX}, s{SA_KX}, 256", f"s_add_u32 s{SA_V}, s{SA_V}, 2432"]
    return o
def qk(kp, qi, S):
    b = SET(kp)
    return [f"v_mfma_f32_32x32x4_2b_bf16 {vr(S,32)}, {ar(b+24,2)}, {ar(AG_QX+2*qi,2)}, 0",
            f"v_mfma_f32_32x32x16_bf16 {vr(S,16)}, {ar(b,4)}, {ar(AG_Q0+4*qi,4)}, {vr(S,16)}",
            f"v_mfma_f32_32x32x16_bf16 {vr(S+16,16)}, {ar(b+4,4)}, {ar(AG_Q0+4*qi,4)}, {vr(S+16,16)}"]
def pv(kp, qi, P):
    b = SET(kp); O = A_O + 16 * qi
    return [f"v_mfma_f32_32x32x16_bf16 {vr(O,16)}, {ar(b+8+4*i,4)}, {vr(P+4*i,4)}, {vr(O,16)}" for i in range(4)]
def expcvt(n):
    S = A_S[n & 1]; P = A_P[n & 1]
    ex = [f"v_exp_f32 v{S+i}, v{S+i}" for i in range(32)]
    cv = [f"v_cvt_pk_bf16_f32 v{P+j}, v{S+2*j}, v{S+2*j+1}" for j in range(16)]
    o = ex[0:4]
    for j in range(14): o += [cv[j], ex[2*j+4], ex[2*j+5]]
    o += [cv[14], cv[15]]
    return o

def gen_attn(e, force_slow=False):
    R = f"s[{S_SRD}:{S_SRD+3}]"
    e.label("L3_attn")
    e("s_sub_u32 s7, s7, 16")
    e("s_lshr_b32 s9, s7, 2")
    e("s_lshl_b32 s10, s6, 2")
    e("s_add_u32 s9, s9, s10")
    e("s_and_b32 s10, s7, 3")
    e("s_lshl_b32 s10, s10, 4")
    e(f"s_and_b32 s31, s{S_W}, 1"); e("s_lshl_b32 s31, s31, 3"); e("s_add_u32 s10, s10, s31")
    e(f"s_lshr_b32 s31, s{S_W}, 1")
    e(f"v_lshlrev_b32 v{A_K0OFF}, 4, v0")
    e(f"v_lshlrev_b32 v{A_KXOFF}, 2, v0")
    e("v_and_b32 v4, 31, v0")
    e("v_lshlrev_b32 v5, 4, v4")
    e("v_lshrrev_b32 v6, 5, v0")
    e("v_mul_u32_u24 v7, 304, v6")
    e("v_add_u32 v5, v5, v7")
    e("v_cmp_lt_u32 vcc, 18, v4")
    e("v_mov_b32 v7, 0x40000000")
    e("v_lshlrev_b32 v12, 2, v4")
    e(f"v_cndmask_b32 v{A_VOFF}, v5, v7, vcc")
    e("s_lshl_b32 s11, s9, 16")
    e("s_lshl_b32 s24, s9, 13")
    e(f"s_add_u32 s26, s11, {LY.KF0}")
    e(f"s_add_u32 s27, s24, {LY.KX}")
    e(f"s_mul_i32 s28, s9, {LY.VHEAD}")
    e(f"s_add_u32 s28, s28, {LY.VF}")
    e("s_lshl_b32 s23, s31, 15"); e(f"s_add_u32 s{SA_K}, s26, s23")
    e("s_lshl_b32 s23, s31, 12"); e(f"s_add_u32 s{SA_KX}, s27, s23")
    e(f"s_mul_i32 s23, s31, {16*2432}"); e(f"s_add_u32 s{SA_V}, s28, s23")
    for x in attn_loads(0): e(x)
    e("s_lshl_b32 s23, s31, 2"); e("s_add_u32 s34, s10, s23")
    e("s_xor_b32 s23, s23, 4"); e("s_add_u32 s35, s10, s23")
    for g, sg in enumerate((34, 35)):
        e(f"s_lshl_b32 s23, s{sg}, 10"); e("s_add_u32 s23, s23, s11"); e(f"s_add_u32 s23, s23, {LY.QF0}")
        for qi in range(4):
            e(f"buffer_load_dwordx4 {ar(AG_Q0+4*(4*g+qi),4)}, v{A_K0OFF}, {R}, s23 offen offset:{qi*1024}")
        e(f"s_lshl_b32 s23, s{sg}, 7"); e("s_add_u32 s23, s23, s24"); e(f"s_add_u32 s23, s23, {LY.QX}")
        for qi in range(4):
            e(f"buffer_load_dword a{AG_QX+2*(4*g+qi)}, v12, {R}, s23 offen offset:{qi*128}")
    for i in range(16): e(f"v_mov_b32 v{A_P[1]+i}, 0")
    for i in range(16): e(f"v_accvgpr_write_b32 a{SET(1)+8+i}, 0")
    for s_ in range(NSET): e(f"v_accvgpr_write_b32 a{SET(s_)+25}, 0")
    for qi in range(NQ): e(f"v_accvgpr_write_b32 a{AG_QX+2*qi+1}, 0")
    for qi in range(NQ): e(f"v_mfma_f32_32x32x16_bf16 {vr(A_O+16*qi,16)}, {vr(A_P[1],4)}, {vr(A_P[1],4)}, 0")
    stamp(e, 1)
    e("s_waitcnt vmcnt(0)")
    stamp(e, 2)
    q0 = qk(0, 0, A_S[0])
    e(q0[0]); e("s_nop 15"); e("s_nop 1"); e(q0[1]); e(q0[2])
    e("s_nop 10")
    e(f"s_mov_b32 s{SA_CNT}, 8")
    e(".p2align 6")
    e.label("L3_attn_loop")
    NB_ = 2 * NQ
    for n in range(NB_):
        kp, qi = divmod(n, NQ)
        n1 = (n + 1) % NB_; n0 = (n - 1) % NB_
        X, Ma, Mb = qk(n1 // NQ, n1 % NQ, A_S[n1 & 1]); p = pv(n0 // NQ, n0 % NQ, A_P[n0 & 1])
        va = expcvt(n)
        seq = []
        ld = attn_loads(kp + 1)
        if qi == NQ - 1: seq.append("s_waitcnt vmcnt(4)")
        cuts = eval(os.environ.get('ATT_CUTS', '[0, 8, 15, 22, 29, 35, 42, 48]')) if qi < 7 else [0, 9, 16, 23, 30, 36, 42, 48]
        mf = [X, p[0], p[1], Ma, Mb, p[2], p[3]]
        for k in range(7):
            if k == 1 and qi == 1: seq.append("s_waitcnt vmcnt(2)")
            seq.append(mf[k])
            if k == 0 and qi < 7 and not os.environ.get('ATT_NOLOAD'): seq.append(ld[qi])
            if k == 0 and qi == 7: seq += ld[7:9]
            if k == 3 and qi == 7: seq += ld[9:10]
            seq += va[cuts[k]:cuts[k + 1]]
        e.extend(seq)
    e(f"s_sub_u32 s{SA_CNT}, s{SA_CNT}, 1")
    e(f"s_cmp_lg_u32 s{SA_CNT}, 0")
    e("s_cbranch_scc1 L3_attn_loop")
    e("s_nop 1")
    for m in pv(1, NQ - 1, A_P[1]): e(m)
    e("s_nop 15")
    stamp(e, 5)
    e(f"s_mul_i32 s23, s{S_W}, 12288"); e(f"v_add_u32 v4, s23, v{A_K0OFF}")
    for i in range(4):
        for q in range(3):
            e(f"ds_write_b128 v4, {vr(A_O+16*(4+i)+4*q,4)} offset:{(3*i+q)*1024}")
    e(f"s_xor_b32 s23, s{S_W}, 2"); e("s_mul_i32 s23, s23, 12288"); e(f"v_add_u32 v4, s23, v{A_K0OFF}")
    e("s_waitcnt lgkmcnt(0)"); e("s_barrier")
    for i in range(4):
        for q in range(3):
            e(f"ds_read_b128 {vr(A_S[0]+12*i+4*q,4)}, v4 offset:{(3*i+q)*1024}")
    e("s_waitcnt lgkmcnt(0)")
    for i in range(4):
        for r in range(11): e(f"v_add_f32 v{A_O+16*i+r}, v{A_O+16*i+r}, v{A_S[0]+12*i+r}")
    e.label("L3_attn_fin")
    e("s_mul_i32 s23, s34, 36864")
    e(f"s_add_u32 s23, s23, {LY.OF}")
    e("s_lshl_b32 s24, s9, 10")
    e("s_add_u32 s24, s24, s23")
    e("s_lshr_b32 s25, s9, 3")
    e("s_add_u32 s25, s25, 32")
    e("s_lshl_b32 s25, s25, 10")
    e("s_add_u32 s25, s25, s23")
    e("s_lshr_b32 s29, s9, 2"); e("s_and_b32 s29, s29, 1"); e("s_lshl_b32 s29, s29, 9")
    e("s_add_u32 s25, s25, s29")
    e("s_and_b32 s29, s9, 3"); e("s_lshl_b32 s29, s29, 2")
    e("s_add_u32 s25, s25, s29")
    e("s_mov_b64 s[32:33], %d" % (0 if force_slow else -1))
    for qi in range(4):
        O = A_O + 16 * qi
        e(f"v_mov_b32 v4, v{O+10}")
        e(f"v_mov_b32 v5, v{O+10}")
        e("s_nop 1")
        e("v_permlane32_swap_b32 v4, v5")
        e(f"v_cmp_le_f32 vcc, {hexf(2.0**-60)}, v4")
        e("s_and_b64 s[32:33], s[32:33], vcc")
        e(f"v_cmp_ge_f32 vcc, {hexf(2.0**100)}, v4")
        e("s_and_b64 s[32:33], s[32:33], vcc")
        e("v_rcp_f32 v5, v4")
        e("v_mov_b32 v6, 0")
        for r in range(10): e(f"v_mul_f32 v{O+r}, v{O+r}, v5")
        for r in range(10): e(f"v_fmac_f32 v6, 0, v{O+r}")
        e("v_cmp_o_f32 vcc, v6, v6")
        e("s_and_b64 s[32:33], s[32:33], vcc")
    e("s_cmp_eq_u32 s30, 0")
    e("s_cbranch_scc0 L3_attn_store")
    e("s_cmp_eq_u64 s[32:33], exec")
    e("s_cbranch_scc0 L3_attn_slow")
    e.label("L3_attn_store")
    e("v_and_b32 v4, 31, v0")
    e("v_lshlrev_b32 v4, 4, v4")
    for qi in range(4):
        O = A_O + 16 * qi
        t = A_P[0] + 8 * (qi % 4)
        for j in range(5): e(f"v_cvt_pk_bf16_f32 v{t+j}, v{O+2*j}, v{O+2*j+1}")
        e(f"buffer_store_dwordx4 {vr(t,4)}, v{A_K0OFF}, {R}, s24 offen")
        e("s_mov_b64 exec, 0xffffffff")
        e(f"buffer_store_dword v{t+4}, v4, {R}, s25 offen")
        e("s_mov_b64 exec, -1")
        if qi != 3:
            e("s_add_u32 s24, s24, 36864")
            e("s_add_u32 s25, s25, 36864")
    fin(e)
    e.label("L3_attn_slow")
    M = A_M
    e("s_mov_b32 s30, 1")
    e("s_mov_b32 s16, s26"); e("s_mov_b32 s17, s27"); e("s_mov_b32 s18, s28")
    for i in range(64): e(f"v_mov_b32 v{A_O+i}, 0")
    for qi in range(4): e(f"v_mov_b32 v{M+qi}, 0xff800000")
    e(f"s_mov_b32 s{SA_CNT}, 32")
    e.label("L3_attn_slow_loop")
    e("s_waitcnt vmcnt(0)")
    for x in attn_loads(0): e(x)
    e("s_waitcnt vmcnt(0)")
    for qi in range(4):
        S = A_S[0]; P = A_P[0]; O = A_O + 16 * qi
        X, Ma, Mb = qk(0, qi, S)
        e(X); e("s_nop 15"); e("s_nop 1"); e(Ma); e(Mb)
        e("s_nop 11")
        e(f"v_max3_f32 v4, v{S}, v{S+1}, v{S+2}")
        for i in range(3, 31, 2): e(f"v_max3_f32 v4, v4, v{S+i}, v{S+i+1}")
        e(f"v_max_f32 v4, v4, v{S+31}")
        e("v_mov_b32 v5, v4")
        e("s_nop 1")
        e("v_permlane32_swap_b32 v4, v5")
        e("v_max_f32 v4, v4, v5")
        e(f"v_max_f32 v4, v4, v{M+qi}")
        e(f"v_sub_f32 v5, v{M+qi}, v4")
        e("v_exp_f32 v5, v5")
        e(f"v_mov_b32 v{M+qi}, v4")
        for i in range(32): e(f"v_sub_f32 v{S+i}, v{S+i}, v4")
        for i in range(32): e(f"v_exp_f32 v{S+i}, v{S+i}")
        for i in range(16): e(f"v_mul_f32 v{O+i}, v{O+i}, v5")
        for j in range(16): e(f"v_cvt_pk_bf16_f32 v{P+j}, v{S+2*j}, v{S+2*j+1}")
        e("s_nop 1")
        for m in pv(0, qi, P): e(m)
        e("s_nop 11")
    e(f"s_sub_u32 s{SA_CNT}, s{SA_CNT}, 1")
    e(f"s_cmp_lg_u32 s{SA_CNT}, 0")
    e("s_cbranch_scc1 L3_attn_slow_loop")
    e("s_nop 7")
    e("s_branch L3_attn_fin")

def gen(force_slow=False, only=None):
    e = Emit()
    kernel_head(e, NAME)
    Diag.kid = 2
    e("s_cmp_ge_u32 s2, 256")
    e("s_cbranch_scc1 L3_exit")
    e(f"s_load_dwordx2 s[4:5], s[0:1], {KA_WS}")
    e("s_and_b32 s6, s2, 7")
    e("s_lshr_b32 s7, s2, 3")
    e("v_lshrrev_b32 v1, 6, v0")
    e("v_and_b32 v0, 63, v0")
    e(f"v_readfirstlane_b32 s{S_W}, v1")
    e("s_mov_b32 s30, 0")
    code_prefetch(e, NAME, "L3_exit", 3, vaddr=16, vtmp=17, vdst=20, sp=60)
    e("s_waitcnt lgkmcnt(0)")
    make_srd(e, S_SRD, 4, LY.WS_END)
    stamp(e, 0)
    dbg_start(e)
    e("s_cmp_lt_u32 s7, 16")
    if only == "mlp":
        e("s_cbranch_scc0 L3_exit")
    else:
        e("s_cbranch_scc0 L3_attn")
    if only == "attn":
        e("s_branch L3_exit")
    gen_mlp(e)
    gen_attn(e, force_slow)
    e.label("L3_exit")
    e("s_endpgm")
    return e.text()

if __name__ == "__main__":
    t = gen()
    errs = check(t, "l3")
    for x in errs: print(x)
    print("instrs", sum(1 for l in t.split("\n") if l.startswith("    ")), "hazard errs", len(errs))
    open("l3.s", "w").write(t)
```

```python
import numpy as np
T=2048; D=576; H=32; DH=18; F=4608
KB=1024
def _al(x,a=4096): return (x+a-1)//a*a
off=0
def take(n):
    global off
    o=off; off=_al(off+n); return o
QF0 = take(H*64*1024)
QX  = take(H*T*4)
KF0 = take(H*64*1024)
KX  = take(H*T*4)
VF  = take(H*128*608)
HS  = take(64*36*1024)
G   = take(T*4)
X1F = take(64*36*1024)
NSTAT = 18
ST2 = take(24*T*8)
W3P = take(144*36*1024)
WOP = take(4*5*36*1024)
OF  = take(64*36*1024)
PART= take(8*64*36*1024)
CNT = take(128*128)
WS_END = off
VHEAD = 128*608

def pi16(s):
    return (s & 3) | ((s >> 1) & 4) | ((s << 1) & 8) | (s & ~15)
def dmap(h, dp):
    return dp if h % 2 == 0 else (dp + 2) % 18

def f2bf(x):
    x = np.ascontiguousarray(x, dtype=np.float32)
    u = x.view(np.uint32).astype(np.uint64)
    return ((u + 0x7FFF + ((u >> 16) & 1)) >> 16).astype(np.uint16)
def bf2f(u):
    return (np.ascontiguousarray(u, dtype=np.uint16).astype(np.uint32) << 16).view(np.float32)

L = np.arange(64); LT = L & 31; LH = L >> 5; E = np.arange(8)

def pack_act(x):
    x = x.reshape(64, 32, 36, 2, 8)
    return np.ascontiguousarray(x.transpose(0, 2, 3, 1, 4).reshape(64, 36, 64, 8))
def unpack_act(a):
    a = a.reshape(64, 36, 2, 32, 8)
    return np.ascontiguousarray(a.transpose(0, 3, 1, 2, 4).reshape(2048, 576))

DP = np.array([[dmap(h, dp) for dp in range(18)] for h in range(H)])

def split_heads(m):
    m = m.reshape(T, H, DH).transpose(1, 0, 2)
    return np.stack([m[h][:, DP[h]] for h in range(H)])
def pack_qk(m):
    s = split_heads(m)
    main = s[:, :, :16].reshape(H, 64, 32, 2, 8).transpose(0, 1, 3, 2, 4).reshape(H, 64, 64, 8)
    return np.ascontiguousarray(main), np.ascontiguousarray(s[:, :, 16:18])
def unpack_qk(f0, x):
    main = f0.reshape(H, 64, 2, 32, 8).transpose(0, 1, 3, 2, 4).reshape(H, T, 16)
    return np.concatenate([main, x.reshape(H, T, 2)], axis=2)
PI16 = np.array([pi16(s) for s in range(16)])
def pack_v(m):
    s = split_heads(m)
    s = np.concatenate([s, np.ones((H, T, 1), s.dtype)], axis=2)
    s = s.reshape(H, 128, 16, 19)[:, :, PI16, :]
    s = s.reshape(H, 128, 2, 8, 19).transpose(0, 1, 2, 4, 3)
    return np.ascontiguousarray(s)
def pack_o(o):
    s = split_heads(o)
    out = np.zeros((64, 36, 64, 8), o.dtype)
    st = s.reshape(H, 64, 32, 18)
    for h in range(H):
        main = st[h][:, :, :16][:, :, PI16]
        out[:, h] = main.reshape(64, 32, 2, 8).transpose(0, 2, 1, 3).reshape(64, 64, 8)
        j = h >> 3; hf = (h >> 2) & 1; q = h & 3
        out[:, 32 + j, 32 * hf:32 * hf + 32, 2 * q:2 * q + 2] = st[h][:, :, 16:18]
    return out
def unpack_o(a):
    o = np.zeros((T, H, DH), a.dtype)
    for h in range(H):
        main = a[:, h].reshape(64, 2, 32, 8).transpose(0, 2, 1, 3).reshape(T, 16)
        dp = np.zeros((T, 18), a.dtype)
        dp[:, PI16] = main
        j = h >> 3; hf = (h >> 2) & 1; q = h & 3
        dp[:, 16:18] = a[:, 32 + j, 32 * hf:32 * hf + 32, 2 * q:2 * q + 2].reshape(T, 2)
        o[:, h, DP[h]] = dp
    return o.reshape(T, D)
PI32 = np.array([pi16(i & 15) | (i & 16) for i in range(32)])
def mlp_phase_order():
    order = [("S1", 0), ("S1", 1)]
    for c in range(16): order += [("S2", c), ("S1", c + 2)]
    order += [("S2", 16), ("S2", 17)]
    return order
def pack_w34(w3c, w4):
    out = np.zeros((8, 36, 36, 64, 8), w3c.dtype)
    for s in range(8):
        for p, (kind, c) in enumerate(mlp_phase_order()):
            f0 = 576 * s + 32 * c
            if kind == "S1":
                blk = w3c[:, f0:f0 + 32][:, PI32]
                blk = blk.reshape(36, 2, 8, 32).transpose(0, 1, 3, 2)
                out[s, p] = blk.reshape(36, 64, 8)
            else:
                blk = w4[f0:f0 + 32, :].reshape(2, 2, 8, 18, 32)[:, :, :, :, PI32]
                blk = blk.transpose(0, 3, 1, 4, 2)
                out[s, p] = blk.reshape(36, 64, 8)
    return out
def pack_w3(w3c):
    out = np.zeros((144, 36, 64, 8), w3c.dtype)
    for ft in range(144):
        blk = w3c[:, 32 * ft:32 * ft + 32][:, PI32]
        out[ft] = blk.reshape(36, 2, 8, 32).transpose(0, 1, 3, 2).reshape(36, 64, 8)
    return out
def wo_rows():
    r = np.zeros((36, 16), np.int64)
    for h in range(32):
        for s in range(16): r[h, s] = 18 * h + dmap(h, pi16(s))
    for j in range(4):
        for s in range(16):
            hf = s >> 3; e = s & 7
            h = 8 * j + 4 * hf + (e >> 1)
            r[32 + j, s] = 18 * h + dmap(h, 16 + (e & 1))
    return r
def pack_wo(wo):
    out = np.zeros((4, 5, 36, 64, 8), wo.dtype)
    rows = wo_rows()
    for ct in range(4):
        for Tt in range(5):
            cols = 32 * Tt + PI32
            valid = cols < 144
            cc = 144 * ct + np.where(valid, cols, 0)
            blk = wo[rows.reshape(-1)][:, cc] * valid[None, :]
            blk = blk.reshape(36, 2, 8, 32).transpose(0, 1, 3, 2)
            out[ct, Tt] = blk.reshape(36, 64, 8)
    return out
if __name__ == "__main__":
    print("WS_END", WS_END, hex(WS_END))
    for n in "QF0 QX KF0 KX VF HS G X1F ST2 W3P WOP OF PART".split(): print(n, hex(globals()[n]))
    rng = np.random.default_rng(0)
    x = rng.standard_normal((T, D)).astype(np.float32)
    assert (unpack_act(pack_act(x)) == x).all()
    assert (unpack_o(pack_o(x)) == x).all()
    f0, xx = pack_qk(x)
    assert (unpack_qk(f0, xx) == split_heads(x)).all()
    print("ok")
```

```python
from gen_common import *
import gen_repack
NAME = "l1_kernel"
BLOCK = 512
SLOT = 36864
GW_OFF = 4 * SLOT
XCH_OFF = GW_OFF + 2048
LDS_BYTES = XCH_OFF + 3584 + 8*384
S_WS = 12; S_X = 16; S_W = 20; S_GW = 24
V_L16 = 1
V_XO = 2
V_WO = 6
V_XA = 216
V_WA = 11
V_GA = 14
V_ST = 15
V_CS = 212
ACC = 32
EX0 = 80
EX1 = 96
ECS = 112
XF = 128
WF = 144
GF = 192
ONE = 208
NVGPR = 220
QSCALE = math.log2(math.e) / math.sqrt(18.0)
TILES = {0: [0, 1], 1: [2, 3, 4]}
NWP = {0: 5, 1: 0}
S_WV, S_RB, S_CT, S_CQ = 8, 9, 10, 11
S_RS, S_XO, S_WO, S_XM, S_ST, S_DL, S_WSTEP, S_SLX, S_WM, S_T2, S_SLW, S_KX = 28, 29, 30, 31, 32, 33, 34, 35, 36, 37, 38, 39
S_KW, S_KC, S_GD, S_TT = 64, 65, 66, 56
S_WBACK, S_C128 = 60, 61
HEADS = [(0, 7), (1, 2), (3, 4), (5, 6)]

def dma_x(fg):
    if fg: return [[], [], [], []]
    o = [[f"s_add_u32 m0, s{S_SLX}, s{S_XM}", f"s_add_u32 s{S_KX}, s{S_KX}, 1", f"buffer_load_dwordx4 v{V_XO}, s[{S_X}:{S_X+3}], s{S_XO} offen lds"]]
    for i in range(1, 4):
        o.append([f"buffer_load_dwordx4 v{V_XO+i}, s[{S_X}:{S_X+3}], s{S_XO} offen offset:{i*1024} lds"])
    o[-1] += [f"s_cmp_eq_u32 s{S_KX}, 9", f"s_cselect_b32 s{S_KX}, 0, s{S_KX}", f"s_cselect_b32 s69, {(-1024) & 0xffffffff}, s{S_C128}", f"s_add_u32 s{S_XO}, s{S_XO}, s69",
              f"s_add_u32 s{S_SLX}, s{S_SLX}, {SLOT}", f"s_cmp_eq_u32 s{S_SLX}, {4*SLOT}", f"s_cselect_b32 s{S_SLX}, 0, s{S_SLX}"]
    return o
def dma_w(fg):
    if fg: return [[], [], [], [], []]
    o = [[f"s_add_u32 m0, s{S_SLW}, s{S_WM}", f"s_add_u32 s{S_KW}, s{S_KW}, 1", f"buffer_load_dwordx4 v{V_WO}, s[{S_W}:{S_W+3}], s{S_WO} offen lds"]]
    for i in range(1, 4):
        o.append([f"buffer_load_dwordx4 v{V_WO+i}, s[{S_W}:{S_W+3}], s{S_WO} offen offset:{i*1024} lds"])
    o.append(["s_add_u32 m0, m0, 4096", f"s_cmp_eq_u32 s{S_KW}, 9", f"buffer_load_dwordx4 v{V_WO+4}, s[{S_W}:{S_W+3}], s{S_WO} offen lds",
              f"s_cselect_b32 s{S_KW}, 0, s{S_KW}", f"s_cselect_b32 s69, s{S_WBACK}, s{S_WSTEP}", f"s_add_u32 s{S_WO}, s{S_WO}, s69",
              f"s_add_u32 s{S_SLW}, s{S_SLW}, {SLOT}", f"s_cmp_eq_u32 s{S_SLW}, {4*SLOT}", f"s_cselect_b32 s{S_SLW}, 0, s{S_SLW}"])
    return o

def reads(s, variant, fg):
    o = [f"ds_read_b128 {vr(XF+4*s,4)}, v{V_XA+s}"]
    if variant == "q0" and fg == 0: o.append(f"ds_read_b128 {vr(GF+4*s,4)}, v{V_GA} offset:{32*s}")
    for i, T in enumerate(TILES[fg]):
        for q in range(2):
            o.append(f"ds_read_b64_tr_b16 {vr(WF+12*s+4*i+2*q,2)}, v{V_WA+i} offset:{(16*s+4*q)*320}")
    return o

def advance_addrs(variant, fg):
    o = [f"v_add_u32 v{r}, s{S_DL}, v{r}" for r in list(range(V_XA, V_XA + 4)) + list(range(V_WA, V_WA + len(TILES[fg])))]
    if variant == "q0" and fg == 0:
        o += [f"s_add_u32 s{S_KC}, s{S_KC}, 1", f"s_cmp_eq_u32 s{S_KC}, 9", f"s_cselect_b32 s{S_KC}, 0, s{S_KC}",
              f"s_cselect_b32 s{S_GD}, {(-1024) & 0xffffffff}, s{S_C128}", f"v_add_u32 v{V_GA}, s{S_GD}, v{V_GA}"]
    return o

def mfmas(s, variant, fg):
    xf = vr(XF + 4 * s, 4); one = vr(ONE, 4)
    m = []
    for i, T in enumerate(TILES[fg]):
        wf = vr(WF + 12 * s + 4 * i, 4); a = vr(ACC + 16 * i, 16)
        m.append(f"v_mfma_f32_32x32x16_bf16 {a}, {xf}, {wf}, {a}" if variant == "v" else f"v_mfma_f32_32x32x16_bf16 {a}, {wf}, {xf}, {a}")
    if variant == "q0" and fg == 0:
        m.append(f"v_mfma_f32_32x32x16_bf16 {vr(EX0,16)}, {vr(GF+4*s,4)}, {xf}, {vr(EX0,16)}")
    if variant == "h" and fg == 0:
        m.append(f"v_mfma_f32_32x32x16_bf16 {vr(EX0,16)}, {one}, {xf}, {vr(EX0,16)}")
    return m

def main_loop(e, variant, fg):
    lab = f"L1_loop_{variant}{fg}"
    nrd = len(reads(0, variant, fg))
    nw = NWP[fg]
    e(f"s_mov_b32 s{S_ST}, 0")
    if fg == 0: e("s_waitcnt vmcnt(13)")
    e("s_barrier")
    stamp(e, 2)
    e.extend(reads(0, variant, fg)); e.extend(reads(1, variant, fg))
    e(".p2align 6")
    e.label(lab)
    dx = dma_x(fg); dw = dma_w(fg)
    place = {(0, 0): dw[0], (0, 1): dw[1] + dw[2], (1, 0): dw[3], (1, 1): dw[4], (2, 0): dx[0], (2, 1): dx[1], (3, 0): dx[2], (3, 1): dx[3]}
    touch = Opt.late_touch and Opt.touch_in_loop and fg == 1 and variant != "h"
    for s in range(4):
        pre = []
        if s == 2:
            if fg == 0:
                pre = ["s_waitcnt vmcnt(9)", "s_barrier",
                       f"s_cmp_lt_u32 s{S_ST}, 6", f"s_cselect_b32 s{S_XO}, s{S_XO}, 0x40000000", f"s_cselect_b32 s{S_WO}, s{S_WO}, 0x40000000"]
            else:
                pre = ["s_barrier"]
                if touch:
                    for k, stg in enumerate(Opt.touch_stages):
                        pre += [f"s_cmp_eq_u32 s{S_ST}, {stg}", f"s_cbranch_scc0 {lab}_t{k}", late_issue()[k], f"{lab}_t{k}:"]
        rd = reads((s + 2) % 4, variant, fg)
        e(f"s_waitcnt lgkmcnt({nrd})")
        mf = mfmas(s, variant, fg)
        n = len(rd); nm = len(mf)
        per = (n + nm - 1) // nm
        extra = []
        if variant == "h" and fg == 0:
            for j in range(4):
                extra += [f"v_lshlrev_b32 v{20+(j%2)}, 16, v{XF+4*s+j}", f"v_and_b32 v{26+(j%2)}, 0xffff0000, v{XF+4*s+j}",
                          f"v_fmac_f32 v{V_ST+2}, v{20+(j%2)}, v{20+(j%2)}", f"v_fmac_f32 v{V_ST+3}, v{26+(j%2)}, v{26+(j%2)}"]
        for T in range(nm):
            e(mf[T])
            if T == 0: e.extend(pre)
            e.extend(rd[T * per:(T + 1) * per])
            e.extend(extra[T * len(extra) // nm:(T + 1) * len(extra) // nm])
            e.extend(place.get((s, T), []))
        if variant == "h":
            e(f"s_cmp_eq_u32 s{S_TT}, {s}")
            e(f"s_cbranch_scc0 {lab}_cs{s}")
            for j in range(4):
                for i in range(len(TILES[fg])):
                    e(f"v_lshlrev_b32 v{22+i}, 16, v{WF+12*s+4*i+j}")
                for i in range(len(TILES[fg])):
                    e(f"v_add_f32 v{V_CS+i}, v{V_CS+i}, v{22+i}")
                for i in range(len(TILES[fg])):
                    e(f"v_and_b32 v{22+i}, 0xffff0000, v{WF+12*s+4*i+j}")
                for i in range(len(TILES[fg])):
                    e(f"v_add_f32 v{V_CS+i}, v{V_CS+i}, v{22+i}")
            e.label(f"{lab}_cs{s}")
        if s == 1:
            e(f"s_add_u32 s{S_T2}, s{S_ST}, 1")
            e(f"s_and_b32 s{S_DL}, s{S_T2}, 3")
            e(f"s_cmp_eq_u32 s{S_DL}, 0")
            e(f"s_cselect_b32 s{S_DL}, s68, s67")
            e.extend(advance_addrs(variant, fg))
    e(f"s_add_u32 s{S_ST}, s{S_ST}, 1")
    e(f"s_cmp_lt_u32 s{S_ST}, 9")
    e(f"s_cbranch_scc1 {lab}")
    stamp(e, 5)
    e("s_waitcnt lgkmcnt(0)")
    e("s_nop 7")

def setup_x(e, fg):
    for i in range(4):
        e("v_lshrrev_b32 v21, 3, v0"); e(f"v_add_u32 v21, {8*i}, v21")
        e("v_lshrrev_b32 v22, 1, v21"); e("v_and_b32 v22, 7, v22"); e("v_and_b32 v23, 7, v0"); e("v_xor_b32 v22, v22, v23")
        e("v_mul_u32_u24 v21, 1152, v21"); e("v_lshlrev_b32 v22, 4, v22"); e("v_add_u32 v21, v21, v22")
        if i: e(f"v_subrev_u32 v{V_XO+i}, {1024*i}, v21")
        else: e(f"v_mov_b32 v{V_XO}, v21")
    e(f"s_lshl_b32 s{S_XM}, s{S_TT}, 12")
def setup_w(e, fg):
    e(f"s_mul_i32 s{S_WM}, s{S_TT}, 5")
    e(f"s_lshl_b32 s69, s{S_WM}, 6")
    for i in range(5):
        e(f"v_add_u32 v21, s69, v0")
        if i: e(f"v_add_u32 v21, {64*i}, v21")
        e("v_mul_u32_u24 v22, 3277, v21"); e("v_lshrrev_b32 v22, 16, v22")
        e("v_mul_u32_u24 v23, 20, v22"); e("v_sub_u32 v23, v21, v23")
        e(f"v_mul_lo_u32 v22, v22, s{S_RS}")
        e("v_cmp_lt_u32 vcc, 17, v23"); e("v_subrev_u32 v24, 2, v23"); e("v_mov_b32 v25, 0x40000000"); e("v_cndmask_b32 v24, v23, v24, vcc")
        e("v_lshlrev_b32 v24, 4, v24"); e("v_add_u32 v22, v22, v24")
        e("v_and_b32 v24, 30, v23"); e("v_cmp_eq_u32 vcc, 16, v24")
        if i % 4: e(f"v_subrev_u32 v22, {1024*(i%4)}, v22")
        else: e("s_nop 0")
        e("s_nop 0")
        e(f"v_cndmask_b32 v{V_WO+i}, v22, v25, vcc")
    e(f"s_lshl_b32 s{S_WM}, s{S_WM}, 10"); e(f"s_add_u32 s{S_WM}, s{S_WM}, 16384")
def setup_xread(e):
    e("v_and_b32 v21, 31, v0"); e("v_lshrrev_b32 v22, 5, v0")
    e("v_lshrrev_b32 v23, 1, v21"); e("v_and_b32 v23, 7, v23"); e("v_xor_b32 v23, v23, v22"); e("v_lshlrev_b32 v23, 4, v23")
    e("v_lshlrev_b32 v24, 7, v21"); e("v_add_u32 v23, v23, v24")
    e(f"s_lshl_b32 s69, s{S_TT}, 12"); e(f"v_add_u32 v{V_XA}, s69, v23")
    for s in range(1, 4): e(f"v_xor_b32 v{V_XA+s}, {32*s}, v{V_XA}")

def lane_parts(e):
    e("v_lshrrev_b32 v21, 5, v0"); e("v_bfe_u32 v22, v0, 4, 1"); e("v_bfe_u32 v23, v0, 2, 2"); e("v_and_b32 v24, 3, v0")
    e("v_and_b32 v25, 1, v0"); e("v_lshlrev_b32 v25, 1, v25"); e("v_bfe_u32 v26, v0, 1, 1"); e("v_or_b32 v25, v25, v26")
    e("v_lshlrev_b32 v26, 3, v21"); e("v_add_u32 v26, v26, v23"); e("v_mul_u32_u24 v26, 320, v26"); e("v_add_u32 v26, 16384, v26")
def waddr(e, variant, fg):
    lane_parts(e)
    dense = variant == "h"
    q = 24 if variant == "v" else 25
    e(f"v_lshlrev_b32 v27, 3, v{q}"); e("v_add_u32 v27, v27, v26")
    e("v_lshlrev_b32 v28, 5, v22"); e("v_add_u32 v28, v27, v28")
    for i, T in enumerate(TILES[fg]):
        d = V_WA + i
        if dense:
            if T < 4: e(f"v_add_u32 v{d}, {64*T}, v28")
            else: e(f"v_add_u32 v{d}, 288, v27")
        else:
            if T == 0: e("v_mul_u32_u24 v29, 288, v22"); e(f"v_add_u32 v{d}, v27, v29")
            elif T < 4: e(f"v_add_u32 v{d}, {40+72*(T-1)}, v28")
            else: e("v_mul_u32_u24 v29, 72, v24"); e("v_add_u32 v29, v29, v26"); e(f"v_add_u32 v{d}, 32, v29")

def zero_acc(e, variant, fg):
    for i in range(4): e(f"v_mov_b32 v{XF+i}, 0")
    if variant == "h":
        for i in range(4): e(f"v_mov_b32 v{ONE+i}, 0x3f803f80")
        for i in range(4): e(f"v_mov_b32 v{V_ST+i}, 0")
        for i in range(3): e(f"v_mov_b32 v{V_CS+i}, 0")
    e("s_nop 1")
    z = vr(XF, 4)
    for i in range(len(TILES[fg])): e(f"v_mfma_f32_32x32x16_bf16 {vr(ACC+16*i,16)}, {z}, {z}, 0")
    if fg == 0 and variant in ("q0", "h"): e(f"v_mfma_f32_32x32x16_bf16 {vr(EX0,16)}, {z}, {z}, 0")

def prologue_dma(e, fg):
    if fg == 0:
        e(f"s_mov_b32 s{S_SLX}, 0"); e(f"s_mov_b32 s{S_SLW}, 0")
        setup_x(e, fg)
        for grp in dma_x(fg): e.extend(grp)
        setup_w(e, fg)
        for grp in dma_w(fg): e.extend(grp)
        for grp in dma_x(fg): e.extend(grp)
        for grp in dma_w(fg): e.extend(grp)
        for grp in dma_x(fg): e.extend(grp)
    stamp(e, 1)
    setup_xread(e)

def late_setup(e):
    e("s_mov_b64 exec, -1")
    e(f"s_load_dwordx2 s[52:53], s[0:1], {KA_W3}"); e(f"s_load_dwordx2 s[54:55], s[0:1], {KA_W4}")
    e(f"s_load_dwordx2 s[40:41], s[0:1], {KA_W2}"); e(f"s_load_dwordx2 s[58:59], s[0:1], {KA_WO}")
    e(f"s_lshl_b32 s44, s{S_TT}, 6"); e("v_add_u32 v30, s44, v0"); e("v_lshlrev_b32 v30, 7, v30")
    e(f"s_lshl_b32 s69, s{S_CT}, 4"); e(f"s_add_u32 s69, s69, s{S_RB}")
    e("s_waitcnt lgkmcnt(0)")
    for rep, (srd, so) in enumerate(((44, 62), (48, 63))):
        if rep == 0 and True:
            e("s_add_u32 s70x, s69, 0".replace("s70x", f"s{S_T2}"))
        u = f"s{S_GD}"
        if rep == 0: e(f"s_add_u32 {u}, s69, 192")
        else: e(f"s_mov_b32 {u}, s69")
        e(f"s_mov_b32 s{srd}, s52"); e(f"s_mov_b32 s{srd+1}, s53"); e(f"s_mov_b32 s{srd+2}, {576*4608*2}"); e(f"s_mov_b32 s{so}, {u}")
        for lo, p, size in ((162, 54, 576*4608*2), (324, 40, 576*576*2), (345, 58, 576*576*2)):
            e(f"s_cmp_ge_u32 {u}, {lo}")
            e(f"s_cselect_b32 s{srd}, s{p}, s{srd}"); e(f"s_cselect_b32 s{srd+1}, s{p+1}, s{srd+1}")
            if size != 576*4608*2: e(f"s_cselect_b32 s{srd+2}, {size}, s{srd+2}")
            e(f"s_sub_u32 s{S_T2}, {u}, {lo}"); e(f"s_cmp_ge_u32 {u}, {lo}"); e(f"s_cselect_b32 s{so}, s{S_T2}, s{so}")
        e(f"s_and_b32 s{srd+1}, s{srd+1}, 0xffff"); e(f"s_mov_b32 s{srd+3}, 0x20000")
        e(f"s_lshl_b32 s{so}, s{so}, 15")
def late_issue():
    return ["buffer_load_dword v31, v30, s[44:47], s62 offen", "buffer_load_dword v31, v30, s[48:51], s63 offen"]

def epi_qk(e, fg, gate):
    e(f"s_lshl_b32 s44, s{S_RB}, 2"); e(f"s_add_u32 s44, s44, s{S_TT}")
    e(f"s_lshl_b32 s45, s{S_CQ}, 3")
    e("s_lshl_b32 s46, s45, 16"); e("s_lshl_b32 s47, s44, 10"); e("s_add_u32 s46, s46, s47"); e("s_add_u32 s46, s46, s42")
    P = 128
    for i, T in enumerate(TILES[fg]):
        if T == 4: continue
        for j in range(16): e(f"v_mul_f32 v{ACC+16*i+j}, s41, v{ACC+16*i+j}")
        for hh in range(2):
            p = P + 8 * (i % 2) + 4 * hh
            for j in range(4): e(f"v_cvt_pk_bf16_f32 v{p+j}, v{ACC+16*i+8*hh+2*j}, v{ACC+16*i+8*hh+2*j+1}")
            e(f"s_add_u32 s47, s46, {HEADS[T][hh]*65536}")
            e(f"buffer_store_dwordx4 {vr(p,4)}, v{V_L16}, s[{S_WS}:{S_WS+3}], s47 offen")
    if fg == 1:
        a = ACC + 32
        for j in range(8): e(f"v_mul_f32 v{a+j}, s41, v{a+j}")
        for j in range(4): e(f"v_cvt_pk_bf16_f32 v{144+j}, v{a+2*j}, v{a+2*j+1}")
        e("v_and_b32 v21, 31, v0"); e("v_lshlrev_b32 v21, 2, v21"); e("v_lshrrev_b32 v29, 5, v0"); e("v_lshlrev_b32 v29, 14, v29"); e("v_add_u32 v21, v21, v29")
        e("s_lshl_b32 s46, s45, 13"); e("s_lshl_b32 s47, s44, 7"); e("s_add_u32 s46, s46, s47"); e("s_add_u32 s46, s46, s43")
        for j, hoff in enumerate([0, 1, 4, 5]):
            e(f"s_add_u32 s47, s46, {hoff*8192}")
            e(f"buffer_store_dword v{144+j}, v21, s[{S_WS}:{S_WS+3}], s47 offen")
    if gate:
        e(f"v_mul_f32 v23, {hexf(-math.log2(math.e))}, v{EX0}"); e("v_exp_f32 v23, v23"); e("s_nop 0"); e("v_add_f32 v23, 1.0, v23"); e("v_rcp_f32 v23, v23")
        e("v_and_b32 v21, 31, v0"); e("v_lshlrev_b32 v21, 2, v21")
        e("s_lshl_b32 s47, s44, 7"); e(f"s_add_u32 s47, s47, {LY.G}")
        e("s_mov_b64 exec, 0xffffffff")
        e(f"buffer_store_dword v23, v21, s[{S_WS}:{S_WS+3}], s47 offen")
    if Opt.late_touch and not Opt.touch_in_loop and fg == 1:
        late_setup(e); e.extend(late_issue())
    if Opt.repack_l1: e("s_branch L1_tail")
    else: fin(e)

def epi_v(e, fg):
    e(f"s_lshl_b32 s44, s{S_RB}, 2"); e(f"s_add_u32 s44, s44, s{S_TT}")
    e(f"s_lshl_b32 s45, s{S_CQ}, 3")
    e(f"s_mul_i32 s46, s45, {LY.VHEAD}"); e("s_mul_i32 s47, s44, 1216"); e("s_add_u32 s46, s46, s47"); e(f"s_add_u32 s46, s46, {LY.VF}")
    e("v_lshrrev_b32 v21, 5, v0"); e("v_mul_u32_u24 v21, 304, v21")
    e("v_and_b32 v22, 15, v0"); e("v_lshlrev_b32 v22, 4, v22"); e("v_add_u32 v22, v22, v21")
    e("v_bfe_u32 v23, v0, 4, 1")
    e(f"s_mov_b32 s47, {LY.VHEAD}")
    e("v_mul_lo_u32 v24, v23, s47")
    e("v_add_u32 v25, v22, v24")
    if fg == 0: e("v_mul_u32_u24 v24, 7, v24"); e("v_add_u32 v26, v22, v24")
    P = 128
    for i, T in enumerate(TILES[fg]):
        if T == 4: continue
        ad = 26 if T == 0 else 25
        hb = 0 if T == 0 else HEADS[T][0]
        e(f"s_add_u32 s47, s46, {hb*LY.VHEAD}")
        for hh in range(2):
            p = P + 8 * (i % 2) + 4 * hh
            for j in range(4): e(f"v_cvt_pk_bf16_f32 v{p+j}, v{ACC+16*i+8*hh+2*j}, v{ACC+16*i+8*hh+2*j+1}")
            e(f"buffer_store_dwordx4 {vr(p,4)}, v{ad}, s[{S_WS}:{S_WS+3}], s47 offen offset:{608*hh}")
    if fg == 1:
        a = ACC + 32
        e("v_and_b32 v22, 31, v0")
        e("v_lshrrev_b32 v23, 2, v22"); e("v_lshlrev_b32 v23, 1, v23"); e("v_bfe_u32 v24, v22, 1, 1"); e("v_add_u32 v23, v23, v24")
        e("v_and_b32 v24, 1, v22"); e("v_add_u32 v24, 16, v24")
        e("v_cmp_lt_u32 vcc, 15, v22"); e("v_subrev_u32 v25, 16, v22"); e("v_mov_b32 v27, 18")
        e("v_cndmask_b32 v23, v23, v25, vcc"); e("v_cndmask_b32 v24, v24, v27, vcc")
        e(f"s_mov_b32 s47, {LY.VHEAD}"); e("v_mul_lo_u32 v23, v23, s47"); e("v_lshlrev_b32 v24, 4, v24"); e("v_add3_u32 v23, v23, v24, v21")
        e("v_mov_b32 v27, 0x3f803f80")
        for hh in range(2):
            for j in range(4):
                e(f"v_cvt_pk_bf16_f32 v{144+4*hh+j}, v{a+8*hh+2*j}, v{a+8*hh+2*j+1}")
                e(f"v_cndmask_b32 v{144+4*hh+j}, v{144+4*hh+j}, v27, vcc")
        e("v_cmp_gt_u32 vcc, 24, v22"); e("s_nop 1")
        e("s_and_saveexec_b64 s[48:49], vcc")
        for hh in range(2):
            e(f"buffer_store_dwordx4 {vr(144+4*hh,4)}, v23, s[{S_WS}:{S_WS+3}], s46 offen offset:{608*hh}")
    if Opt.late_touch and not Opt.touch_in_loop and fg == 1:
        late_setup(e); e.extend(late_issue())
    if Opt.repack_l1: e("s_branch L1_tail")
    else: fin(e)

def epi_h(e, fg):
    ST = 22
    nT = len(TILES[fg]); T0 = TILES[fg][0]
    for i in range(nT): e(f"v_mov_b32 v{128+i}, v{V_CS+i}")
    e("v_and_b32 v21, 31, v0"); e("v_lshlrev_b32 v21, 2, v21")
    for i in range(nT): e(f"v_permlane32_swap_b32 v{128+i}, v{V_CS+i}")
    for i in range(nT): e(f"v_add_f32 v{V_CS+i}, v{128+i}, v{V_CS+i}")
    e(f"s_mul_i32 s44, s{S_TT}, 640"); e(f"s_add_u32 s44, s44, {XCH_OFF + 128*T0}"); e("v_add_u32 v29, s44, v21")
    for i in range(nT): e(f"ds_write_b32 v29, v{V_CS+i} offset:{128*i}")
    e("v_lshlrev_b32 v27, 1, v21"); e(f"s_lshl_b32 s44, s{S_TT}, 8"); e(f"s_add_u32 s44, s44, {XCH_OFF+2560}"); e("v_add_u32 v27, s44, v27")
    if fg == 0:
        e(f"v_add_f32 v{ST+1}, v{V_ST+2}, v{V_ST+3}")
        e(f"v_mov_b32 v25, v{ST+1}"); e(f"v_mul_f32 v{ST}, {hexf(1/576)}, v{EX0}"); e("s_nop 0")
        e(f"v_permlane32_swap_b32 v25, v{ST+1}")
        e(f"v_add_f32 v{ST+1}, v25, v{ST+1}")
        e(f"v_mul_f32 v{ST+1}, {hexf(1/576)}, v{ST+1}")
        e(f"v_fma_f32 v{ST+1}, -v{ST}, v{ST}, v{ST+1}"); e(f"v_max_f32 v{ST+1}, 0, v{ST+1}"); e(f"v_add_f32 v{ST+1}, {hexf(1e-5)}, v{ST+1}")
        e(f"ds_write_b64 v27, {vr(ST,2)}")
    e("s_waitcnt lgkmcnt(0)"); e("s_barrier")
    if fg == 1: e(f"ds_read_b64 {vr(ST,2)}, v27")
    e(f"v_add_u32 v29, {XCH_OFF + 128*T0}, v21")
    for i in range(nT):
        for wv in range(4): e(f"ds_read_b32 v{144+4*i+wv}, v29 offset:{640*wv+128*i}")
    e("s_waitcnt lgkmcnt(0)")
    for i in range(nT):
        e(f"v_add_f32 v{144+4*i}, v{144+4*i}, v{145+4*i}"); e(f"v_add_f32 v{146+4*i}, v{146+4*i}, v{147+4*i}"); e(f"v_add_f32 v{144+4*i}, v{144+4*i}, v{146+4*i}")
    e(f"s_mul_i32 s44, s{S_WV}, 384"); e(f"s_add_u32 s44, s44, {XCH_OFF+3584}"); e("v_add_u32 v29, s44, v21")
    for i in range(nT): e(f"ds_write_b32 v29, v{144+4*i} offset:{128*i}")
    e("v_lshrrev_b32 v21, 5, v0"); e("v_lshlrev_b32 v21, 4, v21"); e("v_add_u32 v29, s44, v21")
    e("s_waitcnt lgkmcnt(0)")
    SG, RR, AA, BB, MM, SS = 128, 129, 130, 132, 134, 136
    e(f"v_sqrt_f32 v{SG}, v{ST+1}"); e("s_nop 0"); e(f"v_rcp_f32 v{RR}, v{SG}"); e("s_nop 0")
    e(f"v_mul_f32 v{BB}, {hexf(GELU_C0)}, v{RR}"); e(f"v_mul_f32 v{AA}, v{RR}, v{RR}"); e(f"v_mul_f32 v{AA}, v{AA}, v{RR}"); e(f"v_mul_f32 v{AA}, {hexf(GELU_C1)}, v{AA}")
    e(f"v_mov_b32 v{AA+1}, v{AA}"); e(f"v_mov_b32 v{BB+1}, v{BB}"); e(f"v_mov_b32 v{SS}, v{SG}"); e(f"v_mov_b32 v{SS+1}, v{SG}")
    e(f"v_sub_f32 v{MM}, 0, v{ST}"); e(f"v_mov_b32 v{MM+1}, v{MM}")
    e(f"s_lshl_b32 s45, s{S_RB}, 7"); e(f"s_lshl_b32 s46, s{S_TT}, 5"); e("s_add_u32 s45, s45, s46")
    e(f"s_lshr_b32 s46, s{S_CQ}, 1"); e("s_add_u32 s46, s46, 1"); e("s_sub_u32 s47, 0, s46"); e(f"s_bitcmp1_b32 s{S_CQ}, 0"); e("s_cselect_b32 s46, s47, s46")
    e("s_add_u32 s45, s45, s46")
    e("v_and_b32 v21, 31, v0"); e("v_add_u32 v21, s45, v21")
    e("v_cmp_gt_u32 vcc, 2048, v21")
    e("v_and_b32 v21, 2047, v21")
    e("v_lshrrev_b32 v30, 5, v21"); e("s_mov_b32 s47, 36864"); e("v_mul_lo_u32 v30, v30, s47")
    e("v_and_b32 v21, 31, v21"); e("v_lshlrev_b32 v21, 4, v21"); e("v_add_u32 v30, v30, v21")
    e("v_lshrrev_b32 v21, 5, v0"); e("v_lshlrev_b32 v21, 9, v21"); e("v_add_u32 v30, v30, v21")
    e("s_mov_b64 s[50:51], vcc")
    u0 = 2 * TILES[fg][0]
    e(f"s_mul_i32 s47, s{S_CQ}, 9216"); e(f"s_add_u32 s47, s47, {LY.HS + u0*1024}")
    CS = 144; TT = 160
    def pk(op, d, a, b, c=None):
        s = f"v_pk_{op}_f32 {vr(d,2)}, {vr(a,2)}, {vr(b,2)}"
        if c is not None: s += f", {vr(c,2)}"
        return s
    u = 0
    for i, T in enumerate(TILES[fg]):
        nj = 4 if T < 4 else 2
        for j in range(nj): e(f"ds_read_b128 {vr(CS+4*j,4)}, v29 offset:{128*i+32*j}")
        e("s_waitcnt lgkmcnt(0)")
        for half in range(nj // 2):
            a = ACC + 16 * i + 8 * half; cs = CS + 8 * half
            for k in range(0, 8, 2): e(pk("fma", a + k, MM, cs + k, a + k))
            for k in range(0, 8, 2): e(pk("mul", TT + k, a + k, a + k))
            for k in range(0, 8, 2): e(pk("fma", TT + k, TT + k, AA, BB))
            for k in range(0, 8, 2): e(pk("mul", TT + k, a + k, TT + k))
            for k in range(8): e(f"v_exp_f32 v{TT+k}, v{TT+k}")
            for k in range(0, 8, 2): e(pk("fma", TT + k, TT + k, SS, SS))
            for k in range(8): e(f"v_rcp_f32 v{TT+k}, v{TT+k}")
            for k in range(0, 8, 2): e(pk("mul", a + k, a + k, TT + k))
            p = 168 + 4 * (u % 2)
            for j in range(4): e(f"v_cvt_pk_bf16_f32 v{p+j}, v{a+2*j}, v{a+2*j+1}")
            for j in range(4): e(f"v_cndmask_b32 v{p+j}, 0, v{p+j}, s[50:51]")
            e(f"buffer_store_dwordx4 {vr(p,4)}, v30, s[{S_WS}:{S_WS+3}], s47 offen offset:{(u%4)*1024}")
            if u % 4 == 3: e("s_add_u32 s47, s47, 4096")
            u += 1
    fin(e)

def role(e, variant, fg):
    if variant == "q0" and fg == 0:
        e(f"s_mov_b32 m0, {GW_OFF}"); e("s_nop 0")
        e(f"buffer_load_dwordx4 v{V_L16}, s[{S_GW}:{S_GW+3}], 0 offen lds")
        e(f"buffer_load_dwordx4 v{V_L16}, s[{S_GW}:{S_GW+3}], 0 offen offset:1024 lds")
    prologue_dma(e, fg)
    waddr(e, variant, fg)
    if variant == "q0" and fg == 0:
        e("v_lshrrev_b32 v21, 5, v0"); e("v_lshlrev_b32 v21, 4, v21"); e(f"v_add_u32 v{V_GA}, {GW_OFF}, v21")
        e(f"s_lshl_b32 s69, s{S_KC}, 7"); e(f"v_add_u32 v{V_GA}, s69, v{V_GA}")
    if Opt.late_touch and Opt.touch_in_loop and fg == 1 and variant != "h": late_setup(e)
    zero_acc(e, variant, fg)
    if variant in ("q0", "qk"):
        e("s_cmp_eq_u32 s3, 0")
        e(f"s_cselect_b32 s41, {hexf(QSCALE)}, 1.0"); e(f"s_mov_b32 s42, {LY.KF0}"); e(f"s_cselect_b32 s42, {LY.QF0}, s42"); e(f"s_mov_b32 s43, {LY.KX}"); e(f"s_cselect_b32 s43, {LY.QX}, s43")
    main_loop(e, variant, fg)
    if variant in ("q0", "qk"): epi_qk(e, fg, variant == "q0" and fg == 0)
    elif variant == "v": epi_v(e, fg)
    else: epi_h(e, fg)

def gen():
    e = Emit()
    kernel_head(e, NAME)
    Diag.kid = 0
    e("s_cmp_ge_u32 s2, 256")
    e("s_cbranch_scc1 L1_exit")
    e(f"s_load_dwordx2 s[4:5], s[0:1], {KA_WS}")
    e(f"s_load_dwordx4 s[52:55], s[0:1], {KA_XA}")
    e(f"s_load_dwordx2 s[58:59], s[0:1], {KA_W1}")
    e(f"s_load_dwordx2 s[60:61], s[0:1], {KA_GW}")
    e("s_and_b32 s6, s2, 7"); e("s_lshr_b32 s7, s2, 3")
    e("v_lshrrev_b32 v1, 6, v0"); e("v_and_b32 v0, 63, v0")
    e(f"v_readfirstlane_b32 s{S_WV}, v1")
    e(f"s_and_b32 s{S_RB}, s6, 3"); e(f"s_lshl_b32 s{S_RB}, s{S_RB}, 2"); e("s_and_b32 s3, s7, 3"); e(f"s_add_u32 s{S_RB}, s{S_RB}, s3")
    e(f"s_lshr_b32 s{S_CQ}, s6, 2"); e(f"s_lshl_b32 s{S_CQ}, s{S_CQ}, 1"); e("s_bfe_u32 s3, s7, 0x10002"); e(f"s_add_u32 s{S_CQ}, s{S_CQ}, s3")
    e("s_lshr_b32 s3, s7, 3"); e(f"s_lshl_b32 s{S_CT}, s3, 2"); e(f"s_add_u32 s{S_CT}, s{S_CT}, s{S_CQ}")
    e(f"v_lshlrev_b32 v{V_L16}, 4, v0")
    e(f"s_and_b32 s{S_TT}, s{S_WV}, 3")
    e("s_waitcnt lgkmcnt(0)")
    make_srd(e, S_WS, 4, LY.WS_END)
    stamp(e, 0)
    dbg_start(e)
    e("s_cmp_eq_u32 s3, 3")
    e("s_cselect_b32 s64, s58, s54"); e("s_cselect_b32 s65, s59, s55")
    e(f"s_movk_i32 s{S_RS}, 3456"); e(f"s_cselect_b32 s{S_RS}, 1152, s{S_RS}")
    e(f"s_mov_b32 s67, {SLOT}"); e(f"s_mov_b32 s68, {(-3*SLOT) & 0xffffffff}")
    e(f"s_cselect_b32 s66, s{S_CQ}, s{S_CT}")
    make_srd(e, S_X, 52, 2048 * 576 * 2)
    e(f"s_mov_b32 s{S_W}, s64"); e(f"s_and_b32 s{S_W+1}, s65, 0xffff"); e(f"s_mul_i32 s{S_W+2}, s{S_RS}, 576"); e(f"s_mov_b32 s{S_W+3}, 0x20000")
    make_srd(e, S_GW, 60, 1152)
    e(f"s_lshl_b32 s{S_XO}, s{S_RB}, 2"); e(f"s_add_u32 s{S_XO}, s{S_XO}, s{S_TT}"); e(f"s_mul_i32 s{S_XO}, s{S_XO}, 36864")
    e(f"s_mul_i32 s{S_WO}, s66, 288")
    e(f"s_lshl_b32 s{S_WSTEP}, s{S_RS}, 6")
    e("s_and_b32 s69, s7, 3"); e("s_lshl_b32 s69, s69, 1"); e(f"s_lshr_b32 s{S_KX}, s7, 2"); e(f"s_add_u32 s{S_KX}, s{S_KX}, s69")
    e(f"s_cmp_ge_u32 s{S_KX}, 9"); e(f"s_cselect_b32 s69, 9, 0"); e(f"s_sub_u32 s{S_KX}, s{S_KX}, s69")
    if not Opt.rotate: e(f"s_mov_b32 s{S_KX}, 0")
    e(f"s_mov_b32 s{S_KW}, s{S_KX}"); e(f"s_mov_b32 s{S_KC}, s{S_KX}")
    e(f"s_lshl_b32 s69, s{S_KX}, 7"); e(f"s_add_u32 s{S_XO}, s{S_XO}, s69")
    e(f"s_mul_i32 s69, s{S_KX}, s{S_WSTEP}"); e(f"s_add_u32 s{S_WO}, s{S_WO}, s69")
    e(f"s_mul_i32 s{S_WBACK}, s{S_WSTEP}, -8"); e(f"s_movk_i32 s{S_C128}, 128")
    e(f"s_cmp_ge_u32 s{S_WV}, 4"); e("s_cbranch_scc1 L1_fg1")
    code_prefetch(e, NAME, "L1_exit", 3, vaddr=28, vtmp=29, vdst=31, sp=62)
    e("s_cmp_eq_u32 s3, 2"); e("s_cbranch_scc1 L1_v0")
    e("s_cmp_eq_u32 s3, 3"); e("s_cbranch_scc1 L1_h0")
    e(f"s_cmp_eq_u32 s{S_CT}, 0"); e("s_cbranch_scc0 L1_qk0")
    role(e, "q0", 0)
    e.label("L1_qk0"); role(e, "qk", 0)
    e.label("L1_v0"); role(e, "v", 0)
    e.label("L1_h0"); role(e, "h", 0)
    e.label("L1_fg1")
    e("s_cmp_eq_u32 s3, 2"); e("s_cbranch_scc1 L1_v1")
    e("s_cmp_eq_u32 s3, 3"); e("s_cbranch_scc1 L1_h1")
    role(e, "qk", 1)
    e.label("L1_v1"); role(e, "v", 1)
    e.label("L1_h1"); role(e, "h", 1)
    if Opt.repack_l1: gen_repack.gen_tail(e)
    e.label("L1_exit")
    e("s_endpgm")
    return e.text()
if __name__ == "__main__":
    t = gen()
    errs = check(t, "l1")
    for x in errs: print(x)
    print("instrs", sum(1 for l in t.split("\n") if l.startswith("    ")), "hazard errs", len(errs))
```

```python
from gen_common import *
S_WS = 12; S_SRC = 16

def lane_tr_parts(e, vhf, vsub, vr_, vsig):
    e(f"v_lshrrev_b32 v{vhf}, 5, v0"); e(f"v_bfe_u32 v{vsub}, v0, 4, 1"); e(f"v_bfe_u32 v{vr_}, v0, 2, 2")
    e(f"v_and_b32 v{vsig}, 1, v0"); e(f"v_lshlrev_b32 v{vsig}, 1, v{vsig}"); e(f"v_bfe_u32 v15, v0, 1, 1"); e(f"v_or_b32 v{vsig}, v{vsig}, v15")

def dma_rows128(e, rowbytes, swz):
    e("v_lshrrev_b32 v5, 3, v0"); e("v_and_b32 v6, 7, v0")
    if swz:
        e("v_bfe_u32 v7, v0, 4, 1"); e("v_lshlrev_b32 v7, 2, v7"); e("v_xor_b32 v6, v6, v7")
    e(f"s_mov_b32 s32, {rowbytes}"); e("v_mul_lo_u32 v5, v5, s32"); e("v_lshlrev_b32 v6, 4, v6"); e("v_add_u32 v2, v5, v6")
    e(f"s_mul_i32 s29, s8, {72*rowbytes}"); e("s_add_u32 s29, s29, s28")
    e("s_mul_i32 s31, s8, 9216")
    for i in range(9):
        e(f"s_add_u32 m0, s31, {i*1024}")
        e(f"s_add_u32 s30, s29, {i*8*rowbytes}")
        e(f"buffer_load_dwordx4 v2, s[{S_SRC}:{S_SRC+3}], s30 offen lds")

def gen_w3(e, tag):
    e(f"s_load_dwordx2 s[24:25], s[0:1], {KA_W3}")
    e("s_lshl_b32 s28, s9, 7")
    e("s_waitcnt lgkmcnt(0)")
    make_srd(e, S_SRC, 24, 576 * 4608 * 2)
    e("s_barrier")
    dma_rows128(e, 9216, True)
    lane_tr_parts(e, 5, 6, 7, 8)
    e("s_and_b32 s33, s8, 1"); e("s_lshr_b32 s34, s8, 1")
    e("v_lshlrev_b32 v9, 1, v6"); e("v_lshrrev_b32 v10, 1, v8"); e("v_add_u32 v9, v9, v10")
    e("s_lshl_b32 s35, s33, 2"); e("v_add_u32 v9, s35, v9")
    e("v_lshrrev_b32 v10, 1, v7"); e("v_lshlrev_b32 v10, 2, v10"); e("v_xor_b32 v9, v9, v10")
    e("v_lshlrev_b32 v9, 4, v9"); e("v_and_b32 v10, 1, v8"); e("v_lshlrev_b32 v10, 3, v10"); e("v_add_u32 v9, v9, v10")
    e("v_lshlrev_b32 v10, 3, v5"); e("v_add_u32 v10, v10, v7"); e("v_lshlrev_b32 v10, 7, v10"); e("v_add_u32 v9, v9, v10")
    e("s_mul_i32 s35, s34, 18432"); e("v_add_u32 v9, s35, v9")
    F = 32
    e("s_waitcnt vmcnt(0)"); e("s_barrier")
    for k in range(9):
        for q in range(2):
            e(f"ds_read_b64_tr_b16 {vr(F+4*k+2*q,2)}, v9 offset:{k*2048+q*512}")
    e("s_mov_b32 s36, 0x3f803f80"); e("s_mov_b32 s37, 0x00003f80"); e("s_mov_b32 s38, 0x3f800000")
    for a in range(4): e(f"v_mov_b32 v{10+a}, 0")
    for k in range(9):
        if k % 3 == 0: e(f"s_waitcnt lgkmcnt({18 - 2*(k+3)})")
        for j in range(4): e(f"v_dot2c_f32_bf16 v{10+j}, s36, v{F+4*k+j}")
    e("s_nop 2")
    e("v_add_f32 v10, v10, v11"); e("v_add_f32 v12, v12, v13"); e("v_add_f32 v10, v10, v12")
    e("v_mov_b32 v11, v10"); e("v_lshlrev_b32 v12, 2, v0"); e("s_lshl_b32 s35, s8, 8"); e("v_permlane32_swap_b32 v10, v11"); e("v_add_f32 v10, v10, v11")
    e("s_add_u32 s35, s35, 73728"); e("v_add_u32 v13, s35, v12")
    e("ds_write_b32 v13, v10")
    e("s_lshl_b32 s35, s33, 8"); e("s_add_u32 s35, s35, 73728"); e("v_add_u32 v13, s35, v12")
    e("s_waitcnt lgkmcnt(0)"); e("s_barrier")
    for q in range(4): e(f"ds_read_b32 v{20+q}, v13 offset:{512*q}")
    e("s_waitcnt lgkmcnt(0)")
    e("v_add_f32 v20, v20, v21"); e("v_add_f32 v22, v22, v23"); e("v_add_f32 v10, v20, v22"); e(f"v_mul_f32 v10, {hexf(-1/576)}, v10")
    e("s_lshl_b32 s39, s9, 1"); e("s_add_u32 s39, s39, s33")
    e(f"s_mul_i32 s43, s39, 36864"); e(f"s_add_u32 s43, s43, {LY.W3P}")
    e("s_mul_i32 s35, s34, 9216"); e("s_add_u32 s43, s43, s35")
    TS = [72, 80]
    def fink(k):
        t = TS[k % 2]
        for j in range(4): e(f"v_cvt_pk_bf16_f32 v{F+4*k+j}, v{t+2*j}, v{t+2*j+1}")
        e(f"buffer_store_dwordx4 {vr(F+4*k,4)}, v1, s[{S_WS}:{S_WS+3}], s43 offen offset:{(k%4)*1024}")
        if k % 4 == 3: e("s_add_u32 s43, s43, 4096")
    for k in range(9):
        t = TS[k % 2]
        for j in range(4):
            e(f"v_dot2_f32_bf16 v{t+2*j}, v{F+4*k+j}, s37, v10")
            e(f"v_dot2_f32_bf16 v{t+2*j+1}, v{F+4*k+j}, s38, v10")
        if k > 0: fink(k - 1)
    e("s_nop 2")
    fink(8)

def gen_wo(e, tag, exit_label):
    e(f"s_load_dwordx2 s[24:25], s[0:1], {KA_WO}")
    e("s_mul_i32 s10, s9, 86"); e("s_lshr_b32 s10, s10, 8")
    e("s_mul_i32 s11, s10, 3"); e("s_sub_u32 s11, s9, s11")
    e("s_mul_i32 s28, s10, 288"); e("s_lshl_b32 s29, s11, 7"); e("s_add_u32 s28, s28, s29")
    e("s_waitcnt lgkmcnt(0)")
    make_srd(e, S_SRC, 24, 576 * 576 * 2)
    e("s_barrier")
    dma_rows128(e, 1152, False)
    lane_tr_parts(e, 5, 6, 7, 8)
    e("s_and_b32 s33, s8, 1"); e("s_lshr_b32 s34, s8, 1")
    e("v_lshlrev_b32 v9, 5, v6"); e("v_lshlrev_b32 v10, 3, v8"); e("v_add_u32 v9, v9, v10"); e("s_lshl_b32 s35, s33, 6"); e("v_add_u32 v9, s35, v9")
    e("v_lshlrev_b32 v10, 2, v5"); e("v_add_u32 v10, v10, v7"); e("v_lshlrev_b32 v10, 7, v10"); e("v_add_u32 v10, v10, v9")
    e(f"s_mul_i32 s35, s34, {162*128}"); e("v_add_u32 v10, s35, v10")
    e("s_and_b32 s35, s34, 1"); e("s_lshl_b32 s35, s35, 8"); e("v_add_u32 v13, s35, v10")
    e("s_xor_b32 s35, s35, 256"); e("v_add_u32 v14, s35, v10")
    e("v_lshrrev_b32 v11, 1, v7"); e("v_lshlrev_b32 v12, 2, v5"); e("v_add_u32 v12, v12, v11"); e("v_mul_u32_u24 v12, 18, v12")
    e("v_xor_b32 v11, 1, v11"); e("v_lshlrev_b32 v11, 4, v11"); e("v_add_u32 v12, v12, v11"); e("v_and_b32 v11, 1, v7"); e("v_add_u32 v12, v12, v11")
    e("v_lshlrev_b32 v12, 7, v12"); e("v_add_u32 v12, v12, v9")
    F = 32
    e("s_waitcnt vmcnt(0)"); e("s_barrier")
    def main(k):
        for q in range(2): e(f"ds_read_b64_tr_b16 {vr(F+4*k+2*q,2)}, v{13+(k&1)} offset:{(18*k + 8*q)*128}")
    for k in range(5): main(k)
    e("s_cmp_eq_u32 s34, 3"); e(f"s_cbranch_scc1 {tag}_wo_x")
    for k in range(5, 9): main(k)
    e(f"s_branch {tag}_wo_y")
    e.label(f"{tag}_wo_x")
    for k in range(5, 9):
        for q in range(2): e(f"ds_read_b64_tr_b16 {vr(F+4*k+2*q,2)}, v12 offset:{18*(8*(k-5) + 2*q)*128}")
    e.label(f"{tag}_wo_y")
    e("s_lshl_b32 s35, s11, 1"); e("s_add_u32 s35, s35, s33")
    e("s_cmp_eq_u32 s35, 5"); e(f"s_cbranch_scc1 {exit_label}")
    e("s_mul_i32 s36, s10, 5"); e("s_add_u32 s36, s36, s35"); e("s_mul_i32 s36, s36, 36"); e("s_mul_i32 s37, s34, 9"); e("s_add_u32 s36, s36, s37")
    e("s_lshl_b32 s43, s36, 10"); e(f"s_add_u32 s43, s43, {LY.WOP}")
    e("s_waitcnt lgkmcnt(0)")
    for k in range(9):
        e(f"buffer_store_dwordx4 {vr(F+4*k,4)}, v1, s[{S_WS}:{S_WS+3}], s43 offen offset:{(k%4)*1024}")
        if k % 4 == 3: e("s_add_u32 s43, s43, 4096")

def gen_tail(e):
    e.label("L1_tail")
    e("s_mov_b64 exec, -1")
    e("s_cmp_lt_u32 s2, 72"); e("s_cbranch_scc1 L1_rw3")
    e("s_cmp_lt_u32 s2, 84"); e("s_cbranch_scc0 L1_tail_end")
    e("s_sub_u32 s9, s2, 72")
    gen_wo(e, "L1", "L1_tail_end")
    e("s_branch L1_tail_end")
    e.label("L1_rw3")
    e("s_mov_b32 s9, s2")
    gen_w3(e, "L1")
    e.label("L1_tail_end")
    fin(e)
```

```python
import sys
import layouts as LY
import build, gen_l1b, gen_l1 as gen_l1a, gen_l2, gen_l3, gen_l4, gen_common
from asmlib import check
def kernels(**kw):
    gen_l1 = gen_l1b if gen_common.Opt.l1_8wave else gen_l1a
    blk = 512 if gen_common.Opt.l1_8wave else 256
    acc = gen_l1.NVGPR if gen_common.Opt.l1_8wave else gen_l1a.NACC
    fused = gen_common.Opt.fuse_l2
    ks = [(gen_l1.NAME, gen_l1.gen(), 256, blk, gen_l1.LDS_BYTES, gen_l1.NVGPR, acc)]
    if not fused: ks.append((gen_l2.NAME, gen_l2.gen(), 144 if gen_common.Opt.repack_l1 else 256, 256, gen_l2.LDS_BYTES, 400, 256))
    ks += [(gen_l3.NAME, gen_l3.gen(**kw), 256, 256, 148480 if fused else gen_l3.LDS_BYTES, 512, 256),
           ]
    if not gen_common.Opt.fuse_l4: ks.append((gen_l4.NAME, gen_l4.gen(), 256, 256, gen_l4.LDS_BYTES, 440, 256))
    import re
    mod = getattr(gen_common, "STORE_MOD", "")
    if mod:
        ks = [(k[0], re.sub(r"(buffer_store_\w+ [^\n]*offen[^\n]*)", lambda m: m.group(1) if "sc1" in m.group(1) else m.group(1) + " " + mod, k[1]) if k[0] != "l4_kernel" else k[1]) + k[2:] for k in ks]
    for k in ks:
        errs = check(k[1], k[0])
        for x in errs: print(x)
        assert not errs
    return ks
if __name__ == "__main__":
    out = sys.argv[1] if len(sys.argv) > 1 else "gated_mix__softmax_full_mha__mixer_s_mlp__prompt.s"
    s = build.build(kernels(), out)
    print("wrote", out, len(s), "bytes")
```

```python
from asmlib import *
import layouts as LY
import math

KA_XA, KA_WQKV, KA_WO, KA_XB, KA_W1, KA_W2, KA_W3, KA_W4, KA_GW, KA_OUT, KA_DBG, KA_WS = [8*i for i in range(12)]
WS_SIZE = 268435456

def kernel_head(e, name):
    e(f".globl {name}")
    e(".p2align 8")
    e(f".type {name},@function")
    e.label(name)

def kernel_desc(name, vgpr, accum, sgpr=102):
    return f""".amdhsa_kernel {name}
  .amdhsa_next_free_vgpr {vgpr}
  .amdhsa_next_free_sgpr {sgpr}
  .amdhsa_accum_offset {accum}
  .amdhsa_group_segment_fixed_size 0
  .amdhsa_kernarg_size 96
  .amdhsa_user_sgpr_count 2
  .amdhsa_user_sgpr_kernarg_segment_ptr 1
  .amdhsa_system_sgpr_workgroup_id_x 1
  .amdhsa_float_denorm_mode_32 3
.end_amdhsa_kernel
"""

def make_srd(e, dst, ptr, size):
    if dst != ptr: e(f"s_mov_b32 s{dst}, s{ptr}")
    e(f"s_and_b32 s{dst+1}, s{ptr+1}, 0xffff")
    e(f"s_mov_b32 s{dst+2}, {size}")
    e(f"s_mov_b32 s{dst+3}, 0x20000")

GELU_C0 = -2.0 * math.sqrt(2.0 / math.pi) * math.log2(math.e)
GELU_C1 = GELU_C0 * 0.044715

class Diag:
    on = False
    kid = 0
    pre = False
    dbg = False
STAMP_BASE = 0x8000000
def stamp(e, i, grp='main'):
    if Diag.on and (grp == 'any' or (grp == 'pre') == bool(Diag.pre)):
        e(f"s_memrealtime s[{70+2*i}:{71+2*i}]")
        if i == 2: e("s_memtime s[92:93]")
        if i == 5: e("s_memtime s[94:95]")
        e("s_waitcnt lgkmcnt(0)")
def dbg_start(e):
    if Diag.dbg:
        e("s_memrealtime s[96:97]")
        e(f"s_load_dwordx2 s[98:99], s[0:1], {KA_DBG}")
        e("s_waitcnt lgkmcnt(0)")
def fin(e, wave_sgpr=8):
    if Diag.dbg:
        e("s_waitcnt vmcnt(0)")
        e("s_memrealtime s[100:101]")
        e("s_waitcnt lgkmcnt(0)")
        e(f"s_cmp_eq_u32 s{wave_sgpr}, 0"); e(f"s_cbranch_scc0 Ldbg_skip_{len(e.L)}")
        Diag.lab = f"Ldbg_skip_{len(e.L)-1}"
        e("s_mov_b64 exec, 1")
        e(f"s_sub_u32 s98, s98, {512 * Diag.kid}"); e("s_subb_u32 s99, s99, 0")
        e("s_not_b32 s96, s96")
        e("v_mov_b32 v2, s96"); e("v_mov_b32 v3, s100"); e("v_mov_b32 v4, 0")
        e(f"global_atomic_umax v4, v2, s[98:99] offset:{16 * Diag.kid}")
        e(f"global_atomic_umax v4, v3, s[98:99] offset:{16 * Diag.kid + 4}")
        e(f"global_atomic_umax v4, v2, s[98:99] offset:{1536 + 16 * Diag.kid}")
        e(f"global_atomic_umax v4, v3, s[98:99] offset:{1536 + 16 * Diag.kid + 4}")
        e.label(Diag.lab)
    if Diag.on:
        stamp(e, 7, 'any')
        e("s_waitcnt vmcnt(0)")
        e("s_memrealtime s[86:87]")
        e("s_waitcnt lgkmcnt(0)")
        e("s_mov_b64 exec, -1")
        e(f"s_lshl_b32 s88, s2, 3"); e(f"s_add_u32 s88, s88, s{wave_sgpr}"); e("s_lshl_b32 s88, s88, 6")
        e(f"s_add_u32 s88, s88, {STAMP_BASE + Diag.kid * 0x20000}")
        for i in range(8): e(f"v_mov_b32 v{4+i}, s{70+2*i}")
        e("v_mov_b32 v12, s86")
        e("s_sub_u32 s94, s94, s92")
        e("v_mov_b32 v14, s94")
        e("v_mov_b32 v13, s88")
        e("global_store_dwordx4 v13, v[4:7], s[4:5] offset:0")
        e("global_store_dwordx4 v13, v[8:11], s[4:5] offset:16")
        e("global_store_dword v13, v12, s[4:5] offset:32")
        e("global_store_dword v13, v14, s[4:5] offset:36")
    e("s_endpgm")

class Opt:
    code_pf = False
    l1_8wave = True
    l1_touch = False
    late_touch = False
    late_sel = 'all'
    touch_in_loop = True
    touch_stages = (2, 5)
    rotate = False
    rotate2 = True
    repack_l1 = False
    fuse_l2 = True
    cnt_ws = True
    acquire = True
    poll_sleep = 0
    gelu_split = 2
    l2_only = None
    touch64 = False
def code_prefetch(e, start_label, end_label, nblk, vaddr, vtmp, vdst, sp):
    if not Opt.code_pf: return
    lab = f"{start_label}_pc{len(e.L)}"
    e(f"s_getpc_b64 s[{sp}:{sp+1}]")
    e.label(lab)
    e(f"s_sub_u32 s{sp}, s{sp}, {lab}-{start_label}")
    e(f"s_subb_u32 s{sp+1}, s{sp+1}, 0")
    e(f"v_lshlrev_b32 v{vaddr}, 7, v0")
    for i in range(nblk):
        e(f"v_min_u32 v{vtmp}, {end_label}-{start_label}-4, v{vaddr}")
        e(f"global_load_dword v{vdst}, v{vtmp}, s[{sp}:{sp+1}]")
        if i + 1 < nblk: e(f"v_add_u32 v{vaddr}, 0x2000, v{vaddr}")

STORE_MOD = "sc1"
```

```python
from gen_common import *
import gen_repack
NAME = "l1_kernel"
BLOCK = 512
SLOT = 36864
GW_OFF = 4 * SLOT
XCH_OFF = GW_OFF + 2048
LDS_BYTES = XCH_OFF + 3584 + 8*384
S_WS = 12; S_X = 16; S_W = 20; S_GW = 24
V_L16 = 1
V_XO = 2
V_WO = 6
V_XA = 216
V_WA = 11
V_GA = 14
V_ST = 15
V_CS = 212
ACC = 32
EX0 = 80
EX1 = 96
ECS = 112
XF = 128
WF = 144
GF = 192
ONE = 208
NVGPR = 220
QSCALE = math.log2(math.e) / math.sqrt(18.0)
TILES = {0: [0, 1], 1: [2, 3, 4]}
NWP = {0: 5, 1: 0}
S_WV, S_RB, S_CT, S_CQ = 8, 9, 10, 11
S_RS, S_XO, S_WO, S_XM, S_ST, S_DL, S_WSTEP, S_SLX, S_WM, S_T2, S_SLW, S_KX = 28, 29, 30, 31, 32, 33, 34, 35, 36, 37, 38, 39
S_KW, S_KC, S_GD, S_TT = 64, 65, 66, 56
S_WBACK, S_C128 = 60, 61
HEADS = [(0, 7), (1, 2), (3, 4), (5, 6)]

def dma_x(fg):
    if fg: return [[], [], [], []]
    o = [[f"s_add_u32 m0, s{S_SLX}, s{S_XM}", f"s_add_u32 s{S_KX}, s{S_KX}, 1", f"buffer_load_dwordx4 v{V_XO}, s[{S_X}:{S_X+3}], s{S_XO} offen lds"]]
    for i in range(1, 4):
        o.append([f"buffer_load_dwordx4 v{V_XO+i}, s[{S_X}:{S_X+3}], s{S_XO} offen offset:{i*1024} lds"])
    o[-1] += [f"s_cmp_eq_u32 s{S_KX}, 9", f"s_cselect_b32 s{S_KX}, 0, s{S_KX}", f"s_cselect_b32 s69, {(-1024) & 0xffffffff}, s{S_C128}", f"s_add_u32 s{S_XO}, s{S_XO}, s69",
              f"s_add_u32 s{S_SLX}, s{S_SLX}, {SLOT}", f"s_cmp_eq_u32 s{S_SLX}, {4*SLOT}", f"s_cselect_b32 s{S_SLX}, 0, s{S_SLX}"]
    return o
def dma_w(fg):
    if fg: return [[], [], [], [], []]
    o = [[f"s_add_u32 m0, s{S_SLW}, s{S_WM}", f"s_add_u32 s{S_KW}, s{S_KW}, 1", f"buffer_load_dwordx4 v{V_WO}, s[{S_W}:{S_W+3}], s{S_WO} offen lds"]]
    for i in range(1, 4):
        o.append([f"buffer_load_dwordx4 v{V_WO+i}, s[{S_W}:{S_W+3}], s{S_WO} offen offset:{i*1024} lds"])
    o.append(["s_add_u32 m0, m0, 4096", f"s_cmp_eq_u32 s{S_KW}, 9", f"buffer_load_dwordx4 v{V_WO+4}, s[{S_W}:{S_W+3}], s{S_WO} offen lds",
              f"s_cselect_b32 s{S_KW}, 0, s{S_KW}", f"s_cselect_b32 s69, s{S_WBACK}, s{S_WSTEP}", f"s_add_u32 s{S_WO}, s{S_WO}, s69",
              f"s_add_u32 s{S_SLW}, s{S_SLW}, {SLOT}", f"s_cmp_eq_u32 s{S_SLW}, {4*SLOT}", f"s_cselect_b32 s{S_SLW}, 0, s{S_SLW}"])
    return o

def reads(s, variant, fg):
    o = [f"ds_read_b128 {vr(XF+4*s,4)}, v{V_XA+s}"]
    if variant == "q0" and fg == 0: o.append(f"ds_read_b128 {vr(GF+4*s,4)}, v{V_GA} offset:{32*s}")
    for i, T in enumerate(TILES[fg]):
        for q in range(2):
            o.append(f"ds_read_b64_tr_b16 {vr(WF+12*s+4*i+2*q,2)}, v{V_WA+i} offset:{(16*s+4*q)*320}")
    return o

def advance_addrs(variant, fg):
    o = [f"v_add_u32 v{r}, s{S_DL}, v{r}" for r in list(range(V_XA, V_XA + 4)) + list(range(V_WA, V_WA + len(TILES[fg])))]
    if variant == "q0" and fg == 0:
        o += [f"s_add_u32 s{S_KC}, s{S_KC}, 1", f"s_cmp_eq_u32 s{S_KC}, 9", f"s_cselect_b32 s{S_KC}, 0, s{S_KC}",
              f"s_cselect_b32 s{S_GD}, {(-1024) & 0xffffffff}, s{S_C128}", f"v_add_u32 v{V_GA}, s{S_GD}, v{V_GA}"]
    return o

def mfmas(s, variant, fg):
    xf = vr(XF + 4 * s, 4); one = vr(ONE, 4)
    m = []
    for i, T in enumerate(TILES[fg]):
        wf = vr(WF + 12 * s + 4 * i, 4); a = vr(ACC + 16 * i, 16)
        m.append(f"v_mfma_f32_32x32x16_bf16 {a}, {xf}, {wf}, {a}" if variant == "v" else f"v_mfma_f32_32x32x16_bf16 {a}, {wf}, {xf}, {a}")
    if variant == "q0" and fg == 0:
        m.append(f"v_mfma_f32_32x32x16_bf16 {vr(EX0,16)}, {vr(GF+4*s,4)}, {xf}, {vr(EX0,16)}")
    if variant == "h" and fg == 0:
        m.append(f"v_mfma_f32_32x32x16_bf16 {vr(EX0,16)}, {one}, {xf}, {vr(EX0,16)}")
    return m

def main_loop(e, variant, fg):
    lab = f"L1_loop_{variant}{fg}"
    nrd = len(reads(0, variant, fg))
    nw = NWP[fg]
    e(f"s_mov_b32 s{S_ST}, 0")
    if fg == 0: e("s_waitcnt vmcnt(13)")
    e("s_barrier")
    stamp(e, 2, 'any')
    e.extend(reads(0, variant, fg)); e.extend(reads(1, variant, fg))
    e(".p2align 6")
    e.label(lab)
    dx = dma_x(fg); dw = dma_w(fg)
    place = {(0, 0): dw[0], (0, 1): dw[1] + dw[2], (1, 0): dw[3], (1, 1): dw[4], (2, 0): dx[0], (2, 1): dx[1], (3, 0): dx[2], (3, 1): dx[3]}
    touch = Opt.late_touch and Opt.touch_in_loop and fg == 1 and variant != "h"
    for s in range(4):
        pre = []
        if s == 2:
            if fg == 0:
                pre = ["s_waitcnt vmcnt(9)", "s_barrier",
                       f"s_cmp_lt_u32 s{S_ST}, 6", f"s_cselect_b32 s{S_XO}, s{S_XO}, 0x40000000", f"s_cselect_b32 s{S_WO}, s{S_WO}, 0x40000000"]
            else:
                pre = ["s_barrier"]
                if touch:
                    for k, stg in enumerate(Opt.touch_stages[:len(late_issue())]):
                        pre += [f"s_cmp_eq_u32 s{S_ST}, {stg}", f"s_cbranch_scc0 {lab}_t{k}", late_issue()[k], f"{lab}_t{k}:"]
        rd = reads((s + 2) % 4, variant, fg)
        e(f"s_waitcnt lgkmcnt({nrd})")
        mf = mfmas(s, variant, fg)
        n = len(rd); nm = len(mf)
        per = (n + nm - 1) // nm
        extra = []
        if variant == "h" and fg == 0:
            for j in range(4):
                extra += [f"v_lshlrev_b32 v{20+(j%2)}, 16, v{XF+4*s+j}", f"v_and_b32 v{26+(j%2)}, 0xffff0000, v{XF+4*s+j}",
                          f"v_fmac_f32 v{V_ST+2}, v{20+(j%2)}, v{20+(j%2)}", f"v_fmac_f32 v{V_ST+3}, v{26+(j%2)}, v{26+(j%2)}"]
        for T in range(nm):
            e(mf[T])
            if T == 0: e.extend(pre)
            e.extend(rd[T * per:(T + 1) * per])
            e.extend(extra[T * len(extra) // nm:(T + 1) * len(extra) // nm])
            e.extend(place.get((s, T), []))
        if variant == "h":
            e(f"s_cmp_eq_u32 s{S_TT}, {s}")
            e(f"s_cbranch_scc0 {lab}_cs{s}")
            for j in range(4):
                for i in range(len(TILES[fg])):
                    e(f"v_lshlrev_b32 v{22+i}, 16, v{WF+12*s+4*i+j}")
                for i in range(len(TILES[fg])):
                    e(f"v_add_f32 v{V_CS+i}, v{V_CS+i}, v{22+i}")
                for i in range(len(TILES[fg])):
                    e(f"v_and_b32 v{22+i}, 0xffff0000, v{WF+12*s+4*i+j}")
                for i in range(len(TILES[fg])):
                    e(f"v_add_f32 v{V_CS+i}, v{V_CS+i}, v{22+i}")
            e.label(f"{lab}_cs{s}")
        if s == 1:
            e(f"s_add_u32 s{S_T2}, s{S_ST}, 1")
            e(f"s_and_b32 s{S_DL}, s{S_T2}, 3")
            e(f"s_cmp_eq_u32 s{S_DL}, 0")
            e(f"s_cselect_b32 s{S_DL}, s68, s67")
            e.extend(advance_addrs(variant, fg))
    e(f"s_add_u32 s{S_ST}, s{S_ST}, 1")
    e(f"s_cmp_lt_u32 s{S_ST}, 9")
    e(f"s_cbranch_scc1 {lab}")
    stamp(e, 5, 'any')
    e("s_waitcnt lgkmcnt(0)")
    e("s_nop 7")

def setup_x(e, fg):
    for i in range(4):
        e("v_lshrrev_b32 v21, 3, v0"); e(f"v_add_u32 v21, {8*i}, v21")
        e("v_lshrrev_b32 v22, 1, v21"); e("v_and_b32 v22, 7, v22"); e("v_and_b32 v23, 7, v0"); e("v_xor_b32 v22, v22, v23")
        e("v_mul_u32_u24 v21, 1152, v21"); e("v_lshlrev_b32 v22, 4, v22"); e("v_add_u32 v21, v21, v22")
        if i: e(f"v_subrev_u32 v{V_XO+i}, {1024*i}, v21")
        else: e(f"v_mov_b32 v{V_XO}, v21")
    e(f"s_lshl_b32 s{S_XM}, s{S_TT}, 12")
def setup_w(e, fg):
    e(f"s_mul_i32 s{S_WM}, s{S_TT}, 5")
    e(f"s_lshl_b32 s69, s{S_WM}, 6")
    for i in range(5):
        e(f"v_add_u32 v21, s69, v0")
        if i: e(f"v_add_u32 v21, {64*i}, v21")
        e("v_mul_u32_u24 v22, 3277, v21"); e("v_lshrrev_b32 v22, 16, v22")
        e("v_mul_u32_u24 v23, 20, v22"); e("v_sub_u32 v23, v21, v23")
        e(f"v_mul_lo_u32 v22, v22, s{S_RS}")
        e("v_cmp_lt_u32 vcc, 17, v23"); e("v_subrev_u32 v24, 2, v23"); e("v_mov_b32 v25, 0x40000000"); e("v_cndmask_b32 v24, v23, v24, vcc")
        e("v_lshlrev_b32 v24, 4, v24"); e("v_add_u32 v22, v22, v24")
        e("v_and_b32 v24, 30, v23"); e("v_cmp_eq_u32 vcc, 16, v24")
        if i % 4: e(f"v_subrev_u32 v22, {1024*(i%4)}, v22")
        else: e("s_nop 0")
        e("s_nop 0")
        e(f"v_cndmask_b32 v{V_WO+i}, v22, v25, vcc")
    e(f"s_lshl_b32 s{S_WM}, s{S_WM}, 10"); e(f"s_add_u32 s{S_WM}, s{S_WM}, 16384")
def setup_xread(e):
    e("v_and_b32 v21, 31, v0"); e("v_lshrrev_b32 v22, 5, v0")
    e("v_lshrrev_b32 v23, 1, v21"); e("v_and_b32 v23, 7, v23"); e("v_xor_b32 v23, v23, v22"); e("v_lshlrev_b32 v23, 4, v23")
    e("v_lshlrev_b32 v24, 7, v21"); e("v_add_u32 v23, v23, v24")
    e(f"s_lshl_b32 s69, s{S_TT}, 12"); e(f"v_add_u32 v{V_XA}, s69, v23")
    for s in range(1, 4): e(f"v_xor_b32 v{V_XA+s}, {32*s}, v{V_XA}")

def lane_parts(e):
    e("v_lshrrev_b32 v21, 5, v0"); e("v_bfe_u32 v22, v0, 4, 1"); e("v_bfe_u32 v23, v0, 2, 2"); e("v_and_b32 v24, 3, v0")
    e("v_and_b32 v25, 1, v0"); e("v_lshlrev_b32 v25, 1, v25"); e("v_bfe_u32 v26, v0, 1, 1"); e("v_or_b32 v25, v25, v26")
    e("v_lshlrev_b32 v26, 3, v21"); e("v_add_u32 v26, v26, v23"); e("v_mul_u32_u24 v26, 320, v26"); e("v_add_u32 v26, 16384, v26")
def waddr(e, variant, fg):
    lane_parts(e)
    dense = variant == "h"
    q = 24 if variant == "v" else 25
    e(f"v_lshlrev_b32 v27, 3, v{q}"); e("v_add_u32 v27, v27, v26")
    e("v_lshlrev_b32 v28, 5, v22"); e("v_add_u32 v28, v27, v28")
    for i, T in enumerate(TILES[fg]):
        d = V_WA + i
        if dense:
            if T < 4: e(f"v_add_u32 v{d}, {64*T}, v28")
            else: e(f"v_add_u32 v{d}, 288, v27")
        else:
            if T == 0: e("v_mul_u32_u24 v29, 288, v22"); e(f"v_add_u32 v{d}, v27, v29")
            elif T < 4: e(f"v_add_u32 v{d}, {40+72*(T-1)}, v28")
            else: e("v_mul_u32_u24 v29, 72, v24"); e("v_add_u32 v29, v29, v26"); e(f"v_add_u32 v{d}, 32, v29")

def zero_acc(e, variant, fg):
    for i in range(4): e(f"v_mov_b32 v{XF+i}, 0")
    if variant == "h":
        for i in range(4): e(f"v_mov_b32 v{ONE+i}, 0x3f803f80")
        for i in range(4): e(f"v_mov_b32 v{V_ST+i}, 0")
        for i in range(3): e(f"v_mov_b32 v{V_CS+i}, 0")
    e("s_nop 1")
    z = vr(XF, 4)
    for i in range(len(TILES[fg])): e(f"v_mfma_f32_32x32x16_bf16 {vr(ACC+16*i,16)}, {z}, {z}, 0")
    if fg == 0 and variant in ("q0", "h"): e(f"v_mfma_f32_32x32x16_bf16 {vr(EX0,16)}, {z}, {z}, 0")

def prologue_dma(e, fg):
    if fg == 0:
        e(f"s_mov_b32 s{S_SLX}, 0"); e(f"s_mov_b32 s{S_SLW}, 0")
        setup_x(e, fg)
        for grp in dma_x(fg): e.extend(grp)
        setup_w(e, fg)
        for grp in dma_w(fg): e.extend(grp)
        for grp in dma_x(fg): e.extend(grp)
        for grp in dma_w(fg): e.extend(grp)
        for grp in dma_x(fg): e.extend(grp)
    stamp(e, 1, 'any')
    setup_xread(e)

def late_setup(e):
    e("s_mov_b64 exec, -1")
    e(f"s_load_dwordx2 s[52:53], s[0:1], {KA_W3}"); e(f"s_load_dwordx2 s[54:55], s[0:1], {KA_W4}")
    e(f"s_load_dwordx2 s[40:41], s[0:1], {KA_W2}"); e(f"s_load_dwordx2 s[58:59], s[0:1], {KA_WO}")
    e(f"s_lshl_b32 s44, s{S_TT}, 6"); e("v_add_u32 v30, s44, v0"); e("v_lshlrev_b32 v30, 7, v30")
    e(f"s_lshl_b32 s69, s{S_CT}, 4"); e(f"s_add_u32 s69, s69, s{S_RB}")
    e("s_waitcnt lgkmcnt(0)")
    for rep, (srd, so) in enumerate(((44, 62), (48, 63))):
        if rep == 0 and True:
            e("s_add_u32 s70x, s69, 0".replace("s70x", f"s{S_T2}"))
        u = f"s{S_GD}"
        if rep == 0: e(f"s_add_u32 {u}, s69, {324 if Opt.late_sel == 'w2' else 192}")
        else: e(f"s_mov_b32 {u}, s69")
        e(f"s_mov_b32 s{srd}, s52"); e(f"s_mov_b32 s{srd+1}, s53"); e(f"s_mov_b32 s{srd+2}, {576*4608*2}"); e(f"s_mov_b32 s{so}, {u}")
        for lo, p, size in ((162, 54, 576*4608*2), (324, 40, 576*576*2), (345, 58, 576*576*2)):
            e(f"s_cmp_ge_u32 {u}, {lo}")
            e(f"s_cselect_b32 s{srd}, s{p}, s{srd}"); e(f"s_cselect_b32 s{srd+1}, s{p+1}, s{srd+1}")
            if size != 576*4608*2: e(f"s_cselect_b32 s{srd+2}, {size}, s{srd+2}")
            e(f"s_sub_u32 s{S_T2}, {u}, {lo}"); e(f"s_cmp_ge_u32 {u}, {lo}"); e(f"s_cselect_b32 s{so}, s{S_T2}, s{so}")
        e(f"s_and_b32 s{srd+1}, s{srd+1}, 0xffff"); e(f"s_mov_b32 s{srd+3}, 0x20000")
        e(f"s_lshl_b32 s{so}, s{so}, 15")
def late_issue():
    l = ["buffer_load_dword v31, v30, s[44:47], s62 offen", "buffer_load_dword v31, v30, s[48:51], s63 offen"]
    return l[:1] if Opt.late_sel == 'w2' else l

def epi_qk(e, fg, gate):
    e(f"s_lshl_b32 s44, s{S_RB}, 2"); e(f"s_add_u32 s44, s44, s{S_TT}")
    e(f"s_lshl_b32 s45, s{S_CQ}, 3")
    e("s_lshl_b32 s46, s45, 16"); e("s_lshl_b32 s47, s44, 10"); e("s_add_u32 s46, s46, s47"); e("s_add_u32 s46, s46, s42")
    P = 128
    for i, T in enumerate(TILES[fg]):
        if T == 4: continue
        for j in range(16): e(f"v_mul_f32 v{ACC+16*i+j}, s41, v{ACC+16*i+j}")
        for hh in range(2):
            p = P + 8 * (i % 2) + 4 * hh
            for j in range(4): e(f"v_cvt_pk_bf16_f32 v{p+j}, v{ACC+16*i+8*hh+2*j}, v{ACC+16*i+8*hh+2*j+1}")
            e(f"s_add_u32 s47, s46, {HEADS[T][hh]*65536}")
            e(f"buffer_store_dwordx4 {vr(p,4)}, v{V_L16}, s[{S_WS}:{S_WS+3}], s47 offen")
    if fg == 1:
        a = ACC + 32
        for j in range(8): e(f"v_mul_f32 v{a+j}, s41, v{a+j}")
        for j in range(4): e(f"v_cvt_pk_bf16_f32 v{144+j}, v{a+2*j}, v{a+2*j+1}")
        e("v_and_b32 v21, 31, v0"); e("v_lshlrev_b32 v21, 2, v21"); e("v_lshrrev_b32 v29, 5, v0"); e("v_lshlrev_b32 v29, 14, v29"); e("v_add_u32 v21, v21, v29")
        e("s_lshl_b32 s46, s45, 13"); e("s_lshl_b32 s47, s44, 7"); e("s_add_u32 s46, s46, s47"); e("s_add_u32 s46, s46, s43")
        for j, hoff in enumerate([0, 1, 4, 5]):
            e(f"s_add_u32 s47, s46, {hoff*8192}")
            e(f"buffer_store_dword v{144+j}, v21, s[{S_WS}:{S_WS+3}], s47 offen")
    if gate:
        e(f"v_mul_f32 v23, {hexf(-math.log2(math.e))}, v{EX0}"); e("v_exp_f32 v23, v23"); e("s_nop 0"); e("v_add_f32 v23, 1.0, v23"); e("v_rcp_f32 v23, v23")
        e("v_and_b32 v21, 31, v0"); e("v_lshlrev_b32 v21, 2, v21")
        e("s_lshl_b32 s47, s44, 7"); e(f"s_add_u32 s47, s47, {LY.G}")
        e("s_mov_b64 exec, 0xffffffff")
        e(f"buffer_store_dword v23, v21, s[{S_WS}:{S_WS+3}], s47 offen")
    if Opt.late_touch and not Opt.touch_in_loop and fg == 1:
        late_setup(e); e.extend(late_issue())
    if Opt.repack_l1: e("s_branch L1_tail")
    else: fin(e)

def epi_v(e, fg):
    e(f"s_lshl_b32 s44, s{S_RB}, 2"); e(f"s_add_u32 s44, s44, s{S_TT}")
    e(f"s_lshl_b32 s45, s{S_CQ}, 3")
    e(f"s_mul_i32 s46, s45, {LY.VHEAD}"); e("s_mul_i32 s47, s44, 1216"); e("s_add_u32 s46, s46, s47"); e(f"s_add_u32 s46, s46, {LY.VF}")
    e("v_lshrrev_b32 v21, 5, v0"); e("v_mul_u32_u24 v21, 304, v21")
    e("v_and_b32 v22, 15, v0"); e("v_lshlrev_b32 v22, 4, v22"); e("v_add_u32 v22, v22, v21")
    e("v_bfe_u32 v23, v0, 4, 1")
    e(f"s_mov_b32 s47, {LY.VHEAD}")
    e("v_mul_lo_u32 v24, v23, s47")
    e("v_add_u32 v25, v22, v24")
    if fg == 0: e("v_mul_u32_u24 v24, 7, v24"); e("v_add_u32 v26, v22, v24")
    P = 128
    for i, T in enumerate(TILES[fg]):
        if T == 4: continue
        ad = 26 if T == 0 else 25
        hb = 0 if T == 0 else HEADS[T][0]
        e(f"s_add_u32 s47, s46, {hb*LY.VHEAD}")
        for hh in range(2):
            p = P + 8 * (i % 2) + 4 * hh
            for j in range(4): e(f"v_cvt_pk_bf16_f32 v{p+j}, v{ACC+16*i+8*hh+2*j}, v{ACC+16*i+8*hh+2*j+1}")
            e(f"buffer_store_dwordx4 {vr(p,4)}, v{ad}, s[{S_WS}:{S_WS+3}], s47 offen offset:{608*hh}")
    if fg == 1:
        a = ACC + 32
        e("v_and_b32 v22, 31, v0")
        e("v_lshrrev_b32 v23, 2, v22"); e("v_lshlrev_b32 v23, 1, v23"); e("v_bfe_u32 v24, v22, 1, 1"); e("v_add_u32 v23, v23, v24")
        e("v_and_b32 v24, 1, v22"); e("v_add_u32 v24, 16, v24")
        e("v_cmp_lt_u32 vcc, 15, v22"); e("v_subrev_u32 v25, 16, v22"); e("v_mov_b32 v27, 18")
        e("v_cndmask_b32 v23, v23, v25, vcc"); e("v_cndmask_b32 v24, v24, v27, vcc")
        e(f"s_mov_b32 s47, {LY.VHEAD}"); e("v_mul_lo_u32 v23, v23, s47"); e("v_lshlrev_b32 v24, 4, v24"); e("v_add3_u32 v23, v23, v24, v21")
        e("v_mov_b32 v27, 0x3f803f80")
        for hh in range(2):
            for j in range(4):
                e(f"v_cvt_pk_bf16_f32 v{144+4*hh+j}, v{a+8*hh+2*j}, v{a+8*hh+2*j+1}")
                e(f"v_cndmask_b32 v{144+4*hh+j}, v{144+4*hh+j}, v27, vcc")
        e("v_cmp_gt_u32 vcc, 24, v22"); e("s_nop 1")
        e("s_and_saveexec_b64 s[48:49], vcc")
        for hh in range(2):
            e(f"buffer_store_dwordx4 {vr(144+4*hh,4)}, v23, s[{S_WS}:{S_WS+3}], s46 offen offset:{608*hh}")
    if Opt.late_touch and not Opt.touch_in_loop and fg == 1:
        late_setup(e); e.extend(late_issue())
    if Opt.repack_l1: e("s_branch L1_tail")
    else: fin(e)

def epi_h(e, fg):
    ST = 22
    nT = len(TILES[fg]); T0 = TILES[fg][0]
    for i in range(nT): e(f"v_mov_b32 v{128+i}, v{V_CS+i}")
    e("v_and_b32 v21, 31, v0"); e("v_lshlrev_b32 v21, 2, v21")
    for i in range(nT): e(f"v_permlane32_swap_b32 v{128+i}, v{V_CS+i}")
    for i in range(nT): e(f"v_add_f32 v{V_CS+i}, v{128+i}, v{V_CS+i}")
    e(f"s_mul_i32 s44, s{S_TT}, 640"); e(f"s_add_u32 s44, s44, {XCH_OFF + 128*T0}"); e("v_add_u32 v29, s44, v21")
    for i in range(nT): e(f"ds_write_b32 v29, v{V_CS+i} offset:{128*i}")
    e("v_lshlrev_b32 v27, 1, v21"); e(f"s_lshl_b32 s44, s{S_TT}, 8"); e(f"s_add_u32 s44, s44, {XCH_OFF+2560}"); e("v_add_u32 v27, s44, v27")
    if fg == 0:
        e(f"v_add_f32 v{ST+1}, v{V_ST+2}, v{V_ST+3}")
        e(f"v_mov_b32 v25, v{ST+1}"); e(f"v_mul_f32 v{ST}, {hexf(1/576)}, v{EX0}"); e("s_nop 0")
        e(f"v_permlane32_swap_b32 v25, v{ST+1}")
        e(f"v_add_f32 v{ST+1}, v25, v{ST+1}")
        e(f"v_mul_f32 v{ST+1}, {hexf(1/576)}, v{ST+1}")
        e(f"v_fma_f32 v{ST+1}, -v{ST}, v{ST}, v{ST+1}"); e(f"v_max_f32 v{ST+1}, 0, v{ST+1}"); e(f"v_add_f32 v{ST+1}, {hexf(1e-5)}, v{ST+1}")
        e(f"ds_write_b64 v27, {vr(ST,2)}")
    e("s_waitcnt lgkmcnt(0)"); e("s_barrier")
    if fg == 1: e(f"ds_read_b64 {vr(ST,2)}, v27")
    e(f"v_add_u32 v29, {XCH_OFF + 128*T0}, v21")
    for i in range(nT):
        for wv in range(4): e(f"ds_read_b32 v{144+4*i+wv}, v29 offset:{640*wv+128*i}")
    e("s_waitcnt lgkmcnt(0)")
    for i in range(nT):
        e(f"v_add_f32 v{144+4*i}, v{144+4*i}, v{145+4*i}"); e(f"v_add_f32 v{146+4*i}, v{146+4*i}, v{147+4*i}"); e(f"v_add_f32 v{144+4*i}, v{144+4*i}, v{146+4*i}")
    e(f"s_mul_i32 s44, s{S_WV}, 384"); e(f"s_add_u32 s44, s44, {XCH_OFF+3584}"); e("v_add_u32 v29, s44, v21")
    for i in range(nT): e(f"ds_write_b32 v29, v{144+4*i} offset:{128*i}")
    e("v_lshrrev_b32 v21, 5, v0"); e("v_lshlrev_b32 v21, 4, v21"); e("v_add_u32 v29, s44, v21")
    e("s_waitcnt lgkmcnt(0)")
    SG, RR, AA, BB, MM, SS = 128, 129, 130, 132, 134, 136
    e(f"v_sqrt_f32 v{SG}, v{ST+1}"); e("s_nop 0"); e(f"v_rcp_f32 v{RR}, v{SG}"); e("s_nop 0")
    e(f"v_mul_f32 v{BB}, {hexf(GELU_C0)}, v{RR}"); e(f"v_mul_f32 v{AA}, v{RR}, v{RR}"); e(f"v_mul_f32 v{AA}, v{AA}, v{RR}"); e(f"v_mul_f32 v{AA}, {hexf(GELU_C1)}, v{AA}")
    e(f"v_mov_b32 v{AA+1}, v{AA}"); e(f"v_mov_b32 v{BB+1}, v{BB}"); e(f"v_mov_b32 v{SS}, v{SG}"); e(f"v_mov_b32 v{SS+1}, v{SG}")
    e(f"v_sub_f32 v{MM}, 0, v{ST}"); e(f"v_mov_b32 v{MM+1}, v{MM}")
    e(f"s_lshl_b32 s45, s{S_RB}, 7"); e(f"s_lshl_b32 s46, s{S_TT}, 5"); e("s_add_u32 s45, s45, s46")
    e(f"s_lshr_b32 s46, s{S_CQ}, 1"); e("s_add_u32 s46, s46, 1"); e("s_sub_u32 s47, 0, s46"); e(f"s_bitcmp1_b32 s{S_CQ}, 0"); e("s_cselect_b32 s46, s47, s46")
    e("s_add_u32 s45, s45, s46")
    e("v_and_b32 v21, 31, v0"); e("v_add_u32 v21, s45, v21")
    e("v_cmp_gt_u32 vcc, 2048, v21")
    e("v_and_b32 v21, 2047, v21")
    e("v_lshrrev_b32 v30, 5, v21"); e("s_mov_b32 s47, 36864"); e("v_mul_lo_u32 v30, v30, s47")
    e("v_and_b32 v21, 31, v21"); e("v_lshlrev_b32 v21, 4, v21"); e("v_add_u32 v30, v30, v21")
    e("v_lshrrev_b32 v21, 5, v0"); e("v_lshlrev_b32 v21, 9, v21"); e("v_add_u32 v30, v30, v21")
    e("s_mov_b64 s[50:51], vcc")
    u0 = 2 * TILES[fg][0]
    e(f"s_mul_i32 s47, s{S_CQ}, 9216"); e(f"s_add_u32 s47, s47, {LY.HS + u0*1024}")
    CS = 144; TT = 160
    def pk(op, d, a, b, c=None):
        s = f"v_pk_{op}_f32 {vr(d,2)}, {vr(a,2)}, {vr(b,2)}"
        if c is not None: s += f", {vr(c,2)}"
        return s
    u = 0
    for i, T in enumerate(TILES[fg]):
        nj = 4 if T < 4 else 2
        for j in range(nj): e(f"ds_read_b128 {vr(CS+4*j,4)}, v29 offset:{128*i+32*j}")
        e("s_waitcnt lgkmcnt(0)")
        for half in range(nj // 2):
            a = ACC + 16 * i + 8 * half; cs = CS + 8 * half
            for k in range(0, 8, 2): e(pk("fma", a + k, MM, cs + k, a + k))
            for k in range(0, 8, 2): e(pk("mul", TT + k, a + k, a + k))
            for k in range(0, 8, 2): e(pk("fma", TT + k, TT + k, AA, BB))
            for k in range(0, 8, 2): e(pk("mul", TT + k, a + k, TT + k))
            for k in range(8): e(f"v_exp_f32 v{TT+k}, v{TT+k}")
            for k in range(0, 8, 2): e(pk("fma", TT + k, TT + k, SS, SS))
            for k in range(8): e(f"v_rcp_f32 v{TT+k}, v{TT+k}")
            for k in range(0, 8, 2): e(pk("mul", a + k, a + k, TT + k))
            p = 168 + 4 * (u % 2)
            for j in range(4): e(f"v_cvt_pk_bf16_f32 v{p+j}, v{a+2*j}, v{a+2*j+1}")
            for j in range(4): e(f"v_cndmask_b32 v{p+j}, 0, v{p+j}, s[50:51]")
            e(f"buffer_store_dwordx4 {vr(p,4)}, v30, s[{S_WS}:{S_WS+3}], s47 offen offset:{(u%4)*1024}")
            if u % 4 == 3: e("s_add_u32 s47, s47, 4096")
            u += 1
    fin(e)

def role(e, variant, fg):
    if variant == "q0" and fg == 0:
        e(f"s_mov_b32 m0, {GW_OFF}"); e("s_nop 0")
        e(f"buffer_load_dwordx4 v{V_L16}, s[{S_GW}:{S_GW+3}], 0 offen lds")
        e(f"buffer_load_dwordx4 v{V_L16}, s[{S_GW}:{S_GW+3}], 0 offen offset:1024 lds")
    prologue_dma(e, fg)
    waddr(e, variant, fg)
    if variant == "q0" and fg == 0:
        e("v_lshrrev_b32 v21, 5, v0"); e("v_lshlrev_b32 v21, 4, v21"); e(f"v_add_u32 v{V_GA}, {GW_OFF}, v21")
        e(f"s_lshl_b32 s69, s{S_KC}, 7"); e(f"v_add_u32 v{V_GA}, s69, v{V_GA}")
    if Opt.late_touch and Opt.touch_in_loop and fg == 1 and variant != "h": late_setup(e)
    zero_acc(e, variant, fg)
    if variant in ("q0", "qk"):
        e("s_cmp_eq_u32 s3, 0")
        e(f"s_cselect_b32 s41, {hexf(QSCALE)}, 1.0"); e(f"s_mov_b32 s42, {LY.KF0}"); e(f"s_cselect_b32 s42, {LY.QF0}, s42"); e(f"s_mov_b32 s43, {LY.KX}"); e(f"s_cselect_b32 s43, {LY.QX}, s43")
    main_loop(e, variant, fg)
    if variant in ("q0", "qk"): epi_qk(e, fg, variant == "q0" and fg == 0)
    elif variant == "v": epi_v(e, fg)
    else: epi_h(e, fg)

def gen():
    e = Emit()
    kernel_head(e, NAME)
    Diag.kid = 0
    e("s_cmp_ge_u32 s2, 256")
    e("s_cbranch_scc1 L1_exit")
    e(f"s_load_dwordx2 s[4:5], s[0:1], {KA_WS}")
    e(f"s_load_dwordx4 s[52:55], s[0:1], {KA_XA}")
    e(f"s_load_dwordx2 s[58:59], s[0:1], {KA_W1}")
    e(f"s_load_dwordx2 s[60:61], s[0:1], {KA_GW}")
    e("s_and_b32 s6, s2, 7"); e("s_lshr_b32 s7, s2, 3")
    e("v_lshrrev_b32 v1, 6, v0"); e("v_and_b32 v0, 63, v0")
    e(f"v_readfirstlane_b32 s{S_WV}, v1")
    e(f"s_and_b32 s{S_RB}, s6, 3"); e(f"s_lshl_b32 s{S_RB}, s{S_RB}, 2"); e("s_and_b32 s3, s7, 3"); e(f"s_add_u32 s{S_RB}, s{S_RB}, s3")
    e(f"s_lshr_b32 s{S_CQ}, s6, 2"); e(f"s_lshl_b32 s{S_CQ}, s{S_CQ}, 1"); e("s_bfe_u32 s3, s7, 0x10002"); e(f"s_add_u32 s{S_CQ}, s{S_CQ}, s3")
    e("s_lshr_b32 s3, s7, 3"); e(f"s_lshl_b32 s{S_CT}, s3, 2"); e(f"s_add_u32 s{S_CT}, s{S_CT}, s{S_CQ}")
    e(f"v_lshlrev_b32 v{V_L16}, 4, v0")
    e(f"s_and_b32 s{S_TT}, s{S_WV}, 3")
    e("s_waitcnt lgkmcnt(0)")
    make_srd(e, S_WS, 4, LY.WS_END)
    stamp(e, 0, 'any')
    dbg_start(e)
    if Opt.fuse_l2 and Opt.cnt_ws:
        e("s_cmp_eq_u32 s2, 0"); e("s_cbranch_scc0 L1_nocnt")
        e(f"s_cmp_eq_u32 s{S_WV}, 7"); e("s_cbranch_scc0 L1_nocnt")
        e("v_lshlrev_b32 v2, 7, v0"); e("v_mov_b32 v3, 0"); e(f"s_mov_b32 s69, {LY.CNT}")
        e(f"buffer_store_dword v3, v2, s[{S_WS}:{S_WS+3}], s69 offen")
        e.label("L1_nocnt")
    e("s_cmp_eq_u32 s3, 3")
    e("s_cselect_b32 s64, s58, s54"); e("s_cselect_b32 s65, s59, s55")
    e(f"s_movk_i32 s{S_RS}, 3456"); e(f"s_cselect_b32 s{S_RS}, 1152, s{S_RS}")
    e(f"s_mov_b32 s67, {SLOT}"); e(f"s_mov_b32 s68, {(-3*SLOT) & 0xffffffff}")
    e(f"s_cselect_b32 s66, s{S_CQ}, s{S_CT}")
    make_srd(e, S_X, 52, 2048 * 576 * 2)
    e(f"s_mov_b32 s{S_W}, s64"); e(f"s_and_b32 s{S_W+1}, s65, 0xffff"); e(f"s_mul_i32 s{S_W+2}, s{S_RS}, 576"); e(f"s_mov_b32 s{S_W+3}, 0x20000")
    make_srd(e, S_GW, 60, 1152)
    e(f"s_lshl_b32 s{S_XO}, s{S_RB}, 2"); e(f"s_add_u32 s{S_XO}, s{S_XO}, s{S_TT}"); e(f"s_mul_i32 s{S_XO}, s{S_XO}, 36864")
    e(f"s_mul_i32 s{S_WO}, s66, 288")
    e(f"s_lshl_b32 s{S_WSTEP}, s{S_RS}, 6")
    e("s_and_b32 s69, s7, 3"); e("s_lshl_b32 s69, s69, 1"); e(f"s_lshr_b32 s{S_KX}, s7, 2"); e(f"s_add_u32 s{S_KX}, s{S_KX}, s69")
    e(f"s_cmp_ge_u32 s{S_KX}, 9"); e(f"s_cselect_b32 s69, 9, 0"); e(f"s_sub_u32 s{S_KX}, s{S_KX}, s69")
    if not Opt.rotate: e(f"s_mov_b32 s{S_KX}, 0")
    e(f"s_mov_b32 s{S_KW}, s{S_KX}"); e(f"s_mov_b32 s{S_KC}, s{S_KX}")
    e(f"s_lshl_b32 s69, s{S_KX}, 7"); e(f"s_add_u32 s{S_XO}, s{S_XO}, s69")
    e(f"s_mul_i32 s69, s{S_KX}, s{S_WSTEP}"); e(f"s_add_u32 s{S_WO}, s{S_WO}, s69")
    e(f"s_mul_i32 s{S_WBACK}, s{S_WSTEP}, -8"); e(f"s_movk_i32 s{S_C128}, 128")
    e(f"s_cmp_ge_u32 s{S_WV}, 4"); e("s_cbranch_scc1 L1_fg1")
    code_prefetch(e, NAME, "L1_exit", 3, vaddr=28, vtmp=29, vdst=31, sp=62)
    e("s_cmp_eq_u32 s3, 2"); e("s_cbranch_scc1 L1_v0")
    e("s_cmp_eq_u32 s3, 3"); e("s_cbranch_scc1 L1_h0")
    e(f"s_cmp_eq_u32 s{S_CT}, 0"); e("s_cbranch_scc0 L1_qk0")
    role(e, "q0", 0)
    e.label("L1_qk0"); role(e, "qk", 0)
    e.label("L1_v0"); role(e, "v", 0)
    e.label("L1_h0"); role(e, "h", 0)
    e.label("L1_fg1")
    e("s_cmp_eq_u32 s3, 2"); e("s_cbranch_scc1 L1_v1")
    e("s_cmp_eq_u32 s3, 3"); e("s_cbranch_scc1 L1_h1")
    role(e, "qk", 1)
    e.label("L1_v1"); role(e, "v", 1)
    e.label("L1_h1"); role(e, "h", 1)
    if Opt.repack_l1: gen_repack.gen_tail(e)
    e.label("L1_exit")
    e("s_endpgm")
    return e.text()
if __name__ == "__main__":
    t = gen()
    errs = check(t, "l1")
    for x in errs: print(x)
    print("instrs", sum(1 for l in t.split("\n") if l.startswith("    ")), "hazard errs", len(errs))
```

```python
from gen_common import *
NAME = "l2_kernel"
LDS_BYTES = 74752
S_WS = 12
S_SRC = 16
S_XB = 20

def lane_tr_parts(e, vhf, vsub, vr_, vsig):
    e(f"v_lshrrev_b32 v{vhf}, 5, v0")
    e(f"v_bfe_u32 v{vsub}, v0, 4, 1")
    e(f"v_bfe_u32 v{vr_}, v0, 2, 2")
    e(f"v_and_b32 v{vsig}, 1, v0")
    e(f"v_lshlrev_b32 v{vsig}, 1, v{vsig}")
    e(f"v_bfe_u32 v15, v0, 1, 1")
    e(f"v_or_b32 v{vsig}, v{vsig}, v15")

def gen_gemm(e):
    e.label("L2_gemm")
    e("s_cmp_ge_u32 s7, 9"); e("s_cselect_b32 s9, 1, 0"); e("s_mul_i32 s10, s9, 9"); e("s_sub_u32 s10, s7, s10")
    e("s_lshl_b32 s11, s6, 1"); e("s_add_u32 s9, s9, s11")
    e("s_lshl_b32 s9, s9, 2"); e("s_add_u32 s9, s9, s8")
    e(f"s_load_dwordx2 s[24:25], s[0:1], {KA_W2}")
    e(f"s_load_dwordx2 s[26:27], s[0:1], {KA_XA}")
    e("v_lshlrev_b32 v1, 4, v0")
    e("v_lshrrev_b32 v5, 3, v0"); e("v_and_b32 v6, 7, v0"); e("v_bfe_u32 v7, v0, 4, 1"); e("v_lshlrev_b32 v7, 2, v7"); e("v_xor_b32 v6, v6, v7")
    e("v_mul_u32_u24 v5, 1152, v5"); e("v_lshlrev_b32 v6, 4, v6"); e("v_add_u32 v2, v5, v6"); e(f"v_add_u32 v3, {9216-1024}, v2")
    e("s_waitcnt lgkmcnt(0)")
    make_srd(e, S_SRC, 24, 576 * 576 * 2)
    make_srd(e, S_XB, 26, 2048 * 576 * 2)
    e("s_mul_i32 s28, s8, 18432"); e("s_lshl_b32 s29, s10, 7"); e("s_add_u32 s28, s28, s29")
    e("s_lshl_b32 s29, s8, 11")
    e("s_mul_i32 s30, s9, 36864"); e(f"s_add_u32 s30, s30, {LY.HS}")
    e("s_lshr_b32 s44, s9, 2"); e("s_and_b32 s44, s44, 1"); e("s_lshl_b32 s44, s44, 2"); e("s_add_u32 s44, s44, s10")
    e("s_cmp_ge_u32 s44, 9"); e("s_cselect_b32 s45, 9, 0"); e("s_sub_u32 s44, s44, s45")
    if not Opt.rotate2: e("s_mov_b32 s44, 0")
    for st in range(3):
        for i in range(3):
            ch = 3 * st + i
            e(f"s_mul_i32 s31, s44, {4*18432}"); e("s_add_u32 s31, s31, s28")
            e(f"s_add_u32 m0, s29, {4*ch*2048}")
            e(f"s_lshl_b32 s{46+i}, s44, 12"); e(f"s_add_u32 s{46+i}, s{46+i}, s30")
            e(f"buffer_load_dwordx4 v2, s[{S_SRC}:{S_SRC+3}], s31 offen lds")
            e(f"buffer_load_dwordx4 v3, s[{S_SRC}:{S_SRC+3}], s31 offen offset:1024 lds")
            e("s_add_u32 s44, s44, 1"); e("s_cmp_eq_u32 s44, 9"); e("s_cselect_b32 s44, 0, s44")
        for i in range(3):
            ch = 3 * st + i
            for k in range(4):
                e(f"buffer_load_dwordx4 {ar(4*(4*ch+k),4)}, v1, s[{S_WS}:{S_WS+3}], s{46+i} offen offset:{k*1024}")
    stamp(e, 1, 'any')
    lane_tr_parts(e, 5, 6, 7, 8)
    e("v_lshlrev_b32 v9, 1, v6"); e("v_lshrrev_b32 v10, 1, v8"); e("v_add_u32 v9, v9, v10")
    e("v_lshrrev_b32 v10, 1, v7"); e("v_lshlrev_b32 v10, 2, v10"); e("v_xor_b32 v9, v9, v10"); e("v_lshlrev_b32 v9, 4, v9")
    e("v_and_b32 v10, 1, v8"); e("v_lshlrev_b32 v10, 3, v10"); e("v_add_u32 v9, v9, v10")
    e("v_lshlrev_b32 v10, 3, v5"); e("v_add_u32 v10, v10, v7"); e("v_lshlrev_b32 v10, 7, v10"); e("v_add_u32 v9, v9, v10")
    e("v_xor_b32 v10, 64, v9"); e("v_add_u32 v13, 36864, v9"); e("v_add_u32 v14, 36864, v10")
    TR = [[9, 10], [13, 14]]
    ACC = 16; WB = 64; XB = 100
    def reads(ks):
        o = []
        b = WB + 8 * (ks % 4); kk = ks % 18
        for T in range(2):
            for q in range(2):
                o.append(f"ds_read_b64_tr_b16 {vr(b+4*T+2*q,2)}, v{TR[ks//18][T]} offset:{kk*2048 + q*512}")
        return o
    e("v_and_b32 v11, 31, v0"); e("s_movk_i32 s32, 1152"); e("v_mul_lo_u32 v12, v11, s32"); e("v_lshlrev_b32 v4, 4, v5"); e("v_add_u32 v12, v12, v4")
    e("s_mul_i32 s33, s9, 36864"); e("s_lshl_b32 s34, s10, 7"); e("s_add_u32 s33, s33, s34")
    for st in range(3):
        e(f"s_waitcnt vmcnt({[36, 22, 4][st]})")
        e("s_barrier")
        stamp(e, 2 + st, 'any')
        if st == 0:
            for u in range(4):
                e(f"buffer_load_dwordx4 {vr(XB+4*u,4)}, v12, s[{S_XB}:{S_XB+3}], s33 offen offset:{u*32}")
        k0 = 12 * st
        for k in range(3): e.extend(reads(k0 + k))
        for ks in range(k0, k0 + 12):
            left = k0 + 11 - ks
            e(f"s_waitcnt lgkmcnt({4 * min(2, left)})")
            b = WB + 8 * (ks % 4)
            rd = reads(ks + 3) if ks + 3 < k0 + 12 else []
            for T in range(2):
                e(f"v_mfma_f32_32x32x16_bf16 {vr(ACC+16*T,16)}, {vr(b+4*T,4)}, {ar(4*ks,4)}, " + ("0" if ks == 0 else vr(ACC + 16 * T, 16)))
                e.extend(rd[2 * T:2 * T + 2])
    stamp(e, 5, 'any')
    e("s_mov_b32 s34, 0x00003f80"); e("s_mov_b32 s35, 0x3f800000"); e("s_mov_b32 s36, 0x3f803f80")
    e("s_mul_i32 s37, s9, 36"); e("s_lshl_b32 s38, s10, 2"); e("s_add_u32 s37, s37, s38"); e("s_lshl_b32 s37, s37, 10"); e(f"s_add_u32 s37, s37, {LY.X1F}")
    e("v_mov_b32 v2, 0"); e("v_mov_b32 v3, 0")
    e("s_waitcnt vmcnt(0)")
    e("s_nop 7")
    for u in range(4):
        T, hq = divmod(u, 2); b = ACC + 16 * T + 8 * hq; x = XB + 4 * u; P = 64 + 4 * u
        for j in range(4):
            e(f"v_dot2c_f32_bf16 v{b+2*j}, s34, v{x+j}")
            e(f"v_dot2c_f32_bf16 v{b+2*j+1}, s35, v{x+j}")
        e("s_nop 2")
        for j in range(4): e(f"v_cvt_pk_bf16_f32 v{P+j}, v{b+2*j}, v{b+2*j+1}")
        e(f"buffer_store_dwordx4 {vr(P,4)}, v1, s[{S_WS}:{S_WS+3}], s37 offen offset:{u*1024}")
        for j in range(4):
            e(f"v_dot2c_f32_bf16 v2, s36, v{P+j}")
            e(f"v_dot2c_f32_bf16 v3, v{P+j}, v{P+j}")
    e("v_lshlrev_b32 v4, 14, v5"); e("v_lshlrev_b32 v6, 2, v11"); e("v_add_u32 v4, v4, v6")
    e("s_lshl_b32 s38, s10, 15"); e("s_lshl_b32 s39, s9, 7"); e("s_add_u32 s38, s38, s39"); e(f"s_add_u32 s38, s38, {LY.ST2}")
    e("s_add_u32 s39, s38, 8192")
    e(f"buffer_store_dword v2, v4, s[{S_WS}:{S_WS+3}], s38 offen")
    e(f"buffer_store_dword v3, v4, s[{S_WS}:{S_WS+3}], s39 offen")
    fin(e)

def dma_rows128(e, rowbytes, swz):
    e("v_lshrrev_b32 v5, 3, v0"); e("v_and_b32 v6, 7, v0")
    if swz:
        e("v_bfe_u32 v7, v0, 4, 1"); e("v_lshlrev_b32 v7, 2, v7"); e("v_xor_b32 v6, v6, v7")
    e(f"s_mov_b32 s32, {rowbytes}"); e("v_mul_lo_u32 v5, v5, s32"); e("v_lshlrev_b32 v6, 4, v6"); e("v_add_u32 v2, v5, v6")
    e(f"s_mul_i32 s29, s8, {144*rowbytes}"); e("s_add_u32 s29, s29, s28")
    e("s_mul_i32 s31, s8, 18432")
    for i in range(18):
        e(f"s_add_u32 m0, s31, {i*1024}")
        e(f"s_add_u32 s30, s29, {i*8*rowbytes}")
        e(f"buffer_load_dwordx4 v2, s[{S_SRC}:{S_SRC+3}], s30 offen lds")

def gen_w3(e):
    e.label("L2_w3")
    e(f"s_load_dwordx2 s[24:25], s[0:1], {KA_W3}")
    e("v_lshlrev_b32 v1, 4, v0")
    e("s_lshl_b32 s28, s9, 7")
    e("s_waitcnt lgkmcnt(0)")
    make_srd(e, S_SRC, 24, 576 * 4608 * 2)
    dma_rows128(e, 9216, True)
    lane_tr_parts(e, 5, 6, 7, 8)
    e("s_and_b32 s33, s8, 1"); e("s_lshr_b32 s34, s8, 1")
    e("v_lshlrev_b32 v9, 1, v6"); e("v_lshrrev_b32 v10, 1, v8"); e("v_add_u32 v9, v9, v10")
    e("s_lshl_b32 s35, s33, 2"); e("v_add_u32 v9, s35, v9")
    e("v_lshrrev_b32 v10, 1, v7"); e("v_lshlrev_b32 v10, 2, v10"); e("v_xor_b32 v9, v9, v10")
    e("v_lshlrev_b32 v9, 4, v9"); e("v_and_b32 v10, 1, v8"); e("v_lshlrev_b32 v10, 3, v10"); e("v_add_u32 v9, v9, v10")
    e("v_lshlrev_b32 v10, 3, v5"); e("v_add_u32 v10, v10, v7"); e("v_lshlrev_b32 v10, 7, v10"); e("v_add_u32 v9, v9, v10")
    e("s_mul_i32 s35, s34, 36864"); e("v_add_u32 v9, s35, v9")
    F = 16
    stamp(e, 1, 'any')
    e("s_waitcnt vmcnt(0)"); e("s_barrier")
    stamp(e, 2, 'any')
    for k in range(18):
        for q in range(2):
            e(f"ds_read_b64_tr_b16 {vr(F+4*k+2*q,2)}, v9 offset:{k*2048+q*512}")
    e("s_mov_b32 s36, 0x3f803f80"); e("s_mov_b32 s37, 0x00003f80"); e("s_mov_b32 s38, 0x3f800000")
    for a in range(4): e(f"v_mov_b32 v{10+a}, 0")
    for k in range(18):
        if k % 3 == 0: e(f"s_waitcnt lgkmcnt({min(15, 36 - 2*(k+3))})")
        for j in range(4): e(f"v_dot2c_f32_bf16 v{10+j}, s36, v{F+4*k+j}")
    e("s_nop 2")
    e("v_add_f32 v10, v10, v11"); e("v_add_f32 v12, v12, v13"); e("v_add_f32 v10, v10, v12")
    e("v_mov_b32 v11, v10"); e("s_nop 1"); e("v_permlane32_swap_b32 v10, v11"); e("v_add_f32 v10, v10, v11")
    e("v_lshlrev_b32 v12, 2, v0"); e("s_lshl_b32 s35, s8, 8"); e("s_add_u32 s35, s35, 73728"); e("v_add_u32 v13, s35, v12")
    e("ds_write_b32 v13, v10")
    e("s_xor_b32 s35, s8, 2"); e("s_lshl_b32 s35, s35, 8"); e("s_add_u32 s35, s35, 73728"); e("v_add_u32 v13, s35, v12")
    e("s_waitcnt lgkmcnt(0)"); e("s_barrier")
    e("ds_read_b32 v11, v13"); e("s_waitcnt lgkmcnt(0)")
    e("v_add_f32 v10, v10, v11"); e(f"v_mul_f32 v10, {hexf(-1/576)}, v10")
    e("s_lshl_b32 s39, s9, 1"); e("s_add_u32 s39, s39, s33")
    e(f"s_mul_i32 s43, s39, 36864"); e(f"s_add_u32 s43, s43, {LY.W3P}")
    e("s_mul_i32 s35, s34, 18432"); e("s_add_u32 s43, s43, s35")
    TS = [88, 96]
    def fink(k):
        t = TS[k % 2]
        for j in range(4): e(f"v_cvt_pk_bf16_f32 v{F+4*k+j}, v{t+2*j}, v{t+2*j+1}")
        e(f"buffer_store_dwordx4 {vr(F+4*k,4)}, v1, s[{S_WS}:{S_WS+3}], s43 offen offset:{(k%4)*1024}")
        if k % 4 == 3: e("s_add_u32 s43, s43, 4096")
    for k in range(18):
        t = TS[k % 2]
        for j in range(4):
            e(f"v_dot2_f32_bf16 v{t+2*j}, v{F+4*k+j}, s37, v10")
            e(f"v_dot2_f32_bf16 v{t+2*j+1}, v{F+4*k+j}, s38, v10")
        if k > 0: fink(k - 1)
    e("s_nop 2")
    fink(17)
    fin(e)

def gen_wo(e):
    e.label("L2_wo")
    e(f"s_load_dwordx2 s[24:25], s[0:1], {KA_WO}")
    e("v_lshlrev_b32 v1, 4, v0")
    e("s_mul_i32 s10, s9, 86"); e("s_lshr_b32 s10, s10, 8")
    e("s_mul_i32 s11, s10, 3"); e("s_sub_u32 s11, s9, s11")
    e("s_mul_i32 s28, s10, 288"); e("s_lshl_b32 s29, s11, 7"); e("s_add_u32 s28, s28, s29")
    e("s_waitcnt lgkmcnt(0)")
    make_srd(e, S_SRC, 24, 576 * 576 * 2)
    dma_rows128(e, 1152, False)
    lane_tr_parts(e, 5, 6, 7, 8)
    e("s_and_b32 s33, s8, 1"); e("s_lshr_b32 s34, s8, 1")
    e("v_lshlrev_b32 v9, 5, v6"); e("v_lshlrev_b32 v10, 3, v8"); e("v_add_u32 v9, v9, v10"); e("s_lshl_b32 s35, s33, 6"); e("v_add_u32 v9, s35, v9")
    e("v_lshlrev_b32 v10, 2, v5"); e("v_add_u32 v10, v10, v7"); e("v_lshlrev_b32 v10, 7, v10"); e("v_add_u32 v10, v10, v9")
    e(f"s_mul_i32 s35, s34, {324*128}"); e("v_add_u32 v10, s35, v10")
    e("v_lshrrev_b32 v11, 1, v7"); e("v_lshlrev_b32 v12, 2, v5"); e("v_add_u32 v12, v12, v11"); e("v_mul_u32_u24 v12, 18, v12")
    e("v_xor_b32 v11, 1, v11"); e("v_lshlrev_b32 v11, 4, v11"); e("v_add_u32 v12, v12, v11"); e("v_and_b32 v11, 1, v7"); e("v_add_u32 v12, v12, v11")
    e("v_lshlrev_b32 v12, 7, v12"); e("v_add_u32 v12, v12, v9")
    F = 16
    e("s_waitcnt vmcnt(0)"); e("s_barrier")
    for k in range(14):
        for q in range(2):
            e(f"ds_read_b64_tr_b16 {vr(F+4*k+2*q,2)}, v10 offset:{(18*k + 8*q + 2*(k&1))*128}")
    e("s_cmp_eq_u32 s34, 0"); e("s_cbranch_scc0 L2_wo_x")
    for k in range(14, 18):
        for q in range(2):
            e(f"ds_read_b64_tr_b16 {vr(F+4*k+2*q,2)}, v10 offset:{(18*k + 8*q + 2*(k&1))*128}")
    e("s_branch L2_wo_y")
    e.label("L2_wo_x")
    for k in range(14, 18):
        for q in range(2):
            e(f"ds_read_b64_tr_b16 {vr(F+4*k+2*q,2)}, v12 offset:{18*(8*(k-14) + 2*q)*128}")
    e.label("L2_wo_y")
    e("s_lshl_b32 s35, s11, 1"); e("s_add_u32 s35, s35, s33")
    e("s_cmp_eq_u32 s35, 5"); e("s_cbranch_scc1 L2_exit")
    e("s_mul_i32 s36, s10, 5"); e("s_add_u32 s36, s36, s35"); e("s_mul_i32 s36, s36, 36"); e("s_mul_i32 s37, s34, 18"); e("s_add_u32 s36, s36, s37")
    e("s_lshl_b32 s43, s36, 10"); e(f"s_add_u32 s43, s43, {LY.WOP}")
    e("s_waitcnt lgkmcnt(0)")
    for k in range(18):
        e(f"buffer_store_dwordx4 {vr(F+4*k,4)}, v1, s[{S_WS}:{S_WS+3}], s43 offen offset:{(k%4)*1024}")
        if k % 4 == 3: e("s_add_u32 s43, s43, 4096")
    fin(e)

def gen():
    e = Emit()
    kernel_head(e, NAME)
    Diag.kid = 1
    e(f"s_cmp_ge_u32 s2, {144 if Opt.repack_l1 else 256}")
    e("s_cbranch_scc1 L2_exit")
    e(f"s_load_dwordx2 s[4:5], s[0:1], {KA_WS}")
    e("s_and_b32 s6, s2, 7")
    e("s_lshr_b32 s7, s2, 3")
    e("v_lshrrev_b32 v1, 6, v0")
    e("v_and_b32 v0, 63, v0")
    e("v_readfirstlane_b32 s8, v1")
    code_prefetch(e, NAME, "L2_exit", 2, vaddr=250, vtmp=252, vdst=254, sp=60)
    e("s_waitcnt lgkmcnt(0)")
    make_srd(e, S_WS, 4, LY.WS_END)
    stamp(e, 0, 'any')
    dbg_start(e)
    e("s_cmp_lt_u32 s7, 18")
    e("s_cbranch_scc1 L2_gemm" if Opt.l2_only != "repack" else "s_cbranch_scc1 L2_exit")
    if Opt.l2_only == "gemm": e("s_branch L2_exit")
    if Opt.l2_only == "w3":
        e("s_sub_u32 s9, s2, 144"); e("s_cmp_lt_u32 s9, 72"); e("s_cbranch_scc1 L2_w3"); e("s_branch L2_exit")
    if Opt.repack_l1: e("s_branch L2_exit")
    e("s_sub_u32 s9, s2, 144")
    e("s_cmp_lt_u32 s9, 72")
    e("s_cbranch_scc1 L2_w3")
    e("s_sub_u32 s9, s9, 72")
    e("s_cmp_lt_u32 s9, 12")
    e("s_cbranch_scc1 L2_wo")
    e("s_endpgm")
    gen_gemm(e); gen_w3(e); gen_wo(e)
    e.label("L2_exit")
    e("s_endpgm")
    return e.text()
if __name__ == "__main__":
    t = gen()
    errs = check(t, "l2")
    for x in errs: print(x)
    print("instrs", sum(1 for l in t.split("\n") if l.startswith("    ")), "hazard errs", len(errs))
    assert all((n*171)>>11 == n//12 for n in range(192))
    assert all((n*57)>>9 == n//9 for n in range(72))
    assert all((n*3641)>>16 == n//18 for n in range(144))
    assert all((n*86)>>8 == n//3 for n in range(12))
```

```python
from gen_common import *
import os
import gen_pre

NAME = "l3_kernel"
LDS_BYTES = 4 * 36864

V_PA, V_PB = 0, 1
V_DMA    = 2
V_A, V_B, V_S = 3, 4, 5
TA = [6, 7, 8, 9]
V_P1, V_PC = 10, 11
V_RA, V_RB = 12, 13
V_E, V_O = 14, 15
V_W = 16
NB = 6
V_HP = 40
V_H = [48, 64]
SLOT = {"C": 0, "D": 36864, "A": 73728, "B": 110592}
def OUT(dt):
    return (True, 80 + 16 * dt) if dt < 11 else (False, 144 + 16 * (dt - 11))
def outreg(dt):
    isv_, b = OUT(dt)
    return vr(b, 16) if isv_ else ar(b, 16)
S_SRD = 12
S_W4 = 24
S_W, S_J = 8, 7
S_M0B = 18
S_D3 = [19, 20, 21]
S_D4 = [28, 29, 31]
S_CNT = 22

def gelu_group(H, elems, temps):
    o = []
    for e_, t in zip(elems, temps): o.append(f"v_mul_f32 v{t}, v{H+e_}, v{H+e_}")
    for e_, t in zip(elems, temps): o.append(f"v_fma_f32 v{t}, v{t}, v{V_A}, v{V_B}")
    for e_, t in zip(elems, temps): o.append(f"v_mul_f32 v{t}, v{H+e_}, v{t}")
    for e_, t in zip(elems, temps): o.append(f"v_exp_f32 v{t}, v{t}")
    for e_, t in zip(elems, temps): o.append(f"v_fma_f32 v{t}, v{t}, v{V_S}, v{V_S}")
    for e_, t in zip(elems, temps): o.append(f"v_rcp_f32 v{t}, v{t}")
    for e_, t in zip(elems, temps): o.append(f"v_mul_f32 v{H+e_}, v{H+e_}, v{t}")
    return o
def gelu_groups(H, gs):
    o = []
    for g in gs: o += gelu_group(H, range(4 * g, 4 * g + 4), TA)
    return o
def cvts(H, js):
    return [f"v_cvt_pk_bf16_f32 v{V_HP+j}, v{H+2*j}, v{H+2*j+1}" for j in js]

def s1_mfmas(c):
    H = V_H[c & 1]
    return [f"v_mfma_f32_32x32x16_bf16 {vr(H,16)}, {vr(V_W+4*(j%NB),4)}, {ar(4*j,4)}, " + ("0" if j == 0 else vr(H, 16)) for j in range(36)]
def s2_mfmas():
    o = []
    for m in range(36):
        q, dt = divmod(m, 18)
        o.append(f"v_mfma_f32_32x32x16_bf16 {outreg(dt)}, {vr(V_W+4*(m%NB),4)}, {vr(V_HP+4*q,4)}, {outreg(dt)}")
    return o

def rd(ph, m):
    kind, slot = ph[0], ph[1]
    b = V_W + 4 * (m % NB)
    if kind == "S1":
        reg = ph[2] if len(ph) > 2 else {"A": V_RA, "B": V_RB}[slot]
        return [f"ds_read_b128 {vr(b,4)}, v{reg} offset:{m*1024}"]
    q, dt = divmod(m, 18)
    reg = V_O if dt & 1 else V_E
    off = SLOT[slot] + q * 18432 + (dt >> 1) * 128
    return [f"ds_read_b64_tr_b16 {vr(b,2)}, v{reg} offset:{off}", f"ds_read_b64_tr_b16 {vr(b+2,2)}, v{reg} offset:{off + 4608}"]

W4PAT = [V_DMA, V_DMA, V_PA, V_P1, V_PB, V_DMA, V_PC, V_P1, V_P1]
def dma_instrs(kind, slot):
    g = []
    for i in range(9):
        grp, k = divmod(i, 4)
        pre = []
        if k == 0: pre.append(f"s_add_u32 m0, s{S_M0B}, {SLOT[slot] + grp*4096}")
        if kind == "S1":
            sc = " sc1" if (Opt.fuse_l2 and not Opt.acquire) else ""
            g.append((pre, f"buffer_load_dwordx4 v{V_DMA}, s[{S_SRD}:{S_SRD+3}], s{S_D3[grp]} offen offset:{k*1024}{sc} lds"))
        else:
            g.append((pre, f"buffer_load_dwordx4 v{W4PAT[i]}, s[{S_W4}:{S_W4+3}], s{S_D4[grp]} offen offset:{k*1024} lds"))
    return g
def dma_advance(kind):
    return [f"s_add_u32 s{r}, s{r}, 36864" for r in (S_D3 if kind == "S1" else S_D4)]

def phase(e, mf, ph, nxt, dma, fill, fill_range, last_vm=9, tail=None, xwait=False, early_dma=False, pre_next=None):
    gaps = {}
    issued = []
    for m in range(NB): issued.append((m, len(rd(ph, m))))
    waits = {}
    for j in range(36):
        L = gaps.setdefault(j, [])
        m = j + NB
        if m < 36:
            r = rd(ph, m); L += r; issued.append((m, len(r)))
        elif nxt is not None:
            if m == 36:
                if pre_next: L += pre_next
                L.append(f"s_waitcnt vmcnt({last_vm})")
                L.append("s_barrier")
            r = rd(nxt, m - 36); L += r; issued.append((m, len(r)))
        if (j + 1) % 2 == 0 and (j + 1 < 36 or nxt is not None):
            allowed = sum(n for (mm, n) in issued if mm > j + 2)
            waits[j] = f"s_waitcnt lgkmcnt({min(allowed, 15)})"
    pos = [1, 4, 7, 10, 13, 16, 19, 22, 25] if not early_dma else [0, 1, 2, 3, 4, 5, 6, 7, 8]
    if dma is not None:
        d = dma_instrs(*dma)
        for (pre, ld), p in zip(d, pos):
            if pre:
                if p > 0 and not early_dma: gaps[p - 1] += pre
                else: gaps[p] += pre + ["s_nop 0"]
            gaps[p].append(ld)
        gaps[27] += dma_advance(dma[0])
    if xwait:
        for j in range(4, 36, 4):
            ndma = sum(1 for p in pos if p <= j - 1)
            allowed = (35 - (j + 3)) + 9 + ndma
            gaps[j - 1].append(f"s_waitcnt vmcnt({allowed})")
    if fill:
        spread(gaps, fill, fill_range[0], fill_range[1])
    for j, w in waits.items(): gaps[j].append(w)
    e.extend(weave(mf, gaps))
    if tail: e.extend(tail)

def gen_mlp(e):
    R = f"s[{S_SRD}:{S_SRD+3}]"
    fused = Opt.fuse_l2
    SC = " sc1" if fused else ""
    e.label("L3_mlp")
    if fused: gen_pre.gen_mlp_wait(e)
    e(f"s_load_dwordx2 s[32:33], s[0:1], {KA_W4}")
    e(f"s_lshl_b32 s9, s7, 2")
    e(f"s_add_u32 s9, s9, s{S_W}")
    e(f"s_mul_i32 s{S_M0B}, s{S_W}, 9216")
    e(f"s_mul_i32 s10, s6, {18*36864}")
    e(f"s_add_u32 s{S_D3[0]}, s10, {LY.W3P}")
    e(f"s_add_u32 s{S_D3[1]}, s{S_D3[0]}, 4096"); e(f"s_add_u32 s{S_D3[2]}, s{S_D3[0]}, 8192")
    e(f"s_mov_b32 s{S_D4[0]}, s10"); e(f"s_add_u32 s{S_D4[1]}, s10, 4096"); e(f"s_add_u32 s{S_D4[2]}, s10, 8192")
    LN = TA[1]
    e(f"v_lshlrev_b32 v{LN}, 4, v0")
    e(f"v_add_u32 v{V_DMA}, s{S_M0B}, v{LN}")
    e(f"v_add_u32 v{V_RA}, {SLOT['A']}, v{LN}"); e(f"v_add_u32 v{V_RB}, {SLOT['B']}, v{LN}")
    e(f"v_add_u32 v{TA[0]}, {SLOT['D']}, v{LN}")
    e("v_and_b32 v8, 31, v0"); e("v_lshlrev_b32 v8, 2, v8"); e("v_lshrrev_b32 v9, 5, v0"); e("v_lshlrev_b32 v9, 13, v9"); e("v_add_u32 v8, v8, v9")
    def partA2():
        e("v_lshrrev_b32 v9, 3, v0")
        e(f"v_xor_b32 v{V_P1}, 64, v{V_DMA}")
        e("v_cmp_lt_u32 vcc, 5, v9"); e("s_nop 1"); e(f"v_cndmask_b32 v{V_PC}, v{V_DMA}, v{V_P1}, vcc")
        e("v_cmp_gt_u32 vcc, 4, v9"); e("s_nop 1"); e(f"v_cndmask_b32 v{V_PB}, v{V_DMA}, v{V_P1}, vcc")
        e("v_lshrrev_b32 v16, 5, v0"); e("v_bfe_u32 v17, v0, 4, 1"); e("v_bfe_u32 v18, v0, 2, 2")
        e("v_and_b32 v19, 1, v0"); e("v_bfe_u32 v21, v0, 1, 1")
        e("v_lshlrev_b32 v17, 1, v17"); e("v_add_u32 v17, v17, v19")
        e("v_lshrrev_b32 v19, 1, v18"); e("v_lshlrev_b32 v19, 2, v19"); e("v_xor_b32 v17, v17, v19")
        e("v_lshlrev_b32 v16, 3, v16"); e("v_add_u32 v16, v16, v18"); e("v_mul_u32_u24 v16, 1152, v16")
        e("v_lshlrev_b32 v21, 3, v21"); e("v_add_u32 v16, v16, v21")
        e(f"v_lshlrev_b32 v17, 4, v17"); e(f"v_add_u32 v{V_E}, v16, v17"); e(f"v_xor_b32 v17, 64, v17"); e(f"v_add_u32 v{V_O}, v16, v17")
        e("v_cmp_lt_u32 vcc, 1, v9"); e("s_waitcnt lgkmcnt(0)"); e("s_nop 0"); e(f"v_cndmask_b32 v{V_PA}, v{V_DMA}, v{V_P1}, vcc")
        make_srd(e, S_W4, 32, 576 * 4608 * 2)
        for i in range(4): e(f"v_mov_b32 v{V_W+i}, 0")
        e("s_nop 1")
        for dt in range(18):
            e(f"v_mfma_f32_32x32x16_bf16 {outreg(dt)}, {vr(V_W,4)}, {vr(V_W,4)}, 0")
    if fused:
        partA2()
        e("s_waitcnt vmcnt(0)")
        e("s_barrier")
    for pre, ld in dma_instrs("S1", "D"):
        for p in pre: e(p)
        if pre: e("s_nop 0")
        e(ld)
    for a in dma_advance("S1"): e(a)
    e("s_lshl_b32 s17, s9, 7")
    e(f"s_add_u32 s17, s17, {LY.ST2}")
    NST = LY.NSTAT
    assert NST <= 20
    sreg = ([64 + p for p in range(16)] + [40 + p for p in range(4)])[:NST]
    for p in range(NST):
        e(f"buffer_load_dword v{sreg[p]}, v8, {R}, s17 offen{SC}")
        if p != NST - 1: e("s_add_u32 s17, s17, 16384")
    e(f"s_mul_i32 s16, s9, 36864")
    e(f"s_add_u32 s16, s16, {LY.X1F}")
    for j in range(36):
        e(f"buffer_load_dwordx4 {ar(4*j,4)}, v{LN}, {R}, s16 offen offset:{(j%4)*1024}{SC}")
        if j % 4 == 3 and j != 35: e("s_add_u32 s16, s16, 4096")
    for pre, ld in dma_instrs("S1", "B"):
        for p in pre: e(p)
        if pre: e("s_nop 0")
        e(ld)
    for a in dma_advance("S1"): e(a)
    stamp(e, 1)
    if not fused: partA2()
    st = []
    for p in sreg[1:]: st.append(f"v_add_f32 v64, v64, v{p}")
    st += ["v_mov_b32 v65, v64", "s_nop 1", "v_permlane32_swap_b32 v64, v65",
           f"v_mul_f32 v64, {hexf(1/576)}, v64", f"v_mul_f32 v65, {hexf(1/576)}, v65", "v_fma_f32 v65, -v64, v64, v65",
           "v_max_f32 v65, 0, v65", f"v_add_f32 v65, {hexf(1e-5)}, v65", f"v_sqrt_f32 v{V_S}, v65", "s_nop 0", f"v_rcp_f32 v66, v{V_S}", "s_nop 0",
           f"v_mul_f32 v{V_B}, {hexf(GELU_C0)}, v66", "v_mul_f32 v67, v66, v66", "v_mul_f32 v67, v67, v66", f"v_mul_f32 v{V_A}, {hexf(GELU_C1)}, v67"]
    e("s_waitcnt vmcnt(45)")
    e("s_barrier")
    stamp(e, 2)
    P0 = ("S1", "D", TA[0])
    for m in range(NB): e.extend(rd(P0, m))
    e("s_waitcnt vmcnt(41)")
    e(f"s_waitcnt lgkmcnt({NB-2})")
    phase(e, s1_mfmas(0), P0, ("S1", "B"), ("S2", "C"), st, (0, 30), xwait=True)
    phase(e, s1_mfmas(1), ("S1", "B"), ("S2", "C"), ("S1", "A"), gelu_groups(V_H[0], range(4)) + cvts(V_H[0], range(8)), (3, 35))
    stamp(e, 3)
    e(f"s_mov_b32 s{S_CNT}, 8")
    e(".p2align 6")
    e.label("L3_mlp_loop")
    GA = Opt.gelu_split
    for half in range(2):
        Hn = V_H[(half + 1) & 1]
        s2, s2n = ("C", "D") if half == 0 else ("D", "C")
        s1, s1n = ("A", "B") if half == 0 else ("B", "A")
        phase(e, s2_mfmas(), ("S2", s2), ("S1", s1), ("S2", s2n), gelu_groups(Hn, range(GA)), (3, 36))
        gb = cvts(Hn, range(2 * GA))
        for g in range(GA, 4): gb += gelu_groups(Hn, [g]) + cvts(Hn, range(2 * g, 2 * g + 2))
        phase(e, s1_mfmas(half), ("S1", s1), ("S2", s2n), ("S1", s1n), gb, (0, 35))
    e(f"s_sub_u32 s{S_CNT}, s{S_CNT}, 1")
    e(f"s_cmp_lg_u32 s{S_CNT}, 0")
    e("s_cbranch_scc1 L3_mlp_loop")
    stamp(e, 4)
    H = V_H[1]
    phase(e, s2_mfmas(), ("S2", "C"), ("S2", "D"), ("S2", "D"), gelu_groups(H, range(4)), (9, 36), last_vm=0, tail=cvts(H, range(8)) + ["s_nop 1"], early_dma=True)
    phase(e, s2_mfmas(), ("S2", "D"), None, None, None, None)
    stamp(e, 5)
    e(f"s_lshl_b32 s10, s6, 6")
    e(f"s_add_u32 s10, s10, s9")
    e(f"s_mul_i32 s10, s10, 36864")
    e(f"s_add_u32 s10, s10, {LY.PART}")
    e(f"v_subrev_u32 v{TA[0]}, s{S_M0B}, v{V_DMA}")
    e("s_nop 9")
    tb = [48, 56, 64, 72]
    for dt in range(18):
        isv_, b = OUT(dt)
        t = tb[dt % 4]
        if isv_:
            for j in range(8): e(f"v_cvt_pk_bf16_f32 v{t+j}, v{b+2*j}, v{b+2*j+1}")
        else:
            for j in range(16): e(f"v_accvgpr_read_b32 v{16+j}, a{b+j}")
            for j in range(8): e(f"v_cvt_pk_bf16_f32 v{t+j}, v{16+2*j}, v{16+2*j+1}")
        ks = 2 * dt
        e(f"buffer_store_dwordx4 {vr(t,4)}, v{TA[0]}, {R}, s10 offen offset:{(ks%4)*1024}")
        e(f"buffer_store_dwordx4 {vr(t+4,4)}, v{TA[0]}, {R}, s10 offen offset:{(ks%4+1)*1024}")
        if dt % 2 == 1 and dt != 17: e("s_add_u32 s10, s10, 4096")
    fin(e)

A_K0OFF, A_KXOFF, A_VOFF = 1, 2, 3
A_M = 8
A_O = 32
A_S = [160, 192]
A_P = [224, 240]
NSET = 2
AG_SET = 0
def SET(i): return AG_SET + 28 * (i % NSET)
AG_Q0 = 56
AG_QX = 88
SA_K, SA_KX, SA_V = 16, 17, 18
SA_CNT = 22
NQ = 8

def attn_loads(st):
    b = SET(st); R = f"s[{S_SRD}:{S_SRD+3}]"
    o = [f"buffer_load_dwordx4 {ar(b,4)}, v{A_K0OFF}, {R}, s{SA_K} offen",
         f"buffer_load_dwordx4 {ar(b+4,4)}, v{A_K0OFF}, {R}, s{SA_K} offen offset:1024",
         f"buffer_load_dword a{b+24}, v{A_KXOFF}, {R}, s{SA_KX} offen"]
    for i in range(4):
        o.append(f"buffer_load_dwordx4 {ar(b+8+4*i,4)}, v{A_VOFF}, {R}, s{SA_V} offen" + (f" offset:{608*i}" if i else ""))
    o += [f"s_add_u32 s{SA_K}, s{SA_K}, 2048", f"s_add_u32 s{SA_KX}, s{SA_KX}, 256", f"s_add_u32 s{SA_V}, s{SA_V}, 2432"]
    return o
def qk(kp, qi, S):
    b = SET(kp)
    return [f"v_mfma_f32_32x32x4_2b_bf16 {vr(S,32)}, {ar(b+24,2)}, {ar(AG_QX+2*qi,2)}, 0",
            f"v_mfma_f32_32x32x16_bf16 {vr(S,16)}, {ar(b,4)}, {ar(AG_Q0+4*qi,4)}, {vr(S,16)}",
            f"v_mfma_f32_32x32x16_bf16 {vr(S+16,16)}, {ar(b+4,4)}, {ar(AG_Q0+4*qi,4)}, {vr(S+16,16)}"]
def pv(kp, qi, P):
    b = SET(kp); O = A_O + 16 * qi
    return [f"v_mfma_f32_32x32x16_bf16 {vr(O,16)}, {ar(b+8+4*i,4)}, {vr(P+4*i,4)}, {vr(O,16)}" for i in range(4)]
def expcvt(n):
    S = A_S[n & 1]; P = A_P[n & 1]
    ex = [f"v_exp_f32 v{S+i}, v{S+i}" for i in range(32)]
    cv = [f"v_cvt_pk_bf16_f32 v{P+j}, v{S+2*j}, v{S+2*j+1}" for j in range(16)]
    o = ex[0:4]
    for j in range(14): o += [cv[j], ex[2*j+4], ex[2*j+5]]
    o += [cv[14], cv[15]]
    return o

def gen_attn(e, force_slow=False):
    R = f"s[{S_SRD}:{S_SRD+3}]"
    e.label("L3_attn")
    e("s_sub_u32 s7, s7, 16")
    e("s_lshr_b32 s9, s7, 2")
    e("s_lshl_b32 s10, s6, 2")
    e("s_add_u32 s9, s9, s10")
    e("s_and_b32 s10, s7, 3")
    e("s_lshl_b32 s10, s10, 4")
    e(f"s_and_b32 s31, s{S_W}, 1"); e("s_lshl_b32 s31, s31, 3"); e("s_add_u32 s10, s10, s31")
    e(f"s_lshr_b32 s31, s{S_W}, 1")
    e(f"v_lshlrev_b32 v{A_K0OFF}, 4, v0")
    e(f"v_lshlrev_b32 v{A_KXOFF}, 2, v0")
    e("v_and_b32 v4, 31, v0")
    e("v_lshlrev_b32 v5, 4, v4")
    e("v_lshrrev_b32 v6, 5, v0")
    e("v_mul_u32_u24 v7, 304, v6")
    e("v_add_u32 v5, v5, v7")
    e("v_cmp_lt_u32 vcc, 18, v4")
    e("v_mov_b32 v7, 0x40000000")
    e("v_lshlrev_b32 v12, 2, v4")
    e(f"v_cndmask_b32 v{A_VOFF}, v5, v7, vcc")
    e("s_lshl_b32 s11, s9, 16")
    e("s_lshl_b32 s24, s9, 13")
    e(f"s_add_u32 s26, s11, {LY.KF0}")
    e(f"s_add_u32 s27, s24, {LY.KX}")
    e(f"s_mul_i32 s28, s9, {LY.VHEAD}")
    e(f"s_add_u32 s28, s28, {LY.VF}")
    e("s_lshl_b32 s23, s31, 15"); e(f"s_add_u32 s{SA_K}, s26, s23")
    e("s_lshl_b32 s23, s31, 12"); e(f"s_add_u32 s{SA_KX}, s27, s23")
    e(f"s_mul_i32 s23, s31, {16*2432}"); e(f"s_add_u32 s{SA_V}, s28, s23")
    for x in attn_loads(0): e(x)
    e("s_lshl_b32 s23, s31, 2"); e("s_add_u32 s34, s10, s23")
    e("s_xor_b32 s23, s23, 4"); e("s_add_u32 s35, s10, s23")
    for g, sg in enumerate((34, 35)):
        e(f"s_lshl_b32 s23, s{sg}, 10"); e("s_add_u32 s23, s23, s11"); e(f"s_add_u32 s23, s23, {LY.QF0}")
        for qi in range(4):
            e(f"buffer_load_dwordx4 {ar(AG_Q0+4*(4*g+qi),4)}, v{A_K0OFF}, {R}, s23 offen offset:{qi*1024}")
        e(f"s_lshl_b32 s23, s{sg}, 7"); e("s_add_u32 s23, s23, s24"); e(f"s_add_u32 s23, s23, {LY.QX}")
        for qi in range(4):
            e(f"buffer_load_dword a{AG_QX+2*(4*g+qi)}, v12, {R}, s23 offen offset:{qi*128}")
    for i in range(16): e(f"v_mov_b32 v{A_P[1]+i}, 0")
    for i in range(16): e(f"v_accvgpr_write_b32 a{SET(1)+8+i}, 0")
    for s_ in range(NSET): e(f"v_accvgpr_write_b32 a{SET(s_)+25}, 0")
    for qi in range(NQ): e(f"v_accvgpr_write_b32 a{AG_QX+2*qi+1}, 0")
    for qi in range(NQ): e(f"v_mfma_f32_32x32x16_bf16 {vr(A_O+16*qi,16)}, {vr(A_P[1],4)}, {vr(A_P[1],4)}, 0")
    stamp(e, 1)
    e("s_waitcnt vmcnt(0)")
    stamp(e, 2)
    q0 = qk(0, 0, A_S[0])
    e(q0[0]); e("s_nop 15"); e("s_nop 1"); e(q0[1]); e(q0[2])
    e("s_nop 10")
    e(f"s_mov_b32 s{SA_CNT}, 8")
    e(".p2align 6")
    e.label("L3_attn_loop")
    NB_ = 2 * NQ
    for n in range(NB_):
        kp, qi = divmod(n, NQ)
        n1 = (n + 1) % NB_; n0 = (n - 1) % NB_
        X, Ma, Mb = qk(n1 // NQ, n1 % NQ, A_S[n1 & 1]); p = pv(n0 // NQ, n0 % NQ, A_P[n0 & 1])
        va = expcvt(n)
        seq = []
        ld = attn_loads(kp + 1)
        if qi == NQ - 1: seq.append("s_waitcnt vmcnt(4)")
        cuts = eval(os.environ.get('ATT_CUTS', '[0, 8, 15, 22, 29, 35, 42, 48]')) if qi < 7 else [0, 9, 16, 23, 30, 36, 42, 48]
        mf = [X, p[0], p[1], Ma, Mb, p[2], p[3]]
        for k in range(7):
            if k == 1 and qi == 1: seq.append("s_waitcnt vmcnt(2)")
            seq.append(mf[k])
            if k == 0 and qi < 7 and not os.environ.get('ATT_NOLOAD'): seq.append(ld[qi])
            if k == 0 and qi == 7: seq += ld[7:9]
            if k == 3 and qi == 7: seq += ld[9:10]
            seq += va[cuts[k]:cuts[k + 1]]
        e.extend(seq)
    e(f"s_sub_u32 s{SA_CNT}, s{SA_CNT}, 1")
    e(f"s_cmp_lg_u32 s{SA_CNT}, 0")
    e("s_cbranch_scc1 L3_attn_loop")
    e("s_nop 1")
    for m in pv(1, NQ - 1, A_P[1]): e(m)
    e("s_nop 15")
    stamp(e, 5)
    e(f"s_mul_i32 s23, s{S_W}, 12288"); e(f"v_add_u32 v4, s23, v{A_K0OFF}")
    for i in range(4):
        for q in range(3):
            e(f"ds_write_b128 v4, {vr(A_O+16*(4+i)+4*q,4)} offset:{(3*i+q)*1024}")
    e(f"s_xor_b32 s23, s{S_W}, 2"); e("s_mul_i32 s23, s23, 12288"); e(f"v_add_u32 v4, s23, v{A_K0OFF}")
    e("s_waitcnt lgkmcnt(0)"); e("s_barrier")
    for i in range(4):
        for q in range(3):
            e(f"ds_read_b128 {vr(A_S[0]+12*i+4*q,4)}, v4 offset:{(3*i+q)*1024}")
    e("s_waitcnt lgkmcnt(0)")
    for i in range(4):
        for r in range(11): e(f"v_add_f32 v{A_O+16*i+r}, v{A_O+16*i+r}, v{A_S[0]+12*i+r}")
    e.label("L3_attn_fin")
    e("s_mul_i32 s23, s34, 36864")
    e(f"s_add_u32 s23, s23, {LY.OF}")
    e("s_lshl_b32 s24, s9, 10")
    e("s_add_u32 s24, s24, s23")
    e("s_lshr_b32 s25, s9, 3")
    e("s_add_u32 s25, s25, 32")
    e("s_lshl_b32 s25, s25, 10")
    e("s_add_u32 s25, s25, s23")
    e("s_lshr_b32 s29, s9, 2"); e("s_and_b32 s29, s29, 1"); e("s_lshl_b32 s29, s29, 9")
    e("s_add_u32 s25, s25, s29")
    e("s_and_b32 s29, s9, 3"); e("s_lshl_b32 s29, s29, 2")
    e("s_add_u32 s25, s25, s29")
    e("s_mov_b64 s[32:33], %d" % (0 if force_slow else -1))
    for qi in range(4):
        O = A_O + 16 * qi
        e(f"v_mov_b32 v4, v{O+10}")
        e(f"v_mov_b32 v5, v{O+10}")
        e("s_nop 1")
        e("v_permlane32_swap_b32 v4, v5")
        e(f"v_cmp_le_f32 vcc, {hexf(2.0**-60)}, v4")
        e("s_and_b64 s[32:33], s[32:33], vcc")
        e(f"v_cmp_ge_f32 vcc, {hexf(2.0**100)}, v4")
        e("s_and_b64 s[32:33], s[32:33], vcc")
        e("v_rcp_f32 v5, v4")
        e("v_mov_b32 v6, 0")
        for r in range(10): e(f"v_mul_f32 v{O+r}, v{O+r}, v5")
        for r in range(10): e(f"v_fmac_f32 v6, 0, v{O+r}")
        e("v_cmp_o_f32 vcc, v6, v6")
        e("s_and_b64 s[32:33], s[32:33], vcc")
    e("s_cmp_eq_u32 s30, 0")
    e("s_cbranch_scc0 L3_attn_store")
    e("s_cmp_eq_u64 s[32:33], exec")
    e("s_cbranch_scc0 L3_attn_slow")
    e.label("L3_attn_store")
    e("v_and_b32 v4, 31, v0")
    e("v_lshlrev_b32 v4, 4, v4")
    for qi in range(4):
        O = A_O + 16 * qi
        t = A_P[0] + 8 * (qi % 4)
        for j in range(5): e(f"v_cvt_pk_bf16_f32 v{t+j}, v{O+2*j}, v{O+2*j+1}")
        e(f"buffer_store_dwordx4 {vr(t,4)}, v{A_K0OFF}, {R}, s24 offen")
        e("s_mov_b64 exec, 0xffffffff")
        e(f"buffer_store_dword v{t+4}, v4, {R}, s25 offen")
        e("s_mov_b64 exec, -1")
        if qi != 3:
            e("s_add_u32 s24, s24, 36864")
            e("s_add_u32 s25, s25, 36864")
    fin(e)
    e.label("L3_attn_slow")
    M = A_M
    e("s_mov_b32 s30, 1")
    e("s_mov_b32 s16, s26"); e("s_mov_b32 s17, s27"); e("s_mov_b32 s18, s28")
    for i in range(64): e(f"v_mov_b32 v{A_O+i}, 0")
    for qi in range(4): e(f"v_mov_b32 v{M+qi}, 0xff800000")
    e(f"s_mov_b32 s{SA_CNT}, 32")
    e.label("L3_attn_slow_loop")
    e("s_waitcnt vmcnt(0)")
    for x in attn_loads(0): e(x)
    e("s_waitcnt vmcnt(0)")
    for qi in range(4):
        S = A_S[0]; P = A_P[0]; O = A_O + 16 * qi
        X, Ma, Mb = qk(0, qi, S)
        e(X); e("s_nop 15"); e("s_nop 1"); e(Ma); e(Mb)
        e("s_nop 11")
        e(f"v_max3_f32 v4, v{S}, v{S+1}, v{S+2}")
        for i in range(3, 31, 2): e(f"v_max3_f32 v4, v4, v{S+i}, v{S+i+1}")
        e(f"v_max_f32 v4, v4, v{S+31}")
        e("v_mov_b32 v5, v4")
        e("s_nop 1")
        e("v_permlane32_swap_b32 v4, v5")
        e("v_max_f32 v4, v4, v5")
        e(f"v_max_f32 v4, v4, v{M+qi}")
        e(f"v_sub_f32 v5, v{M+qi}, v4")
        e("v_exp_f32 v5, v5")
        e(f"v_mov_b32 v{M+qi}, v4")
        for i in range(32): e(f"v_sub_f32 v{S+i}, v{S+i}, v4")
        for i in range(32): e(f"v_exp_f32 v{S+i}, v{S+i}")
        for i in range(16): e(f"v_mul_f32 v{O+i}, v{O+i}, v5")
        for j in range(16): e(f"v_cvt_pk_bf16_f32 v{P+j}, v{S+2*j}, v{S+2*j+1}")
        e("s_nop 1")
        for m in pv(0, qi, P): e(m)
        e("s_nop 11")
    e(f"s_sub_u32 s{SA_CNT}, s{SA_CNT}, 1")
    e(f"s_cmp_lg_u32 s{SA_CNT}, 0")
    e("s_cbranch_scc1 L3_attn_slow_loop")
    e("s_nop 7")
    e("s_branch L3_attn_fin")

def gen(force_slow=False, only=None):
    e = Emit()
    kernel_head(e, NAME)
    Diag.kid = 2
    e("s_cmp_ge_u32 s2, 256")
    e("s_cbranch_scc1 L3_exit")
    e(f"s_load_dwordx2 s[4:5], s[0:1], {KA_WS}")
    e("s_and_b32 s6, s2, 7")
    e("s_lshr_b32 s7, s2, 3")
    e("v_lshrrev_b32 v1, 6, v0")
    e("v_and_b32 v0, 63, v0")
    e(f"v_readfirstlane_b32 s{S_W}, v1")
    e("s_mov_b32 s30, 0")
    code_prefetch(e, NAME, "L3_exit", 3, vaddr=16, vtmp=17, vdst=20, sp=60)
    e("s_waitcnt lgkmcnt(0)")
    make_srd(e, S_SRD, 4, LY.WS_END)
    stamp(e, 0, 'any')
    dbg_start(e)
    if Opt.fuse_l2: gen_pre.gen_prephase(e)
    e("s_cmp_lt_u32 s7, 16")
    if only == "mlp":
        e("s_cbranch_scc0 L3_exit")
    else:
        e("s_cbranch_scc0 L3_attn")
    if only == "attn":
        e("s_branch L3_exit")
    gen_mlp(e)
    gen_attn(e, force_slow)
    e.label("L3_exit")
    e("s_endpgm")
    return e.text()

if __name__ == "__main__":
    t = gen()
    errs = check(t, "l3")
    for x in errs: print(x)
    print("instrs", sum(1 for l in t.split("\n") if l.startswith("    ")), "hazard errs", len(errs))
    open("l3.s", "w").write(t)
```

```python
from gen_common import *
NAME = "l4_kernel"
LDS_BYTES = 4 * 18 * 1024
S_WS = 12; S_OUT = 16
def gen():
    e = Emit()
    kernel_head(e, NAME)
    Diag.kid = 3
    e("s_cmp_ge_u32 s2, 256")
    e("s_cbranch_scc1 L4_exit")
    e(f"s_load_dwordx2 s[4:5], s[0:1], {KA_WS}")
    e(f"s_load_dwordx2 s[6:7], s[0:1], {KA_OUT}")
    e("v_lshrrev_b32 v1, 6, v0")
    e("v_and_b32 v0, 63, v0")
    e("v_readfirstlane_b32 s8, v1")
    e("s_lshr_b32 s9, s2, 5"); e("s_lshl_b32 s9, s9, 3"); e("s_and_b32 s10, s2, 7"); e("s_add_u32 s9, s9, s10")
    e("s_lshr_b32 s10, s2, 3"); e("s_and_b32 s10, s10, 3")
    e("v_lshlrev_b32 v1, 4, v0")
    code_prefetch(e, NAME, "L4_exit", 1, vaddr=250, vtmp=251, vdst=252, sp=60)
    e("s_waitcnt lgkmcnt(0)")
    make_srd(e, S_WS, 4, LY.WS_END)
    make_srd(e, S_OUT, 6, 2048 * 576 * 2)
    stamp(e, 0, 'any')
    dbg_start(e)
    W = lambda T, k: 4 * (9 * T + k)
    OFR = 8
    ACC = 44
    PB = 124
    VG = 2
    e("s_mul_i32 s20, s9, 36"); e("s_mul_i32 s21, s8, 9"); e("s_add_u32 s20, s20, s21"); e("s_lshl_b32 s20, s20, 10")
    e(f"s_add_u32 s22, s20, {LY.OF}")
    e("s_mul_i32 s23, s10, 180"); e("s_add_u32 s23, s23, s21"); e("s_lshl_b32 s23, s23, 10"); e(f"s_add_u32 s23, s23, {LY.WOP}")
    for k in range(9):
        e(f"buffer_load_dwordx4 {vr(OFR+4*k,4)}, v1, s[{S_WS}:{S_WS+3}], s22 offen offset:{(k%4)*1024}")
        if k % 4 == 3: e("s_add_u32 s22, s22, 4096")
    sreg = [24, 25, 26, 27, 28]
    for T in range(5):
        e(f"s_add_u32 s{sreg[T]}, s23, {T*36*1024}")
    for k in range(9):
        for T in range(5):
            e(f"buffer_load_dwordx4 {ar(W(T,k),4)}, v1, s[{S_WS}:{S_WS+3}], s{sreg[T]} offen offset:{(k%4)*1024}")
        if k % 4 == 3:
            for T in range(5): e(f"s_add_u32 s{sreg[T]}, s{sreg[T]}, 4096")
    e("v_and_b32 v3, 31, v0"); e("v_lshlrev_b32 v4, 2, v3")
    e("s_lshl_b32 s29, s9, 7"); e(f"s_add_u32 s29, s29, {LY.G}")
    total = 54
    def mf(T, k):
        return f"v_mfma_f32_32x32x16_bf16 {vr(ACC+16*T,16)}, {ar(W(T,k),4)}, {vr(OFR+4*k,4)}, " + ("0" if k == 0 else vr(ACC + 16 * T, 16))
    e("s_mul_i32 s30, s9, 36"); e("s_mul_i32 s31, s10, 9"); e("s_add_u32 s30, s30, s31"); e("s_add_u32 s30, s30, s8"); e("s_lshl_b32 s30, s30, 10")
    def unit_loads(i):
        o = []
        o.append(f"s_add_u32 s32, s30, {LY.X1F + i*4096}")
        o.append(f"buffer_load_dwordx4 {vr(PB+36*i,4)}, v1, s[{S_WS}:{S_WS+3}], s32 offen")
        for s in range(8):
            o.append(f"s_add_u32 s32, s30, {LY.PART + s*64*36*1024 + i*4096}")
            o.append(f"buffer_load_dwordx4 {vr(PB+36*i+4*(s+1),4)}, v1, s[{S_WS}:{S_WS+3}], s32 offen")
        return o
    issued = total
    extra = 0
    stamp(e, 1, 'any')
    for k in range(9):
        need_done = 9 + 5 * (k + 1)
        e(f"s_waitcnt vmcnt({min(63, total + extra - need_done)})")
        if k == 0: stamp(e, 2, 'any')
        for T in range(5): e(mf(T, k))
        if k == 2:
            e(f"buffer_load_dword v{VG}, v4, s[{S_WS}:{S_WS+3}], s29 offen"); extra += 1
            e.extend(unit_loads(0)); extra += 9
        if k == 4:
            e.extend(unit_loads(1)); extra += 9
    stamp(e, 3, 'any')
    e("s_cmp_eq_u32 s8, 0")
    e("s_cbranch_scc0 L4_no3a")
    e.extend(unit_loads(2))
    e.label("L4_no3a")
    e("s_mul_i32 s33, s8, 18432")
    e("v_add_u32 v5, s33, v1")
    e("s_nop 7")
    for u in range(9):
        T, hfq = divmod(u, 2)
        b = ACC + 16 * T + 8 * hfq
        e(f"ds_write_b128 v5, {vr(b,4)} offset:{(2*u)*1024}")
        e(f"ds_write_b128 v5, {vr(b+4,4)} offset:{(2*u+1)*1024}")
    e("s_waitcnt lgkmcnt(0)")
    e("s_barrier")
    stamp(e, 4, 'any')
    e("s_lshl_b32 s33, s8, 11")
    e("v_add_u32 v5, s33, v1")
    e("v_add_u32 v9, 36864, v5")
    e("s_mov_b32 s34, 0x00003f80"); e("s_mov_b32 s35, 0x3f800000")
    e("v_lshrrev_b32 v6, 5, v0"); e("v_lshlrev_b32 v6, 4, v6")
    e("s_movk_i32 s36, 1152")
    e("v_mul_lo_u32 v7, v3, s36"); e("v_add_u32 v7, v7, v6")
    e("s_mul_i32 s37, s9, 36864"); e("s_mul_i32 s38, s10, 288"); e("s_add_u32 s37, s37, s38"); e("s_lshl_b32 s38, s8, 5"); e("s_add_u32 s37, s37, s38")
    def unit2(i, R, B, src, vm):
        e(f"s_waitcnt vmcnt({vm})")
        for j in range(4):
            e(f"v_lshlrev_b32 v{B+2*j}, 16, v{src+j}")
            e(f"v_and_b32 v{B+2*j+1}, 0xffff0000, v{src+j}")
        for s in range(8):
            for j in range(4):
                e(f"v_dot2c_f32_bf16 v{B+2*j}, s34, v{src+4*(s+1)+j}")
                e(f"v_dot2c_f32_bf16 v{B+2*j+1}, s35, v{src+4*(s+1)+j}")
        e("s_waitcnt lgkmcnt(0)")
        for j in range(8):
            e(f"v_add_f32 v{R+j}, v{R+j}, v{R+8+j}")
            e(f"v_add_f32 v{R+16+j}, v{R+16+j}, v{R+24+j}")
        for j in range(8): e(f"v_add_f32 v{R+j}, v{R+j}, v{R+16+j}")
        for j in range(8): e(f"v_sub_f32 v{R+j}, v{R+j}, v{B+j}")
        for j in range(8): e(f"v_fma_f32 v{R+j}, v{R+j}, v{VG}, v{B+j}")
        for j in range(4): e(f"v_cvt_pk_bf16_f32 v{88+j}, v{R+2*j}, v{R+2*j+1}")
        e(f"buffer_store_dwordx4 v[88:91], v7, s[{S_OUT}:{S_OUT+3}], s37 offen offset:{i*128}")
    def reads(i):
        for wv in range(4):
            ad = "v5" if wv < 2 else "v9"
            e(f"ds_read_b128 {vr(44+8*wv,4)}, {ad} offset:{(wv%2)*18432 + (8*i)*1024}")
            e(f"ds_read_b128 {vr(44+8*wv+4,4)}, {ad} offset:{(wv%2)*18432 + (8*i+1)*1024}")
    e("s_cmp_eq_u32 s8, 0")
    e("s_cbranch_scc0 L4_two")
    reads(0); unit2(0, 44, 80, PB, 18)
    reads(1); unit2(1, 44, 80, PB + 36, 10)
    reads(2); unit2(2, 44, 80, PB + 72, 2)
    fin(e)
    e.label("L4_two")
    reads(0); unit2(0, 44, 80, PB, 9)
    reads(1); unit2(1, 44, 80, PB + 36, 1)
    fin(e)
    e.label("L4_exit")
    e("s_endpgm")
    return e.text()
if __name__ == "__main__":
    t = gen()
    errs = check(t, "l4")
    for x in errs: print(x)
    print("instrs", sum(1 for l in t.split("\n") if l.startswith("    ")), "hazard errs", len(errs))
```

```python
from gen_common import *
S_WS = 12; S_SRC = 16; S_XB = 20; S_RP = 36
S_DBG = 34
IMG2 = 73728
XCH = 147456
CSTEP = 128
CNT_X, CNT_W = 0, 16 * CSTEP

def lane_tr_parts(e, vhf, vsub, vr_, vsig):
    e(f"v_lshrrev_b32 v{vhf}, 5, v0"); e(f"v_bfe_u32 v{vsub}, v0, 4, 1"); e(f"v_bfe_u32 v{vr_}, v0, 2, 2")
    e(f"v_and_b32 v{vsig}, 1, v0"); e(f"v_lshlrev_b32 v{vsig}, 1, v{vsig}"); e(f"v_bfe_u32 v15, v0, 1, 1"); e(f"v_or_b32 v{vsig}, v{vsig}, v15")

def publish(e, off_sgpr):
    e("s_waitcnt vmcnt(0)")
    e("s_barrier")
    lab = f"Lpub_{len(e.L)}"
    e("s_cmp_eq_u32 s8, 0"); e(f"s_cbranch_scc0 {lab}")
    e("s_mov_b64 exec, 1")
    e(f"v_mov_b32 v250, s{off_sgpr}"); e("v_mov_b32 v251, 1")
    e(f"global_atomic_add v250, v251, s[{S_DBG}:{S_DBG+1}] sc1")
    e("s_mov_b64 exec, -1")
    e.label(lab)

def wait_counters(e, waits, acquire=False):
    lab = f"Lwait_{len(e.L)}"
    e("s_cmp_eq_u32 s8, 0"); e(f"s_cbranch_scc0 {lab}_done")
    e("s_mov_b32 s50, 0x40000")
    e("s_mov_b64 exec, 1")
    for i, (off, n) in enumerate(waits): e(f"v_mov_b32 v{246+i}, s{off}")
    e.label(lab)
    for i, (off, n) in enumerate(waits): e(f"global_load_dword v{250+i}, v{246+i}, s[{S_DBG}:{S_DBG+1}] sc1")
    e("s_waitcnt vmcnt(0)")
    e("s_mov_b32 s51, 1")
    for i, (off, n) in enumerate(waits):
        e(f"v_readfirstlane_b32 s52, v{250+i}")
        e(f"s_cmp_ge_u32 s52, {n}"); e("s_cselect_b32 s51, s51, 0")
    e("s_cmp_eq_u32 s51, 1"); e(f"s_cbranch_scc1 {lab}_ok")
    if Opt.poll_sleep: e(f"s_sleep {Opt.poll_sleep}")
    e("s_sub_u32 s50, s50, 1"); e("s_cmp_lg_u32 s50, 0"); e(f"s_cbranch_scc1 {lab}")
    e.label(f"{lab}_ok")
    e("s_mov_b64 exec, -1")
    if acquire: e("buffer_inv sc1")
    e.label(f"{lab}_done")

def gemm(e, NT, with_repack):
    tag = f"G{NT}"
    RB = 64 * NT
    KS = 16 * RB
    e(f"s_load_dwordx2 s[24:25], s[0:1], {KA_W2}")
    e(f"s_load_dwordx2 s[26:27], s[0:1], {KA_XA}")
    e("v_lshlrev_b32 v1, 4, v0")
    if NT == 2:
        e("v_lshrrev_b32 v5, 3, v0"); e("v_and_b32 v6, 7, v0"); e("v_bfe_u32 v7, v0, 4, 1"); e("v_lshlrev_b32 v7, 2, v7"); e("v_xor_b32 v6, v6, v7")
        e("v_mul_u32_u24 v5, 1152, v5"); e("v_lshlrev_b32 v6, 4, v6"); e("v_add_u32 v2, v5, v6"); e(f"v_add_u32 v3, {9216-1024}, v2")
        NP = 2
    else:
        for i in range(3):
            e(f"v_add_u32 v5, {64*i}, v0")
            e("v_mul_u32_u24 v6, 171, v5"); e("v_lshrrev_b32 v6, 11, v6")
            e("v_mul_u32_u24 v7, 12, v6"); e("v_sub_u32 v7, v5, v7")
            e("v_mul_u32_u24 v6, 1152, v6"); e("v_lshlrev_b32 v7, 4, v7"); e("v_add_u32 v6, v6, v7")
            e(f"v_subrev_u32 v{2+i}, {1024*i}, v6")
        NP = 3
    e("s_waitcnt lgkmcnt(0)")
    make_srd(e, S_SRC, 24, 576 * 576 * 2)
    make_srd(e, S_XB, 26, 2048 * 576 * 2)
    e("s_mul_i32 s28, s8, 18432"); e("s_add_u32 s28, s28, s10")
    e(f"s_mul_i32 s29, s8, {KS}")
    e("s_mul_i32 s31, s9, 36864"); e(f"s_add_u32 s40, s31, {LY.HS}")
    for st in range(3):
        for i in range(3):
            ch = 3 * st + i
            e(f"s_add_u32 s31, s28, {ch*4*18432}")
            e(f"s_add_u32 m0, s29, {4*ch*KS}")
            e(f"s_add_u32 s{46+i}, s40, {ch*4096}")
            for k in range(NP):
                e(f"buffer_load_dwordx4 v{2+k}, s[{S_SRC}:{S_SRC+3}], s31 offen" + (f" offset:{k*1024}" if k else "") + " lds")
        for i in range(3):
            ch = 3 * st + i
            for k in range(4):
                e(f"buffer_load_dwordx4 {ar(4*(4*ch+k),4)}, v1, s[{S_WS}:{S_WS+3}], s{46+i} offen offset:{k*1024}")
    nrp = 0
    if with_repack:
        repack_dma(e); nrp = 18
    stamp(e, 1, 'pre')
    lane_tr_parts(e, 5, 6, 7, 8)
    if NT == 2:
        e("v_lshlrev_b32 v9, 1, v6"); e("v_lshrrev_b32 v10, 1, v8"); e("v_add_u32 v9, v9, v10")
        e("v_lshrrev_b32 v10, 1, v7"); e("v_lshlrev_b32 v10, 2, v10"); e("v_xor_b32 v9, v9, v10"); e("v_lshlrev_b32 v9, 4, v9")
        e("v_and_b32 v10, 1, v8"); e("v_lshlrev_b32 v10, 3, v10"); e("v_add_u32 v9, v9, v10")
        e("v_lshlrev_b32 v10, 3, v5"); e("v_add_u32 v10, v10, v7"); e("v_lshlrev_b32 v10, 7, v10"); e("v_add_u32 v9, v9, v10")
        e("v_xor_b32 v10, 64, v9"); e("v_add_u32 v13, 36864, v9"); e("v_add_u32 v14, 36864, v10")
        def addr(ks, T, q): return f"v{[[9, 10], [13, 14]][ks//18][T]} offset:{(ks%18)*2048 + q*512}"
    else:
        e("v_lshlrev_b32 v9, 3, v5"); e("v_add_u32 v9, v9, v7"); e("v_mul_u32_u24 v9, 192, v9")
        e("v_lshlrev_b32 v10, 5, v6"); e("v_add_u32 v9, v9, v10"); e("v_lshlrev_b32 v10, 3, v8"); e("v_add_u32 v9, v9, v10")
        e(f"v_add_u32 v10, {18*3072}, v9")
        def addr(ks, T, q): return f"v{[9, 10][ks//18]} offset:{(ks%18)*3072 + q*768 + 64*T}"
    ACC = 16; WB = 64; XB = 112
    def reads(ks):
        b = WB + 4 * NT * (ks % 4)
        return [f"ds_read_b64_tr_b16 {vr(b+4*T+2*q,2)}, {addr(ks, T, q)}" for T in range(NT) for q in range(2)]
    e("v_and_b32 v11, 31, v0"); e("s_movk_i32 s32, 1152"); e("v_mul_lo_u32 v12, v11, s32"); e("v_lshlrev_b32 v4, 4, v5"); e("v_add_u32 v12, v12, v4")
    e("s_mul_i32 s41, s9, 36864"); e("s_add_u32 s41, s41, s10")
    per = 3 * NP + 12
    nx = 2 * NT
    for st in range(3):
        younger = (2 - st) * per + nrp + (nx if st else 0)
        e(f"s_waitcnt vmcnt({min(63, younger)})")
        e("s_barrier")
        if st == 0: stamp(e, 2, 'pre')
        if st == 0:
            for u in range(nx):
                e(f"buffer_load_dwordx4 {vr(XB+4*u,4)}, v12, s[{S_XB}:{S_XB+3}], s41 offen offset:{u*32}")
        k0 = 12 * st
        for k in range(3): e.extend(reads(k0 + k))
        for ks in range(k0, k0 + 12):
            left = k0 + 11 - ks
            e(f"s_waitcnt lgkmcnt({min(15, 2 * NT * min(2, left))})")
            b = WB + 4 * NT * (ks % 4)
            rd = reads(ks + 3) if ks + 3 < k0 + 12 else []
            for T in range(NT):
                e(f"v_mfma_f32_32x32x16_bf16 {vr(ACC+16*T,16)}, {vr(b+4*T,4)}, {ar(4*ks,4)}, " + ("0" if ks == 0 else vr(ACC + 16 * T, 16)))
                e.extend(rd[2 * T:2 * T + 2])
    e("s_mov_b32 s42, 0x00003f80"); e("s_mov_b32 s43, 0x3f800000"); e("s_mov_b32 s44, 0x3f803f80")
    e("s_mul_i32 s45, s9, 36"); e("s_add_u32 s45, s45, s11"); e("s_lshl_b32 s45, s45, 10"); e(f"s_add_u32 s45, s45, {LY.X1F}")
    e("v_mov_b32 v2, 0"); e("v_mov_b32 v3, 0")
    e("s_waitcnt vmcnt(0)")
    e("s_nop 7")
    for u in range(nx):
        T, hq = divmod(u, 2); b = ACC + 16 * T + 8 * hq; x = XB + 4 * u; P = 64 + 4 * u
        for j in range(4):
            e(f"v_dot2c_f32_bf16 v{b+2*j}, s42, v{x+j}")
            e(f"v_dot2c_f32_bf16 v{b+2*j+1}, s43, v{x+j}")
        e("s_nop 2")
        for j in range(4): e(f"v_cvt_pk_bf16_f32 v{P+j}, v{b+2*j}, v{b+2*j+1}")
        e(f"buffer_store_dwordx4 {vr(P,4)}, v1, s[{S_WS}:{S_WS+3}], s45 offen offset:{(u%4)*1024} sc1")
        if u == 3 and nx > 4: e("s_add_u32 s45, s45, 4096")
        for j in range(4):
            e(f"v_dot2c_f32_bf16 v2, s44, v{P+j}")
            e(f"v_dot2c_f32_bf16 v3, v{P+j}, v{P+j}")
    e("v_lshlrev_b32 v4, 14, v5"); e("v_lshlrev_b32 v6, 2, v11"); e("v_add_u32 v4, v4, v6")
    e("s_lshl_b32 s46, s33, 14"); e("s_lshl_b32 s47, s9, 7"); e("s_add_u32 s46, s46, s47"); e(f"s_add_u32 s46, s46, {LY.ST2}")
    e("s_add_u32 s47, s46, 8192")
    e(f"buffer_store_dword v2, v4, s[{S_WS}:{S_WS+3}], s46 offen sc1")
    e(f"buffer_store_dword v3, v4, s[{S_WS}:{S_WS+3}], s47 offen sc1")

def repack_dma(e):
    for i in range(18):
        e(f"s_add_u32 m0, s54, {IMG2 + i*1024}")
        e(f"s_add_u32 s55, s56, s57") if i == 0 else e("s_add_u32 s55, s55, s58")
        e(f"buffer_load_dwordx4 v16, s[{S_RP}:{S_RP+3}], s55 offen lds")

def repack_setup(e):
    e(f"s_load_dwordx2 s[60:61], s[0:1], {KA_W3}")
    e(f"s_load_dwordx2 s[62:63], s[0:1], {KA_WO}")
    e("s_cmp_lt_u32 s53, 72")
    e("s_cselect_b32 s59, 1, 0")
    e("s_movk_i32 s58, 1152"); e("s_cselect_b32 s58, 9216, s58")
    e("s_sub_u32 s56, s53, 72"); e("s_mul_i32 s55, s56, 86"); e("s_lshr_b32 s55, s55, 8")
    e("s_mul_i32 s57, s55, 3"); e("s_sub_u32 s57, s56, s57")
    e("s_mul_i32 s56, s55, 288"); e("s_lshl_b32 s54, s57, 7"); e("s_add_u32 s56, s56, s54")
    e("s_lshl_b32 s54, s53, 7"); e("s_cmp_lt_u32 s53, 72"); e("s_cselect_b32 s56, s54, s56")
    e("s_waitcnt lgkmcnt(0)")
    e("s_cmp_lt_u32 s53, 72")
    e(f"s_cselect_b32 s{S_RP}, s60, s62"); e(f"s_cselect_b32 s{S_RP+1}, s61, s63")
    e(f"s_mov_b32 s{S_RP+2}, {576*576*2}"); e(f"s_cselect_b32 s{S_RP+2}, {576*4608*2}, s{S_RP+2}")
    e("s_cmp_lt_u32 s53, 84"); e(f"s_cselect_b32 s{S_RP+2}, s{S_RP+2}, 0")
    e(f"s_and_b32 s{S_RP+1}, s{S_RP+1}, 0xffff"); e(f"s_mov_b32 s{S_RP+3}, 0x20000")
    e("v_lshrrev_b32 v17, 3, v0"); e("v_and_b32 v18, 7, v0"); e("v_bfe_u32 v19, v0, 4, 1"); e("v_mul_u32_u24 v19, s59, v19"); e("v_lshlrev_b32 v19, 2, v19"); e("v_xor_b32 v18, v18, v19")
    e("v_mul_lo_u32 v17, v17, s58"); e("v_lshlrev_b32 v18, 4, v18"); e("v_add_u32 v16, v17, v18")
    e("s_mul_i32 s57, s8, 144"); e("s_mul_i32 s57, s57, s58")
    e("s_mul_i32 s54, s8, 18432")
    e("s_lshl_b32 s58, s58, 3")

def repack_w3(e):
    lane_tr_parts(e, 5, 6, 7, 8)
    e("s_and_b32 s40, s8, 1"); e("s_lshr_b32 s41, s8, 1")
    e("v_lshlrev_b32 v9, 1, v6"); e("v_lshrrev_b32 v10, 1, v8"); e("v_add_u32 v9, v9, v10")
    e("s_lshl_b32 s42, s40, 2"); e("v_add_u32 v9, s42, v9")
    e("v_lshrrev_b32 v10, 1, v7"); e("v_lshlrev_b32 v10, 2, v10"); e("v_xor_b32 v9, v9, v10")
    e("v_lshlrev_b32 v9, 4, v9"); e("v_and_b32 v10, 1, v8"); e("v_lshlrev_b32 v10, 3, v10"); e("v_add_u32 v9, v9, v10")
    e("v_lshlrev_b32 v10, 3, v5"); e("v_add_u32 v10, v10, v7"); e("v_lshlrev_b32 v10, 7, v10"); e("v_add_u32 v9, v9, v10")
    e("s_mul_i32 s42, s41, 36864"); e(f"s_add_u32 s42, s42, {IMG2}"); e("v_add_u32 v9, s42, v9")
    F = 16
    for k in range(18):
        for q in range(2):
            e(f"ds_read_b64_tr_b16 {vr(F+4*k+2*q,2)}, v9 offset:{k*2048+q*512}")
    e("s_mov_b32 s43, 0x3f803f80"); e("s_mov_b32 s44, 0x00003f80"); e("s_mov_b32 s45, 0x3f800000")
    for a in range(4): e(f"v_mov_b32 v{10+a}, 0")
    for k in range(18):
        if k % 3 == 0: e(f"s_waitcnt lgkmcnt({min(15, 36 - 2*(k+3))})")
        for j in range(4): e(f"v_dot2c_f32_bf16 v{10+j}, s43, v{F+4*k+j}")
    e("s_nop 2")
    e("v_add_f32 v10, v10, v11"); e("v_add_f32 v12, v12, v13"); e("v_add_f32 v10, v10, v12")
    e("v_mov_b32 v11, v10"); e("v_lshlrev_b32 v12, 2, v0"); e("s_lshl_b32 s42, s8, 8"); e("v_permlane32_swap_b32 v10, v11"); e("v_add_f32 v10, v10, v11")
    e(f"s_add_u32 s42, s42, {XCH}"); e("v_add_u32 v13, s42, v12")
    e("ds_write_b32 v13, v10")
    e("s_xor_b32 s42, s8, 2"); e("s_lshl_b32 s42, s42, 8"); e(f"s_add_u32 s42, s42, {XCH}"); e("v_add_u32 v13, s42, v12")
    e("s_waitcnt lgkmcnt(0)"); e("s_barrier")
    e("ds_read_b32 v11, v13"); e("s_waitcnt lgkmcnt(0)")
    e("v_add_f32 v10, v10, v11"); e(f"v_mul_f32 v10, {hexf(-1/576)}, v10")
    e("s_lshl_b32 s46, s53, 1"); e("s_add_u32 s46, s46, s40")
    e(f"s_mul_i32 s47, s46, 36864"); e(f"s_add_u32 s47, s47, {LY.W3P}")
    e("s_mul_i32 s42, s41, 18432"); e("s_add_u32 s47, s47, s42")
    TS = [88, 96]
    def fink(k):
        t = TS[k % 2]
        for j in range(4): e(f"v_cvt_pk_bf16_f32 v{F+4*k+j}, v{t+2*j}, v{t+2*j+1}")
        e(f"buffer_store_dwordx4 {vr(F+4*k,4)}, v1, s[{S_WS}:{S_WS+3}], s47 offen offset:{(k%4)*1024} sc1")
        if k % 4 == 3: e("s_add_u32 s47, s47, 4096")
    for k in range(18):
        t = TS[k % 2]
        for j in range(4):
            e(f"v_dot2_f32_bf16 v{t+2*j}, v{F+4*k+j}, s44, v10")
            e(f"v_dot2_f32_bf16 v{t+2*j+1}, v{F+4*k+j}, s45, v10")
        if k > 0: fink(k - 1)
    e("s_nop 2")
    fink(17)

def repack_wo(e, skip_label):
    e("s_sub_u32 s46, s53, 72"); e("s_mul_i32 s40, s46, 86"); e("s_lshr_b32 s40, s40, 8")
    e("s_mul_i32 s41, s40, 3"); e("s_sub_u32 s41, s46, s41")
    lane_tr_parts(e, 5, 6, 7, 8)
    e("s_and_b32 s42, s8, 1"); e("s_lshr_b32 s43, s8, 1")
    e("v_lshlrev_b32 v9, 5, v6"); e("v_lshlrev_b32 v10, 3, v8"); e("v_add_u32 v9, v9, v10"); e("s_lshl_b32 s44, s42, 6"); e(f"s_add_u32 s44, s44, {IMG2}"); e("v_add_u32 v9, s44, v9")
    e("v_lshlrev_b32 v10, 2, v5"); e("v_add_u32 v10, v10, v7"); e("v_lshlrev_b32 v10, 7, v10"); e("v_add_u32 v10, v10, v9")
    e(f"s_mul_i32 s44, s43, {324*128}"); e("v_add_u32 v10, s44, v10")
    e("v_lshrrev_b32 v11, 1, v7"); e("v_lshlrev_b32 v12, 2, v5"); e("v_add_u32 v12, v12, v11"); e("v_mul_u32_u24 v12, 18, v12")
    e("v_xor_b32 v11, 1, v11"); e("v_lshlrev_b32 v11, 4, v11"); e("v_add_u32 v12, v12, v11"); e("v_and_b32 v11, 1, v7"); e("v_add_u32 v12, v12, v11")
    e("v_lshlrev_b32 v12, 7, v12"); e("v_add_u32 v12, v12, v9")
    F = 16
    for k in range(14):
        for q in range(2):
            e(f"ds_read_b64_tr_b16 {vr(F+4*k+2*q,2)}, v10 offset:{(18*k + 8*q + 2*(k&1))*128}")
    e("s_cmp_eq_u32 s43, 0"); e("s_cbranch_scc0 K2_wo_x")
    for k in range(14, 18):
        for q in range(2):
            e(f"ds_read_b64_tr_b16 {vr(F+4*k+2*q,2)}, v10 offset:{(18*k + 8*q + 2*(k&1))*128}")
    e("s_branch K2_wo_y")
    e.label("K2_wo_x")
    for k in range(14, 18):
        for q in range(2):
            e(f"ds_read_b64_tr_b16 {vr(F+4*k+2*q,2)}, v12 offset:{18*(8*(k-14) + 2*q)*128}")
    e.label("K2_wo_y")
    e("s_lshl_b32 s44, s41, 1"); e("s_add_u32 s44, s44, s42")
    e("s_cmp_eq_u32 s44, 5"); e(f"s_cbranch_scc1 {skip_label}")
    e("s_mul_i32 s45, s40, 5"); e("s_add_u32 s45, s45, s44"); e("s_mul_i32 s45, s45, 36"); e("s_mul_i32 s46, s43, 18"); e("s_add_u32 s45, s45, s46")
    e("s_lshl_b32 s47, s45, 10"); e(f"s_add_u32 s47, s47, {LY.WOP}")
    e("s_waitcnt lgkmcnt(0)")
    for k in range(18):
        e(f"buffer_store_dwordx4 {vr(F+4*k,4)}, v1, s[{S_WS}:{S_WS+3}], s47 offen offset:{(k%4)*1024}")
        if k % 4 == 3: e("s_add_u32 s47, s47, 4096")

def gen_prephase(e):
    e(f"s_load_dwordx2 s[{S_DBG}:{S_DBG+1}], s[0:1], {KA_DBG}") if not Opt.cnt_ws else None
    if Opt.cnt_ws:
        e(f"s_add_u32 s{S_DBG}, s4, {LY.CNT}"); e(f"s_addc_u32 s{S_DBG+1}, s5, 0")
    e("s_cmp_lt_u32 s7, 16"); e("s_cbranch_scc0 K2_pre_att")
    e("s_mov_b32 s64, s7"); e("s_mov_b32 s65, s6")
    e.label("K2_pre_gemm")
    e("s_lshl_b32 s9, s64, 2"); e("s_add_u32 s9, s9, s8")
    e("s_lshl_b32 s33, s65, 1")
    e("s_lshl_b32 s10, s65, 7"); e("s_lshl_b32 s11, s65, 2")
    gemm(e, 2, False)
    stamp(e, 3, 'pre')
    e(f"s_mul_i32 s48, s64, {CSTEP}")
    publish(e, 48)
    e("s_branch K2_pre_end")
    e.label("K2_pre_att")
    e("s_sub_u32 s53, s7, 16"); e("s_lshl_b32 s53, s53, 3"); e("s_add_u32 s53, s53, s6")
    e("s_cmp_lt_u32 s53, 16"); e("s_cbranch_scc0 K2_pre_rp")
    e("s_mov_b32 s64, s53"); e("s_mov_b32 s65, 8")
    e("s_branch K2_pre_gemm")
    e.label("K2_pre_rp")
    e("s_cmp_lt_u32 s53, 100"); e("s_cbranch_scc0 K2_pre_end")
    e("s_sub_u32 s53, s53, 16")
    e("v_lshlrev_b32 v1, 4, v0")
    repack_setup(e)
    repack_dma(e)
    e("s_waitcnt vmcnt(0)"); e("s_barrier")
    stamp(e, 4, 'pre')
    e("s_cmp_lt_u32 s53, 72"); e("s_cbranch_scc1 K2_rw3")
    repack_wo(e, "K2_pre_lds")
    e("s_branch K2_pre_lds")
    e.label("K2_rw3")
    repack_w3(e)
    stamp(e, 5, 'pre')
    e("s_mul_i32 s48, s53, 57"); e("s_lshr_b32 s48, s48, 9"); e(f"s_mul_i32 s48, s48, {CSTEP}"); e(f"s_add_u32 s48, s48, {CNT_W}")
    publish(e, 48)
    e("s_branch K2_pre_end")
    e.label("K2_pre_lds")
    e("s_barrier")
    e.label("K2_pre_end")
    stamp(e, 6, 'pre')

def gen_mlp_wait(e):
    e(f"s_mul_i32 s48, s7, {CSTEP}"); e(f"s_mul_i32 s49, s6, {CSTEP}"); e(f"s_add_u32 s49, s49, {CNT_W}")
    wait_counters(e, [(48, 9), (49, 9)], acquire=Opt.acquire)
```

```python
from asmlib import *
import layouts as LY
import math

KA_XA, KA_WQKV, KA_WO, KA_XB, KA_W1, KA_W2, KA_W3, KA_W4, KA_GW, KA_OUT, KA_DBG, KA_WS = [8*i for i in range(12)]
WS_SIZE = 268435456

def kernel_head(e, name):
    e(f".globl {name}")
    e(".p2align 8")
    e(f".type {name},@function")
    e.label(name)

def kernel_desc(name, vgpr, accum, sgpr=102):
    return f""".amdhsa_kernel {name}
  .amdhsa_next_free_vgpr {vgpr}
  .amdhsa_next_free_sgpr {sgpr}
  .amdhsa_accum_offset {accum}
  .amdhsa_group_segment_fixed_size 0
  .amdhsa_kernarg_size 96
  .amdhsa_user_sgpr_count 2
  .amdhsa_user_sgpr_kernarg_segment_ptr 1
  .amdhsa_system_sgpr_workgroup_id_x 1
  .amdhsa_float_denorm_mode_32 3
.end_amdhsa_kernel
"""

def make_srd(e, dst, ptr, size):
    if dst != ptr: e(f"s_mov_b32 s{dst}, s{ptr}")
    e(f"s_and_b32 s{dst+1}, s{ptr+1}, 0xffff")
    e(f"s_mov_b32 s{dst+2}, {size}")
    e(f"s_mov_b32 s{dst+3}, 0x20000")

GELU_C0 = -2.0 * math.sqrt(2.0 / math.pi) * math.log2(math.e)
GELU_C1 = GELU_C0 * 0.044715

class Diag:
    on = False
    kid = 0
    pre = False
    dbg = False
STAMP_BASE = 0x8000000
def stamp(e, i, grp='main'):
    if Diag.on and (grp == 'any' or (grp == 'pre') == bool(Diag.pre)):
        e(f"s_memrealtime s[{70+2*i}:{71+2*i}]")
        if i == 2: e("s_memtime s[92:93]")
        if i == 5: e("s_memtime s[94:95]")
        e("s_waitcnt lgkmcnt(0)")
def dbg_start(e):
    if Diag.dbg:
        e("s_memrealtime s[96:97]")
        e(f"s_load_dwordx2 s[98:99], s[0:1], {KA_DBG}")
        e("s_waitcnt lgkmcnt(0)")
def fin(e, wave_sgpr=8):
    if Diag.dbg:
        e("s_waitcnt vmcnt(0)")
        e("s_memrealtime s[100:101]")
        e("s_waitcnt lgkmcnt(0)")
        e(f"s_cmp_eq_u32 s{wave_sgpr}, 0"); e(f"s_cbranch_scc0 Ldbg_skip_{len(e.L)}")
        Diag.lab = f"Ldbg_skip_{len(e.L)-1}"
        e("s_mov_b64 exec, 1")
        fusedl = Opt.fuse_l2
        lidx = Diag.kid - (1 if (fusedl and Diag.kid >= 2) else 0) - (1 if (Opt.fuse_l4 and Diag.kid >= 3) else 0)
        last = 512 * (3 - (1 if fusedl else 0) - (1 if Opt.fuse_l4 else 0))
        e(f"s_sub_u32 s98, s98, {512 * lidx}"); e("s_subb_u32 s99, s99, 0")
        e("s_not_b32 s96, s96")
        e("v_mov_b32 v2, s96"); e("v_mov_b32 v3, s100"); e("v_mov_b32 v4, 0")
        e(f"global_atomic_umax v4, v2, s[98:99] offset:{16 * Diag.kid}")
        e(f"global_atomic_umax v4, v3, s[98:99] offset:{16 * Diag.kid + 4}")
        e(f"global_atomic_umax v4, v2, s[98:99] offset:{last + 16 * Diag.kid}")
        e(f"global_atomic_umax v4, v3, s[98:99] offset:{last + 16 * Diag.kid + 4}")
        e.label(Diag.lab)
    if Diag.on:
        stamp(e, 7, 'any')
        e("s_waitcnt vmcnt(0)")
        e("s_memrealtime s[86:87]")
        e("s_waitcnt lgkmcnt(0)")
        e("s_mov_b64 exec, -1")
        e(f"s_lshl_b32 s88, s2, 3"); e(f"s_add_u32 s88, s88, s{wave_sgpr}"); e("s_lshl_b32 s88, s88, 6")
        e(f"s_add_u32 s88, s88, {STAMP_BASE + Diag.kid * 0x20000}")
        for i in range(8): e(f"v_mov_b32 v{4+i}, s{70+2*i}")
        e("v_mov_b32 v12, s86")
        e("s_sub_u32 s94, s94, s92")
        e("v_mov_b32 v14, s94")
        e("v_mov_b32 v13, s88")
        e("global_store_dwordx4 v13, v[4:7], s[4:5] offset:0")
        e("global_store_dwordx4 v13, v[8:11], s[4:5] offset:16")
        e("global_store_dword v13, v12, s[4:5] offset:32")
        e("global_store_dword v13, v14, s[4:5] offset:36")
    e("s_endpgm")

class Opt:
    code_pf = False
    l1_8wave = True
    l1_touch = False
    late_touch = False
    late_sel = 'all'
    touch_in_loop = True
    touch_stages = (2, 5)
    rotate = False
    rotate2 = True
    repack_l1 = False
    fuse_l2 = True
    fuse_l4 = True
    final_sleep = 4
    cnt_ws = True
    acquire = True
    poll_sleep = 0
    gelu_split = 2
    l2_only = None
    touch64 = False
def code_prefetch(e, start_label, end_label, nblk, vaddr, vtmp, vdst, sp):
    if not Opt.code_pf: return
    lab = f"{start_label}_pc{len(e.L)}"
    e(f"s_getpc_b64 s[{sp}:{sp+1}]")
    e.label(lab)
    e(f"s_sub_u32 s{sp}, s{sp}, {lab}-{start_label}")
    e(f"s_subb_u32 s{sp+1}, s{sp+1}, 0")
    e(f"v_lshlrev_b32 v{vaddr}, 7, v0")
    for i in range(nblk):
        e(f"v_min_u32 v{vtmp}, {end_label}-{start_label}-4, v{vaddr}")
        e(f"global_load_dword v{vdst}, v{vtmp}, s[{sp}:{sp+1}]")
        if i + 1 < nblk: e(f"v_add_u32 v{vaddr}, 0x2000, v{vaddr}")

STORE_MOD = "sc1"
```

```python
from gen_common import *
import os
import gen_pre, gen_l4

NAME = "l3_kernel"
LDS_BYTES = 4 * 36864

V_PA, V_PB = 0, 1
V_DMA    = 2
V_A, V_B, V_S = 3, 4, 5
TA = [6, 7, 8, 9]
V_P1, V_PC = 10, 11
V_RA, V_RB = 12, 13
V_E, V_O = 14, 15
V_W = 16
NB = 6
V_HP = 40
V_H = [48, 64]
SLOT = {"C": 0, "D": 36864, "A": 73728, "B": 110592}
def OUT(dt):
    return (True, 80 + 16 * dt) if dt < 11 else (False, 144 + 16 * (dt - 11))
def outreg(dt):
    isv_, b = OUT(dt)
    return vr(b, 16) if isv_ else ar(b, 16)
S_SRD = 12
S_W4 = 24
S_W, S_J = 8, 7
S_M0B = 18
S_D3 = [19, 20, 21]
S_D4 = [28, 29, 31]
S_CNT = 22

def gelu_group(H, elems, temps):
    o = []
    for e_, t in zip(elems, temps): o.append(f"v_mul_f32 v{t}, v{H+e_}, v{H+e_}")
    for e_, t in zip(elems, temps): o.append(f"v_fma_f32 v{t}, v{t}, v{V_A}, v{V_B}")
    for e_, t in zip(elems, temps): o.append(f"v_mul_f32 v{t}, v{H+e_}, v{t}")
    for e_, t in zip(elems, temps): o.append(f"v_exp_f32 v{t}, v{t}")
    for e_, t in zip(elems, temps): o.append(f"v_fma_f32 v{t}, v{t}, v{V_S}, v{V_S}")
    for e_, t in zip(elems, temps): o.append(f"v_rcp_f32 v{t}, v{t}")
    for e_, t in zip(elems, temps): o.append(f"v_mul_f32 v{H+e_}, v{H+e_}, v{t}")
    return o
def gelu_groups(H, gs):
    o = []
    for g in gs: o += gelu_group(H, range(4 * g, 4 * g + 4), TA)
    return o
def cvts(H, js):
    return [f"v_cvt_pk_bf16_f32 v{V_HP+j}, v{H+2*j}, v{H+2*j+1}" for j in js]

def s1_mfmas(c):
    H = V_H[c & 1]
    return [f"v_mfma_f32_32x32x16_bf16 {vr(H,16)}, {vr(V_W+4*(j%NB),4)}, {ar(4*j,4)}, " + ("0" if j == 0 else vr(H, 16)) for j in range(36)]
def s2_mfmas():
    o = []
    for m in range(36):
        q, dt = divmod(m, 18)
        o.append(f"v_mfma_f32_32x32x16_bf16 {outreg(dt)}, {vr(V_W+4*(m%NB),4)}, {vr(V_HP+4*q,4)}, {outreg(dt)}")
    return o

def rd(ph, m):
    kind, slot = ph[0], ph[1]
    b = V_W + 4 * (m % NB)
    if kind == "S1":
        reg = ph[2] if len(ph) > 2 else {"A": V_RA, "B": V_RB}[slot]
        return [f"ds_read_b128 {vr(b,4)}, v{reg} offset:{m*1024}"]
    q, dt = divmod(m, 18)
    reg = V_O if dt & 1 else V_E
    off = SLOT[slot] + q * 18432 + (dt >> 1) * 128
    return [f"ds_read_b64_tr_b16 {vr(b,2)}, v{reg} offset:{off}", f"ds_read_b64_tr_b16 {vr(b+2,2)}, v{reg} offset:{off + 4608}"]

W4PAT = [V_DMA, V_DMA, V_PA, V_P1, V_PB, V_DMA, V_PC, V_P1, V_P1]
def dma_instrs(kind, slot):
    g = []
    for i in range(9):
        grp, k = divmod(i, 4)
        pre = []
        if k == 0: pre.append(f"s_add_u32 m0, s{S_M0B}, {SLOT[slot] + grp*4096}")
        if kind == "S1":
            sc = " sc1" if (Opt.fuse_l2 and not Opt.acquire) else ""
            g.append((pre, f"buffer_load_dwordx4 v{V_DMA}, s[{S_SRD}:{S_SRD+3}], s{S_D3[grp]} offen offset:{k*1024}{sc} lds"))
        else:
            g.append((pre, f"buffer_load_dwordx4 v{W4PAT[i]}, s[{S_W4}:{S_W4+3}], s{S_D4[grp]} offen offset:{k*1024} lds"))
    return g
def dma_advance(kind):
    return [f"s_add_u32 s{r}, s{r}, 36864" for r in (S_D3 if kind == "S1" else S_D4)]

def phase(e, mf, ph, nxt, dma, fill, fill_range, last_vm=9, tail=None, xwait=False, early_dma=False, pre_next=None):
    gaps = {}
    issued = []
    for m in range(NB): issued.append((m, len(rd(ph, m))))
    waits = {}
    for j in range(36):
        L = gaps.setdefault(j, [])
        m = j + NB
        if m < 36:
            r = rd(ph, m); L += r; issued.append((m, len(r)))
        elif nxt is not None:
            if m == 36:
                if pre_next: L += pre_next
                L.append(f"s_waitcnt vmcnt({last_vm})")
                L.append("s_barrier")
            r = rd(nxt, m - 36); L += r; issued.append((m, len(r)))
        if (j + 1) % 2 == 0 and (j + 1 < 36 or nxt is not None):
            allowed = sum(n for (mm, n) in issued if mm > j + 2)
            waits[j] = f"s_waitcnt lgkmcnt({min(allowed, 15)})"
    pos = [1, 4, 7, 10, 13, 16, 19, 22, 25] if not early_dma else [0, 1, 2, 3, 4, 5, 6, 7, 8]
    if dma is not None:
        d = dma_instrs(*dma)
        for (pre, ld), p in zip(d, pos):
            if pre:
                if p > 0 and not early_dma: gaps[p - 1] += pre
                else: gaps[p] += pre + ["s_nop 0"]
            gaps[p].append(ld)
        gaps[27] += dma_advance(dma[0])
    if xwait:
        for j in range(4, 36, 4):
            ndma = sum(1 for p in pos if p <= j - 1)
            allowed = (35 - (j + 3)) + 9 + ndma
            gaps[j - 1].append(f"s_waitcnt vmcnt({allowed})")
    if fill:
        spread(gaps, fill, fill_range[0], fill_range[1])
    for j, w in waits.items(): gaps[j].append(w)
    e.extend(weave(mf, gaps))
    if tail: e.extend(tail)

def gen_mlp(e):
    R = f"s[{S_SRD}:{S_SRD+3}]"
    fused = Opt.fuse_l2
    SC = " sc1" if fused else ""
    e.label("L3_mlp")
    if fused: gen_pre.gen_mlp_wait(e)
    e(f"s_load_dwordx2 s[32:33], s[0:1], {KA_W4}")
    e(f"s_lshl_b32 s9, s7, 2")
    e(f"s_add_u32 s9, s9, s{S_W}")
    e(f"s_mul_i32 s{S_M0B}, s{S_W}, 9216")
    e(f"s_mul_i32 s10, s6, {18*36864}")
    e(f"s_add_u32 s{S_D3[0]}, s10, {LY.W3P}")
    e(f"s_add_u32 s{S_D3[1]}, s{S_D3[0]}, 4096"); e(f"s_add_u32 s{S_D3[2]}, s{S_D3[0]}, 8192")
    e(f"s_mov_b32 s{S_D4[0]}, s10"); e(f"s_add_u32 s{S_D4[1]}, s10, 4096"); e(f"s_add_u32 s{S_D4[2]}, s10, 8192")
    LN = TA[1]
    e(f"v_lshlrev_b32 v{LN}, 4, v0")
    e(f"v_add_u32 v{V_DMA}, s{S_M0B}, v{LN}")
    e(f"v_add_u32 v{V_RA}, {SLOT['A']}, v{LN}"); e(f"v_add_u32 v{V_RB}, {SLOT['B']}, v{LN}")
    e(f"v_add_u32 v{TA[0]}, {SLOT['D']}, v{LN}")
    e("v_and_b32 v8, 31, v0"); e("v_lshlrev_b32 v8, 2, v8"); e("v_lshrrev_b32 v9, 5, v0"); e("v_lshlrev_b32 v9, 13, v9"); e("v_add_u32 v8, v8, v9")
    def partA2():
        e("v_lshrrev_b32 v9, 3, v0")
        e(f"v_xor_b32 v{V_P1}, 64, v{V_DMA}")
        e("v_cmp_lt_u32 vcc, 5, v9"); e("s_nop 1"); e(f"v_cndmask_b32 v{V_PC}, v{V_DMA}, v{V_P1}, vcc")
        e("v_cmp_gt_u32 vcc, 4, v9"); e("s_nop 1"); e(f"v_cndmask_b32 v{V_PB}, v{V_DMA}, v{V_P1}, vcc")
        e("v_lshrrev_b32 v16, 5, v0"); e("v_bfe_u32 v17, v0, 4, 1"); e("v_bfe_u32 v18, v0, 2, 2")
        e("v_and_b32 v19, 1, v0"); e("v_bfe_u32 v21, v0, 1, 1")
        e("v_lshlrev_b32 v17, 1, v17"); e("v_add_u32 v17, v17, v19")
        e("v_lshrrev_b32 v19, 1, v18"); e("v_lshlrev_b32 v19, 2, v19"); e("v_xor_b32 v17, v17, v19")
        e("v_lshlrev_b32 v16, 3, v16"); e("v_add_u32 v16, v16, v18"); e("v_mul_u32_u24 v16, 1152, v16")
        e("v_lshlrev_b32 v21, 3, v21"); e("v_add_u32 v16, v16, v21")
        e(f"v_lshlrev_b32 v17, 4, v17"); e(f"v_add_u32 v{V_E}, v16, v17"); e(f"v_xor_b32 v17, 64, v17"); e(f"v_add_u32 v{V_O}, v16, v17")
        e("v_cmp_lt_u32 vcc, 1, v9"); e("s_waitcnt lgkmcnt(0)"); e("s_nop 0"); e(f"v_cndmask_b32 v{V_PA}, v{V_DMA}, v{V_P1}, vcc")
        make_srd(e, S_W4, 32, 576 * 4608 * 2)
        for i in range(4): e(f"v_mov_b32 v{V_W+i}, 0")
        e("s_nop 1")
        for dt in range(18):
            e(f"v_mfma_f32_32x32x16_bf16 {outreg(dt)}, {vr(V_W,4)}, {vr(V_W,4)}, 0")
    if fused:
        partA2()
        e("s_waitcnt vmcnt(0)")
        e("s_barrier")
    for pre, ld in dma_instrs("S1", "D"):
        for p in pre: e(p)
        if pre: e("s_nop 0")
        e(ld)
    for a in dma_advance("S1"): e(a)
    e("s_lshl_b32 s17, s9, 7")
    e(f"s_add_u32 s17, s17, {LY.ST2}")
    NST = LY.NSTAT
    assert NST <= 20
    sreg = ([64 + p for p in range(16)] + [40 + p for p in range(4)])[:NST]
    for p in range(NST):
        e(f"buffer_load_dword v{sreg[p]}, v8, {R}, s17 offen{SC}")
        if p != NST - 1: e("s_add_u32 s17, s17, 16384")
    e(f"s_mul_i32 s16, s9, 36864")
    e(f"s_add_u32 s16, s16, {LY.X1F}")
    for j in range(36):
        e(f"buffer_load_dwordx4 {ar(4*j,4)}, v{LN}, {R}, s16 offen offset:{(j%4)*1024}{SC}")
        if j % 4 == 3 and j != 35: e("s_add_u32 s16, s16, 4096")
    for pre, ld in dma_instrs("S1", "B"):
        for p in pre: e(p)
        if pre: e("s_nop 0")
        e(ld)
    for a in dma_advance("S1"): e(a)
    stamp(e, 1)
    if not fused: partA2()
    st = []
    for p in sreg[1:]: st.append(f"v_add_f32 v64, v64, v{p}")
    st += ["v_mov_b32 v65, v64", "s_nop 1", "v_permlane32_swap_b32 v64, v65",
           f"v_mul_f32 v64, {hexf(1/576)}, v64", f"v_mul_f32 v65, {hexf(1/576)}, v65", "v_fma_f32 v65, -v64, v64, v65",
           "v_max_f32 v65, 0, v65", f"v_add_f32 v65, {hexf(1e-5)}, v65", f"v_sqrt_f32 v{V_S}, v65", "s_nop 0", f"v_rcp_f32 v66, v{V_S}", "s_nop 0",
           f"v_mul_f32 v{V_B}, {hexf(GELU_C0)}, v66", "v_mul_f32 v67, v66, v66", "v_mul_f32 v67, v67, v66", f"v_mul_f32 v{V_A}, {hexf(GELU_C1)}, v67"]
    e("s_waitcnt vmcnt(45)")
    e("s_barrier")
    stamp(e, 2)
    P0 = ("S1", "D", TA[0])
    for m in range(NB): e.extend(rd(P0, m))
    e("s_waitcnt vmcnt(41)")
    e(f"s_waitcnt lgkmcnt({NB-2})")
    phase(e, s1_mfmas(0), P0, ("S1", "B"), ("S2", "C"), st, (0, 30), xwait=True)
    phase(e, s1_mfmas(1), ("S1", "B"), ("S2", "C"), ("S1", "A"), gelu_groups(V_H[0], range(4)) + cvts(V_H[0], range(8)), (3, 35))
    stamp(e, 3)
    e(f"s_mov_b32 s{S_CNT}, 8")
    e(".p2align 6")
    e.label("L3_mlp_loop")
    GA = Opt.gelu_split
    for half in range(2):
        Hn = V_H[(half + 1) & 1]
        s2, s2n = ("C", "D") if half == 0 else ("D", "C")
        s1, s1n = ("A", "B") if half == 0 else ("B", "A")
        phase(e, s2_mfmas(), ("S2", s2), ("S1", s1), ("S2", s2n), gelu_groups(Hn, range(GA)), (3, 36))
        gb = cvts(Hn, range(2 * GA))
        for g in range(GA, 4): gb += gelu_groups(Hn, [g]) + cvts(Hn, range(2 * g, 2 * g + 2))
        phase(e, s1_mfmas(half), ("S1", s1), ("S2", s2n), ("S1", s1n), gb, (0, 35))
    e(f"s_sub_u32 s{S_CNT}, s{S_CNT}, 1")
    e(f"s_cmp_lg_u32 s{S_CNT}, 0")
    e("s_cbranch_scc1 L3_mlp_loop")
    stamp(e, 4)
    H = V_H[1]
    phase(e, s2_mfmas(), ("S2", "C"), ("S2", "D"), ("S2", "D"), gelu_groups(H, range(4)), (9, 36), last_vm=0, tail=cvts(H, range(8)) + ["s_nop 1"], early_dma=True)
    phase(e, s2_mfmas(), ("S2", "D"), None, None, None, None)
    stamp(e, 5)
    e(f"s_lshl_b32 s10, s6, 6")
    e(f"s_add_u32 s10, s10, s9")
    e(f"s_mul_i32 s10, s10, 36864")
    e(f"s_add_u32 s10, s10, {LY.PART}")
    e(f"v_subrev_u32 v{TA[0]}, s{S_M0B}, v{V_DMA}")
    e("s_nop 9")
    tb = [48, 56, 64, 72]
    for dt in range(18):
        isv_, b = OUT(dt)
        t = tb[dt % 4]
        if isv_:
            for j in range(8): e(f"v_cvt_pk_bf16_f32 v{t+j}, v{b+2*j}, v{b+2*j+1}")
        else:
            for j in range(16): e(f"v_accvgpr_read_b32 v{16+j}, a{b+j}")
            for j in range(8): e(f"v_cvt_pk_bf16_f32 v{t+j}, v{16+2*j}, v{16+2*j+1}")
        ks = 2 * dt
        e(f"buffer_store_dwordx4 {vr(t,4)}, v{TA[0]}, {R}, s10 offen offset:{(ks%4)*1024}")
        e(f"buffer_store_dwordx4 {vr(t+4,4)}, v{TA[0]}, {R}, s10 offen offset:{(ks%4+1)*1024}")
        if dt % 2 == 1 and dt != 17: e("s_add_u32 s10, s10, 4096")
    if Opt.fuse_l4:
        e(f"s_mul_i32 s48, s7, {gen_pre.CSTEP}"); e(f"s_add_u32 s48, s48, {gen_pre.CNT_P}")
        gen_pre.publish(e, 48)
        e("s_branch K2_final")
    else:
        fin(e)

A_K0OFF, A_KXOFF, A_VOFF = 1, 2, 3
A_M = 8
A_O = 32
A_S = [160, 192]
A_P = [224, 240]
NSET = 2
AG_SET = 0
def SET(i): return AG_SET + 28 * (i % NSET)
AG_Q0 = 56
AG_QX = 88
SA_K, SA_KX, SA_V = 16, 17, 18
SA_CNT = 22
NQ = 8

def attn_loads(st):
    b = SET(st); R = f"s[{S_SRD}:{S_SRD+3}]"
    o = [f"buffer_load_dwordx4 {ar(b,4)}, v{A_K0OFF}, {R}, s{SA_K} offen",
         f"buffer_load_dwordx4 {ar(b+4,4)}, v{A_K0OFF}, {R}, s{SA_K} offen offset:1024",
         f"buffer_load_dword a{b+24}, v{A_KXOFF}, {R}, s{SA_KX} offen"]
    for i in range(4):
        o.append(f"buffer_load_dwordx4 {ar(b+8+4*i,4)}, v{A_VOFF}, {R}, s{SA_V} offen" + (f" offset:{608*i}" if i else ""))
    o += [f"s_add_u32 s{SA_K}, s{SA_K}, 2048", f"s_add_u32 s{SA_KX}, s{SA_KX}, 256", f"s_add_u32 s{SA_V}, s{SA_V}, 2432"]
    return o
def qk(kp, qi, S):
    b = SET(kp)
    return [f"v_mfma_f32_32x32x4_2b_bf16 {vr(S,32)}, {ar(b+24,2)}, {ar(AG_QX+2*qi,2)}, 0",
            f"v_mfma_f32_32x32x16_bf16 {vr(S,16)}, {ar(b,4)}, {ar(AG_Q0+4*qi,4)}, {vr(S,16)}",
            f"v_mfma_f32_32x32x16_bf16 {vr(S+16,16)}, {ar(b+4,4)}, {ar(AG_Q0+4*qi,4)}, {vr(S+16,16)}"]
def pv(kp, qi, P):
    b = SET(kp); O = A_O + 16 * qi
    return [f"v_mfma_f32_32x32x16_bf16 {vr(O,16)}, {ar(b+8+4*i,4)}, {vr(P+4*i,4)}, {vr(O,16)}" for i in range(4)]
def expcvt(n):
    S = A_S[n & 1]; P = A_P[n & 1]
    ex = [f"v_exp_f32 v{S+i}, v{S+i}" for i in range(32)]
    cv = [f"v_cvt_pk_bf16_f32 v{P+j}, v{S+2*j}, v{S+2*j+1}" for j in range(16)]
    o = ex[0:4]
    for j in range(14): o += [cv[j], ex[2*j+4], ex[2*j+5]]
    o += [cv[14], cv[15]]
    return o

def gen_attn(e, force_slow=False):
    R = f"s[{S_SRD}:{S_SRD+3}]"
    e.label("L3_attn")
    e("s_sub_u32 s7, s7, 16")
    e("s_lshr_b32 s9, s7, 2")
    e("s_lshl_b32 s10, s6, 2")
    e("s_add_u32 s9, s9, s10")
    e("s_and_b32 s10, s7, 3")
    e("s_lshl_b32 s10, s10, 4")
    e(f"s_and_b32 s31, s{S_W}, 1"); e("s_lshl_b32 s31, s31, 3"); e("s_add_u32 s10, s10, s31")
    e(f"s_lshr_b32 s31, s{S_W}, 1")
    e(f"v_lshlrev_b32 v{A_K0OFF}, 4, v0")
    e(f"v_lshlrev_b32 v{A_KXOFF}, 2, v0")
    e("v_and_b32 v4, 31, v0")
    e("v_lshlrev_b32 v5, 4, v4")
    e("v_lshrrev_b32 v6, 5, v0")
    e("v_mul_u32_u24 v7, 304, v6")
    e("v_add_u32 v5, v5, v7")
    e("v_cmp_lt_u32 vcc, 18, v4")
    e("v_mov_b32 v7, 0x40000000")
    e("v_lshlrev_b32 v12, 2, v4")
    e(f"v_cndmask_b32 v{A_VOFF}, v5, v7, vcc")
    e("s_lshl_b32 s11, s9, 16")
    e("s_lshl_b32 s24, s9, 13")
    e(f"s_add_u32 s26, s11, {LY.KF0}")
    e(f"s_add_u32 s27, s24, {LY.KX}")
    e(f"s_mul_i32 s28, s9, {LY.VHEAD}")
    e(f"s_add_u32 s28, s28, {LY.VF}")
    e("s_lshl_b32 s23, s31, 15"); e(f"s_add_u32 s{SA_K}, s26, s23")
    e("s_lshl_b32 s23, s31, 12"); e(f"s_add_u32 s{SA_KX}, s27, s23")
    e(f"s_mul_i32 s23, s31, {16*2432}"); e(f"s_add_u32 s{SA_V}, s28, s23")
    for x in attn_loads(0): e(x)
    e("s_lshl_b32 s23, s31, 2"); e("s_add_u32 s34, s10, s23")
    e("s_xor_b32 s23, s23, 4"); e("s_add_u32 s35, s10, s23")
    for g, sg in enumerate((34, 35)):
        e(f"s_lshl_b32 s23, s{sg}, 10"); e("s_add_u32 s23, s23, s11"); e(f"s_add_u32 s23, s23, {LY.QF0}")
        for qi in range(4):
            e(f"buffer_load_dwordx4 {ar(AG_Q0+4*(4*g+qi),4)}, v{A_K0OFF}, {R}, s23 offen offset:{qi*1024}")
        e(f"s_lshl_b32 s23, s{sg}, 7"); e("s_add_u32 s23, s23, s24"); e(f"s_add_u32 s23, s23, {LY.QX}")
        for qi in range(4):
            e(f"buffer_load_dword a{AG_QX+2*(4*g+qi)}, v12, {R}, s23 offen offset:{qi*128}")
    for i in range(16): e(f"v_mov_b32 v{A_P[1]+i}, 0")
    for i in range(16): e(f"v_accvgpr_write_b32 a{SET(1)+8+i}, 0")
    for s_ in range(NSET): e(f"v_accvgpr_write_b32 a{SET(s_)+25}, 0")
    for qi in range(NQ): e(f"v_accvgpr_write_b32 a{AG_QX+2*qi+1}, 0")
    for qi in range(NQ): e(f"v_mfma_f32_32x32x16_bf16 {vr(A_O+16*qi,16)}, {vr(A_P[1],4)}, {vr(A_P[1],4)}, 0")
    stamp(e, 1)
    e("s_waitcnt vmcnt(0)")
    stamp(e, 2)
    q0 = qk(0, 0, A_S[0])
    e(q0[0]); e("s_nop 15"); e("s_nop 1"); e(q0[1]); e(q0[2])
    e("s_nop 10")
    e(f"s_mov_b32 s{SA_CNT}, 8")
    e(".p2align 6")
    e.label("L3_attn_loop")
    NB_ = 2 * NQ
    for n in range(NB_):
        kp, qi = divmod(n, NQ)
        n1 = (n + 1) % NB_; n0 = (n - 1) % NB_
        X, Ma, Mb = qk(n1 // NQ, n1 % NQ, A_S[n1 & 1]); p = pv(n0 // NQ, n0 % NQ, A_P[n0 & 1])
        va = expcvt(n)
        seq = []
        ld = attn_loads(kp + 1)
        if qi == NQ - 1: seq.append("s_waitcnt vmcnt(4)")
        cuts = eval(os.environ.get('ATT_CUTS', '[0, 8, 15, 22, 29, 35, 42, 48]')) if qi < 7 else [0, 9, 16, 23, 30, 36, 42, 48]
        mf = [X, p[0], p[1], Ma, Mb, p[2], p[3]]
        for k in range(7):
            if k == 1 and qi == 1: seq.append("s_waitcnt vmcnt(2)")
            seq.append(mf[k])
            if k == 0 and qi < 7 and not os.environ.get('ATT_NOLOAD'): seq.append(ld[qi])
            if k == 0 and qi == 7: seq += ld[7:9]
            if k == 3 and qi == 7: seq += ld[9:10]
            seq += va[cuts[k]:cuts[k + 1]]
        e.extend(seq)
    e(f"s_sub_u32 s{SA_CNT}, s{SA_CNT}, 1")
    e(f"s_cmp_lg_u32 s{SA_CNT}, 0")
    e("s_cbranch_scc1 L3_attn_loop")
    e("s_nop 1")
    for m in pv(1, NQ - 1, A_P[1]): e(m)
    e("s_nop 15")
    stamp(e, 5)
    e(f"s_mul_i32 s23, s{S_W}, 12288"); e(f"v_add_u32 v4, s23, v{A_K0OFF}")
    for i in range(4):
        for q in range(3):
            e(f"ds_write_b128 v4, {vr(A_O+16*(4+i)+4*q,4)} offset:{(3*i+q)*1024}")
    e(f"s_xor_b32 s23, s{S_W}, 2"); e("s_mul_i32 s23, s23, 12288"); e(f"v_add_u32 v4, s23, v{A_K0OFF}")
    e("s_waitcnt lgkmcnt(0)"); e("s_barrier")
    for i in range(4):
        for q in range(3):
            e(f"ds_read_b128 {vr(A_S[0]+12*i+4*q,4)}, v4 offset:{(3*i+q)*1024}")
    e("s_waitcnt lgkmcnt(0)")
    for i in range(4):
        for r in range(11): e(f"v_add_f32 v{A_O+16*i+r}, v{A_O+16*i+r}, v{A_S[0]+12*i+r}")
    e.label("L3_attn_fin")
    e("s_mul_i32 s23, s34, 36864")
    e(f"s_add_u32 s23, s23, {LY.OF}")
    e("s_lshl_b32 s24, s9, 10")
    e("s_add_u32 s24, s24, s23")
    e("s_lshr_b32 s25, s9, 3")
    e("s_add_u32 s25, s25, 32")
    e("s_lshl_b32 s25, s25, 10")
    e("s_add_u32 s25, s25, s23")
    e("s_lshr_b32 s29, s9, 2"); e("s_and_b32 s29, s29, 1"); e("s_lshl_b32 s29, s29, 9")
    e("s_add_u32 s25, s25, s29")
    e("s_and_b32 s29, s9, 3"); e("s_lshl_b32 s29, s29, 2")
    e("s_add_u32 s25, s25, s29")
    e("s_mov_b64 s[32:33], %d" % (0 if force_slow else -1))
    for qi in range(4):
        O = A_O + 16 * qi
        e(f"v_mov_b32 v4, v{O+10}")
        e(f"v_mov_b32 v5, v{O+10}")
        e("s_nop 1")
        e("v_permlane32_swap_b32 v4, v5")
        e(f"v_cmp_le_f32 vcc, {hexf(2.0**-60)}, v4")
        e("s_and_b64 s[32:33], s[32:33], vcc")
        e(f"v_cmp_ge_f32 vcc, {hexf(2.0**100)}, v4")
        e("s_and_b64 s[32:33], s[32:33], vcc")
        e("v_rcp_f32 v5, v4")
        e("v_mov_b32 v6, 0")
        for r in range(10): e(f"v_mul_f32 v{O+r}, v{O+r}, v5")
        for r in range(10): e(f"v_fmac_f32 v6, 0, v{O+r}")
        e("v_cmp_o_f32 vcc, v6, v6")
        e("s_and_b64 s[32:33], s[32:33], vcc")
    e("s_cmp_eq_u32 s30, 0")
    e("s_cbranch_scc0 L3_attn_store")
    e("s_cmp_eq_u64 s[32:33], exec")
    e("s_cbranch_scc0 L3_attn_slow")
    e.label("L3_attn_store")
    e("v_and_b32 v4, 31, v0")
    e("v_lshlrev_b32 v4, 4, v4")
    for qi in range(4):
        O = A_O + 16 * qi
        t = A_P[0] + 8 * (qi % 4)
        for j in range(5): e(f"v_cvt_pk_bf16_f32 v{t+j}, v{O+2*j}, v{O+2*j+1}")
        e(f"buffer_store_dwordx4 {vr(t,4)}, v{A_K0OFF}, {R}, s24 offen")
        e("s_mov_b64 exec, 0xffffffff")
        e(f"buffer_store_dword v{t+4}, v4, {R}, s25 offen")
        e("s_mov_b64 exec, -1")
        if qi != 3:
            e("s_add_u32 s24, s24, 36864")
            e("s_add_u32 s25, s25, 36864")
    if Opt.fuse_l4:
        e(f"s_add_u32 s{gen_pre.S_DBG}, s4, {LY.CNT}"); e(f"s_addc_u32 s{gen_pre.S_DBG+1}, s5, 0")
        e("s_lshr_b32 s48, s2, 3"); e("s_and_b32 s48, s48, 3"); e(f"s_mul_i32 s48, s48, {gen_pre.CSTEP}"); e(f"s_add_u32 s48, s48, {gen_pre.CNT_O}")
        gen_pre.publish(e, 48)
        e("s_branch K2_final")
    else:
        fin(e)
    e.label("L3_attn_slow")
    M = A_M
    e("s_mov_b32 s30, 1")
    e("s_mov_b32 s16, s26"); e("s_mov_b32 s17, s27"); e("s_mov_b32 s18, s28")
    for i in range(64): e(f"v_mov_b32 v{A_O+i}, 0")
    for qi in range(4): e(f"v_mov_b32 v{M+qi}, 0xff800000")
    e(f"s_mov_b32 s{SA_CNT}, 32")
    e.label("L3_attn_slow_loop")
    e("s_waitcnt vmcnt(0)")
    for x in attn_loads(0): e(x)
    e("s_waitcnt vmcnt(0)")
    for qi in range(4):
        S = A_S[0]; P = A_P[0]; O = A_O + 16 * qi
        X, Ma, Mb = qk(0, qi, S)
        e(X); e("s_nop 15"); e("s_nop 1"); e(Ma); e(Mb)
        e("s_nop 11")
        e(f"v_max3_f32 v4, v{S}, v{S+1}, v{S+2}")
        for i in range(3, 31, 2): e(f"v_max3_f32 v4, v4, v{S+i}, v{S+i+1}")
        e(f"v_max_f32 v4, v4, v{S+31}")
        e("v_mov_b32 v5, v4")
        e("s_nop 1")
        e("v_permlane32_swap_b32 v4, v5")
        e("v_max_f32 v4, v4, v5")
        e(f"v_max_f32 v4, v4, v{M+qi}")
        e(f"v_sub_f32 v5, v{M+qi}, v4")
        e("v_exp_f32 v5, v5")
        e(f"v_mov_b32 v{M+qi}, v4")
        for i in range(32): e(f"v_sub_f32 v{S+i}, v{S+i}, v4")
        for i in range(32): e(f"v_exp_f32 v{S+i}, v{S+i}")
        for i in range(16): e(f"v_mul_f32 v{O+i}, v{O+i}, v5")
        for j in range(16): e(f"v_cvt_pk_bf16_f32 v{P+j}, v{S+2*j}, v{S+2*j+1}")
        e("s_nop 1")
        for m in pv(0, qi, P): e(m)
        e("s_nop 11")
    e(f"s_sub_u32 s{SA_CNT}, s{SA_CNT}, 1")
    e(f"s_cmp_lg_u32 s{SA_CNT}, 0")
    e("s_cbranch_scc1 L3_attn_slow_loop")
    e("s_nop 7")
    e("s_branch L3_attn_fin")

def gen(force_slow=False, only=None):
    e = Emit()
    kernel_head(e, NAME)
    Diag.kid = 2
    e("s_cmp_ge_u32 s2, 256")
    e("s_cbranch_scc1 L3_exit")
    e(f"s_load_dwordx2 s[4:5], s[0:1], {KA_WS}")
    e("s_and_b32 s6, s2, 7")
    e("s_lshr_b32 s7, s2, 3")
    e("v_lshrrev_b32 v1, 6, v0")
    e("v_and_b32 v0, 63, v0")
    e(f"v_readfirstlane_b32 s{S_W}, v1")
    e("s_mov_b32 s30, 0")
    code_prefetch(e, NAME, "L3_exit", 3, vaddr=16, vtmp=17, vdst=20, sp=60)
    e("s_waitcnt lgkmcnt(0)")
    make_srd(e, S_SRD, 4, LY.WS_END)
    stamp(e, 0, 'any')
    dbg_start(e)
    if Opt.fuse_l2: gen_pre.gen_prephase(e)
    e("s_cmp_lt_u32 s7, 16")
    if only == "mlp":
        e("s_cbranch_scc0 L3_exit")
    else:
        e("s_cbranch_scc0 L3_attn")
    if only == "attn":
        e("s_branch L3_exit")
    gen_mlp(e)
    gen_attn(e, force_slow)
    if Opt.fuse_l4: gen_l4.final(e)
    e.label("L3_exit")
    e("s_endpgm")
    return e.text()

if __name__ == "__main__":
    t = gen()
    errs = check(t, "l3")
    for x in errs: print(x)
    print("instrs", sum(1 for l in t.split("\n") if l.startswith("    ")), "hazard errs", len(errs))
    open("l3.s", "w").write(t)
```

```python
from gen_common import *
NAME = "l4_kernel"
LDS_BYTES = 4 * 18 * 1024
S_WS = 12; S_OUT = 16
def gen():
    e = Emit()
    kernel_head(e, NAME)
    Diag.kid = 3
    e("s_cmp_ge_u32 s2, 256")
    e("s_cbranch_scc1 L4_exit")
    e(f"s_load_dwordx2 s[4:5], s[0:1], {KA_WS}")
    e(f"s_load_dwordx2 s[6:7], s[0:1], {KA_OUT}")
    e("v_lshrrev_b32 v1, 6, v0")
    e("v_and_b32 v0, 63, v0")
    e("v_readfirstlane_b32 s8, v1")
    e("s_lshr_b32 s9, s2, 5"); e("s_lshl_b32 s9, s9, 3"); e("s_and_b32 s10, s2, 7"); e("s_add_u32 s9, s9, s10")
    e("s_lshr_b32 s10, s2, 3"); e("s_and_b32 s10, s10, 3")
    e("v_lshlrev_b32 v1, 4, v0")
    code_prefetch(e, NAME, "L4_exit", 1, vaddr=250, vtmp=251, vdst=252, sp=60)
    e("s_waitcnt lgkmcnt(0)")
    make_srd(e, S_WS, 4, LY.WS_END)
    make_srd(e, S_OUT, 6, 2048 * 576 * 2)
    stamp(e, 0, 'any')
    dbg_start(e)
    W = lambda T, k: 4 * (9 * T + k)
    OFR = 8
    ACC = 44
    PB = 124
    VG = 2
    e("s_mul_i32 s20, s9, 36"); e("s_mul_i32 s21, s8, 9"); e("s_add_u32 s20, s20, s21"); e("s_lshl_b32 s20, s20, 10")
    e(f"s_add_u32 s22, s20, {LY.OF}")
    e("s_mul_i32 s23, s10, 180"); e("s_add_u32 s23, s23, s21"); e("s_lshl_b32 s23, s23, 10"); e(f"s_add_u32 s23, s23, {LY.WOP}")
    for k in range(9):
        e(f"buffer_load_dwordx4 {vr(OFR+4*k,4)}, v1, s[{S_WS}:{S_WS+3}], s22 offen offset:{(k%4)*1024}")
        if k % 4 == 3: e("s_add_u32 s22, s22, 4096")
    sreg = [24, 25, 26, 27, 28]
    for T in range(5):
        e(f"s_add_u32 s{sreg[T]}, s23, {T*36*1024}")
    for k in range(9):
        for T in range(5):
            e(f"buffer_load_dwordx4 {ar(W(T,k),4)}, v1, s[{S_WS}:{S_WS+3}], s{sreg[T]} offen offset:{(k%4)*1024}")
        if k % 4 == 3:
            for T in range(5): e(f"s_add_u32 s{sreg[T]}, s{sreg[T]}, 4096")
    e("v_and_b32 v3, 31, v0"); e("v_lshlrev_b32 v4, 2, v3")
    e("s_lshl_b32 s29, s9, 7"); e(f"s_add_u32 s29, s29, {LY.G}")
    total = 54
    def mf(T, k):
        return f"v_mfma_f32_32x32x16_bf16 {vr(ACC+16*T,16)}, {ar(W(T,k),4)}, {vr(OFR+4*k,4)}, " + ("0" if k == 0 else vr(ACC + 16 * T, 16))
    e("s_mul_i32 s30, s9, 36"); e("s_mul_i32 s31, s10, 9"); e("s_add_u32 s30, s30, s31"); e("s_add_u32 s30, s30, s8"); e("s_lshl_b32 s30, s30, 10")
    def unit_loads(i):
        o = []
        o.append(f"s_add_u32 s32, s30, {LY.X1F + i*4096}")
        o.append(f"buffer_load_dwordx4 {vr(PB+36*i,4)}, v1, s[{S_WS}:{S_WS+3}], s32 offen")
        for s in range(8):
            o.append(f"s_add_u32 s32, s30, {LY.PART + s*64*36*1024 + i*4096}")
            o.append(f"buffer_load_dwordx4 {vr(PB+36*i+4*(s+1),4)}, v1, s[{S_WS}:{S_WS+3}], s32 offen")
        return o
    issued = total
    extra = 0
    stamp(e, 1, 'any')
    for k in range(9):
        need_done = 9 + 5 * (k + 1)
        e(f"s_waitcnt vmcnt({min(63, total + extra - need_done)})")
        if k == 0: stamp(e, 2, 'any')
        for T in range(5): e(mf(T, k))
        if k == 2:
            e(f"buffer_load_dword v{VG}, v4, s[{S_WS}:{S_WS+3}], s29 offen"); extra += 1
            e.extend(unit_loads(0)); extra += 9
        if k == 4:
            e.extend(unit_loads(1)); extra += 9
    stamp(e, 3, 'any')
    e("s_cmp_eq_u32 s8, 0")
    e("s_cbranch_scc0 L4_no3a")
    e.extend(unit_loads(2))
    e.label("L4_no3a")
    e("s_mul_i32 s33, s8, 18432")
    e("v_add_u32 v5, s33, v1")
    e("s_nop 7")
    for u in range(9):
        T, hfq = divmod(u, 2)
        b = ACC + 16 * T + 8 * hfq
        e(f"ds_write_b128 v5, {vr(b,4)} offset:{(2*u)*1024}")
        e(f"ds_write_b128 v5, {vr(b+4,4)} offset:{(2*u+1)*1024}")
    e("s_waitcnt lgkmcnt(0)")
    e("s_barrier")
    stamp(e, 4, 'any')
    e("s_lshl_b32 s33, s8, 11")
    e("v_add_u32 v5, s33, v1")
    e("v_add_u32 v9, 36864, v5")
    e("s_mov_b32 s34, 0x00003f80"); e("s_mov_b32 s35, 0x3f800000")
    e("v_lshrrev_b32 v6, 5, v0"); e("v_lshlrev_b32 v6, 4, v6")
    e("s_movk_i32 s36, 1152")
    e("v_mul_lo_u32 v7, v3, s36"); e("v_add_u32 v7, v7, v6")
    e("s_mul_i32 s37, s9, 36864"); e("s_mul_i32 s38, s10, 288"); e("s_add_u32 s37, s37, s38"); e("s_lshl_b32 s38, s8, 5"); e("s_add_u32 s37, s37, s38")
    def unit2(i, R, B, src, vm):
        e(f"s_waitcnt vmcnt({vm})")
        for j in range(4):
            e(f"v_lshlrev_b32 v{B+2*j}, 16, v{src+j}")
            e(f"v_and_b32 v{B+2*j+1}, 0xffff0000, v{src+j}")
        for s in range(8):
            for j in range(4):
                e(f"v_dot2c_f32_bf16 v{B+2*j}, s34, v{src+4*(s+1)+j}")
                e(f"v_dot2c_f32_bf16 v{B+2*j+1}, s35, v{src+4*(s+1)+j}")
        e("s_waitcnt lgkmcnt(0)")
        for j in range(8):
            e(f"v_add_f32 v{R+j}, v{R+j}, v{R+8+j}")
            e(f"v_add_f32 v{R+16+j}, v{R+16+j}, v{R+24+j}")
        for j in range(8): e(f"v_add_f32 v{R+j}, v{R+j}, v{R+16+j}")
        for j in range(8): e(f"v_sub_f32 v{R+j}, v{R+j}, v{B+j}")
        for j in range(8): e(f"v_fma_f32 v{R+j}, v{R+j}, v{VG}, v{B+j}")
        for j in range(4): e(f"v_cvt_pk_bf16_f32 v{88+j}, v{R+2*j}, v{R+2*j+1}")
        e(f"buffer_store_dwordx4 v[88:91], v7, s[{S_OUT}:{S_OUT+3}], s37 offen offset:{i*128}")
    def reads(i):
        for wv in range(4):
            ad = "v5" if wv < 2 else "v9"
            e(f"ds_read_b128 {vr(44+8*wv,4)}, {ad} offset:{(wv%2)*18432 + (8*i)*1024}")
            e(f"ds_read_b128 {vr(44+8*wv+4,4)}, {ad} offset:{(wv%2)*18432 + (8*i+1)*1024}")
    e("s_cmp_eq_u32 s8, 0")
    e("s_cbranch_scc0 L4_two")
    reads(0); unit2(0, 44, 80, PB, 18)
    reads(1); unit2(1, 44, 80, PB + 36, 10)
    reads(2); unit2(2, 44, 80, PB + 72, 2)
    fin(e)
    e.label("L4_two")
    reads(0); unit2(0, 44, 80, PB, 9)
    reads(1); unit2(1, 44, 80, PB + 36, 1)
    fin(e)
    e.label("L4_exit")
    e("s_endpgm")
    return e.text()
if __name__ == "__main__":
    t = gen()
    errs = check(t, "l4")
    for x in errs: print(x)
    print("instrs", sum(1 for l in t.split("\n") if l.startswith("    ")), "hazard errs", len(errs))


def final(e):
    import gen_pre as P
    R = f"s[{S_WS}:{S_WS+3}]"
    e.label("K2_final")
    e("s_mov_b64 exec, -1")
    e(f"s_load_dwordx2 s[6:7], s[0:1], {KA_OUT}")
    e(f"s_add_u32 s{P.S_DBG}, s4, {LY.CNT}"); e(f"s_addc_u32 s{P.S_DBG+1}, s5, 0")
    e("v_mbcnt_lo_u32_b32 v0, -1, 0"); e("v_mbcnt_hi_u32_b32 v0, -1, v0")
    e("s_lshr_b32 s9, s2, 5"); e("s_lshl_b32 s9, s9, 3"); e("s_and_b32 s10, s2, 7"); e("s_add_u32 s9, s9, s10")
    e("s_lshr_b32 s10, s2, 3"); e("s_and_b32 s10, s10, 3")
    e("v_lshlrev_b32 v1, 4, v0")
    W = lambda T, k: 4 * (9 * T + k)
    OFR = 8; ACC = 44; PB = 124; VG = 2
    e(f"s_movk_i32 s48, {P.CNT_WO}")
    P.wait_counters(e, [(48, 12)])
    e("s_waitcnt lgkmcnt(0)")
    make_srd(e, S_OUT, 6, 2048 * 576 * 2)
    e("s_barrier")
    e("s_mul_i32 s21, s8, 9")
    e("s_mul_i32 s23, s10, 180"); e("s_add_u32 s23, s23, s21"); e("s_lshl_b32 s23, s23, 10"); e(f"s_add_u32 s23, s23, {LY.WOP}")
    sreg = [24, 25, 26, 27, 28]
    for T in range(5): e(f"s_add_u32 s{sreg[T]}, s23, {T*36*1024}")
    for k in range(9):
        for T in range(5):
            e(f"buffer_load_dwordx4 {ar(W(T,k),4)}, v1, {R}, s{sreg[T]} offen offset:{(k%4)*1024} sc1")
        if k % 4 == 3:
            for T in range(5): e(f"s_add_u32 s{sreg[T]}, s{sreg[T]}, 4096")
    e("v_and_b32 v3, 31, v0"); e("v_lshlrev_b32 v4, 2, v3")
    e("s_lshl_b32 s29, s9, 7"); e(f"s_add_u32 s29, s29, {LY.G}")
    e(f"buffer_load_dword v{VG}, v4, {R}, s29 offen")
    e("s_lshr_b32 s48, s9, 2"); e(f"s_mul_i32 s48, s48, {P.CSTEP}"); e(f"s_add_u32 s48, s48, {P.CNT_P}")
    e("s_lshr_b32 s49, s9, 4"); e(f"s_mul_i32 s49, s49, {P.CSTEP}"); e(f"s_add_u32 s49, s49, {P.CNT_O}")
    stamp(e, 6)
    P.wait_counters(e, [(48, 8), (49, 32)], sleep=Opt.final_sleep)
    e("s_barrier")
    e("s_mul_i32 s20, s9, 36"); e("s_add_u32 s20, s20, s21"); e("s_lshl_b32 s20, s20, 10"); e(f"s_add_u32 s22, s20, {LY.OF}")
    for k in range(9):
        e(f"buffer_load_dwordx4 {vr(OFR+4*k,4)}, v1, {R}, s22 offen offset:{(k%4)*1024} sc1")
        if k % 4 == 3: e("s_add_u32 s22, s22, 4096")
    e("s_mul_i32 s30, s9, 36"); e("s_mul_i32 s31, s10, 9"); e("s_add_u32 s30, s30, s31"); e("s_add_u32 s30, s30, s8"); e("s_lshl_b32 s30, s30, 10")
    def unit_loads(i):
        o = [f"s_add_u32 s32, s30, {LY.X1F + i*4096}", f"buffer_load_dwordx4 {vr(PB+36*i,4)}, v1, {R}, s32 offen sc1"]
        for s in range(8):
            o.append(f"s_add_u32 s32, s30, {LY.PART + s*64*36*1024 + i*4096}")
            o.append(f"buffer_load_dwordx4 {vr(PB+36*i+4*(s+1),4)}, v1, {R}, s32 offen sc1")
        return o
    e.extend(unit_loads(0)); e.extend(unit_loads(1))
    e("s_cmp_eq_u32 s8, 0"); e("s_cbranch_scc0 K2_f_no3")
    e.extend(unit_loads(2))
    e.label("K2_f_no3")
    for k in range(9):
        e(f"s_waitcnt vmcnt({(8 - k) + 18})")
        for T in range(5):
            e(f"v_mfma_f32_32x32x16_bf16 {vr(ACC+16*T,16)}, {ar(W(T,k),4)}, {vr(OFR+4*k,4)}, " + ("0" if k == 0 else vr(ACC + 16 * T, 16)))
    e("s_mul_i32 s33, s8, 18432"); e("v_add_u32 v5, s33, v1")
    e("s_nop 9")
    for u in range(9):
        T, hfq = divmod(u, 2); b = ACC + 16 * T + 8 * hfq
        e(f"ds_write_b128 v5, {vr(b,4)} offset:{(2*u)*1024}")
        e(f"ds_write_b128 v5, {vr(b+4,4)} offset:{(2*u+1)*1024}")
    e("s_waitcnt lgkmcnt(0)"); e("s_barrier")
    e("s_lshl_b32 s33, s8, 11"); e("v_add_u32 v5, s33, v1"); e("v_add_u32 v9, 36864, v5")
    e("s_mov_b32 s36, 0x00003f80"); e("s_mov_b32 s37, 0x3f800000")
    e("v_lshrrev_b32 v6, 5, v0"); e("v_lshlrev_b32 v6, 4, v6"); e("s_movk_i32 s38, 1152"); e("v_mul_lo_u32 v7, v3, s38"); e("v_add_u32 v7, v7, v6")
    e("s_mul_i32 s39, s9, 36864"); e("s_mul_i32 s40, s10, 288"); e("s_add_u32 s39, s39, s40"); e("s_lshl_b32 s40, s8, 5"); e("s_add_u32 s39, s39, s40")
    def unit(i, vm):
        Rr, B, src = 44, 80, PB + 36 * i
        for wv in range(4):
            ad = "v5" if wv < 2 else "v9"
            e(f"ds_read_b128 {vr(44+8*wv,4)}, {ad} offset:{(wv%2)*18432 + (8*i)*1024}")
            e(f"ds_read_b128 {vr(44+8*wv+4,4)}, {ad} offset:{(wv%2)*18432 + (8*i+1)*1024}")
        e(f"s_waitcnt vmcnt({vm})")
        for j in range(4):
            e(f"v_lshlrev_b32 v{B+2*j}, 16, v{src+j}"); e(f"v_and_b32 v{B+2*j+1}, 0xffff0000, v{src+j}")
        for s in range(8):
            for j in range(4):
                e(f"v_dot2c_f32_bf16 v{B+2*j}, s36, v{src+4*(s+1)+j}"); e(f"v_dot2c_f32_bf16 v{B+2*j+1}, s37, v{src+4*(s+1)+j}")
        e("s_waitcnt lgkmcnt(0)")
        for j in range(8):
            e(f"v_add_f32 v{Rr+j}, v{Rr+j}, v{Rr+8+j}"); e(f"v_add_f32 v{Rr+16+j}, v{Rr+16+j}, v{Rr+24+j}")
        for j in range(8): e(f"v_add_f32 v{Rr+j}, v{Rr+j}, v{Rr+16+j}")
        for j in range(8): e(f"v_sub_f32 v{Rr+j}, v{Rr+j}, v{B+j}")
        for j in range(8): e(f"v_fma_f32 v{Rr+j}, v{Rr+j}, v{VG}, v{B+j}")
        for j in range(4): e(f"v_cvt_pk_bf16_f32 v{88+j}, v{Rr+2*j}, v{Rr+2*j+1}")
        e(f"buffer_store_dwordx4 v[88:91], v7, s[{S_OUT}:{S_OUT+3}], s39 offen offset:{i*128}")
    e("s_cmp_eq_u32 s8, 0"); e("s_cbranch_scc0 K2_f_two")
    unit(0, 18); unit(1, 10); unit(2, 2)
    fin(e)
    e.label("K2_f_two")
    unit(0, 9); unit(1, 1)
    fin(e)
```

```python
from gen_common import *
S_WS = 12; S_SRC = 16; S_XB = 20; S_RP = 36
S_DBG = 34
IMG2 = 73728
XCH = 147456
CSTEP = 128
CNT_X, CNT_W, CNT_WO, CNT_P, CNT_O = 0, 16 * CSTEP, 24 * CSTEP, 25 * CSTEP, 41 * CSTEP

def lane_tr_parts(e, vhf, vsub, vr_, vsig):
    e(f"v_lshrrev_b32 v{vhf}, 5, v0"); e(f"v_bfe_u32 v{vsub}, v0, 4, 1"); e(f"v_bfe_u32 v{vr_}, v0, 2, 2")
    e(f"v_and_b32 v{vsig}, 1, v0"); e(f"v_lshlrev_b32 v{vsig}, 1, v{vsig}"); e(f"v_bfe_u32 v15, v0, 1, 1"); e(f"v_or_b32 v{vsig}, v{vsig}, v15")

def publish(e, off_sgpr):
    e("s_waitcnt vmcnt(0)")
    e("s_barrier")
    lab = f"Lpub_{len(e.L)}"
    e("s_cmp_eq_u32 s8, 0"); e(f"s_cbranch_scc0 {lab}")
    e("s_mov_b64 exec, 1")
    e(f"v_mov_b32 v250, s{off_sgpr}"); e("v_mov_b32 v251, 1")
    e(f"global_atomic_add v250, v251, s[{S_DBG}:{S_DBG+1}] sc1")
    e("s_mov_b64 exec, -1")
    e.label(lab)

def wait_counters(e, waits, acquire=False, sleep=None):
    lab = f"Lwait_{len(e.L)}"
    e("s_cmp_eq_u32 s8, 0"); e(f"s_cbranch_scc0 {lab}_done")
    e("s_mov_b32 s50, 0x40000")
    e("s_mov_b64 exec, 1")
    for i, (off, n) in enumerate(waits): e(f"v_mov_b32 v{246+i}, s{off}")
    e.label(lab)
    for i, (off, n) in enumerate(waits): e(f"global_load_dword v{250+i}, v{246+i}, s[{S_DBG}:{S_DBG+1}] sc1")
    e("s_waitcnt vmcnt(0)")
    e("s_mov_b32 s51, 1")
    for i, (off, n) in enumerate(waits):
        e(f"v_readfirstlane_b32 s52, v{250+i}")
        e(f"s_cmp_ge_u32 s52, {n}"); e("s_cselect_b32 s51, s51, 0")
    e("s_cmp_eq_u32 s51, 1"); e(f"s_cbranch_scc1 {lab}_ok")
    slp = Opt.poll_sleep if sleep is None else sleep
    if slp: e(f"s_sleep {slp}")
    e("s_sub_u32 s50, s50, 1"); e("s_cmp_lg_u32 s50, 0"); e(f"s_cbranch_scc1 {lab}")
    e.label(f"{lab}_ok")
    e("s_mov_b64 exec, -1")
    if acquire: e("buffer_inv sc1")
    e.label(f"{lab}_done")

def gemm(e, NT, with_repack):
    tag = f"G{NT}"
    RB = 64 * NT
    KS = 16 * RB
    e(f"s_load_dwordx2 s[24:25], s[0:1], {KA_W2}")
    e(f"s_load_dwordx2 s[26:27], s[0:1], {KA_XA}")
    e("v_lshlrev_b32 v1, 4, v0")
    if NT == 2:
        e("v_lshrrev_b32 v5, 3, v0"); e("v_and_b32 v6, 7, v0"); e("v_bfe_u32 v7, v0, 4, 1"); e("v_lshlrev_b32 v7, 2, v7"); e("v_xor_b32 v6, v6, v7")
        e("v_mul_u32_u24 v5, 1152, v5"); e("v_lshlrev_b32 v6, 4, v6"); e("v_add_u32 v2, v5, v6"); e(f"v_add_u32 v3, {9216-1024}, v2")
        NP = 2
    else:
        for i in range(3):
            e(f"v_add_u32 v5, {64*i}, v0")
            e("v_mul_u32_u24 v6, 171, v5"); e("v_lshrrev_b32 v6, 11, v6")
            e("v_mul_u32_u24 v7, 12, v6"); e("v_sub_u32 v7, v5, v7")
            e("v_mul_u32_u24 v6, 1152, v6"); e("v_lshlrev_b32 v7, 4, v7"); e("v_add_u32 v6, v6, v7")
            e(f"v_subrev_u32 v{2+i}, {1024*i}, v6")
        NP = 3
    e("s_waitcnt lgkmcnt(0)")
    make_srd(e, S_SRC, 24, 576 * 576 * 2)
    make_srd(e, S_XB, 26, 2048 * 576 * 2)
    e("s_mul_i32 s28, s8, 18432"); e("s_add_u32 s28, s28, s10")
    e(f"s_mul_i32 s29, s8, {KS}")
    e("s_mul_i32 s31, s9, 36864"); e(f"s_add_u32 s40, s31, {LY.HS}")
    for st in range(3):
        for i in range(3):
            ch = 3 * st + i
            e(f"s_add_u32 s31, s28, {ch*4*18432}")
            e(f"s_add_u32 m0, s29, {4*ch*KS}")
            e(f"s_add_u32 s{46+i}, s40, {ch*4096}")
            for k in range(NP):
                e(f"buffer_load_dwordx4 v{2+k}, s[{S_SRC}:{S_SRC+3}], s31 offen" + (f" offset:{k*1024}" if k else "") + " lds")
        for i in range(3):
            ch = 3 * st + i
            for k in range(4):
                e(f"buffer_load_dwordx4 {ar(4*(4*ch+k),4)}, v1, s[{S_WS}:{S_WS+3}], s{46+i} offen offset:{k*1024}")
    nrp = 0
    if with_repack:
        repack_dma(e); nrp = 18
    stamp(e, 1, 'pre')
    lane_tr_parts(e, 5, 6, 7, 8)
    if NT == 2:
        e("v_lshlrev_b32 v9, 1, v6"); e("v_lshrrev_b32 v10, 1, v8"); e("v_add_u32 v9, v9, v10")
        e("v_lshrrev_b32 v10, 1, v7"); e("v_lshlrev_b32 v10, 2, v10"); e("v_xor_b32 v9, v9, v10"); e("v_lshlrev_b32 v9, 4, v9")
        e("v_and_b32 v10, 1, v8"); e("v_lshlrev_b32 v10, 3, v10"); e("v_add_u32 v9, v9, v10")
        e("v_lshlrev_b32 v10, 3, v5"); e("v_add_u32 v10, v10, v7"); e("v_lshlrev_b32 v10, 7, v10"); e("v_add_u32 v9, v9, v10")
        e("v_xor_b32 v10, 64, v9"); e("v_add_u32 v13, 36864, v9"); e("v_add_u32 v14, 36864, v10")
        def addr(ks, T, q): return f"v{[[9, 10], [13, 14]][ks//18][T]} offset:{(ks%18)*2048 + q*512}"
    else:
        e("v_lshlrev_b32 v9, 3, v5"); e("v_add_u32 v9, v9, v7"); e("v_mul_u32_u24 v9, 192, v9")
        e("v_lshlrev_b32 v10, 5, v6"); e("v_add_u32 v9, v9, v10"); e("v_lshlrev_b32 v10, 3, v8"); e("v_add_u32 v9, v9, v10")
        e(f"v_add_u32 v10, {18*3072}, v9")
        def addr(ks, T, q): return f"v{[9, 10][ks//18]} offset:{(ks%18)*3072 + q*768 + 64*T}"
    ACC = 16; WB = 64; XB = 112
    def reads(ks):
        b = WB + 4 * NT * (ks % 4)
        return [f"ds_read_b64_tr_b16 {vr(b+4*T+2*q,2)}, {addr(ks, T, q)}" for T in range(NT) for q in range(2)]
    e("v_and_b32 v11, 31, v0"); e("s_movk_i32 s32, 1152"); e("v_mul_lo_u32 v12, v11, s32"); e("v_lshlrev_b32 v4, 4, v5"); e("v_add_u32 v12, v12, v4")
    e("s_mul_i32 s41, s9, 36864"); e("s_add_u32 s41, s41, s10")
    per = 3 * NP + 12
    nx = 2 * NT
    for st in range(3):
        younger = (2 - st) * per + nrp + (nx if st else 0)
        e(f"s_waitcnt vmcnt({min(63, younger)})")
        e("s_barrier")
        if st == 0: stamp(e, 2, 'pre')
        if st == 0:
            for u in range(nx):
                e(f"buffer_load_dwordx4 {vr(XB+4*u,4)}, v12, s[{S_XB}:{S_XB+3}], s41 offen offset:{u*32}")
        k0 = 12 * st
        for k in range(3): e.extend(reads(k0 + k))
        for ks in range(k0, k0 + 12):
            left = k0 + 11 - ks
            e(f"s_waitcnt lgkmcnt({min(15, 2 * NT * min(2, left))})")
            b = WB + 4 * NT * (ks % 4)
            rd = reads(ks + 3) if ks + 3 < k0 + 12 else []
            for T in range(NT):
                e(f"v_mfma_f32_32x32x16_bf16 {vr(ACC+16*T,16)}, {vr(b+4*T,4)}, {ar(4*ks,4)}, " + ("0" if ks == 0 else vr(ACC + 16 * T, 16)))
                e.extend(rd[2 * T:2 * T + 2])
    e("s_mov_b32 s42, 0x00003f80"); e("s_mov_b32 s43, 0x3f800000"); e("s_mov_b32 s44, 0x3f803f80")
    e("s_mul_i32 s45, s9, 36"); e("s_add_u32 s45, s45, s11"); e("s_lshl_b32 s45, s45, 10"); e(f"s_add_u32 s45, s45, {LY.X1F}")
    e("v_mov_b32 v2, 0"); e("v_mov_b32 v3, 0")
    e("s_waitcnt vmcnt(0)")
    e("s_nop 7")
    for u in range(nx):
        T, hq = divmod(u, 2); b = ACC + 16 * T + 8 * hq; x = XB + 4 * u; P = 64 + 4 * u
        for j in range(4):
            e(f"v_dot2c_f32_bf16 v{b+2*j}, s42, v{x+j}")
            e(f"v_dot2c_f32_bf16 v{b+2*j+1}, s43, v{x+j}")
        e("s_nop 2")
        for j in range(4): e(f"v_cvt_pk_bf16_f32 v{P+j}, v{b+2*j}, v{b+2*j+1}")
        e(f"buffer_store_dwordx4 {vr(P,4)}, v1, s[{S_WS}:{S_WS+3}], s45 offen offset:{(u%4)*1024} sc1")
        if u == 3 and nx > 4: e("s_add_u32 s45, s45, 4096")
        for j in range(4):
            e(f"v_dot2c_f32_bf16 v2, s44, v{P+j}")
            e(f"v_dot2c_f32_bf16 v3, v{P+j}, v{P+j}")
    e("v_lshlrev_b32 v4, 14, v5"); e("v_lshlrev_b32 v6, 2, v11"); e("v_add_u32 v4, v4, v6")
    e("s_lshl_b32 s46, s33, 14"); e("s_lshl_b32 s47, s9, 7"); e("s_add_u32 s46, s46, s47"); e(f"s_add_u32 s46, s46, {LY.ST2}")
    e("s_add_u32 s47, s46, 8192")
    e(f"buffer_store_dword v2, v4, s[{S_WS}:{S_WS+3}], s46 offen sc1")
    e(f"buffer_store_dword v3, v4, s[{S_WS}:{S_WS+3}], s47 offen sc1")

def repack_dma(e):
    for i in range(18):
        e(f"s_add_u32 m0, s54, {IMG2 + i*1024}")
        e(f"s_add_u32 s55, s56, s57") if i == 0 else e("s_add_u32 s55, s55, s58")
        e(f"buffer_load_dwordx4 v16, s[{S_RP}:{S_RP+3}], s55 offen lds")

def repack_setup(e):
    e(f"s_load_dwordx2 s[60:61], s[0:1], {KA_W3}")
    e(f"s_load_dwordx2 s[62:63], s[0:1], {KA_WO}")
    e("s_cmp_lt_u32 s53, 72")
    e("s_cselect_b32 s59, 1, 0")
    e("s_movk_i32 s58, 1152"); e("s_cselect_b32 s58, 9216, s58")
    e("s_sub_u32 s56, s53, 72"); e("s_mul_i32 s55, s56, 86"); e("s_lshr_b32 s55, s55, 8")
    e("s_mul_i32 s57, s55, 3"); e("s_sub_u32 s57, s56, s57")
    e("s_mul_i32 s56, s55, 288"); e("s_lshl_b32 s54, s57, 7"); e("s_add_u32 s56, s56, s54")
    e("s_lshl_b32 s54, s53, 7"); e("s_cmp_lt_u32 s53, 72"); e("s_cselect_b32 s56, s54, s56")
    e("s_waitcnt lgkmcnt(0)")
    e("s_cmp_lt_u32 s53, 72")
    e(f"s_cselect_b32 s{S_RP}, s60, s62"); e(f"s_cselect_b32 s{S_RP+1}, s61, s63")
    e(f"s_mov_b32 s{S_RP+2}, {576*576*2}"); e(f"s_cselect_b32 s{S_RP+2}, {576*4608*2}, s{S_RP+2}")
    e("s_cmp_lt_u32 s53, 84"); e(f"s_cselect_b32 s{S_RP+2}, s{S_RP+2}, 0")
    e(f"s_and_b32 s{S_RP+1}, s{S_RP+1}, 0xffff"); e(f"s_mov_b32 s{S_RP+3}, 0x20000")
    e("v_lshrrev_b32 v17, 3, v0"); e("v_and_b32 v18, 7, v0"); e("v_bfe_u32 v19, v0, 4, 1"); e("v_mul_u32_u24 v19, s59, v19"); e("v_lshlrev_b32 v19, 2, v19"); e("v_xor_b32 v18, v18, v19")
    e("v_mul_lo_u32 v17, v17, s58"); e("v_lshlrev_b32 v18, 4, v18"); e("v_add_u32 v16, v17, v18")
    e("s_mul_i32 s57, s8, 144"); e("s_mul_i32 s57, s57, s58")
    e("s_mul_i32 s54, s8, 18432")
    e("s_lshl_b32 s58, s58, 3")

def repack_w3(e):
    lane_tr_parts(e, 5, 6, 7, 8)
    e("s_and_b32 s40, s8, 1"); e("s_lshr_b32 s41, s8, 1")
    e("v_lshlrev_b32 v9, 1, v6"); e("v_lshrrev_b32 v10, 1, v8"); e("v_add_u32 v9, v9, v10")
    e("s_lshl_b32 s42, s40, 2"); e("v_add_u32 v9, s42, v9")
    e("v_lshrrev_b32 v10, 1, v7"); e("v_lshlrev_b32 v10, 2, v10"); e("v_xor_b32 v9, v9, v10")
    e("v_lshlrev_b32 v9, 4, v9"); e("v_and_b32 v10, 1, v8"); e("v_lshlrev_b32 v10, 3, v10"); e("v_add_u32 v9, v9, v10")
    e("v_lshlrev_b32 v10, 3, v5"); e("v_add_u32 v10, v10, v7"); e("v_lshlrev_b32 v10, 7, v10"); e("v_add_u32 v9, v9, v10")
    e("s_mul_i32 s42, s41, 36864"); e(f"s_add_u32 s42, s42, {IMG2}"); e("v_add_u32 v9, s42, v9")
    F = 16
    for k in range(18):
        for q in range(2):
            e(f"ds_read_b64_tr_b16 {vr(F+4*k+2*q,2)}, v9 offset:{k*2048+q*512}")
    e("s_mov_b32 s43, 0x3f803f80"); e("s_mov_b32 s44, 0x00003f80"); e("s_mov_b32 s45, 0x3f800000")
    for a in range(4): e(f"v_mov_b32 v{10+a}, 0")
    for k in range(18):
        if k % 3 == 0: e(f"s_waitcnt lgkmcnt({min(15, 36 - 2*(k+3))})")
        for j in range(4): e(f"v_dot2c_f32_bf16 v{10+j}, s43, v{F+4*k+j}")
    e("s_nop 2")
    e("v_add_f32 v10, v10, v11"); e("v_add_f32 v12, v12, v13"); e("v_add_f32 v10, v10, v12")
    e("v_mov_b32 v11, v10"); e("v_lshlrev_b32 v12, 2, v0"); e("s_lshl_b32 s42, s8, 8"); e("v_permlane32_swap_b32 v10, v11"); e("v_add_f32 v10, v10, v11")
    e(f"s_add_u32 s42, s42, {XCH}"); e("v_add_u32 v13, s42, v12")
    e("ds_write_b32 v13, v10")
    e("s_xor_b32 s42, s8, 2"); e("s_lshl_b32 s42, s42, 8"); e(f"s_add_u32 s42, s42, {XCH}"); e("v_add_u32 v13, s42, v12")
    e("s_waitcnt lgkmcnt(0)"); e("s_barrier")
    e("ds_read_b32 v11, v13"); e("s_waitcnt lgkmcnt(0)")
    e("v_add_f32 v10, v10, v11"); e(f"v_mul_f32 v10, {hexf(-1/576)}, v10")
    e("s_lshl_b32 s46, s53, 1"); e("s_add_u32 s46, s46, s40")
    e(f"s_mul_i32 s47, s46, 36864"); e(f"s_add_u32 s47, s47, {LY.W3P}")
    e("s_mul_i32 s42, s41, 18432"); e("s_add_u32 s47, s47, s42")
    TS = [88, 96]
    def fink(k):
        t = TS[k % 2]
        for j in range(4): e(f"v_cvt_pk_bf16_f32 v{F+4*k+j}, v{t+2*j}, v{t+2*j+1}")
        e(f"buffer_store_dwordx4 {vr(F+4*k,4)}, v1, s[{S_WS}:{S_WS+3}], s47 offen offset:{(k%4)*1024} sc1")
        if k % 4 == 3: e("s_add_u32 s47, s47, 4096")
    for k in range(18):
        t = TS[k % 2]
        for j in range(4):
            e(f"v_dot2_f32_bf16 v{t+2*j}, v{F+4*k+j}, s44, v10")
            e(f"v_dot2_f32_bf16 v{t+2*j+1}, v{F+4*k+j}, s45, v10")
        if k > 0: fink(k - 1)
    e("s_nop 2")
    fink(17)

def repack_wo(e, skip_label):
    e("s_sub_u32 s46, s53, 72"); e("s_mul_i32 s40, s46, 86"); e("s_lshr_b32 s40, s40, 8")
    e("s_mul_i32 s41, s40, 3"); e("s_sub_u32 s41, s46, s41")
    lane_tr_parts(e, 5, 6, 7, 8)
    e("s_and_b32 s42, s8, 1"); e("s_lshr_b32 s43, s8, 1")
    e("v_lshlrev_b32 v9, 5, v6"); e("v_lshlrev_b32 v10, 3, v8"); e("v_add_u32 v9, v9, v10"); e("s_lshl_b32 s44, s42, 6"); e(f"s_add_u32 s44, s44, {IMG2}"); e("v_add_u32 v9, s44, v9")
    e("v_lshlrev_b32 v10, 2, v5"); e("v_add_u32 v10, v10, v7"); e("v_lshlrev_b32 v10, 7, v10"); e("v_add_u32 v10, v10, v9")
    e(f"s_mul_i32 s44, s43, {324*128}"); e("v_add_u32 v10, s44, v10")
    e("v_lshrrev_b32 v11, 1, v7"); e("v_lshlrev_b32 v12, 2, v5"); e("v_add_u32 v12, v12, v11"); e("v_mul_u32_u24 v12, 18, v12")
    e("v_xor_b32 v11, 1, v11"); e("v_lshlrev_b32 v11, 4, v11"); e("v_add_u32 v12, v12, v11"); e("v_and_b32 v11, 1, v7"); e("v_add_u32 v12, v12, v11")
    e("v_lshlrev_b32 v12, 7, v12"); e("v_add_u32 v12, v12, v9")
    F = 16
    for k in range(14):
        for q in range(2):
            e(f"ds_read_b64_tr_b16 {vr(F+4*k+2*q,2)}, v10 offset:{(18*k + 8*q + 2*(k&1))*128}")
    e("s_cmp_eq_u32 s43, 0"); e("s_cbranch_scc0 K2_wo_x")
    for k in range(14, 18):
        for q in range(2):
            e(f"ds_read_b64_tr_b16 {vr(F+4*k+2*q,2)}, v10 offset:{(18*k + 8*q + 2*(k&1))*128}")
    e("s_branch K2_wo_y")
    e.label("K2_wo_x")
    for k in range(14, 18):
        for q in range(2):
            e(f"ds_read_b64_tr_b16 {vr(F+4*k+2*q,2)}, v12 offset:{18*(8*(k-14) + 2*q)*128}")
    e.label("K2_wo_y")
    e("s_lshl_b32 s44, s41, 1"); e("s_add_u32 s44, s44, s42")
    e("s_cmp_eq_u32 s44, 5"); e(f"s_cbranch_scc1 {skip_label}")
    e("s_mul_i32 s45, s40, 5"); e("s_add_u32 s45, s45, s44"); e("s_mul_i32 s45, s45, 36"); e("s_mul_i32 s46, s43, 18"); e("s_add_u32 s45, s45, s46")
    e("s_lshl_b32 s47, s45, 10"); e(f"s_add_u32 s47, s47, {LY.WOP}")
    e("s_waitcnt lgkmcnt(0)")
    for k in range(18):
        e(f"buffer_store_dwordx4 {vr(F+4*k,4)}, v1, s[{S_WS}:{S_WS+3}], s47 offen offset:{(k%4)*1024}")
        if k % 4 == 3: e("s_add_u32 s47, s47, 4096")

def gen_prephase(e):
    e(f"s_load_dwordx2 s[{S_DBG}:{S_DBG+1}], s[0:1], {KA_DBG}") if not Opt.cnt_ws else None
    if Opt.cnt_ws:
        e(f"s_add_u32 s{S_DBG}, s4, {LY.CNT}"); e(f"s_addc_u32 s{S_DBG+1}, s5, 0")
    e("s_cmp_lt_u32 s7, 16"); e("s_cbranch_scc0 K2_pre_att")
    e("s_mov_b32 s64, s7"); e("s_mov_b32 s65, s6")
    e.label("K2_pre_gemm")
    e("s_lshl_b32 s9, s64, 2"); e("s_add_u32 s9, s9, s8")
    e("s_lshl_b32 s33, s65, 1")
    e("s_lshl_b32 s10, s65, 7"); e("s_lshl_b32 s11, s65, 2")
    gemm(e, 2, False)
    stamp(e, 3, 'pre')
    e(f"s_mul_i32 s48, s64, {CSTEP}")
    publish(e, 48)
    e("s_branch K2_pre_end")
    e.label("K2_pre_att")
    e("s_sub_u32 s53, s7, 16"); e("s_lshl_b32 s53, s53, 3"); e("s_add_u32 s53, s53, s6")
    e("s_cmp_lt_u32 s53, 16"); e("s_cbranch_scc0 K2_pre_rp")
    e("s_mov_b32 s64, s53"); e("s_mov_b32 s65, 8")
    e("s_branch K2_pre_gemm")
    e.label("K2_pre_rp")
    e("s_cmp_lt_u32 s53, 100"); e("s_cbranch_scc0 K2_pre_end")
    e("s_sub_u32 s53, s53, 16")
    e("v_lshlrev_b32 v1, 4, v0")
    repack_setup(e)
    repack_dma(e)
    e("s_waitcnt vmcnt(0)"); e("s_barrier")
    stamp(e, 4, 'pre')
    e("s_cmp_lt_u32 s53, 72"); e("s_cbranch_scc1 K2_rw3")
    repack_wo(e, "K2_pre_lds")
    e("s_branch K2_pre_lds")
    e.label("K2_rw3")
    repack_w3(e)
    stamp(e, 5, 'pre')
    e("s_mul_i32 s48, s53, 57"); e("s_lshr_b32 s48, s48, 9"); e(f"s_mul_i32 s48, s48, {CSTEP}"); e(f"s_add_u32 s48, s48, {CNT_W}")
    publish(e, 48)
    e("s_branch K2_pre_end")
    e.label("K2_pre_lds")
    if Opt.fuse_l4:
        e(f"s_movk_i32 s48, {CNT_WO}")
        publish(e, 48)
    else:
        e("s_barrier")
    e.label("K2_pre_end")
    stamp(e, 6, 'pre')

def gen_mlp_wait(e):
    e(f"s_mul_i32 s48, s7, {CSTEP}"); e(f"s_mul_i32 s49, s6, {CSTEP}"); e(f"s_add_u32 s49, s49, {CNT_W}")
    wait_counters(e, [(48, 9), (49, 9)], acquire=Opt.acquire)
```

```python
from asmlib import *
import layouts as LY
import math

KA_XA, KA_WQKV, KA_WO, KA_XB, KA_W1, KA_W2, KA_W3, KA_W4, KA_GW, KA_OUT, KA_DBG, KA_WS = [8*i for i in range(12)]
WS_SIZE = 268435456

def kernel_head(e, name):
    e(f".globl {name}")
    e(".p2align 8")
    e(f".type {name},@function")
    e.label(name)

def kernel_desc(name, vgpr, accum, sgpr=102):
    return f""".amdhsa_kernel {name}
  .amdhsa_next_free_vgpr {vgpr}
  .amdhsa_next_free_sgpr {sgpr}
  .amdhsa_accum_offset {accum}
  .amdhsa_group_segment_fixed_size 0
  .amdhsa_kernarg_size 96
  .amdhsa_user_sgpr_count 2
  .amdhsa_user_sgpr_kernarg_segment_ptr 1
  .amdhsa_system_sgpr_workgroup_id_x 1
  .amdhsa_float_denorm_mode_32 3
.end_amdhsa_kernel
"""

def make_srd(e, dst, ptr, size):
    if dst != ptr: e(f"s_mov_b32 s{dst}, s{ptr}")
    e(f"s_and_b32 s{dst+1}, s{ptr+1}, 0xffff")
    e(f"s_mov_b32 s{dst+2}, {size}")
    e(f"s_mov_b32 s{dst+3}, 0x20000")

GELU_C0 = -2.0 * math.sqrt(2.0 / math.pi) * math.log2(math.e)
GELU_C1 = GELU_C0 * 0.044715

class Diag:
    on = False
    kid = 0
    pre = False
    dbg = False
STAMP_BASE = 0x8000000
def stamp(e, i, grp='main'):
    if Diag.on and (grp == 'any' or (grp == 'pre') == bool(Diag.pre)):
        e(f"s_memrealtime s[{70+2*i}:{71+2*i}]")
        if i == 2: e("s_memtime s[92:93]")
        if i == 5: e("s_memtime s[94:95]")
        e("s_waitcnt lgkmcnt(0)")
def dbg_start(e):
    if Diag.dbg:
        e("s_memrealtime s[96:97]")
        e(f"s_load_dwordx2 s[98:99], s[0:1], {KA_DBG}")
        e("s_waitcnt lgkmcnt(0)")
def fin(e, wave_sgpr=8):
    if Diag.dbg:
        e("s_waitcnt vmcnt(0)")
        e("s_memrealtime s[100:101]")
        e("s_waitcnt lgkmcnt(0)")
        e(f"s_cmp_eq_u32 s{wave_sgpr}, 0"); e(f"s_cbranch_scc0 Ldbg_skip_{len(e.L)}")
        Diag.lab = f"Ldbg_skip_{len(e.L)-1}"
        e("s_mov_b64 exec, 1")
        fusedl = Opt.fuse_l2
        lidx = Diag.kid - (1 if (fusedl and Diag.kid >= 2) else 0) - (1 if (Opt.fuse_l4 and Diag.kid >= 3) else 0)
        last = 512 * (3 - (1 if fusedl else 0) - (1 if Opt.fuse_l4 else 0))
        e(f"s_sub_u32 s98, s98, {512 * lidx}"); e("s_subb_u32 s99, s99, 0")
        e("s_not_b32 s96, s96")
        e("v_mov_b32 v2, s96"); e("v_mov_b32 v3, s100"); e("v_mov_b32 v4, 0")
        e(f"global_atomic_umax v4, v2, s[98:99] offset:{16 * Diag.kid}")
        e(f"global_atomic_umax v4, v3, s[98:99] offset:{16 * Diag.kid + 4}")
        e(f"global_atomic_umax v4, v2, s[98:99] offset:{last + 16 * Diag.kid}")
        e(f"global_atomic_umax v4, v3, s[98:99] offset:{last + 16 * Diag.kid + 4}")
        e.label(Diag.lab)
    if Diag.on:
        stamp(e, 7, 'any')
        e("s_waitcnt vmcnt(0)")
        e("s_memrealtime s[86:87]")
        e("s_waitcnt lgkmcnt(0)")
        e("s_mov_b64 exec, -1")
        e(f"s_lshl_b32 s88, s2, 3"); e(f"s_add_u32 s88, s88, s{wave_sgpr}"); e("s_lshl_b32 s88, s88, 6")
        e(f"s_add_u32 s88, s88, {STAMP_BASE + Diag.kid * 0x20000}")
        for i in range(8): e(f"v_mov_b32 v{4+i}, s{70+2*i}")
        e("v_mov_b32 v12, s86")
        e("s_sub_u32 s94, s94, s92")
        e("v_mov_b32 v14, s94")
        e("v_mov_b32 v13, s88")
        e("global_store_dwordx4 v13, v[4:7], s[4:5] offset:0")
        e("global_store_dwordx4 v13, v[8:11], s[4:5] offset:16")
        e("global_store_dword v13, v12, s[4:5] offset:32")
        e("global_store_dword v13, v14, s[4:5] offset:36")
    e("s_endpgm")

class Opt:
    code_pf = False
    l1_8wave = True
    l1_touch = False
    late_touch = True
    late_sel = 'w2'
    touch_in_loop = False
    touch_stages = (2, 5)
    rotate = False
    rotate2 = True
    repack_l1 = False
    fuse_l2 = True
    fuse_l4 = True
    final_sleep = 4
    early_wo = True
    cnt_ws = True
    gemm_local = True
    mlp_rbx = 4
    acquire = False
    poll_sleep = 0
    gelu_split = 2
    l2_only = None
    touch64 = False
def code_prefetch(e, start_label, end_label, nblk, vaddr, vtmp, vdst, sp):
    if not Opt.code_pf: return
    lab = f"{start_label}_pc{len(e.L)}"
    e(f"s_getpc_b64 s[{sp}:{sp+1}]")
    e.label(lab)
    e(f"s_sub_u32 s{sp}, s{sp}, {lab}-{start_label}")
    e(f"s_subb_u32 s{sp+1}, s{sp+1}, 0")
    e(f"v_lshlrev_b32 v{vaddr}, 7, v0")
    for i in range(nblk):
        e(f"v_min_u32 v{vtmp}, {end_label}-{start_label}-4, v{vaddr}")
        e(f"global_load_dword v{vdst}, v{vtmp}, s[{sp}:{sp+1}]")
        if i + 1 < nblk: e(f"v_add_u32 v{vaddr}, 0x2000, v{vaddr}")

STORE_MOD = "sc1"
```

```python
from gen_common import *
import os
import gen_pre, gen_l4

NAME = "l3_kernel"
LDS_BYTES = 4 * 36864

V_PA, V_PB = 0, 1
V_DMA    = 2
V_A, V_B, V_S = 3, 4, 5
TA = [6, 7, 8, 9]
V_P1, V_PC = 10, 11
V_RA, V_RB = 12, 13
V_E, V_O = 14, 15
V_W = 16
NB = 6
V_HP = 40
V_H = [48, 64]
SLOT = {"C": 0, "D": 36864, "A": 73728, "B": 110592}
def OUT(dt):
    return (True, 80 + 16 * dt) if dt < 11 else (False, 144 + 16 * (dt - 11))
def outreg(dt):
    isv_, b = OUT(dt)
    return vr(b, 16) if isv_ else ar(b, 16)
S_SRD = 12
S_W4 = 24
S_W, S_J = 8, 7
S_M0B = 18
S_D3 = [19, 20, 21]
S_D4 = [28, 29, 31]
S_CNT = 22

def gelu_group(H, elems, temps):
    o = []
    for e_, t in zip(elems, temps): o.append(f"v_mul_f32 v{t}, v{H+e_}, v{H+e_}")
    for e_, t in zip(elems, temps): o.append(f"v_fma_f32 v{t}, v{t}, v{V_A}, v{V_B}")
    for e_, t in zip(elems, temps): o.append(f"v_mul_f32 v{t}, v{H+e_}, v{t}")
    for e_, t in zip(elems, temps): o.append(f"v_exp_f32 v{t}, v{t}")
    for e_, t in zip(elems, temps): o.append(f"v_fma_f32 v{t}, v{t}, v{V_S}, v{V_S}")
    for e_, t in zip(elems, temps): o.append(f"v_rcp_f32 v{t}, v{t}")
    for e_, t in zip(elems, temps): o.append(f"v_mul_f32 v{H+e_}, v{H+e_}, v{t}")
    return o
def gelu_groups(H, gs):
    o = []
    for g in gs: o += gelu_group(H, range(4 * g, 4 * g + 4), TA)
    return o
def cvts(H, js):
    return [f"v_cvt_pk_bf16_f32 v{V_HP+j}, v{H+2*j}, v{H+2*j+1}" for j in js]

def s1_mfmas(c):
    H = V_H[c & 1]
    return [f"v_mfma_f32_32x32x16_bf16 {vr(H,16)}, {vr(V_W+4*(j%NB),4)}, {ar(4*j,4)}, " + ("0" if j == 0 else vr(H, 16)) for j in range(36)]
def s2_mfmas():
    o = []
    for m in range(36):
        q, dt = divmod(m, 18)
        o.append(f"v_mfma_f32_32x32x16_bf16 {outreg(dt)}, {vr(V_W+4*(m%NB),4)}, {vr(V_HP+4*q,4)}, {outreg(dt)}")
    return o

def rd(ph, m):
    kind, slot = ph[0], ph[1]
    b = V_W + 4 * (m % NB)
    if kind == "S1":
        reg = ph[2] if len(ph) > 2 else {"A": V_RA, "B": V_RB}[slot]
        return [f"ds_read_b128 {vr(b,4)}, v{reg} offset:{m*1024}"]
    q, dt = divmod(m, 18)
    reg = V_O if dt & 1 else V_E
    off = SLOT[slot] + q * 18432 + (dt >> 1) * 128
    return [f"ds_read_b64_tr_b16 {vr(b,2)}, v{reg} offset:{off}", f"ds_read_b64_tr_b16 {vr(b+2,2)}, v{reg} offset:{off + 4608}"]

W4PAT = [V_DMA, V_DMA, V_PA, V_P1, V_PB, V_DMA, V_PC, V_P1, V_P1]
def dma_instrs(kind, slot):
    g = []
    for i in range(9):
        grp, k = divmod(i, 4)
        pre = []
        if k == 0: pre.append(f"s_add_u32 m0, s{S_M0B}, {SLOT[slot] + grp*4096}")
        if kind == "S1":
            sc = " sc1" if (Opt.fuse_l2 and not Opt.acquire) else ""
            g.append((pre, f"buffer_load_dwordx4 v{V_DMA}, s[{S_SRD}:{S_SRD+3}], s{S_D3[grp]} offen offset:{k*1024}{sc} lds"))
        else:
            g.append((pre, f"buffer_load_dwordx4 v{W4PAT[i]}, s[{S_W4}:{S_W4+3}], s{S_D4[grp]} offen offset:{k*1024} lds"))
    return g
def dma_advance(kind):
    return [f"s_add_u32 s{r}, s{r}, 36864" for r in (S_D3 if kind == "S1" else S_D4)]

def phase(e, mf, ph, nxt, dma, fill, fill_range, last_vm=9, tail=None, xwait=False, early_dma=False, pre_next=None):
    gaps = {}
    issued = []
    for m in range(NB): issued.append((m, len(rd(ph, m))))
    waits = {}
    for j in range(36):
        L = gaps.setdefault(j, [])
        m = j + NB
        if m < 36:
            r = rd(ph, m); L += r; issued.append((m, len(r)))
        elif nxt is not None:
            if m == 36:
                if pre_next: L += pre_next
                L.append(f"s_waitcnt vmcnt({last_vm})")
                L.append("s_barrier")
            r = rd(nxt, m - 36); L += r; issued.append((m, len(r)))
        if (j + 1) % 2 == 0 and (j + 1 < 36 or nxt is not None):
            allowed = sum(n for (mm, n) in issued if mm > j + 2)
            waits[j] = f"s_waitcnt lgkmcnt({min(allowed, 15)})"
    pos = [1, 4, 7, 10, 13, 16, 19, 22, 25] if not early_dma else [0, 1, 2, 3, 4, 5, 6, 7, 8]
    if dma is not None:
        d = dma_instrs(*dma)
        for (pre, ld), p in zip(d, pos):
            if pre:
                if p > 0 and not early_dma: gaps[p - 1] += pre
                else: gaps[p] += pre + ["s_nop 0"]
            gaps[p].append(ld)
        gaps[27] += dma_advance(dma[0])
    if xwait:
        for j in range(4, 36, 4):
            ndma = sum(1 for p in pos if p <= j - 1)
            allowed = (35 - (j + 3)) + 9 + ndma
            gaps[j - 1].append(f"s_waitcnt vmcnt({allowed})")
    if fill:
        spread(gaps, fill, fill_range[0], fill_range[1])
    for j, w in waits.items(): gaps[j].append(w)
    e.extend(weave(mf, gaps))
    if tail: e.extend(tail)

def gen_mlp(e):
    R = f"s[{S_SRD}:{S_SRD+3}]"
    fused = Opt.fuse_l2
    SC = " sc1" if fused else ""
    e.label("L3_mlp")
    a = Opt.mlp_rbx
    if a != 16:
        la = {8: 3, 4: 2, 2: 1}[a]; nx = 16 // a
        e(f"s_and_b32 s9, s6, {nx-1}"); e(f"s_lshl_b32 s9, s9, {la}"); e(f"s_and_b32 s10, s7, {a-1}"); e("s_add_u32 s9, s9, s10")
        e(f"s_lshr_b32 s10, s6, {4-la}"); e(f"s_lshl_b32 s10, s10, {4-la}"); e(f"s_lshr_b32 s11, s7, {la}"); e("s_add_u32 s6, s10, s11")
        e("s_mov_b32 s7, s9")
    if fused: gen_pre.gen_mlp_wait(e)
    stamp(e, 4, 'pre')
    e(f"s_load_dwordx2 s[32:33], s[0:1], {KA_W4}")
    e(f"s_lshl_b32 s9, s7, 2")
    e(f"s_add_u32 s9, s9, s{S_W}")
    e(f"s_mul_i32 s{S_M0B}, s{S_W}, 9216")
    e(f"s_mul_i32 s10, s6, {18*36864}")
    e(f"s_add_u32 s{S_D3[0]}, s10, {LY.W3P}")
    e(f"s_add_u32 s{S_D3[1]}, s{S_D3[0]}, 4096"); e(f"s_add_u32 s{S_D3[2]}, s{S_D3[0]}, 8192")
    e(f"s_mov_b32 s{S_D4[0]}, s10"); e(f"s_add_u32 s{S_D4[1]}, s10, 4096"); e(f"s_add_u32 s{S_D4[2]}, s10, 8192")
    LN = TA[1]
    e(f"v_lshlrev_b32 v{LN}, 4, v0")
    e(f"v_add_u32 v{V_DMA}, s{S_M0B}, v{LN}")
    e(f"v_add_u32 v{V_RA}, {SLOT['A']}, v{LN}"); e(f"v_add_u32 v{V_RB}, {SLOT['B']}, v{LN}")
    e(f"v_add_u32 v{TA[0]}, {SLOT['D']}, v{LN}")
    e("v_and_b32 v8, 31, v0"); e("v_lshlrev_b32 v8, 2, v8"); e("v_lshrrev_b32 v9, 5, v0"); e("v_lshlrev_b32 v9, 13, v9"); e("v_add_u32 v8, v8, v9")
    def partA2():
        e("v_lshrrev_b32 v9, 3, v0")
        e(f"v_xor_b32 v{V_P1}, 64, v{V_DMA}")
        e("v_cmp_lt_u32 vcc, 5, v9"); e("s_nop 1"); e(f"v_cndmask_b32 v{V_PC}, v{V_DMA}, v{V_P1}, vcc")
        e("v_cmp_gt_u32 vcc, 4, v9"); e("s_nop 1"); e(f"v_cndmask_b32 v{V_PB}, v{V_DMA}, v{V_P1}, vcc")
        e("v_lshrrev_b32 v16, 5, v0"); e("v_bfe_u32 v17, v0, 4, 1"); e("v_bfe_u32 v18, v0, 2, 2")
        e("v_and_b32 v19, 1, v0"); e("v_bfe_u32 v21, v0, 1, 1")
        e("v_lshlrev_b32 v17, 1, v17"); e("v_add_u32 v17, v17, v19")
        e("v_lshrrev_b32 v19, 1, v18"); e("v_lshlrev_b32 v19, 2, v19"); e("v_xor_b32 v17, v17, v19")
        e("v_lshlrev_b32 v16, 3, v16"); e("v_add_u32 v16, v16, v18"); e("v_mul_u32_u24 v16, 1152, v16")
        e("v_lshlrev_b32 v21, 3, v21"); e("v_add_u32 v16, v16, v21")
        e(f"v_lshlrev_b32 v17, 4, v17"); e(f"v_add_u32 v{V_E}, v16, v17"); e(f"v_xor_b32 v17, 64, v17"); e(f"v_add_u32 v{V_O}, v16, v17")
        e("v_cmp_lt_u32 vcc, 1, v9"); e("s_waitcnt lgkmcnt(0)"); e("s_nop 0"); e(f"v_cndmask_b32 v{V_PA}, v{V_DMA}, v{V_P1}, vcc")
        make_srd(e, S_W4, 32, 576 * 4608 * 2)
        for i in range(4): e(f"v_mov_b32 v{V_W+i}, 0")
        e("s_nop 1")
        for dt in range(18):
            e(f"v_mfma_f32_32x32x16_bf16 {outreg(dt)}, {vr(V_W,4)}, {vr(V_W,4)}, 0")
    if fused:
        partA2()
        e("s_waitcnt vmcnt(0)")
        e("s_barrier")
        stamp(e, 5, 'pre')
    for pre, ld in dma_instrs("S1", "D"):
        for p in pre: e(p)
        if pre: e("s_nop 0")
        e(ld)
    for a in dma_advance("S1"): e(a)
    e("s_lshl_b32 s17, s9, 7")
    e(f"s_add_u32 s17, s17, {LY.ST2}")
    NST = LY.NSTAT
    assert NST <= 20
    sreg = ([64 + p for p in range(16)] + [40 + p for p in range(4)])[:NST]
    for p in range(NST):
        e(f"buffer_load_dword v{sreg[p]}, v8, {R}, s17 offen{SC}")
        if p != NST - 1: e("s_add_u32 s17, s17, 16384")
    e(f"s_mul_i32 s16, s9, 36864")
    e(f"s_add_u32 s16, s16, {LY.X1F}")
    for j in range(36):
        e(f"buffer_load_dwordx4 {ar(4*j,4)}, v{LN}, {R}, s16 offen offset:{(j%4)*1024}{SC}")
        if j % 4 == 3 and j != 35: e("s_add_u32 s16, s16, 4096")
    for pre, ld in dma_instrs("S1", "B"):
        for p in pre: e(p)
        if pre: e("s_nop 0")
        e(ld)
    for a in dma_advance("S1"): e(a)
    stamp(e, 1)
    if not fused: partA2()
    st = []
    for p in sreg[1:]: st.append(f"v_add_f32 v64, v64, v{p}")
    st += ["v_mov_b32 v65, v64", "s_nop 1", "v_permlane32_swap_b32 v64, v65",
           f"v_mul_f32 v64, {hexf(1/576)}, v64", f"v_mul_f32 v65, {hexf(1/576)}, v65", "v_fma_f32 v65, -v64, v64, v65",
           "v_max_f32 v65, 0, v65", f"v_add_f32 v65, {hexf(1e-5)}, v65", f"v_sqrt_f32 v{V_S}, v65", "s_nop 0", f"v_rcp_f32 v66, v{V_S}", "s_nop 0",
           f"v_mul_f32 v{V_B}, {hexf(GELU_C0)}, v66", "v_mul_f32 v67, v66, v66", "v_mul_f32 v67, v67, v66", f"v_mul_f32 v{V_A}, {hexf(GELU_C1)}, v67"]
    e("s_waitcnt vmcnt(45)")
    e("s_barrier")
    stamp(e, 2)
    P0 = ("S1", "D", TA[0])
    for m in range(NB): e.extend(rd(P0, m))
    e("s_waitcnt vmcnt(41)")
    e(f"s_waitcnt lgkmcnt({NB-2})")
    phase(e, s1_mfmas(0), P0, ("S1", "B"), ("S2", "C"), st, (0, 30), xwait=True)
    phase(e, s1_mfmas(1), ("S1", "B"), ("S2", "C"), ("S1", "A"), gelu_groups(V_H[0], range(4)) + cvts(V_H[0], range(8)), (3, 35))
    stamp(e, 3)
    e(f"s_mov_b32 s{S_CNT}, 8")
    e(".p2align 6")
    e.label("L3_mlp_loop")
    GA = Opt.gelu_split
    for half in range(2):
        Hn = V_H[(half + 1) & 1]
        s2, s2n = ("C", "D") if half == 0 else ("D", "C")
        s1, s1n = ("A", "B") if half == 0 else ("B", "A")
        phase(e, s2_mfmas(), ("S2", s2), ("S1", s1), ("S2", s2n), gelu_groups(Hn, range(GA)), (3, 36))
        gb = cvts(Hn, range(2 * GA))
        for g in range(GA, 4): gb += gelu_groups(Hn, [g]) + cvts(Hn, range(2 * g, 2 * g + 2))
        phase(e, s1_mfmas(half), ("S1", s1), ("S2", s2n), ("S1", s1n), gb, (0, 35))
    e(f"s_sub_u32 s{S_CNT}, s{S_CNT}, 1")
    e(f"s_cmp_lg_u32 s{S_CNT}, 0")
    e("s_cbranch_scc1 L3_mlp_loop")
    stamp(e, 4)
    H = V_H[1]
    early = Opt.fuse_l4 and Opt.early_wo
    tail34 = cvts(H, range(8)) + [f"v_subrev_u32 v{TA[0]}, s{S_M0B}, v{V_DMA}", "s_nop 0"]
    wo_loads = []
    if early:
        e("s_lshr_b32 s61, s2, 3"); e("s_and_b32 s61, s61, 3"); e("s_mul_i32 s61, s61, 180"); e(f"s_mul_i32 s62, s{S_W}, 9"); e("s_add_u32 s61, s61, s62")
        e("s_lshl_b32 s61, s61, 10"); e(f"s_add_u32 s61, s61, {LY.WOP}")
        for T in range(5):
            for g in range(3): e(f"s_add_u32 s{36+3*T+g}, s61, {T*36864 + g*4096}")
        def wl(T, k): return f"buffer_load_dwordx4 {ar(4*(9*T+k),4)}, v{TA[0]}, {R}, s{36+3*T+k//4} offen offset:{(k%4)*1024} sc1"
        wo_loads = [wl(T, k) for k in range(9) for T in range(4)]
    phase(e, s2_mfmas(), ("S2", "C"), ("S2", "D"), ("S2", "D"), gelu_groups(H, range(4)), (9, 36), last_vm=0, tail=tail34, early_dma=True)
    phase(e, s2_mfmas(), ("S2", "D"), None, None, wo_loads or None, (0, 36))
    stamp(e, 5)
    e(f"s_lshl_b32 s10, s6, 6")
    e(f"s_add_u32 s10, s10, s9")
    e(f"s_mul_i32 s10, s10, 36864")
    e(f"s_add_u32 s10, s10, {LY.PART}")
    for g in range(9): e(f"s_add_u32 s{51+g}, s10, {g*4096}")
    e("s_nop 9")
    tb = [48, 56, 64, 72]
    order = list(range(11, 18)) + list(range(11))
    for n, dt in enumerate(order):
        isv_, b = OUT(dt)
        t = tb[n % 4]
        if isv_:
            for j in range(8): e(f"v_cvt_pk_bf16_f32 v{t+j}, v{b+2*j}, v{b+2*j+1}")
        else:
            for j in range(16): e(f"v_accvgpr_read_b32 v{16+j}, a{b+j}")
            for j in range(8): e(f"v_cvt_pk_bf16_f32 v{t+j}, v{16+2*j}, v{16+2*j+1}")
        ks = 2 * dt
        e(f"buffer_store_dwordx4 {vr(t,4)}, v{TA[0]}, {R}, s{51 + ks//4} offen offset:{(ks%4)*1024}")
        e(f"buffer_store_dwordx4 {vr(t+4,4)}, v{TA[0]}, {R}, s{51 + ks//4} offen offset:{(ks%4+1)*1024}")
        if early and dt == 13:
            for k in range(9): e(wl(4, k))
    if early: e("s_mov_b32 s66, 1")
    if Opt.fuse_l4:
        e(f"s_mul_i32 s48, s7, {gen_pre.CSTEP}"); e(f"s_add_u32 s48, s48, {gen_pre.CNT_P}")
        gen_pre.publish(e, 48)
        e("s_branch K2_final")
    else:
        fin(e)

A_K0OFF, A_KXOFF, A_VOFF = 1, 2, 3
A_M = 8
A_O = 32
A_S = [160, 192]
A_P = [224, 240]
NSET = 2
AG_SET = 0
def SET(i): return AG_SET + 28 * (i % NSET)
AG_Q0 = 56
AG_QX = 88
SA_K, SA_KX, SA_V = 16, 17, 18
SA_CNT = 22
NQ = 8

def attn_loads(st):
    b = SET(st); R = f"s[{S_SRD}:{S_SRD+3}]"
    o = [f"buffer_load_dwordx4 {ar(b,4)}, v{A_K0OFF}, {R}, s{SA_K} offen",
         f"buffer_load_dwordx4 {ar(b+4,4)}, v{A_K0OFF}, {R}, s{SA_K} offen offset:1024",
         f"buffer_load_dword a{b+24}, v{A_KXOFF}, {R}, s{SA_KX} offen"]
    for i in range(4):
        o.append(f"buffer_load_dwordx4 {ar(b+8+4*i,4)}, v{A_VOFF}, {R}, s{SA_V} offen" + (f" offset:{608*i}" if i else ""))
    o += [f"s_add_u32 s{SA_K}, s{SA_K}, 2048", f"s_add_u32 s{SA_KX}, s{SA_KX}, 256", f"s_add_u32 s{SA_V}, s{SA_V}, 2432"]
    return o
def qk(kp, qi, S):
    b = SET(kp)
    return [f"v_mfma_f32_32x32x4_2b_bf16 {vr(S,32)}, {ar(b+24,2)}, {ar(AG_QX+2*qi,2)}, 0",
            f"v_mfma_f32_32x32x16_bf16 {vr(S,16)}, {ar(b,4)}, {ar(AG_Q0+4*qi,4)}, {vr(S,16)}",
            f"v_mfma_f32_32x32x16_bf16 {vr(S+16,16)}, {ar(b+4,4)}, {ar(AG_Q0+4*qi,4)}, {vr(S+16,16)}"]
def pv(kp, qi, P):
    b = SET(kp); O = A_O + 16 * qi
    return [f"v_mfma_f32_32x32x16_bf16 {vr(O,16)}, {ar(b+8+4*i,4)}, {vr(P+4*i,4)}, {vr(O,16)}" for i in range(4)]
def expcvt(n):
    S = A_S[n & 1]; P = A_P[n & 1]
    ex = [f"v_exp_f32 v{S+i}, v{S+i}" for i in range(32)]
    cv = [f"v_cvt_pk_bf16_f32 v{P+j}, v{S+2*j}, v{S+2*j+1}" for j in range(16)]
    o = ex[0:4]
    for j in range(14): o += [cv[j], ex[2*j+4], ex[2*j+5]]
    o += [cv[14], cv[15]]
    return o

def gen_attn(e, force_slow=False):
    R = f"s[{S_SRD}:{S_SRD+3}]"
    e.label("L3_attn")
    e("s_sub_u32 s7, s7, 16")
    e("s_lshr_b32 s9, s7, 2")
    e("s_lshl_b32 s10, s6, 2")
    e("s_add_u32 s9, s9, s10")
    e("s_and_b32 s10, s7, 3")
    e("s_lshl_b32 s10, s10, 4")
    e(f"s_and_b32 s31, s{S_W}, 1"); e("s_lshl_b32 s31, s31, 3"); e("s_add_u32 s10, s10, s31")
    e(f"s_lshr_b32 s31, s{S_W}, 1")
    e(f"v_lshlrev_b32 v{A_K0OFF}, 4, v0")
    e(f"v_lshlrev_b32 v{A_KXOFF}, 2, v0")
    e("v_and_b32 v4, 31, v0")
    e("v_lshlrev_b32 v5, 4, v4")
    e("v_lshrrev_b32 v6, 5, v0")
    e("v_mul_u32_u24 v7, 304, v6")
    e("v_add_u32 v5, v5, v7")
    e("v_cmp_lt_u32 vcc, 18, v4")
    e("v_mov_b32 v7, 0x40000000")
    e("v_lshlrev_b32 v12, 2, v4")
    e(f"v_cndmask_b32 v{A_VOFF}, v5, v7, vcc")
    e("s_lshl_b32 s11, s9, 16")
    e("s_lshl_b32 s24, s9, 13")
    e(f"s_add_u32 s26, s11, {LY.KF0}")
    e(f"s_add_u32 s27, s24, {LY.KX}")
    e(f"s_mul_i32 s28, s9, {LY.VHEAD}")
    e(f"s_add_u32 s28, s28, {LY.VF}")
    e("s_lshl_b32 s23, s31, 15"); e(f"s_add_u32 s{SA_K}, s26, s23")
    e("s_lshl_b32 s23, s31, 12"); e(f"s_add_u32 s{SA_KX}, s27, s23")
    e(f"s_mul_i32 s23, s31, {16*2432}"); e(f"s_add_u32 s{SA_V}, s28, s23")
    for x in attn_loads(0): e(x)
    e("s_lshl_b32 s23, s31, 2"); e("s_add_u32 s34, s10, s23")
    e("s_xor_b32 s23, s23, 4"); e("s_add_u32 s35, s10, s23")
    for g, sg in enumerate((34, 35)):
        e(f"s_lshl_b32 s23, s{sg}, 10"); e("s_add_u32 s23, s23, s11"); e(f"s_add_u32 s23, s23, {LY.QF0}")
        for qi in range(4):
            e(f"buffer_load_dwordx4 {ar(AG_Q0+4*(4*g+qi),4)}, v{A_K0OFF}, {R}, s23 offen offset:{qi*1024}")
        e(f"s_lshl_b32 s23, s{sg}, 7"); e("s_add_u32 s23, s23, s24"); e(f"s_add_u32 s23, s23, {LY.QX}")
        for qi in range(4):
            e(f"buffer_load_dword a{AG_QX+2*(4*g+qi)}, v12, {R}, s23 offen offset:{qi*128}")
    for i in range(16): e(f"v_mov_b32 v{A_P[1]+i}, 0")
    for i in range(16): e(f"v_accvgpr_write_b32 a{SET(1)+8+i}, 0")
    for s_ in range(NSET): e(f"v_accvgpr_write_b32 a{SET(s_)+25}, 0")
    for qi in range(NQ): e(f"v_accvgpr_write_b32 a{AG_QX+2*qi+1}, 0")
    for qi in range(NQ): e(f"v_mfma_f32_32x32x16_bf16 {vr(A_O+16*qi,16)}, {vr(A_P[1],4)}, {vr(A_P[1],4)}, 0")
    stamp(e, 1)
    e("s_waitcnt vmcnt(0)")
    stamp(e, 2)
    q0 = qk(0, 0, A_S[0])
    e(q0[0]); e("s_nop 15"); e("s_nop 1"); e(q0[1]); e(q0[2])
    e("s_nop 10")
    e(f"s_mov_b32 s{SA_CNT}, 8")
    e(".p2align 6")
    e.label("L3_attn_loop")
    NB_ = 2 * NQ
    for n in range(NB_):
        kp, qi = divmod(n, NQ)
        n1 = (n + 1) % NB_; n0 = (n - 1) % NB_
        X, Ma, Mb = qk(n1 // NQ, n1 % NQ, A_S[n1 & 1]); p = pv(n0 // NQ, n0 % NQ, A_P[n0 & 1])
        va = expcvt(n)
        seq = []
        ld = attn_loads(kp + 1)
        if qi == NQ - 1: seq.append("s_waitcnt vmcnt(4)")
        cuts = eval(os.environ.get('ATT_CUTS', '[0, 8, 15, 22, 29, 35, 42, 48]')) if qi < 7 else [0, 9, 16, 23, 30, 36, 42, 48]
        mf = [X, p[0], p[1], Ma, Mb, p[2], p[3]]
        for k in range(7):
            if k == 1 and qi == 1: seq.append("s_waitcnt vmcnt(2)")
            seq.append(mf[k])
            if k == 0 and qi < 7 and not os.environ.get('ATT_NOLOAD'): seq.append(ld[qi])
            if k == 0 and qi == 7: seq += ld[7:9]
            if k == 3 and qi == 7: seq += ld[9:10]
            seq += va[cuts[k]:cuts[k + 1]]
        e.extend(seq)
    e(f"s_sub_u32 s{SA_CNT}, s{SA_CNT}, 1")
    e(f"s_cmp_lg_u32 s{SA_CNT}, 0")
    e("s_cbranch_scc1 L3_attn_loop")
    e("s_nop 1")
    for m in pv(1, NQ - 1, A_P[1]): e(m)
    e("s_nop 15")
    stamp(e, 5)
    e(f"s_mul_i32 s23, s{S_W}, 12288"); e(f"v_add_u32 v4, s23, v{A_K0OFF}")
    for i in range(4):
        for q in range(3):
            e(f"ds_write_b128 v4, {vr(A_O+16*(4+i)+4*q,4)} offset:{(3*i+q)*1024}")
    e(f"s_xor_b32 s23, s{S_W}, 2"); e("s_mul_i32 s23, s23, 12288"); e(f"v_add_u32 v4, s23, v{A_K0OFF}")
    e("s_waitcnt lgkmcnt(0)"); e("s_barrier")
    for i in range(4):
        for q in range(3):
            e(f"ds_read_b128 {vr(A_S[0]+12*i+4*q,4)}, v4 offset:{(3*i+q)*1024}")
    e("s_waitcnt lgkmcnt(0)")
    for i in range(4):
        for r in range(11): e(f"v_add_f32 v{A_O+16*i+r}, v{A_O+16*i+r}, v{A_S[0]+12*i+r}")
    e.label("L3_attn_fin")
    e("s_mul_i32 s23, s34, 36864")
    e(f"s_add_u32 s23, s23, {LY.OF}")
    e("s_lshl_b32 s24, s9, 10")
    e("s_add_u32 s24, s24, s23")
    e("s_lshr_b32 s25, s9, 3")
    e("s_add_u32 s25, s25, 32")
    e("s_lshl_b32 s25, s25, 10")
    e("s_add_u32 s25, s25, s23")
    e("s_lshr_b32 s29, s9, 2"); e("s_and_b32 s29, s29, 1"); e("s_lshl_b32 s29, s29, 9")
    e("s_add_u32 s25, s25, s29")
    e("s_and_b32 s29, s9, 3"); e("s_lshl_b32 s29, s29, 2")
    e("s_add_u32 s25, s25, s29")
    e("s_mov_b64 s[32:33], %d" % (0 if force_slow else -1))
    for qi in range(4):
        O = A_O + 16 * qi
        e(f"v_mov_b32 v4, v{O+10}")
        e(f"v_mov_b32 v5, v{O+10}")
        e("s_nop 1")
        e("v_permlane32_swap_b32 v4, v5")
        e(f"v_cmp_le_f32 vcc, {hexf(2.0**-60)}, v4")
        e("s_and_b64 s[32:33], s[32:33], vcc")
        e(f"v_cmp_ge_f32 vcc, {hexf(2.0**100)}, v4")
        e("s_and_b64 s[32:33], s[32:33], vcc")
        e("v_rcp_f32 v5, v4")
        e("v_mov_b32 v6, 0")
        for r in range(10): e(f"v_mul_f32 v{O+r}, v{O+r}, v5")
        for r in range(10): e(f"v_fmac_f32 v6, 0, v{O+r}")
        e("v_cmp_o_f32 vcc, v6, v6")
        e("s_and_b64 s[32:33], s[32:33], vcc")
    e("s_cmp_eq_u32 s30, 0")
    e("s_cbranch_scc0 L3_attn_store")
    e("s_cmp_eq_u64 s[32:33], exec")
    e("s_cbranch_scc0 L3_attn_slow")
    e.label("L3_attn_store")
    e("v_and_b32 v4, 31, v0")
    e("v_lshlrev_b32 v4, 4, v4")
    for qi in range(4):
        O = A_O + 16 * qi
        t = A_P[0] + 8 * (qi % 4)
        for j in range(5): e(f"v_cvt_pk_bf16_f32 v{t+j}, v{O+2*j}, v{O+2*j+1}")
        e(f"buffer_store_dwordx4 {vr(t,4)}, v{A_K0OFF}, {R}, s24 offen")
        e("s_mov_b64 exec, 0xffffffff")
        e(f"buffer_store_dword v{t+4}, v4, {R}, s25 offen")
        e("s_mov_b64 exec, -1")
        if qi != 3:
            e("s_add_u32 s24, s24, 36864")
            e("s_add_u32 s25, s25, 36864")
    if Opt.fuse_l4:
        e(f"s_add_u32 s{gen_pre.S_DBG}, s4, {LY.CNT}"); e(f"s_addc_u32 s{gen_pre.S_DBG+1}, s5, 0")
        e("s_lshr_b32 s48, s2, 3"); e("s_and_b32 s48, s48, 3"); e(f"s_mul_i32 s48, s48, {gen_pre.CSTEP}"); e(f"s_add_u32 s48, s48, {gen_pre.CNT_O}")
        gen_pre.publish(e, 48)
        e("s_mov_b32 s66, 0")
        e("s_branch K2_final")
    else:
        fin(e)
    e.label("L3_attn_slow")
    M = A_M
    e("s_mov_b32 s30, 1")
    e("s_mov_b32 s16, s26"); e("s_mov_b32 s17, s27"); e("s_mov_b32 s18, s28")
    for i in range(64): e(f"v_mov_b32 v{A_O+i}, 0")
    for qi in range(4): e(f"v_mov_b32 v{M+qi}, 0xff800000")
    e(f"s_mov_b32 s{SA_CNT}, 32")
    e.label("L3_attn_slow_loop")
    e("s_waitcnt vmcnt(0)")
    for x in attn_loads(0): e(x)
    e("s_waitcnt vmcnt(0)")
    for qi in range(4):
        S = A_S[0]; P = A_P[0]; O = A_O + 16 * qi
        X, Ma, Mb = qk(0, qi, S)
        e(X); e("s_nop 15"); e("s_nop 1"); e(Ma); e(Mb)
        e("s_nop 11")
        e(f"v_max3_f32 v4, v{S}, v{S+1}, v{S+2}")
        for i in range(3, 31, 2): e(f"v_max3_f32 v4, v4, v{S+i}, v{S+i+1}")
        e(f"v_max_f32 v4, v4, v{S+31}")
        e("v_mov_b32 v5, v4")
        e("s_nop 1")
        e("v_permlane32_swap_b32 v4, v5")
        e("v_max_f32 v4, v4, v5")
        e(f"v_max_f32 v4, v4, v{M+qi}")
        e(f"v_sub_f32 v5, v{M+qi}, v4")
        e("v_exp_f32 v5, v5")
        e(f"v_mov_b32 v{M+qi}, v4")
        for i in range(32): e(f"v_sub_f32 v{S+i}, v{S+i}, v4")
        for i in range(32): e(f"v_exp_f32 v{S+i}, v{S+i}")
        for i in range(16): e(f"v_mul_f32 v{O+i}, v{O+i}, v5")
        for j in range(16): e(f"v_cvt_pk_bf16_f32 v{P+j}, v{S+2*j}, v{S+2*j+1}")
        e("s_nop 1")
        for m in pv(0, qi, P): e(m)
        e("s_nop 11")
    e(f"s_sub_u32 s{SA_CNT}, s{SA_CNT}, 1")
    e(f"s_cmp_lg_u32 s{SA_CNT}, 0")
    e("s_cbranch_scc1 L3_attn_slow_loop")
    e("s_nop 7")
    e("s_branch L3_attn_fin")

def gen(force_slow=False, only=None):
    e = Emit()
    kernel_head(e, NAME)
    Diag.kid = 2
    e("s_cmp_ge_u32 s2, 256")
    e("s_cbranch_scc1 L3_exit")
    e(f"s_load_dwordx2 s[4:5], s[0:1], {KA_WS}")
    e("s_and_b32 s6, s2, 7")
    e("s_lshr_b32 s7, s2, 3")
    e("v_lshrrev_b32 v1, 6, v0")
    e("v_and_b32 v0, 63, v0")
    e(f"v_readfirstlane_b32 s{S_W}, v1")
    e("s_mov_b32 s30, 0")
    code_prefetch(e, NAME, "L3_exit", 3, vaddr=16, vtmp=17, vdst=20, sp=60)
    e("s_waitcnt lgkmcnt(0)")
    make_srd(e, S_SRD, 4, LY.WS_END)
    stamp(e, 0, 'any')
    dbg_start(e)
    if Opt.fuse_l2: gen_pre.gen_prephase(e)
    e("s_cmp_lt_u32 s7, 16")
    if only == "mlp":
        e("s_cbranch_scc0 L3_exit")
    else:
        e("s_cbranch_scc0 L3_attn")
    if only == "attn":
        e("s_branch L3_exit")
    gen_mlp(e)
    gen_attn(e, force_slow)
    if Opt.fuse_l4: gen_l4.final(e)
    e.label("L3_exit")
    e("s_endpgm")
    return e.text()

if __name__ == "__main__":
    t = gen()
    errs = check(t, "l3")
    for x in errs: print(x)
    print("instrs", sum(1 for l in t.split("\n") if l.startswith("    ")), "hazard errs", len(errs))
    open("l3.s", "w").write(t)
```

```python
from gen_common import *
NAME = "l4_kernel"
LDS_BYTES = 4 * 18 * 1024
S_WS = 12; S_OUT = 16
def gen():
    e = Emit()
    kernel_head(e, NAME)
    Diag.kid = 3
    e("s_cmp_ge_u32 s2, 256")
    e("s_cbranch_scc1 L4_exit")
    e(f"s_load_dwordx2 s[4:5], s[0:1], {KA_WS}")
    e(f"s_load_dwordx2 s[6:7], s[0:1], {KA_OUT}")
    e("v_lshrrev_b32 v1, 6, v0")
    e("v_and_b32 v0, 63, v0")
    e("v_readfirstlane_b32 s8, v1")
    e("s_lshr_b32 s9, s2, 5"); e("s_lshl_b32 s9, s9, 3"); e("s_and_b32 s10, s2, 7"); e("s_add_u32 s9, s9, s10")
    e("s_lshr_b32 s10, s2, 3"); e("s_and_b32 s10, s10, 3")
    e("v_lshlrev_b32 v1, 4, v0")
    code_prefetch(e, NAME, "L4_exit", 1, vaddr=250, vtmp=251, vdst=252, sp=60)
    e("s_waitcnt lgkmcnt(0)")
    make_srd(e, S_WS, 4, LY.WS_END)
    make_srd(e, S_OUT, 6, 2048 * 576 * 2)
    stamp(e, 0, 'any')
    dbg_start(e)
    W = lambda T, k: 4 * (9 * T + k)
    OFR = 8
    ACC = 44
    PB = 124
    VG = 2
    e("s_mul_i32 s20, s9, 36"); e("s_mul_i32 s21, s8, 9"); e("s_add_u32 s20, s20, s21"); e("s_lshl_b32 s20, s20, 10")
    e(f"s_add_u32 s22, s20, {LY.OF}")
    e("s_mul_i32 s23, s10, 180"); e("s_add_u32 s23, s23, s21"); e("s_lshl_b32 s23, s23, 10"); e(f"s_add_u32 s23, s23, {LY.WOP}")
    for k in range(9):
        e(f"buffer_load_dwordx4 {vr(OFR+4*k,4)}, v1, s[{S_WS}:{S_WS+3}], s22 offen offset:{(k%4)*1024}")
        if k % 4 == 3: e("s_add_u32 s22, s22, 4096")
    sreg = [24, 25, 26, 27, 28]
    for T in range(5):
        e(f"s_add_u32 s{sreg[T]}, s23, {T*36*1024}")
    for k in range(9):
        for T in range(5):
            e(f"buffer_load_dwordx4 {ar(W(T,k),4)}, v1, s[{S_WS}:{S_WS+3}], s{sreg[T]} offen offset:{(k%4)*1024}")
        if k % 4 == 3:
            for T in range(5): e(f"s_add_u32 s{sreg[T]}, s{sreg[T]}, 4096")
    e("v_and_b32 v3, 31, v0"); e("v_lshlrev_b32 v4, 2, v3")
    e("s_lshl_b32 s29, s9, 7"); e(f"s_add_u32 s29, s29, {LY.G}")
    total = 54
    def mf(T, k):
        return f"v_mfma_f32_32x32x16_bf16 {vr(ACC+16*T,16)}, {ar(W(T,k),4)}, {vr(OFR+4*k,4)}, " + ("0" if k == 0 else vr(ACC + 16 * T, 16))
    e("s_mul_i32 s30, s9, 36"); e("s_mul_i32 s31, s10, 9"); e("s_add_u32 s30, s30, s31"); e("s_add_u32 s30, s30, s8"); e("s_lshl_b32 s30, s30, 10")
    def unit_loads(i):
        o = []
        o.append(f"s_add_u32 s32, s30, {LY.X1F + i*4096}")
        o.append(f"buffer_load_dwordx4 {vr(PB+36*i,4)}, v1, s[{S_WS}:{S_WS+3}], s32 offen")
        for s in range(8):
            o.append(f"s_add_u32 s32, s30, {LY.PART + s*64*36*1024 + i*4096}")
            o.append(f"buffer_load_dwordx4 {vr(PB+36*i+4*(s+1),4)}, v1, s[{S_WS}:{S_WS+3}], s32 offen")
        return o
    issued = total
    extra = 0
    stamp(e, 1, 'any')
    for k in range(9):
        need_done = 9 + 5 * (k + 1)
        e(f"s_waitcnt vmcnt({min(63, total + extra - need_done)})")
        if k == 0: stamp(e, 2, 'any')
        for T in range(5): e(mf(T, k))
        if k == 2:
            e(f"buffer_load_dword v{VG}, v4, s[{S_WS}:{S_WS+3}], s29 offen"); extra += 1
            e.extend(unit_loads(0)); extra += 9
        if k == 4:
            e.extend(unit_loads(1)); extra += 9
    stamp(e, 3, 'any')
    e("s_cmp_eq_u32 s8, 0")
    e("s_cbranch_scc0 L4_no3a")
    e.extend(unit_loads(2))
    e.label("L4_no3a")
    e("s_mul_i32 s33, s8, 18432")
    e("v_add_u32 v5, s33, v1")
    e("s_nop 7")
    for u in range(9):
        T, hfq = divmod(u, 2)
        b = ACC + 16 * T + 8 * hfq
        e(f"ds_write_b128 v5, {vr(b,4)} offset:{(2*u)*1024}")
        e(f"ds_write_b128 v5, {vr(b+4,4)} offset:{(2*u+1)*1024}")
    e("s_waitcnt lgkmcnt(0)")
    e("s_barrier")
    stamp(e, 4, 'any')
    e("s_lshl_b32 s33, s8, 11")
    e("v_add_u32 v5, s33, v1")
    e("v_add_u32 v9, 36864, v5")
    e("s_mov_b32 s34, 0x00003f80"); e("s_mov_b32 s35, 0x3f800000")
    e("v_lshrrev_b32 v6, 5, v0"); e("v_lshlrev_b32 v6, 4, v6")
    e("s_movk_i32 s36, 1152")
    e("v_mul_lo_u32 v7, v3, s36"); e("v_add_u32 v7, v7, v6")
    e("s_mul_i32 s37, s9, 36864"); e("s_mul_i32 s38, s10, 288"); e("s_add_u32 s37, s37, s38"); e("s_lshl_b32 s38, s8, 5"); e("s_add_u32 s37, s37, s38")
    def unit2(i, R, B, src, vm):
        e(f"s_waitcnt vmcnt({vm})")
        for j in range(4):
            e(f"v_lshlrev_b32 v{B+2*j}, 16, v{src+j}")
            e(f"v_and_b32 v{B+2*j+1}, 0xffff0000, v{src+j}")
        for s in range(8):
            for j in range(4):
                e(f"v_dot2c_f32_bf16 v{B+2*j}, s34, v{src+4*(s+1)+j}")
                e(f"v_dot2c_f32_bf16 v{B+2*j+1}, s35, v{src+4*(s+1)+j}")
        e("s_waitcnt lgkmcnt(0)")
        for j in range(8):
            e(f"v_add_f32 v{R+j}, v{R+j}, v{R+8+j}")
            e(f"v_add_f32 v{R+16+j}, v{R+16+j}, v{R+24+j}")
        for j in range(8): e(f"v_add_f32 v{R+j}, v{R+j}, v{R+16+j}")
        for j in range(8): e(f"v_sub_f32 v{R+j}, v{R+j}, v{B+j}")
        for j in range(8): e(f"v_fma_f32 v{R+j}, v{R+j}, v{VG}, v{B+j}")
        for j in range(4): e(f"v_cvt_pk_bf16_f32 v{88+j}, v{R+2*j}, v{R+2*j+1}")
        e(f"buffer_store_dwordx4 v[88:91], v7, s[{S_OUT}:{S_OUT+3}], s37 offen offset:{i*128}")
    def reads(i):
        for wv in range(4):
            ad = "v5" if wv < 2 else "v9"
            e(f"ds_read_b128 {vr(44+8*wv,4)}, {ad} offset:{(wv%2)*18432 + (8*i)*1024}")
            e(f"ds_read_b128 {vr(44+8*wv+4,4)}, {ad} offset:{(wv%2)*18432 + (8*i+1)*1024}")
    e("s_cmp_eq_u32 s8, 0")
    e("s_cbranch_scc0 L4_two")
    reads(0); unit2(0, 44, 80, PB, 18)
    reads(1); unit2(1, 44, 80, PB + 36, 10)
    reads(2); unit2(2, 44, 80, PB + 72, 2)
    fin(e)
    e.label("L4_two")
    reads(0); unit2(0, 44, 80, PB, 9)
    reads(1); unit2(1, 44, 80, PB + 36, 1)
    fin(e)
    e.label("L4_exit")
    e("s_endpgm")
    return e.text()
if __name__ == "__main__":
    t = gen()
    errs = check(t, "l4")
    for x in errs: print(x)
    print("instrs", sum(1 for l in t.split("\n") if l.startswith("    ")), "hazard errs", len(errs))


def final(e):
    import gen_pre as P
    R = f"s[{S_WS}:{S_WS+3}]"
    e.label("K2_final")
    e("s_mov_b64 exec, -1")
    e(f"s_load_dwordx2 s[6:7], s[0:1], {KA_OUT}")
    e(f"s_add_u32 s{P.S_DBG}, s4, {LY.CNT}"); e(f"s_addc_u32 s{P.S_DBG+1}, s5, 0")
    e("v_mbcnt_lo_u32_b32 v0, -1, 0"); e("v_mbcnt_hi_u32_b32 v0, -1, v0")
    e("s_lshr_b32 s9, s2, 5"); e("s_lshl_b32 s9, s9, 3"); e("s_and_b32 s10, s2, 7"); e("s_add_u32 s9, s9, s10")
    e("s_lshr_b32 s10, s2, 3"); e("s_and_b32 s10, s10, 3")
    e("v_lshlrev_b32 v1, 4, v0")
    W = lambda T, k: 4 * (9 * T + k)
    OFR = 8; ACC = 44; PB = 124; VG = 2
    e("s_waitcnt lgkmcnt(0)")
    make_srd(e, S_OUT, 6, 2048 * 576 * 2)
    e("s_mul_i32 s21, s8, 9")
    if Opt.early_wo:
        e("s_cmp_eq_u32 s66, 1"); e("s_cbranch_scc1 K2_f_havew")
    e(f"s_movk_i32 s48, {P.CNT_WO}")
    P.wait_counters(e, [(48, 12)])
    e("s_barrier")
    e("s_mul_i32 s23, s10, 180"); e("s_add_u32 s23, s23, s21"); e("s_lshl_b32 s23, s23, 10"); e(f"s_add_u32 s23, s23, {LY.WOP}")
    sreg = [24, 25, 26, 27, 28]
    for T in range(5): e(f"s_add_u32 s{sreg[T]}, s23, {T*36*1024}")
    for k in range(9):
        for T in range(5):
            e(f"buffer_load_dwordx4 {ar(W(T,k),4)}, v1, {R}, s{sreg[T]} offen offset:{(k%4)*1024} sc1")
        if k % 4 == 3:
            for T in range(5): e(f"s_add_u32 s{sreg[T]}, s{sreg[T]}, 4096")
    e.label("K2_f_havew")
    e("v_and_b32 v3, 31, v0"); e("v_lshlrev_b32 v4, 2, v3")
    e("s_lshl_b32 s29, s9, 7"); e(f"s_add_u32 s29, s29, {LY.G}")
    e(f"buffer_load_dword v{VG}, v4, {R}, s29 offen")
    e("s_lshr_b32 s48, s9, 2"); e(f"s_mul_i32 s48, s48, {P.CSTEP}"); e(f"s_add_u32 s48, s48, {P.CNT_P}")
    e("s_lshr_b32 s49, s9, 4"); e(f"s_mul_i32 s49, s49, {P.CSTEP}"); e(f"s_add_u32 s49, s49, {P.CNT_O}")
    stamp(e, 6)
    P.wait_counters(e, [(48, 8), (49, 32)], sleep=Opt.final_sleep)
    e("s_barrier")
    e("s_mul_i32 s20, s9, 36"); e("s_add_u32 s20, s20, s21"); e("s_lshl_b32 s20, s20, 10"); e(f"s_add_u32 s22, s20, {LY.OF}")
    for k in range(9):
        e(f"buffer_load_dwordx4 {vr(OFR+4*k,4)}, v1, {R}, s22 offen offset:{(k%4)*1024} sc1")
        if k % 4 == 3: e("s_add_u32 s22, s22, 4096")
    e("s_mul_i32 s30, s9, 36"); e("s_mul_i32 s31, s10, 9"); e("s_add_u32 s30, s30, s31"); e("s_add_u32 s30, s30, s8"); e("s_lshl_b32 s30, s30, 10")
    def unit_loads(i):
        o = [f"s_add_u32 s32, s30, {LY.X1F + i*4096}", f"buffer_load_dwordx4 {vr(PB+36*i,4)}, v1, {R}, s32 offen sc1"]
        for s in range(8):
            o.append(f"s_add_u32 s32, s30, {LY.PART + s*64*36*1024 + i*4096}")
            o.append(f"buffer_load_dwordx4 {vr(PB+36*i+4*(s+1),4)}, v1, {R}, s32 offen sc1")
        return o
    e.extend(unit_loads(0)); e.extend(unit_loads(1))
    e("s_cmp_eq_u32 s8, 0"); e("s_cbranch_scc0 K2_f_no3")
    e.extend(unit_loads(2))
    e.label("K2_f_no3")
    for k in range(9):
        e(f"s_waitcnt vmcnt({(8 - k) + 18})")
        for T in range(5):
            e(f"v_mfma_f32_32x32x16_bf16 {vr(ACC+16*T,16)}, {ar(W(T,k),4)}, {vr(OFR+4*k,4)}, " + ("0" if k == 0 else vr(ACC + 16 * T, 16)))
    e("s_mul_i32 s33, s8, 18432"); e("v_add_u32 v5, s33, v1")
    e("s_nop 9")
    for u in range(9):
        T, hfq = divmod(u, 2); b = ACC + 16 * T + 8 * hfq
        e(f"ds_write_b128 v5, {vr(b,4)} offset:{(2*u)*1024}")
        e(f"ds_write_b128 v5, {vr(b+4,4)} offset:{(2*u+1)*1024}")
    e("s_waitcnt lgkmcnt(0)"); e("s_barrier")
    e("s_lshl_b32 s33, s8, 11"); e("v_add_u32 v5, s33, v1"); e("v_add_u32 v9, 36864, v5")
    e("s_mov_b32 s36, 0x00003f80"); e("s_mov_b32 s37, 0x3f800000")
    e("v_lshrrev_b32 v6, 5, v0"); e("v_lshlrev_b32 v6, 4, v6"); e("s_movk_i32 s38, 1152"); e("v_mul_lo_u32 v7, v3, s38"); e("v_add_u32 v7, v7, v6")
    e("s_mul_i32 s39, s9, 36864"); e("s_mul_i32 s40, s10, 288"); e("s_add_u32 s39, s39, s40"); e("s_lshl_b32 s40, s8, 5"); e("s_add_u32 s39, s39, s40")
    def unit(i, vm):
        Rr, B, src = 44, 80, PB + 36 * i
        for wv in range(4):
            ad = "v5" if wv < 2 else "v9"
            e(f"ds_read_b128 {vr(44+8*wv,4)}, {ad} offset:{(wv%2)*18432 + (8*i)*1024}")
            e(f"ds_read_b128 {vr(44+8*wv+4,4)}, {ad} offset:{(wv%2)*18432 + (8*i+1)*1024}")
        e(f"s_waitcnt vmcnt({vm})")
        for j in range(4):
            e(f"v_lshlrev_b32 v{B+2*j}, 16, v{src+j}"); e(f"v_and_b32 v{B+2*j+1}, 0xffff0000, v{src+j}")
        for s in range(8):
            for j in range(4):
                e(f"v_dot2c_f32_bf16 v{B+2*j}, s36, v{src+4*(s+1)+j}"); e(f"v_dot2c_f32_bf16 v{B+2*j+1}, s37, v{src+4*(s+1)+j}")
        e("s_waitcnt lgkmcnt(0)")
        for j in range(8):
            e(f"v_add_f32 v{Rr+j}, v{Rr+j}, v{Rr+8+j}"); e(f"v_add_f32 v{Rr+16+j}, v{Rr+16+j}, v{Rr+24+j}")
        for j in range(8): e(f"v_add_f32 v{Rr+j}, v{Rr+j}, v{Rr+16+j}")
        for j in range(8): e(f"v_sub_f32 v{Rr+j}, v{Rr+j}, v{B+j}")
        for j in range(8): e(f"v_fma_f32 v{Rr+j}, v{Rr+j}, v{VG}, v{B+j}")
        for j in range(4): e(f"v_cvt_pk_bf16_f32 v{88+j}, v{Rr+2*j}, v{Rr+2*j+1}")
        e(f"buffer_store_dwordx4 v[88:91], v7, s[{S_OUT}:{S_OUT+3}], s39 offen offset:{i*128}")
    e("s_cmp_eq_u32 s8, 0"); e("s_cbranch_scc0 K2_f_two")
    unit(0, 18); unit(1, 10); unit(2, 2)
    fin(e)
    e.label("K2_f_two")
    unit(0, 9); unit(1, 1)
    fin(e)
```

```python
from gen_common import *
S_WS = 12; S_SRC = 16; S_XB = 20; S_RP = 36
S_DBG = 34
IMG2 = 73728
XCH = 147456
CSTEP = 128
CNT_X, CNT_W, CNT_WO, CNT_P, CNT_O = 0, 16 * CSTEP, 24 * CSTEP, 25 * CSTEP, 41 * CSTEP

def lane_tr_parts(e, vhf, vsub, vr_, vsig):
    e(f"v_lshrrev_b32 v{vhf}, 5, v0"); e(f"v_bfe_u32 v{vsub}, v0, 4, 1"); e(f"v_bfe_u32 v{vr_}, v0, 2, 2")
    e(f"v_and_b32 v{vsig}, 1, v0"); e(f"v_lshlrev_b32 v{vsig}, 1, v{vsig}"); e(f"v_bfe_u32 v15, v0, 1, 1"); e(f"v_or_b32 v{vsig}, v{vsig}, v15")

def publish(e, off_sgpr):
    e("s_waitcnt vmcnt(0)")
    e("s_barrier")
    lab = f"Lpub_{len(e.L)}"
    e("s_cmp_eq_u32 s8, 0"); e(f"s_cbranch_scc0 {lab}")
    e("s_mov_b64 exec, 1")
    e(f"v_mov_b32 v250, s{off_sgpr}"); e("v_mov_b32 v251, 1")
    e(f"global_atomic_add v250, v251, s[{S_DBG}:{S_DBG+1}] sc1")
    e("s_mov_b64 exec, -1")
    e.label(lab)

def wait_counters(e, waits, acquire=False, sleep=None):
    lab = f"Lwait_{len(e.L)}"
    e("s_cmp_eq_u32 s8, 0"); e(f"s_cbranch_scc0 {lab}_done")
    e("s_mov_b32 s50, 0x40000")
    e("s_mov_b64 exec, 1")
    for i, (off, n) in enumerate(waits): e(f"v_mov_b32 v{246+i}, s{off}")
    e.label(lab)
    for i, (off, n) in enumerate(waits): e(f"global_load_dword v{250+i}, v{246+i}, s[{S_DBG}:{S_DBG+1}] sc1")
    e("s_waitcnt vmcnt(0)")
    e("s_mov_b32 s51, 1")
    for i, (off, n) in enumerate(waits):
        e(f"v_readfirstlane_b32 s52, v{250+i}")
        e(f"s_cmp_ge_u32 s52, {n}"); e("s_cselect_b32 s51, s51, 0")
    e("s_cmp_eq_u32 s51, 1"); e(f"s_cbranch_scc1 {lab}_ok")
    slp = Opt.poll_sleep if sleep is None else sleep
    if slp: e(f"s_sleep {slp}")
    e("s_sub_u32 s50, s50, 1"); e("s_cmp_lg_u32 s50, 0"); e(f"s_cbranch_scc1 {lab}")
    e.label(f"{lab}_ok")
    e("s_mov_b64 exec, -1")
    if acquire: e("buffer_inv sc1")
    e.label(f"{lab}_done")

def gemm(e, NT, with_repack):
    tag = f"G{NT}"
    RB = 64 * NT
    KS = 16 * RB
    e(f"s_load_dwordx2 s[24:25], s[0:1], {KA_W2}")
    e(f"s_load_dwordx2 s[26:27], s[0:1], {KA_XA}")
    e("v_lshlrev_b32 v1, 4, v0")
    if NT == 2:
        e("v_lshrrev_b32 v5, 3, v0"); e("v_and_b32 v6, 7, v0"); e("v_bfe_u32 v7, v0, 4, 1"); e("v_lshlrev_b32 v7, 2, v7"); e("v_xor_b32 v6, v6, v7")
        e("v_mul_u32_u24 v5, 1152, v5"); e("v_lshlrev_b32 v6, 4, v6"); e("v_add_u32 v2, v5, v6"); e(f"v_add_u32 v3, {9216-1024}, v2")
        NP = 2
    else:
        for i in range(3):
            e(f"v_add_u32 v5, {64*i}, v0")
            e("v_mul_u32_u24 v6, 171, v5"); e("v_lshrrev_b32 v6, 11, v6")
            e("v_mul_u32_u24 v7, 12, v6"); e("v_sub_u32 v7, v5, v7")
            e("v_mul_u32_u24 v6, 1152, v6"); e("v_lshlrev_b32 v7, 4, v7"); e("v_add_u32 v6, v6, v7")
            e(f"v_subrev_u32 v{2+i}, {1024*i}, v6")
        NP = 3
    e("s_waitcnt lgkmcnt(0)")
    make_srd(e, S_SRC, 24, 576 * 576 * 2)
    make_srd(e, S_XB, 26, 2048 * 576 * 2)
    e("s_mul_i32 s28, s8, 18432"); e("s_add_u32 s28, s28, s10")
    e(f"s_mul_i32 s29, s8, {KS}")
    e("s_mul_i32 s31, s9, 36864"); e(f"s_add_u32 s40, s31, {LY.HS}")
    for st in range(3):
        for i in range(3):
            ch = 3 * st + i
            e(f"s_add_u32 s31, s28, {ch*4*18432}")
            e(f"s_add_u32 m0, s29, {4*ch*KS}")
            e(f"s_add_u32 s{46+i}, s40, {ch*4096}")
            for k in range(NP):
                e(f"buffer_load_dwordx4 v{2+k}, s[{S_SRC}:{S_SRC+3}], s31 offen" + (f" offset:{k*1024}" if k else "") + " lds")
        for i in range(3):
            ch = 3 * st + i
            for k in range(4):
                e(f"buffer_load_dwordx4 {ar(4*(4*ch+k),4)}, v1, s[{S_WS}:{S_WS+3}], s{46+i} offen offset:{k*1024}")
    nrp = 0
    if with_repack:
        repack_dma(e); nrp = 18
    stamp(e, 1, 'pre')
    lane_tr_parts(e, 5, 6, 7, 8)
    if NT == 2:
        e("v_lshlrev_b32 v9, 1, v6"); e("v_lshrrev_b32 v10, 1, v8"); e("v_add_u32 v9, v9, v10")
        e("v_lshrrev_b32 v10, 1, v7"); e("v_lshlrev_b32 v10, 2, v10"); e("v_xor_b32 v9, v9, v10"); e("v_lshlrev_b32 v9, 4, v9")
        e("v_and_b32 v10, 1, v8"); e("v_lshlrev_b32 v10, 3, v10"); e("v_add_u32 v9, v9, v10")
        e("v_lshlrev_b32 v10, 3, v5"); e("v_add_u32 v10, v10, v7"); e("v_lshlrev_b32 v10, 7, v10"); e("v_add_u32 v9, v9, v10")
        e("v_xor_b32 v10, 64, v9"); e("v_add_u32 v13, 36864, v9"); e("v_add_u32 v14, 36864, v10")
        def addr(ks, T, q): return f"v{[[9, 10], [13, 14]][ks//18][T]} offset:{(ks%18)*2048 + q*512}"
    else:
        e("v_lshlrev_b32 v9, 3, v5"); e("v_add_u32 v9, v9, v7"); e("v_mul_u32_u24 v9, 192, v9")
        e("v_lshlrev_b32 v10, 5, v6"); e("v_add_u32 v9, v9, v10"); e("v_lshlrev_b32 v10, 3, v8"); e("v_add_u32 v9, v9, v10")
        e(f"v_add_u32 v10, {18*3072}, v9")
        def addr(ks, T, q): return f"v{[9, 10][ks//18]} offset:{(ks%18)*3072 + q*768 + 64*T}"
    ACC = 16; WB = 64; XB = 112
    def reads(ks):
        b = WB + 4 * NT * (ks % 4)
        return [f"ds_read_b64_tr_b16 {vr(b+4*T+2*q,2)}, {addr(ks, T, q)}" for T in range(NT) for q in range(2)]
    e("v_and_b32 v11, 31, v0"); e("s_movk_i32 s32, 1152"); e("v_mul_lo_u32 v12, v11, s32"); e("v_lshlrev_b32 v4, 4, v5"); e("v_add_u32 v12, v12, v4")
    e("s_mul_i32 s41, s9, 36864"); e("s_add_u32 s41, s41, s10")
    per = 3 * NP + 12
    nx = 2 * NT
    for st in range(3):
        younger = (2 - st) * per + nrp + (nx if st else 0)
        e(f"s_waitcnt vmcnt({min(63, younger)})")
        e("s_barrier")
        if st == 0: stamp(e, 2, 'pre')
        if st == 0:
            for u in range(nx):
                e(f"buffer_load_dwordx4 {vr(XB+4*u,4)}, v12, s[{S_XB}:{S_XB+3}], s41 offen offset:{u*32}")
        k0 = 12 * st
        for k in range(3): e.extend(reads(k0 + k))
        for ks in range(k0, k0 + 12):
            left = k0 + 11 - ks
            e(f"s_waitcnt lgkmcnt({min(15, 2 * NT * min(2, left))})")
            b = WB + 4 * NT * (ks % 4)
            rd = reads(ks + 3) if ks + 3 < k0 + 12 else []
            for T in range(NT):
                e(f"v_mfma_f32_32x32x16_bf16 {vr(ACC+16*T,16)}, {vr(b+4*T,4)}, {ar(4*ks,4)}, " + ("0" if ks == 0 else vr(ACC + 16 * T, 16)))
                e.extend(rd[2 * T:2 * T + 2])
    e("s_mov_b32 s42, 0x00003f80"); e("s_mov_b32 s43, 0x3f800000"); e("s_mov_b32 s44, 0x3f803f80")
    e("s_mul_i32 s45, s9, 36"); e("s_add_u32 s45, s45, s11"); e("s_lshl_b32 s45, s45, 10"); e(f"s_add_u32 s45, s45, {LY.X1F}")
    e("v_mov_b32 v2, 0"); e("v_mov_b32 v3, 0")
    e("s_waitcnt vmcnt(0)")
    e("s_nop 7")
    for u in range(nx):
        T, hq = divmod(u, 2); b = ACC + 16 * T + 8 * hq; x = XB + 4 * u; P = 64 + 4 * u
        for j in range(4):
            e(f"v_dot2c_f32_bf16 v{b+2*j}, s42, v{x+j}")
            e(f"v_dot2c_f32_bf16 v{b+2*j+1}, s43, v{x+j}")
        e("s_nop 2")
        for j in range(4): e(f"v_cvt_pk_bf16_f32 v{P+j}, v{b+2*j}, v{b+2*j+1}")
        e(f"buffer_store_dwordx4 {vr(P,4)}, v1, s[{S_WS}:{S_WS+3}], s45 offen offset:{(u%4)*1024} sc1")
        if u == 3 and nx > 4: e("s_add_u32 s45, s45, 4096")
        for j in range(4):
            e(f"v_dot2c_f32_bf16 v2, s44, v{P+j}")
            e(f"v_dot2c_f32_bf16 v3, v{P+j}, v{P+j}")
    e("v_lshlrev_b32 v4, 14, v5"); e("v_lshlrev_b32 v6, 2, v11"); e("v_add_u32 v4, v4, v6")
    e("s_lshl_b32 s46, s33, 14"); e("s_lshl_b32 s47, s9, 7"); e("s_add_u32 s46, s46, s47"); e(f"s_add_u32 s46, s46, {LY.ST2}")
    e("s_add_u32 s47, s46, 8192")
    e(f"buffer_store_dword v2, v4, s[{S_WS}:{S_WS+3}], s46 offen sc1")
    e(f"buffer_store_dword v3, v4, s[{S_WS}:{S_WS+3}], s47 offen sc1")

def repack_dma(e):
    for i in range(18):
        e(f"s_add_u32 m0, s54, {IMG2 + i*1024}")
        e(f"s_add_u32 s55, s56, s57") if i == 0 else e("s_add_u32 s55, s55, s58")
        e(f"buffer_load_dwordx4 v16, s[{S_RP}:{S_RP+3}], s55 offen lds")

def repack_setup(e):
    e(f"s_load_dwordx2 s[60:61], s[0:1], {KA_W3}")
    e(f"s_load_dwordx2 s[62:63], s[0:1], {KA_WO}")
    e("s_cmp_lt_u32 s53, 72")
    e("s_cselect_b32 s59, 1, 0")
    e("s_movk_i32 s58, 1152"); e("s_cselect_b32 s58, 9216, s58")
    e("s_sub_u32 s56, s53, 72"); e("s_mul_i32 s55, s56, 86"); e("s_lshr_b32 s55, s55, 8")
    e("s_mul_i32 s57, s55, 3"); e("s_sub_u32 s57, s56, s57")
    e("s_mul_i32 s56, s55, 288"); e("s_lshl_b32 s54, s57, 7"); e("s_add_u32 s56, s56, s54")
    e("s_lshl_b32 s54, s53, 7"); e("s_cmp_lt_u32 s53, 72"); e("s_cselect_b32 s56, s54, s56")
    e("s_waitcnt lgkmcnt(0)")
    e("s_cmp_lt_u32 s53, 72")
    e(f"s_cselect_b32 s{S_RP}, s60, s62"); e(f"s_cselect_b32 s{S_RP+1}, s61, s63")
    e(f"s_mov_b32 s{S_RP+2}, {576*576*2}"); e(f"s_cselect_b32 s{S_RP+2}, {576*4608*2}, s{S_RP+2}")
    e("s_cmp_lt_u32 s53, 84"); e(f"s_cselect_b32 s{S_RP+2}, s{S_RP+2}, 0")
    e(f"s_and_b32 s{S_RP+1}, s{S_RP+1}, 0xffff"); e(f"s_mov_b32 s{S_RP+3}, 0x20000")
    e("v_lshrrev_b32 v17, 3, v0"); e("v_and_b32 v18, 7, v0"); e("v_bfe_u32 v19, v0, 4, 1"); e("v_mul_u32_u24 v19, s59, v19"); e("v_lshlrev_b32 v19, 2, v19"); e("v_xor_b32 v18, v18, v19")
    e("v_mul_lo_u32 v17, v17, s58"); e("v_lshlrev_b32 v18, 4, v18"); e("v_add_u32 v16, v17, v18")
    e("s_mul_i32 s57, s8, 144"); e("s_mul_i32 s57, s57, s58")
    e("s_mul_i32 s54, s8, 18432")
    e("s_lshl_b32 s58, s58, 3")

def repack_w3(e):
    lane_tr_parts(e, 5, 6, 7, 8)
    e("s_and_b32 s40, s8, 1"); e("s_lshr_b32 s41, s8, 1")
    e("v_lshlrev_b32 v9, 1, v6"); e("v_lshrrev_b32 v10, 1, v8"); e("v_add_u32 v9, v9, v10")
    e("s_lshl_b32 s42, s40, 2"); e("v_add_u32 v9, s42, v9")
    e("v_lshrrev_b32 v10, 1, v7"); e("v_lshlrev_b32 v10, 2, v10"); e("v_xor_b32 v9, v9, v10")
    e("v_lshlrev_b32 v9, 4, v9"); e("v_and_b32 v10, 1, v8"); e("v_lshlrev_b32 v10, 3, v10"); e("v_add_u32 v9, v9, v10")
    e("v_lshlrev_b32 v10, 3, v5"); e("v_add_u32 v10, v10, v7"); e("v_lshlrev_b32 v10, 7, v10"); e("v_add_u32 v9, v9, v10")
    e("s_mul_i32 s42, s41, 36864"); e(f"s_add_u32 s42, s42, {IMG2}"); e("v_add_u32 v9, s42, v9")
    F = 16
    for k in range(18):
        for q in range(2):
            e(f"ds_read_b64_tr_b16 {vr(F+4*k+2*q,2)}, v9 offset:{k*2048+q*512}")
    e("s_mov_b32 s43, 0x3f803f80"); e("s_mov_b32 s44, 0x00003f80"); e("s_mov_b32 s45, 0x3f800000")
    for a in range(4): e(f"v_mov_b32 v{10+a}, 0")
    for k in range(18):
        if k % 3 == 0: e(f"s_waitcnt lgkmcnt({min(15, 36 - 2*(k+3))})")
        for j in range(4): e(f"v_dot2c_f32_bf16 v{10+j}, s43, v{F+4*k+j}")
    e("s_nop 2")
    e("v_add_f32 v10, v10, v11"); e("v_add_f32 v12, v12, v13"); e("v_add_f32 v10, v10, v12")
    e("v_mov_b32 v11, v10"); e("v_lshlrev_b32 v12, 2, v0"); e("s_lshl_b32 s42, s8, 8"); e("v_permlane32_swap_b32 v10, v11"); e("v_add_f32 v10, v10, v11")
    e(f"s_add_u32 s42, s42, {XCH}"); e("v_add_u32 v13, s42, v12")
    e("ds_write_b32 v13, v10")
    e("s_xor_b32 s42, s8, 2"); e("s_lshl_b32 s42, s42, 8"); e(f"s_add_u32 s42, s42, {XCH}"); e("v_add_u32 v13, s42, v12")
    e("s_waitcnt lgkmcnt(0)"); e("s_barrier")
    e("ds_read_b32 v11, v13"); e("s_waitcnt lgkmcnt(0)")
    e("v_add_f32 v10, v10, v11"); e(f"v_mul_f32 v10, {hexf(-1/576)}, v10")
    e("s_lshl_b32 s46, s53, 1"); e("s_add_u32 s46, s46, s40")
    e(f"s_mul_i32 s47, s46, 36864"); e(f"s_add_u32 s47, s47, {LY.W3P}")
    e("s_mul_i32 s42, s41, 18432"); e("s_add_u32 s47, s47, s42")
    TS = [88, 96]
    def fink(k):
        t = TS[k % 2]
        for j in range(4): e(f"v_cvt_pk_bf16_f32 v{F+4*k+j}, v{t+2*j}, v{t+2*j+1}")
        e(f"buffer_store_dwordx4 {vr(F+4*k,4)}, v1, s[{S_WS}:{S_WS+3}], s47 offen offset:{(k%4)*1024} sc1")
        if k % 4 == 3: e("s_add_u32 s47, s47, 4096")
    for k in range(18):
        t = TS[k % 2]
        for j in range(4):
            e(f"v_dot2_f32_bf16 v{t+2*j}, v{F+4*k+j}, s44, v10")
            e(f"v_dot2_f32_bf16 v{t+2*j+1}, v{F+4*k+j}, s45, v10")
        if k > 0: fink(k - 1)
    e("s_nop 2")
    fink(17)

def repack_wo(e, skip_label):
    e("s_sub_u32 s46, s53, 72"); e("s_mul_i32 s40, s46, 86"); e("s_lshr_b32 s40, s40, 8")
    e("s_mul_i32 s41, s40, 3"); e("s_sub_u32 s41, s46, s41")
    lane_tr_parts(e, 5, 6, 7, 8)
    e("s_and_b32 s42, s8, 1"); e("s_lshr_b32 s43, s8, 1")
    e("v_lshlrev_b32 v9, 5, v6"); e("v_lshlrev_b32 v10, 3, v8"); e("v_add_u32 v9, v9, v10"); e("s_lshl_b32 s44, s42, 6"); e(f"s_add_u32 s44, s44, {IMG2}"); e("v_add_u32 v9, s44, v9")
    e("v_lshlrev_b32 v10, 2, v5"); e("v_add_u32 v10, v10, v7"); e("v_lshlrev_b32 v10, 7, v10"); e("v_add_u32 v10, v10, v9")
    e(f"s_mul_i32 s44, s43, {324*128}"); e("v_add_u32 v10, s44, v10")
    e("v_lshrrev_b32 v11, 1, v7"); e("v_lshlrev_b32 v12, 2, v5"); e("v_add_u32 v12, v12, v11"); e("v_mul_u32_u24 v12, 18, v12")
    e("v_xor_b32 v11, 1, v11"); e("v_lshlrev_b32 v11, 4, v11"); e("v_add_u32 v12, v12, v11"); e("v_and_b32 v11, 1, v7"); e("v_add_u32 v12, v12, v11")
    e("v_lshlrev_b32 v12, 7, v12"); e("v_add_u32 v12, v12, v9")
    F = 16
    for k in range(14):
        for q in range(2):
            e(f"ds_read_b64_tr_b16 {vr(F+4*k+2*q,2)}, v10 offset:{(18*k + 8*q + 2*(k&1))*128}")
    e("s_cmp_eq_u32 s43, 0"); e("s_cbranch_scc0 K2_wo_x")
    for k in range(14, 18):
        for q in range(2):
            e(f"ds_read_b64_tr_b16 {vr(F+4*k+2*q,2)}, v10 offset:{(18*k + 8*q + 2*(k&1))*128}")
    e("s_branch K2_wo_y")
    e.label("K2_wo_x")
    for k in range(14, 18):
        for q in range(2):
            e(f"ds_read_b64_tr_b16 {vr(F+4*k+2*q,2)}, v12 offset:{18*(8*(k-14) + 2*q)*128}")
    e.label("K2_wo_y")
    e("s_lshl_b32 s44, s41, 1"); e("s_add_u32 s44, s44, s42")
    e("s_cmp_eq_u32 s44, 5"); e(f"s_cbranch_scc1 {skip_label}")
    e("s_mul_i32 s45, s40, 5"); e("s_add_u32 s45, s45, s44"); e("s_mul_i32 s45, s45, 36"); e("s_mul_i32 s46, s43, 18"); e("s_add_u32 s45, s45, s46")
    e("s_lshl_b32 s47, s45, 10"); e(f"s_add_u32 s47, s47, {LY.WOP}")
    e("s_waitcnt lgkmcnt(0)")
    for k in range(18):
        e(f"buffer_store_dwordx4 {vr(F+4*k,4)}, v1, s[{S_WS}:{S_WS+3}], s47 offen offset:{(k%4)*1024}")
        if k % 4 == 3: e("s_add_u32 s47, s47, 4096")

def gen_prephase(e):
    e(f"s_load_dwordx2 s[{S_DBG}:{S_DBG+1}], s[0:1], {KA_DBG}") if not Opt.cnt_ws else None
    if Opt.cnt_ws:
        e(f"s_add_u32 s{S_DBG}, s4, {LY.CNT}"); e(f"s_addc_u32 s{S_DBG+1}, s5, 0")
    e("s_cmp_lt_u32 s7, 16"); e("s_cbranch_scc0 K2_pre_att")
    if Opt.gemm_local:
        e("s_lshr_b32 s64, s7, 3"); e("s_lshl_b32 s65, s6, 1"); e("s_add_u32 s64, s64, s65"); e("s_and_b32 s65, s7, 7")
    else:
        e("s_mov_b32 s64, s7"); e("s_mov_b32 s65, s6")
    e.label("K2_pre_gemm")
    e("s_lshl_b32 s9, s64, 2"); e("s_add_u32 s9, s9, s8")
    e("s_lshl_b32 s33, s65, 1")
    e("s_lshl_b32 s10, s65, 7"); e("s_lshl_b32 s11, s65, 2")
    gemm(e, 2, False)
    stamp(e, 3, 'pre')
    e(f"s_mul_i32 s48, s64, {CSTEP}")
    publish(e, 48)
    e("s_branch K2_pre_end")
    e.label("K2_pre_att")
    e("s_sub_u32 s53, s7, 16"); e("s_lshl_b32 s53, s53, 3"); e("s_add_u32 s53, s53, s6")
    e("s_cmp_lt_u32 s53, 16"); e("s_cbranch_scc0 K2_pre_rp")
    if Opt.gemm_local:
        e("s_lshr_b32 s64, s53, 3"); e("s_lshl_b32 s65, s6, 1"); e("s_add_u32 s64, s64, s65"); e("s_mov_b32 s65, 8")
    else:
        e("s_mov_b32 s64, s53"); e("s_mov_b32 s65, 8")
    e("s_branch K2_pre_gemm")
    e.label("K2_pre_rp")
    e("s_cmp_lt_u32 s53, 100"); e("s_cbranch_scc0 K2_pre_end")
    e("s_sub_u32 s53, s53, 16")
    e("v_lshlrev_b32 v1, 4, v0")
    repack_setup(e)
    repack_dma(e)
    e("s_waitcnt vmcnt(0)"); e("s_barrier")
    stamp(e, 4, 'pre')
    e("s_cmp_lt_u32 s53, 72"); e("s_cbranch_scc1 K2_rw3")
    repack_wo(e, "K2_pre_lds")
    e("s_branch K2_pre_lds")
    e.label("K2_rw3")
    repack_w3(e)
    stamp(e, 5, 'pre')
    e("s_mul_i32 s48, s53, 57"); e("s_lshr_b32 s48, s48, 9"); e(f"s_mul_i32 s48, s48, {CSTEP}"); e(f"s_add_u32 s48, s48, {CNT_W}")
    publish(e, 48)
    e("s_branch K2_pre_end")
    e.label("K2_pre_lds")
    if Opt.fuse_l4:
        e(f"s_movk_i32 s48, {CNT_WO}")
        publish(e, 48)
    else:
        e("s_barrier")
    e.label("K2_pre_end")
    stamp(e, 6, 'pre')

def gen_mlp_wait(e):
    e(f"s_mul_i32 s48, s7, {CSTEP}"); e(f"s_mul_i32 s49, s6, {CSTEP}"); e(f"s_add_u32 s49, s49, {CNT_W}")
    w = [(48, 9), (49, 9)]
    if Opt.fuse_l4 and Opt.early_wo:
        e(f"s_movk_i32 s47, {CNT_WO}"); w.append((47, 12))
    wait_counters(e, w, acquire=Opt.acquire)
```

```python
from asmlib import *
import layouts as LY
import math

KA_XA, KA_WQKV, KA_WO, KA_XB, KA_W1, KA_W2, KA_W3, KA_W4, KA_GW, KA_OUT, KA_DBG, KA_WS = [8*i for i in range(12)]
WS_SIZE = 268435456

def kernel_head(e, name):
    e(f".globl {name}")
    e(".p2align 8")
    e(f".type {name},@function")
    e.label(name)

def kernel_desc(name, vgpr, accum, sgpr=102):
    return f""".amdhsa_kernel {name}
  .amdhsa_next_free_vgpr {vgpr}
  .amdhsa_next_free_sgpr {sgpr}
  .amdhsa_accum_offset {accum}
  .amdhsa_group_segment_fixed_size 0
  .amdhsa_kernarg_size 96
  .amdhsa_user_sgpr_count 2
  .amdhsa_user_sgpr_kernarg_segment_ptr 1
  .amdhsa_system_sgpr_workgroup_id_x 1
  .amdhsa_float_denorm_mode_32 3
.end_amdhsa_kernel
"""

def make_srd(e, dst, ptr, size):
    if dst != ptr: e(f"s_mov_b32 s{dst}, s{ptr}")
    e(f"s_and_b32 s{dst+1}, s{ptr+1}, 0xffff")
    e(f"s_mov_b32 s{dst+2}, {size}")
    e(f"s_mov_b32 s{dst+3}, 0x20000")

GELU_C0 = -2.0 * math.sqrt(2.0 / math.pi) * math.log2(math.e)
GELU_C1 = GELU_C0 * 0.044715

class Diag:
    on = False
    kid = 0
    pre = None
    dbg = False
STAMP_BASE = 0x8000000
def stamp(e, i, grp='main'):
    if Diag.on and (grp == 'any' or grp == (Diag.pre or 'main')):
        e(f"s_memrealtime s[{70+2*i}:{71+2*i}]")
        if i == 2: e("s_memtime s[92:93]")
        if i == 5: e("s_memtime s[94:95]")
        e("s_waitcnt lgkmcnt(0)")
def dbg_start(e):
    if Diag.dbg:
        e("s_memrealtime s[96:97]")
        e(f"s_load_dwordx2 s[98:99], s[0:1], {KA_DBG}")
        e("s_waitcnt lgkmcnt(0)")
def fin(e, wave_sgpr=8):
    if Diag.dbg:
        e("s_waitcnt vmcnt(0)")
        e("s_memrealtime s[100:101]")
        e("s_waitcnt lgkmcnt(0)")
        e(f"s_cmp_eq_u32 s{wave_sgpr}, 0"); e(f"s_cbranch_scc0 Ldbg_skip_{len(e.L)}")
        Diag.lab = f"Ldbg_skip_{len(e.L)-1}"
        e("s_mov_b64 exec, 1")
        fusedl = Opt.fuse_l2
        lidx = Diag.kid - (1 if (fusedl and Diag.kid >= 2) else 0) - (1 if (Opt.fuse_l4 and Diag.kid >= 3) else 0)
        last = 512 * (3 - (1 if fusedl else 0) - (1 if Opt.fuse_l4 else 0))
        e(f"s_sub_u32 s98, s98, {512 * lidx}"); e("s_subb_u32 s99, s99, 0")
        e("s_not_b32 s96, s96")
        e("v_mov_b32 v2, s96"); e("v_mov_b32 v3, s100"); e("v_mov_b32 v4, 0")
        e(f"global_atomic_umax v4, v2, s[98:99] offset:{16 * Diag.kid}")
        e(f"global_atomic_umax v4, v3, s[98:99] offset:{16 * Diag.kid + 4}")
        e(f"global_atomic_umax v4, v2, s[98:99] offset:{last + 16 * Diag.kid}")
        e(f"global_atomic_umax v4, v3, s[98:99] offset:{last + 16 * Diag.kid + 4}")
        e.label(Diag.lab)
    if Diag.on:
        stamp(e, 7, 'any')
        e("s_waitcnt vmcnt(0)")
        e("s_memrealtime s[86:87]")
        e("s_waitcnt lgkmcnt(0)")
        e("s_mov_b64 exec, -1")
        e(f"s_lshl_b32 s88, s2, 3"); e(f"s_add_u32 s88, s88, s{wave_sgpr}"); e("s_lshl_b32 s88, s88, 6")
        e(f"s_add_u32 s88, s88, {STAMP_BASE + Diag.kid * 0x20000}")
        for i in range(8): e(f"v_mov_b32 v{4+i}, s{70+2*i}")
        e("v_mov_b32 v12, s86")
        e("s_sub_u32 s94, s94, s92")
        e("v_mov_b32 v14, s94")
        e("v_mov_b32 v13, s88")
        e("global_store_dwordx4 v13, v[4:7], s[4:5] offset:0")
        e("global_store_dwordx4 v13, v[8:11], s[4:5] offset:16")
        e("global_store_dword v13, v12, s[4:5] offset:32")
        e("global_store_dword v13, v14, s[4:5] offset:36")
    e("s_endpgm")

class Opt:
    code_pf = False
    l1_8wave = True
    l1_touch = False
    late_touch = True
    late_sel = 'w2'
    touch_in_loop = False
    touch_stages = (2, 5)
    rotate = False
    rotate2 = True
    repack_l1 = False
    fuse_l2 = True
    fuse_l4 = True
    final_sleep = 4
    early_wo = True
    fin_mfma = True
    fin_split = True
    cnt_ws = True
    gemm_local = True
    icache_test = None
    rp_fast = True
    w4_touch = False
    h_gram = False
    mlp_rbx = 4
    acquire = False
    poll_sleep = 0
    gelu_split = 2
    l2_only = None
    touch64 = False
def code_prefetch(e, start_label, end_label, nblk, vaddr, vtmp, vdst, sp):
    if not Opt.code_pf: return
    lab = f"{start_label}_pc{len(e.L)}"
    e(f"s_getpc_b64 s[{sp}:{sp+1}]")
    e.label(lab)
    e(f"s_sub_u32 s{sp}, s{sp}, {lab}-{start_label}")
    e(f"s_subb_u32 s{sp+1}, s{sp+1}, 0")
    e(f"v_lshlrev_b32 v{vaddr}, 7, v0")
    for i in range(nblk):
        e(f"v_min_u32 v{vtmp}, {end_label}-{start_label}-4, v{vaddr}")
        e(f"global_load_dword v{vdst}, v{vtmp}, s[{sp}:{sp+1}]")
        if i + 1 < nblk: e(f"v_add_u32 v{vaddr}, 0x2000, v{vaddr}")

STORE_MOD = "sc1"
```

```python
from gen_common import *
import gen_repack
NAME = "l1_kernel"
BLOCK = 512
SLOT = 36864
GW_OFF = 4 * SLOT
XCH_OFF = GW_OFF + 2048
LDS_BYTES = XCH_OFF + 3584 + 8*384
S_WS = 12; S_X = 16; S_W = 20; S_GW = 24
V_L16 = 1
V_XO = 2
V_WO = 6
V_XA = 216
V_WA = 11
V_GA = 14
V_ST = 15
V_CS = 212
ACC = 32
EX0 = 80
EX1 = 96
ECS = 112
XF = 128
WF = 144
GF = 192
ONE = 208
NVGPR = 220
QSCALE = math.log2(math.e) / math.sqrt(18.0)
TILES = {0: [0, 1], 1: [2, 3, 4]}
NWP = {0: 5, 1: 0}
S_WV, S_RB, S_CT, S_CQ = 8, 9, 10, 11
S_RS, S_XO, S_WO, S_XM, S_ST, S_DL, S_WSTEP, S_SLX, S_WM, S_T2, S_SLW, S_KX = 28, 29, 30, 31, 32, 33, 34, 35, 36, 37, 38, 39
S_KW, S_KC, S_GD, S_TT = 64, 65, 66, 56
S_WBACK, S_C128 = 60, 61
HEADS = [(0, 7), (1, 2), (3, 4), (5, 6)]

def dma_x(fg):
    if fg: return [[], [], [], []]
    o = [[f"s_add_u32 m0, s{S_SLX}, s{S_XM}", f"s_add_u32 s{S_KX}, s{S_KX}, 1", f"buffer_load_dwordx4 v{V_XO}, s[{S_X}:{S_X+3}], s{S_XO} offen lds"]]
    for i in range(1, 4):
        o.append([f"buffer_load_dwordx4 v{V_XO+i}, s[{S_X}:{S_X+3}], s{S_XO} offen offset:{i*1024} lds"])
    o[-1] += [f"s_cmp_eq_u32 s{S_KX}, 9", f"s_cselect_b32 s{S_KX}, 0, s{S_KX}", f"s_cselect_b32 s69, {(-1024) & 0xffffffff}, s{S_C128}", f"s_add_u32 s{S_XO}, s{S_XO}, s69",
              f"s_add_u32 s{S_SLX}, s{S_SLX}, {SLOT}", f"s_cmp_eq_u32 s{S_SLX}, {4*SLOT}", f"s_cselect_b32 s{S_SLX}, 0, s{S_SLX}"]
    return o
def dma_w(fg):
    if fg: return [[], [], [], [], []]
    o = [[f"s_add_u32 m0, s{S_SLW}, s{S_WM}", f"s_add_u32 s{S_KW}, s{S_KW}, 1", f"buffer_load_dwordx4 v{V_WO}, s[{S_W}:{S_W+3}], s{S_WO} offen lds"]]
    for i in range(1, 4):
        o.append([f"buffer_load_dwordx4 v{V_WO+i}, s[{S_W}:{S_W+3}], s{S_WO} offen offset:{i*1024} lds"])
    o.append(["s_add_u32 m0, m0, 4096", f"s_cmp_eq_u32 s{S_KW}, 9", f"buffer_load_dwordx4 v{V_WO+4}, s[{S_W}:{S_W+3}], s{S_WO} offen lds",
              f"s_cselect_b32 s{S_KW}, 0, s{S_KW}", f"s_cselect_b32 s69, s{S_WBACK}, s{S_WSTEP}", f"s_add_u32 s{S_WO}, s{S_WO}, s69",
              f"s_add_u32 s{S_SLW}, s{S_SLW}, {SLOT}", f"s_cmp_eq_u32 s{S_SLW}, {4*SLOT}", f"s_cselect_b32 s{S_SLW}, 0, s{S_SLW}"])
    return o

def reads(s, variant, fg):
    o = [f"ds_read_b128 {vr(XF+4*s,4)}, v{V_XA+s}"]
    if variant == "q0" and fg == 0: o.append(f"ds_read_b128 {vr(GF+4*s,4)}, v{V_GA} offset:{32*s}")
    for i, T in enumerate(TILES[fg]):
        for q in range(2):
            o.append(f"ds_read_b64_tr_b16 {vr(WF+12*s+4*i+2*q,2)}, v{V_WA+i} offset:{(16*s+4*q)*320}")
    return o

def advance_addrs(variant, fg):
    o = [f"v_add_u32 v{r}, s{S_DL}, v{r}" for r in list(range(V_XA, V_XA + 4)) + list(range(V_WA, V_WA + len(TILES[fg])))]
    if variant == "q0" and fg == 0:
        o += [f"s_add_u32 s{S_KC}, s{S_KC}, 1", f"s_cmp_eq_u32 s{S_KC}, 9", f"s_cselect_b32 s{S_KC}, 0, s{S_KC}",
              f"s_cselect_b32 s{S_GD}, {(-1024) & 0xffffffff}, s{S_C128}", f"v_add_u32 v{V_GA}, s{S_GD}, v{V_GA}"]
    return o

def mfmas(s, variant, fg):
    xf = vr(XF + 4 * s, 4); one = vr(ONE, 4)
    m = []
    for i, T in enumerate(TILES[fg]):
        wf = vr(WF + 12 * s + 4 * i, 4); a = vr(ACC + 16 * i, 16)
        m.append(f"v_mfma_f32_32x32x16_bf16 {a}, {xf}, {wf}, {a}" if variant == "v" else f"v_mfma_f32_32x32x16_bf16 {a}, {wf}, {xf}, {a}")
    if variant == "q0" and fg == 0:
        m.append(f"v_mfma_f32_32x32x16_bf16 {vr(EX0,16)}, {vr(GF+4*s,4)}, {xf}, {vr(EX0,16)}")
    if variant == "h" and fg == 0:
        m.append(f"v_mfma_f32_32x32x16_bf16 {vr(EX0,16)}, {one}, {xf}, {vr(EX0,16)}")
        if Opt.h_gram: m.append(f"v_mfma_f32_32x32x16_bf16 {vr(EX1,16)}, {xf}, {xf}, {vr(EX1,16)}")
    return m

def main_loop(e, variant, fg):
    lab = f"L1_loop_{variant}{fg}"
    nrd = len(reads(0, variant, fg))
    nw = NWP[fg]
    e(f"s_mov_b32 s{S_ST}, 0")
    if fg == 0: e("s_waitcnt vmcnt(13)")
    e("s_barrier")
    stamp(e, 2, 'any')
    e.extend(reads(0, variant, fg)); e.extend(reads(1, variant, fg))
    e(".p2align 6")
    e.label(lab)
    dx = dma_x(fg); dw = dma_w(fg)
    place = {(0, 0): dw[0], (0, 1): dw[1] + dw[2], (1, 0): dw[3], (1, 1): dw[4], (2, 0): dx[0], (2, 1): dx[1], (3, 0): dx[2], (3, 1): dx[3]}
    touch = Opt.late_touch and Opt.touch_in_loop and fg == 1 and variant != "h"
    for s in range(4):
        pre = []
        if s == 2:
            if fg == 0:
                pre = ["s_waitcnt vmcnt(9)", "s_barrier",
                       f"s_cmp_lt_u32 s{S_ST}, 6", f"s_cselect_b32 s{S_XO}, s{S_XO}, 0x40000000", f"s_cselect_b32 s{S_WO}, s{S_WO}, 0x40000000"]
            else:
                pre = ["s_barrier"]
                if touch:
                    for k, stg in enumerate(Opt.touch_stages[:len(late_issue())]):
                        pre += [f"s_cmp_eq_u32 s{S_ST}, {stg}", f"s_cbranch_scc0 {lab}_t{k}", late_issue()[k], f"{lab}_t{k}:"]
        rd = reads((s + 2) % 4, variant, fg)
        e(f"s_waitcnt lgkmcnt({nrd})")
        mf = mfmas(s, variant, fg)
        n = len(rd); nm = len(mf)
        per = (n + nm - 1) // nm
        extra = []
        if variant == "h" and fg == 0 and not Opt.h_gram:
            for j in range(4):
                extra += [f"v_lshlrev_b32 v{20+(j%2)}, 16, v{XF+4*s+j}", f"v_and_b32 v{26+(j%2)}, 0xffff0000, v{XF+4*s+j}",
                          f"v_fmac_f32 v{V_ST+2}, v{20+(j%2)}, v{20+(j%2)}", f"v_fmac_f32 v{V_ST+3}, v{26+(j%2)}, v{26+(j%2)}"]
        for T in range(nm):
            e(mf[T])
            if T == 0: e.extend(pre)
            e.extend(rd[T * per:(T + 1) * per])
            e.extend(extra[T * len(extra) // nm:(T + 1) * len(extra) // nm])
            e.extend(place.get((s, T), []))
        if variant == "h":
            e(f"s_cmp_eq_u32 s{S_TT}, {s}")
            e(f"s_cbranch_scc0 {lab}_cs{s}")
            for j in range(4):
                for i in range(len(TILES[fg])):
                    e(f"v_lshlrev_b32 v{22+i}, 16, v{WF+12*s+4*i+j}")
                for i in range(len(TILES[fg])):
                    e(f"v_add_f32 v{V_CS+i}, v{V_CS+i}, v{22+i}")
                for i in range(len(TILES[fg])):
                    e(f"v_and_b32 v{22+i}, 0xffff0000, v{WF+12*s+4*i+j}")
                for i in range(len(TILES[fg])):
                    e(f"v_add_f32 v{V_CS+i}, v{V_CS+i}, v{22+i}")
            e.label(f"{lab}_cs{s}")
        if s == 1:
            e(f"s_add_u32 s{S_T2}, s{S_ST}, 1")
            e(f"s_and_b32 s{S_DL}, s{S_T2}, 3")
            e(f"s_cmp_eq_u32 s{S_DL}, 0")
            e(f"s_cselect_b32 s{S_DL}, s68, s67")
            e.extend(advance_addrs(variant, fg))
    e(f"s_add_u32 s{S_ST}, s{S_ST}, 1")
    e(f"s_cmp_lt_u32 s{S_ST}, 9")
    e(f"s_cbranch_scc1 {lab}")
    stamp(e, 5, 'any')
    e("s_waitcnt lgkmcnt(0)")
    e("s_nop 7")

def setup_x(e, fg):
    for i in range(4):
        e("v_lshrrev_b32 v21, 3, v0"); e(f"v_add_u32 v21, {8*i}, v21")
        e("v_lshrrev_b32 v22, 1, v21"); e("v_and_b32 v22, 7, v22"); e("v_and_b32 v23, 7, v0"); e("v_xor_b32 v22, v22, v23")
        e("v_mul_u32_u24 v21, 1152, v21"); e("v_lshlrev_b32 v22, 4, v22"); e("v_add_u32 v21, v21, v22")
        if i: e(f"v_subrev_u32 v{V_XO+i}, {1024*i}, v21")
        else: e(f"v_mov_b32 v{V_XO}, v21")
    e(f"s_lshl_b32 s{S_XM}, s{S_TT}, 12")
def setup_w(e, fg):
    e(f"s_mul_i32 s{S_WM}, s{S_TT}, 5")
    e(f"s_lshl_b32 s69, s{S_WM}, 6")
    for i in range(5):
        e(f"v_add_u32 v21, s69, v0")
        if i: e(f"v_add_u32 v21, {64*i}, v21")
        e("v_mul_u32_u24 v22, 3277, v21"); e("v_lshrrev_b32 v22, 16, v22")
        e("v_mul_u32_u24 v23, 20, v22"); e("v_sub_u32 v23, v21, v23")
        e(f"v_mul_lo_u32 v22, v22, s{S_RS}")
        e("v_cmp_lt_u32 vcc, 17, v23"); e("v_subrev_u32 v24, 2, v23"); e("v_mov_b32 v25, 0x40000000"); e("v_cndmask_b32 v24, v23, v24, vcc")
        e("v_lshlrev_b32 v24, 4, v24"); e("v_add_u32 v22, v22, v24")
        e("v_and_b32 v24, 30, v23"); e("v_cmp_eq_u32 vcc, 16, v24")
        if i % 4: e(f"v_subrev_u32 v22, {1024*(i%4)}, v22")
        else: e("s_nop 0")
        e("s_nop 0")
        e(f"v_cndmask_b32 v{V_WO+i}, v22, v25, vcc")
    e(f"s_lshl_b32 s{S_WM}, s{S_WM}, 10"); e(f"s_add_u32 s{S_WM}, s{S_WM}, 16384")
def setup_xread(e):
    e("v_and_b32 v21, 31, v0"); e("v_lshrrev_b32 v22, 5, v0")
    e("v_lshrrev_b32 v23, 1, v21"); e("v_and_b32 v23, 7, v23"); e("v_xor_b32 v23, v23, v22"); e("v_lshlrev_b32 v23, 4, v23")
    e("v_lshlrev_b32 v24, 7, v21"); e("v_add_u32 v23, v23, v24")
    e(f"s_lshl_b32 s69, s{S_TT}, 12"); e(f"v_add_u32 v{V_XA}, s69, v23")
    for s in range(1, 4): e(f"v_xor_b32 v{V_XA+s}, {32*s}, v{V_XA}")

def lane_parts(e):
    e("v_lshrrev_b32 v21, 5, v0"); e("v_bfe_u32 v22, v0, 4, 1"); e("v_bfe_u32 v23, v0, 2, 2"); e("v_and_b32 v24, 3, v0")
    e("v_and_b32 v25, 1, v0"); e("v_lshlrev_b32 v25, 1, v25"); e("v_bfe_u32 v26, v0, 1, 1"); e("v_or_b32 v25, v25, v26")
    e("v_lshlrev_b32 v26, 3, v21"); e("v_add_u32 v26, v26, v23"); e("v_mul_u32_u24 v26, 320, v26"); e("v_add_u32 v26, 16384, v26")
def waddr(e, variant, fg):
    lane_parts(e)
    dense = variant == "h"
    q = 24 if variant == "v" else 25
    e(f"v_lshlrev_b32 v27, 3, v{q}"); e("v_add_u32 v27, v27, v26")
    e("v_lshlrev_b32 v28, 5, v22"); e("v_add_u32 v28, v27, v28")
    for i, T in enumerate(TILES[fg]):
        d = V_WA + i
        if dense:
            if T < 4: e(f"v_add_u32 v{d}, {64*T}, v28")
            else: e(f"v_add_u32 v{d}, 288, v27")
        else:
            if T == 0: e("v_mul_u32_u24 v29, 288, v22"); e(f"v_add_u32 v{d}, v27, v29")
            elif T < 4: e(f"v_add_u32 v{d}, {40+72*(T-1)}, v28")
            else: e("v_mul_u32_u24 v29, 72, v24"); e("v_add_u32 v29, v29, v26"); e(f"v_add_u32 v{d}, 32, v29")

def zero_acc(e, variant, fg):
    for i in range(4): e(f"v_mov_b32 v{XF+i}, 0")
    if variant == "h":
        for i in range(4): e(f"v_mov_b32 v{ONE+i}, 0x3f803f80")
        for i in range(4): e(f"v_mov_b32 v{V_ST+i}, 0")
        for i in range(3): e(f"v_mov_b32 v{V_CS+i}, 0")
    e("s_nop 1")
    z = vr(XF, 4)
    for i in range(len(TILES[fg])): e(f"v_mfma_f32_32x32x16_bf16 {vr(ACC+16*i,16)}, {z}, {z}, 0")
    if fg == 0 and variant in ("q0", "h"): e(f"v_mfma_f32_32x32x16_bf16 {vr(EX0,16)}, {z}, {z}, 0")
    if fg == 0 and variant == "h" and Opt.h_gram: e(f"v_mfma_f32_32x32x16_bf16 {vr(EX1,16)}, {z}, {z}, 0")

def prologue_dma(e, fg):
    if fg == 0:
        e(f"s_mov_b32 s{S_SLX}, 0"); e(f"s_mov_b32 s{S_SLW}, 0")
        setup_x(e, fg)
        for grp in dma_x(fg): e.extend(grp)
        setup_w(e, fg)
        for grp in dma_w(fg): e.extend(grp)
        for grp in dma_x(fg): e.extend(grp)
        for grp in dma_w(fg): e.extend(grp)
        for grp in dma_x(fg): e.extend(grp)
    stamp(e, 1, 'any')
    setup_xread(e)

def late_setup(e):
    e("s_mov_b64 exec, -1")
    e(f"s_load_dwordx2 s[52:53], s[0:1], {KA_W3}"); e(f"s_load_dwordx2 s[54:55], s[0:1], {KA_W4}")
    e(f"s_load_dwordx2 s[40:41], s[0:1], {KA_W2}"); e(f"s_load_dwordx2 s[58:59], s[0:1], {KA_WO}")
    e(f"s_lshl_b32 s44, s{S_TT}, 6"); e("v_add_u32 v30, s44, v0"); e("v_lshlrev_b32 v30, 7, v30")
    e(f"s_lshl_b32 s69, s{S_CT}, 4"); e(f"s_add_u32 s69, s69, s{S_RB}")
    e("s_waitcnt lgkmcnt(0)")
    for rep, (srd, so) in enumerate(((44, 62), (48, 63))):
        if rep == 0 and True:
            e("s_add_u32 s70x, s69, 0".replace("s70x", f"s{S_T2}"))
        u = f"s{S_GD}"
        if rep == 0: e(f"s_add_u32 {u}, s69, {324 if Opt.late_sel == 'w2' else 192}")
        else: e(f"s_mov_b32 {u}, s69")
        e(f"s_mov_b32 s{srd}, s52"); e(f"s_mov_b32 s{srd+1}, s53"); e(f"s_mov_b32 s{srd+2}, {576*4608*2}"); e(f"s_mov_b32 s{so}, {u}")
        for lo, p, size in ((162, 54, 576*4608*2), (324, 40, 576*576*2), (345, 58, 576*576*2)):
            e(f"s_cmp_ge_u32 {u}, {lo}")
            e(f"s_cselect_b32 s{srd}, s{p}, s{srd}"); e(f"s_cselect_b32 s{srd+1}, s{p+1}, s{srd+1}")
            if size != 576*4608*2: e(f"s_cselect_b32 s{srd+2}, {size}, s{srd+2}")
            e(f"s_sub_u32 s{S_T2}, {u}, {lo}"); e(f"s_cmp_ge_u32 {u}, {lo}"); e(f"s_cselect_b32 s{so}, s{S_T2}, s{so}")
        e(f"s_and_b32 s{srd+1}, s{srd+1}, 0xffff"); e(f"s_mov_b32 s{srd+3}, 0x20000")
        e(f"s_lshl_b32 s{so}, s{so}, 15")
def late_issue():
    l = ["buffer_load_dword v31, v30, s[44:47], s62 offen", "buffer_load_dword v31, v30, s[48:51], s63 offen"]
    return l[:1] if Opt.late_sel == 'w2' else l

def epi_qk(e, fg, gate):
    e(f"s_lshl_b32 s44, s{S_RB}, 2"); e(f"s_add_u32 s44, s44, s{S_TT}")
    e(f"s_lshl_b32 s45, s{S_CQ}, 3")
    e("s_lshl_b32 s46, s45, 16"); e("s_lshl_b32 s47, s44, 10"); e("s_add_u32 s46, s46, s47"); e("s_add_u32 s46, s46, s42")
    P = 128
    for i, T in enumerate(TILES[fg]):
        if T == 4: continue
        for j in range(16): e(f"v_mul_f32 v{ACC+16*i+j}, s41, v{ACC+16*i+j}")
        for hh in range(2):
            p = P + 8 * (i % 2) + 4 * hh
            for j in range(4): e(f"v_cvt_pk_bf16_f32 v{p+j}, v{ACC+16*i+8*hh+2*j}, v{ACC+16*i+8*hh+2*j+1}")
            e(f"s_add_u32 s47, s46, {HEADS[T][hh]*65536}")
            e(f"buffer_store_dwordx4 {vr(p,4)}, v{V_L16}, s[{S_WS}:{S_WS+3}], s47 offen")
    if fg == 1:
        a = ACC + 32
        for j in range(8): e(f"v_mul_f32 v{a+j}, s41, v{a+j}")
        for j in range(4): e(f"v_cvt_pk_bf16_f32 v{144+j}, v{a+2*j}, v{a+2*j+1}")
        e("v_and_b32 v21, 31, v0"); e("v_lshlrev_b32 v21, 2, v21"); e("v_lshrrev_b32 v29, 5, v0"); e("v_lshlrev_b32 v29, 14, v29"); e("v_add_u32 v21, v21, v29")
        e("s_lshl_b32 s46, s45, 13"); e("s_lshl_b32 s47, s44, 7"); e("s_add_u32 s46, s46, s47"); e("s_add_u32 s46, s46, s43")
        for j, hoff in enumerate([0, 1, 4, 5]):
            e(f"s_add_u32 s47, s46, {hoff*8192}")
            e(f"buffer_store_dword v{144+j}, v21, s[{S_WS}:{S_WS+3}], s47 offen")
    if gate:
        e(f"v_mul_f32 v23, {hexf(-math.log2(math.e))}, v{EX0}"); e("v_exp_f32 v23, v23"); e("s_nop 0"); e("v_add_f32 v23, 1.0, v23"); e("v_rcp_f32 v23, v23")
        e("v_and_b32 v21, 31, v0"); e("v_lshlrev_b32 v21, 2, v21")
        e("s_lshl_b32 s47, s44, 7"); e(f"s_add_u32 s47, s47, {LY.G}")
        e("s_mov_b64 exec, 0xffffffff")
        e(f"buffer_store_dword v23, v21, s[{S_WS}:{S_WS+3}], s47 offen")
    if Opt.late_touch and not Opt.touch_in_loop and fg == 1:
        late_setup(e); e.extend(late_issue())
    if Opt.repack_l1: e("s_branch L1_tail")
    else: fin(e)

def epi_v(e, fg):
    e(f"s_lshl_b32 s44, s{S_RB}, 2"); e(f"s_add_u32 s44, s44, s{S_TT}")
    e(f"s_lshl_b32 s45, s{S_CQ}, 3")
    e(f"s_mul_i32 s46, s45, {LY.VHEAD}"); e("s_mul_i32 s47, s44, 1216"); e("s_add_u32 s46, s46, s47"); e(f"s_add_u32 s46, s46, {LY.VF}")
    e("v_lshrrev_b32 v21, 5, v0"); e("v_mul_u32_u24 v21, 304, v21")
    e("v_and_b32 v22, 15, v0"); e("v_lshlrev_b32 v22, 4, v22"); e("v_add_u32 v22, v22, v21")
    e("v_bfe_u32 v23, v0, 4, 1")
    e(f"s_mov_b32 s47, {LY.VHEAD}")
    e("v_mul_lo_u32 v24, v23, s47")
    e("v_add_u32 v25, v22, v24")
    if fg == 0: e("v_mul_u32_u24 v24, 7, v24"); e("v_add_u32 v26, v22, v24")
    P = 128
    for i, T in enumerate(TILES[fg]):
        if T == 4: continue
        ad = 26 if T == 0 else 25
        hb = 0 if T == 0 else HEADS[T][0]
        e(f"s_add_u32 s47, s46, {hb*LY.VHEAD}")
        for hh in range(2):
            p = P + 8 * (i % 2) + 4 * hh
            for j in range(4): e(f"v_cvt_pk_bf16_f32 v{p+j}, v{ACC+16*i+8*hh+2*j}, v{ACC+16*i+8*hh+2*j+1}")
            e(f"buffer_store_dwordx4 {vr(p,4)}, v{ad}, s[{S_WS}:{S_WS+3}], s47 offen offset:{608*hh}")
    if fg == 1:
        a = ACC + 32
        e("v_and_b32 v22, 31, v0")
        e("v_lshrrev_b32 v23, 2, v22"); e("v_lshlrev_b32 v23, 1, v23"); e("v_bfe_u32 v24, v22, 1, 1"); e("v_add_u32 v23, v23, v24")
        e("v_and_b32 v24, 1, v22"); e("v_add_u32 v24, 16, v24")
        e("v_cmp_lt_u32 vcc, 15, v22"); e("v_subrev_u32 v25, 16, v22"); e("v_mov_b32 v27, 18")
        e("v_cndmask_b32 v23, v23, v25, vcc"); e("v_cndmask_b32 v24, v24, v27, vcc")
        e(f"s_mov_b32 s47, {LY.VHEAD}"); e("v_mul_lo_u32 v23, v23, s47"); e("v_lshlrev_b32 v24, 4, v24"); e("v_add3_u32 v23, v23, v24, v21")
        e("v_mov_b32 v27, 0x3f803f80")
        for hh in range(2):
            for j in range(4):
                e(f"v_cvt_pk_bf16_f32 v{144+4*hh+j}, v{a+8*hh+2*j}, v{a+8*hh+2*j+1}")
                e(f"v_cndmask_b32 v{144+4*hh+j}, v{144+4*hh+j}, v27, vcc")
        e("v_cmp_gt_u32 vcc, 24, v22"); e("s_nop 1")
        e("s_and_saveexec_b64 s[48:49], vcc")
        for hh in range(2):
            e(f"buffer_store_dwordx4 {vr(144+4*hh,4)}, v23, s[{S_WS}:{S_WS+3}], s46 offen offset:{608*hh}")
    if Opt.late_touch and not Opt.touch_in_loop and fg == 1:
        late_setup(e); e.extend(late_issue())
    if Opt.repack_l1: e("s_branch L1_tail")
    else: fin(e)

def epi_h(e, fg):
    ST = 22
    nT = len(TILES[fg]); T0 = TILES[fg][0]
    for i in range(nT): e(f"v_mov_b32 v{128+i}, v{V_CS+i}")
    e("v_and_b32 v21, 31, v0"); e("v_lshlrev_b32 v21, 2, v21")
    for i in range(nT): e(f"v_permlane32_swap_b32 v{128+i}, v{V_CS+i}")
    for i in range(nT): e(f"v_add_f32 v{V_CS+i}, v{128+i}, v{V_CS+i}")
    e(f"s_mul_i32 s44, s{S_TT}, 640"); e(f"s_add_u32 s44, s44, {XCH_OFF + 128*T0}"); e("v_add_u32 v29, s44, v21")
    for i in range(nT): e(f"ds_write_b32 v29, v{V_CS+i} offset:{128*i}")
    e("v_lshlrev_b32 v27, 1, v21"); e(f"s_lshl_b32 s44, s{S_TT}, 8"); e(f"s_add_u32 s44, s44, {XCH_OFF+2560}"); e("v_add_u32 v27, s44, v27")
    if fg == 0:
        if Opt.h_gram:
            for b, (bit, sp) in enumerate(((0, 44), (1, 46), (3, 48), (4, 52))):
                e(f"v_bfe_u32 v28, v0, {bit}, 1"); e(f"v_cmp_eq_u32 s[{sp}:{sp+1}], 1, v28")
            e("v_bfe_u32 v28, v0, 2, 1"); e("v_lshrrev_b32 v26, 5, v0"); e("v_cmp_eq_u32 vcc, v26, v28")
            e("s_nop 0")
            for i in range(8): e(f"v_cndmask_b32 v{EX1+i}, v{EX1+2*i}, v{EX1+2*i+1}, s[44:45]")
            for i in range(4): e(f"v_cndmask_b32 v{EX1+i}, v{EX1+2*i}, v{EX1+2*i+1}, s[46:47]")
            for i in range(2): e(f"v_cndmask_b32 v{EX1+i}, v{EX1+2*i}, v{EX1+2*i+1}, s[48:49]")
            e(f"v_cndmask_b32 v{EX1}, v{EX1}, v{EX1+1}, s[52:53]")
            e(f"v_cndmask_b32 v{ST+1}, 0, v{EX1}, vcc")
        else:
            e(f"v_add_f32 v{ST+1}, v{V_ST+2}, v{V_ST+3}")
        e(f"v_mov_b32 v25, v{ST+1}"); e(f"v_mul_f32 v{ST}, {hexf(1/576)}, v{EX0}"); e("s_nop 0")
        e(f"v_permlane32_swap_b32 v25, v{ST+1}")
        e(f"v_add_f32 v{ST+1}, v25, v{ST+1}")
        e(f"v_mul_f32 v{ST+1}, {hexf(1/576)}, v{ST+1}")
        e(f"v_fma_f32 v{ST+1}, -v{ST}, v{ST}, v{ST+1}"); e(f"v_max_f32 v{ST+1}, 0, v{ST+1}"); e(f"v_add_f32 v{ST+1}, {hexf(1e-5)}, v{ST+1}")
        e(f"ds_write_b64 v27, {vr(ST,2)}")
    e("s_waitcnt lgkmcnt(0)"); e("s_barrier")
    if fg == 1: e(f"ds_read_b64 {vr(ST,2)}, v27")
    e(f"v_add_u32 v29, {XCH_OFF + 128*T0}, v21")
    for i in range(nT):
        for wv in range(4): e(f"ds_read_b32 v{144+4*i+wv}, v29 offset:{640*wv+128*i}")
    e("s_waitcnt lgkmcnt(0)")
    for i in range(nT):
        e(f"v_add_f32 v{144+4*i}, v{144+4*i}, v{145+4*i}"); e(f"v_add_f32 v{146+4*i}, v{146+4*i}, v{147+4*i}"); e(f"v_add_f32 v{144+4*i}, v{144+4*i}, v{146+4*i}")
    e(f"s_mul_i32 s44, s{S_WV}, 384"); e(f"s_add_u32 s44, s44, {XCH_OFF+3584}"); e("v_add_u32 v29, s44, v21")
    for i in range(nT): e(f"ds_write_b32 v29, v{144+4*i} offset:{128*i}")
    e("v_lshrrev_b32 v21, 5, v0"); e("v_lshlrev_b32 v21, 4, v21"); e("v_add_u32 v29, s44, v21")
    e("s_waitcnt lgkmcnt(0)")
    SG, RR, AA, BB, MM, SS = 128, 129, 130, 132, 134, 136
    e(f"v_sqrt_f32 v{SG}, v{ST+1}"); e("s_nop 0"); e(f"v_rcp_f32 v{RR}, v{SG}"); e("s_nop 0")
    e(f"v_mul_f32 v{BB}, {hexf(GELU_C0)}, v{RR}"); e(f"v_mul_f32 v{AA}, v{RR}, v{RR}"); e(f"v_mul_f32 v{AA}, v{AA}, v{RR}"); e(f"v_mul_f32 v{AA}, {hexf(GELU_C1)}, v{AA}")
    e(f"v_mov_b32 v{AA+1}, v{AA}"); e(f"v_mov_b32 v{BB+1}, v{BB}"); e(f"v_mov_b32 v{SS}, v{SG}"); e(f"v_mov_b32 v{SS+1}, v{SG}")
    e(f"v_sub_f32 v{MM}, 0, v{ST}"); e(f"v_mov_b32 v{MM+1}, v{MM}")
    e(f"s_lshl_b32 s45, s{S_RB}, 7"); e(f"s_lshl_b32 s46, s{S_TT}, 5"); e("s_add_u32 s45, s45, s46")
    e(f"s_lshr_b32 s46, s{S_CQ}, 1"); e("s_add_u32 s46, s46, 1"); e("s_sub_u32 s47, 0, s46"); e(f"s_bitcmp1_b32 s{S_CQ}, 0"); e("s_cselect_b32 s46, s47, s46")
    e("s_add_u32 s45, s45, s46")
    e("v_and_b32 v21, 31, v0"); e("v_add_u32 v21, s45, v21")
    e("v_cmp_gt_u32 vcc, 2048, v21")
    e("v_and_b32 v21, 2047, v21")
    e("v_lshrrev_b32 v30, 5, v21"); e("s_mov_b32 s47, 36864"); e("v_mul_lo_u32 v30, v30, s47")
    e("v_and_b32 v21, 31, v21"); e("v_lshlrev_b32 v21, 4, v21"); e("v_add_u32 v30, v30, v21")
    e("v_lshrrev_b32 v21, 5, v0"); e("v_lshlrev_b32 v21, 9, v21"); e("v_add_u32 v30, v30, v21")
    e("s_mov_b64 s[50:51], vcc")
    u0 = 2 * TILES[fg][0]
    e(f"s_mul_i32 s47, s{S_CQ}, 9216"); e(f"s_add_u32 s47, s47, {LY.HS + u0*1024}")
    CS = 144; TT = 160
    def pk(op, d, a, b, c=None):
        s = f"v_pk_{op}_f32 {vr(d,2)}, {vr(a,2)}, {vr(b,2)}"
        if c is not None: s += f", {vr(c,2)}"
        return s
    u = 0
    for i, T in enumerate(TILES[fg]):
        nj = 4 if T < 4 else 2
        for j in range(nj): e(f"ds_read_b128 {vr(CS+4*j,4)}, v29 offset:{128*i+32*j}")
        e("s_waitcnt lgkmcnt(0)")
        for half in range(nj // 2):
            a = ACC + 16 * i + 8 * half; cs = CS + 8 * half
            for k in range(0, 8, 2): e(pk("fma", a + k, MM, cs + k, a + k))
            for k in range(0, 8, 2): e(pk("mul", TT + k, a + k, a + k))
            for k in range(0, 8, 2): e(pk("fma", TT + k, TT + k, AA, BB))
            for k in range(0, 8, 2): e(pk("mul", TT + k, a + k, TT + k))
            for k in range(8): e(f"v_exp_f32 v{TT+k}, v{TT+k}")
            for k in range(0, 8, 2): e(pk("fma", TT + k, TT + k, SS, SS))
            for k in range(8): e(f"v_rcp_f32 v{TT+k}, v{TT+k}")
            for k in range(0, 8, 2): e(pk("mul", a + k, a + k, TT + k))
            p = 168 + 4 * (u % 2)
            for j in range(4): e(f"v_cvt_pk_bf16_f32 v{p+j}, v{a+2*j}, v{a+2*j+1}")
            for j in range(4): e(f"v_cndmask_b32 v{p+j}, 0, v{p+j}, s[50:51]")
            e(f"buffer_store_dwordx4 {vr(p,4)}, v30, s[{S_WS}:{S_WS+3}], s47 offen offset:{(u%4)*1024}")
            if u % 4 == 3: e("s_add_u32 s47, s47, 4096")
            u += 1
    fin(e)

def role(e, variant, fg):
    if variant == "q0" and fg == 0:
        e(f"s_mov_b32 m0, {GW_OFF}"); e("s_nop 0")
        e(f"buffer_load_dwordx4 v{V_L16}, s[{S_GW}:{S_GW+3}], 0 offen lds")
        e(f"buffer_load_dwordx4 v{V_L16}, s[{S_GW}:{S_GW+3}], 0 offen offset:1024 lds")
    prologue_dma(e, fg)
    waddr(e, variant, fg)
    if variant == "q0" and fg == 0:
        e("v_lshrrev_b32 v21, 5, v0"); e("v_lshlrev_b32 v21, 4, v21"); e(f"v_add_u32 v{V_GA}, {GW_OFF}, v21")
        e(f"s_lshl_b32 s69, s{S_KC}, 7"); e(f"v_add_u32 v{V_GA}, s69, v{V_GA}")
    if Opt.late_touch and Opt.touch_in_loop and fg == 1 and variant != "h": late_setup(e)
    zero_acc(e, variant, fg)
    if variant in ("q0", "qk"):
        e("s_cmp_eq_u32 s3, 0")
        e(f"s_cselect_b32 s41, {hexf(QSCALE)}, 1.0"); e(f"s_mov_b32 s42, {LY.KF0}"); e(f"s_cselect_b32 s42, {LY.QF0}, s42"); e(f"s_mov_b32 s43, {LY.KX}"); e(f"s_cselect_b32 s43, {LY.QX}, s43")
    main_loop(e, variant, fg)
    if variant in ("q0", "qk"): epi_qk(e, fg, variant == "q0" and fg == 0)
    elif variant == "v": epi_v(e, fg)
    else: epi_h(e, fg)

def gen():
    e = Emit()
    kernel_head(e, NAME)
    Diag.kid = 0
    e("s_cmp_ge_u32 s2, 256")
    e("s_cbranch_scc1 L1_exit")
    e(f"s_load_dwordx2 s[4:5], s[0:1], {KA_WS}")
    e(f"s_load_dwordx4 s[52:55], s[0:1], {KA_XA}")
    e(f"s_load_dwordx2 s[58:59], s[0:1], {KA_W1}")
    e(f"s_load_dwordx2 s[60:61], s[0:1], {KA_GW}")
    e("s_and_b32 s6, s2, 7"); e("s_lshr_b32 s7, s2, 3")
    e("v_lshrrev_b32 v1, 6, v0"); e("v_and_b32 v0, 63, v0")
    e(f"v_readfirstlane_b32 s{S_WV}, v1")
    e(f"s_and_b32 s{S_RB}, s6, 3"); e(f"s_lshl_b32 s{S_RB}, s{S_RB}, 2"); e("s_and_b32 s3, s7, 3"); e(f"s_add_u32 s{S_RB}, s{S_RB}, s3")
    e(f"s_lshr_b32 s{S_CQ}, s6, 2"); e(f"s_lshl_b32 s{S_CQ}, s{S_CQ}, 1"); e("s_bfe_u32 s3, s7, 0x10002"); e(f"s_add_u32 s{S_CQ}, s{S_CQ}, s3")
    e("s_lshr_b32 s3, s7, 3"); e(f"s_lshl_b32 s{S_CT}, s3, 2"); e(f"s_add_u32 s{S_CT}, s{S_CT}, s{S_CQ}")
    e(f"v_lshlrev_b32 v{V_L16}, 4, v0")
    e(f"s_and_b32 s{S_TT}, s{S_WV}, 3")
    e("s_waitcnt lgkmcnt(0)")
    make_srd(e, S_WS, 4, LY.WS_END)
    stamp(e, 0, 'any')
    dbg_start(e)
    if Opt.fuse_l2 and Opt.cnt_ws:
        e("s_cmp_eq_u32 s2, 0"); e("s_cbranch_scc0 L1_nocnt")
        e(f"s_cmp_eq_u32 s{S_WV}, 7"); e("s_cbranch_scc0 L1_nocnt")
        e("v_lshlrev_b32 v2, 7, v0"); e("v_mov_b32 v3, 0"); e(f"s_mov_b32 s69, {LY.CNT}")
        e(f"buffer_store_dword v3, v2, s[{S_WS}:{S_WS+3}], s69 offen")
        e.label("L1_nocnt")
    e("s_cmp_eq_u32 s3, 3")
    e("s_cselect_b32 s64, s58, s54"); e("s_cselect_b32 s65, s59, s55")
    e(f"s_movk_i32 s{S_RS}, 3456"); e(f"s_cselect_b32 s{S_RS}, 1152, s{S_RS}")
    e(f"s_mov_b32 s67, {SLOT}"); e(f"s_mov_b32 s68, {(-3*SLOT) & 0xffffffff}")
    e(f"s_cselect_b32 s66, s{S_CQ}, s{S_CT}")
    make_srd(e, S_X, 52, 2048 * 576 * 2)
    e(f"s_mov_b32 s{S_W}, s64"); e(f"s_and_b32 s{S_W+1}, s65, 0xffff"); e(f"s_mul_i32 s{S_W+2}, s{S_RS}, 576"); e(f"s_mov_b32 s{S_W+3}, 0x20000")
    make_srd(e, S_GW, 60, 1152)
    e(f"s_lshl_b32 s{S_XO}, s{S_RB}, 2"); e(f"s_add_u32 s{S_XO}, s{S_XO}, s{S_TT}"); e(f"s_mul_i32 s{S_XO}, s{S_XO}, 36864")
    e(f"s_mul_i32 s{S_WO}, s66, 288")
    e(f"s_lshl_b32 s{S_WSTEP}, s{S_RS}, 6")
    e("s_and_b32 s69, s7, 3"); e("s_lshl_b32 s69, s69, 1"); e(f"s_lshr_b32 s{S_KX}, s7, 2"); e(f"s_add_u32 s{S_KX}, s{S_KX}, s69")
    e(f"s_cmp_ge_u32 s{S_KX}, 9"); e(f"s_cselect_b32 s69, 9, 0"); e(f"s_sub_u32 s{S_KX}, s{S_KX}, s69")
    if not Opt.rotate: e(f"s_mov_b32 s{S_KX}, 0")
    e(f"s_mov_b32 s{S_KW}, s{S_KX}"); e(f"s_mov_b32 s{S_KC}, s{S_KX}")
    e(f"s_lshl_b32 s69, s{S_KX}, 7"); e(f"s_add_u32 s{S_XO}, s{S_XO}, s69")
    e(f"s_mul_i32 s69, s{S_KX}, s{S_WSTEP}"); e(f"s_add_u32 s{S_WO}, s{S_WO}, s69")
    e(f"s_mul_i32 s{S_WBACK}, s{S_WSTEP}, -8"); e(f"s_movk_i32 s{S_C128}, 128")
    if Opt.icache_test == "line":
        for i in range(512): e(f"v_fma_f32 v{40+i%16}, v{40+i%16}, v{40+i%16}, v{40+i%16}")
    elif Opt.icache_test == "loop":
        e("s_mov_b32 s69, 16")
        e.label("L1_ictest")
        for i in range(32): e(f"v_fma_f32 v{40+i%16}, v{40+i%16}, v{40+i%16}, v{40+i%16}")
        e("s_sub_u32 s69, s69, 1"); e("s_cmp_lg_u32 s69, 0"); e("s_cbranch_scc1 L1_ictest")
    e(f"s_cmp_ge_u32 s{S_WV}, 4"); e("s_cbranch_scc1 L1_fg1")
    code_prefetch(e, NAME, "L1_exit", 3, vaddr=28, vtmp=29, vdst=31, sp=62)
    e("s_cmp_eq_u32 s3, 2"); e("s_cbranch_scc1 L1_v0")
    e("s_cmp_eq_u32 s3, 3"); e("s_cbranch_scc1 L1_h0")
    e(f"s_cmp_eq_u32 s{S_CT}, 0"); e("s_cbranch_scc0 L1_qk0")
    role(e, "q0", 0)
    e.label("L1_qk0"); role(e, "qk", 0)
    e.label("L1_v0"); role(e, "v", 0)
    e.label("L1_h0"); role(e, "h", 0)
    e.label("L1_fg1")
    e("s_cmp_eq_u32 s3, 2"); e("s_cbranch_scc1 L1_v1")
    e("s_cmp_eq_u32 s3, 3"); e("s_cbranch_scc1 L1_h1")
    role(e, "qk", 1)
    e.label("L1_v1"); role(e, "v", 1)
    e.label("L1_h1"); role(e, "h", 1)
    if Opt.repack_l1: gen_repack.gen_tail(e)
    e.label("L1_exit")
    e("s_endpgm")
    return e.text()
if __name__ == "__main__":
    t = gen()
    errs = check(t, "l1")
    for x in errs: print(x)
    print("instrs", sum(1 for l in t.split("\n") if l.startswith("    ")), "hazard errs", len(errs))
```

```python
from gen_common import *
import os
import gen_pre, gen_l4

NAME = "l3_kernel"
LDS_BYTES = 4 * 36864

V_PA, V_PB = 0, 1
V_DMA    = 2
V_A, V_B, V_S = 3, 4, 5
TA = [6, 7, 8, 9]
V_P1, V_PC = 10, 11
V_RA, V_RB = 12, 13
V_E, V_O = 14, 15
V_W = 16
NB = 6
V_HP = 40
V_H = [48, 64]
SLOT = {"C": 0, "D": 36864, "A": 73728, "B": 110592}
def OUT(dt):
    return (True, 80 + 16 * dt) if dt < 11 else (False, 144 + 16 * (dt - 11))
def outreg(dt):
    isv_, b = OUT(dt)
    return vr(b, 16) if isv_ else ar(b, 16)
S_SRD = 12
S_W4 = 24
S_W, S_J = 8, 7
S_M0B = 18
S_D3 = [19, 20, 21]
S_D4 = [28, 29, 31]
S_CNT = 22

def gelu_group(H, elems, temps):
    o = []
    for e_, t in zip(elems, temps): o.append(f"v_mul_f32 v{t}, v{H+e_}, v{H+e_}")
    for e_, t in zip(elems, temps): o.append(f"v_fma_f32 v{t}, v{t}, v{V_A}, v{V_B}")
    for e_, t in zip(elems, temps): o.append(f"v_mul_f32 v{t}, v{H+e_}, v{t}")
    for e_, t in zip(elems, temps): o.append(f"v_exp_f32 v{t}, v{t}")
    for e_, t in zip(elems, temps): o.append(f"v_fma_f32 v{t}, v{t}, v{V_S}, v{V_S}")
    for e_, t in zip(elems, temps): o.append(f"v_rcp_f32 v{t}, v{t}")
    for e_, t in zip(elems, temps): o.append(f"v_mul_f32 v{H+e_}, v{H+e_}, v{t}")
    return o
def gelu_groups(H, gs):
    o = []
    for g in gs: o += gelu_group(H, range(4 * g, 4 * g + 4), TA)
    return o
def cvts(H, js):
    return [f"v_cvt_pk_bf16_f32 v{V_HP+j}, v{H+2*j}, v{H+2*j+1}" for j in js]

def s1_mfmas(c):
    H = V_H[c & 1]
    return [f"v_mfma_f32_32x32x16_bf16 {vr(H,16)}, {vr(V_W+4*(j%NB),4)}, {ar(4*j,4)}, " + ("0" if j == 0 else vr(H, 16)) for j in range(36)]
def s2_mfmas():
    o = []
    for m in range(36):
        q, dt = divmod(m, 18)
        o.append(f"v_mfma_f32_32x32x16_bf16 {outreg(dt)}, {vr(V_W+4*(m%NB),4)}, {vr(V_HP+4*q,4)}, {outreg(dt)}")
    return o

def rd(ph, m):
    kind, slot = ph[0], ph[1]
    b = V_W + 4 * (m % NB)
    if kind == "S1":
        reg = ph[2] if len(ph) > 2 else {"A": V_RA, "B": V_RB}[slot]
        return [f"ds_read_b128 {vr(b,4)}, v{reg} offset:{m*1024}"]
    q, dt = divmod(m, 18)
    reg = V_O if dt & 1 else V_E
    off = SLOT[slot] + q * 18432 + (dt >> 1) * 128
    return [f"ds_read_b64_tr_b16 {vr(b,2)}, v{reg} offset:{off}", f"ds_read_b64_tr_b16 {vr(b+2,2)}, v{reg} offset:{off + 4608}"]

W4PAT = [V_DMA, V_DMA, V_PA, V_P1, V_PB, V_DMA, V_PC, V_P1, V_P1]
def dma_instrs(kind, slot):
    g = []
    for i in range(9):
        grp, k = divmod(i, 4)
        pre = []
        if k == 0: pre.append(f"s_add_u32 m0, s{S_M0B}, {SLOT[slot] + grp*4096}")
        if kind == "S1":
            sc = " sc1" if (Opt.fuse_l2 and not Opt.acquire) else ""
            g.append((pre, f"buffer_load_dwordx4 v{V_DMA}, s[{S_SRD}:{S_SRD+3}], s{S_D3[grp]} offen offset:{k*1024}{sc} lds"))
        else:
            g.append((pre, f"buffer_load_dwordx4 v{W4PAT[i]}, s[{S_W4}:{S_W4+3}], s{S_D4[grp]} offen offset:{k*1024} lds"))
    return g
def dma_advance(kind):
    return [f"s_add_u32 s{r}, s{r}, 36864" for r in (S_D3 if kind == "S1" else S_D4)]

def phase(e, mf, ph, nxt, dma, fill, fill_range, last_vm=9, tail=None, xwait=False, early_dma=False, pre_next=None):
    gaps = {}
    issued = []
    for m in range(NB): issued.append((m, len(rd(ph, m))))
    waits = {}
    for j in range(36):
        L = gaps.setdefault(j, [])
        m = j + NB
        if m < 36:
            r = rd(ph, m); L += r; issued.append((m, len(r)))
        elif nxt is not None:
            if m == 36:
                if pre_next: L += pre_next
                L.append(f"s_waitcnt vmcnt({last_vm})")
                L.append("s_barrier")
            r = rd(nxt, m - 36); L += r; issued.append((m, len(r)))
        if (j + 1) % 2 == 0 and (j + 1 < 36 or nxt is not None):
            allowed = sum(n for (mm, n) in issued if mm > j + 2)
            waits[j] = f"s_waitcnt lgkmcnt({min(allowed, 15)})"
    pos = [1, 4, 7, 10, 13, 16, 19, 22, 25] if not early_dma else [0, 1, 2, 3, 4, 5, 6, 7, 8]
    if dma is not None:
        d = dma_instrs(*dma)
        for (pre, ld), p in zip(d, pos):
            if pre:
                if p > 0 and not early_dma: gaps[p - 1] += pre
                else: gaps[p] += pre + ["s_nop 0"]
            gaps[p].append(ld)
        gaps[27] += dma_advance(dma[0])
    if xwait:
        for j in range(4, 36, 4):
            ndma = sum(1 for p in pos if p <= j - 1)
            allowed = (35 - (j + 3)) + 9 + ndma
            gaps[j - 1].append(f"s_waitcnt vmcnt({allowed})")
    if fill:
        spread(gaps, fill, fill_range[0], fill_range[1])
    for j, w in waits.items(): gaps[j].append(w)
    e.extend(weave(mf, gaps))
    if tail: e.extend(tail)

def gen_mlp(e):
    R = f"s[{S_SRD}:{S_SRD+3}]"
    fused = Opt.fuse_l2
    SC = " sc1" if fused else ""
    e.label("L3_mlp")
    a = Opt.mlp_rbx
    if a != 16:
        la = {8: 3, 4: 2, 2: 1}[a]; nx = 16 // a
        e(f"s_and_b32 s9, s6, {nx-1}"); e(f"s_lshl_b32 s9, s9, {la}"); e(f"s_and_b32 s10, s7, {a-1}"); e("s_add_u32 s9, s9, s10")
        e(f"s_lshr_b32 s10, s6, {4-la}"); e(f"s_lshl_b32 s10, s10, {4-la}"); e(f"s_lshr_b32 s11, s7, {la}"); e("s_add_u32 s6, s10, s11")
        e("s_mov_b32 s7, s9")
    if fused: gen_pre.gen_mlp_wait(e)
    stamp(e, 4, 'pre')
    e(f"s_load_dwordx2 s[32:33], s[0:1], {KA_W4}")
    e(f"s_lshl_b32 s9, s7, 2")
    e(f"s_add_u32 s9, s9, s{S_W}")
    e(f"s_mul_i32 s{S_M0B}, s{S_W}, 9216")
    e(f"s_mul_i32 s10, s6, {18*36864}")
    e(f"s_add_u32 s{S_D3[0]}, s10, {LY.W3P}")
    e(f"s_add_u32 s{S_D3[1]}, s{S_D3[0]}, 4096"); e(f"s_add_u32 s{S_D3[2]}, s{S_D3[0]}, 8192")
    e(f"s_mov_b32 s{S_D4[0]}, s10"); e(f"s_add_u32 s{S_D4[1]}, s10, 4096"); e(f"s_add_u32 s{S_D4[2]}, s10, 8192")
    LN = TA[1]
    e(f"v_lshlrev_b32 v{LN}, 4, v0")
    e(f"v_add_u32 v{V_DMA}, s{S_M0B}, v{LN}")
    e(f"v_add_u32 v{V_RA}, {SLOT['A']}, v{LN}"); e(f"v_add_u32 v{V_RB}, {SLOT['B']}, v{LN}")
    e(f"v_add_u32 v{TA[0]}, {SLOT['D']}, v{LN}")
    e("v_and_b32 v8, 31, v0"); e("v_lshlrev_b32 v8, 2, v8"); e("v_lshrrev_b32 v9, 5, v0"); e("v_lshlrev_b32 v9, 13, v9"); e("v_add_u32 v8, v8, v9")
    def partA2():
        e("v_lshrrev_b32 v9, 3, v0")
        e(f"v_xor_b32 v{V_P1}, 64, v{V_DMA}")
        e("v_cmp_lt_u32 vcc, 5, v9"); e("s_nop 1"); e(f"v_cndmask_b32 v{V_PC}, v{V_DMA}, v{V_P1}, vcc")
        e("v_cmp_gt_u32 vcc, 4, v9"); e("s_nop 1"); e(f"v_cndmask_b32 v{V_PB}, v{V_DMA}, v{V_P1}, vcc")
        e("v_lshrrev_b32 v16, 5, v0"); e("v_bfe_u32 v17, v0, 4, 1"); e("v_bfe_u32 v18, v0, 2, 2")
        e("v_and_b32 v19, 1, v0"); e("v_bfe_u32 v21, v0, 1, 1")
        e("v_lshlrev_b32 v17, 1, v17"); e("v_add_u32 v17, v17, v19")
        e("v_lshrrev_b32 v19, 1, v18"); e("v_lshlrev_b32 v19, 2, v19"); e("v_xor_b32 v17, v17, v19")
        e("v_lshlrev_b32 v16, 3, v16"); e("v_add_u32 v16, v16, v18"); e("v_mul_u32_u24 v16, 1152, v16")
        e("v_lshlrev_b32 v21, 3, v21"); e("v_add_u32 v16, v16, v21")
        e(f"v_lshlrev_b32 v17, 4, v17"); e(f"v_add_u32 v{V_E}, v16, v17"); e(f"v_xor_b32 v17, 64, v17"); e(f"v_add_u32 v{V_O}, v16, v17")
        e("v_cmp_lt_u32 vcc, 1, v9"); e("s_waitcnt lgkmcnt(0)"); e("s_nop 0"); e(f"v_cndmask_b32 v{V_PA}, v{V_DMA}, v{V_P1}, vcc")
        make_srd(e, S_W4, 32, 576 * 4608 * 2)
        for i in range(4): e(f"v_mov_b32 v{V_W+i}, 0")
        e("s_nop 1")
        for dt in range(18):
            e(f"v_mfma_f32_32x32x16_bf16 {outreg(dt)}, {vr(V_W,4)}, {vr(V_W,4)}, 0")
    if fused:
        partA2()
        e("s_waitcnt vmcnt(0)")
        e("s_barrier")
        stamp(e, 5, 'pre')
    for pre, ld in dma_instrs("S1", "D"):
        for p in pre: e(p)
        if pre: e("s_nop 0")
        e(ld)
    for a in dma_advance("S1"): e(a)
    e("s_lshl_b32 s17, s9, 7")
    e(f"s_add_u32 s17, s17, {LY.ST2}")
    NST = LY.NSTAT
    assert NST <= 20
    sreg = ([64 + p for p in range(16)] + [40 + p for p in range(4)])[:NST]
    for p in range(NST):
        e(f"buffer_load_dword v{sreg[p]}, v8, {R}, s17 offen{SC}")
        if p != NST - 1: e("s_add_u32 s17, s17, 16384")
    e(f"s_mul_i32 s16, s9, 36864")
    e(f"s_add_u32 s16, s16, {LY.X1F}")
    for j in range(36):
        e(f"buffer_load_dwordx4 {ar(4*j,4)}, v{LN}, {R}, s16 offen offset:{(j%4)*1024}{SC}")
        if j % 4 == 3 and j != 35: e("s_add_u32 s16, s16, 4096")
    for pre, ld in dma_instrs("S1", "B"):
        for p in pre: e(p)
        if pre: e("s_nop 0")
        e(ld)
    for a in dma_advance("S1"): e(a)
    stamp(e, 1)
    if not fused: partA2()
    st = []
    for p in sreg[1:]: st.append(f"v_add_f32 v64, v64, v{p}")
    st += ["v_mov_b32 v65, v64", "s_nop 1", "v_permlane32_swap_b32 v64, v65",
           f"v_mul_f32 v64, {hexf(1/576)}, v64", f"v_mul_f32 v65, {hexf(1/576)}, v65", "v_fma_f32 v65, -v64, v64, v65",
           "v_max_f32 v65, 0, v65", f"v_add_f32 v65, {hexf(1e-5)}, v65", f"v_sqrt_f32 v{V_S}, v65", "s_nop 0", f"v_rcp_f32 v66, v{V_S}", "s_nop 0",
           f"v_mul_f32 v{V_B}, {hexf(GELU_C0)}, v66", "v_mul_f32 v67, v66, v66", "v_mul_f32 v67, v67, v66", f"v_mul_f32 v{V_A}, {hexf(GELU_C1)}, v67"]
    e("s_waitcnt vmcnt(45)")
    e("s_barrier")
    stamp(e, 2)
    P0 = ("S1", "D", TA[0])
    for m in range(NB): e.extend(rd(P0, m))
    e("s_waitcnt vmcnt(41)")
    e(f"s_waitcnt lgkmcnt({NB-2})")
    phase(e, s1_mfmas(0), P0, ("S1", "B"), ("S2", "C"), st, (0, 30), xwait=True)
    phase(e, s1_mfmas(1), ("S1", "B"), ("S2", "C"), ("S1", "A"), gelu_groups(V_H[0], range(4)) + cvts(V_H[0], range(8)), (3, 35))
    stamp(e, 3)
    e(f"s_mov_b32 s{S_CNT}, 8")
    e(".p2align 6")
    e.label("L3_mlp_loop")
    GA = Opt.gelu_split
    for half in range(2):
        Hn = V_H[(half + 1) & 1]
        s2, s2n = ("C", "D") if half == 0 else ("D", "C")
        s1, s1n = ("A", "B") if half == 0 else ("B", "A")
        phase(e, s2_mfmas(), ("S2", s2), ("S1", s1), ("S2", s2n), gelu_groups(Hn, range(GA)), (3, 36))
        gb = cvts(Hn, range(2 * GA))
        for g in range(GA, 4): gb += gelu_groups(Hn, [g]) + cvts(Hn, range(2 * g, 2 * g + 2))
        phase(e, s1_mfmas(half), ("S1", s1), ("S2", s2n), ("S1", s1n), gb, (0, 35))
    e(f"s_sub_u32 s{S_CNT}, s{S_CNT}, 1")
    e(f"s_cmp_lg_u32 s{S_CNT}, 0")
    e("s_cbranch_scc1 L3_mlp_loop")
    stamp(e, 4)
    H = V_H[1]
    early = Opt.fuse_l4 and Opt.early_wo
    tail34 = cvts(H, range(8)) + [f"v_subrev_u32 v{TA[0]}, s{S_M0B}, v{V_DMA}", "s_nop 0"]
    wo_loads = []
    if early:
        e("s_lshr_b32 s61, s2, 3"); e("s_and_b32 s61, s61, 3"); e("s_mul_i32 s61, s61, 180"); e(f"s_mul_i32 s62, s{S_W}, 9"); e("s_add_u32 s61, s61, s62")
        e("s_lshl_b32 s61, s61, 10"); e(f"s_add_u32 s61, s61, {LY.WOP}")
        for T in range(5):
            for g in range(3): e(f"s_add_u32 s{36+3*T+g}, s61, {T*36864 + g*4096}")
        def wl(T, k): return f"buffer_load_dwordx4 {ar(4*(9*T+k),4)}, v{TA[0]}, {R}, s{36+3*T+k//4} offen offset:{(k%4)*1024} sc1"
        wo_loads = [wl(T, k) for k in range(9) for T in range(4)]
    phase(e, s2_mfmas(), ("S2", "C"), ("S2", "D"), ("S2", "D"), gelu_groups(H, range(4)), (9, 36), last_vm=0, tail=tail34, early_dma=True)
    phase(e, s2_mfmas(), ("S2", "D"), None, None, wo_loads or None, (0, 36))
    stamp(e, 5)
    e(f"s_lshl_b32 s10, s6, 6")
    e(f"s_add_u32 s10, s10, s9")
    e(f"s_mul_i32 s10, s10, 36864")
    e(f"s_add_u32 s10, s10, {LY.PART}")
    for g in range(9): e(f"s_add_u32 s{51+g}, s10, {g*4096}")
    e("s_nop 9")
    tb = [48, 56, 64, 72]
    order = list(range(11, 18)) + list(range(11))
    for n, dt in enumerate(order):
        isv_, b = OUT(dt)
        t = tb[n % 4]
        if isv_:
            for j in range(8): e(f"v_cvt_pk_bf16_f32 v{t+j}, v{b+2*j}, v{b+2*j+1}")
        else:
            for j in range(16): e(f"v_accvgpr_read_b32 v{16+j}, a{b+j}")
            for j in range(8): e(f"v_cvt_pk_bf16_f32 v{t+j}, v{16+2*j}, v{16+2*j+1}")
        ks = 2 * dt
        e(f"buffer_store_dwordx4 {vr(t,4)}, v{TA[0]}, {R}, s{51 + ks//4} offen offset:{(ks%4)*1024}")
        e(f"buffer_store_dwordx4 {vr(t+4,4)}, v{TA[0]}, {R}, s{51 + ks//4} offen offset:{(ks%4+1)*1024}")
        if early and dt == 13:
            for k in range(9): e(wl(4, k))
    if early: e("s_mov_b32 s66, 1")
    if Opt.fuse_l4:
        e(f"s_mul_i32 s48, s7, {gen_pre.CSTEP}"); e(f"s_add_u32 s48, s48, {gen_pre.CNT_P}")
        gen_pre.publish(e, 48)
        e("s_branch K2_final")
    else:
        fin(e)

A_K0OFF, A_KXOFF, A_VOFF = 1, 2, 3
A_M = 8
A_O = 32
A_S = [160, 192]
A_P = [224, 240]
NSET = 2
AG_SET = 0
def SET(i): return AG_SET + 28 * (i % NSET)
AG_Q0 = 56
AG_QX = 88
SA_K, SA_KX, SA_V = 16, 17, 18
SA_CNT = 22
NQ = 8

def attn_loads(st):
    b = SET(st); R = f"s[{S_SRD}:{S_SRD+3}]"
    o = [f"buffer_load_dwordx4 {ar(b,4)}, v{A_K0OFF}, {R}, s{SA_K} offen",
         f"buffer_load_dwordx4 {ar(b+4,4)}, v{A_K0OFF}, {R}, s{SA_K} offen offset:1024",
         f"buffer_load_dword a{b+24}, v{A_KXOFF}, {R}, s{SA_KX} offen"]
    for i in range(4):
        o.append(f"buffer_load_dwordx4 {ar(b+8+4*i,4)}, v{A_VOFF}, {R}, s{SA_V} offen" + (f" offset:{608*i}" if i else ""))
    o += [f"s_add_u32 s{SA_K}, s{SA_K}, 2048", f"s_add_u32 s{SA_KX}, s{SA_KX}, 256", f"s_add_u32 s{SA_V}, s{SA_V}, 2432"]
    return o
def qk(kp, qi, S):
    b = SET(kp)
    return [f"v_mfma_f32_32x32x4_2b_bf16 {vr(S,32)}, {ar(b+24,2)}, {ar(AG_QX+2*qi,2)}, 0",
            f"v_mfma_f32_32x32x16_bf16 {vr(S,16)}, {ar(b,4)}, {ar(AG_Q0+4*qi,4)}, {vr(S,16)}",
            f"v_mfma_f32_32x32x16_bf16 {vr(S+16,16)}, {ar(b+4,4)}, {ar(AG_Q0+4*qi,4)}, {vr(S+16,16)}"]
def pv(kp, qi, P):
    b = SET(kp); O = A_O + 16 * qi
    return [f"v_mfma_f32_32x32x16_bf16 {vr(O,16)}, {ar(b+8+4*i,4)}, {vr(P+4*i,4)}, {vr(O,16)}" for i in range(4)]
def expcvt(n):
    S = A_S[n & 1]; P = A_P[n & 1]
    ex = [f"v_exp_f32 v{S+i}, v{S+i}" for i in range(32)]
    cv = [f"v_cvt_pk_bf16_f32 v{P+j}, v{S+2*j}, v{S+2*j+1}" for j in range(16)]
    o = ex[0:4]
    for j in range(14): o += [cv[j], ex[2*j+4], ex[2*j+5]]
    o += [cv[14], cv[15]]
    return o

def gen_attn(e, force_slow=False):
    R = f"s[{S_SRD}:{S_SRD+3}]"
    e.label("L3_attn")
    e("s_sub_u32 s7, s7, 16")
    if Opt.w4_touch:
        e(f"s_load_dwordx2 s[40:41], s[0:1], {KA_W4}")
        e("s_lshl_b32 s42, s7, 3"); e("s_add_u32 s42, s42, s6"); e("s_lshl_b32 s42, s42, 2"); e(f"s_add_u32 s42, s42, s{S_W}"); e("s_lshl_b32 s42, s42, 13")
        e("v_lshlrev_b32 v14, 7, v0")
        e("s_waitcnt lgkmcnt(0)")
        make_srd(e, 44, 40, 576 * 4608 * 2)
        e("buffer_load_dword v13, v14, s[44:47], s42 offen")
        e("s_add_u32 s42, s42, 4194304")
        e("buffer_load_dword v13, v14, s[44:47], s42 offen")
    e("s_lshr_b32 s9, s7, 2")
    e("s_lshl_b32 s10, s6, 2")
    e("s_add_u32 s9, s9, s10")
    e("s_and_b32 s10, s7, 3")
    e("s_lshl_b32 s10, s10, 4")
    e(f"s_and_b32 s31, s{S_W}, 1"); e("s_lshl_b32 s31, s31, 3"); e("s_add_u32 s10, s10, s31")
    e(f"s_lshr_b32 s31, s{S_W}, 1")
    e(f"v_lshlrev_b32 v{A_K0OFF}, 4, v0")
    e(f"v_lshlrev_b32 v{A_KXOFF}, 2, v0")
    e("v_and_b32 v4, 31, v0")
    e("v_lshlrev_b32 v5, 4, v4")
    e("v_lshrrev_b32 v6, 5, v0")
    e("v_mul_u32_u24 v7, 304, v6")
    e("v_add_u32 v5, v5, v7")
    e("v_cmp_lt_u32 vcc, 18, v4")
    e("v_mov_b32 v7, 0x40000000")
    e("v_lshlrev_b32 v12, 2, v4")
    e(f"v_cndmask_b32 v{A_VOFF}, v5, v7, vcc")
    e("s_lshl_b32 s11, s9, 16")
    e("s_lshl_b32 s24, s9, 13")
    e(f"s_add_u32 s26, s11, {LY.KF0}")
    e(f"s_add_u32 s27, s24, {LY.KX}")
    e(f"s_mul_i32 s28, s9, {LY.VHEAD}")
    e(f"s_add_u32 s28, s28, {LY.VF}")
    e("s_lshl_b32 s23, s31, 15"); e(f"s_add_u32 s{SA_K}, s26, s23")
    e("s_lshl_b32 s23, s31, 12"); e(f"s_add_u32 s{SA_KX}, s27, s23")
    e(f"s_mul_i32 s23, s31, {16*2432}"); e(f"s_add_u32 s{SA_V}, s28, s23")
    for x in attn_loads(0): e(x)
    e("s_lshl_b32 s23, s31, 2"); e("s_add_u32 s34, s10, s23")
    e("s_xor_b32 s23, s23, 4"); e("s_add_u32 s35, s10, s23")
    for g, sg in enumerate((34, 35)):
        e(f"s_lshl_b32 s23, s{sg}, 10"); e("s_add_u32 s23, s23, s11"); e(f"s_add_u32 s23, s23, {LY.QF0}")
        for qi in range(4):
            e(f"buffer_load_dwordx4 {ar(AG_Q0+4*(4*g+qi),4)}, v{A_K0OFF}, {R}, s23 offen offset:{qi*1024}")
        e(f"s_lshl_b32 s23, s{sg}, 7"); e("s_add_u32 s23, s23, s24"); e(f"s_add_u32 s23, s23, {LY.QX}")
        for qi in range(4):
            e(f"buffer_load_dword a{AG_QX+2*(4*g+qi)}, v12, {R}, s23 offen offset:{qi*128}")
    for i in range(16): e(f"v_mov_b32 v{A_P[1]+i}, 0")
    for i in range(16): e(f"v_accvgpr_write_b32 a{SET(1)+8+i}, 0")
    for s_ in range(NSET): e(f"v_accvgpr_write_b32 a{SET(s_)+25}, 0")
    for qi in range(NQ): e(f"v_accvgpr_write_b32 a{AG_QX+2*qi+1}, 0")
    for qi in range(NQ): e(f"v_mfma_f32_32x32x16_bf16 {vr(A_O+16*qi,16)}, {vr(A_P[1],4)}, {vr(A_P[1],4)}, 0")
    stamp(e, 1)
    e("s_waitcnt vmcnt(0)")
    stamp(e, 2)
    q0 = qk(0, 0, A_S[0])
    e(q0[0]); e("s_nop 15"); e("s_nop 1"); e(q0[1]); e(q0[2])
    e("s_nop 10")
    e(f"s_mov_b32 s{SA_CNT}, 8")
    e(".p2align 6")
    e.label("L3_attn_loop")
    NB_ = 2 * NQ
    for n in range(NB_):
        kp, qi = divmod(n, NQ)
        n1 = (n + 1) % NB_; n0 = (n - 1) % NB_
        X, Ma, Mb = qk(n1 // NQ, n1 % NQ, A_S[n1 & 1]); p = pv(n0 // NQ, n0 % NQ, A_P[n0 & 1])
        va = expcvt(n)
        seq = []
        ld = attn_loads(kp + 1)
        if qi == NQ - 1: seq.append("s_waitcnt vmcnt(4)")
        cuts = eval(os.environ.get('ATT_CUTS', '[0, 8, 15, 22, 29, 35, 42, 48]')) if qi < 7 else [0, 9, 16, 23, 30, 36, 42, 48]
        mf = [X, p[0], p[1], Ma, Mb, p[2], p[3]]
        for k in range(7):
            if k == 1 and qi == 1: seq.append("s_waitcnt vmcnt(2)")
            seq.append(mf[k])
            if k == 0 and qi < 7 and not os.environ.get('ATT_NOLOAD'): seq.append(ld[qi])
            if k == 0 and qi == 7: seq += ld[7:9]
            if k == 3 and qi == 7: seq += ld[9:10]
            seq += va[cuts[k]:cuts[k + 1]]
        e.extend(seq)
    e(f"s_sub_u32 s{SA_CNT}, s{SA_CNT}, 1")
    e(f"s_cmp_lg_u32 s{SA_CNT}, 0")
    e("s_cbranch_scc1 L3_attn_loop")
    e("s_nop 1")
    for m in pv(1, NQ - 1, A_P[1]): e(m)
    e("s_nop 15")
    stamp(e, 5)
    e(f"s_mul_i32 s23, s{S_W}, 12288"); e(f"v_add_u32 v4, s23, v{A_K0OFF}")
    for i in range(4):
        for q in range(3):
            e(f"ds_write_b128 v4, {vr(A_O+16*(4+i)+4*q,4)} offset:{(3*i+q)*1024}")
    e(f"s_xor_b32 s23, s{S_W}, 2"); e("s_mul_i32 s23, s23, 12288"); e(f"v_add_u32 v4, s23, v{A_K0OFF}")
    e("s_waitcnt lgkmcnt(0)"); e("s_barrier")
    for i in range(4):
        for q in range(3):
            e(f"ds_read_b128 {vr(A_S[0]+12*i+4*q,4)}, v4 offset:{(3*i+q)*1024}")
    e("s_waitcnt lgkmcnt(0)")
    for i in range(4):
        for r in range(11): e(f"v_add_f32 v{A_O+16*i+r}, v{A_O+16*i+r}, v{A_S[0]+12*i+r}")
    e.label("L3_attn_fin")
    e("s_mul_i32 s23, s34, 36864")
    e(f"s_add_u32 s23, s23, {LY.OF}")
    e("s_lshl_b32 s24, s9, 10")
    e("s_add_u32 s24, s24, s23")
    e("s_lshr_b32 s25, s9, 3")
    e("s_add_u32 s25, s25, 32")
    e("s_lshl_b32 s25, s25, 10")
    e("s_add_u32 s25, s25, s23")
    e("s_lshr_b32 s29, s9, 2"); e("s_and_b32 s29, s29, 1"); e("s_lshl_b32 s29, s29, 9")
    e("s_add_u32 s25, s25, s29")
    e("s_and_b32 s29, s9, 3"); e("s_lshl_b32 s29, s29, 2")
    e("s_add_u32 s25, s25, s29")
    e("s_mov_b64 s[32:33], %d" % (0 if force_slow else -1))
    for qi in range(4):
        O = A_O + 16 * qi
        e(f"v_mov_b32 v4, v{O+10}")
        e(f"v_mov_b32 v5, v{O+10}")
        e("s_nop 1")
        e("v_permlane32_swap_b32 v4, v5")
        e(f"v_cmp_le_f32 vcc, {hexf(2.0**-60)}, v4")
        e("s_and_b64 s[32:33], s[32:33], vcc")
        e(f"v_cmp_ge_f32 vcc, {hexf(2.0**100)}, v4")
        e("s_and_b64 s[32:33], s[32:33], vcc")
        e("v_rcp_f32 v5, v4")
        e("v_mov_b32 v6, 0")
        for r in range(10): e(f"v_mul_f32 v{O+r}, v{O+r}, v5")
        for r in range(10): e(f"v_fmac_f32 v6, 0, v{O+r}")
        e("v_cmp_o_f32 vcc, v6, v6")
        e("s_and_b64 s[32:33], s[32:33], vcc")
    e("s_cmp_eq_u32 s30, 0")
    e("s_cbranch_scc0 L3_attn_store")
    e("s_cmp_eq_u64 s[32:33], exec")
    e("s_cbranch_scc0 L3_attn_slow")
    e.label("L3_attn_store")
    e("v_and_b32 v4, 31, v0")
    e("v_lshlrev_b32 v4, 4, v4")
    for qi in range(4):
        O = A_O + 16 * qi
        t = A_P[0] + 8 * (qi % 4)
        for j in range(5): e(f"v_cvt_pk_bf16_f32 v{t+j}, v{O+2*j}, v{O+2*j+1}")
        e(f"buffer_store_dwordx4 {vr(t,4)}, v{A_K0OFF}, {R}, s24 offen")
        e("s_mov_b64 exec, 0xffffffff")
        e(f"buffer_store_dword v{t+4}, v4, {R}, s25 offen")
        e("s_mov_b64 exec, -1")
        if qi != 3:
            e("s_add_u32 s24, s24, 36864")
            e("s_add_u32 s25, s25, 36864")
    if Opt.fuse_l4:
        e(f"s_add_u32 s{gen_pre.S_DBG}, s4, {LY.CNT}"); e(f"s_addc_u32 s{gen_pre.S_DBG+1}, s5, 0")
        e("s_lshr_b32 s48, s2, 3"); e("s_and_b32 s48, s48, 3"); e(f"s_mul_i32 s48, s48, {gen_pre.CSTEP}"); e(f"s_add_u32 s48, s48, {gen_pre.CNT_O}")
        gen_pre.publish(e, 48)
        e("s_mov_b32 s66, 0")
        e("s_branch K2_final")
    else:
        fin(e)
    e.label("L3_attn_slow")
    M = A_M
    e("s_mov_b32 s30, 1")
    e("s_mov_b32 s16, s26"); e("s_mov_b32 s17, s27"); e("s_mov_b32 s18, s28")
    for i in range(64): e(f"v_mov_b32 v{A_O+i}, 0")
    for qi in range(4): e(f"v_mov_b32 v{M+qi}, 0xff800000")
    e(f"s_mov_b32 s{SA_CNT}, 32")
    e.label("L3_attn_slow_loop")
    e("s_waitcnt vmcnt(0)")
    for x in attn_loads(0): e(x)
    e("s_waitcnt vmcnt(0)")
    for qi in range(4):
        S = A_S[0]; P = A_P[0]; O = A_O + 16 * qi
        X, Ma, Mb = qk(0, qi, S)
        e(X); e("s_nop 15"); e("s_nop 1"); e(Ma); e(Mb)
        e("s_nop 11")
        e(f"v_max3_f32 v4, v{S}, v{S+1}, v{S+2}")
        for i in range(3, 31, 2): e(f"v_max3_f32 v4, v4, v{S+i}, v{S+i+1}")
        e(f"v_max_f32 v4, v4, v{S+31}")
        e("v_mov_b32 v5, v4")
        e("s_nop 1")
        e("v_permlane32_swap_b32 v4, v5")
        e("v_max_f32 v4, v4, v5")
        e(f"v_max_f32 v4, v4, v{M+qi}")
        e(f"v_sub_f32 v5, v{M+qi}, v4")
        e("v_exp_f32 v5, v5")
        e(f"v_mov_b32 v{M+qi}, v4")
        for i in range(32): e(f"v_sub_f32 v{S+i}, v{S+i}, v4")
        for i in range(32): e(f"v_exp_f32 v{S+i}, v{S+i}")
        for i in range(16): e(f"v_mul_f32 v{O+i}, v{O+i}, v5")
        for j in range(16): e(f"v_cvt_pk_bf16_f32 v{P+j}, v{S+2*j}, v{S+2*j+1}")
        e("s_nop 1")
        for m in pv(0, qi, P): e(m)
        e("s_nop 11")
    e(f"s_sub_u32 s{SA_CNT}, s{SA_CNT}, 1")
    e(f"s_cmp_lg_u32 s{SA_CNT}, 0")
    e("s_cbranch_scc1 L3_attn_slow_loop")
    e("s_nop 7")
    e("s_branch L3_attn_fin")

def gen(force_slow=False, only=None):
    e = Emit()
    kernel_head(e, NAME)
    Diag.kid = 2
    e("s_cmp_ge_u32 s2, 256")
    e("s_cbranch_scc1 L3_exit")
    e(f"s_load_dwordx2 s[4:5], s[0:1], {KA_WS}")
    e("s_and_b32 s6, s2, 7")
    e("s_lshr_b32 s7, s2, 3")
    e("v_lshrrev_b32 v1, 6, v0")
    e("v_and_b32 v0, 63, v0")
    e(f"v_readfirstlane_b32 s{S_W}, v1")
    e("s_mov_b32 s30, 0")
    code_prefetch(e, NAME, "L3_exit", 5, vaddr=16, vtmp=18, vdst=20, sp=60)
    e("s_waitcnt lgkmcnt(0)")
    make_srd(e, S_SRD, 4, LY.WS_END)
    stamp(e, 0, 'any')
    dbg_start(e)
    if Opt.fuse_l2: gen_pre.gen_prephase(e)
    e("s_cmp_lt_u32 s7, 16")
    if only == "mlp":
        e("s_cbranch_scc0 L3_exit")
    else:
        e("s_cbranch_scc0 L3_attn")
    if only == "attn":
        e("s_branch L3_exit")
    gen_mlp(e)
    gen_attn(e, force_slow)
    if Opt.fuse_l4: gen_l4.final(e)
    e.label("L3_exit")
    e("s_endpgm")
    return e.text()

if __name__ == "__main__":
    t = gen()
    errs = check(t, "l3")
    for x in errs: print(x)
    print("instrs", sum(1 for l in t.split("\n") if l.startswith("    ")), "hazard errs", len(errs))
    open("l3.s", "w").write(t)
```

```python
from gen_common import *
NAME = "l4_kernel"
LDS_BYTES = 4 * 18 * 1024
S_WS = 12; S_OUT = 16
def gen():
    e = Emit()
    kernel_head(e, NAME)
    Diag.kid = 3
    e("s_cmp_ge_u32 s2, 256")
    e("s_cbranch_scc1 L4_exit")
    e(f"s_load_dwordx2 s[4:5], s[0:1], {KA_WS}")
    e(f"s_load_dwordx2 s[6:7], s[0:1], {KA_OUT}")
    e("v_lshrrev_b32 v1, 6, v0")
    e("v_and_b32 v0, 63, v0")
    e("v_readfirstlane_b32 s8, v1")
    e("s_lshr_b32 s9, s2, 5"); e("s_lshl_b32 s9, s9, 3"); e("s_and_b32 s10, s2, 7"); e("s_add_u32 s9, s9, s10")
    e("s_lshr_b32 s10, s2, 3"); e("s_and_b32 s10, s10, 3")
    e("v_lshlrev_b32 v1, 4, v0")
    code_prefetch(e, NAME, "L4_exit", 1, vaddr=250, vtmp=252, vdst=254, sp=60)
    e("s_waitcnt lgkmcnt(0)")
    make_srd(e, S_WS, 4, LY.WS_END)
    make_srd(e, S_OUT, 6, 2048 * 576 * 2)
    stamp(e, 0, 'any')
    dbg_start(e)
    W = lambda T, k: 4 * (9 * T + k)
    OFR = 8
    ACC = 44
    PB = 124
    VG = 2
    e("s_mul_i32 s20, s9, 36"); e("s_mul_i32 s21, s8, 9"); e("s_add_u32 s20, s20, s21"); e("s_lshl_b32 s20, s20, 10")
    e(f"s_add_u32 s22, s20, {LY.OF}")
    e("s_mul_i32 s23, s10, 180"); e("s_add_u32 s23, s23, s21"); e("s_lshl_b32 s23, s23, 10"); e(f"s_add_u32 s23, s23, {LY.WOP}")
    for k in range(9):
        e(f"buffer_load_dwordx4 {vr(OFR+4*k,4)}, v1, s[{S_WS}:{S_WS+3}], s22 offen offset:{(k%4)*1024}")
        if k % 4 == 3: e("s_add_u32 s22, s22, 4096")
    sreg = [24, 25, 26, 27, 28]
    for T in range(5):
        e(f"s_add_u32 s{sreg[T]}, s23, {T*36*1024}")
    for k in range(9):
        for T in range(5):
            e(f"buffer_load_dwordx4 {ar(W(T,k),4)}, v1, s[{S_WS}:{S_WS+3}], s{sreg[T]} offen offset:{(k%4)*1024}")
        if k % 4 == 3:
            for T in range(5): e(f"s_add_u32 s{sreg[T]}, s{sreg[T]}, 4096")
    e("v_and_b32 v3, 31, v0"); e("v_lshlrev_b32 v4, 2, v3")
    e("s_lshl_b32 s29, s9, 7"); e(f"s_add_u32 s29, s29, {LY.G}")
    total = 54
    def mf(T, k):
        return f"v_mfma_f32_32x32x16_bf16 {vr(ACC+16*T,16)}, {ar(W(T,k),4)}, {vr(OFR+4*k,4)}, " + ("0" if k == 0 else vr(ACC + 16 * T, 16))
    e("s_mul_i32 s30, s9, 36"); e("s_mul_i32 s31, s10, 9"); e("s_add_u32 s30, s30, s31"); e("s_add_u32 s30, s30, s8"); e("s_lshl_b32 s30, s30, 10")
    def unit_loads(i):
        o = []
        o.append(f"s_add_u32 s32, s30, {LY.X1F + i*4096}")
        o.append(f"buffer_load_dwordx4 {vr(PB+36*i,4)}, v1, s[{S_WS}:{S_WS+3}], s32 offen")
        for s in range(8):
            o.append(f"s_add_u32 s32, s30, {LY.PART + s*64*36*1024 + i*4096}")
            o.append(f"buffer_load_dwordx4 {vr(PB+36*i+4*(s+1),4)}, v1, s[{S_WS}:{S_WS+3}], s32 offen")
        return o
    issued = total
    extra = 0
    stamp(e, 1, 'any')
    for k in range(9):
        need_done = 9 + 5 * (k + 1)
        e(f"s_waitcnt vmcnt({min(63, total + extra - need_done)})")
        if k == 0: stamp(e, 2, 'any')
        for T in range(5): e(mf(T, k))
        if k == 2:
            e(f"buffer_load_dword v{VG}, v4, s[{S_WS}:{S_WS+3}], s29 offen"); extra += 1
            e.extend(unit_loads(0)); extra += 9
        if k == 4:
            e.extend(unit_loads(1)); extra += 9
    stamp(e, 3, 'any')
    e("s_cmp_eq_u32 s8, 0")
    e("s_cbranch_scc0 L4_no3a")
    e.extend(unit_loads(2))
    e.label("L4_no3a")
    e("s_mul_i32 s33, s8, 18432")
    e("v_add_u32 v5, s33, v1")
    e("s_nop 7")
    for u in range(9):
        T, hfq = divmod(u, 2)
        b = ACC + 16 * T + 8 * hfq
        e(f"ds_write_b128 v5, {vr(b,4)} offset:{(2*u)*1024}")
        e(f"ds_write_b128 v5, {vr(b+4,4)} offset:{(2*u+1)*1024}")
    e("s_waitcnt lgkmcnt(0)")
    e("s_barrier")
    stamp(e, 4, 'any')
    e("s_lshl_b32 s33, s8, 11")
    e("v_add_u32 v5, s33, v1")
    e("v_add_u32 v9, 36864, v5")
    e("s_mov_b32 s34, 0x00003f80"); e("s_mov_b32 s35, 0x3f800000")
    e("v_lshrrev_b32 v6, 5, v0"); e("v_lshlrev_b32 v6, 4, v6")
    e("s_movk_i32 s36, 1152")
    e("v_mul_lo_u32 v7, v3, s36"); e("v_add_u32 v7, v7, v6")
    e("s_mul_i32 s37, s9, 36864"); e("s_mul_i32 s38, s10, 288"); e("s_add_u32 s37, s37, s38"); e("s_lshl_b32 s38, s8, 5"); e("s_add_u32 s37, s37, s38")
    def unit2(i, R, B, src, vm):
        e(f"s_waitcnt vmcnt({vm})")
        for j in range(4):
            e(f"v_lshlrev_b32 v{B+2*j}, 16, v{src+j}")
            e(f"v_and_b32 v{B+2*j+1}, 0xffff0000, v{src+j}")
        for s in range(8):
            for j in range(4):
                e(f"v_dot2c_f32_bf16 v{B+2*j}, s34, v{src+4*(s+1)+j}")
                e(f"v_dot2c_f32_bf16 v{B+2*j+1}, s35, v{src+4*(s+1)+j}")
        e("s_waitcnt lgkmcnt(0)")
        for j in range(8):
            e(f"v_add_f32 v{R+j}, v{R+j}, v{R+8+j}")
            e(f"v_add_f32 v{R+16+j}, v{R+16+j}, v{R+24+j}")
        for j in range(8): e(f"v_add_f32 v{R+j}, v{R+j}, v{R+16+j}")
        for j in range(8): e(f"v_sub_f32 v{R+j}, v{R+j}, v{B+j}")
        for j in range(8): e(f"v_fma_f32 v{R+j}, v{R+j}, v{VG}, v{B+j}")
        for j in range(4): e(f"v_cvt_pk_bf16_f32 v{88+j}, v{R+2*j}, v{R+2*j+1}")
        e(f"buffer_store_dwordx4 v[88:91], v7, s[{S_OUT}:{S_OUT+3}], s37 offen offset:{i*128}")
    def reads(i):
        for wv in range(4):
            ad = "v5" if wv < 2 else "v9"
            e(f"ds_read_b128 {vr(44+8*wv,4)}, {ad} offset:{(wv%2)*18432 + (8*i)*1024}")
            e(f"ds_read_b128 {vr(44+8*wv+4,4)}, {ad} offset:{(wv%2)*18432 + (8*i+1)*1024}")
    e("s_cmp_eq_u32 s8, 0")
    e("s_cbranch_scc0 L4_two")
    reads(0); unit2(0, 44, 80, PB, 18)
    reads(1); unit2(1, 44, 80, PB + 36, 10)
    reads(2); unit2(2, 44, 80, PB + 72, 2)
    fin(e)
    e.label("L4_two")
    reads(0); unit2(0, 44, 80, PB, 9)
    reads(1); unit2(1, 44, 80, PB + 36, 1)
    fin(e)
    e.label("L4_exit")
    e("s_endpgm")
    return e.text()
if __name__ == "__main__":
    t = gen()
    errs = check(t, "l4")
    for x in errs: print(x)
    print("instrs", sum(1 for l in t.split("\n") if l.startswith("    ")), "hazard errs", len(errs))


def final(e):
    import gen_pre as P
    R = f"s[{S_WS}:{S_WS+3}]"
    e.label("K2_final")
    stamp(e, 1, 'fin')
    e("s_mov_b64 exec, -1")
    e(f"s_load_dwordx2 s[6:7], s[0:1], {KA_OUT}")
    e(f"s_add_u32 s{P.S_DBG}, s4, {LY.CNT}"); e(f"s_addc_u32 s{P.S_DBG+1}, s5, 0")
    e("v_mbcnt_lo_u32_b32 v0, -1, 0"); e("v_mbcnt_hi_u32_b32 v0, -1, v0")
    e("s_lshr_b32 s9, s2, 5"); e("s_lshl_b32 s9, s9, 3"); e("s_and_b32 s10, s2, 7"); e("s_add_u32 s9, s9, s10")
    e("s_lshr_b32 s10, s2, 3"); e("s_and_b32 s10, s10, 3")
    e("v_lshlrev_b32 v1, 4, v0")
    W = lambda T, k: 4 * (9 * T + k)
    OFR = 8; ACC = 44; PB = 124; VG = 2
    e("s_waitcnt lgkmcnt(0)")
    make_srd(e, S_OUT, 6, 2048 * 576 * 2)
    e("s_mul_i32 s21, s8, 9")
    if Opt.early_wo:
        e("s_cmp_eq_u32 s66, 1"); e("s_cbranch_scc1 K2_f_havew")
    e(f"s_movk_i32 s48, {P.CNT_WO}")
    P.wait_counters(e, [(48, 12)])
    e("s_barrier")
    e("s_mul_i32 s23, s10, 180"); e("s_add_u32 s23, s23, s21"); e("s_lshl_b32 s23, s23, 10"); e(f"s_add_u32 s23, s23, {LY.WOP}")
    sreg = [24, 25, 26, 27, 28]
    for T in range(5): e(f"s_add_u32 s{sreg[T]}, s23, {T*36*1024}")
    for k in range(9):
        for T in range(5):
            e(f"buffer_load_dwordx4 {ar(W(T,k),4)}, v1, {R}, s{sreg[T]} offen offset:{(k%4)*1024} sc1")
        if k % 4 == 3:
            for T in range(5): e(f"s_add_u32 s{sreg[T]}, s{sreg[T]}, 4096")
    e.label("K2_f_havew")
    e("v_and_b32 v3, 31, v0"); e("v_lshlrev_b32 v4, 2, v3")
    e("s_lshl_b32 s29, s9, 7"); e(f"s_add_u32 s29, s29, {LY.G}")
    e(f"buffer_load_dword v{VG}, v4, {R}, s29 offen" + (" sc1" if Opt.single else ""))
    e("s_mul_i32 s30, s9, 36"); e("s_mul_i32 s31, s10, 9"); e("s_add_u32 s30, s30, s31"); e("s_add_u32 s30, s30, s8"); e("s_lshl_b32 s30, s30, 10")
    SEL = 240
    if Opt.fin_mfma:
        e("v_and_b32 v5, 31, v0"); e("v_lshrrev_b32 v6, 5, v0"); e("v_bfe_u32 v7, v5, 2, 1"); e("v_cmp_eq_u32 vcc, v6, v7")
        e("v_cmp_gt_u32 s[40:41], 16, v5"); e("v_and_b32 v6, 3, v5"); e("v_bfe_u32 v7, v5, 3, 1"); e("v_lshlrev_b32 v7, 2, v7"); e("v_add_u32 v6, v6, v7")
        e("s_and_b64 s[40:41], s[40:41], vcc")
        e("v_lshrrev_b32 v7, 1, v6"); e("v_and_b32 v6, 1, v6"); e("v_lshlrev_b32 v6, 4, v6"); e("v_mov_b32 v5, 0x3f80"); e("v_lshlrev_b32 v5, v6, v5")
        e("v_cndmask_b32 v5, 0, v5, s[40:41]")
        for d in range(4):
            e(f"v_cmp_eq_u32 vcc, {d}, v7"); e("s_nop 1"); e(f"v_cndmask_b32 v{SEL+d}, 0, v5, vcc")
    e("s_lshr_b32 s48, s9, 2"); e(f"s_mul_i32 s48, s48, {P.CSTEP}"); e(f"s_add_u32 s48, s48, {P.CNT_P}")
    e("s_lshr_b32 s49, s9, 4"); e(f"s_mul_i32 s49, s49, {P.CSTEP}"); e(f"s_add_u32 s49, s49, {P.CNT_O}")
    def unit_loads(i):
        o = [f"s_add_u32 s32, s30, {LY.X1F + i*4096}", f"buffer_load_dwordx4 {vr(PB+36*i,4)}, v1, {R}, s32 offen sc1"]
        for s in range(8):
            o.append(f"s_add_u32 s32, s30, {LY.PART + s*64*36*1024 + i*4096}")
            o.append(f"buffer_load_dwordx4 {vr(PB+36*i+4*(s+1),4)}, v1, {R}, s32 offen sc1")
        return o
    def all_unit_loads(tag):
        e.extend(unit_loads(0)); e.extend(unit_loads(1))
        e("s_cmp_eq_u32 s8, 0"); e(f"s_cbranch_scc0 K2_f_no3{tag}")
        e.extend(unit_loads(2))
        e.label(f"K2_f_no3{tag}")
    stamp(e, 6)
    stamp(e, 2, 'fin')
    split = Opt.fin_split
    if split:
        P.wait_counters(e, [(49, 32)], sleep=Opt.final_sleep)
    else:
        P.wait_counters(e, [(48, 8), (49, 32)], sleep=Opt.final_sleep)
    e("s_barrier")
    stamp(e, 3, 'fin')
    e("s_mul_i32 s20, s9, 36"); e("s_add_u32 s20, s20, s21"); e("s_lshl_b32 s20, s20, 10"); e(f"s_add_u32 s22, s20, {LY.OF}")
    for k in range(9):
        e(f"buffer_load_dwordx4 {vr(OFR+4*k,4)}, v1, {R}, s22 offen offset:{(k%4)*1024} sc1")
        if k % 4 == 3: e("s_add_u32 s22, s22, 4096")
    if not split: all_unit_loads("")
    behind = 0 if split else 18
    for k in range(9):
        e(f"s_waitcnt vmcnt({(8 - k) + behind})")
        for T in range(5):
            e(f"v_mfma_f32_32x32x16_bf16 {vr(ACC+16*T,16)}, {ar(W(T,k),4)}, {vr(OFR+4*k,4)}, " + ("0" if k == 0 else vr(ACC + 16 * T, 16)))
    stamp(e, 4, 'fin')
    e("s_mul_i32 s33, s8, 18432"); e("v_add_u32 v5, s33, v1")
    e("s_nop 9")
    for u in range(9):
        T, hfq = divmod(u, 2); b = ACC + 16 * T + 8 * hfq
        e(f"ds_write_b128 v5, {vr(b,4)} offset:{(2*u)*1024}")
        e(f"ds_write_b128 v5, {vr(b+4,4)} offset:{(2*u+1)*1024}")
    if split:
        P.wait_counters(e, [(48, 8)], sleep=0)
    e("s_waitcnt lgkmcnt(0)"); e("s_barrier")
    if split: all_unit_loads("s")
    stamp(e, 5, 'fin')
    e("s_lshl_b32 s33, s8, 11"); e("v_add_u32 v5, s33, v1"); e("v_add_u32 v9, 36864, v5")
    e("s_mov_b32 s36, 0x00003f80"); e("s_mov_b32 s37, 0x3f800000")
    e("v_lshrrev_b32 v6, 5, v0"); e("v_lshlrev_b32 v6, 4, v6"); e("s_movk_i32 s38, 1152"); e("v_mul_lo_u32 v7, v3, s38"); e("v_add_u32 v7, v7, v6")
    e("s_mul_i32 s39, s9, 36864"); e("s_mul_i32 s40, s10, 288"); e("s_add_u32 s39, s39, s40"); e("s_lshl_b32 s40, s8, 5"); e("s_add_u32 s39, s39, s40")
    def a_part(i):
        for wv in range(4):
            ad = "v5" if wv < 2 else "v9"
            e(f"ds_read_b128 {vr(44+8*wv,4)}, {ad} offset:{(wv%2)*18432 + (8*i)*1024}")
            e(f"ds_read_b128 {vr(44+8*wv+4,4)}, {ad} offset:{(wv%2)*18432 + (8*i+1)*1024}")
    def unit(i, vm):
        Rr, B, src = 44, 80, PB + 36 * i
        a_part(i)
        e(f"s_waitcnt vmcnt({vm})")
        if Opt.fin_mfma:
            for s in range(9):
                e(f"v_mfma_f32_32x32x16_bf16 {vr(B,16)}, {vr(SEL,4)}, {vr(src+4*s,4)}, " + ("0" if s == 0 else vr(B, 16)))
        else:
            for j in range(4):
                e(f"v_lshlrev_b32 v{B+2*j}, 16, v{src+j}"); e(f"v_and_b32 v{B+2*j+1}, 0xffff0000, v{src+j}")
            for s in range(8):
                for j in range(4):
                    e(f"v_dot2c_f32_bf16 v{B+2*j}, s36, v{src+4*(s+1)+j}"); e(f"v_dot2c_f32_bf16 v{B+2*j+1}, s37, v{src+4*(s+1)+j}")
        e("s_waitcnt lgkmcnt(0)")
        for j in range(8):
            e(f"v_add_f32 v{Rr+j}, v{Rr+j}, v{Rr+8+j}"); e(f"v_add_f32 v{Rr+16+j}, v{Rr+16+j}, v{Rr+24+j}")
        for j in range(8): e(f"v_add_f32 v{Rr+j}, v{Rr+j}, v{Rr+16+j}")
        for j in range(8): e(f"v_sub_f32 v{Rr+j}, v{Rr+j}, v{B+j}")
        for j in range(8): e(f"v_fma_f32 v{Rr+j}, v{Rr+j}, v{VG}, v{B+j}")
        for j in range(4): e(f"v_cvt_pk_bf16_f32 v{96+j}, v{Rr+2*j}, v{Rr+2*j+1}")
        e(f"buffer_store_dwordx4 v[96:99], v7, s[{S_OUT}:{S_OUT+3}], s39 offen offset:{i*128}")
    e("s_cmp_eq_u32 s8, 0"); e("s_cbranch_scc0 K2_f_two")
    unit(0, 18); unit(1, 10); unit(2, 2)
    fin(e)
    e.label("K2_f_two")
    unit(0, 9); unit(1, 1)
    fin(e)
```

```python
from gen_common import *
S_WS = 12; S_SRC = 16; S_XB = 20; S_RP = 36
S_DBG = 34
IMG2 = 73728
XCH = 147456
CSTEP = 128
CNT_X, CNT_W, CNT_WO, CNT_P, CNT_O = 0, 16 * CSTEP, 24 * CSTEP, 25 * CSTEP, 41 * CSTEP

def lane_tr_parts(e, vhf, vsub, vr_, vsig):
    e(f"v_lshrrev_b32 v{vhf}, 5, v0"); e(f"v_bfe_u32 v{vsub}, v0, 4, 1"); e(f"v_bfe_u32 v{vr_}, v0, 2, 2")
    e(f"v_and_b32 v{vsig}, 1, v0"); e(f"v_lshlrev_b32 v{vsig}, 1, v{vsig}"); e(f"v_bfe_u32 v15, v0, 1, 1"); e(f"v_or_b32 v{vsig}, v{vsig}, v15")

def publish(e, off_sgpr):
    e("s_waitcnt vmcnt(0)")
    e("s_barrier")
    lab = f"Lpub_{len(e.L)}"
    e("s_cmp_eq_u32 s8, 0"); e(f"s_cbranch_scc0 {lab}")
    e("s_mov_b64 exec, 1")
    e(f"v_mov_b32 v250, s{off_sgpr}"); e("v_mov_b32 v251, 1")
    e(f"global_atomic_add v250, v251, s[{S_DBG}:{S_DBG+1}] sc1")
    e("s_mov_b64 exec, -1")
    e.label(lab)

def wait_counters(e, waits, acquire=False, sleep=None):
    lab = f"Lwait_{len(e.L)}"
    e("s_cmp_eq_u32 s8, 0"); e(f"s_cbranch_scc0 {lab}_done")
    e("s_mov_b32 s50, 0x40000")
    e("s_mov_b64 exec, 1")
    for i, (off, n) in enumerate(waits): e(f"v_mov_b32 v{246+i}, s{off}")
    e.label(lab)
    for i, (off, n) in enumerate(waits): e(f"global_load_dword v{250+i}, v{246+i}, s[{S_DBG}:{S_DBG+1}] sc1")
    e("s_waitcnt vmcnt(0)")
    e("s_mov_b32 s51, 1")
    for i, (off, n) in enumerate(waits):
        e(f"v_readfirstlane_b32 s52, v{250+i}")
        e(f"s_cmp_ge_u32 s52, {n}"); e("s_cselect_b32 s51, s51, 0")
    e("s_cmp_eq_u32 s51, 1"); e(f"s_cbranch_scc1 {lab}_ok")
    slp = Opt.poll_sleep if sleep is None else sleep
    if slp: e(f"s_sleep {slp}")
    e("s_sub_u32 s50, s50, 1"); e("s_cmp_lg_u32 s50, 0"); e(f"s_cbranch_scc1 {lab}")
    e.label(f"{lab}_ok")
    e("s_mov_b64 exec, -1")
    if acquire: e("buffer_inv sc1")
    e.label(f"{lab}_done")

def gemm(e, NT, with_repack):
    tag = f"G{NT}"
    RB = 64 * NT
    KS = 16 * RB
    e(f"s_load_dwordx2 s[24:25], s[0:1], {KA_W2}")
    e(f"s_load_dwordx2 s[26:27], s[0:1], {KA_XA}")
    e("v_lshlrev_b32 v1, 4, v0")
    if NT == 2:
        e("v_lshrrev_b32 v5, 3, v0"); e("v_and_b32 v6, 7, v0"); e("v_bfe_u32 v7, v0, 4, 1"); e("v_lshlrev_b32 v7, 2, v7"); e("v_xor_b32 v6, v6, v7")
        e("v_mul_u32_u24 v5, 1152, v5"); e("v_lshlrev_b32 v6, 4, v6"); e("v_add_u32 v2, v5, v6"); e(f"v_add_u32 v3, {9216-1024}, v2")
        NP = 2
    else:
        for i in range(3):
            e(f"v_add_u32 v5, {64*i}, v0")
            e("v_mul_u32_u24 v6, 171, v5"); e("v_lshrrev_b32 v6, 11, v6")
            e("v_mul_u32_u24 v7, 12, v6"); e("v_sub_u32 v7, v5, v7")
            e("v_mul_u32_u24 v6, 1152, v6"); e("v_lshlrev_b32 v7, 4, v7"); e("v_add_u32 v6, v6, v7")
            e(f"v_subrev_u32 v{2+i}, {1024*i}, v6")
        NP = 3
    e("s_waitcnt lgkmcnt(0)")
    make_srd(e, S_SRC, 24, 576 * 576 * 2)
    make_srd(e, S_XB, 26, 2048 * 576 * 2)
    e("s_mul_i32 s28, s8, 18432"); e("s_add_u32 s28, s28, s10")
    e(f"s_mul_i32 s29, s8, {KS}")
    e("s_mul_i32 s31, s9, 36864"); e(f"s_add_u32 s40, s31, {LY.HS}")
    for st in range(3):
        for i in range(3):
            ch = 3 * st + i
            e(f"s_add_u32 s31, s28, {ch*4*18432}")
            e(f"s_add_u32 m0, s29, {4*ch*KS}")
            e(f"s_add_u32 s{46+i}, s40, {ch*4096}")
            for k in range(NP):
                e(f"buffer_load_dwordx4 v{2+k}, s[{S_SRC}:{S_SRC+3}], s31 offen" + (f" offset:{k*1024}" if k else "") + " lds")
        for i in range(3):
            ch = 3 * st + i
            for k in range(4):
                e(f"buffer_load_dwordx4 {ar(4*(4*ch+k),4)}, v1, s[{S_WS}:{S_WS+3}], s{46+i} offen offset:{k*1024}")
    nrp = 0
    if with_repack:
        repack_dma(e); nrp = 18
    stamp(e, 1, 'pre')
    lane_tr_parts(e, 5, 6, 7, 8)
    if NT == 2:
        e("v_lshlrev_b32 v9, 1, v6"); e("v_lshrrev_b32 v10, 1, v8"); e("v_add_u32 v9, v9, v10")
        e("v_lshrrev_b32 v10, 1, v7"); e("v_lshlrev_b32 v10, 2, v10"); e("v_xor_b32 v9, v9, v10"); e("v_lshlrev_b32 v9, 4, v9")
        e("v_and_b32 v10, 1, v8"); e("v_lshlrev_b32 v10, 3, v10"); e("v_add_u32 v9, v9, v10")
        e("v_lshlrev_b32 v10, 3, v5"); e("v_add_u32 v10, v10, v7"); e("v_lshlrev_b32 v10, 7, v10"); e("v_add_u32 v9, v9, v10")
        e("v_xor_b32 v10, 64, v9"); e("v_add_u32 v13, 36864, v9"); e("v_add_u32 v14, 36864, v10")
        def addr(ks, T, q): return f"v{[[9, 10], [13, 14]][ks//18][T]} offset:{(ks%18)*2048 + q*512}"
    else:
        e("v_lshlrev_b32 v9, 3, v5"); e("v_add_u32 v9, v9, v7"); e("v_mul_u32_u24 v9, 192, v9")
        e("v_lshlrev_b32 v10, 5, v6"); e("v_add_u32 v9, v9, v10"); e("v_lshlrev_b32 v10, 3, v8"); e("v_add_u32 v9, v9, v10")
        e(f"v_add_u32 v10, {18*3072}, v9")
        def addr(ks, T, q): return f"v{[9, 10][ks//18]} offset:{(ks%18)*3072 + q*768 + 64*T}"
    ACC = 16; WB = 64; XB = 112
    def reads(ks):
        b = WB + 4 * NT * (ks % 4)
        return [f"ds_read_b64_tr_b16 {vr(b+4*T+2*q,2)}, {addr(ks, T, q)}" for T in range(NT) for q in range(2)]
    e("v_and_b32 v11, 31, v0"); e("s_movk_i32 s32, 1152"); e("v_mul_lo_u32 v12, v11, s32"); e("v_lshlrev_b32 v4, 4, v5"); e("v_add_u32 v12, v12, v4")
    e("s_mul_i32 s41, s9, 36864"); e("s_add_u32 s41, s41, s10")
    per = 3 * NP + 12
    nx = 2 * NT
    for st in range(3):
        younger = (2 - st) * per + nrp + (nx if st else 0)
        e(f"s_waitcnt vmcnt({min(63, younger)})")
        e("s_barrier")
        if st == 0: stamp(e, 2, 'pre')
        if st == 0:
            for u in range(nx):
                e(f"buffer_load_dwordx4 {vr(XB+4*u,4)}, v12, s[{S_XB}:{S_XB+3}], s41 offen offset:{u*32}")
        k0 = 12 * st
        for k in range(3): e.extend(reads(k0 + k))
        for ks in range(k0, k0 + 12):
            left = k0 + 11 - ks
            e(f"s_waitcnt lgkmcnt({min(15, 2 * NT * min(2, left))})")
            b = WB + 4 * NT * (ks % 4)
            rd = reads(ks + 3) if ks + 3 < k0 + 12 else []
            for T in range(NT):
                e(f"v_mfma_f32_32x32x16_bf16 {vr(ACC+16*T,16)}, {vr(b+4*T,4)}, {ar(4*ks,4)}, " + ("0" if ks == 0 else vr(ACC + 16 * T, 16)))
                e.extend(rd[2 * T:2 * T + 2])
    e("s_mov_b32 s42, 0x00003f80"); e("s_mov_b32 s43, 0x3f800000"); e("s_mov_b32 s44, 0x3f803f80")
    e("s_mul_i32 s45, s9, 36"); e("s_add_u32 s45, s45, s11"); e("s_lshl_b32 s45, s45, 10"); e(f"s_add_u32 s45, s45, {LY.X1F}")
    e("v_mov_b32 v2, 0"); e("v_mov_b32 v3, 0")
    e("s_waitcnt vmcnt(0)")
    e("s_nop 7")
    for u in range(nx):
        T, hq = divmod(u, 2); b = ACC + 16 * T + 8 * hq; x = XB + 4 * u; P = 64 + 4 * u
        for j in range(4):
            e(f"v_dot2c_f32_bf16 v{b+2*j}, s42, v{x+j}")
            e(f"v_dot2c_f32_bf16 v{b+2*j+1}, s43, v{x+j}")
        e("s_nop 2")
        for j in range(4): e(f"v_cvt_pk_bf16_f32 v{P+j}, v{b+2*j}, v{b+2*j+1}")
        e(f"buffer_store_dwordx4 {vr(P,4)}, v1, s[{S_WS}:{S_WS+3}], s45 offen offset:{(u%4)*1024} sc1")
        if u == 3 and nx > 4: e("s_add_u32 s45, s45, 4096")
        for j in range(4):
            e(f"v_dot2c_f32_bf16 v2, s44, v{P+j}")
            e(f"v_dot2c_f32_bf16 v3, v{P+j}, v{P+j}")
    e("v_lshlrev_b32 v4, 14, v5"); e("v_lshlrev_b32 v6, 2, v11"); e("v_add_u32 v4, v4, v6")
    e("s_lshl_b32 s46, s33, 14"); e("s_lshl_b32 s47, s9, 7"); e("s_add_u32 s46, s46, s47"); e(f"s_add_u32 s46, s46, {LY.ST2}")
    e("s_add_u32 s47, s46, 8192")
    e(f"buffer_store_dword v2, v4, s[{S_WS}:{S_WS+3}], s46 offen sc1")
    e(f"buffer_store_dword v3, v4, s[{S_WS}:{S_WS+3}], s47 offen sc1")

def repack_dma(e):
    for i in range(18):
        e(f"s_add_u32 m0, s54, {IMG2 + i*1024}")
        e(f"s_add_u32 s55, s56, s57") if i == 0 else e("s_add_u32 s55, s55, s58")
        e(f"buffer_load_dwordx4 v16, s[{S_RP}:{S_RP+3}], s55 offen lds")

def repack_setup(e):
    e(f"s_load_dwordx2 s[60:61], s[0:1], {KA_W3}")
    e(f"s_load_dwordx2 s[62:63], s[0:1], {KA_WO}")
    e("s_cmp_lt_u32 s53, 72")
    e("s_cselect_b32 s59, 1, 0")
    e("s_movk_i32 s58, 1152"); e("s_cselect_b32 s58, 9216, s58")
    e("s_sub_u32 s56, s53, 72"); e("s_mul_i32 s55, s56, 86"); e("s_lshr_b32 s55, s55, 8")
    e("s_mul_i32 s57, s55, 3"); e("s_sub_u32 s57, s56, s57")
    e("s_mul_i32 s56, s55, 288"); e("s_lshl_b32 s54, s57, 7"); e("s_add_u32 s56, s56, s54")
    e("s_lshl_b32 s54, s53, 7"); e("s_cmp_lt_u32 s53, 72"); e("s_cselect_b32 s56, s54, s56")
    e("s_waitcnt lgkmcnt(0)")
    e("s_cmp_lt_u32 s53, 72")
    e(f"s_cselect_b32 s{S_RP}, s60, s62"); e(f"s_cselect_b32 s{S_RP+1}, s61, s63")
    e(f"s_mov_b32 s{S_RP+2}, {576*576*2}"); e(f"s_cselect_b32 s{S_RP+2}, {576*4608*2}, s{S_RP+2}")
    e("s_cmp_lt_u32 s53, 84"); e(f"s_cselect_b32 s{S_RP+2}, s{S_RP+2}, 0")
    e(f"s_and_b32 s{S_RP+1}, s{S_RP+1}, 0xffff"); e(f"s_mov_b32 s{S_RP+3}, 0x20000")
    e("v_lshrrev_b32 v17, 3, v0"); e("v_and_b32 v18, 7, v0"); e("v_bfe_u32 v19, v0, 4, 1"); e("v_mul_u32_u24 v19, s59, v19"); e("v_lshlrev_b32 v19, 2, v19"); e("v_xor_b32 v18, v18, v19")
    e("v_mul_lo_u32 v17, v17, s58"); e("v_lshlrev_b32 v18, 4, v18"); e("v_add_u32 v16, v17, v18")
    e("s_mul_i32 s57, s8, 144"); e("s_mul_i32 s57, s57, s58")
    e("s_mul_i32 s54, s8, 18432")
    e("s_lshl_b32 s58, s58, 3")

def repack_w3(e):
    lane_tr_parts(e, 5, 6, 7, 8)
    e("s_and_b32 s40, s8, 1"); e("s_lshr_b32 s41, s8, 1")
    e("v_lshlrev_b32 v9, 1, v6"); e("v_lshrrev_b32 v10, 1, v8"); e("v_add_u32 v9, v9, v10")
    e("s_lshl_b32 s42, s40, 2"); e("v_add_u32 v9, s42, v9")
    e("v_lshrrev_b32 v10, 1, v7"); e("v_lshlrev_b32 v10, 2, v10"); e("v_xor_b32 v9, v9, v10")
    e("v_lshlrev_b32 v9, 4, v9"); e("v_and_b32 v10, 1, v8"); e("v_lshlrev_b32 v10, 3, v10"); e("v_add_u32 v9, v9, v10")
    e("v_lshlrev_b32 v10, 3, v5"); e("v_add_u32 v10, v10, v7"); e("v_lshlrev_b32 v10, 7, v10"); e("v_add_u32 v9, v9, v10")
    e("s_mul_i32 s42, s41, 36864"); e(f"s_add_u32 s42, s42, {IMG2}"); e("v_add_u32 v9, s42, v9")
    F = 16
    for k in range(18):
        for q in range(2):
            e(f"ds_read_b64_tr_b16 {vr(F+4*k+2*q,2)}, v9 offset:{k*2048+q*512}")
    if Opt.rp_fast:
        for a in range(4): e(f"v_mov_b32 v{104+a}, 0x3f803f80")
        CS = 112
        e("s_nop 0")
        for k in range(18):
            if k % 3 == 0: e(f"s_waitcnt lgkmcnt({min(15, 36 - 2*(k+3))})")
            e(f"v_mfma_f32_32x32x16_bf16 {vr(CS,16)}, v[104:107], {vr(F+4*k,4)}, " + ("0" if k == 0 else vr(CS, 16)))
        e("v_lshlrev_b32 v12, 2, v0"); e("s_lshl_b32 s42, s8, 8"); e(f"s_add_u32 s42, s42, {XCH}"); e("v_add_u32 v13, s42, v12")
        e("s_nop 8")
        e(f"v_mov_b32 v10, v{CS}")
        e("ds_write_b32 v13, v10")
    else:
        e("s_mov_b32 s43, 0x3f803f80")
        for a in range(4): e(f"v_mov_b32 v{10+a}, 0")
        for k in range(18):
            if k % 3 == 0: e(f"s_waitcnt lgkmcnt({min(15, 36 - 2*(k+3))})")
            for j in range(4): e(f"v_dot2c_f32_bf16 v{10+j}, s43, v{F+4*k+j}")
        e("s_nop 2")
        e("v_add_f32 v10, v10, v11"); e("v_add_f32 v12, v12, v13"); e("v_add_f32 v10, v10, v12")
        e("v_mov_b32 v11, v10"); e("v_lshlrev_b32 v12, 2, v0"); e("s_lshl_b32 s42, s8, 8"); e("v_permlane32_swap_b32 v10, v11"); e("v_add_f32 v10, v10, v11")
        e(f"s_add_u32 s42, s42, {XCH}"); e("v_add_u32 v13, s42, v12")
        e("ds_write_b32 v13, v10")
    e("s_mov_b32 s44, 0x00003f80"); e("s_mov_b32 s45, 0x3f800000")
    e("s_xor_b32 s42, s8, 2"); e("s_lshl_b32 s42, s42, 8"); e(f"s_add_u32 s42, s42, {XCH}"); e("v_add_u32 v13, s42, v12")
    e("s_waitcnt lgkmcnt(0)"); e("s_barrier")
    e("ds_read_b32 v11, v13"); e("s_waitcnt lgkmcnt(0)")
    e("v_add_f32 v10, v10, v11"); e(f"v_mul_f32 v10, {hexf(-1/576)}, v10")
    e("s_lshl_b32 s46, s53, 1"); e("s_add_u32 s46, s46, s40")
    e(f"s_mul_i32 s47, s46, 36864"); e(f"s_add_u32 s47, s47, {LY.W3P}")
    e("s_mul_i32 s42, s41, 18432"); e("s_add_u32 s47, s47, s42")
    TS = [88, 96]
    def fink(k):
        t = TS[k % 2]
        for j in range(4): e(f"v_cvt_pk_bf16_f32 v{F+4*k+j}, v{t+2*j}, v{t+2*j+1}")
        e(f"buffer_store_dwordx4 {vr(F+4*k,4)}, v1, s[{S_WS}:{S_WS+3}], s47 offen offset:{(k%4)*1024} sc1")
        if k % 4 == 3: e("s_add_u32 s47, s47, 4096")
    if Opt.rp_fast:
        e("v_mov_b32 v11, v10")
        for k in range(18):
            t = TS[k % 2]
            for j in range(4):
                e(f"v_lshlrev_b32 v{t+2*j}, 16, v{F+4*k+j}"); e(f"v_and_b32 v{t+2*j+1}, 0xffff0000, v{F+4*k+j}")
            for j in range(4): e(f"v_pk_add_f32 {vr(t+2*j,2)}, {vr(t+2*j,2)}, v[10:11]")
            fink(k)
    else:
        for k in range(18):
            t = TS[k % 2]
            for j in range(4):
                e(f"v_dot2_f32_bf16 v{t+2*j}, v{F+4*k+j}, s44, v10")
                e(f"v_dot2_f32_bf16 v{t+2*j+1}, v{F+4*k+j}, s45, v10")
            if k > 0: fink(k - 1)
        e("s_nop 2")
        fink(17)

def repack_wo(e, skip_label):
    e("s_sub_u32 s46, s53, 72"); e("s_mul_i32 s40, s46, 86"); e("s_lshr_b32 s40, s40, 8")
    e("s_mul_i32 s41, s40, 3"); e("s_sub_u32 s41, s46, s41")
    lane_tr_parts(e, 5, 6, 7, 8)
    e("s_and_b32 s42, s8, 1"); e("s_lshr_b32 s43, s8, 1")
    e("v_lshlrev_b32 v9, 5, v6"); e("v_lshlrev_b32 v10, 3, v8"); e("v_add_u32 v9, v9, v10"); e("s_lshl_b32 s44, s42, 6"); e(f"s_add_u32 s44, s44, {IMG2}"); e("v_add_u32 v9, s44, v9")
    e("v_lshlrev_b32 v10, 2, v5"); e("v_add_u32 v10, v10, v7"); e("v_lshlrev_b32 v10, 7, v10"); e("v_add_u32 v10, v10, v9")
    e(f"s_mul_i32 s44, s43, {324*128}"); e("v_add_u32 v10, s44, v10")
    e("v_lshrrev_b32 v11, 1, v7"); e("v_lshlrev_b32 v12, 2, v5"); e("v_add_u32 v12, v12, v11"); e("v_mul_u32_u24 v12, 18, v12")
    e("v_xor_b32 v11, 1, v11"); e("v_lshlrev_b32 v11, 4, v11"); e("v_add_u32 v12, v12, v11"); e("v_and_b32 v11, 1, v7"); e("v_add_u32 v12, v12, v11")
    e("v_lshlrev_b32 v12, 7, v12"); e("v_add_u32 v12, v12, v9")
    F = 16
    for k in range(14):
        for q in range(2):
            e(f"ds_read_b64_tr_b16 {vr(F+4*k+2*q,2)}, v10 offset:{(18*k + 8*q + 2*(k&1))*128}")
    e("s_cmp_eq_u32 s43, 0"); e("s_cbranch_scc0 K2_wo_x")
    for k in range(14, 18):
        for q in range(2):
            e(f"ds_read_b64_tr_b16 {vr(F+4*k+2*q,2)}, v10 offset:{(18*k + 8*q + 2*(k&1))*128}")
    e("s_branch K2_wo_y")
    e.label("K2_wo_x")
    for k in range(14, 18):
        for q in range(2):
            e(f"ds_read_b64_tr_b16 {vr(F+4*k+2*q,2)}, v12 offset:{18*(8*(k-14) + 2*q)*128}")
    e.label("K2_wo_y")
    e("s_lshl_b32 s44, s41, 1"); e("s_add_u32 s44, s44, s42")
    e("s_cmp_eq_u32 s44, 5"); e(f"s_cbranch_scc1 {skip_label}")
    e("s_mul_i32 s45, s40, 5"); e("s_add_u32 s45, s45, s44"); e("s_mul_i32 s45, s45, 36"); e("s_mul_i32 s46, s43, 18"); e("s_add_u32 s45, s45, s46")
    e("s_lshl_b32 s47, s45, 10"); e(f"s_add_u32 s47, s47, {LY.WOP}")
    e("s_waitcnt lgkmcnt(0)")
    for k in range(18):
        e(f"buffer_store_dwordx4 {vr(F+4*k,4)}, v1, s[{S_WS}:{S_WS+3}], s47 offen offset:{(k%4)*1024}")
        if k % 4 == 3: e("s_add_u32 s47, s47, 4096")

def gen_prephase(e):
    e(f"s_load_dwordx2 s[{S_DBG}:{S_DBG+1}], s[0:1], {KA_DBG}") if not Opt.cnt_ws else None
    if Opt.cnt_ws:
        e(f"s_add_u32 s{S_DBG}, s4, {LY.CNT}"); e(f"s_addc_u32 s{S_DBG+1}, s5, 0")
    e("s_cmp_lt_u32 s7, 16"); e("s_cbranch_scc0 K2_pre_att")
    if Opt.gemm_local:
        e("s_lshr_b32 s64, s7, 3"); e("s_lshl_b32 s65, s6, 1"); e("s_add_u32 s64, s64, s65"); e("s_and_b32 s65, s7, 7")
    else:
        e("s_mov_b32 s64, s7"); e("s_mov_b32 s65, s6")
    e.label("K2_pre_gemm")
    e("s_lshl_b32 s9, s64, 2"); e("s_add_u32 s9, s9, s8")
    e("s_lshl_b32 s33, s65, 1")
    e("s_lshl_b32 s10, s65, 7"); e("s_lshl_b32 s11, s65, 2")
    gemm(e, 2, False)
    stamp(e, 3, 'pre')
    e(f"s_mul_i32 s48, s64, {CSTEP}")
    publish(e, 48)
    e("s_branch K2_pre_end")
    e.label("K2_pre_att")
    e("s_sub_u32 s53, s7, 16"); e("s_lshl_b32 s53, s53, 3"); e("s_add_u32 s53, s53, s6")
    e("s_cmp_lt_u32 s53, 16"); e("s_cbranch_scc0 K2_pre_rp")
    if Opt.gemm_local:
        e("s_lshr_b32 s64, s53, 3"); e("s_lshl_b32 s65, s6, 1"); e("s_add_u32 s64, s64, s65"); e("s_mov_b32 s65, 8")
    else:
        e("s_mov_b32 s64, s53"); e("s_mov_b32 s65, 8")
    e("s_branch K2_pre_gemm")
    e.label("K2_pre_rp")
    e("s_cmp_lt_u32 s53, 100"); e("s_cbranch_scc0 K2_pre_end")
    e("s_sub_u32 s53, s53, 16")
    e("v_lshlrev_b32 v1, 4, v0")
    repack_setup(e)
    repack_dma(e)
    e("s_waitcnt vmcnt(0)"); e("s_barrier")
    stamp(e, 4, 'pre')
    e("s_cmp_lt_u32 s53, 72"); e("s_cbranch_scc1 K2_rw3")
    repack_wo(e, "K2_pre_lds")
    e("s_branch K2_pre_lds")
    e.label("K2_rw3")
    repack_w3(e)
    stamp(e, 5, 'pre')
    e("s_mul_i32 s48, s53, 57"); e("s_lshr_b32 s48, s48, 9"); e(f"s_mul_i32 s48, s48, {CSTEP}"); e(f"s_add_u32 s48, s48, {CNT_W}")
    publish(e, 48)
    e("s_branch K2_pre_end")
    e.label("K2_pre_lds")
    if Opt.fuse_l4:
        e(f"s_movk_i32 s48, {CNT_WO}")
        publish(e, 48)
    else:
        e("s_barrier")
    e.label("K2_pre_end")
    stamp(e, 6, 'pre')

def gen_mlp_wait(e):
    e(f"s_mul_i32 s48, s7, {CSTEP}"); e(f"s_mul_i32 s49, s6, {CSTEP}"); e(f"s_add_u32 s49, s49, {CNT_W}")
    w = [(48, 9), (49, 9)]
    if Opt.fuse_l4 and Opt.early_wo:
        e(f"s_movk_i32 s47, {CNT_WO}"); w.append((47, 12))
    wait_counters(e, w, acquire=Opt.acquire)
```

```python
from asmlib import *
import layouts as LY
import math

KA_XA, KA_WQKV, KA_WO, KA_XB, KA_W1, KA_W2, KA_W3, KA_W4, KA_GW, KA_OUT, KA_DBG, KA_WS = [8*i for i in range(12)]
WS_SIZE = 268435456

def kernel_head(e, name):
    e(f".globl {name}")
    e(".p2align 8")
    e(f".type {name},@function")
    e.label(name)

def kernel_desc(name, vgpr, accum, sgpr=102):
    return f""".amdhsa_kernel {name}
  .amdhsa_next_free_vgpr {vgpr}
  .amdhsa_next_free_sgpr {sgpr}
  .amdhsa_accum_offset {accum}
  .amdhsa_group_segment_fixed_size 0
  .amdhsa_kernarg_size 96
  .amdhsa_user_sgpr_count 2
  .amdhsa_user_sgpr_kernarg_segment_ptr 1
  .amdhsa_system_sgpr_workgroup_id_x 1
  .amdhsa_float_denorm_mode_32 3
.end_amdhsa_kernel
"""

def make_srd(e, dst, ptr, size):
    if dst != ptr: e(f"s_mov_b32 s{dst}, s{ptr}")
    e(f"s_and_b32 s{dst+1}, s{ptr+1}, 0xffff")
    e(f"s_mov_b32 s{dst+2}, {size}")
    e(f"s_mov_b32 s{dst+3}, 0x20000")

GELU_C0 = -2.0 * math.sqrt(2.0 / math.pi) * math.log2(math.e)
GELU_C1 = GELU_C0 * 0.044715

class Diag:
    on = False
    kid = 0
    pre = None
    dbg = False
STAMP_BASE = 0x8000000
def stamp(e, i, grp='main'):
    if Diag.on and (grp == 'any' or grp == (Diag.pre or 'main')):
        e(f"s_memrealtime s[{70+2*i}:{71+2*i}]")
        if i == 2: e("s_memtime s[92:93]")
        if i == 5: e("s_memtime s[94:95]")
        e("s_waitcnt lgkmcnt(0)")
def dbg_start(e):
    if Diag.dbg:
        e("s_memrealtime s[96:97]")
        e(f"s_load_dwordx2 s[98:99], s[0:1], {KA_DBG}")
        e("s_waitcnt lgkmcnt(0)")
def fin(e, wave_sgpr=8):
    if Diag.dbg:
        e("s_waitcnt vmcnt(0)")
        e("s_memrealtime s[100:101]")
        e("s_waitcnt lgkmcnt(0)")
        e(f"s_cmp_eq_u32 s{wave_sgpr}, 0"); e(f"s_cbranch_scc0 Ldbg_skip_{len(e.L)}")
        Diag.lab = f"Ldbg_skip_{len(e.L)-1}"
        e("s_mov_b64 exec, 1")
        fusedl = Opt.fuse_l2
        lidx = Diag.kid - (1 if (fusedl and Diag.kid >= 2) else 0) - (1 if (Opt.fuse_l4 and Diag.kid >= 3) else 0)
        last = 512 * (3 - (1 if fusedl else 0) - (1 if Opt.fuse_l4 else 0))
        e(f"s_sub_u32 s98, s98, {512 * lidx}"); e("s_subb_u32 s99, s99, 0")
        e("s_not_b32 s96, s96")
        e("v_mov_b32 v2, s96"); e("v_mov_b32 v3, s100"); e("v_mov_b32 v4, 0")
        e(f"global_atomic_umax v4, v2, s[98:99] offset:{16 * Diag.kid}")
        e(f"global_atomic_umax v4, v3, s[98:99] offset:{16 * Diag.kid + 4}")
        e(f"global_atomic_umax v4, v2, s[98:99] offset:{last + 16 * Diag.kid}")
        e(f"global_atomic_umax v4, v3, s[98:99] offset:{last + 16 * Diag.kid + 4}")
        e.label(Diag.lab)
    if Diag.on:
        stamp(e, 7, 'any')
        e("s_waitcnt vmcnt(0)")
        e("s_memrealtime s[86:87]")
        e("s_waitcnt lgkmcnt(0)")
        e("s_mov_b64 exec, -1")
        e(f"s_lshl_b32 s88, s2, 3"); e(f"s_add_u32 s88, s88, s{wave_sgpr}"); e("s_lshl_b32 s88, s88, 6")
        e(f"s_add_u32 s88, s88, {STAMP_BASE + Diag.kid * 0x20000}")
        for i in range(8): e(f"v_mov_b32 v{4+i}, s{70+2*i}")
        e("v_mov_b32 v12, s86")
        e("s_sub_u32 s94, s94, s92")
        e("v_mov_b32 v14, s94")
        e("v_mov_b32 v13, s88")
        e("global_store_dwordx4 v13, v[4:7], s[4:5] offset:0")
        e("global_store_dwordx4 v13, v[8:11], s[4:5] offset:16")
        e("global_store_dword v13, v12, s[4:5] offset:32")
        e("global_store_dword v13, v14, s[4:5] offset:36")
    e("s_endpgm")

class Opt:
    code_pf = True
    code_pf_next = True
    l1_8wave = True
    l1_touch = False
    late_touch = True
    late_sel = 'w2'
    touch_in_loop = False
    touch_stages = (2, 5)
    rotate = False
    rotate2 = True
    repack_l1 = False
    fuse_l2 = True
    fuse_l4 = True
    final_sleep = 4
    early_wo = True
    fin_mfma = True
    fin_split = True
    cnt_ws = True
    gemm_local = True
    icache_test = None
    rp_fast = True
    w4_touch = False
    h_gram = False
    mlp_rbx = 4
    acquire = False
    poll_sleep = 0
    gelu_split = 2
    l2_only = None
    touch64 = False
def code_prefetch(e, start_label, end_label, nblk, vaddr, vtmp, vdst, sp, first=0):
    if not Opt.code_pf: return
    lab = f"{start_label}_pc{len(e.L)}"
    e(f"s_getpc_b64 s[{sp}:{sp+1}]")
    e.label(lab)
    e(f"s_sub_u32 s{sp}, s{sp}, {lab}-{start_label}")
    e(f"s_subb_u32 s{sp+1}, s{sp+1}, 0")
    e(f"v_lshlrev_b32 v{vaddr}, 7, v0")
    if first: e(f"v_add_u32 v{vaddr}, {first * 0x2000}, v{vaddr}")
    for i in range(nblk):
        e(f"v_min_u32 v{vtmp}, {end_label}-{start_label}-4, v{vaddr}")
        e(f"v_mov_b32 v{vtmp+1}, s{sp+1}")
        e(f"v_add_co_u32 v{vtmp}, vcc, s{sp}, v{vtmp}")
        e("s_nop 1")
        e(f"v_addc_co_u32 v{vtmp+1}, vcc, 0, v{vtmp+1}, vcc")
        e(f"global_load_dword v{vdst}, v[{vtmp}:{vtmp+1}], off")
        if i + 1 < nblk: e(f"v_add_u32 v{vaddr}, 0x2000, v{vaddr}")

STORE_MOD = "sc1"
```

```python
from gen_common import *
import gen_repack
NAME = "l1_kernel"
BLOCK = 512
SLOT = 36864
GW_OFF = 4 * SLOT
XCH_OFF = GW_OFF + 2048
LDS_BYTES = XCH_OFF + 3584 + 8*384
S_WS = 12; S_X = 16; S_W = 20; S_GW = 24
V_L16 = 1
V_XO = 2
V_WO = 6
V_XA = 216
V_WA = 11
V_GA = 14
V_ST = 15
V_CS = 212
ACC = 32
EX0 = 80
EX1 = 96
ECS = 112
XF = 128
WF = 144
GF = 192
ONE = 208
NVGPR = 220
QSCALE = math.log2(math.e) / math.sqrt(18.0)
TILES = {0: [0, 1], 1: [2, 3, 4]}
NWP = {0: 5, 1: 0}
S_WV, S_RB, S_CT, S_CQ = 8, 9, 10, 11
S_RS, S_XO, S_WO, S_XM, S_ST, S_DL, S_WSTEP, S_SLX, S_WM, S_T2, S_SLW, S_KX = 28, 29, 30, 31, 32, 33, 34, 35, 36, 37, 38, 39
S_KW, S_KC, S_GD, S_TT = 64, 65, 66, 56
S_WBACK, S_C128 = 60, 61
HEADS = [(0, 7), (1, 2), (3, 4), (5, 6)]

def dma_x(fg):
    if fg: return [[], [], [], []]
    o = [[f"s_add_u32 m0, s{S_SLX}, s{S_XM}", f"s_add_u32 s{S_KX}, s{S_KX}, 1", f"buffer_load_dwordx4 v{V_XO}, s[{S_X}:{S_X+3}], s{S_XO} offen lds"]]
    for i in range(1, 4):
        o.append([f"buffer_load_dwordx4 v{V_XO+i}, s[{S_X}:{S_X+3}], s{S_XO} offen offset:{i*1024} lds"])
    o[-1] += [f"s_cmp_eq_u32 s{S_KX}, 9", f"s_cselect_b32 s{S_KX}, 0, s{S_KX}", f"s_cselect_b32 s69, {(-1024) & 0xffffffff}, s{S_C128}", f"s_add_u32 s{S_XO}, s{S_XO}, s69",
              f"s_add_u32 s{S_SLX}, s{S_SLX}, {SLOT}", f"s_cmp_eq_u32 s{S_SLX}, {4*SLOT}", f"s_cselect_b32 s{S_SLX}, 0, s{S_SLX}"]
    return o
def dma_w(fg):
    if fg: return [[], [], [], [], []]
    o = [[f"s_add_u32 m0, s{S_SLW}, s{S_WM}", f"s_add_u32 s{S_KW}, s{S_KW}, 1", f"buffer_load_dwordx4 v{V_WO}, s[{S_W}:{S_W+3}], s{S_WO} offen lds"]]
    for i in range(1, 4):
        o.append([f"buffer_load_dwordx4 v{V_WO+i}, s[{S_W}:{S_W+3}], s{S_WO} offen offset:{i*1024} lds"])
    o.append(["s_add_u32 m0, m0, 4096", f"s_cmp_eq_u32 s{S_KW}, 9", f"buffer_load_dwordx4 v{V_WO+4}, s[{S_W}:{S_W+3}], s{S_WO} offen lds",
              f"s_cselect_b32 s{S_KW}, 0, s{S_KW}", f"s_cselect_b32 s69, s{S_WBACK}, s{S_WSTEP}", f"s_add_u32 s{S_WO}, s{S_WO}, s69",
              f"s_add_u32 s{S_SLW}, s{S_SLW}, {SLOT}", f"s_cmp_eq_u32 s{S_SLW}, {4*SLOT}", f"s_cselect_b32 s{S_SLW}, 0, s{S_SLW}"])
    return o

def reads(s, variant, fg):
    o = [f"ds_read_b128 {vr(XF+4*s,4)}, v{V_XA+s}"]
    if variant == "q0" and fg == 0: o.append(f"ds_read_b128 {vr(GF+4*s,4)}, v{V_GA} offset:{32*s}")
    for i, T in enumerate(TILES[fg]):
        for q in range(2):
            o.append(f"ds_read_b64_tr_b16 {vr(WF+12*s+4*i+2*q,2)}, v{V_WA+i} offset:{(16*s+4*q)*320}")
    return o

def advance_addrs(variant, fg):
    o = [f"v_add_u32 v{r}, s{S_DL}, v{r}" for r in list(range(V_XA, V_XA + 4)) + list(range(V_WA, V_WA + len(TILES[fg])))]
    if variant == "q0" and fg == 0:
        o += [f"s_add_u32 s{S_KC}, s{S_KC}, 1", f"s_cmp_eq_u32 s{S_KC}, 9", f"s_cselect_b32 s{S_KC}, 0, s{S_KC}",
              f"s_cselect_b32 s{S_GD}, {(-1024) & 0xffffffff}, s{S_C128}", f"v_add_u32 v{V_GA}, s{S_GD}, v{V_GA}"]
    return o

def mfmas(s, variant, fg):
    xf = vr(XF + 4 * s, 4); one = vr(ONE, 4)
    m = []
    for i, T in enumerate(TILES[fg]):
        wf = vr(WF + 12 * s + 4 * i, 4); a = vr(ACC + 16 * i, 16)
        m.append(f"v_mfma_f32_32x32x16_bf16 {a}, {xf}, {wf}, {a}" if variant == "v" else f"v_mfma_f32_32x32x16_bf16 {a}, {wf}, {xf}, {a}")
    if variant == "q0" and fg == 0:
        m.append(f"v_mfma_f32_32x32x16_bf16 {vr(EX0,16)}, {vr(GF+4*s,4)}, {xf}, {vr(EX0,16)}")
    if variant == "h" and fg == 0:
        m.append(f"v_mfma_f32_32x32x16_bf16 {vr(EX0,16)}, {one}, {xf}, {vr(EX0,16)}")
        if Opt.h_gram: m.append(f"v_mfma_f32_32x32x16_bf16 {vr(EX1,16)}, {xf}, {xf}, {vr(EX1,16)}")
    return m

def main_loop(e, variant, fg):
    lab = f"L1_loop_{variant}{fg}"
    nrd = len(reads(0, variant, fg))
    nw = NWP[fg]
    e(f"s_mov_b32 s{S_ST}, 0")
    if fg == 0: e("s_waitcnt vmcnt(13)")
    e("s_barrier")
    stamp(e, 2, 'any')
    e.extend(reads(0, variant, fg)); e.extend(reads(1, variant, fg))
    e(".p2align 6")
    e.label(lab)
    dx = dma_x(fg); dw = dma_w(fg)
    place = {(0, 0): dw[0], (0, 1): dw[1] + dw[2], (1, 0): dw[3], (1, 1): dw[4], (2, 0): dx[0], (2, 1): dx[1], (3, 0): dx[2], (3, 1): dx[3]}
    touch = Opt.late_touch and Opt.touch_in_loop and fg == 1 and variant != "h"
    for s in range(4):
        pre = []
        if s == 2:
            if fg == 0:
                pre = ["s_waitcnt vmcnt(9)", "s_barrier",
                       f"s_cmp_lt_u32 s{S_ST}, 6", f"s_cselect_b32 s{S_XO}, s{S_XO}, 0x40000000", f"s_cselect_b32 s{S_WO}, s{S_WO}, 0x40000000"]
            else:
                pre = ["s_barrier"]
                if touch:
                    for k, stg in enumerate(Opt.touch_stages[:len(late_issue())]):
                        pre += [f"s_cmp_eq_u32 s{S_ST}, {stg}", f"s_cbranch_scc0 {lab}_t{k}", late_issue()[k], f"{lab}_t{k}:"]
        rd = reads((s + 2) % 4, variant, fg)
        e(f"s_waitcnt lgkmcnt({nrd})")
        mf = mfmas(s, variant, fg)
        n = len(rd); nm = len(mf)
        per = (n + nm - 1) // nm
        extra = []
        if variant == "h" and fg == 0 and not Opt.h_gram:
            for j in range(4):
                extra += [f"v_lshlrev_b32 v{20+(j%2)}, 16, v{XF+4*s+j}", f"v_and_b32 v{26+(j%2)}, 0xffff0000, v{XF+4*s+j}",
                          f"v_fmac_f32 v{V_ST+2}, v{20+(j%2)}, v{20+(j%2)}", f"v_fmac_f32 v{V_ST+3}, v{26+(j%2)}, v{26+(j%2)}"]
        for T in range(nm):
            e(mf[T])
            if T == 0: e.extend(pre)
            e.extend(rd[T * per:(T + 1) * per])
            e.extend(extra[T * len(extra) // nm:(T + 1) * len(extra) // nm])
            e.extend(place.get((s, T), []))
        if variant == "h":
            e(f"s_cmp_eq_u32 s{S_TT}, {s}")
            e(f"s_cbranch_scc0 {lab}_cs{s}")
            for j in range(4):
                for i in range(len(TILES[fg])):
                    e(f"v_lshlrev_b32 v{22+i}, 16, v{WF+12*s+4*i+j}")
                for i in range(len(TILES[fg])):
                    e(f"v_add_f32 v{V_CS+i}, v{V_CS+i}, v{22+i}")
                for i in range(len(TILES[fg])):
                    e(f"v_and_b32 v{22+i}, 0xffff0000, v{WF+12*s+4*i+j}")
                for i in range(len(TILES[fg])):
                    e(f"v_add_f32 v{V_CS+i}, v{V_CS+i}, v{22+i}")
            e.label(f"{lab}_cs{s}")
        if s == 1:
            e(f"s_add_u32 s{S_T2}, s{S_ST}, 1")
            e(f"s_and_b32 s{S_DL}, s{S_T2}, 3")
            e(f"s_cmp_eq_u32 s{S_DL}, 0")
            e(f"s_cselect_b32 s{S_DL}, s68, s67")
            e.extend(advance_addrs(variant, fg))
    e(f"s_add_u32 s{S_ST}, s{S_ST}, 1")
    e(f"s_cmp_lt_u32 s{S_ST}, 9")
    e(f"s_cbranch_scc1 {lab}")
    stamp(e, 5, 'any')
    e("s_waitcnt lgkmcnt(0)")
    e("s_nop 7")

def setup_x(e, fg):
    for i in range(4):
        e("v_lshrrev_b32 v21, 3, v0"); e(f"v_add_u32 v21, {8*i}, v21")
        e("v_lshrrev_b32 v22, 1, v21"); e("v_and_b32 v22, 7, v22"); e("v_and_b32 v23, 7, v0"); e("v_xor_b32 v22, v22, v23")
        e("v_mul_u32_u24 v21, 1152, v21"); e("v_lshlrev_b32 v22, 4, v22"); e("v_add_u32 v21, v21, v22")
        if i: e(f"v_subrev_u32 v{V_XO+i}, {1024*i}, v21")
        else: e(f"v_mov_b32 v{V_XO}, v21")
    e(f"s_lshl_b32 s{S_XM}, s{S_TT}, 12")
def setup_w(e, fg):
    e(f"s_mul_i32 s{S_WM}, s{S_TT}, 5")
    e(f"s_lshl_b32 s69, s{S_WM}, 6")
    for i in range(5):
        e(f"v_add_u32 v21, s69, v0")
        if i: e(f"v_add_u32 v21, {64*i}, v21")
        e("v_mul_u32_u24 v22, 3277, v21"); e("v_lshrrev_b32 v22, 16, v22")
        e("v_mul_u32_u24 v23, 20, v22"); e("v_sub_u32 v23, v21, v23")
        e(f"v_mul_lo_u32 v22, v22, s{S_RS}")
        e("v_cmp_lt_u32 vcc, 17, v23"); e("v_subrev_u32 v24, 2, v23"); e("v_mov_b32 v25, 0x40000000"); e("v_cndmask_b32 v24, v23, v24, vcc")
        e("v_lshlrev_b32 v24, 4, v24"); e("v_add_u32 v22, v22, v24")
        e("v_and_b32 v24, 30, v23"); e("v_cmp_eq_u32 vcc, 16, v24")
        if i % 4: e(f"v_subrev_u32 v22, {1024*(i%4)}, v22")
        else: e("s_nop 0")
        e("s_nop 0")
        e(f"v_cndmask_b32 v{V_WO+i}, v22, v25, vcc")
    e(f"s_lshl_b32 s{S_WM}, s{S_WM}, 10"); e(f"s_add_u32 s{S_WM}, s{S_WM}, 16384")
def setup_xread(e):
    e("v_and_b32 v21, 31, v0"); e("v_lshrrev_b32 v22, 5, v0")
    e("v_lshrrev_b32 v23, 1, v21"); e("v_and_b32 v23, 7, v23"); e("v_xor_b32 v23, v23, v22"); e("v_lshlrev_b32 v23, 4, v23")
    e("v_lshlrev_b32 v24, 7, v21"); e("v_add_u32 v23, v23, v24")
    e(f"s_lshl_b32 s69, s{S_TT}, 12"); e(f"v_add_u32 v{V_XA}, s69, v23")
    for s in range(1, 4): e(f"v_xor_b32 v{V_XA+s}, {32*s}, v{V_XA}")

def lane_parts(e):
    e("v_lshrrev_b32 v21, 5, v0"); e("v_bfe_u32 v22, v0, 4, 1"); e("v_bfe_u32 v23, v0, 2, 2"); e("v_and_b32 v24, 3, v0")
    e("v_and_b32 v25, 1, v0"); e("v_lshlrev_b32 v25, 1, v25"); e("v_bfe_u32 v26, v0, 1, 1"); e("v_or_b32 v25, v25, v26")
    e("v_lshlrev_b32 v26, 3, v21"); e("v_add_u32 v26, v26, v23"); e("v_mul_u32_u24 v26, 320, v26"); e("v_add_u32 v26, 16384, v26")
def waddr(e, variant, fg):
    lane_parts(e)
    dense = variant == "h"
    q = 24 if variant == "v" else 25
    e(f"v_lshlrev_b32 v27, 3, v{q}"); e("v_add_u32 v27, v27, v26")
    e("v_lshlrev_b32 v28, 5, v22"); e("v_add_u32 v28, v27, v28")
    for i, T in enumerate(TILES[fg]):
        d = V_WA + i
        if dense:
            if T < 4: e(f"v_add_u32 v{d}, {64*T}, v28")
            else: e(f"v_add_u32 v{d}, 288, v27")
        else:
            if T == 0: e("v_mul_u32_u24 v29, 288, v22"); e(f"v_add_u32 v{d}, v27, v29")
            elif T < 4: e(f"v_add_u32 v{d}, {40+72*(T-1)}, v28")
            else: e("v_mul_u32_u24 v29, 72, v24"); e("v_add_u32 v29, v29, v26"); e(f"v_add_u32 v{d}, 32, v29")

def zero_acc(e, variant, fg):
    for i in range(4): e(f"v_mov_b32 v{XF+i}, 0")
    if variant == "h":
        for i in range(4): e(f"v_mov_b32 v{ONE+i}, 0x3f803f80")
        for i in range(4): e(f"v_mov_b32 v{V_ST+i}, 0")
        for i in range(3): e(f"v_mov_b32 v{V_CS+i}, 0")
    e("s_nop 1")
    z = vr(XF, 4)
    for i in range(len(TILES[fg])): e(f"v_mfma_f32_32x32x16_bf16 {vr(ACC+16*i,16)}, {z}, {z}, 0")
    if fg == 0 and variant in ("q0", "h"): e(f"v_mfma_f32_32x32x16_bf16 {vr(EX0,16)}, {z}, {z}, 0")
    if fg == 0 and variant == "h" and Opt.h_gram: e(f"v_mfma_f32_32x32x16_bf16 {vr(EX1,16)}, {z}, {z}, 0")

def prologue_dma(e, fg):
    if fg == 0:
        e(f"s_mov_b32 s{S_SLX}, 0"); e(f"s_mov_b32 s{S_SLW}, 0")
        setup_x(e, fg)
        for grp in dma_x(fg): e.extend(grp)
        setup_w(e, fg)
        for grp in dma_w(fg): e.extend(grp)
        for grp in dma_x(fg): e.extend(grp)
        for grp in dma_w(fg): e.extend(grp)
        for grp in dma_x(fg): e.extend(grp)
    stamp(e, 1, 'any')
    setup_xread(e)

def late_setup(e):
    e("s_mov_b64 exec, -1")
    e(f"s_load_dwordx2 s[52:53], s[0:1], {KA_W3}"); e(f"s_load_dwordx2 s[54:55], s[0:1], {KA_W4}")
    e(f"s_load_dwordx2 s[40:41], s[0:1], {KA_W2}"); e(f"s_load_dwordx2 s[58:59], s[0:1], {KA_WO}")
    e(f"s_lshl_b32 s44, s{S_TT}, 6"); e("v_add_u32 v30, s44, v0"); e("v_lshlrev_b32 v30, 7, v30")
    e(f"s_lshl_b32 s69, s{S_CT}, 4"); e(f"s_add_u32 s69, s69, s{S_RB}")
    e("s_waitcnt lgkmcnt(0)")
    for rep, (srd, so) in enumerate(((44, 62), (48, 63))):
        if rep == 0 and True:
            e("s_add_u32 s70x, s69, 0".replace("s70x", f"s{S_T2}"))
        u = f"s{S_GD}"
        if rep == 0: e(f"s_add_u32 {u}, s69, {324 if Opt.late_sel == 'w2' else 192}")
        else: e(f"s_mov_b32 {u}, s69")
        e(f"s_mov_b32 s{srd}, s52"); e(f"s_mov_b32 s{srd+1}, s53"); e(f"s_mov_b32 s{srd+2}, {576*4608*2}"); e(f"s_mov_b32 s{so}, {u}")
        for lo, p, size in ((162, 54, 576*4608*2), (324, 40, 576*576*2), (345, 58, 576*576*2)):
            e(f"s_cmp_ge_u32 {u}, {lo}")
            e(f"s_cselect_b32 s{srd}, s{p}, s{srd}"); e(f"s_cselect_b32 s{srd+1}, s{p+1}, s{srd+1}")
            if size != 576*4608*2: e(f"s_cselect_b32 s{srd+2}, {size}, s{srd+2}")
            e(f"s_sub_u32 s{S_T2}, {u}, {lo}"); e(f"s_cmp_ge_u32 {u}, {lo}"); e(f"s_cselect_b32 s{so}, s{S_T2}, s{so}")
        e(f"s_and_b32 s{srd+1}, s{srd+1}, 0xffff"); e(f"s_mov_b32 s{srd+3}, 0x20000")
        e(f"s_lshl_b32 s{so}, s{so}, 15")
def late_issue():
    l = ["buffer_load_dword v31, v30, s[44:47], s62 offen", "buffer_load_dword v31, v30, s[48:51], s63 offen"]
    return l[:1] if Opt.late_sel == 'w2' else l

def epi_qk(e, fg, gate):
    e(f"s_lshl_b32 s44, s{S_RB}, 2"); e(f"s_add_u32 s44, s44, s{S_TT}")
    e(f"s_lshl_b32 s45, s{S_CQ}, 3")
    e("s_lshl_b32 s46, s45, 16"); e("s_lshl_b32 s47, s44, 10"); e("s_add_u32 s46, s46, s47"); e("s_add_u32 s46, s46, s42")
    P = 128
    for i, T in enumerate(TILES[fg]):
        if T == 4: continue
        for j in range(16): e(f"v_mul_f32 v{ACC+16*i+j}, s41, v{ACC+16*i+j}")
        for hh in range(2):
            p = P + 8 * (i % 2) + 4 * hh
            for j in range(4): e(f"v_cvt_pk_bf16_f32 v{p+j}, v{ACC+16*i+8*hh+2*j}, v{ACC+16*i+8*hh+2*j+1}")
            e(f"s_add_u32 s47, s46, {HEADS[T][hh]*65536}")
            e(f"buffer_store_dwordx4 {vr(p,4)}, v{V_L16}, s[{S_WS}:{S_WS+3}], s47 offen")
    if fg == 1:
        a = ACC + 32
        for j in range(8): e(f"v_mul_f32 v{a+j}, s41, v{a+j}")
        for j in range(4): e(f"v_cvt_pk_bf16_f32 v{144+j}, v{a+2*j}, v{a+2*j+1}")
        e("v_and_b32 v21, 31, v0"); e("v_lshlrev_b32 v21, 2, v21"); e("v_lshrrev_b32 v29, 5, v0"); e("v_lshlrev_b32 v29, 14, v29"); e("v_add_u32 v21, v21, v29")
        e("s_lshl_b32 s46, s45, 13"); e("s_lshl_b32 s47, s44, 7"); e("s_add_u32 s46, s46, s47"); e("s_add_u32 s46, s46, s43")
        for j, hoff in enumerate([0, 1, 4, 5]):
            e(f"s_add_u32 s47, s46, {hoff*8192}")
            e(f"buffer_store_dword v{144+j}, v21, s[{S_WS}:{S_WS+3}], s47 offen")
    if gate:
        e(f"v_mul_f32 v23, {hexf(-math.log2(math.e))}, v{EX0}"); e("v_exp_f32 v23, v23"); e("s_nop 0"); e("v_add_f32 v23, 1.0, v23"); e("v_rcp_f32 v23, v23")
        e("v_and_b32 v21, 31, v0"); e("v_lshlrev_b32 v21, 2, v21")
        e("s_lshl_b32 s47, s44, 7"); e(f"s_add_u32 s47, s47, {LY.G}")
        e("s_mov_b64 exec, 0xffffffff")
        e(f"buffer_store_dword v23, v21, s[{S_WS}:{S_WS+3}], s47 offen")
    if Opt.late_touch and not Opt.touch_in_loop and fg == 1:
        late_setup(e); e.extend(late_issue())
    if Opt.repack_l1: e("s_branch L1_tail")
    else: fin(e)

def epi_v(e, fg):
    e(f"s_lshl_b32 s44, s{S_RB}, 2"); e(f"s_add_u32 s44, s44, s{S_TT}")
    e(f"s_lshl_b32 s45, s{S_CQ}, 3")
    e(f"s_mul_i32 s46, s45, {LY.VHEAD}"); e("s_mul_i32 s47, s44, 1216"); e("s_add_u32 s46, s46, s47"); e(f"s_add_u32 s46, s46, {LY.VF}")
    e("v_lshrrev_b32 v21, 5, v0"); e("v_mul_u32_u24 v21, 304, v21")
    e("v_and_b32 v22, 15, v0"); e("v_lshlrev_b32 v22, 4, v22"); e("v_add_u32 v22, v22, v21")
    e("v_bfe_u32 v23, v0, 4, 1")
    e(f"s_mov_b32 s47, {LY.VHEAD}")
    e("v_mul_lo_u32 v24, v23, s47")
    e("v_add_u32 v25, v22, v24")
    if fg == 0: e("v_mul_u32_u24 v24, 7, v24"); e("v_add_u32 v26, v22, v24")
    P = 128
    for i, T in enumerate(TILES[fg]):
        if T == 4: continue
        ad = 26 if T == 0 else 25
        hb = 0 if T == 0 else HEADS[T][0]
        e(f"s_add_u32 s47, s46, {hb*LY.VHEAD}")
        for hh in range(2):
            p = P + 8 * (i % 2) + 4 * hh
            for j in range(4): e(f"v_cvt_pk_bf16_f32 v{p+j}, v{ACC+16*i+8*hh+2*j}, v{ACC+16*i+8*hh+2*j+1}")
            e(f"buffer_store_dwordx4 {vr(p,4)}, v{ad}, s[{S_WS}:{S_WS+3}], s47 offen offset:{608*hh}")
    if fg == 1:
        a = ACC + 32
        e("v_and_b32 v22, 31, v0")
        e("v_lshrrev_b32 v23, 2, v22"); e("v_lshlrev_b32 v23, 1, v23"); e("v_bfe_u32 v24, v22, 1, 1"); e("v_add_u32 v23, v23, v24")
        e("v_and_b32 v24, 1, v22"); e("v_add_u32 v24, 16, v24")
        e("v_cmp_lt_u32 vcc, 15, v22"); e("v_subrev_u32 v25, 16, v22"); e("v_mov_b32 v27, 18")
        e("v_cndmask_b32 v23, v23, v25, vcc"); e("v_cndmask_b32 v24, v24, v27, vcc")
        e(f"s_mov_b32 s47, {LY.VHEAD}"); e("v_mul_lo_u32 v23, v23, s47"); e("v_lshlrev_b32 v24, 4, v24"); e("v_add3_u32 v23, v23, v24, v21")
        e("v_mov_b32 v27, 0x3f803f80")
        for hh in range(2):
            for j in range(4):
                e(f"v_cvt_pk_bf16_f32 v{144+4*hh+j}, v{a+8*hh+2*j}, v{a+8*hh+2*j+1}")
                e(f"v_cndmask_b32 v{144+4*hh+j}, v{144+4*hh+j}, v27, vcc")
        e("v_cmp_gt_u32 vcc, 24, v22"); e("s_nop 1")
        e("s_and_saveexec_b64 s[48:49], vcc")
        for hh in range(2):
            e(f"buffer_store_dwordx4 {vr(144+4*hh,4)}, v23, s[{S_WS}:{S_WS+3}], s46 offen offset:{608*hh}")
    if Opt.late_touch and not Opt.touch_in_loop and fg == 1:
        late_setup(e); e.extend(late_issue())
    if Opt.repack_l1: e("s_branch L1_tail")
    else: fin(e)

def epi_h(e, fg):
    ST = 22
    nT = len(TILES[fg]); T0 = TILES[fg][0]
    for i in range(nT): e(f"v_mov_b32 v{128+i}, v{V_CS+i}")
    e("v_and_b32 v21, 31, v0"); e("v_lshlrev_b32 v21, 2, v21")
    for i in range(nT): e(f"v_permlane32_swap_b32 v{128+i}, v{V_CS+i}")
    for i in range(nT): e(f"v_add_f32 v{V_CS+i}, v{128+i}, v{V_CS+i}")
    e(f"s_mul_i32 s44, s{S_TT}, 640"); e(f"s_add_u32 s44, s44, {XCH_OFF + 128*T0}"); e("v_add_u32 v29, s44, v21")
    for i in range(nT): e(f"ds_write_b32 v29, v{V_CS+i} offset:{128*i}")
    e("v_lshlrev_b32 v27, 1, v21"); e(f"s_lshl_b32 s44, s{S_TT}, 8"); e(f"s_add_u32 s44, s44, {XCH_OFF+2560}"); e("v_add_u32 v27, s44, v27")
    if fg == 0:
        if Opt.h_gram:
            for b, (bit, sp) in enumerate(((0, 44), (1, 46), (3, 48), (4, 52))):
                e(f"v_bfe_u32 v28, v0, {bit}, 1"); e(f"v_cmp_eq_u32 s[{sp}:{sp+1}], 1, v28")
            e("v_bfe_u32 v28, v0, 2, 1"); e("v_lshrrev_b32 v26, 5, v0"); e("v_cmp_eq_u32 vcc, v26, v28")
            e("s_nop 0")
            for i in range(8): e(f"v_cndmask_b32 v{EX1+i}, v{EX1+2*i}, v{EX1+2*i+1}, s[44:45]")
            for i in range(4): e(f"v_cndmask_b32 v{EX1+i}, v{EX1+2*i}, v{EX1+2*i+1}, s[46:47]")
            for i in range(2): e(f"v_cndmask_b32 v{EX1+i}, v{EX1+2*i}, v{EX1+2*i+1}, s[48:49]")
            e(f"v_cndmask_b32 v{EX1}, v{EX1}, v{EX1+1}, s[52:53]")
            e(f"v_cndmask_b32 v{ST+1}, 0, v{EX1}, vcc")
        else:
            e(f"v_add_f32 v{ST+1}, v{V_ST+2}, v{V_ST+3}")
        e(f"v_mov_b32 v25, v{ST+1}"); e(f"v_mul_f32 v{ST}, {hexf(1/576)}, v{EX0}"); e("s_nop 0")
        e(f"v_permlane32_swap_b32 v25, v{ST+1}")
        e(f"v_add_f32 v{ST+1}, v25, v{ST+1}")
        e(f"v_mul_f32 v{ST+1}, {hexf(1/576)}, v{ST+1}")
        e(f"v_fma_f32 v{ST+1}, -v{ST}, v{ST}, v{ST+1}"); e(f"v_max_f32 v{ST+1}, 0, v{ST+1}"); e(f"v_add_f32 v{ST+1}, {hexf(1e-5)}, v{ST+1}")
        e(f"ds_write_b64 v27, {vr(ST,2)}")
    e("s_waitcnt lgkmcnt(0)"); e("s_barrier")
    if fg == 1: e(f"ds_read_b64 {vr(ST,2)}, v27")
    e(f"v_add_u32 v29, {XCH_OFF + 128*T0}, v21")
    for i in range(nT):
        for wv in range(4): e(f"ds_read_b32 v{144+4*i+wv}, v29 offset:{640*wv+128*i}")
    e("s_waitcnt lgkmcnt(0)")
    for i in range(nT):
        e(f"v_add_f32 v{144+4*i}, v{144+4*i}, v{145+4*i}"); e(f"v_add_f32 v{146+4*i}, v{146+4*i}, v{147+4*i}"); e(f"v_add_f32 v{144+4*i}, v{144+4*i}, v{146+4*i}")
    e(f"s_mul_i32 s44, s{S_WV}, 384"); e(f"s_add_u32 s44, s44, {XCH_OFF+3584}"); e("v_add_u32 v29, s44, v21")
    for i in range(nT): e(f"ds_write_b32 v29, v{144+4*i} offset:{128*i}")
    e("v_lshrrev_b32 v21, 5, v0"); e("v_lshlrev_b32 v21, 4, v21"); e("v_add_u32 v29, s44, v21")
    e("s_waitcnt lgkmcnt(0)")
    SG, RR, AA, BB, MM, SS = 128, 129, 130, 132, 134, 136
    e(f"v_sqrt_f32 v{SG}, v{ST+1}"); e("s_nop 0"); e(f"v_rcp_f32 v{RR}, v{SG}"); e("s_nop 0")
    e(f"v_mul_f32 v{BB}, {hexf(GELU_C0)}, v{RR}"); e(f"v_mul_f32 v{AA}, v{RR}, v{RR}"); e(f"v_mul_f32 v{AA}, v{AA}, v{RR}"); e(f"v_mul_f32 v{AA}, {hexf(GELU_C1)}, v{AA}")
    e(f"v_mov_b32 v{AA+1}, v{AA}"); e(f"v_mov_b32 v{BB+1}, v{BB}"); e(f"v_mov_b32 v{SS}, v{SG}"); e(f"v_mov_b32 v{SS+1}, v{SG}")
    e(f"v_sub_f32 v{MM}, 0, v{ST}"); e(f"v_mov_b32 v{MM+1}, v{MM}")
    e(f"s_lshl_b32 s45, s{S_RB}, 7"); e(f"s_lshl_b32 s46, s{S_TT}, 5"); e("s_add_u32 s45, s45, s46")
    e(f"s_lshr_b32 s46, s{S_CQ}, 1"); e("s_add_u32 s46, s46, 1"); e("s_sub_u32 s47, 0, s46"); e(f"s_bitcmp1_b32 s{S_CQ}, 0"); e("s_cselect_b32 s46, s47, s46")
    e("s_add_u32 s45, s45, s46")
    e("v_and_b32 v21, 31, v0"); e("v_add_u32 v21, s45, v21")
    e("v_cmp_gt_u32 vcc, 2048, v21")
    e("v_and_b32 v21, 2047, v21")
    e("v_lshrrev_b32 v30, 5, v21"); e("s_mov_b32 s47, 36864"); e("v_mul_lo_u32 v30, v30, s47")
    e("v_and_b32 v21, 31, v21"); e("v_lshlrev_b32 v21, 4, v21"); e("v_add_u32 v30, v30, v21")
    e("v_lshrrev_b32 v21, 5, v0"); e("v_lshlrev_b32 v21, 9, v21"); e("v_add_u32 v30, v30, v21")
    e("s_mov_b64 s[50:51], vcc")
    u0 = 2 * TILES[fg][0]
    e(f"s_mul_i32 s47, s{S_CQ}, 9216"); e(f"s_add_u32 s47, s47, {LY.HS + u0*1024}")
    CS = 144; TT = 160
    def pk(op, d, a, b, c=None):
        s = f"v_pk_{op}_f32 {vr(d,2)}, {vr(a,2)}, {vr(b,2)}"
        if c is not None: s += f", {vr(c,2)}"
        return s
    u = 0
    for i, T in enumerate(TILES[fg]):
        nj = 4 if T < 4 else 2
        for j in range(nj): e(f"ds_read_b128 {vr(CS+4*j,4)}, v29 offset:{128*i+32*j}")
        e("s_waitcnt lgkmcnt(0)")
        for half in range(nj // 2):
            a = ACC + 16 * i + 8 * half; cs = CS + 8 * half
            for k in range(0, 8, 2): e(pk("fma", a + k, MM, cs + k, a + k))
            for k in range(0, 8, 2): e(pk("mul", TT + k, a + k, a + k))
            for k in range(0, 8, 2): e(pk("fma", TT + k, TT + k, AA, BB))
            for k in range(0, 8, 2): e(pk("mul", TT + k, a + k, TT + k))
            for k in range(8): e(f"v_exp_f32 v{TT+k}, v{TT+k}")
            for k in range(0, 8, 2): e(pk("fma", TT + k, TT + k, SS, SS))
            for k in range(8): e(f"v_rcp_f32 v{TT+k}, v{TT+k}")
            for k in range(0, 8, 2): e(pk("mul", a + k, a + k, TT + k))
            p = 168 + 4 * (u % 2)
            for j in range(4): e(f"v_cvt_pk_bf16_f32 v{p+j}, v{a+2*j}, v{a+2*j+1}")
            for j in range(4): e(f"v_cndmask_b32 v{p+j}, 0, v{p+j}, s[50:51]")
            e(f"buffer_store_dwordx4 {vr(p,4)}, v30, s[{S_WS}:{S_WS+3}], s47 offen offset:{(u%4)*1024}")
            if u % 4 == 3: e("s_add_u32 s47, s47, 4096")
            u += 1
    fin(e)

def role(e, variant, fg):
    if variant == "q0" and fg == 0:
        e(f"s_mov_b32 m0, {GW_OFF}"); e("s_nop 0")
        e(f"buffer_load_dwordx4 v{V_L16}, s[{S_GW}:{S_GW+3}], 0 offen lds")
        e(f"buffer_load_dwordx4 v{V_L16}, s[{S_GW}:{S_GW+3}], 0 offen offset:1024 lds")
    prologue_dma(e, fg)
    waddr(e, variant, fg)
    if variant == "q0" and fg == 0:
        e("v_lshrrev_b32 v21, 5, v0"); e("v_lshlrev_b32 v21, 4, v21"); e(f"v_add_u32 v{V_GA}, {GW_OFF}, v21")
        e(f"s_lshl_b32 s69, s{S_KC}, 7"); e(f"v_add_u32 v{V_GA}, s69, v{V_GA}")
    if Opt.late_touch and Opt.touch_in_loop and fg == 1 and variant != "h": late_setup(e)
    zero_acc(e, variant, fg)
    if variant in ("q0", "qk"):
        e("s_cmp_eq_u32 s3, 0")
        e(f"s_cselect_b32 s41, {hexf(QSCALE)}, 1.0"); e(f"s_mov_b32 s42, {LY.KF0}"); e(f"s_cselect_b32 s42, {LY.QF0}, s42"); e(f"s_mov_b32 s43, {LY.KX}"); e(f"s_cselect_b32 s43, {LY.QX}, s43")
    main_loop(e, variant, fg)
    if variant in ("q0", "qk"): epi_qk(e, fg, variant == "q0" and fg == 0)
    elif variant == "v": epi_v(e, fg)
    else: epi_h(e, fg)

def gen():
    e = Emit()
    kernel_head(e, NAME)
    Diag.kid = 0
    e("s_cmp_ge_u32 s2, 256")
    e("s_cbranch_scc1 L1_exit")
    e(f"s_load_dwordx2 s[4:5], s[0:1], {KA_WS}")
    e(f"s_load_dwordx4 s[52:55], s[0:1], {KA_XA}")
    e(f"s_load_dwordx2 s[58:59], s[0:1], {KA_W1}")
    e(f"s_load_dwordx2 s[60:61], s[0:1], {KA_GW}")
    e("s_and_b32 s6, s2, 7"); e("s_lshr_b32 s7, s2, 3")
    e("v_lshrrev_b32 v1, 6, v0"); e("v_and_b32 v0, 63, v0")
    e(f"v_readfirstlane_b32 s{S_WV}, v1")
    e(f"s_and_b32 s{S_RB}, s6, 3"); e(f"s_lshl_b32 s{S_RB}, s{S_RB}, 2"); e("s_and_b32 s3, s7, 3"); e(f"s_add_u32 s{S_RB}, s{S_RB}, s3")
    e(f"s_lshr_b32 s{S_CQ}, s6, 2"); e(f"s_lshl_b32 s{S_CQ}, s{S_CQ}, 1"); e("s_bfe_u32 s3, s7, 0x10002"); e(f"s_add_u32 s{S_CQ}, s{S_CQ}, s3")
    e("s_lshr_b32 s3, s7, 3"); e(f"s_lshl_b32 s{S_CT}, s3, 2"); e(f"s_add_u32 s{S_CT}, s{S_CT}, s{S_CQ}")
    e(f"v_lshlrev_b32 v{V_L16}, 4, v0")
    e(f"s_and_b32 s{S_TT}, s{S_WV}, 3")
    e("s_waitcnt lgkmcnt(0)")
    make_srd(e, S_WS, 4, LY.WS_END)
    stamp(e, 0, 'any')
    dbg_start(e)
    if Opt.fuse_l2 and Opt.cnt_ws:
        e("s_cmp_eq_u32 s2, 0"); e("s_cbranch_scc0 L1_nocnt")
        e(f"s_cmp_eq_u32 s{S_WV}, 7"); e("s_cbranch_scc0 L1_nocnt")
        e("v_lshlrev_b32 v2, 7, v0"); e("v_mov_b32 v3, 0"); e(f"s_mov_b32 s69, {LY.CNT}")
        e(f"buffer_store_dword v3, v2, s[{S_WS}:{S_WS+3}], s69 offen")
        e.label("L1_nocnt")
    e("s_cmp_eq_u32 s3, 3")
    e("s_cselect_b32 s64, s58, s54"); e("s_cselect_b32 s65, s59, s55")
    e(f"s_movk_i32 s{S_RS}, 3456"); e(f"s_cselect_b32 s{S_RS}, 1152, s{S_RS}")
    e(f"s_mov_b32 s67, {SLOT}"); e(f"s_mov_b32 s68, {(-3*SLOT) & 0xffffffff}")
    e(f"s_cselect_b32 s66, s{S_CQ}, s{S_CT}")
    make_srd(e, S_X, 52, 2048 * 576 * 2)
    e(f"s_mov_b32 s{S_W}, s64"); e(f"s_and_b32 s{S_W+1}, s65, 0xffff"); e(f"s_mul_i32 s{S_W+2}, s{S_RS}, 576"); e(f"s_mov_b32 s{S_W+3}, 0x20000")
    make_srd(e, S_GW, 60, 1152)
    e(f"s_lshl_b32 s{S_XO}, s{S_RB}, 2"); e(f"s_add_u32 s{S_XO}, s{S_XO}, s{S_TT}"); e(f"s_mul_i32 s{S_XO}, s{S_XO}, 36864")
    e(f"s_mul_i32 s{S_WO}, s66, 288")
    e(f"s_lshl_b32 s{S_WSTEP}, s{S_RS}, 6")
    e("s_and_b32 s69, s7, 3"); e("s_lshl_b32 s69, s69, 1"); e(f"s_lshr_b32 s{S_KX}, s7, 2"); e(f"s_add_u32 s{S_KX}, s{S_KX}, s69")
    e(f"s_cmp_ge_u32 s{S_KX}, 9"); e(f"s_cselect_b32 s69, 9, 0"); e(f"s_sub_u32 s{S_KX}, s{S_KX}, s69")
    if not Opt.rotate: e(f"s_mov_b32 s{S_KX}, 0")
    e(f"s_mov_b32 s{S_KW}, s{S_KX}"); e(f"s_mov_b32 s{S_KC}, s{S_KX}")
    e(f"s_lshl_b32 s69, s{S_KX}, 7"); e(f"s_add_u32 s{S_XO}, s{S_XO}, s69")
    e(f"s_mul_i32 s69, s{S_KX}, s{S_WSTEP}"); e(f"s_add_u32 s{S_WO}, s{S_WO}, s69")
    e(f"s_mul_i32 s{S_WBACK}, s{S_WSTEP}, -8"); e(f"s_movk_i32 s{S_C128}, 128")
    if Opt.icache_test == "line":
        for i in range(512): e(f"v_fma_f32 v{40+i%16}, v{40+i%16}, v{40+i%16}, v{40+i%16}")
    elif Opt.icache_test == "loop":
        e("s_mov_b32 s69, 16")
        e.label("L1_ictest")
        for i in range(32): e(f"v_fma_f32 v{40+i%16}, v{40+i%16}, v{40+i%16}, v{40+i%16}")
        e("s_sub_u32 s69, s69, 1"); e("s_cmp_lg_u32 s69, 0"); e("s_cbranch_scc1 L1_ictest")
    e(f"s_cmp_ge_u32 s{S_WV}, 4"); e("s_cbranch_scc1 L1_fg1")
    code_prefetch(e, NAME, "L1_exit", 3, vaddr=28, vtmp=26, vdst=31, sp=62)
    e("s_cmp_eq_u32 s3, 2"); e("s_cbranch_scc1 L1_v0")
    e("s_cmp_eq_u32 s3, 3"); e("s_cbranch_scc1 L1_h0")
    e(f"s_cmp_eq_u32 s{S_CT}, 0"); e("s_cbranch_scc0 L1_qk0")
    role(e, "q0", 0)
    e.label("L1_qk0"); role(e, "qk", 0)
    e.label("L1_v0"); role(e, "v", 0)
    e.label("L1_h0"); role(e, "h", 0)
    e.label("L1_fg1")
    if Opt.code_pf and Opt.code_pf_next:
        e("s_cmp_lt_u32 s2, 8"); e("s_cbranch_scc0 L1_nopf"); e(f"s_cmp_eq_u32 s{S_WV}, 5"); e("s_cbranch_scc0 L1_nopf")
        code_prefetch(e, "l3_kernel", "L3_exit", 5, vaddr=28, vtmp=26, vdst=31, sp=62)
        e.label("L1_nopf")
    e("s_cmp_eq_u32 s3, 2"); e("s_cbranch_scc1 L1_v1")
    e("s_cmp_eq_u32 s3, 3"); e("s_cbranch_scc1 L1_h1")
    role(e, "qk", 1)
    e.label("L1_v1"); role(e, "v", 1)
    e.label("L1_h1"); role(e, "h", 1)
    if Opt.repack_l1: gen_repack.gen_tail(e)
    e.label("L1_exit")
    e("s_endpgm")
    return e.text()
if __name__ == "__main__":
    t = gen()
    errs = check(t, "l1")
    for x in errs: print(x)
    print("instrs", sum(1 for l in t.split("\n") if l.startswith("    ")), "hazard errs", len(errs))
```

```python
from asmlib import *
import layouts as LY
import math

KA_XA, KA_WQKV, KA_WO, KA_XB, KA_W1, KA_W2, KA_W3, KA_W4, KA_GW, KA_OUT, KA_DBG, KA_WS = [8*i for i in range(12)]
WS_SIZE = 268435456

def kernel_head(e, name):
    e(f".globl {name}")
    e(".p2align 8")
    e(f".type {name},@function")
    e.label(name)

def kernel_desc(name, vgpr, accum, sgpr=102):
    return f""".amdhsa_kernel {name}
  .amdhsa_next_free_vgpr {vgpr}
  .amdhsa_next_free_sgpr {sgpr}
  .amdhsa_accum_offset {accum}
  .amdhsa_group_segment_fixed_size 0
  .amdhsa_kernarg_size 96
  .amdhsa_user_sgpr_count 2
  .amdhsa_user_sgpr_kernarg_segment_ptr 1
  .amdhsa_system_sgpr_workgroup_id_x 1
  .amdhsa_float_denorm_mode_32 3
.end_amdhsa_kernel
"""

def make_srd(e, dst, ptr, size):
    if dst != ptr: e(f"s_mov_b32 s{dst}, s{ptr}")
    e(f"s_and_b32 s{dst+1}, s{ptr+1}, 0xffff")
    e(f"s_mov_b32 s{dst+2}, {size}")
    e(f"s_mov_b32 s{dst+3}, 0x20000")

GELU_C0 = -2.0 * math.sqrt(2.0 / math.pi) * math.log2(math.e)
GELU_C1 = GELU_C0 * 0.044715

class Diag:
    on = False
    kid = 0
    pre = None
    dbg = False
STAMP_BASE = 0x8000000
def stamp(e, i, grp='main'):
    if Diag.on and (grp == 'any' or grp == (Diag.pre or 'main')):
        e(f"s_memrealtime s[{70+2*i}:{71+2*i}]")
        if i == 2: e("s_memtime s[92:93]")
        if i == 5: e("s_memtime s[94:95]")
        e("s_waitcnt lgkmcnt(0)")
def dbg_start(e):
    if Diag.dbg:
        e("s_memrealtime s[96:97]")
        e(f"s_load_dwordx2 s[98:99], s[0:1], {KA_DBG}")
        e("s_waitcnt lgkmcnt(0)")
def fin(e, wave_sgpr=8):
    if Diag.dbg:
        e("s_waitcnt vmcnt(0)")
        e("s_memrealtime s[100:101]")
        e("s_waitcnt lgkmcnt(0)")
        e(f"s_cmp_eq_u32 s{wave_sgpr}, 0"); e(f"s_cbranch_scc0 Ldbg_skip_{len(e.L)}")
        Diag.lab = f"Ldbg_skip_{len(e.L)-1}"
        e("s_mov_b64 exec, 1")
        fusedl = Opt.fuse_l2
        lidx = Diag.kid - (1 if (fusedl and Diag.kid >= 2) else 0) - (1 if (Opt.fuse_l4 and Diag.kid >= 3) else 0)
        last = 512 * (3 - (1 if fusedl else 0) - (1 if Opt.fuse_l4 else 0))
        e(f"s_sub_u32 s98, s98, {512 * lidx}"); e("s_subb_u32 s99, s99, 0")
        e("s_not_b32 s96, s96")
        e("v_mov_b32 v2, s96"); e("v_mov_b32 v3, s100"); e("v_mov_b32 v4, 0")
        e(f"global_atomic_umax v4, v2, s[98:99] offset:{16 * Diag.kid}")
        e(f"global_atomic_umax v4, v3, s[98:99] offset:{16 * Diag.kid + 4}")
        e(f"global_atomic_umax v4, v2, s[98:99] offset:{last + 16 * Diag.kid}")
        e(f"global_atomic_umax v4, v3, s[98:99] offset:{last + 16 * Diag.kid + 4}")
        e.label(Diag.lab)
    if Diag.on:
        stamp(e, 7, 'any')
        e("s_waitcnt vmcnt(0)")
        e("s_memrealtime s[86:87]")
        e("s_waitcnt lgkmcnt(0)")
        e("s_mov_b64 exec, -1")
        e(f"s_lshl_b32 s88, s2, 3"); e(f"s_add_u32 s88, s88, s{wave_sgpr}"); e("s_lshl_b32 s88, s88, 6")
        e(f"s_add_u32 s88, s88, {STAMP_BASE + Diag.kid * 0x20000}")
        for i in range(8): e(f"v_mov_b32 v{4+i}, s{70+2*i}")
        e("v_mov_b32 v12, s86")
        e("s_sub_u32 s94, s94, s92")
        e("v_mov_b32 v14, s94")
        e("v_mov_b32 v13, s88")
        e("global_store_dwordx4 v13, v[4:7], s[4:5] offset:0")
        e("global_store_dwordx4 v13, v[8:11], s[4:5] offset:16")
        e("global_store_dword v13, v12, s[4:5] offset:32")
        e("global_store_dword v13, v14, s[4:5] offset:36")
    e("s_endpgm")

class Opt:
    code_pf = False
    code_pf_next = True
    l1_8wave = True
    l1_touch = False
    late_touch = True
    late_sel = 'w2'
    touch_in_loop = False
    touch_stages = (2, 5)
    rotate = False
    rotate2 = True
    repack_l1 = False
    fuse_l2 = True
    fuse_l4 = True
    final_sleep = 4
    early_wo = True
    fin_mfma = True
    fin_split = True
    cnt_ws = True
    gemm_local = True
    thin_touch = True
    thin_from = 0
    icache_test = None
    rp_fast = True
    w4_touch = False
    h_gram = False
    mlp_rbx = 4
    acquire = False
    poll_sleep = 0
    gelu_split = 2
    l2_only = None
    touch64 = False
def code_prefetch(e, start_label, end_label, nblk, vaddr, vtmp, vdst, sp, first=0, forward=False):
    if not Opt.code_pf: return
    lab = f"{start_label}_pc{len(e.L)}"
    e(f"s_getpc_b64 s[{sp}:{sp+1}]")
    e.label(lab)
    if forward:
        e(f"s_add_u32 s{sp}, s{sp}, {start_label}-{lab}")
        e(f"s_addc_u32 s{sp+1}, s{sp+1}, 0")
    else:
        e(f"s_sub_u32 s{sp}, s{sp}, {lab}-{start_label}")
        e(f"s_subb_u32 s{sp+1}, s{sp+1}, 0")
    e(f"v_lshlrev_b32 v{vaddr}, 7, v0")
    if first: e(f"v_add_u32 v{vaddr}, {first * 0x2000}, v{vaddr}")
    for i in range(nblk):
        e(f"v_min_u32 v{vtmp}, {end_label}-{start_label}-4, v{vaddr}")
        e(f"v_mov_b32 v{vtmp+1}, s{sp+1}")
        e(f"v_add_co_u32 v{vtmp}, vcc, s{sp}, v{vtmp}")
        e("s_nop 1")
        e(f"v_addc_co_u32 v{vtmp+1}, vcc, 0, v{vtmp+1}, vcc")
        e(f"global_load_dword v{vdst}, v[{vtmp}:{vtmp+1}], off")
        if i + 1 < nblk: e(f"v_add_u32 v{vaddr}, 0x2000, v{vaddr}")

STORE_MOD = "sc1"
```

```python
from gen_common import *
import gen_repack
NAME = "l1_kernel"
BLOCK = 512
SLOT = 36864
GW_OFF = 4 * SLOT
XCH_OFF = GW_OFF + 2048
LDS_BYTES = XCH_OFF + 3584 + 8*384
S_WS = 12; S_X = 16; S_W = 20; S_GW = 24
V_L16 = 1
V_XO = 2
V_WO = 6
V_XA = 216
V_WA = 11
V_GA = 14
V_ST = 15
V_CS = 212
ACC = 32
EX0 = 80
EX1 = 96
ECS = 112
XF = 128
WF = 144
GF = 192
ONE = 208
NVGPR = 220
QSCALE = math.log2(math.e) / math.sqrt(18.0)
TILES = {0: [0, 1], 1: [2, 3, 4]}
NWP = {0: 5, 1: 0}
S_WV, S_RB, S_CT, S_CQ = 8, 9, 10, 11
S_RS, S_XO, S_WO, S_XM, S_ST, S_DL, S_WSTEP, S_SLX, S_WM, S_T2, S_SLW, S_KX = 28, 29, 30, 31, 32, 33, 34, 35, 36, 37, 38, 39
S_KW, S_KC, S_GD, S_TT = 64, 65, 66, 56
S_WBACK, S_C128 = 60, 61
HEADS = [(0, 7), (1, 2), (3, 4), (5, 6)]

def dma_x(fg):
    if fg: return [[], [], [], []]
    o = [[f"s_add_u32 m0, s{S_SLX}, s{S_XM}", f"s_add_u32 s{S_KX}, s{S_KX}, 1", f"buffer_load_dwordx4 v{V_XO}, s[{S_X}:{S_X+3}], s{S_XO} offen lds"]]
    for i in range(1, 4):
        o.append([f"buffer_load_dwordx4 v{V_XO+i}, s[{S_X}:{S_X+3}], s{S_XO} offen offset:{i*1024} lds"])
    o[-1] += [f"s_cmp_eq_u32 s{S_KX}, 9", f"s_cselect_b32 s{S_KX}, 0, s{S_KX}", f"s_cselect_b32 s69, {(-1024) & 0xffffffff}, s{S_C128}", f"s_add_u32 s{S_XO}, s{S_XO}, s69",
              f"s_add_u32 s{S_SLX}, s{S_SLX}, {SLOT}", f"s_cmp_eq_u32 s{S_SLX}, {4*SLOT}", f"s_cselect_b32 s{S_SLX}, 0, s{S_SLX}"]
    return o
def dma_w(fg):
    if fg: return [[], [], [], [], []]
    o = [[f"s_add_u32 m0, s{S_SLW}, s{S_WM}", f"s_add_u32 s{S_KW}, s{S_KW}, 1", f"buffer_load_dwordx4 v{V_WO}, s[{S_W}:{S_W+3}], s{S_WO} offen lds"]]
    for i in range(1, 4):
        o.append([f"buffer_load_dwordx4 v{V_WO+i}, s[{S_W}:{S_W+3}], s{S_WO} offen offset:{i*1024} lds"])
    o.append(["s_add_u32 m0, m0, 4096", f"s_cmp_eq_u32 s{S_KW}, 9", f"buffer_load_dwordx4 v{V_WO+4}, s[{S_W}:{S_W+3}], s{S_WO} offen lds",
              f"s_cselect_b32 s{S_KW}, 0, s{S_KW}", f"s_cselect_b32 s69, s{S_WBACK}, s{S_WSTEP}", f"s_add_u32 s{S_WO}, s{S_WO}, s69",
              f"s_add_u32 s{S_SLW}, s{S_SLW}, {SLOT}", f"s_cmp_eq_u32 s{S_SLW}, {4*SLOT}", f"s_cselect_b32 s{S_SLW}, 0, s{S_SLW}"])
    return o

def reads(s, variant, fg):
    o = [f"ds_read_b128 {vr(XF+4*s,4)}, v{V_XA+s}"]
    if variant == "q0" and fg == 0: o.append(f"ds_read_b128 {vr(GF+4*s,4)}, v{V_GA} offset:{32*s}")
    for i, T in enumerate(TILES[fg]):
        for q in range(2):
            o.append(f"ds_read_b64_tr_b16 {vr(WF+12*s+4*i+2*q,2)}, v{V_WA+i} offset:{(16*s+4*q)*320}")
    return o

def advance_addrs(variant, fg):
    o = [f"v_add_u32 v{r}, s{S_DL}, v{r}" for r in list(range(V_XA, V_XA + 4)) + list(range(V_WA, V_WA + len(TILES[fg])))]
    if variant == "q0" and fg == 0:
        o += [f"s_add_u32 s{S_KC}, s{S_KC}, 1", f"s_cmp_eq_u32 s{S_KC}, 9", f"s_cselect_b32 s{S_KC}, 0, s{S_KC}",
              f"s_cselect_b32 s{S_GD}, {(-1024) & 0xffffffff}, s{S_C128}", f"v_add_u32 v{V_GA}, s{S_GD}, v{V_GA}"]
    return o

def mfmas(s, variant, fg):
    xf = vr(XF + 4 * s, 4); one = vr(ONE, 4)
    m = []
    for i, T in enumerate(TILES[fg]):
        wf = vr(WF + 12 * s + 4 * i, 4); a = vr(ACC + 16 * i, 16)
        m.append(f"v_mfma_f32_32x32x16_bf16 {a}, {xf}, {wf}, {a}" if variant == "v" else f"v_mfma_f32_32x32x16_bf16 {a}, {wf}, {xf}, {a}")
    if variant == "q0" and fg == 0:
        m.append(f"v_mfma_f32_32x32x16_bf16 {vr(EX0,16)}, {vr(GF+4*s,4)}, {xf}, {vr(EX0,16)}")
    if variant == "h" and fg == 0:
        m.append(f"v_mfma_f32_32x32x16_bf16 {vr(EX0,16)}, {one}, {xf}, {vr(EX0,16)}")
        if Opt.h_gram: m.append(f"v_mfma_f32_32x32x16_bf16 {vr(EX1,16)}, {xf}, {xf}, {vr(EX1,16)}")
    return m

def main_loop(e, variant, fg):
    lab = f"L1_loop_{variant}{fg}"
    nrd = len(reads(0, variant, fg))
    nw = NWP[fg]
    e(f"s_mov_b32 s{S_ST}, 0")
    if fg == 0: e("s_waitcnt vmcnt(13)")
    e("s_barrier")
    stamp(e, 2, 'any')
    e.extend(reads(0, variant, fg)); e.extend(reads(1, variant, fg))
    e(".p2align 6")
    e.label(lab)
    dx = dma_x(fg); dw = dma_w(fg)
    place = {(0, 0): dw[0], (0, 1): dw[1] + dw[2], (1, 0): dw[3], (1, 1): dw[4], (2, 0): dx[0], (2, 1): dx[1], (3, 0): dx[2], (3, 1): dx[3]}
    touch = Opt.late_touch and Opt.touch_in_loop and fg == 1 and variant != "h"
    for s in range(4):
        pre = []
        if s == 2:
            if fg == 0:
                pre = ["s_waitcnt vmcnt(9)", "s_barrier",
                       f"s_cmp_lt_u32 s{S_ST}, 6", f"s_cselect_b32 s{S_XO}, s{S_XO}, 0x40000000", f"s_cselect_b32 s{S_WO}, s{S_WO}, 0x40000000"]
            else:
                pre = ["s_barrier"]
                if Opt.thin_touch and variant != "h":
                    f0 = Opt.thin_from; nl = -(-54 // (9 - f0))
                    t = [f"s_mov_b64 exec, {(1 << nl) - 1}", "buffer_load_dword v31, v30, s[44:47], s62 offen", "s_mov_b64 exec, -1", f"s_add_u32 s62, s62, {128*nl}"]
                    if f0: t = [f"s_cmp_ge_u32 s{S_ST}, {f0}", f"s_cbranch_scc0 {lab}_tt"] + t + [f"{lab}_tt:"]
                    pre += t
                if touch:
                    for k, stg in enumerate(Opt.touch_stages[:len(late_issue())]):
                        pre += [f"s_cmp_eq_u32 s{S_ST}, {stg}", f"s_cbranch_scc0 {lab}_t{k}", late_issue()[k], f"{lab}_t{k}:"]
        rd = reads((s + 2) % 4, variant, fg)
        e(f"s_waitcnt lgkmcnt({nrd})")
        mf = mfmas(s, variant, fg)
        n = len(rd); nm = len(mf)
        per = (n + nm - 1) // nm
        extra = []
        if variant == "h" and fg == 0 and not Opt.h_gram:
            for j in range(4):
                extra += [f"v_lshlrev_b32 v{20+(j%2)}, 16, v{XF+4*s+j}", f"v_and_b32 v{26+(j%2)}, 0xffff0000, v{XF+4*s+j}",
                          f"v_fmac_f32 v{V_ST+2}, v{20+(j%2)}, v{20+(j%2)}", f"v_fmac_f32 v{V_ST+3}, v{26+(j%2)}, v{26+(j%2)}"]
        for T in range(nm):
            e(mf[T])
            if T == 0: e.extend(pre)
            e.extend(rd[T * per:(T + 1) * per])
            e.extend(extra[T * len(extra) // nm:(T + 1) * len(extra) // nm])
            e.extend(place.get((s, T), []))
        if variant == "h":
            e(f"s_cmp_eq_u32 s{S_TT}, {s}")
            e(f"s_cbranch_scc0 {lab}_cs{s}")
            for j in range(4):
                for i in range(len(TILES[fg])):
                    e(f"v_lshlrev_b32 v{22+i}, 16, v{WF+12*s+4*i+j}")
                for i in range(len(TILES[fg])):
                    e(f"v_add_f32 v{V_CS+i}, v{V_CS+i}, v{22+i}")
                for i in range(len(TILES[fg])):
                    e(f"v_and_b32 v{22+i}, 0xffff0000, v{WF+12*s+4*i+j}")
                for i in range(len(TILES[fg])):
                    e(f"v_add_f32 v{V_CS+i}, v{V_CS+i}, v{22+i}")
            e.label(f"{lab}_cs{s}")
        if s == 1:
            e(f"s_add_u32 s{S_T2}, s{S_ST}, 1")
            e(f"s_and_b32 s{S_DL}, s{S_T2}, 3")
            e(f"s_cmp_eq_u32 s{S_DL}, 0")
            e(f"s_cselect_b32 s{S_DL}, s68, s67")
            e.extend(advance_addrs(variant, fg))
    e(f"s_add_u32 s{S_ST}, s{S_ST}, 1")
    e(f"s_cmp_lt_u32 s{S_ST}, 9")
    e(f"s_cbranch_scc1 {lab}")
    stamp(e, 5, 'any')
    e("s_waitcnt lgkmcnt(0)")
    e("s_nop 7")

def setup_x(e, fg):
    for i in range(4):
        e("v_lshrrev_b32 v21, 3, v0"); e(f"v_add_u32 v21, {8*i}, v21")
        e("v_lshrrev_b32 v22, 1, v21"); e("v_and_b32 v22, 7, v22"); e("v_and_b32 v23, 7, v0"); e("v_xor_b32 v22, v22, v23")
        e("v_mul_u32_u24 v21, 1152, v21"); e("v_lshlrev_b32 v22, 4, v22"); e("v_add_u32 v21, v21, v22")
        if i: e(f"v_subrev_u32 v{V_XO+i}, {1024*i}, v21")
        else: e(f"v_mov_b32 v{V_XO}, v21")
    e(f"s_lshl_b32 s{S_XM}, s{S_TT}, 12")
def setup_w(e, fg):
    e(f"s_mul_i32 s{S_WM}, s{S_TT}, 5")
    e(f"s_lshl_b32 s69, s{S_WM}, 6")
    for i in range(5):
        e(f"v_add_u32 v21, s69, v0")
        if i: e(f"v_add_u32 v21, {64*i}, v21")
        e("v_mul_u32_u24 v22, 3277, v21"); e("v_lshrrev_b32 v22, 16, v22")
        e("v_mul_u32_u24 v23, 20, v22"); e("v_sub_u32 v23, v21, v23")
        e(f"v_mul_lo_u32 v22, v22, s{S_RS}")
        e("v_cmp_lt_u32 vcc, 17, v23"); e("v_subrev_u32 v24, 2, v23"); e("v_mov_b32 v25, 0x40000000"); e("v_cndmask_b32 v24, v23, v24, vcc")
        e("v_lshlrev_b32 v24, 4, v24"); e("v_add_u32 v22, v22, v24")
        e("v_and_b32 v24, 30, v23"); e("v_cmp_eq_u32 vcc, 16, v24")
        if i % 4: e(f"v_subrev_u32 v22, {1024*(i%4)}, v22")
        else: e("s_nop 0")
        e("s_nop 0")
        e(f"v_cndmask_b32 v{V_WO+i}, v22, v25, vcc")
    e(f"s_lshl_b32 s{S_WM}, s{S_WM}, 10"); e(f"s_add_u32 s{S_WM}, s{S_WM}, 16384")
def setup_xread(e):
    e("v_and_b32 v21, 31, v0"); e("v_lshrrev_b32 v22, 5, v0")
    e("v_lshrrev_b32 v23, 1, v21"); e("v_and_b32 v23, 7, v23"); e("v_xor_b32 v23, v23, v22"); e("v_lshlrev_b32 v23, 4, v23")
    e("v_lshlrev_b32 v24, 7, v21"); e("v_add_u32 v23, v23, v24")
    e(f"s_lshl_b32 s69, s{S_TT}, 12"); e(f"v_add_u32 v{V_XA}, s69, v23")
    for s in range(1, 4): e(f"v_xor_b32 v{V_XA+s}, {32*s}, v{V_XA}")

def lane_parts(e):
    e("v_lshrrev_b32 v21, 5, v0"); e("v_bfe_u32 v22, v0, 4, 1"); e("v_bfe_u32 v23, v0, 2, 2"); e("v_and_b32 v24, 3, v0")
    e("v_and_b32 v25, 1, v0"); e("v_lshlrev_b32 v25, 1, v25"); e("v_bfe_u32 v26, v0, 1, 1"); e("v_or_b32 v25, v25, v26")
    e("v_lshlrev_b32 v26, 3, v21"); e("v_add_u32 v26, v26, v23"); e("v_mul_u32_u24 v26, 320, v26"); e("v_add_u32 v26, 16384, v26")
def waddr(e, variant, fg):
    lane_parts(e)
    dense = variant == "h"
    q = 24 if variant == "v" else 25
    e(f"v_lshlrev_b32 v27, 3, v{q}"); e("v_add_u32 v27, v27, v26")
    e("v_lshlrev_b32 v28, 5, v22"); e("v_add_u32 v28, v27, v28")
    for i, T in enumerate(TILES[fg]):
        d = V_WA + i
        if dense:
            if T < 4: e(f"v_add_u32 v{d}, {64*T}, v28")
            else: e(f"v_add_u32 v{d}, 288, v27")
        else:
            if T == 0: e("v_mul_u32_u24 v29, 288, v22"); e(f"v_add_u32 v{d}, v27, v29")
            elif T < 4: e(f"v_add_u32 v{d}, {40+72*(T-1)}, v28")
            else: e("v_mul_u32_u24 v29, 72, v24"); e("v_add_u32 v29, v29, v26"); e(f"v_add_u32 v{d}, 32, v29")

def zero_acc(e, variant, fg):
    for i in range(4): e(f"v_mov_b32 v{XF+i}, 0")
    if variant == "h":
        for i in range(4): e(f"v_mov_b32 v{ONE+i}, 0x3f803f80")
        for i in range(4): e(f"v_mov_b32 v{V_ST+i}, 0")
        for i in range(3): e(f"v_mov_b32 v{V_CS+i}, 0")
    e("s_nop 1")
    z = vr(XF, 4)
    for i in range(len(TILES[fg])): e(f"v_mfma_f32_32x32x16_bf16 {vr(ACC+16*i,16)}, {z}, {z}, 0")
    if fg == 0 and variant in ("q0", "h"): e(f"v_mfma_f32_32x32x16_bf16 {vr(EX0,16)}, {z}, {z}, 0")
    if fg == 0 and variant == "h" and Opt.h_gram: e(f"v_mfma_f32_32x32x16_bf16 {vr(EX1,16)}, {z}, {z}, 0")

def prologue_dma(e, fg):
    if fg == 0:
        e(f"s_mov_b32 s{S_SLX}, 0"); e(f"s_mov_b32 s{S_SLW}, 0")
        setup_x(e, fg)
        for grp in dma_x(fg): e.extend(grp)
        setup_w(e, fg)
        for grp in dma_w(fg): e.extend(grp)
        for grp in dma_x(fg): e.extend(grp)
        for grp in dma_w(fg): e.extend(grp)
        for grp in dma_x(fg): e.extend(grp)
    stamp(e, 1, 'any')
    setup_xread(e)

def late_setup(e):
    e("s_mov_b64 exec, -1")
    e(f"s_load_dwordx2 s[52:53], s[0:1], {KA_W3}"); e(f"s_load_dwordx2 s[54:55], s[0:1], {KA_W4}")
    e(f"s_load_dwordx2 s[40:41], s[0:1], {KA_W2}"); e(f"s_load_dwordx2 s[58:59], s[0:1], {KA_WO}")
    e(f"s_lshl_b32 s44, s{S_TT}, 6"); e("v_add_u32 v30, s44, v0"); e("v_lshlrev_b32 v30, 7, v30")
    e(f"s_lshl_b32 s69, s{S_CT}, 4"); e(f"s_add_u32 s69, s69, s{S_RB}")
    e("s_waitcnt lgkmcnt(0)")
    for rep, (srd, so) in enumerate(((44, 62), (48, 63))):
        if rep == 0 and True:
            e("s_add_u32 s70x, s69, 0".replace("s70x", f"s{S_T2}"))
        u = f"s{S_GD}"
        if rep == 0: e(f"s_add_u32 {u}, s69, {324 if Opt.late_sel == 'w2' else 192}")
        else: e(f"s_mov_b32 {u}, s69")
        e(f"s_mov_b32 s{srd}, s52"); e(f"s_mov_b32 s{srd+1}, s53"); e(f"s_mov_b32 s{srd+2}, {576*4608*2}"); e(f"s_mov_b32 s{so}, {u}")
        for lo, p, size in ((162, 54, 576*4608*2), (324, 40, 576*576*2), (345, 58, 576*576*2)):
            e(f"s_cmp_ge_u32 {u}, {lo}")
            e(f"s_cselect_b32 s{srd}, s{p}, s{srd}"); e(f"s_cselect_b32 s{srd+1}, s{p+1}, s{srd+1}")
            if size != 576*4608*2: e(f"s_cselect_b32 s{srd+2}, {size}, s{srd+2}")
            e(f"s_sub_u32 s{S_T2}, {u}, {lo}"); e(f"s_cmp_ge_u32 {u}, {lo}"); e(f"s_cselect_b32 s{so}, s{S_T2}, s{so}")
        e(f"s_and_b32 s{srd+1}, s{srd+1}, 0xffff"); e(f"s_mov_b32 s{srd+3}, 0x20000")
        e(f"s_lshl_b32 s{so}, s{so}, 15")
def late_issue():
    l = ["buffer_load_dword v31, v30, s[44:47], s62 offen", "buffer_load_dword v31, v30, s[48:51], s63 offen"]
    return l[:1] if Opt.late_sel == 'w2' else l

def epi_qk(e, fg, gate):
    e(f"s_lshl_b32 s44, s{S_RB}, 2"); e(f"s_add_u32 s44, s44, s{S_TT}")
    e(f"s_lshl_b32 s45, s{S_CQ}, 3")
    e("s_lshl_b32 s46, s45, 16"); e("s_lshl_b32 s47, s44, 10"); e("s_add_u32 s46, s46, s47"); e("s_add_u32 s46, s46, s42")
    P = 128
    for i, T in enumerate(TILES[fg]):
        if T == 4: continue
        for j in range(16): e(f"v_mul_f32 v{ACC+16*i+j}, s41, v{ACC+16*i+j}")
        for hh in range(2):
            p = P + 8 * (i % 2) + 4 * hh
            for j in range(4): e(f"v_cvt_pk_bf16_f32 v{p+j}, v{ACC+16*i+8*hh+2*j}, v{ACC+16*i+8*hh+2*j+1}")
            e(f"s_add_u32 s47, s46, {HEADS[T][hh]*65536}")
            e(f"buffer_store_dwordx4 {vr(p,4)}, v{V_L16}, s[{S_WS}:{S_WS+3}], s47 offen")
    if fg == 1:
        a = ACC + 32
        for j in range(8): e(f"v_mul_f32 v{a+j}, s41, v{a+j}")
        for j in range(4): e(f"v_cvt_pk_bf16_f32 v{144+j}, v{a+2*j}, v{a+2*j+1}")
        e("v_and_b32 v21, 31, v0"); e("v_lshlrev_b32 v21, 2, v21"); e("v_lshrrev_b32 v29, 5, v0"); e("v_lshlrev_b32 v29, 14, v29"); e("v_add_u32 v21, v21, v29")
        e("s_lshl_b32 s46, s45, 13"); e("s_lshl_b32 s47, s44, 7"); e("s_add_u32 s46, s46, s47"); e("s_add_u32 s46, s46, s43")
        for j, hoff in enumerate([0, 1, 4, 5]):
            e(f"s_add_u32 s47, s46, {hoff*8192}")
            e(f"buffer_store_dword v{144+j}, v21, s[{S_WS}:{S_WS+3}], s47 offen")
    if gate:
        e(f"v_mul_f32 v23, {hexf(-math.log2(math.e))}, v{EX0}"); e("v_exp_f32 v23, v23"); e("s_nop 0"); e("v_add_f32 v23, 1.0, v23"); e("v_rcp_f32 v23, v23")
        e("v_and_b32 v21, 31, v0"); e("v_lshlrev_b32 v21, 2, v21")
        e("s_lshl_b32 s47, s44, 7"); e(f"s_add_u32 s47, s47, {LY.G}")
        e("s_mov_b64 exec, 0xffffffff")
        e(f"buffer_store_dword v23, v21, s[{S_WS}:{S_WS+3}], s47 offen")
    if Opt.late_touch and not Opt.touch_in_loop and fg == 1:
        late_setup(e); e.extend(late_issue())
    if Opt.repack_l1: e("s_branch L1_tail")
    else: fin(e)

def epi_v(e, fg):
    e(f"s_lshl_b32 s44, s{S_RB}, 2"); e(f"s_add_u32 s44, s44, s{S_TT}")
    e(f"s_lshl_b32 s45, s{S_CQ}, 3")
    e(f"s_mul_i32 s46, s45, {LY.VHEAD}"); e("s_mul_i32 s47, s44, 1216"); e("s_add_u32 s46, s46, s47"); e(f"s_add_u32 s46, s46, {LY.VF}")
    e("v_lshrrev_b32 v21, 5, v0"); e("v_mul_u32_u24 v21, 304, v21")
    e("v_and_b32 v22, 15, v0"); e("v_lshlrev_b32 v22, 4, v22"); e("v_add_u32 v22, v22, v21")
    e("v_bfe_u32 v23, v0, 4, 1")
    e(f"s_mov_b32 s47, {LY.VHEAD}")
    e("v_mul_lo_u32 v24, v23, s47")
    e("v_add_u32 v25, v22, v24")
    if fg == 0: e("v_mul_u32_u24 v24, 7, v24"); e("v_add_u32 v26, v22, v24")
    P = 128
    for i, T in enumerate(TILES[fg]):
        if T == 4: continue
        ad = 26 if T == 0 else 25
        hb = 0 if T == 0 else HEADS[T][0]
        e(f"s_add_u32 s47, s46, {hb*LY.VHEAD}")
        for hh in range(2):
            p = P + 8 * (i % 2) + 4 * hh
            for j in range(4): e(f"v_cvt_pk_bf16_f32 v{p+j}, v{ACC+16*i+8*hh+2*j}, v{ACC+16*i+8*hh+2*j+1}")
            e(f"buffer_store_dwordx4 {vr(p,4)}, v{ad}, s[{S_WS}:{S_WS+3}], s47 offen offset:{608*hh}")
    if fg == 1:
        a = ACC + 32
        e("v_and_b32 v22, 31, v0")
        e("v_lshrrev_b32 v23, 2, v22"); e("v_lshlrev_b32 v23, 1, v23"); e("v_bfe_u32 v24, v22, 1, 1"); e("v_add_u32 v23, v23, v24")
        e("v_and_b32 v24, 1, v22"); e("v_add_u32 v24, 16, v24")
        e("v_cmp_lt_u32 vcc, 15, v22"); e("v_subrev_u32 v25, 16, v22"); e("v_mov_b32 v27, 18")
        e("v_cndmask_b32 v23, v23, v25, vcc"); e("v_cndmask_b32 v24, v24, v27, vcc")
        e(f"s_mov_b32 s47, {LY.VHEAD}"); e("v_mul_lo_u32 v23, v23, s47"); e("v_lshlrev_b32 v24, 4, v24"); e("v_add3_u32 v23, v23, v24, v21")
        e("v_mov_b32 v27, 0x3f803f80")
        for hh in range(2):
            for j in range(4):
                e(f"v_cvt_pk_bf16_f32 v{144+4*hh+j}, v{a+8*hh+2*j}, v{a+8*hh+2*j+1}")
                e(f"v_cndmask_b32 v{144+4*hh+j}, v{144+4*hh+j}, v27, vcc")
        e("v_cmp_gt_u32 vcc, 24, v22"); e("s_nop 1")
        e("s_and_saveexec_b64 s[48:49], vcc")
        for hh in range(2):
            e(f"buffer_store_dwordx4 {vr(144+4*hh,4)}, v23, s[{S_WS}:{S_WS+3}], s46 offen offset:{608*hh}")
    if Opt.late_touch and not Opt.touch_in_loop and fg == 1:
        late_setup(e); e.extend(late_issue())
    if Opt.repack_l1: e("s_branch L1_tail")
    else: fin(e)

def epi_h(e, fg):
    ST = 22
    nT = len(TILES[fg]); T0 = TILES[fg][0]
    for i in range(nT): e(f"v_mov_b32 v{128+i}, v{V_CS+i}")
    e("v_and_b32 v21, 31, v0"); e("v_lshlrev_b32 v21, 2, v21")
    for i in range(nT): e(f"v_permlane32_swap_b32 v{128+i}, v{V_CS+i}")
    for i in range(nT): e(f"v_add_f32 v{V_CS+i}, v{128+i}, v{V_CS+i}")
    e(f"s_mul_i32 s44, s{S_TT}, 640"); e(f"s_add_u32 s44, s44, {XCH_OFF + 128*T0}"); e("v_add_u32 v29, s44, v21")
    for i in range(nT): e(f"ds_write_b32 v29, v{V_CS+i} offset:{128*i}")
    e("v_lshlrev_b32 v27, 1, v21"); e(f"s_lshl_b32 s44, s{S_TT}, 8"); e(f"s_add_u32 s44, s44, {XCH_OFF+2560}"); e("v_add_u32 v27, s44, v27")
    if fg == 0:
        if Opt.h_gram:
            for b, (bit, sp) in enumerate(((0, 44), (1, 46), (3, 48), (4, 52))):
                e(f"v_bfe_u32 v28, v0, {bit}, 1"); e(f"v_cmp_eq_u32 s[{sp}:{sp+1}], 1, v28")
            e("v_bfe_u32 v28, v0, 2, 1"); e("v_lshrrev_b32 v26, 5, v0"); e("v_cmp_eq_u32 vcc, v26, v28")
            e("s_nop 0")
            for i in range(8): e(f"v_cndmask_b32 v{EX1+i}, v{EX1+2*i}, v{EX1+2*i+1}, s[44:45]")
            for i in range(4): e(f"v_cndmask_b32 v{EX1+i}, v{EX1+2*i}, v{EX1+2*i+1}, s[46:47]")
            for i in range(2): e(f"v_cndmask_b32 v{EX1+i}, v{EX1+2*i}, v{EX1+2*i+1}, s[48:49]")
            e(f"v_cndmask_b32 v{EX1}, v{EX1}, v{EX1+1}, s[52:53]")
            e(f"v_cndmask_b32 v{ST+1}, 0, v{EX1}, vcc")
        else:
            e(f"v_add_f32 v{ST+1}, v{V_ST+2}, v{V_ST+3}")
        e(f"v_mov_b32 v25, v{ST+1}"); e(f"v_mul_f32 v{ST}, {hexf(1/576)}, v{EX0}"); e("s_nop 0")
        e(f"v_permlane32_swap_b32 v25, v{ST+1}")
        e(f"v_add_f32 v{ST+1}, v25, v{ST+1}")
        e(f"v_mul_f32 v{ST+1}, {hexf(1/576)}, v{ST+1}")
        e(f"v_fma_f32 v{ST+1}, -v{ST}, v{ST}, v{ST+1}"); e(f"v_max_f32 v{ST+1}, 0, v{ST+1}"); e(f"v_add_f32 v{ST+1}, {hexf(1e-5)}, v{ST+1}")
        e(f"ds_write_b64 v27, {vr(ST,2)}")
    e("s_waitcnt lgkmcnt(0)"); e("s_barrier")
    if fg == 1: e(f"ds_read_b64 {vr(ST,2)}, v27")
    e(f"v_add_u32 v29, {XCH_OFF + 128*T0}, v21")
    for i in range(nT):
        for wv in range(4): e(f"ds_read_b32 v{144+4*i+wv}, v29 offset:{640*wv+128*i}")
    e("s_waitcnt lgkmcnt(0)")
    for i in range(nT):
        e(f"v_add_f32 v{144+4*i}, v{144+4*i}, v{145+4*i}"); e(f"v_add_f32 v{146+4*i}, v{146+4*i}, v{147+4*i}"); e(f"v_add_f32 v{144+4*i}, v{144+4*i}, v{146+4*i}")
    e(f"s_mul_i32 s44, s{S_WV}, 384"); e(f"s_add_u32 s44, s44, {XCH_OFF+3584}"); e("v_add_u32 v29, s44, v21")
    for i in range(nT): e(f"ds_write_b32 v29, v{144+4*i} offset:{128*i}")
    e("v_lshrrev_b32 v21, 5, v0"); e("v_lshlrev_b32 v21, 4, v21"); e("v_add_u32 v29, s44, v21")
    e("s_waitcnt lgkmcnt(0)")
    SG, RR, AA, BB, MM, SS = 128, 129, 130, 132, 134, 136
    e(f"v_sqrt_f32 v{SG}, v{ST+1}"); e("s_nop 0"); e(f"v_rcp_f32 v{RR}, v{SG}"); e("s_nop 0")
    e(f"v_mul_f32 v{BB}, {hexf(GELU_C0)}, v{RR}"); e(f"v_mul_f32 v{AA}, v{RR}, v{RR}"); e(f"v_mul_f32 v{AA}, v{AA}, v{RR}"); e(f"v_mul_f32 v{AA}, {hexf(GELU_C1)}, v{AA}")
    e(f"v_mov_b32 v{AA+1}, v{AA}"); e(f"v_mov_b32 v{BB+1}, v{BB}"); e(f"v_mov_b32 v{SS}, v{SG}"); e(f"v_mov_b32 v{SS+1}, v{SG}")
    e(f"v_sub_f32 v{MM}, 0, v{ST}"); e(f"v_mov_b32 v{MM+1}, v{MM}")
    e(f"s_lshl_b32 s45, s{S_RB}, 7"); e(f"s_lshl_b32 s46, s{S_TT}, 5"); e("s_add_u32 s45, s45, s46")
    e(f"s_lshr_b32 s46, s{S_CQ}, 1"); e("s_add_u32 s46, s46, 1"); e("s_sub_u32 s47, 0, s46"); e(f"s_bitcmp1_b32 s{S_CQ}, 0"); e("s_cselect_b32 s46, s47, s46")
    e("s_add_u32 s45, s45, s46")
    e("v_and_b32 v21, 31, v0"); e("v_add_u32 v21, s45, v21")
    e("v_cmp_gt_u32 vcc, 2048, v21")
    e("v_and_b32 v21, 2047, v21")
    e("v_lshrrev_b32 v30, 5, v21"); e("s_mov_b32 s47, 36864"); e("v_mul_lo_u32 v30, v30, s47")
    e("v_and_b32 v21, 31, v21"); e("v_lshlrev_b32 v21, 4, v21"); e("v_add_u32 v30, v30, v21")
    e("v_lshrrev_b32 v21, 5, v0"); e("v_lshlrev_b32 v21, 9, v21"); e("v_add_u32 v30, v30, v21")
    e("s_mov_b64 s[50:51], vcc")
    u0 = 2 * TILES[fg][0]
    e(f"s_mul_i32 s47, s{S_CQ}, 9216"); e(f"s_add_u32 s47, s47, {LY.HS + u0*1024}")
    CS = 144; TT = 160
    def pk(op, d, a, b, c=None):
        s = f"v_pk_{op}_f32 {vr(d,2)}, {vr(a,2)}, {vr(b,2)}"
        if c is not None: s += f", {vr(c,2)}"
        return s
    u = 0
    for i, T in enumerate(TILES[fg]):
        nj = 4 if T < 4 else 2
        for j in range(nj): e(f"ds_read_b128 {vr(CS+4*j,4)}, v29 offset:{128*i+32*j}")
        e("s_waitcnt lgkmcnt(0)")
        for half in range(nj // 2):
            a = ACC + 16 * i + 8 * half; cs = CS + 8 * half
            for k in range(0, 8, 2): e(pk("fma", a + k, MM, cs + k, a + k))
            for k in range(0, 8, 2): e(pk("mul", TT + k, a + k, a + k))
            for k in range(0, 8, 2): e(pk("fma", TT + k, TT + k, AA, BB))
            for k in range(0, 8, 2): e(pk("mul", TT + k, a + k, TT + k))
            for k in range(8): e(f"v_exp_f32 v{TT+k}, v{TT+k}")
            for k in range(0, 8, 2): e(pk("fma", TT + k, TT + k, SS, SS))
            for k in range(8): e(f"v_rcp_f32 v{TT+k}, v{TT+k}")
            for k in range(0, 8, 2): e(pk("mul", a + k, a + k, TT + k))
            p = 168 + 4 * (u % 2)
            for j in range(4): e(f"v_cvt_pk_bf16_f32 v{p+j}, v{a+2*j}, v{a+2*j+1}")
            for j in range(4): e(f"v_cndmask_b32 v{p+j}, 0, v{p+j}, s[50:51]")
            e(f"buffer_store_dwordx4 {vr(p,4)}, v30, s[{S_WS}:{S_WS+3}], s47 offen offset:{(u%4)*1024}")
            if u % 4 == 3: e("s_add_u32 s47, s47, 4096")
            u += 1
    fin(e)

def role(e, variant, fg):
    if variant == "q0" and fg == 0:
        e(f"s_mov_b32 m0, {GW_OFF}"); e("s_nop 0")
        e(f"buffer_load_dwordx4 v{V_L16}, s[{S_GW}:{S_GW+3}], 0 offen lds")
        e(f"buffer_load_dwordx4 v{V_L16}, s[{S_GW}:{S_GW+3}], 0 offen offset:1024 lds")
    prologue_dma(e, fg)
    waddr(e, variant, fg)
    if variant == "q0" and fg == 0:
        e("v_lshrrev_b32 v21, 5, v0"); e("v_lshlrev_b32 v21, 4, v21"); e(f"v_add_u32 v{V_GA}, {GW_OFF}, v21")
        e(f"s_lshl_b32 s69, s{S_KC}, 7"); e(f"v_add_u32 v{V_GA}, s69, v{V_GA}")
    if Opt.late_touch and Opt.touch_in_loop and fg == 1 and variant != "h": late_setup(e)
    if Opt.thin_touch and fg == 1 and variant != "h":
        e(f"s_load_dwordx2 s[52:53], s[0:1], {KA_W3}")
        e(f"s_lshl_b32 s69, s{S_CT}, 4"); e(f"s_add_u32 s69, s69, s{S_RB}"); e("s_lshl_b32 s69, s69, 2"); e(f"s_add_u32 s69, s69, s{S_TT}")
        e(f"s_mul_i32 s62, s69, {54*128}")
        e("v_lshlrev_b32 v30, 7, v0")
        e("s_waitcnt lgkmcnt(0)")
        make_srd(e, 44, 52, 576 * 4608 * 2)
    zero_acc(e, variant, fg)
    if variant in ("q0", "qk"):
        e("s_cmp_eq_u32 s3, 0")
        e(f"s_cselect_b32 s41, {hexf(QSCALE)}, 1.0"); e(f"s_mov_b32 s42, {LY.KF0}"); e(f"s_cselect_b32 s42, {LY.QF0}, s42"); e(f"s_mov_b32 s43, {LY.KX}"); e(f"s_cselect_b32 s43, {LY.QX}, s43")
    main_loop(e, variant, fg)
    if variant in ("q0", "qk"): epi_qk(e, fg, variant == "q0" and fg == 0)
    elif variant == "v": epi_v(e, fg)
    else: epi_h(e, fg)

def gen():
    e = Emit()
    kernel_head(e, NAME)
    Diag.kid = 0
    e("s_cmp_ge_u32 s2, 256")
    e("s_cbranch_scc1 L1_exit")
    e(f"s_load_dwordx2 s[4:5], s[0:1], {KA_WS}")
    e(f"s_load_dwordx4 s[52:55], s[0:1], {KA_XA}")
    e(f"s_load_dwordx2 s[58:59], s[0:1], {KA_W1}")
    e(f"s_load_dwordx2 s[60:61], s[0:1], {KA_GW}")
    e("s_and_b32 s6, s2, 7"); e("s_lshr_b32 s7, s2, 3")
    e("v_lshrrev_b32 v1, 6, v0"); e("v_and_b32 v0, 63, v0")
    e(f"v_readfirstlane_b32 s{S_WV}, v1")
    e(f"s_and_b32 s{S_RB}, s6, 3"); e(f"s_lshl_b32 s{S_RB}, s{S_RB}, 2"); e("s_and_b32 s3, s7, 3"); e(f"s_add_u32 s{S_RB}, s{S_RB}, s3")
    e(f"s_lshr_b32 s{S_CQ}, s6, 2"); e(f"s_lshl_b32 s{S_CQ}, s{S_CQ}, 1"); e("s_bfe_u32 s3, s7, 0x10002"); e(f"s_add_u32 s{S_CQ}, s{S_CQ}, s3")
    e("s_lshr_b32 s3, s7, 3"); e(f"s_lshl_b32 s{S_CT}, s3, 2"); e(f"s_add_u32 s{S_CT}, s{S_CT}, s{S_CQ}")
    e(f"v_lshlrev_b32 v{V_L16}, 4, v0")
    e(f"s_and_b32 s{S_TT}, s{S_WV}, 3")
    e("s_waitcnt lgkmcnt(0)")
    make_srd(e, S_WS, 4, LY.WS_END)
    stamp(e, 0, 'any')
    dbg_start(e)
    if Opt.fuse_l2 and Opt.cnt_ws:
        e("s_cmp_eq_u32 s2, 0"); e("s_cbranch_scc0 L1_nocnt")
        e(f"s_cmp_eq_u32 s{S_WV}, 7"); e("s_cbranch_scc0 L1_nocnt")
        e("v_lshlrev_b32 v2, 7, v0"); e("v_mov_b32 v3, 0"); e(f"s_mov_b32 s69, {LY.CNT}")
        e(f"buffer_store_dword v3, v2, s[{S_WS}:{S_WS+3}], s69 offen")
        e.label("L1_nocnt")
    e("s_cmp_eq_u32 s3, 3")
    e("s_cselect_b32 s64, s58, s54"); e("s_cselect_b32 s65, s59, s55")
    e(f"s_movk_i32 s{S_RS}, 3456"); e(f"s_cselect_b32 s{S_RS}, 1152, s{S_RS}")
    e(f"s_mov_b32 s67, {SLOT}"); e(f"s_mov_b32 s68, {(-3*SLOT) & 0xffffffff}")
    e(f"s_cselect_b32 s66, s{S_CQ}, s{S_CT}")
    make_srd(e, S_X, 52, 2048 * 576 * 2)
    e(f"s_mov_b32 s{S_W}, s64"); e(f"s_and_b32 s{S_W+1}, s65, 0xffff"); e(f"s_mul_i32 s{S_W+2}, s{S_RS}, 576"); e(f"s_mov_b32 s{S_W+3}, 0x20000")
    make_srd(e, S_GW, 60, 1152)
    e(f"s_lshl_b32 s{S_XO}, s{S_RB}, 2"); e(f"s_add_u32 s{S_XO}, s{S_XO}, s{S_TT}"); e(f"s_mul_i32 s{S_XO}, s{S_XO}, 36864")
    e(f"s_mul_i32 s{S_WO}, s66, 288")
    e(f"s_lshl_b32 s{S_WSTEP}, s{S_RS}, 6")
    e("s_and_b32 s69, s7, 3"); e("s_lshl_b32 s69, s69, 1"); e(f"s_lshr_b32 s{S_KX}, s7, 2"); e(f"s_add_u32 s{S_KX}, s{S_KX}, s69")
    e(f"s_cmp_ge_u32 s{S_KX}, 9"); e(f"s_cselect_b32 s69, 9, 0"); e(f"s_sub_u32 s{S_KX}, s{S_KX}, s69")
    if not Opt.rotate: e(f"s_mov_b32 s{S_KX}, 0")
    e(f"s_mov_b32 s{S_KW}, s{S_KX}"); e(f"s_mov_b32 s{S_KC}, s{S_KX}")
    e(f"s_lshl_b32 s69, s{S_KX}, 7"); e(f"s_add_u32 s{S_XO}, s{S_XO}, s69")
    e(f"s_mul_i32 s69, s{S_KX}, s{S_WSTEP}"); e(f"s_add_u32 s{S_WO}, s{S_WO}, s69")
    e(f"s_mul_i32 s{S_WBACK}, s{S_WSTEP}, -8"); e(f"s_movk_i32 s{S_C128}, 128")
    if Opt.icache_test == "line":
        for i in range(512): e(f"v_fma_f32 v{40+i%16}, v{40+i%16}, v{40+i%16}, v{40+i%16}")
    elif Opt.icache_test == "loop":
        e("s_mov_b32 s69, 16")
        e.label("L1_ictest")
        for i in range(32): e(f"v_fma_f32 v{40+i%16}, v{40+i%16}, v{40+i%16}, v{40+i%16}")
        e("s_sub_u32 s69, s69, 1"); e("s_cmp_lg_u32 s69, 0"); e("s_cbranch_scc1 L1_ictest")
    e(f"s_cmp_ge_u32 s{S_WV}, 4"); e("s_cbranch_scc1 L1_fg1")
    code_prefetch(e, NAME, "L1_exit", 3, vaddr=28, vtmp=26, vdst=31, sp=62)
    e("s_cmp_eq_u32 s3, 2"); e("s_cbranch_scc1 L1_v0")
    e("s_cmp_eq_u32 s3, 3"); e("s_cbranch_scc1 L1_h0")
    e(f"s_cmp_eq_u32 s{S_CT}, 0"); e("s_cbranch_scc0 L1_qk0")
    role(e, "q0", 0)
    e.label("L1_qk0"); role(e, "qk", 0)
    e.label("L1_v0"); role(e, "v", 0)
    e.label("L1_h0"); role(e, "h", 0)
    e.label("L1_fg1")
    if Opt.code_pf and Opt.code_pf_next:
        e("s_cmp_lt_u32 s2, 8"); e("s_cbranch_scc0 L1_nopf"); e(f"s_cmp_eq_u32 s{S_WV}, 5"); e("s_cbranch_scc0 L1_nopf")
        code_prefetch(e, "l3_kernel", "L3_exit", 5, vaddr=28, vtmp=26, vdst=31, sp=62, forward=True)
        e.label("L1_nopf")
    e("s_cmp_eq_u32 s3, 2"); e("s_cbranch_scc1 L1_v1")
    e("s_cmp_eq_u32 s3, 3"); e("s_cbranch_scc1 L1_h1")
    role(e, "qk", 1)
    e.label("L1_v1"); role(e, "v", 1)
    e.label("L1_h1"); role(e, "h", 1)
    if Opt.repack_l1: gen_repack.gen_tail(e)
    e.label("L1_exit")
    e("s_endpgm")
    return e.text()
if __name__ == "__main__":
    t = gen()
    errs = check(t, "l1")
    for x in errs: print(x)
    print("instrs", sum(1 for l in t.split("\n") if l.startswith("    ")), "hazard errs", len(errs))
```

```python
import sys
import layouts as LY
import gen_k
import build, gen_l1b, gen_l1 as gen_l1a, gen_l2, gen_l3, gen_l4, gen_common
from asmlib import check
def kernels(**kw):
    gen_l1 = gen_l1b if gen_common.Opt.l1_8wave else gen_l1a
    blk = 512 if gen_common.Opt.l1_8wave else 256
    acc = gen_l1.NVGPR if gen_common.Opt.l1_8wave else gen_l1a.NACC
    fused = gen_common.Opt.fuse_l2
    if gen_common.Opt.single:
        gen_common.Opt.late_touch = False
        ks = [(gen_k.NAME, gen_k.gen(**kw), 256, 256, gen_k.LDS_BYTES, 512, 256)]
        return finish(ks)
    ks = [(gen_l1.NAME, gen_l1.gen(), 256, blk, gen_l1.LDS_BYTES, gen_l1.NVGPR, acc)]
    if not fused: ks.append((gen_l2.NAME, gen_l2.gen(), 144 if gen_common.Opt.repack_l1 else 256, 256, gen_l2.LDS_BYTES, 400, 256))
    ks += [(gen_l3.NAME, gen_l3.gen(**kw), 256, 256, 148480 if fused else gen_l3.LDS_BYTES, 512, 256),
           ]
    if not gen_common.Opt.fuse_l4: ks.append((gen_l4.NAME, gen_l4.gen(), 256, 256, gen_l4.LDS_BYTES, 440, 256))
    return finish(ks)
def finish(ks):
    import re
    mod = getattr(gen_common, "STORE_MOD", "")
    if mod:
        ks = [(k[0], re.sub(r"(buffer_store_\w+ [^\n]*offen[^\n]*)", lambda m: m.group(1) if "sc1" in m.group(1) else m.group(1) + " " + mod, k[1]) if k[0] != "l4_kernel" else k[1]) + k[2:] for k in ks]
    for k in ks:
        errs = check(k[1], k[0])
        for x in errs: print(x)
        assert not errs
    return ks
if __name__ == "__main__":
    out = sys.argv[1] if len(sys.argv) > 1 else "gated_mix__softmax_full_mha__mixer_s_mlp__prompt.s"
    s = build.build(kernels(), out)
    print("wrote", out, len(s), "bytes")
```

```python
from asmlib import *
import layouts as LY
import math

KA_XA, KA_WQKV, KA_WO, KA_XB, KA_W1, KA_W2, KA_W3, KA_W4, KA_GW, KA_OUT, KA_DBG, KA_WS = [8*i for i in range(12)]
WS_SIZE = 268435456

def kernel_head(e, name):
    e(f".globl {name}")
    e(".p2align 8")
    e(f".type {name},@function")
    e.label(name)

def kernel_desc(name, vgpr, accum, sgpr=102):
    return f""".amdhsa_kernel {name}
  .amdhsa_next_free_vgpr {vgpr}
  .amdhsa_next_free_sgpr {sgpr}
  .amdhsa_accum_offset {accum}
  .amdhsa_group_segment_fixed_size 0
  .amdhsa_kernarg_size 96
  .amdhsa_user_sgpr_count 2
  .amdhsa_user_sgpr_kernarg_segment_ptr 1
  .amdhsa_system_sgpr_workgroup_id_x 1
  .amdhsa_float_denorm_mode_32 3
.end_amdhsa_kernel
"""

def make_srd(e, dst, ptr, size):
    if dst != ptr: e(f"s_mov_b32 s{dst}, s{ptr}")
    e(f"s_and_b32 s{dst+1}, s{ptr+1}, 0xffff")
    e(f"s_mov_b32 s{dst+2}, {size}")
    e(f"s_mov_b32 s{dst+3}, 0x20000")

GELU_C0 = -2.0 * math.sqrt(2.0 / math.pi) * math.log2(math.e)
GELU_C1 = GELU_C0 * 0.044715

class Diag:
    on = False
    kid = 0
    pre = None
    dbg = False
STAMP_BASE = 0x8000000
def stamp(e, i, grp='main'):
    if Diag.on and (grp == 'any' or grp == (Diag.pre or 'main')):
        e(f"s_memrealtime s[{70+2*i}:{71+2*i}]")
        if i == 2: e("s_memtime s[92:93]")
        if i == 5: e("s_memtime s[94:95]")
        e("s_waitcnt lgkmcnt(0)")
def dbg_start(e):
    if Diag.dbg:
        e("s_memrealtime s[96:97]")
        e(f"s_load_dwordx2 s[98:99], s[0:1], {KA_DBG}")
        e("s_waitcnt lgkmcnt(0)")
def fin(e, wave_sgpr=8):
    if Diag.dbg:
        e("s_waitcnt vmcnt(0)")
        e("s_memrealtime s[100:101]")
        e("s_waitcnt lgkmcnt(0)")
        e(f"s_cmp_eq_u32 s{wave_sgpr}, 0"); e(f"s_cbranch_scc0 Ldbg_skip_{len(e.L)}")
        Diag.lab = f"Ldbg_skip_{len(e.L)-1}"
        e("s_mov_b64 exec, 1")
        fusedl = Opt.fuse_l2
        lidx = Diag.kid - (1 if (fusedl and Diag.kid >= 2) else 0) - (1 if (Opt.fuse_l4 and Diag.kid >= 3) else 0)
        last = 512 * (3 - (1 if fusedl else 0) - (1 if Opt.fuse_l4 else 0))
        e(f"s_sub_u32 s98, s98, {512 * lidx}"); e("s_subb_u32 s99, s99, 0")
        e("s_not_b32 s96, s96")
        e("v_mov_b32 v2, s96"); e("v_mov_b32 v3, s100"); e("v_mov_b32 v4, 0")
        e(f"global_atomic_umax v4, v2, s[98:99] offset:{16 * Diag.kid}")
        e(f"global_atomic_umax v4, v3, s[98:99] offset:{16 * Diag.kid + 4}")
        e(f"global_atomic_umax v4, v2, s[98:99] offset:{last + 16 * Diag.kid}")
        e(f"global_atomic_umax v4, v3, s[98:99] offset:{last + 16 * Diag.kid + 4}")
        e.label(Diag.lab)
    if Diag.on:
        stamp(e, 7, 'any')
        e("s_waitcnt vmcnt(0)")
        e("s_memrealtime s[86:87]")
        e("s_waitcnt lgkmcnt(0)")
        e("s_mov_b64 exec, -1")
        e(f"s_lshl_b32 s88, s2, 3"); e(f"s_add_u32 s88, s88, s{wave_sgpr}"); e("s_lshl_b32 s88, s88, 6")
        e(f"s_add_u32 s88, s88, {STAMP_BASE + Diag.kid * 0x20000}")
        for i in range(8): e(f"v_mov_b32 v{4+i}, s{70+2*i}")
        e("v_mov_b32 v12, s86")
        e("s_sub_u32 s94, s94, s92")
        e("v_mov_b32 v14, s94")
        e("v_mov_b32 v13, s88")
        e("global_store_dwordx4 v13, v[4:7], s[4:5] offset:0")
        e("global_store_dwordx4 v13, v[8:11], s[4:5] offset:16")
        e("global_store_dword v13, v12, s[4:5] offset:32")
        e("global_store_dword v13, v14, s[4:5] offset:36")
    e("s_endpgm")

class Opt:
    code_pf = False
    code_pf_next = True
    l1_8wave = True
    l1_touch = False
    late_touch = True
    late_sel = 'w2'
    touch_in_loop = False
    touch_stages = (2, 5)
    rotate = False
    rotate2 = True
    repack_l1 = False
    fuse_l2 = True
    fuse_l4 = True
    final_sleep = 4
    early_wo = True
    fin_mfma = True
    fin_split = True
    cnt_ws = True
    gemm_local = True
    single = True
    unit3_early = True
    h_unit_late = False
    _poll_v = 6
    fast_setup = False
    last_dtmajor = False
    last_early = 8
    last_budget = 40
    ka_warm = False
    thin_touch = True
    thin_from = 0
    icache_test = None
    rp_fast = True
    w4_touch = False
    h_gram = False
    mlp_rbx = 4
    acquire = False
    poll_sleep = 0
    gelu_split = 2
    l2_only = None
    touch64 = False
def code_prefetch(e, start_label, end_label, nblk, vaddr, vtmp, vdst, sp, first=0, forward=False):
    if not Opt.code_pf: return
    lab = f"{start_label}_pc{len(e.L)}"
    e(f"s_getpc_b64 s[{sp}:{sp+1}]")
    e.label(lab)
    if forward:
        e(f"s_add_u32 s{sp}, s{sp}, {start_label}-{lab}")
        e(f"s_addc_u32 s{sp+1}, s{sp+1}, 0")
    else:
        e(f"s_sub_u32 s{sp}, s{sp}, {lab}-{start_label}")
        e(f"s_subb_u32 s{sp+1}, s{sp+1}, 0")
    e(f"v_lshlrev_b32 v{vaddr}, 7, v0")
    if first: e(f"v_add_u32 v{vaddr}, {first * 0x2000}, v{vaddr}")
    for i in range(nblk):
        e(f"v_min_u32 v{vtmp}, {end_label}-{start_label}-4, v{vaddr}")
        e(f"v_mov_b32 v{vtmp+1}, s{sp+1}")
        e(f"v_add_co_u32 v{vtmp}, vcc, s{sp}, v{vtmp}")
        e("s_nop 1")
        e(f"v_addc_co_u32 v{vtmp+1}, vcc, 0, v{vtmp+1}, vcc")
        e(f"global_load_dword v{vdst}, v[{vtmp}:{vtmp+1}], off")
        if i + 1 < nblk: e(f"v_add_u32 v{vaddr}, 0x2000, v{vaddr}")

STORE_MOD = "sc1"
```

```python
from gen_common import *
import gen_common, gen_l1, gen_l3, gen_l4, gen_pre
NAME = "k_kernel"
LDS_BYTES = gen_l1.LDS_BYTES
S_DBGP = 56

def publish_l1(e, offs, nstores=None, hvar=False):
    lab = f"Lp1_{len(e.L)}"
    e("s_mov_b64 exec, -1")
    e(f"s_load_dwordx2 s[46:47], s[0:1], {KA_DBG}")
    e(f"s_add_u32 s34, s4, {LY.CNT}"); e("s_addc_u32 s35, s5, 0")
    e("v_mov_b32 v248, 0"); e("v_mov_b32 v249, 0")
    if nstores is not None:
        e(f"s_waitcnt vmcnt({nstores}) lgkmcnt(0)"); e("s_barrier")
    else:
        e("s_waitcnt lgkmcnt(0)")
    e("s_cmp_eq_u32 s8, 0"); e(f"s_cbranch_scc0 {lab}_a")
    e("global_load_dword v249, v248, s[46:47] sc1")
    e.label(f"{lab}_a")
    if nstores is not None and hvar:
        gen_pre.unit_select(e)
        e("s_cmp_eq_u32 s67, 0"); e(f"s_cbranch_scc1 {lab}_n")
        e("s_mov_b32 s53, s68")
        gen_pre.repack_setup(e); gen_pre.repack_dma(e)
        e("s_waitcnt vmcnt(18)")
        e(f"s_branch {lab}_m")
        e.label(f"{lab}_n")
        e("s_waitcnt vmcnt(0)")
        e.label(f"{lab}_m")
    elif nstores is not None:
        gen_pre.unit_early(e)
        e("s_waitcnt vmcnt(18)")
    else:
        e("s_waitcnt vmcnt(0)")
    e("s_barrier")
    e("s_cmp_eq_u32 s8, 0"); e(f"s_cbranch_scc0 {lab}_z")
    e("s_mov_b32 s50, 0x40000")
    e.label(f"{lab}_b")
    e("v_readfirstlane_b32 s52, v249"); e("s_cmp_lg_u32 s52, 0"); e(f"s_cbranch_scc1 {lab}_c")
    e("global_load_dword v249, v248, s[46:47] sc1"); e("s_waitcnt vmcnt(0)")
    e("s_sub_u32 s50, s50, 1"); e("s_cmp_lg_u32 s50, 0"); e(f"s_cbranch_scc1 {lab}_b")
    e.label(f"{lab}_c")
    e("s_mov_b64 exec, 1")
    e("v_mov_b32 v251, 1")
    for o in offs:
        e(f"v_mov_b32 v250, s{o}"); e("global_atomic_add v250, v251, s[34:35] sc1")
    e("s_mov_b64 exec, -1")
    e.label(f"{lab}_z")

CUR = {"variant": None, "mark": 0}
def l1_done(e, wave_sgpr=8):
    v = CUR["variant"]; C = gen_pre.CSTEP
    stamp(e, 7, 'l1')
    if v == "h":
        e(f"s_mul_i32 s48, s{gen_l1.S_RB}, {C}"); e(f"s_add_u32 s48, s48, {gen_pre.CNT_HS}")
        e(f"s_and_b32 s49, s{gen_l1.S_CQ}, 1"); e("s_lshl_b32 s49, s49, 1"); e("s_sub_u32 s49, 1, s49"); e(f"s_add_u32 s49, s49, s{gen_l1.S_RB}"); e("s_and_b32 s49, s49, 15")
        e(f"s_mul_i32 s49, s49, {C}"); e(f"s_add_u32 s49, s49, {gen_pre.CNT_HS}")
        if Opt.h_unit_late:
            ns = sum(1 for l in e.L[CUR["mark"]:] if l.strip().startswith("buffer_store"))
            publish_l1(e, [48, 49], nstores=ns, hvar=True)
        else:
            publish_l1(e, [48, 49])
    else:
        ns = sum(1 for l in e.L[CUR["mark"]:] if l.strip().startswith("buffer_store"))
        e(f"s_mul_i32 s48, s{gen_l1.S_CQ}, {C}"); e(f"s_add_u32 s48, s48, {gen_pre.CNT_QKV}")
        publish_l1(e, [48], nstores=ns)
    e("s_branch K_pre_h" if v == "h" else "s_branch K_pre")

def hook(e, variant):
    if variant == "q0":
        e("s_cmp_eq_u32 s2, 0"); e("s_cbranch_scc0 K_noflag"); e("s_cmp_eq_u32 s8, 3"); e("s_cbranch_scc0 K_noflag")
        e("s_mov_b64 exec, 1"); e("v_mov_b32 v30, 0"); e("v_mov_b32 v31, 1")
        e(f"global_store_dword v30, v31, s[{S_DBGP}:{S_DBGP+1}] sc1")
        e("s_mov_b64 exec, -1")
        e.label("K_noflag")

def gen(force_slow=False):
    L = gen_l1
    L.fin = l1_done
    L.HOOK = hook
    L.stamp = lambda e, i, grp=None: stamp(e, i, 'l1')
    e = Emit()
    kernel_head(e, NAME)
    Diag.kid = 2
    S_WV, S_RB, S_CT, S_CQ = L.S_WV, L.S_RB, L.S_CT, L.S_CQ
    e("s_cmp_ge_u32 s2, 256")
    e("s_cbranch_scc1 L3_exit")
    e(f"s_load_dwordx2 s[4:5], s[0:1], {KA_WS}")
    e(f"s_load_dwordx4 s[52:55], s[0:1], {KA_XA}")
    e(f"s_load_dwordx2 s[58:59], s[0:1], {KA_W1}")
    e(f"s_load_dwordx2 s[60:61], s[0:1], {KA_GW}")
    e(f"s_load_dwordx2 s[{S_DBGP}:{S_DBGP+1}], s[0:1], {KA_DBG}")
    e("s_and_b32 s6, s2, 7"); e("s_lshr_b32 s7, s2, 3")
    e("v_lshrrev_b32 v1, 6, v0"); e("v_and_b32 v0, 63, v0")
    e(f"v_readfirstlane_b32 s{S_WV}, v1")
    e(f"s_and_b32 s{S_RB}, s6, 3"); e(f"s_lshl_b32 s{S_RB}, s{S_RB}, 2"); e("s_and_b32 s3, s7, 3"); e(f"s_add_u32 s{S_RB}, s{S_RB}, s3")
    e(f"s_lshr_b32 s{S_CQ}, s6, 2"); e(f"s_lshl_b32 s{S_CQ}, s{S_CQ}, 1"); e("s_bfe_u32 s3, s7, 0x10002"); e(f"s_add_u32 s{S_CQ}, s{S_CQ}, s3")
    e("s_lshr_b32 s3, s7, 3"); e(f"s_lshl_b32 s{S_CT}, s3, 2"); e(f"s_add_u32 s{S_CT}, s{S_CT}, s{S_CQ}")
    e(f"v_lshlrev_b32 v{L.V_L16}, 4, v0")
    e("s_waitcnt lgkmcnt(0)")
    make_srd(e, L.S_WS, 4, LY.WS_END)
    stamp(e, 0, 'any')
    dbg_start(e)
    e("s_cmp_eq_u32 s2, 0"); e("s_cbranch_scc0 K_nocnt"); e(f"s_cmp_eq_u32 s{S_WV}, 3"); e("s_cbranch_scc0 K_nocnt")
    e("v_lshlrev_b32 v2, 7, v0"); e("v_mov_b32 v3, 0"); e(f"s_mov_b32 s69, {LY.CNT}")
    e(f"buffer_store_dword v3, v2, s[{L.S_WS}:{L.S_WS+3}], s69 offen sc1")
    e("s_add_u32 s69, s69, 8192")
    e(f"buffer_store_dword v3, v2, s[{L.S_WS}:{L.S_WS+3}], s69 offen sc1")
    e.label("K_nocnt")
    e("s_cmp_eq_u32 s3, 3")
    e("s_cselect_b32 s64, s58, s54"); e("s_cselect_b32 s65, s59, s55")
    e(f"s_movk_i32 s{L.S_RS}, 3456"); e(f"s_cselect_b32 s{L.S_RS}, 1152, s{L.S_RS}")
    e(f"s_mov_b32 s67, {L.SLOT}"); e(f"s_mov_b32 s68, {(-3*L.SLOT) & 0xffffffff}")
    e(f"s_cselect_b32 s66, s{S_CQ}, s{S_CT}")
    make_srd(e, L.S_X, 52, 2048 * 576 * 2)
    e(f"s_mov_b32 s{L.S_W}, s64"); e(f"s_and_b32 s{L.S_W+1}, s65, 0xffff"); e(f"s_mul_i32 s{L.S_W+2}, s{L.S_RS}, 576"); e(f"s_mov_b32 s{L.S_W+3}, 0x20000")
    make_srd(e, L.S_GW, 60, 1152)
    e(f"s_lshl_b32 s{L.S_XO}, s{S_RB}, 2"); e(f"s_add_u32 s{L.S_XO}, s{L.S_XO}, s{S_WV}"); e(f"s_mul_i32 s{L.S_XO}, s{L.S_XO}, 36864")
    e(f"s_mul_i32 s{L.S_WO}, s66, 288")
    e(f"s_lshl_b32 s{L.S_WSTEP}, s{L.S_RS}, 6")
    L.prologue_rot(e)
    L.setup_common(e)
    e("s_mov_b32 s40, 0x3f803f80")
    e("s_cmp_eq_u32 s3, 2"); e("s_cbranch_scc1 L1_v")
    e("s_cmp_eq_u32 s3, 3"); e("s_cbranch_scc1 L1_h")
    e(f"s_cmp_eq_u32 s{S_CT}, 0"); e("s_cbranch_scc0 L1_qk")
    e(f"s_mov_b32 m0, {L.GW_OFF}"); e("s_nop 0")
    e(f"buffer_load_dwordx4 v{L.V_L16}, s[{L.S_GW}:{L.S_GW+3}], 0 offen lds")
    e(f"buffer_load_dwordx4 v{L.V_L16}, s[{L.S_GW}:{L.S_GW+3}], 0 offen offset:1024 lds")
    for variant in ("q0", "qk"):
        CUR["variant"] = variant
        if variant == "qk": e.label("L1_qk")
        L.prologue_dma(e)
        L.waddr_heads(e, True)
        if variant == "q0":
            e("v_lshrrev_b32 v21, 5, v0"); e("v_lshlrev_b32 v21, 4, v21"); e(f"v_add_u32 v{L.V_GA}, {L.GW_OFF}, v21")
            e(f"s_lshl_b32 s69, s{L.S_KC}, 7"); e(f"v_add_u32 v{L.V_GA}, s69, v{L.V_GA}")
        L.zero_acc(e, variant)
        e("s_cmp_eq_u32 s3, 0")
        e(f"s_cselect_b32 s41, {hexf(L.QSCALE)}, 1.0"); e(f"s_mov_b32 s42, {LY.KF0}"); e(f"s_cselect_b32 s42, {LY.QF0}, s42"); e(f"s_mov_b32 s43, {LY.KX}"); e(f"s_cselect_b32 s43, {LY.QX}, s43")
        L.main_loop(e, variant)
        CUR["mark"] = len(e.L)
        L.epi_qk(e, variant == "q0")
    e.label("L1_v"); CUR["variant"] = "v"
    L.prologue_dma(e); L.waddr_heads(e, False); L.zero_acc(e, "v"); L.main_loop(e, "v"); CUR["mark"] = len(e.L); L.epi_v(e)
    e.label("L1_h"); CUR["variant"] = "h"
    L.prologue_dma(e); L.waddr_dense(e)
    e(f"s_lshl_b32 s69, s{S_WV}, 6"); e(f"v_add_u32 v{L.V_WC}, s69, v{L.V_WA}")
    L.zero_acc(e, "h"); L.main_loop(e, "h")
    if not Opt.h_unit_late: gen_pre.unit_early_h(e)
    CUR["mark"] = len(e.L)
    L.epi_h(e)
    gen_pre.gen_prephase_single(e)
    e("s_cmp_lt_u32 s7, 16")
    e("s_cbranch_scc0 L3_attn")
    gen_l3.gen_mlp(e)
    gen_l3.gen_attn(e, force_slow)
    gen_l4.final(e)
    e.label("L3_exit")
    e("s_endpgm")
    return e.text()
```

```python
from gen_common import *
NAME = "l1_kernel"
SLOT = 36864
GW_OFF = 4 * SLOT
XCH_OFF = GW_OFF + 2048
LDS_BYTES = XCH_OFF + 5120
S_WS = 12; S_X = 16; S_W = 20; S_GW = 24
V_L16 = 1
V_XO = 2
V_WO = 6
V_XA = 11
V_WA = 15
V_GA = 20
V_ST = 22
V_CS = 24
ACC = 32
XF = 112
WF = 128
GF = 208
EX0 = 224
EX1 = 240
AG_CS = 0
AG_ONE = 32
AG_CF = 36
V_WC = 21
NVGPR = 256 + 52
NACC = 256
QSCALE = math.log2(math.e) / math.sqrt(18.0)
S_WV, S_RB, S_CT, S_CQ = 8, 9, 10, 11
S_RS = 28
S_XO = 29
S_WO = 30
S_XM = 31
S_ST = 32
S_DL = 33
S_WSTEP = 34
S_SLX = 35
S_SLW = 38
S_T = 36
S_T2 = 37
S_KX, S_KW, S_KC, S_GD = 39, 64, 65, 66
S_WBACK, S_C128 = 60, 61

HOOK = None
def dma_x():
    o = [[f"s_add_u32 m0, s{S_SLX}, s{S_XM}", "s_nop 0", f"buffer_load_dwordx4 v{V_XO}, s[{S_X}:{S_X+3}], s{S_XO} offen lds"]]
    for i in range(1, 4):
        o.append([f"buffer_load_dwordx4 v{V_XO+i}, s[{S_X}:{S_X+3}], s{S_XO} offen offset:{i*1024} lds"])
    o[-1] += [f"s_add_u32 s{S_KX}, s{S_KX}, 1", f"s_cmp_eq_u32 s{S_KX}, 9", f"s_cselect_b32 s{S_KX}, 0, s{S_KX}", f"s_cselect_b32 s69, {(-1024) & 0xffffffff}, s{S_C128}",
              f"s_add_u32 s{S_XO}, s{S_XO}, s69",
              f"s_add_u32 s{S_SLX}, s{S_SLX}, {SLOT}", f"s_cmp_eq_u32 s{S_SLX}, {4*SLOT}", f"s_cselect_b32 s{S_SLX}, 0, s{S_SLX}"]
    return o
def dma_w():
    o = [[f"s_add_u32 m0, s{S_SLW}, s{S_T}", "s_nop 0", f"buffer_load_dwordx4 v{V_WO}, s[{S_W}:{S_W+3}], s{S_WO} offen lds"]]
    for i in range(1, 4):
        o.append([f"buffer_load_dwordx4 v{V_WO+i}, s[{S_W}:{S_W+3}], s{S_WO} offen offset:{i*1024} lds"])
    o.append([f"s_add_u32 m0, m0, 4096", "s_nop 0", f"buffer_load_dwordx4 v{V_WO+4}, s[{S_W}:{S_W+3}], s{S_WO} offen lds",
              f"s_add_u32 s{S_KW}, s{S_KW}, 1", f"s_cmp_eq_u32 s{S_KW}, 9", f"s_cselect_b32 s{S_KW}, 0, s{S_KW}", f"s_cselect_b32 s69, s{S_WBACK}, s{S_WSTEP}",
              f"s_add_u32 s{S_WO}, s{S_WO}, s69",
              f"s_add_u32 s{S_SLW}, s{S_SLW}, {SLOT}", f"s_cmp_eq_u32 s{S_SLW}, {4*SLOT}", f"s_cselect_b32 s{S_SLW}, 0, s{S_SLW}"])
    return o

def reads(s, variant):
    o = [f"ds_read_b128 {vr(XF+4*s,4)}, v{V_XA+s}"]
    if variant == "q0": o.append(f"ds_read_b128 {vr(GF+4*s,4)}, v{V_GA} offset:{32*s}")
    for T in range(5):
        for q in range(2):
            o.append(f"ds_read_b64_tr_b16 {vr(WF+20*s+4*T+2*q,2)}, v{V_WA+T} offset:{(16*s+4*q)*320}")
    if variant == "h":
        for q in range(2):
            o.append(f"ds_read_b64_tr_b16 {ar(AG_CF+4*s+2*q,2)}, v{V_WC} offset:{(16*s+4*q)*320}")
    return o

def advance_addrs(variant):
    o = [f"v_add_u32 v{r}, s{S_DL}, v{r}" for r in list(range(V_XA, V_XA + 4)) + list(range(V_WA, V_WA + 5))]
    if variant == "h": o.append(f"v_add_u32 v{V_WC}, s{S_DL}, v{V_WC}")
    if variant == "q0":
        o += [f"s_add_u32 s{S_KC}, s{S_KC}, 1", f"s_cmp_eq_u32 s{S_KC}, 9", f"s_cselect_b32 s{S_KC}, 0, s{S_KC}",
              f"s_cselect_b32 s{S_GD}, {(-1024) & 0xffffffff}, s{S_C128}", f"v_add_u32 v{V_GA}, s{S_GD}, v{V_GA}"]
    return o

def main_loop(e, variant):
    lab = f"L1_loop_{variant}"
    nrd = {"q0": 12, "h": 13}.get(variant, 11)
    e(f"s_mov_b32 s{S_ST}, 0")
    e("s_waitcnt vmcnt(13)")
    e("s_barrier")
    if HOOK: HOOK(e, variant)
    stamp(e, 2, 'any')
    e.extend(reads(0, variant)); e.extend(reads(1, variant))
    e(".p2align 6")
    e.label(lab)
    dx = dma_x(); dw = dma_w()
    place = {(0, 0): dw[0], (0, 2): dw[1], (0, 4): dw[2], (1, 1): dw[3], (1, 3): dw[4], (2, 2): dx[0], (2, 4): dx[1], (3, 1): dx[2], (3, 3): dx[3]}
    for s in range(4):
        pre = []
        lt = False
        if s == 2:
            w = ["s_waitcnt vmcnt(9)"]
            if lt:
                w = [f"s_cmp_ge_u32 s{S_ST}, 6", f"s_cbranch_scc1 {lab}_w11", "s_waitcnt vmcnt(9)", f"s_branch {lab}_wb", f"{lab}_w11:",
                     f"s_cmp_eq_u32 s{S_ST}, 8", f"s_cbranch_scc1 {lab}_wb", "s_waitcnt vmcnt(11)", f"{lab}_wb:"]
            pre = w + ["s_barrier",
                   f"s_cmp_lt_u32 s{S_ST}, 6", f"s_cselect_b32 s{S_XO}, s{S_XO}, 0x40000000", f"s_cselect_b32 s{S_WO}, s{S_WO}, 0x40000000"]
        rd = reads((s + 2) % 4, variant)
        e(f"s_waitcnt lgkmcnt({nrd})")
        xf = vr(XF + 4 * s, 4)
        mfs = []
        for T in range(5):
            wf = vr(WF + 20 * s + 4 * T, 4); a = vr(ACC + 16 * T, 16)
            mfs.append(f"v_mfma_f32_32x32x16_bf16 {a}, {xf}, {wf}, {a}" if variant == "v" else f"v_mfma_f32_32x32x16_bf16 {a}, {wf}, {xf}, {a}")
        if variant == "q0":
            mfs.append(f"v_mfma_f32_32x32x16_bf16 {vr(EX0,16)}, {vr(GF+4*s,4)}, {xf}, {vr(EX0,16)}")
        if variant == "h":
            mfs.append(f"v_mfma_f32_32x32x16_bf16 {vr(EX0,16)}, {ar(AG_ONE,4)}, {xf}, {vr(EX0,16)}")
            mfs.append(f"v_mfma_f32_32x32x16_bf16 {vr(EX1,16)}, {xf}, {xf}, {vr(EX1,16)}")
            mfs.append(f"v_mfma_f32_32x32x16_bf16 {ar(AG_CS,16)}, {ar(AG_CF+4*s,4)}, {ar(AG_ONE,4)}, {ar(AG_CS,16)}")
            mfs.append(f"v_mfma_f32_32x32x16_bf16 {ar(AG_CS+16,16)}, {vr(WF+20*s+16,4)}, {ar(AG_ONE,4)}, {ar(AG_CS+16,16)}")
        n = len(rd); nm = len(mfs)
        per = (n + nm - 2) // (nm - 1)
        for T in range(nm):
            e(mfs[T])
            if T == 0: e.extend(pre)
            e.extend(rd[T * per:(T + 1) * per])
            e.extend(place.get((s, T), []))
        if s == 1 and lt:
            e(f"s_cmp_eq_u32 s{S_ST}, 6"); e(f"s_cbranch_scc0 {lab}_nt")
            e.extend(late_issue())
            e.label(f"{lab}_nt")
        if s == 1:
            e(f"s_add_u32 s{S_T2}, s{S_ST}, 1")
            e(f"s_and_b32 s{S_DL}, s{S_T2}, 3")
            e(f"s_cmp_eq_u32 s{S_DL}, 0")
            e(f"s_cselect_b32 s{S_DL}, s68, s67")
            e.extend(advance_addrs(variant))
    e(f"s_add_u32 s{S_ST}, s{S_ST}, 1")
    e(f"s_cmp_lt_u32 s{S_ST}, 9")
    e(f"s_cbranch_scc1 {lab}")
    stamp(e, 5, 'any')
    e("s_waitcnt lgkmcnt(0)")
    e("s_nop 7")

def setup_common(e):
    for i in range(4):
        e("v_lshrrev_b32 v21, 3, v0"); e(f"v_add_u32 v21, {8*i}, v21")
        e("v_lshrrev_b32 v22, 1, v21"); e("v_and_b32 v22, 7, v22"); e("v_and_b32 v23, 7, v0"); e("v_xor_b32 v22, v22, v23")
        e("v_mul_u32_u24 v21, 1152, v21"); e("v_lshlrev_b32 v22, 4, v22"); e("v_add_u32 v21, v21, v22")
        e(f"v_subrev_u32 v{V_XO+i}, {1024*i}, v21")
    e(f"s_mul_i32 s{S_T}, s{S_WV}, 320")
    for i in range(5):
        e(f"v_add_u32 v21, s{S_T}, v0"); e(f"v_add_u32 v21, {64*i}, v21")
        e("v_mul_u32_u24 v22, 3277, v21"); e("v_lshrrev_b32 v22, 16, v22")
        e("v_mul_u32_u24 v23, 20, v22"); e("v_sub_u32 v23, v21, v23")
        e(f"v_mul_lo_u32 v22, v22, s{S_RS}")
        e("v_cmp_lt_u32 vcc, 17, v23"); e("v_subrev_u32 v24, 2, v23"); e("s_nop 0"); e("v_cndmask_b32 v24, v23, v24, vcc")
        e("v_lshlrev_b32 v24, 4, v24"); e("v_add_u32 v22, v22, v24")
        if i % 4: e(f"v_subrev_u32 v22, {1024*(i%4)}, v22")
        e("v_and_b32 v24, 30, v23"); e("v_cmp_eq_u32 vcc, 16, v24"); e("v_mov_b32 v25, 0x40000000"); e("s_nop 0")
        e(f"v_cndmask_b32 v{V_WO+i}, v22, v25, vcc")
    e("v_and_b32 v21, 31, v0"); e("v_lshrrev_b32 v22, 5, v0")
    e("v_lshrrev_b32 v23, 1, v21"); e("v_and_b32 v23, 7, v23"); e("v_xor_b32 v23, v23, v22"); e("v_lshlrev_b32 v23, 4, v23")
    e("v_lshlrev_b32 v24, 7, v21"); e("v_add_u32 v23, v23, v24")
    e(f"s_lshl_b32 s{S_XM}, s{S_WV}, 12"); e(f"v_add_u32 v{V_XA}, s{S_XM}, v23")
    for s in range(1, 4): e(f"v_xor_b32 v{V_XA+s}, {32*s}, v{V_XA}")
    e(f"s_mul_i32 s{S_T}, s{S_WV}, 5120"); e(f"s_add_u32 s{S_T}, s{S_T}, 16384")

def lane_parts(e):
    e("v_lshrrev_b32 v21, 5, v0"); e("v_bfe_u32 v22, v0, 4, 1"); e("v_bfe_u32 v23, v0, 2, 2"); e("v_and_b32 v24, 3, v0")
    e("v_and_b32 v25, 1, v0"); e("v_lshlrev_b32 v25, 1, v25"); e("v_bfe_u32 v26, v0, 1, 1"); e("v_or_b32 v25, v25, v26")
    e("v_lshlrev_b32 v26, 3, v21"); e("v_add_u32 v26, v26, v23"); e("v_mul_u32_u24 v26, 320, v26"); e("v_add_u32 v26, 16384, v26")

def waddr_heads(e, swap):
    lane_parts(e)
    q = 25 if swap else 24
    e(f"v_lshlrev_b32 v27, 3, v{q}"); e("v_add_u32 v27, v27, v26")
    e("v_mul_u32_u24 v28, 288, v22"); e(f"v_add_u32 v{V_WA}, v27, v28")
    e("v_lshlrev_b32 v28, 5, v22"); e("v_add_u32 v27, v27, v28")
    for T in range(1, 4): e(f"v_add_u32 v{V_WA+T}, {40+72*(T-1)}, v27")
    e("v_mul_u32_u24 v28, 72, v24"); e("v_add_u32 v28, v28, v26"); e(f"v_add_u32 v{V_WA+4}, 32, v28")
def waddr_dense(e):
    lane_parts(e)
    e("v_lshlrev_b32 v27, 3, v25"); e("v_add_u32 v27, v27, v26")
    e(f"v_add_u32 v{V_WA+4}, 288, v27")
    e("v_lshlrev_b32 v28, 5, v22"); e("v_add_u32 v27, v27, v28")
    for T in range(4): e(f"v_add_u32 v{V_WA+T}, {64*T}, v27")

def touches(e):
    e(f"s_lshl_b32 s{S_T}, s7, 2"); e(f"s_add_u32 s{S_T}, s{S_T}, s{S_WV}"); e(f"s_lshl_b32 s{S_T}, s{S_T}, 6")
    e(f"v_add_u32 v28, s{S_T}, v0")
    e("v_mul_u32_u24 v29, 7282, v28"); e("v_lshrrev_b32 v29, 16, v29")
    e("v_mul_u32_u24 v30, 9, v29"); e("v_sub_u32 v30, v28, v30"); e("v_lshlrev_b32 v30, 7, v30")
    e(f"v_mul_lo_u32 v29, v29, s{S_RS}"); e("v_add_u32 v29, v29, v30")
    e("s_cmp_eq_u32 s3, 3"); e("s_cselect_b32 s69, 0, s3"); e("s_mul_i32 s69, s69, 1152")
    e(f"buffer_load_dword v31, v29, s[{S_W}:{S_W+3}], s69 offen")
    if Opt.touch64: e(f"buffer_load_dword v31, v29, s[{S_W}:{S_W+3}], s69 offen offset:64")
    e("v_lshlrev_b32 v29, 7, v28"); e("s_and_b32 s69, s6, 1"); e("s_mul_i32 s69, s69, 1179648")
    e(f"buffer_load_dword v31, v29, s[{S_X}:{S_X+3}], s69 offen")
    if Opt.touch64: e(f"buffer_load_dword v31, v29, s[{S_X}:{S_X+3}], s69 offen offset:64")
    e("s_cmp_lt_u32 s7, 4"); e("s_cbranch_scc0 L1_touch_done")
    e("s_add_u32 s69, s69, 1048576")
    e(f"buffer_load_dword v31, v29, s[{S_X}:{S_X+3}], s69 offen")
    if Opt.touch64: e(f"buffer_load_dword v31, v29, s[{S_X}:{S_X+3}], s69 offen offset:64")
    e.label("L1_touch_done")

def zero_acc(e, variant):
    for i in range(4): e(f"v_mov_b32 v{XF+i}, 0")
    if variant == "h":
        for i in range(4): e(f"v_accvgpr_write_b32 a{AG_ONE+i}, s40")
    e("s_nop 1")
    z = vr(XF, 4)
    for T in range(5): e(f"v_mfma_f32_32x32x16_bf16 {vr(ACC+16*T,16)}, {z}, {z}, 0")
    if variant in ("q0", "h"): e(f"v_mfma_f32_32x32x16_bf16 {vr(EX0,16)}, {z}, {z}, 0")
    if variant == "h":
        e(f"v_mfma_f32_32x32x16_bf16 {vr(EX1,16)}, {z}, {z}, 0")
        e(f"v_mfma_f32_32x32x16_bf16 {ar(AG_CS,16)}, {z}, {z}, 0")
        e(f"v_mfma_f32_32x32x16_bf16 {ar(AG_CS+16,16)}, {z}, {z}, 0")

def late_setup(e):
    if not Opt.late_touch: return
    e(f"s_load_dwordx2 s[52:53], s[0:1], {KA_W3}"); e(f"s_load_dwordx2 s[54:55], s[0:1], {KA_W4}")
    e(f"s_load_dwordx2 s[56:57], s[0:1], {KA_W2}"); e(f"s_load_dwordx2 s[58:59], s[0:1], {KA_WO}")
    e(f"s_lshl_b32 s44, s{S_WV}, 6"); e("v_add_u32 v30, s44, v0"); e("v_lshlrev_b32 v30, 7, v30")
    e(f"s_lshl_b32 s69, s{S_CT}, 4"); e(f"s_add_u32 s69, s69, s{S_RB}")
    e("s_waitcnt lgkmcnt(0)")
    for rep, (srd, so) in enumerate(((44, 62), (48, 63))):
        if rep == 1: e("s_add_u32 s69, s69, 192")
        e(f"s_mov_b32 s{srd}, s52"); e(f"s_mov_b32 s{srd+1}, s53"); e(f"s_mov_b32 s{srd+2}, {576*4608*2}"); e(f"s_mov_b32 s{so}, s69")
        for lo, p, size in ((162, 54, 576*4608*2), (324, 56, 576*576*2), (345, 58, 576*576*2)):
            e(f"s_cmp_ge_u32 s69, {lo}")
            e(f"s_cselect_b32 s{srd}, s{p}, s{srd}"); e(f"s_cselect_b32 s{srd+1}, s{p+1}, s{srd+1}")
            if size != 576*4608*2:
                e(f"s_cselect_b32 s{srd+2}, {size}, s{srd+2}")
            e(f"s_cselect_b32 s{S_T2}, {lo}, 0");
            e(f"s_sub_u32 s{S_T2}, s69, s{S_T2}"); e(f"s_cmp_ge_u32 s69, {lo}"); e(f"s_cselect_b32 s{so}, s{S_T2}, s{so}")
        e(f"s_and_b32 s{srd+1}, s{srd+1}, 0xffff"); e(f"s_mov_b32 s{srd+3}, 0x20000")
        e(f"s_lshl_b32 s{so}, s{so}, 15")
def late_issue():
    return ["buffer_load_dword v31, v30, s[44:47], s62 offen", "buffer_load_dword v31, v30, s[48:51], s63 offen"]

def prologue_rot(e):
    e("s_and_b32 s69, s7, 3"); e("s_lshl_b32 s69, s69, 1"); e(f"s_lshr_b32 s{S_KX}, s7, 2"); e(f"s_add_u32 s{S_KX}, s{S_KX}, s69")
    e(f"s_cmp_ge_u32 s{S_KX}, 9"); e(f"s_cselect_b32 s69, 9, 0"); e(f"s_sub_u32 s{S_KX}, s{S_KX}, s69")
    if not Opt.rotate: e(f"s_mov_b32 s{S_KX}, 0")
    e(f"s_mov_b32 s{S_KW}, s{S_KX}"); e(f"s_mov_b32 s{S_KC}, s{S_KX}")
    e(f"s_lshl_b32 s69, s{S_KX}, 7"); e(f"s_add_u32 s{S_XO}, s{S_XO}, s69")
    e(f"s_mul_i32 s69, s{S_KX}, s{S_WSTEP}"); e(f"s_add_u32 s{S_WO}, s{S_WO}, s69")
    e(f"s_mul_i32 s{S_WBACK}, s{S_WSTEP}, -8"); e(f"s_movk_i32 s{S_C128}, 128")

def prologue_dma(e):
    e(f"s_mov_b32 s{S_SLX}, 0"); e(f"s_mov_b32 s{S_SLW}, 0")
    for st in range(3):
        for grp in dma_x(): e.extend(grp)
        if st < 2:
            for grp in dma_w(): e.extend(grp)
    stamp(e, 1, 'any')

HEADS = [(0, 7), (1, 2), (3, 4), (5, 6)]
def epi_qk(e, gate):
    e(f"s_lshl_b32 s44, s{S_RB}, 2"); e(f"s_add_u32 s44, s44, s{S_WV}")
    e(f"s_lshl_b32 s45, s{S_CQ}, 3")
    e("s_lshl_b32 s46, s45, 16"); e("s_lshl_b32 s47, s44, 10"); e("s_add_u32 s46, s46, s47"); e("s_add_u32 s46, s46, s42")
    P = 112
    for T in range(4):
        for i in range(16): e(f"v_mul_f32 v{ACC+16*T+i}, s41, v{ACC+16*T+i}")
        for hh in range(2):
            p = P + 8 * (T % 2) + 4 * hh
            for j in range(4): e(f"v_cvt_pk_bf16_f32 v{p+j}, v{ACC+16*T+8*hh+2*j}, v{ACC+16*T+8*hh+2*j+1}")
            e(f"s_add_u32 s47, s46, {HEADS[T][hh]*65536}")
            e(f"buffer_store_dwordx4 {vr(p,4)}, v{V_L16}, s[{S_WS}:{S_WS+3}], s47 offen")
    for i in range(8): e(f"v_mul_f32 v{ACC+64+i}, s41, v{ACC+64+i}")
    for j in range(4): e(f"v_cvt_pk_bf16_f32 v{128+j}, v{ACC+64+2*j}, v{ACC+64+2*j+1}")
    e("v_and_b32 v21, 31, v0"); e("v_lshlrev_b32 v21, 2, v21"); e("v_lshrrev_b32 v29, 5, v0"); e("v_lshlrev_b32 v29, 14, v29"); e("v_add_u32 v21, v21, v29")
    e("s_lshl_b32 s46, s45, 13"); e("s_lshl_b32 s47, s44, 7"); e("s_add_u32 s46, s46, s47"); e("s_add_u32 s46, s46, s43")
    for j, hoff in enumerate([0, 1, 4, 5]):
        e(f"s_add_u32 s47, s46, {hoff*8192}")
        e(f"buffer_store_dword v{128+j}, v21, s[{S_WS}:{S_WS+3}], s47 offen")
    if gate:
        e(f"v_mul_f32 v23, {hexf(-math.log2(math.e))}, v{EX0}"); e("v_exp_f32 v23, v23"); e("s_nop 0"); e("v_add_f32 v23, 1.0, v23"); e("v_rcp_f32 v23, v23")
        e("v_and_b32 v21, 31, v0"); e("v_lshlrev_b32 v21, 2, v21")
        e("s_lshl_b32 s47, s44, 7"); e(f"s_add_u32 s47, s47, {LY.G}")
        e("s_mov_b64 exec, 0xffffffff")
        e(f"buffer_store_dword v23, v21, s[{S_WS}:{S_WS+3}], s47 offen")
        e("s_mov_b64 exec, -1")
    if Opt.late_touch:
        late_setup(e); e.extend(late_issue())
    fin(e)

def epi_v(e):
    e(f"s_lshl_b32 s44, s{S_RB}, 2"); e(f"s_add_u32 s44, s44, s{S_WV}")
    e(f"s_lshl_b32 s45, s{S_CQ}, 3")
    e(f"s_mul_i32 s46, s45, {LY.VHEAD}"); e("s_mul_i32 s47, s44, 1216"); e("s_add_u32 s46, s46, s47"); e(f"s_add_u32 s46, s46, {LY.VF}")
    e("v_lshrrev_b32 v21, 5, v0"); e("v_mul_u32_u24 v21, 304, v21")
    e("v_and_b32 v22, 15, v0"); e("v_lshlrev_b32 v22, 4, v22"); e("v_add_u32 v22, v22, v21")
    e("v_bfe_u32 v23, v0, 4, 1")
    e(f"s_mov_b32 s47, {LY.VHEAD}")
    e("v_mul_lo_u32 v24, v23, s47")
    e("v_add_u32 v25, v22, v24")
    e("v_mul_u32_u24 v24, 7, v24"); e("v_add_u32 v26, v22, v24")
    P = 112
    for T in range(4):
        ad = 26 if T == 0 else 25
        hb = 0 if T == 0 else HEADS[T][0]
        e(f"s_add_u32 s47, s46, {hb*LY.VHEAD}")
        for hh in range(2):
            p = P + 8 * (T % 2) + 4 * hh
            for j in range(4): e(f"v_cvt_pk_bf16_f32 v{p+j}, v{ACC+16*T+8*hh+2*j}, v{ACC+16*T+8*hh+2*j+1}")
            e(f"buffer_store_dwordx4 {vr(p,4)}, v{ad}, s[{S_WS}:{S_WS+3}], s47 offen offset:{608*hh}")
    e("v_and_b32 v22, 31, v0")
    e("v_lshrrev_b32 v23, 2, v22"); e("v_lshlrev_b32 v23, 1, v23"); e("v_bfe_u32 v24, v22, 1, 1"); e("v_add_u32 v23, v23, v24")
    e("v_and_b32 v24, 1, v22"); e("v_add_u32 v24, 16, v24")
    e("v_cmp_lt_u32 vcc, 15, v22"); e("v_subrev_u32 v25, 16, v22"); e("v_mov_b32 v27, 18")
    e("v_cndmask_b32 v23, v23, v25, vcc"); e("v_cndmask_b32 v24, v24, v27, vcc")
    e(f"s_mov_b32 s47, {LY.VHEAD}"); e("v_mul_lo_u32 v23, v23, s47"); e("v_lshlrev_b32 v24, 4, v24"); e("v_add3_u32 v23, v23, v24, v21")
    e("v_mov_b32 v27, 0x3f803f80")
    for hh in range(2):
        for j in range(4):
            e(f"v_cvt_pk_bf16_f32 v{128+4*hh+j}, v{ACC+64+8*hh+2*j}, v{ACC+64+8*hh+2*j+1}")
            e(f"v_cndmask_b32 v{128+4*hh+j}, v{128+4*hh+j}, v27, vcc")
    e("v_cmp_gt_u32 vcc, 24, v22"); e("s_nop 1")
    e("s_and_saveexec_b64 s[48:49], vcc")
    for hh in range(2):
        e(f"buffer_store_dwordx4 {vr(128+4*hh,4)}, v23, s[{S_WS}:{S_WS+3}], s46 offen offset:{608*hh}")
    if Opt.late_touch:
        e("s_mov_b64 exec, -1")
        late_setup(e); e.extend(late_issue())
    fin(e)

def epi_h(e):
    e("v_lshrrev_b32 v21, 5, v0"); e("v_lshlrev_b32 v21, 4, v21"); e(f"v_add_u32 v29, {XCH_OFF}, v21")
    e(f"s_lshl_b32 s44, s{S_WV}, 7"); e("v_add_u32 v28, s44, v29")
    e("s_mov_b32 exec_lo, 1"); e("s_mov_b32 exec_hi, 1")
    for j in range(4): e(f"ds_write_b128 v28, {ar(AG_CS+4*j,4)} offset:{32*j}")
    for j in range(2): e(f"ds_write_b128 v29, {ar(AG_CS+16+4*j,4)} offset:{512+32*j}")
    e("s_mov_b64 exec, -1")
    for b, (bit, sp) in enumerate(((0, 44), (1, 46), (3, 48), (4, 52))):
        e(f"v_bfe_u32 v28, v0, {bit}, 1"); e(f"v_cmp_eq_u32 s[{sp}:{sp+1}], 1, v28")
    e("v_bfe_u32 v28, v0, 2, 1"); e("v_lshrrev_b32 v27, 5, v0"); e("v_cmp_eq_u32 vcc, v27, v28")
    e("s_nop 0")
    for i in range(8): e(f"v_cndmask_b32 v{EX1+i}, v{EX1+2*i}, v{EX1+2*i+1}, s[44:45]")
    for i in range(4): e(f"v_cndmask_b32 v{EX1+i}, v{EX1+2*i}, v{EX1+2*i+1}, s[46:47]")
    for i in range(2): e(f"v_cndmask_b32 v{EX1+i}, v{EX1+2*i}, v{EX1+2*i+1}, s[48:49]")
    e(f"v_cndmask_b32 v{EX1}, v{EX1}, v{EX1+1}, s[52:53]")
    e(f"v_cndmask_b32 v{V_ST+1}, 0, v{EX1}, vcc")
    e(f"v_mov_b32 v28, v{V_ST+1}"); e(f"v_mul_f32 v{V_ST}, {hexf(1/576)}, v{EX0}"); e("s_nop 0")
    e(f"v_permlane32_swap_b32 v28, v{V_ST+1}")
    e(f"v_add_f32 v{V_ST+1}, v28, v{V_ST+1}")
    e(f"v_mul_f32 v{V_ST+1}, {hexf(1/576)}, v{V_ST+1}")
    e(f"v_fma_f32 v{V_ST+1}, -v{V_ST}, v{V_ST}, v{V_ST+1}"); e(f"v_max_f32 v{V_ST+1}, 0, v{V_ST+1}"); e(f"v_add_f32 v{V_ST+1}, {hexf(1e-5)}, v{V_ST+1}")
    SG, RR, AA, BB, MM = 118, 119, 120, 122, 124
    e(f"v_sqrt_f32 v{SG}, v{V_ST+1}"); e("s_nop 0"); e(f"v_rcp_f32 v{RR}, v{SG}"); e("s_nop 0")
    e(f"v_mul_f32 v{BB}, {hexf(GELU_C0)}, v{RR}"); e(f"v_mul_f32 v{AA}, v{RR}, v{RR}"); e(f"v_mul_f32 v{AA}, v{AA}, v{RR}"); e(f"v_mul_f32 v{AA}, {hexf(GELU_C1)}, v{AA}")
    e(f"v_mov_b32 v{AA+1}, v{AA}"); e(f"v_mov_b32 v{BB+1}, v{BB}"); e(f"v_mov_b32 v126, v{SG}"); e(f"v_mov_b32 v127, v{SG}")
    e(f"v_sub_f32 v{MM}, 0, v{V_ST}"); e(f"v_mov_b32 v{MM+1}, v{MM}")
    e("s_waitcnt lgkmcnt(0)"); e("s_barrier")
    e(f"s_lshl_b32 s45, s{S_RB}, 7"); e(f"s_lshl_b32 s46, s{S_WV}, 5"); e("s_add_u32 s45, s45, s46")
    e(f"s_lshr_b32 s46, s{S_CQ}, 1"); e("s_add_u32 s46, s46, 1"); e("s_sub_u32 s47, 0, s46"); e(f"s_bitcmp1_b32 s{S_CQ}, 0"); e("s_cselect_b32 s46, s47, s46")
    e("s_add_u32 s45, s45, s46")
    e("v_and_b32 v21, 31, v0"); e("v_add_u32 v21, s45, v21")
    e("v_cmp_gt_u32 vcc, 2048, v21")
    e("v_and_b32 v21, 2047, v21")
    e("v_lshrrev_b32 v30, 5, v21"); e("s_mov_b32 s47, 36864"); e("v_mul_lo_u32 v30, v30, s47")
    e("v_and_b32 v21, 31, v21"); e("v_lshlrev_b32 v21, 4, v21"); e("v_add_u32 v30, v30, v21")
    e("v_lshrrev_b32 v21, 5, v0"); e("v_lshlrev_b32 v21, 9, v21"); e("v_add_u32 v30, v30, v21")
    e("s_mov_b64 s[50:51], vcc")
    e(f"s_mul_i32 s47, s{S_CQ}, 9216"); e(f"s_add_u32 s47, s47, {LY.HS}")
    CS = 128; TT = 144
    def pk(op, d, a, b, c=None):
        s = f"v_pk_{op}_f32 {vr(d,2)}, {vr(a,2)}, {vr(b,2)}"
        if c is not None: s += f", {vr(c,2)}"
        return s
    u = 0
    for T in range(5):
        nj = 4 if T < 4 else 2
        for j in range(nj): e(f"ds_read_b128 {vr(CS+4*j,4)}, v29 offset:{128*T+32*j}")
        e("s_waitcnt lgkmcnt(0)")
        for half in range(nj // 2):
            a = ACC + 16 * T + 8 * half; cs = CS + 8 * half
            for i in range(0, 8, 2): e(pk("fma", a + i, MM, cs + i, a + i))
            for i in range(0, 8, 2): e(pk("mul", TT + i, a + i, a + i))
            for i in range(0, 8, 2): e(pk("fma", TT + i, TT + i, AA, BB))
            for i in range(0, 8, 2): e(pk("mul", TT + i, a + i, TT + i))
            for i in range(8): e(f"v_exp_f32 v{TT+i}, v{TT+i}")
            for i in range(0, 8, 2): e(pk("fma", TT + i, TT + i, 126, 126))
            for i in range(8): e(f"v_rcp_f32 v{TT+i}, v{TT+i}")
            for i in range(0, 8, 2): e(pk("mul", a + i, a + i, TT + i))
            p = 152 + 4 * (u % 2)
            for j in range(4): e(f"v_cvt_pk_bf16_f32 v{p+j}, v{a+2*j}, v{a+2*j+1}")
            for j in range(4): e(f"v_cndmask_b32 v{p+j}, 0, v{p+j}, s[50:51]")
            e(f"buffer_store_dwordx4 {vr(p,4)}, v30, s[{S_WS}:{S_WS+3}], s47 offen offset:{(u%4)*1024}")
            if u % 4 == 3: e("s_add_u32 s47, s47, 4096")
            u += 1
    fin(e)

def gen():
    e = Emit()
    kernel_head(e, NAME)
    Diag.kid = 0
    e("s_cmp_ge_u32 s2, 256")
    e("s_cbranch_scc1 L1_exit")
    e(f"s_load_dwordx2 s[4:5], s[0:1], {KA_WS}")
    e(f"s_load_dwordx4 s[52:55], s[0:1], {KA_XA}")
    e(f"s_load_dwordx2 s[58:59], s[0:1], {KA_W1}")
    e(f"s_load_dwordx2 s[60:61], s[0:1], {KA_GW}")
    e("s_and_b32 s6, s2, 7"); e("s_lshr_b32 s7, s2, 3")
    e("v_lshrrev_b32 v1, 6, v0"); e("v_and_b32 v0, 63, v0")
    e(f"v_readfirstlane_b32 s{S_WV}, v1")
    e(f"s_and_b32 s{S_RB}, s6, 3"); e(f"s_lshl_b32 s{S_RB}, s{S_RB}, 2"); e("s_and_b32 s3, s7, 3"); e(f"s_add_u32 s{S_RB}, s{S_RB}, s3")
    e(f"s_lshr_b32 s{S_CQ}, s6, 2"); e(f"s_lshl_b32 s{S_CQ}, s{S_CQ}, 1"); e("s_bfe_u32 s3, s7, 0x10002"); e(f"s_add_u32 s{S_CQ}, s{S_CQ}, s3")
    e("s_lshr_b32 s3, s7, 3"); e(f"s_lshl_b32 s{S_CT}, s3, 2"); e(f"s_add_u32 s{S_CT}, s{S_CT}, s{S_CQ}")
    e(f"v_lshlrev_b32 v{V_L16}, 4, v0")
    code_prefetch(e, NAME, "L1_exit", 2, vaddr=28, vtmp=29, vdst=31, sp=62)
    e("s_waitcnt lgkmcnt(0)")
    make_srd(e, S_WS, 4, LY.WS_END)
    stamp(e, 0, 'any')
    dbg_start(e)
    if Opt.fuse_l2 and Opt.cnt_ws:
        e("s_cmp_eq_u32 s2, 0"); e("s_cbranch_scc0 L1_nocnt")
        e(f"s_cmp_eq_u32 s{S_WV}, 3"); e("s_cbranch_scc0 L1_nocnt")
        e("v_lshlrev_b32 v2, 7, v0"); e("v_mov_b32 v3, 0"); e(f"s_mov_b32 s69, {LY.CNT}")
        e(f"buffer_store_dword v3, v2, s[{S_WS}:{S_WS+3}], s69 offen")
        e.label("L1_nocnt")
    e("s_cmp_eq_u32 s3, 3")
    e("s_cselect_b32 s64, s58, s54"); e("s_cselect_b32 s65, s59, s55")
    e(f"s_movk_i32 s{S_RS}, 3456"); e(f"s_cselect_b32 s{S_RS}, 1152, s{S_RS}")
    e(f"s_mov_b32 s67, {SLOT}"); e(f"s_mov_b32 s68, {(-3*SLOT) & 0xffffffff}")
    e(f"s_cselect_b32 s66, s{S_CQ}, s{S_CT}")
    make_srd(e, S_X, 52, 2048 * 576 * 2)
    e(f"s_mov_b32 s{S_W}, s64"); e(f"s_and_b32 s{S_W+1}, s65, 0xffff"); e(f"s_mul_i32 s{S_W+2}, s{S_RS}, 576"); e(f"s_mov_b32 s{S_W+3}, 0x20000")
    make_srd(e, S_GW, 60, 1152)
    e(f"s_lshl_b32 s{S_XO}, s{S_RB}, 2"); e(f"s_add_u32 s{S_XO}, s{S_XO}, s{S_WV}"); e(f"s_mul_i32 s{S_XO}, s{S_XO}, 36864")
    e(f"s_mul_i32 s{S_WO}, s66, 288")
    e(f"s_lshl_b32 s{S_WSTEP}, s{S_RS}, 6")
    if Opt.l1_touch: touches(e)
    prologue_rot(e)
    setup_common(e)
    e("s_mov_b32 s40, 0x3f803f80")
    e("s_cmp_eq_u32 s3, 2"); e("s_cbranch_scc1 L1_v")
    e("s_cmp_eq_u32 s3, 3"); e("s_cbranch_scc1 L1_h")
    e(f"s_cmp_eq_u32 s{S_CT}, 0"); e("s_cbranch_scc0 L1_qk")
    e(f"s_mov_b32 m0, {GW_OFF}"); e("s_nop 0")
    e(f"buffer_load_dwordx4 v{V_L16}, s[{S_GW}:{S_GW+3}], 0 offen lds")
    e(f"buffer_load_dwordx4 v{V_L16}, s[{S_GW}:{S_GW+3}], 0 offen offset:1024 lds")
    for variant in ("q0", "qk"):
        if variant == "qk": e.label("L1_qk")
        prologue_dma(e)
        waddr_heads(e, True)
        if variant == "q0":
            e("v_lshrrev_b32 v21, 5, v0"); e("v_lshlrev_b32 v21, 4, v21"); e(f"v_add_u32 v{V_GA}, {GW_OFF}, v21")
            e(f"s_lshl_b32 s69, s{S_KC}, 7"); e(f"v_add_u32 v{V_GA}, s69, v{V_GA}")
        zero_acc(e, variant)
        e("s_cmp_eq_u32 s3, 0")
        e(f"s_cselect_b32 s41, {hexf(QSCALE)}, 1.0"); e(f"s_mov_b32 s42, {LY.KF0}"); e(f"s_cselect_b32 s42, {LY.QF0}, s42"); e(f"s_mov_b32 s43, {LY.KX}"); e(f"s_cselect_b32 s43, {LY.QX}, s43")
        main_loop(e, variant)
        epi_qk(e, variant == "q0")
    e.label("L1_v")
    prologue_dma(e)
    waddr_heads(e, False)
    zero_acc(e, "v")
    main_loop(e, "v")
    epi_v(e)
    e.label("L1_h")
    prologue_dma(e)
    waddr_dense(e)
    e(f"s_lshl_b32 s69, s{S_WV}, 6"); e(f"v_add_u32 v{V_WC}, s69, v{V_WA}")
    zero_acc(e, "h")
    main_loop(e, "h")
    epi_h(e)
    e.label("L1_exit")
    e("s_endpgm")
    return e.text()
if __name__ == "__main__":
    t = gen()
    errs = check(t, "l1")
    for x in errs: print(x)
    print("instrs", sum(1 for l in t.split("\n") if l.startswith("    ")), "hazard errs", len(errs))
    assert all((n*3277)>>16 == n//20 for n in range(1280))
    open("l1.s","w").write(t)
```

```python
from gen_common import *
import gen_repack
NAME = "l1_kernel"
BLOCK = 512
SLOT = 36864
GW_OFF = 4 * SLOT
XCH_OFF = GW_OFF + 2048
LDS_BYTES = XCH_OFF + 3584 + 8*384
S_WS = 12; S_X = 16; S_W = 20; S_GW = 24
V_L16 = 1
V_XO = 2
V_WO = 6
V_XA = 216
V_WA = 11
V_GA = 14
V_ST = 15
V_CS = 212
ACC = 32
EX0 = 80
EX1 = 96
ECS = 112
XF = 128
WF = 144
GF = 192
ONE = 208
NVGPR = 220
QSCALE = math.log2(math.e) / math.sqrt(18.0)
TILES = {0: [0, 1], 1: [2, 3, 4]}
NWP = {0: 5, 1: 0}
S_WV, S_RB, S_CT, S_CQ = 8, 9, 10, 11
S_RS, S_XO, S_WO, S_XM, S_ST, S_DL, S_WSTEP, S_SLX, S_WM, S_T2, S_SLW, S_KX = 28, 29, 30, 31, 32, 33, 34, 35, 36, 37, 38, 39
S_KW, S_KC, S_GD, S_TT = 64, 65, 66, 56
S_WBACK, S_C128 = 60, 61
HEADS = [(0, 7), (1, 2), (3, 4), (5, 6)]

def dma_x(fg):
    if fg: return [[], [], [], []]
    o = [[f"s_add_u32 m0, s{S_SLX}, s{S_XM}", f"s_add_u32 s{S_KX}, s{S_KX}, 1", f"buffer_load_dwordx4 v{V_XO}, s[{S_X}:{S_X+3}], s{S_XO} offen lds"]]
    for i in range(1, 4):
        o.append([f"buffer_load_dwordx4 v{V_XO+i}, s[{S_X}:{S_X+3}], s{S_XO} offen offset:{i*1024} lds"])
    o[-1] += [f"s_cmp_eq_u32 s{S_KX}, 9", f"s_cselect_b32 s{S_KX}, 0, s{S_KX}", f"s_cselect_b32 s69, {(-1024) & 0xffffffff}, s{S_C128}", f"s_add_u32 s{S_XO}, s{S_XO}, s69",
              f"s_add_u32 s{S_SLX}, s{S_SLX}, {SLOT}", f"s_cmp_eq_u32 s{S_SLX}, {4*SLOT}", f"s_cselect_b32 s{S_SLX}, 0, s{S_SLX}"]
    return o
def dma_w(fg):
    if fg: return [[], [], [], [], []]
    o = [[f"s_add_u32 m0, s{S_SLW}, s{S_WM}", f"s_add_u32 s{S_KW}, s{S_KW}, 1", f"buffer_load_dwordx4 v{V_WO}, s[{S_W}:{S_W+3}], s{S_WO} offen lds"]]
    for i in range(1, 4):
        o.append([f"buffer_load_dwordx4 v{V_WO+i}, s[{S_W}:{S_W+3}], s{S_WO} offen offset:{i*1024} lds"])
    o.append(["s_add_u32 m0, m0, 4096", f"s_cmp_eq_u32 s{S_KW}, 9", f"buffer_load_dwordx4 v{V_WO+4}, s[{S_W}:{S_W+3}], s{S_WO} offen lds",
              f"s_cselect_b32 s{S_KW}, 0, s{S_KW}", f"s_cselect_b32 s69, s{S_WBACK}, s{S_WSTEP}", f"s_add_u32 s{S_WO}, s{S_WO}, s69",
              f"s_add_u32 s{S_SLW}, s{S_SLW}, {SLOT}", f"s_cmp_eq_u32 s{S_SLW}, {4*SLOT}", f"s_cselect_b32 s{S_SLW}, 0, s{S_SLW}"])
    return o

def reads(s, variant, fg):
    o = [f"ds_read_b128 {vr(XF+4*s,4)}, v{V_XA+s}"]
    if variant == "q0" and fg == 0: o.append(f"ds_read_b128 {vr(GF+4*s,4)}, v{V_GA} offset:{32*s}")
    for i, T in enumerate(TILES[fg]):
        for q in range(2):
            o.append(f"ds_read_b64_tr_b16 {vr(WF+12*s+4*i+2*q,2)}, v{V_WA+i} offset:{(16*s+4*q)*320}")
    return o

def advance_addrs(variant, fg):
    o = [f"v_add_u32 v{r}, s{S_DL}, v{r}" for r in list(range(V_XA, V_XA + 4)) + list(range(V_WA, V_WA + len(TILES[fg])))]
    if variant == "q0" and fg == 0:
        o += [f"s_add_u32 s{S_KC}, s{S_KC}, 1", f"s_cmp_eq_u32 s{S_KC}, 9", f"s_cselect_b32 s{S_KC}, 0, s{S_KC}",
              f"s_cselect_b32 s{S_GD}, {(-1024) & 0xffffffff}, s{S_C128}", f"v_add_u32 v{V_GA}, s{S_GD}, v{V_GA}"]
    return o

def mfmas(s, variant, fg):
    xf = vr(XF + 4 * s, 4); one = vr(ONE, 4)
    m = []
    for i, T in enumerate(TILES[fg]):
        wf = vr(WF + 12 * s + 4 * i, 4); a = vr(ACC + 16 * i, 16)
        m.append(f"v_mfma_f32_32x32x16_bf16 {a}, {xf}, {wf}, {a}" if variant == "v" else f"v_mfma_f32_32x32x16_bf16 {a}, {wf}, {xf}, {a}")
    if variant == "q0" and fg == 0:
        m.append(f"v_mfma_f32_32x32x16_bf16 {vr(EX0,16)}, {vr(GF+4*s,4)}, {xf}, {vr(EX0,16)}")
    if variant == "h" and fg == 0:
        m.append(f"v_mfma_f32_32x32x16_bf16 {vr(EX0,16)}, {one}, {xf}, {vr(EX0,16)}")
        if Opt.h_gram: m.append(f"v_mfma_f32_32x32x16_bf16 {vr(EX1,16)}, {xf}, {xf}, {vr(EX1,16)}")
    return m

def main_loop(e, variant, fg):
    lab = f"L1_loop_{variant}{fg}"
    nrd = len(reads(0, variant, fg))
    nw = NWP[fg]
    e(f"s_mov_b32 s{S_ST}, 0")
    if fg == 0: e("s_waitcnt vmcnt(13)")
    e("s_barrier")
    stamp(e, 2, 'any')
    e.extend(reads(0, variant, fg)); e.extend(reads(1, variant, fg))
    e(".p2align 6")
    e.label(lab)
    dx = dma_x(fg); dw = dma_w(fg)
    place = {(0, 0): dw[0], (0, 1): dw[1] + dw[2], (1, 0): dw[3], (1, 1): dw[4], (2, 0): dx[0], (2, 1): dx[1], (3, 0): dx[2], (3, 1): dx[3]}
    touch = Opt.late_touch and Opt.touch_in_loop and fg == 1 and variant != "h"
    for s in range(4):
        pre = []
        if s == 2:
            if fg == 0:
                pre = ["s_waitcnt vmcnt(9)", "s_barrier",
                       f"s_cmp_lt_u32 s{S_ST}, 6", f"s_cselect_b32 s{S_XO}, s{S_XO}, 0x40000000", f"s_cselect_b32 s{S_WO}, s{S_WO}, 0x40000000"]
            else:
                pre = ["s_barrier"]
                if Opt.thin_touch and variant != "h":
                    f0 = Opt.thin_from; nl = -(-54 // (9 - f0))
                    t = [f"s_mov_b64 exec, {(1 << nl) - 1}", "buffer_load_dword v31, v30, s[44:47], s62 offen", "s_mov_b64 exec, -1", f"s_add_u32 s62, s62, {128*nl}"]
                    if f0: t = [f"s_cmp_ge_u32 s{S_ST}, {f0}", f"s_cbranch_scc0 {lab}_tt"] + t + [f"{lab}_tt:"]
                    pre += t
                if touch:
                    for k, stg in enumerate(Opt.touch_stages[:len(late_issue())]):
                        pre += [f"s_cmp_eq_u32 s{S_ST}, {stg}", f"s_cbranch_scc0 {lab}_t{k}", late_issue()[k], f"{lab}_t{k}:"]
        rd = reads((s + 2) % 4, variant, fg)
        e(f"s_waitcnt lgkmcnt({nrd})")
        mf = mfmas(s, variant, fg)
        n = len(rd); nm = len(mf)
        per = (n + nm - 1) // nm
        extra = []
        if variant == "h" and fg == 0 and not Opt.h_gram:
            for j in range(4):
                extra += [f"v_lshlrev_b32 v{20+(j%2)}, 16, v{XF+4*s+j}", f"v_and_b32 v{26+(j%2)}, 0xffff0000, v{XF+4*s+j}",
                          f"v_fmac_f32 v{V_ST+2}, v{20+(j%2)}, v{20+(j%2)}", f"v_fmac_f32 v{V_ST+3}, v{26+(j%2)}, v{26+(j%2)}"]
        for T in range(nm):
            e(mf[T])
            if T == 0: e.extend(pre)
            e.extend(rd[T * per:(T + 1) * per])
            e.extend(extra[T * len(extra) // nm:(T + 1) * len(extra) // nm])
            e.extend(place.get((s, T), []))
        if variant == "h":
            e(f"s_cmp_eq_u32 s{S_TT}, {s}")
            e(f"s_cbranch_scc0 {lab}_cs{s}")
            for j in range(4):
                for i in range(len(TILES[fg])):
                    e(f"v_lshlrev_b32 v{22+i}, 16, v{WF+12*s+4*i+j}")
                for i in range(len(TILES[fg])):
                    e(f"v_add_f32 v{V_CS+i}, v{V_CS+i}, v{22+i}")
                for i in range(len(TILES[fg])):
                    e(f"v_and_b32 v{22+i}, 0xffff0000, v{WF+12*s+4*i+j}")
                for i in range(len(TILES[fg])):
                    e(f"v_add_f32 v{V_CS+i}, v{V_CS+i}, v{22+i}")
            e.label(f"{lab}_cs{s}")
        if s == 1:
            e(f"s_add_u32 s{S_T2}, s{S_ST}, 1")
            e(f"s_and_b32 s{S_DL}, s{S_T2}, 3")
            e(f"s_cmp_eq_u32 s{S_DL}, 0")
            e(f"s_cselect_b32 s{S_DL}, s68, s67")
            e.extend(advance_addrs(variant, fg))
    e(f"s_add_u32 s{S_ST}, s{S_ST}, 1")
    e(f"s_cmp_lt_u32 s{S_ST}, 9")
    e(f"s_cbranch_scc1 {lab}")
    stamp(e, 5, 'any')
    e("s_waitcnt lgkmcnt(0)")
    e("s_nop 7")

def setup_x(e, fg):
    if Opt.fast_setup:
        e("v_lshrrev_b32 v21, 3, v0"); e("v_lshrrev_b32 v22, 4, v0"); e("v_and_b32 v23, 7, v0"); e("v_xor_b32 v22, v22, v23")
        e("v_mul_u32_u24 v21, 1152, v21"); e("v_lshlrev_b32 v22, 4, v22"); e(f"v_add_u32 v{V_XO}, v21, v22")
        e(f"v_xor_b32 v21, 64, v{V_XO}")
        e(f"v_add_u32 v{V_XO+1}, {9216-1024}, v21"); e(f"v_add_u32 v{V_XO+2}, {2*(9216-1024)}, v{V_XO}"); e(f"v_add_u32 v{V_XO+3}, {3*(9216-1024)}, v21")
    else:
        for i in range(4):
            e("v_lshrrev_b32 v21, 3, v0"); e(f"v_add_u32 v21, {8*i}, v21")
            e("v_lshrrev_b32 v22, 1, v21"); e("v_and_b32 v22, 7, v22"); e("v_and_b32 v23, 7, v0"); e("v_xor_b32 v22, v22, v23")
            e("v_mul_u32_u24 v21, 1152, v21"); e("v_lshlrev_b32 v22, 4, v22"); e("v_add_u32 v21, v21, v22")
            if i: e(f"v_subrev_u32 v{V_XO+i}, {1024*i}, v21")
            else: e(f"v_mov_b32 v{V_XO}, v21")
    e(f"s_lshl_b32 s{S_XM}, s{S_TT}, 12")
def setup_w(e, fg):
    e(f"s_mul_i32 s{S_WM}, s{S_TT}, 5")
    if Opt.fast_setup:
        e(f"s_lshl_b32 s69, s{S_TT}, 4"); e(f"s_mul_i32 s69, s69, s{S_RS}")
        e("v_mov_b32 v25, 0x40000000")
        for i in range(5):
            e(f"v_add_u32 v21, {64*i}, v0") if i else e("v_mov_b32 v21, v0")
            e("v_mul_u32_u24 v22, 3277, v21"); e("v_lshrrev_b32 v22, 16, v22")
            e("v_mul_u32_u24 v23, 20, v22"); e("v_sub_u32 v23, v21, v23")
            e(f"v_mul_lo_u32 v22, v22, s{S_RS}")
            e("v_cmp_lt_u32 vcc, 17, v23")
            e("v_subrev_u32 v24, 2, v23"); e(f"v_add_u32 v22, s69, v22"); e("v_cndmask_b32 v24, v23, v24, vcc")
            e("v_and_b32 v21, 30, v23"); e("v_cmp_eq_u32 vcc, 16, v21"); e("v_lshl_add_u32 v22, v24, 4, v22")
            if i % 4: e(f"v_subrev_u32 v22, {1024*(i%4)}, v22")
            else: e("s_nop 0")
            e(f"v_cndmask_b32 v{V_WO+i}, v22, v25, vcc")
    else:
        e(f"s_lshl_b32 s69, s{S_WM}, 6")
        for i in range(5):
            e(f"v_add_u32 v21, s69, v0")
            if i: e(f"v_add_u32 v21, {64*i}, v21")
            e("v_mul_u32_u24 v22, 3277, v21"); e("v_lshrrev_b32 v22, 16, v22")
            e("v_mul_u32_u24 v23, 20, v22"); e("v_sub_u32 v23, v21, v23")
            e(f"v_mul_lo_u32 v22, v22, s{S_RS}")
            e("v_cmp_lt_u32 vcc, 17, v23"); e("v_subrev_u32 v24, 2, v23"); e("v_mov_b32 v25, 0x40000000"); e("v_cndmask_b32 v24, v23, v24, vcc")
            e("v_lshlrev_b32 v24, 4, v24"); e("v_add_u32 v22, v22, v24")
            e("v_and_b32 v24, 30, v23"); e("v_cmp_eq_u32 vcc, 16, v24")
            if i % 4: e(f"v_subrev_u32 v22, {1024*(i%4)}, v22")
            else: e("s_nop 0")
            e("s_nop 0")
            e(f"v_cndmask_b32 v{V_WO+i}, v22, v25, vcc")
    e(f"s_lshl_b32 s{S_WM}, s{S_WM}, 10"); e(f"s_add_u32 s{S_WM}, s{S_WM}, 16384")
def setup_xread(e):
    e("v_and_b32 v21, 31, v0"); e("v_lshrrev_b32 v22, 5, v0")
    e("v_lshrrev_b32 v23, 1, v21"); e("v_and_b32 v23, 7, v23"); e("v_xor_b32 v23, v23, v22"); e("v_lshlrev_b32 v23, 4, v23")
    e("v_lshlrev_b32 v24, 7, v21"); e("v_add_u32 v23, v23, v24")
    e(f"s_lshl_b32 s69, s{S_TT}, 12"); e(f"v_add_u32 v{V_XA}, s69, v23")
    for s in range(1, 4): e(f"v_xor_b32 v{V_XA+s}, {32*s}, v{V_XA}")

def lane_parts(e):
    e("v_lshrrev_b32 v21, 5, v0"); e("v_bfe_u32 v22, v0, 4, 1"); e("v_bfe_u32 v23, v0, 2, 2"); e("v_and_b32 v24, 3, v0")
    e("v_and_b32 v25, 1, v0"); e("v_lshlrev_b32 v25, 1, v25"); e("v_bfe_u32 v26, v0, 1, 1"); e("v_or_b32 v25, v25, v26")
    e("v_lshlrev_b32 v26, 3, v21"); e("v_add_u32 v26, v26, v23"); e("v_mul_u32_u24 v26, 320, v26"); e("v_add_u32 v26, 16384, v26")
def waddr(e, variant, fg):
    lane_parts(e)
    dense = variant == "h"
    q = 24 if variant == "v" else 25
    e(f"v_lshlrev_b32 v27, 3, v{q}"); e("v_add_u32 v27, v27, v26")
    e("v_lshlrev_b32 v28, 5, v22"); e("v_add_u32 v28, v27, v28")
    for i, T in enumerate(TILES[fg]):
        d = V_WA + i
        if dense:
            if T < 4: e(f"v_add_u32 v{d}, {64*T}, v28")
            else: e(f"v_add_u32 v{d}, 288, v27")
        else:
            if T == 0: e("v_mul_u32_u24 v29, 288, v22"); e(f"v_add_u32 v{d}, v27, v29")
            elif T < 4: e(f"v_add_u32 v{d}, {40+72*(T-1)}, v28")
            else: e("v_mul_u32_u24 v29, 72, v24"); e("v_add_u32 v29, v29, v26"); e(f"v_add_u32 v{d}, 32, v29")

def zero_acc(e, variant, fg):
    for i in range(4): e(f"v_mov_b32 v{XF+i}, 0")
    if variant == "h":
        for i in range(4): e(f"v_mov_b32 v{ONE+i}, 0x3f803f80")
        for i in range(4): e(f"v_mov_b32 v{V_ST+i}, 0")
        for i in range(3): e(f"v_mov_b32 v{V_CS+i}, 0")
    e("s_nop 1")
    z = vr(XF, 4)
    for i in range(len(TILES[fg])): e(f"v_mfma_f32_32x32x16_bf16 {vr(ACC+16*i,16)}, {z}, {z}, 0")
    if fg == 0 and variant in ("q0", "h"): e(f"v_mfma_f32_32x32x16_bf16 {vr(EX0,16)}, {z}, {z}, 0")
    if fg == 0 and variant == "h" and Opt.h_gram: e(f"v_mfma_f32_32x32x16_bf16 {vr(EX1,16)}, {z}, {z}, 0")

def prologue_dma(e, fg):
    if fg == 0:
        e(f"s_mov_b32 s{S_SLX}, 0"); e(f"s_mov_b32 s{S_SLW}, 0")
        setup_x(e, fg)
        for grp in dma_x(fg): e.extend(grp)
        setup_w(e, fg)
        for grp in dma_w(fg): e.extend(grp)
        for grp in dma_x(fg): e.extend(grp)
        for grp in dma_w(fg): e.extend(grp)
        for grp in dma_x(fg): e.extend(grp)
    stamp(e, 1, 'any')
    setup_xread(e)

def late_setup(e):
    e("s_mov_b64 exec, -1")
    e(f"s_load_dwordx2 s[52:53], s[0:1], {KA_W3}"); e(f"s_load_dwordx2 s[54:55], s[0:1], {KA_W4}")
    e(f"s_load_dwordx2 s[40:41], s[0:1], {KA_W2}"); e(f"s_load_dwordx2 s[58:59], s[0:1], {KA_WO}")
    e(f"s_lshl_b32 s44, s{S_TT}, 6"); e("v_add_u32 v30, s44, v0"); e("v_lshlrev_b32 v30, 7, v30")
    e(f"s_lshl_b32 s69, s{S_CT}, 4"); e(f"s_add_u32 s69, s69, s{S_RB}")
    e("s_waitcnt lgkmcnt(0)")
    for rep, (srd, so) in enumerate(((44, 62), (48, 63))):
        if rep == 0 and True:
            e("s_add_u32 s70x, s69, 0".replace("s70x", f"s{S_T2}"))
        u = f"s{S_GD}"
        if rep == 0: e(f"s_add_u32 {u}, s69, {324 if Opt.late_sel == 'w2' else 192}")
        else: e(f"s_mov_b32 {u}, s69")
        e(f"s_mov_b32 s{srd}, s52"); e(f"s_mov_b32 s{srd+1}, s53"); e(f"s_mov_b32 s{srd+2}, {576*4608*2}"); e(f"s_mov_b32 s{so}, {u}")
        for lo, p, size in ((162, 54, 576*4608*2), (324, 40, 576*576*2), (345, 58, 576*576*2)):
            e(f"s_cmp_ge_u32 {u}, {lo}")
            e(f"s_cselect_b32 s{srd}, s{p}, s{srd}"); e(f"s_cselect_b32 s{srd+1}, s{p+1}, s{srd+1}")
            if size != 576*4608*2: e(f"s_cselect_b32 s{srd+2}, {size}, s{srd+2}")
            e(f"s_sub_u32 s{S_T2}, {u}, {lo}"); e(f"s_cmp_ge_u32 {u}, {lo}"); e(f"s_cselect_b32 s{so}, s{S_T2}, s{so}")
        e(f"s_and_b32 s{srd+1}, s{srd+1}, 0xffff"); e(f"s_mov_b32 s{srd+3}, 0x20000")
        e(f"s_lshl_b32 s{so}, s{so}, 15")
def late_issue():
    l = ["buffer_load_dword v31, v30, s[44:47], s62 offen", "buffer_load_dword v31, v30, s[48:51], s63 offen"]
    return l[:1] if Opt.late_sel == 'w2' else l

def epi_qk(e, fg, gate):
    e(f"s_lshl_b32 s44, s{S_RB}, 2"); e(f"s_add_u32 s44, s44, s{S_TT}")
    e(f"s_lshl_b32 s45, s{S_CQ}, 3")
    e("s_lshl_b32 s46, s45, 16"); e("s_lshl_b32 s47, s44, 10"); e("s_add_u32 s46, s46, s47"); e("s_add_u32 s46, s46, s42")
    P = 128
    for i, T in enumerate(TILES[fg]):
        if T == 4: continue
        for j in range(16): e(f"v_mul_f32 v{ACC+16*i+j}, s41, v{ACC+16*i+j}")
        for hh in range(2):
            p = P + 8 * (i % 2) + 4 * hh
            for j in range(4): e(f"v_cvt_pk_bf16_f32 v{p+j}, v{ACC+16*i+8*hh+2*j}, v{ACC+16*i+8*hh+2*j+1}")
            e(f"s_add_u32 s47, s46, {HEADS[T][hh]*65536}")
            e(f"buffer_store_dwordx4 {vr(p,4)}, v{V_L16}, s[{S_WS}:{S_WS+3}], s47 offen")
    if fg == 1:
        a = ACC + 32
        for j in range(8): e(f"v_mul_f32 v{a+j}, s41, v{a+j}")
        for j in range(4): e(f"v_cvt_pk_bf16_f32 v{144+j}, v{a+2*j}, v{a+2*j+1}")
        e("v_and_b32 v21, 31, v0"); e("v_lshlrev_b32 v21, 2, v21"); e("v_lshrrev_b32 v29, 5, v0"); e("v_lshlrev_b32 v29, 14, v29"); e("v_add_u32 v21, v21, v29")
        e("s_lshl_b32 s46, s45, 13"); e("s_lshl_b32 s47, s44, 7"); e("s_add_u32 s46, s46, s47"); e("s_add_u32 s46, s46, s43")
        for j, hoff in enumerate([0, 1, 4, 5]):
            e(f"s_add_u32 s47, s46, {hoff*8192}")
            e(f"buffer_store_dword v{144+j}, v21, s[{S_WS}:{S_WS+3}], s47 offen")
    if gate:
        e(f"v_mul_f32 v23, {hexf(-math.log2(math.e))}, v{EX0}"); e("v_exp_f32 v23, v23"); e("s_nop 0"); e("v_add_f32 v23, 1.0, v23"); e("v_rcp_f32 v23, v23")
        e("v_and_b32 v21, 31, v0"); e("v_lshlrev_b32 v21, 2, v21")
        e("s_lshl_b32 s47, s44, 7"); e(f"s_add_u32 s47, s47, {LY.G}")
        e("s_mov_b64 exec, 0xffffffff")
        e(f"buffer_store_dword v23, v21, s[{S_WS}:{S_WS+3}], s47 offen")
    if Opt.late_touch and not Opt.touch_in_loop and fg == 1:
        late_setup(e); e.extend(late_issue())
    if Opt.repack_l1: e("s_branch L1_tail")
    else: fin(e)

def epi_v(e, fg):
    e(f"s_lshl_b32 s44, s{S_RB}, 2"); e(f"s_add_u32 s44, s44, s{S_TT}")
    e(f"s_lshl_b32 s45, s{S_CQ}, 3")
    e(f"s_mul_i32 s46, s45, {LY.VHEAD}"); e("s_mul_i32 s47, s44, 1216"); e("s_add_u32 s46, s46, s47"); e(f"s_add_u32 s46, s46, {LY.VF}")
    e("v_lshrrev_b32 v21, 5, v0"); e("v_mul_u32_u24 v21, 304, v21")
    e("v_and_b32 v22, 15, v0"); e("v_lshlrev_b32 v22, 4, v22"); e("v_add_u32 v22, v22, v21")
    e("v_bfe_u32 v23, v0, 4, 1")
    e(f"s_mov_b32 s47, {LY.VHEAD}")
    e("v_mul_lo_u32 v24, v23, s47")
    e("v_add_u32 v25, v22, v24")
    if fg == 0: e("v_mul_u32_u24 v24, 7, v24"); e("v_add_u32 v26, v22, v24")
    P = 128
    for i, T in enumerate(TILES[fg]):
        if T == 4: continue
        ad = 26 if T == 0 else 25
        hb = 0 if T == 0 else HEADS[T][0]
        e(f"s_add_u32 s47, s46, {hb*LY.VHEAD}")
        for hh in range(2):
            p = P + 8 * (i % 2) + 4 * hh
            for j in range(4): e(f"v_cvt_pk_bf16_f32 v{p+j}, v{ACC+16*i+8*hh+2*j}, v{ACC+16*i+8*hh+2*j+1}")
            e(f"buffer_store_dwordx4 {vr(p,4)}, v{ad}, s[{S_WS}:{S_WS+3}], s47 offen offset:{608*hh}")
    if fg == 1:
        a = ACC + 32
        e("v_and_b32 v22, 31, v0")
        e("v_lshrrev_b32 v23, 2, v22"); e("v_lshlrev_b32 v23, 1, v23"); e("v_bfe_u32 v24, v22, 1, 1"); e("v_add_u32 v23, v23, v24")
        e("v_and_b32 v24, 1, v22"); e("v_add_u32 v24, 16, v24")
        e("v_cmp_lt_u32 vcc, 15, v22"); e("v_subrev_u32 v25, 16, v22"); e("v_mov_b32 v27, 18")
        e("v_cndmask_b32 v23, v23, v25, vcc"); e("v_cndmask_b32 v24, v24, v27, vcc")
        e(f"s_mov_b32 s47, {LY.VHEAD}"); e("v_mul_lo_u32 v23, v23, s47"); e("v_lshlrev_b32 v24, 4, v24"); e("v_add3_u32 v23, v23, v24, v21")
        e("v_mov_b32 v27, 0x3f803f80")
        for hh in range(2):
            for j in range(4):
                e(f"v_cvt_pk_bf16_f32 v{144+4*hh+j}, v{a+8*hh+2*j}, v{a+8*hh+2*j+1}")
                e(f"v_cndmask_b32 v{144+4*hh+j}, v{144+4*hh+j}, v27, vcc")
        e("v_cmp_gt_u32 vcc, 24, v22"); e("s_nop 1")
        e("s_and_saveexec_b64 s[48:49], vcc")
        for hh in range(2):
            e(f"buffer_store_dwordx4 {vr(144+4*hh,4)}, v23, s[{S_WS}:{S_WS+3}], s46 offen offset:{608*hh}")
    if Opt.late_touch and not Opt.touch_in_loop and fg == 1:
        late_setup(e); e.extend(late_issue())
    if Opt.repack_l1: e("s_branch L1_tail")
    else: fin(e)

def epi_h(e, fg):
    ST = 22
    nT = len(TILES[fg]); T0 = TILES[fg][0]
    for i in range(nT): e(f"v_mov_b32 v{128+i}, v{V_CS+i}")
    e("v_and_b32 v21, 31, v0"); e("v_lshlrev_b32 v21, 2, v21")
    for i in range(nT): e(f"v_permlane32_swap_b32 v{128+i}, v{V_CS+i}")
    for i in range(nT): e(f"v_add_f32 v{V_CS+i}, v{128+i}, v{V_CS+i}")
    e(f"s_mul_i32 s44, s{S_TT}, 640"); e(f"s_add_u32 s44, s44, {XCH_OFF + 128*T0}"); e("v_add_u32 v29, s44, v21")
    for i in range(nT): e(f"ds_write_b32 v29, v{V_CS+i} offset:{128*i}")
    e("v_lshlrev_b32 v27, 1, v21"); e(f"s_lshl_b32 s44, s{S_TT}, 8"); e(f"s_add_u32 s44, s44, {XCH_OFF+2560}"); e("v_add_u32 v27, s44, v27")
    if fg == 0:
        if Opt.h_gram:
            for b, (bit, sp) in enumerate(((0, 44), (1, 46), (3, 48), (4, 52))):
                e(f"v_bfe_u32 v28, v0, {bit}, 1"); e(f"v_cmp_eq_u32 s[{sp}:{sp+1}], 1, v28")
            e("v_bfe_u32 v28, v0, 2, 1"); e("v_lshrrev_b32 v26, 5, v0"); e("v_cmp_eq_u32 vcc, v26, v28")
            e("s_nop 0")
            for i in range(8): e(f"v_cndmask_b32 v{EX1+i}, v{EX1+2*i}, v{EX1+2*i+1}, s[44:45]")
            for i in range(4): e(f"v_cndmask_b32 v{EX1+i}, v{EX1+2*i}, v{EX1+2*i+1}, s[46:47]")
            for i in range(2): e(f"v_cndmask_b32 v{EX1+i}, v{EX1+2*i}, v{EX1+2*i+1}, s[48:49]")
            e(f"v_cndmask_b32 v{EX1}, v{EX1}, v{EX1+1}, s[52:53]")
            e(f"v_cndmask_b32 v{ST+1}, 0, v{EX1}, vcc")
        else:
            e(f"v_add_f32 v{ST+1}, v{V_ST+2}, v{V_ST+3}")
        e(f"v_mov_b32 v25, v{ST+1}"); e(f"v_mul_f32 v{ST}, {hexf(1/576)}, v{EX0}"); e("s_nop 0")
        e(f"v_permlane32_swap_b32 v25, v{ST+1}")
        e(f"v_add_f32 v{ST+1}, v25, v{ST+1}")
        e(f"v_mul_f32 v{ST+1}, {hexf(1/576)}, v{ST+1}")
        e(f"v_fma_f32 v{ST+1}, -v{ST}, v{ST}, v{ST+1}"); e(f"v_max_f32 v{ST+1}, 0, v{ST+1}"); e(f"v_add_f32 v{ST+1}, {hexf(1e-5)}, v{ST+1}")
        e(f"ds_write_b64 v27, {vr(ST,2)}")
    e("s_waitcnt lgkmcnt(0)"); e("s_barrier")
    stamp(e, 3, 'any')
    if fg == 1: e(f"ds_read_b64 {vr(ST,2)}, v27")
    e(f"v_add_u32 v29, {XCH_OFF + 128*T0}, v21")
    for i in range(nT):
        for wv in range(4): e(f"ds_read_b32 v{144+4*i+wv}, v29 offset:{640*wv+128*i}")
    e("s_waitcnt lgkmcnt(0)")
    for i in range(nT):
        e(f"v_add_f32 v{144+4*i}, v{144+4*i}, v{145+4*i}"); e(f"v_add_f32 v{146+4*i}, v{146+4*i}, v{147+4*i}"); e(f"v_add_f32 v{144+4*i}, v{144+4*i}, v{146+4*i}")
    e(f"s_mul_i32 s44, s{S_WV}, 384"); e(f"s_add_u32 s44, s44, {XCH_OFF+3584}"); e("v_add_u32 v29, s44, v21")
    for i in range(nT): e(f"ds_write_b32 v29, v{144+4*i} offset:{128*i}")
    e("v_lshrrev_b32 v21, 5, v0"); e("v_lshlrev_b32 v21, 4, v21"); e("v_add_u32 v29, s44, v21")
    e("s_waitcnt lgkmcnt(0)")
    stamp(e, 4, 'any')
    SG, RR, AA, BB, MM, SS = 128, 129, 130, 132, 134, 136
    e(f"v_sqrt_f32 v{SG}, v{ST+1}"); e("s_nop 0"); e(f"v_rcp_f32 v{RR}, v{SG}"); e("s_nop 0")
    e(f"v_mul_f32 v{BB}, {hexf(GELU_C0)}, v{RR}"); e(f"v_mul_f32 v{AA}, v{RR}, v{RR}"); e(f"v_mul_f32 v{AA}, v{AA}, v{RR}"); e(f"v_mul_f32 v{AA}, {hexf(GELU_C1)}, v{AA}")
    e(f"v_mov_b32 v{AA+1}, v{AA}"); e(f"v_mov_b32 v{BB+1}, v{BB}"); e(f"v_mov_b32 v{SS}, v{SG}"); e(f"v_mov_b32 v{SS+1}, v{SG}")
    e(f"v_sub_f32 v{MM}, 0, v{ST}"); e(f"v_mov_b32 v{MM+1}, v{MM}")
    e(f"s_lshl_b32 s45, s{S_RB}, 7"); e(f"s_lshl_b32 s46, s{S_TT}, 5"); e("s_add_u32 s45, s45, s46")
    e(f"s_lshr_b32 s46, s{S_CQ}, 1"); e("s_add_u32 s46, s46, 1"); e("s_sub_u32 s47, 0, s46"); e(f"s_bitcmp1_b32 s{S_CQ}, 0"); e("s_cselect_b32 s46, s47, s46")
    e("s_add_u32 s45, s45, s46")
    e("v_and_b32 v21, 31, v0"); e("v_add_u32 v21, s45, v21")
    e("v_cmp_gt_u32 vcc, 2048, v21")
    e("v_and_b32 v21, 2047, v21")
    e("v_lshrrev_b32 v30, 5, v21"); e("s_mov_b32 s47, 36864"); e("v_mul_lo_u32 v30, v30, s47")
    e("v_and_b32 v21, 31, v21"); e("v_lshlrev_b32 v21, 4, v21"); e("v_add_u32 v30, v30, v21")
    e("v_lshrrev_b32 v21, 5, v0"); e("v_lshlrev_b32 v21, 9, v21"); e("v_add_u32 v30, v30, v21")
    e("s_mov_b64 s[50:51], vcc")
    u0 = 2 * TILES[fg][0]
    e(f"s_mul_i32 s47, s{S_CQ}, 9216"); e(f"s_add_u32 s47, s47, {LY.HS + u0*1024}")
    stamp(e, 6, 'any')
    CS = 144; TT = 160
    def pk(op, d, a, b, c=None):
        s = f"v_pk_{op}_f32 {vr(d,2)}, {vr(a,2)}, {vr(b,2)}"
        if c is not None: s += f", {vr(c,2)}"
        return s
    u = 0
    for i, T in enumerate(TILES[fg]):
        nj = 4 if T < 4 else 2
        for j in range(nj): e(f"ds_read_b128 {vr(CS+4*j,4)}, v29 offset:{128*i+32*j}")
        e("s_waitcnt lgkmcnt(0)")
        for half in range(nj // 2):
            a = ACC + 16 * i + 8 * half; cs = CS + 8 * half
            for k in range(0, 8, 2): e(pk("fma", a + k, MM, cs + k, a + k))
            for k in range(0, 8, 2): e(pk("mul", TT + k, a + k, a + k))
            for k in range(0, 8, 2): e(pk("fma", TT + k, TT + k, AA, BB))
            for k in range(0, 8, 2): e(pk("mul", TT + k, a + k, TT + k))
            for k in range(8): e(f"v_exp_f32 v{TT+k}, v{TT+k}")
            for k in range(0, 8, 2): e(pk("fma", TT + k, TT + k, SS, SS))
            for k in range(8): e(f"v_rcp_f32 v{TT+k}, v{TT+k}")
            for k in range(0, 8, 2): e(pk("mul", a + k, a + k, TT + k))
            p = 168 + 4 * (u % 2)
            for j in range(4): e(f"v_cvt_pk_bf16_f32 v{p+j}, v{a+2*j}, v{a+2*j+1}")
            for j in range(4): e(f"v_cndmask_b32 v{p+j}, 0, v{p+j}, s[50:51]")
            e(f"buffer_store_dwordx4 {vr(p,4)}, v30, s[{S_WS}:{S_WS+3}], s47 offen offset:{(u%4)*1024}")
            if u % 4 == 3: e("s_add_u32 s47, s47, 4096")
            u += 1
    fin(e)

def role(e, variant, fg):
    if variant == "q0" and fg == 0:
        e(f"s_mov_b32 m0, {GW_OFF}"); e("s_nop 0")
        e(f"buffer_load_dwordx4 v{V_L16}, s[{S_GW}:{S_GW+3}], 0 offen lds")
        e(f"buffer_load_dwordx4 v{V_L16}, s[{S_GW}:{S_GW+3}], 0 offen offset:1024 lds")
    prologue_dma(e, fg)
    waddr(e, variant, fg)
    if variant == "q0" and fg == 0:
        e("v_lshrrev_b32 v21, 5, v0"); e("v_lshlrev_b32 v21, 4, v21"); e(f"v_add_u32 v{V_GA}, {GW_OFF}, v21")
        e(f"s_lshl_b32 s69, s{S_KC}, 7"); e(f"v_add_u32 v{V_GA}, s69, v{V_GA}")
    if Opt.late_touch and Opt.touch_in_loop and fg == 1 and variant != "h": late_setup(e)
    if Opt.thin_touch and fg == 1 and variant != "h":
        e(f"s_load_dwordx2 s[52:53], s[0:1], {KA_W3}")
        e(f"s_lshl_b32 s69, s{S_CT}, 4"); e(f"s_add_u32 s69, s69, s{S_RB}"); e("s_lshl_b32 s69, s69, 2"); e(f"s_add_u32 s69, s69, s{S_TT}")
        e(f"s_mul_i32 s62, s69, {54*128}")
        e("v_lshlrev_b32 v30, 7, v0")
        e("s_waitcnt lgkmcnt(0)")
        make_srd(e, 44, 52, 576 * 4608 * 2)
    zero_acc(e, variant, fg)
    if variant in ("q0", "qk"):
        e("s_cmp_eq_u32 s3, 0")
        e(f"s_cselect_b32 s41, {hexf(QSCALE)}, 1.0"); e(f"s_mov_b32 s42, {LY.KF0}"); e(f"s_cselect_b32 s42, {LY.QF0}, s42"); e(f"s_mov_b32 s43, {LY.KX}"); e(f"s_cselect_b32 s43, {LY.QX}, s43")
    main_loop(e, variant, fg)
    if variant in ("q0", "qk"): epi_qk(e, fg, variant == "q0" and fg == 0)
    elif variant == "v": epi_v(e, fg)
    else: epi_h(e, fg)

def gen():
    e = Emit()
    kernel_head(e, NAME)
    Diag.kid = 0
    e("s_cmp_ge_u32 s2, 256")
    e("s_cbranch_scc1 L1_exit")
    e(f"s_load_dwordx2 s[4:5], s[0:1], {KA_WS}")
    e(f"s_load_dwordx4 s[52:55], s[0:1], {KA_XA}")
    e(f"s_load_dwordx2 s[58:59], s[0:1], {KA_W1}")
    e(f"s_load_dwordx2 s[60:61], s[0:1], {KA_GW}")
    e("s_and_b32 s6, s2, 7"); e("s_lshr_b32 s7, s2, 3")
    e("v_lshrrev_b32 v1, 6, v0"); e("v_and_b32 v0, 63, v0")
    e(f"v_readfirstlane_b32 s{S_WV}, v1")
    e(f"s_and_b32 s{S_RB}, s6, 3"); e(f"s_lshl_b32 s{S_RB}, s{S_RB}, 2"); e("s_and_b32 s3, s7, 3"); e(f"s_add_u32 s{S_RB}, s{S_RB}, s3")
    e(f"s_lshr_b32 s{S_CQ}, s6, 2"); e(f"s_lshl_b32 s{S_CQ}, s{S_CQ}, 1"); e("s_bfe_u32 s3, s7, 0x10002"); e(f"s_add_u32 s{S_CQ}, s{S_CQ}, s3")
    e("s_lshr_b32 s3, s7, 3"); e(f"s_lshl_b32 s{S_CT}, s3, 2"); e(f"s_add_u32 s{S_CT}, s{S_CT}, s{S_CQ}")
    e(f"v_lshlrev_b32 v{V_L16}, 4, v0")
    e(f"s_and_b32 s{S_TT}, s{S_WV}, 3")
    e("s_waitcnt lgkmcnt(0)")
    make_srd(e, S_WS, 4, LY.WS_END)
    stamp(e, 0, 'any')
    dbg_start(e)
    if Opt.fuse_l2 and Opt.cnt_ws:
        e("s_cmp_eq_u32 s2, 0"); e("s_cbranch_scc0 L1_nocnt")
        e(f"s_cmp_eq_u32 s{S_WV}, 7"); e("s_cbranch_scc0 L1_nocnt")
        e("v_lshlrev_b32 v2, 7, v0"); e("v_mov_b32 v3, 0"); e(f"s_mov_b32 s69, {LY.CNT}")
        e(f"buffer_store_dword v3, v2, s[{S_WS}:{S_WS+3}], s69 offen")
        e.label("L1_nocnt")
    e("s_cmp_eq_u32 s3, 3")
    e("s_cselect_b32 s64, s58, s54"); e("s_cselect_b32 s65, s59, s55")
    e(f"s_movk_i32 s{S_RS}, 3456"); e(f"s_cselect_b32 s{S_RS}, 1152, s{S_RS}")
    e(f"s_mov_b32 s67, {SLOT}"); e(f"s_mov_b32 s68, {(-3*SLOT) & 0xffffffff}")
    e(f"s_cselect_b32 s66, s{S_CQ}, s{S_CT}")
    make_srd(e, S_X, 52, 2048 * 576 * 2)
    e(f"s_mov_b32 s{S_W}, s64"); e(f"s_and_b32 s{S_W+1}, s65, 0xffff"); e(f"s_mul_i32 s{S_W+2}, s{S_RS}, 576"); e(f"s_mov_b32 s{S_W+3}, 0x20000")
    make_srd(e, S_GW, 60, 1152)
    e(f"s_lshl_b32 s{S_XO}, s{S_RB}, 2"); e(f"s_add_u32 s{S_XO}, s{S_XO}, s{S_TT}"); e(f"s_mul_i32 s{S_XO}, s{S_XO}, 36864")
    e(f"s_mul_i32 s{S_WO}, s66, 288")
    e(f"s_lshl_b32 s{S_WSTEP}, s{S_RS}, 6")
    e("s_and_b32 s69, s7, 3"); e("s_lshl_b32 s69, s69, 1"); e(f"s_lshr_b32 s{S_KX}, s7, 2"); e(f"s_add_u32 s{S_KX}, s{S_KX}, s69")
    e(f"s_cmp_ge_u32 s{S_KX}, 9"); e(f"s_cselect_b32 s69, 9, 0"); e(f"s_sub_u32 s{S_KX}, s{S_KX}, s69")
    if not Opt.rotate: e(f"s_mov_b32 s{S_KX}, 0")
    e(f"s_mov_b32 s{S_KW}, s{S_KX}"); e(f"s_mov_b32 s{S_KC}, s{S_KX}")
    e(f"s_lshl_b32 s69, s{S_KX}, 7"); e(f"s_add_u32 s{S_XO}, s{S_XO}, s69")
    e(f"s_mul_i32 s69, s{S_KX}, s{S_WSTEP}"); e(f"s_add_u32 s{S_WO}, s{S_WO}, s69")
    e(f"s_mul_i32 s{S_WBACK}, s{S_WSTEP}, -8"); e(f"s_movk_i32 s{S_C128}, 128")
    if Opt.icache_test == "line":
        for i in range(512): e(f"v_fma_f32 v{40+i%16}, v{40+i%16}, v{40+i%16}, v{40+i%16}")
    elif Opt.icache_test == "loop":
        e("s_mov_b32 s69, 16")
        e.label("L1_ictest")
        for i in range(32): e(f"v_fma_f32 v{40+i%16}, v{40+i%16}, v{40+i%16}, v{40+i%16}")
        e("s_sub_u32 s69, s69, 1"); e("s_cmp_lg_u32 s69, 0"); e("s_cbranch_scc1 L1_ictest")
    e(f"s_cmp_ge_u32 s{S_WV}, 4"); e("s_cbranch_scc1 L1_fg1")
    code_prefetch(e, NAME, "L1_exit", 3, vaddr=28, vtmp=26, vdst=31, sp=62)
    e("s_cmp_eq_u32 s3, 2"); e("s_cbranch_scc1 L1_v0")
    e("s_cmp_eq_u32 s3, 3"); e("s_cbranch_scc1 L1_h0")
    e(f"s_cmp_eq_u32 s{S_CT}, 0"); e("s_cbranch_scc0 L1_qk0")
    role(e, "q0", 0)
    e.label("L1_qk0"); role(e, "qk", 0)
    e.label("L1_v0"); role(e, "v", 0)
    e.label("L1_h0"); role(e, "h", 0)
    e.label("L1_fg1")
    if Opt.code_pf and Opt.code_pf_next:
        e("s_cmp_lt_u32 s2, 8"); e("s_cbranch_scc0 L1_nopf"); e(f"s_cmp_eq_u32 s{S_WV}, 5"); e("s_cbranch_scc0 L1_nopf")
        code_prefetch(e, "l3_kernel", "L3_exit", 5, vaddr=28, vtmp=26, vdst=31, sp=62, forward=True)
        e.label("L1_nopf")
    e("s_cmp_eq_u32 s3, 2"); e("s_cbranch_scc1 L1_v1")
    e("s_cmp_eq_u32 s3, 3"); e("s_cbranch_scc1 L1_h1")
    role(e, "qk", 1)
    e.label("L1_v1"); role(e, "v", 1)
    e.label("L1_h1"); role(e, "h", 1)
    if Opt.repack_l1: gen_repack.gen_tail(e)
    e.label("L1_exit")
    e("s_endpgm")
    return e.text()
if __name__ == "__main__":
    t = gen()
    errs = check(t, "l1")
    for x in errs: print(x)
    print("instrs", sum(1 for l in t.split("\n") if l.startswith("    ")), "hazard errs", len(errs))
```

```python
from gen_common import *
import os
import gen_pre, gen_l4

NAME = "l3_kernel"
LDS_BYTES = 4 * 36864

V_PA, V_PB = 0, 1
V_DMA    = 2
V_A, V_B, V_S = 3, 4, 5
TA = [6, 7, 8, 9]
V_P1, V_PC = 10, 11
V_RA, V_RB = 12, 13
V_E, V_O = 14, 15
V_W = 16
NB = 6
V_HP = 40
V_H = [48, 64]
SLOT = {"C": 0, "D": 36864, "A": 73728, "B": 110592}
def OUT(dt):
    return (True, 80 + 16 * dt) if dt < 11 else (False, 144 + 16 * (dt - 11))
def outreg(dt):
    isv_, b = OUT(dt)
    return vr(b, 16) if isv_ else ar(b, 16)
S_SRD = 12
S_W4 = 24
S_W, S_J = 8, 7
S_M0B = 18
S_D3 = [19, 20, 21]
S_D4 = [28, 29, 31]
S_CNT = 22

def gelu_group(H, elems, temps):
    o = []
    for e_, t in zip(elems, temps): o.append(f"v_mul_f32 v{t}, v{H+e_}, v{H+e_}")
    for e_, t in zip(elems, temps): o.append(f"v_fma_f32 v{t}, v{t}, v{V_A}, v{V_B}")
    for e_, t in zip(elems, temps): o.append(f"v_mul_f32 v{t}, v{H+e_}, v{t}")
    for e_, t in zip(elems, temps): o.append(f"v_exp_f32 v{t}, v{t}")
    for e_, t in zip(elems, temps): o.append(f"v_fma_f32 v{t}, v{t}, v{V_S}, v{V_S}")
    for e_, t in zip(elems, temps): o.append(f"v_rcp_f32 v{t}, v{t}")
    for e_, t in zip(elems, temps): o.append(f"v_mul_f32 v{H+e_}, v{H+e_}, v{t}")
    return o
def gelu_groups(H, gs):
    o = []
    for g in gs: o += gelu_group(H, range(4 * g, 4 * g + 4), TA)
    return o
def cvts(H, js):
    return [f"v_cvt_pk_bf16_f32 v{V_HP+j}, v{H+2*j}, v{H+2*j+1}" for j in js]

def s1_mfmas(c):
    H = V_H[c & 1]
    return [f"v_mfma_f32_32x32x16_bf16 {vr(H,16)}, {vr(V_W+4*(j%NB),4)}, {ar(4*j,4)}, " + ("0" if j == 0 else vr(H, 16)) for j in range(36)]
DT_LAST = list(range(11, 18)) + list(range(11))
def s2_idx(m, last):
    if last: return (m & 1, DT_LAST[m >> 1])
    return divmod(m, 18)
def s2_mfmas(last=False):
    o = []
    for m in range(36):
        q, dt = s2_idx(m, last)
        o.append(f"v_mfma_f32_32x32x16_bf16 {outreg(dt)}, {vr(V_W+4*(m%NB),4)}, {vr(V_HP+4*q,4)}, {outreg(dt)}")
    return o

def rd(ph, m):
    kind, slot = ph[0], ph[1]
    b = V_W + 4 * (m % NB)
    if kind == "S1":
        reg = ph[2] if len(ph) > 2 else {"A": V_RA, "B": V_RB}[slot]
        return [f"ds_read_b128 {vr(b,4)}, v{reg} offset:{m*1024}"]
    q, dt = s2_idx(m, len(ph) > 2 and ph[2] == "last")
    reg = V_O if dt & 1 else V_E
    off = SLOT[slot] + q * 18432 + (dt >> 1) * 128
    return [f"ds_read_b64_tr_b16 {vr(b,2)}, v{reg} offset:{off}", f"ds_read_b64_tr_b16 {vr(b+2,2)}, v{reg} offset:{off + 4608}"]

W4PAT = [V_DMA, V_DMA, V_PA, V_P1, V_PB, V_DMA, V_PC, V_P1, V_P1]
def dma_instrs(kind, slot):
    g = []
    for i in range(9):
        grp, k = divmod(i, 4)
        pre = []
        if k == 0: pre.append(f"s_add_u32 m0, s{S_M0B}, {SLOT[slot] + grp*4096}")
        if kind == "S1":
            sc = " sc1" if (Opt.fuse_l2 and not Opt.acquire) else ""
            g.append((pre, f"buffer_load_dwordx4 v{V_DMA}, s[{S_SRD}:{S_SRD+3}], s{S_D3[grp]} offen offset:{k*1024}{sc} lds"))
        else:
            g.append((pre, f"buffer_load_dwordx4 v{W4PAT[i]}, s[{S_W4}:{S_W4+3}], s{S_D4[grp]} offen offset:{k*1024} lds"))
    return g
def dma_advance(kind):
    return [f"s_add_u32 s{r}, s{r}, 36864" for r in (S_D3 if kind == "S1" else S_D4)]

def phase(e, mf, ph, nxt, dma, fill, fill_range, last_vm=9, tail=None, xwait=False, early_dma=False, pre_next=None, timed=None, extra=None):
    gaps = {}
    issued = []
    for m in range(NB): issued.append((m, len(rd(ph, m))))
    waits = {}
    for j in range(36):
        L = gaps.setdefault(j, [])
        m = j + NB
        if m < 36:
            r = rd(ph, m); L += r; issued.append((m, len(r)))
        elif nxt is not None:
            if m == 36:
                if pre_next: L += pre_next
                L.append(f"s_waitcnt vmcnt({last_vm})")
                L.append("s_barrier")
            r = rd(nxt, m - 36); L += r; issued.append((m, len(r)))
        if (j + 1) % 2 == 0 and (j + 1 < 36 or nxt is not None):
            allowed = sum(n for (mm, n) in issued if mm > j + 2)
            waits[j] = f"s_waitcnt lgkmcnt({min(allowed, 15)})"
    pos = [1, 4, 7, 10, 13, 16, 19, 22, 25] if not early_dma else [0, 1, 2, 3, 4, 5, 6, 7, 8]
    if dma is not None:
        d = dma_instrs(*dma)
        for (pre, ld), p in zip(d, pos):
            if pre:
                if p > 0 and not early_dma: gaps[p - 1] += pre
                else: gaps[p] += pre + ["s_nop 0"]
            gaps[p].append(ld)
        gaps[27] += dma_advance(dma[0])
    if xwait:
        for j in range(4, 36, 4):
            ndma = sum(1 for p in pos if p <= j - 1)
            allowed = (35 - (j + 3)) + 9 + ndma
            gaps[j - 1].append(f"s_waitcnt vmcnt({allowed})")
    if fill:
        spread(gaps, fill, fill_range[0], fill_range[1])
    if timed is not None:
        q = []
        for g0, ins in timed: q += [(g0, x) for x in ins]
        budget = Opt.last_budget
        qi = 0; xi = 0; extra = extra or []
        for g in range(36):
            c = 0
            if xi < len(extra) and (g % 1 == 0): gaps[g].append(extra[xi]); xi += 1
            while qi < len(q) and q[qi][0] <= g and (c < budget or g == 35):
                gaps[g].append(q[qi][1]); c += cost(q[qi][1]); qi += 1
        assert qi == len(q) and xi == len(extra)
    for j, w in waits.items(): gaps[j].append(w)
    e.extend(weave(mf, gaps))
    if tail: e.extend(tail)

def gen_mlp(e):
    R = f"s[{S_SRD}:{S_SRD+3}]"
    fused = Opt.fuse_l2
    SC = " sc1" if fused else ""
    e.label("L3_mlp")
    a = Opt.mlp_rbx
    if a != 16:
        la = {8: 3, 4: 2, 2: 1}[a]; nx = 16 // a
        e(f"s_and_b32 s9, s6, {nx-1}"); e(f"s_lshl_b32 s9, s9, {la}"); e(f"s_and_b32 s10, s7, {a-1}"); e("s_add_u32 s9, s9, s10")
        e(f"s_lshr_b32 s10, s6, {4-la}"); e(f"s_lshl_b32 s10, s10, {4-la}"); e(f"s_lshr_b32 s11, s7, {la}"); e("s_add_u32 s6, s10, s11")
        e("s_mov_b32 s7, s9")
    if fused: gen_pre.gen_mlp_wait(e)
    stamp(e, 4, 'pre')
    e(f"s_load_dwordx2 s[32:33], s[0:1], {KA_W4}")
    e(f"s_lshl_b32 s9, s7, 2")
    e(f"s_add_u32 s9, s9, s{S_W}")
    e(f"s_mul_i32 s{S_M0B}, s{S_W}, 9216")
    e(f"s_mul_i32 s10, s6, {18*36864}")
    e(f"s_add_u32 s{S_D3[0]}, s10, {LY.W3P}")
    e(f"s_add_u32 s{S_D3[1]}, s{S_D3[0]}, 4096"); e(f"s_add_u32 s{S_D3[2]}, s{S_D3[0]}, 8192")
    e(f"s_mov_b32 s{S_D4[0]}, s10"); e(f"s_add_u32 s{S_D4[1]}, s10, 4096"); e(f"s_add_u32 s{S_D4[2]}, s10, 8192")
    LN = TA[1]
    e(f"v_lshlrev_b32 v{LN}, 4, v0")
    e(f"v_add_u32 v{V_DMA}, s{S_M0B}, v{LN}")
    e(f"v_add_u32 v{V_RA}, {SLOT['A']}, v{LN}"); e(f"v_add_u32 v{V_RB}, {SLOT['B']}, v{LN}")
    e(f"v_add_u32 v{TA[0]}, {SLOT['D']}, v{LN}")
    e("v_and_b32 v8, 31, v0"); e("v_lshlrev_b32 v8, 2, v8"); e("v_lshrrev_b32 v9, 5, v0"); e("v_lshlrev_b32 v9, 13, v9"); e("v_add_u32 v8, v8, v9")
    def partA2():
        e("v_lshrrev_b32 v9, 3, v0")
        e(f"v_xor_b32 v{V_P1}, 64, v{V_DMA}")
        e("v_cmp_lt_u32 vcc, 5, v9"); e("s_nop 1"); e(f"v_cndmask_b32 v{V_PC}, v{V_DMA}, v{V_P1}, vcc")
        e("v_cmp_gt_u32 vcc, 4, v9"); e("s_nop 1"); e(f"v_cndmask_b32 v{V_PB}, v{V_DMA}, v{V_P1}, vcc")
        e("v_lshrrev_b32 v16, 5, v0"); e("v_bfe_u32 v17, v0, 4, 1"); e("v_bfe_u32 v18, v0, 2, 2")
        e("v_and_b32 v19, 1, v0"); e("v_bfe_u32 v21, v0, 1, 1")
        e("v_lshlrev_b32 v17, 1, v17"); e("v_add_u32 v17, v17, v19")
        e("v_lshrrev_b32 v19, 1, v18"); e("v_lshlrev_b32 v19, 2, v19"); e("v_xor_b32 v17, v17, v19")
        e("v_lshlrev_b32 v16, 3, v16"); e("v_add_u32 v16, v16, v18"); e("v_mul_u32_u24 v16, 1152, v16")
        e("v_lshlrev_b32 v21, 3, v21"); e("v_add_u32 v16, v16, v21")
        e(f"v_lshlrev_b32 v17, 4, v17"); e(f"v_add_u32 v{V_E}, v16, v17"); e(f"v_xor_b32 v17, 64, v17"); e(f"v_add_u32 v{V_O}, v16, v17")
        e("v_cmp_lt_u32 vcc, 1, v9"); e("s_waitcnt lgkmcnt(0)"); e("s_nop 0"); e(f"v_cndmask_b32 v{V_PA}, v{V_DMA}, v{V_P1}, vcc")
        make_srd(e, S_W4, 32, 576 * 4608 * 2)
        for i in range(4): e(f"v_mov_b32 v{V_W+i}, 0")
        e("s_nop 1")
        for dt in range(18):
            e(f"v_mfma_f32_32x32x16_bf16 {outreg(dt)}, {vr(V_W,4)}, {vr(V_W,4)}, 0")
    if fused:
        partA2()
        e("s_waitcnt vmcnt(0)")
        e("s_barrier")
        stamp(e, 5, 'pre')
    for pre, ld in dma_instrs("S1", "D"):
        for p in pre: e(p)
        if pre: e("s_nop 0")
        e(ld)
    for a in dma_advance("S1"): e(a)
    e("s_lshl_b32 s17, s9, 7")
    e(f"s_add_u32 s17, s17, {LY.ST2}")
    NST = LY.NSTAT
    assert NST <= 20
    sreg = ([64 + p for p in range(16)] + [40 + p for p in range(4)])[:NST]
    for p in range(NST):
        e(f"buffer_load_dword v{sreg[p]}, v8, {R}, s17 offen{SC}")
        if p != NST - 1: e("s_add_u32 s17, s17, 16384")
    e(f"s_mul_i32 s16, s9, 36864")
    e(f"s_add_u32 s16, s16, {LY.X1F}")
    for j in range(36):
        e(f"buffer_load_dwordx4 {ar(4*j,4)}, v{LN}, {R}, s16 offen offset:{(j%4)*1024}{SC}")
        if j % 4 == 3 and j != 35: e("s_add_u32 s16, s16, 4096")
    for pre, ld in dma_instrs("S1", "B"):
        for p in pre: e(p)
        if pre: e("s_nop 0")
        e(ld)
    for a in dma_advance("S1"): e(a)
    stamp(e, 1)
    if not fused: partA2()
    st = []
    for p in sreg[1:]: st.append(f"v_add_f32 v64, v64, v{p}")
    st += ["v_mov_b32 v65, v64", "s_nop 1", "v_permlane32_swap_b32 v64, v65",
           f"v_mul_f32 v64, {hexf(1/576)}, v64", f"v_mul_f32 v65, {hexf(1/576)}, v65", "v_fma_f32 v65, -v64, v64, v65",
           "v_max_f32 v65, 0, v65", f"v_add_f32 v65, {hexf(1e-5)}, v65", f"v_sqrt_f32 v{V_S}, v65", "s_nop 0", f"v_rcp_f32 v66, v{V_S}", "s_nop 0",
           f"v_mul_f32 v{V_B}, {hexf(GELU_C0)}, v66", "v_mul_f32 v67, v66, v66", "v_mul_f32 v67, v67, v66", f"v_mul_f32 v{V_A}, {hexf(GELU_C1)}, v67"]
    e("s_waitcnt vmcnt(45)")
    e("s_barrier")
    stamp(e, 2)
    P0 = ("S1", "D", TA[0])
    for m in range(NB): e.extend(rd(P0, m))
    e("s_waitcnt vmcnt(41)")
    e(f"s_waitcnt lgkmcnt({NB-2})")
    phase(e, s1_mfmas(0), P0, ("S1", "B"), ("S2", "C"), st, (0, 30), xwait=True)
    phase(e, s1_mfmas(1), ("S1", "B"), ("S2", "C"), ("S1", "A"), gelu_groups(V_H[0], range(4)) + cvts(V_H[0], range(8)), (3, 35))
    stamp(e, 3)
    e(f"s_mov_b32 s{S_CNT}, 8")
    e(".p2align 6")
    e.label("L3_mlp_loop")
    if Opt.single:
        XW = gen_pre.XCH
        e(f"s_cmp_eq_u32 s{S_W}, 0"); e("s_cbranch_scc0 L3_mlp_nochk")
        e(f"s_cmp_eq_u32 s{S_CNT}, 6"); e("s_cbranch_scc0 L3_mlp_chk")
        e(f"s_mul_i32 s48, s6, {gen_pre.CSTEP}"); e(f"s_add_u32 s48, s48, {LY.CNT + gen_pre.CNT_WL}")
        e(f"s_mov_b32 m0, {XW}"); e("s_nop 0")
        e(f"buffer_load_dword off, {R}, s48 sc1 lds")
        e("s_branch L3_mlp_nochk")
        e.label("L3_mlp_chk")
        e(f"s_cmp_eq_u32 s{S_CNT}, 5"); e("s_cbranch_scc0 L3_mlp_nochk")
        e(f"v_mov_b32 v{TA[0]}, {XW}"); e(f"ds_read_b32 v{TA[0]}, v{TA[0]}"); e("s_waitcnt lgkmcnt(0)")
        e(f"v_readfirstlane_b32 s52, v{TA[0]}"); e("s_cmp_ge_u32 s52, 15"); e("s_cbranch_scc1 L3_mlp_nochk")
        e(f"s_mul_i32 s48, s6, {gen_pre.CSTEP}"); e(f"s_add_u32 s48, s48, {gen_pre.CNT_WL}")
        gen_pre.wait_counters_sgpr(e, [(48, 15)])
        e.label("L3_mlp_nochk")
    GA = Opt.gelu_split
    for half in range(2):
        Hn = V_H[(half + 1) & 1]
        s2, s2n = ("C", "D") if half == 0 else ("D", "C")
        s1, s1n = ("A", "B") if half == 0 else ("B", "A")
        phase(e, s2_mfmas(), ("S2", s2), ("S1", s1), ("S2", s2n), gelu_groups(Hn, range(GA)), (3, 36))
        gb = cvts(Hn, range(2 * GA))
        for g in range(GA, 4): gb += gelu_groups(Hn, [g]) + cvts(Hn, range(2 * g, 2 * g + 2))
        phase(e, s1_mfmas(half), ("S1", s1), ("S2", s2n), ("S1", s1n), gb, (0, 35))
    e(f"s_sub_u32 s{S_CNT}, s{S_CNT}, 1")
    e(f"s_cmp_lg_u32 s{S_CNT}, 0")
    e("s_cbranch_scc1 L3_mlp_loop")
    stamp(e, 4)
    H = V_H[1]
    early = Opt.fuse_l4 and Opt.early_wo
    tail34 = cvts(H, range(8)) + [f"v_subrev_u32 v{TA[0]}, s{S_M0B}, v{V_DMA}", "s_nop 0"]
    wo_loads = []
    if early:
        e("s_lshr_b32 s61, s2, 3"); e("s_and_b32 s61, s61, 3"); e("s_mul_i32 s61, s61, 180"); e(f"s_mul_i32 s62, s{S_W}, 9"); e("s_add_u32 s61, s61, s62")
        e("s_lshl_b32 s61, s61, 10"); e(f"s_add_u32 s61, s61, {LY.WOP}")
        for T in range(5):
            for g in range(3): e(f"s_add_u32 s{36+3*T+g}, s61, {T*36864 + g*4096}")
        def wl(T, k): return f"buffer_load_dwordx4 {ar(4*(9*T+k),4)}, v{TA[0]}, {R}, s{36+3*T+k//4} offen offset:{(k%4)*1024} sc1"
        wo_loads = [wl(T, k) for k in range(9) for T in range(4)]
    lastp = Opt.last_dtmajor
    PL = ("S2", "D", "last") if lastp else ("S2", "D")
    e(f"s_lshl_b32 s10, s6, 6"); e(f"s_add_u32 s10, s10, s9"); e(f"s_mul_i32 s10, s10, 36864"); e(f"s_add_u32 s10, s10, {LY.PART}")
    for g in range(9): e(f"s_add_u32 s{51+g}, s10, {g*4096}")
    phase(e, s2_mfmas(), ("S2", "C"), PL, ("S2", "D"), gelu_groups(H, range(4)), (9, 36), last_vm=0, tail=tail34, early_dma=True)
    tb = [48, 56, 64, 72]
    def store_tile(n, dt):
        o = []
        isv_, b = OUT(dt); t = tb[n % 4]
        if isv_:
            for j in range(8): o.append(f"v_cvt_pk_bf16_f32 v{t+j}, v{b+2*j}, v{b+2*j+1}")
        else:
            for h in range(2):
                tmp = [0, 1, 3, 4, 5, 10, 11, 9]
                for j in range(8): o.append(f"v_accvgpr_read_b32 v{tmp[j]}, a{b+8*h+j}")
                for j in range(4): o.append(f"v_cvt_pk_bf16_f32 v{t+4*h+j}, v{tmp[2*j]}, v{tmp[2*j+1]}")
        ks = 2 * dt
        o.append(f"buffer_store_dwordx4 {vr(t,4)}, v{TA[0]}, {R}, s{51 + ks//4} offen offset:{(ks%4)*1024}")
        o.append(f"buffer_store_dwordx4 {vr(t+4,4)}, v{TA[0]}, {R}, s{51 + ks//4} offen offset:{(ks%4+1)*1024}")
        return o
    order = list(range(11, 18)) + list(range(11))
    if lastp:
        gaps_fill = {}
        NE = Opt.last_early
        sched = []
        for n in range(NE): sched.append((2 * n + 1 + 3, store_tile(n, order[n])))
        fill = []
        e._pending = sched
        phase(e, s2_mfmas(True), PL, None, None, None, None, timed=sched, extra=wo_loads)
        stamp(e, 5)
        e("s_nop 9")
        rest = list(range(NE, 18))
    else:
        phase(e, s2_mfmas(), PL, None, None, wo_loads or None, (0, 36))
        stamp(e, 5)
        e("s_nop 9")
        rest = list(range(18))
    t4_done = False
    for n in rest:
        if early and not t4_done and n > 2:
            for k in range(9): e(wl(4, k))
            t4_done = True
        e.extend(store_tile(n, order[n]))
    if early: e("s_mov_b32 s66, 1")
    if Opt.fuse_l4:
        e(f"s_mul_i32 s48, s7, {gen_pre.CSTEP}"); e(f"s_add_u32 s48, s48, {gen_pre.CNT_P}")
        gen_pre.publish(e, 48)
        e("s_branch K2_final")
    else:
        fin(e)

A_K0OFF, A_KXOFF, A_VOFF = 1, 2, 3
A_M = 8
A_O = 32
A_S = [160, 192]
A_P = [224, 240]
NSET = 2
AG_SET = 0
def SET(i): return AG_SET + 28 * (i % NSET)
AG_Q0 = 56
AG_QX = 88
SA_K, SA_KX, SA_V = 16, 17, 18
SA_CNT = 22
NQ = 8

def attn_loads(st):
    b = SET(st); R = f"s[{S_SRD}:{S_SRD+3}]"
    sc = " sc1" if Opt.single else ""
    o = [f"buffer_load_dwordx4 {ar(b,4)}, v{A_K0OFF}, {R}, s{SA_K} offen{sc}",
         f"buffer_load_dwordx4 {ar(b+4,4)}, v{A_K0OFF}, {R}, s{SA_K} offen offset:1024{sc}",
         f"buffer_load_dword a{b+24}, v{A_KXOFF}, {R}, s{SA_KX} offen{sc}"]
    for i in range(4):
        o.append(f"buffer_load_dwordx4 {ar(b+8+4*i,4)}, v{A_VOFF}, {R}, s{SA_V} offen" + (f" offset:{608*i}" if i else "") + sc)
    o += [f"s_add_u32 s{SA_K}, s{SA_K}, 2048", f"s_add_u32 s{SA_KX}, s{SA_KX}, 256", f"s_add_u32 s{SA_V}, s{SA_V}, 2432"]
    return o
def qk(kp, qi, S):
    b = SET(kp)
    return [f"v_mfma_f32_32x32x4_2b_bf16 {vr(S,32)}, {ar(b+24,2)}, {ar(AG_QX+2*qi,2)}, 0",
            f"v_mfma_f32_32x32x16_bf16 {vr(S,16)}, {ar(b,4)}, {ar(AG_Q0+4*qi,4)}, {vr(S,16)}",
            f"v_mfma_f32_32x32x16_bf16 {vr(S+16,16)}, {ar(b+4,4)}, {ar(AG_Q0+4*qi,4)}, {vr(S+16,16)}"]
def pv(kp, qi, P):
    b = SET(kp); O = A_O + 16 * qi
    return [f"v_mfma_f32_32x32x16_bf16 {vr(O,16)}, {ar(b+8+4*i,4)}, {vr(P+4*i,4)}, {vr(O,16)}" for i in range(4)]
def expcvt(n):
    S = A_S[n & 1]; P = A_P[n & 1]
    ex = [f"v_exp_f32 v{S+i}, v{S+i}" for i in range(32)]
    cv = [f"v_cvt_pk_bf16_f32 v{P+j}, v{S+2*j}, v{S+2*j+1}" for j in range(16)]
    o = ex[0:4]
    for j in range(14): o += [cv[j], ex[2*j+4], ex[2*j+5]]
    o += [cv[14], cv[15]]
    return o

def gen_attn(e, force_slow=False):
    R = f"s[{S_SRD}:{S_SRD+3}]"
    e.label("L3_attn")
    e("s_sub_u32 s7, s7, 16")
    if Opt.w4_touch:
        e(f"s_load_dwordx2 s[40:41], s[0:1], {KA_W4}")
        e("s_lshl_b32 s42, s7, 3"); e("s_add_u32 s42, s42, s6"); e("s_lshl_b32 s42, s42, 2"); e(f"s_add_u32 s42, s42, s{S_W}"); e("s_lshl_b32 s42, s42, 13")
        e("v_lshlrev_b32 v14, 7, v0")
        e("s_waitcnt lgkmcnt(0)")
        make_srd(e, 44, 40, 576 * 4608 * 2)
        e("buffer_load_dword v13, v14, s[44:47], s42 offen")
        e("s_add_u32 s42, s42, 4194304")
        e("buffer_load_dword v13, v14, s[44:47], s42 offen")
    e("s_lshr_b32 s9, s7, 2")
    e("s_lshl_b32 s10, s6, 2")
    e("s_add_u32 s9, s9, s10")
    e("s_and_b32 s10, s7, 3")
    e("s_lshl_b32 s10, s10, 4")
    e(f"s_and_b32 s31, s{S_W}, 1"); e("s_lshl_b32 s31, s31, 3"); e("s_add_u32 s10, s10, s31")
    e(f"s_lshr_b32 s31, s{S_W}, 1")
    if Opt.single:
        e("s_mov_b32 s30, 0")
        e("s_lshr_b32 s48, s9, 3"); e(f"s_mul_i32 s48, s48, {gen_pre.CSTEP}"); e(f"s_add_u32 s48, s48, {gen_pre.CNT_QKV}")
        gen_pre.wait_counters(e, [(48, 48)])
        e("s_barrier")
    e(f"v_lshlrev_b32 v{A_K0OFF}, 4, v0")
    e(f"v_lshlrev_b32 v{A_KXOFF}, 2, v0")
    e("v_and_b32 v4, 31, v0")
    e("v_lshlrev_b32 v5, 4, v4")
    e("v_lshrrev_b32 v6, 5, v0")
    e("v_mul_u32_u24 v7, 304, v6")
    e("v_add_u32 v5, v5, v7")
    e("v_cmp_lt_u32 vcc, 18, v4")
    e("v_mov_b32 v7, 0x40000000")
    e("v_lshlrev_b32 v12, 2, v4")
    e(f"v_cndmask_b32 v{A_VOFF}, v5, v7, vcc")
    e("s_lshl_b32 s11, s9, 16")
    e("s_lshl_b32 s24, s9, 13")
    e(f"s_add_u32 s26, s11, {LY.KF0}")
    e(f"s_add_u32 s27, s24, {LY.KX}")
    e(f"s_mul_i32 s28, s9, {LY.VHEAD}")
    e(f"s_add_u32 s28, s28, {LY.VF}")
    e("s_lshl_b32 s23, s31, 15"); e(f"s_add_u32 s{SA_K}, s26, s23")
    e("s_lshl_b32 s23, s31, 12"); e(f"s_add_u32 s{SA_KX}, s27, s23")
    e(f"s_mul_i32 s23, s31, {16*2432}"); e(f"s_add_u32 s{SA_V}, s28, s23")
    for x in attn_loads(0): e(x)
    e("s_lshl_b32 s23, s31, 2"); e("s_add_u32 s34, s10, s23")
    e("s_xor_b32 s23, s23, 4"); e("s_add_u32 s35, s10, s23")
    for g, sg in enumerate((34, 35)):
        e(f"s_lshl_b32 s23, s{sg}, 10"); e("s_add_u32 s23, s23, s11"); e(f"s_add_u32 s23, s23, {LY.QF0}")
        for qi in range(4):
            e(f"buffer_load_dwordx4 {ar(AG_Q0+4*(4*g+qi),4)}, v{A_K0OFF}, {R}, s23 offen offset:{qi*1024}" + (" sc1" if Opt.single else ""))
        e(f"s_lshl_b32 s23, s{sg}, 7"); e("s_add_u32 s23, s23, s24"); e(f"s_add_u32 s23, s23, {LY.QX}")
        for qi in range(4):
            e(f"buffer_load_dword a{AG_QX+2*(4*g+qi)}, v12, {R}, s23 offen offset:{qi*128}" + (" sc1" if Opt.single else ""))
    for i in range(16): e(f"v_mov_b32 v{A_P[1]+i}, 0")
    for i in range(16): e(f"v_accvgpr_write_b32 a{SET(1)+8+i}, 0")
    for s_ in range(NSET): e(f"v_accvgpr_write_b32 a{SET(s_)+25}, 0")
    for qi in range(NQ): e(f"v_accvgpr_write_b32 a{AG_QX+2*qi+1}, 0")
    for qi in range(NQ): e(f"v_mfma_f32_32x32x16_bf16 {vr(A_O+16*qi,16)}, {vr(A_P[1],4)}, {vr(A_P[1],4)}, 0")
    stamp(e, 1)
    e("s_waitcnt vmcnt(0)")
    stamp(e, 2)
    q0 = qk(0, 0, A_S[0])
    e(q0[0]); e("s_nop 15"); e("s_nop 1"); e(q0[1]); e(q0[2])
    e("s_nop 10")
    e(f"s_mov_b32 s{SA_CNT}, 8")
    e(".p2align 6")
    e.label("L3_attn_loop")
    NB_ = 2 * NQ
    for n in range(NB_):
        kp, qi = divmod(n, NQ)
        n1 = (n + 1) % NB_; n0 = (n - 1) % NB_
        X, Ma, Mb = qk(n1 // NQ, n1 % NQ, A_S[n1 & 1]); p = pv(n0 // NQ, n0 % NQ, A_P[n0 & 1])
        va = expcvt(n)
        seq = []
        ld = attn_loads(kp + 1)
        if qi == NQ - 1: seq.append("s_waitcnt vmcnt(4)")
        cuts = eval(os.environ.get('ATT_CUTS', '[0, 8, 15, 22, 29, 35, 42, 48]')) if qi < 7 else [0, 9, 16, 23, 30, 36, 42, 48]
        mf = [X, p[0], p[1], Ma, Mb, p[2], p[3]]
        for k in range(7):
            if k == 1 and qi == 1: seq.append("s_waitcnt vmcnt(2)")
            seq.append(mf[k])
            if k == 0 and qi < 7 and not os.environ.get('ATT_NOLOAD'): seq.append(ld[qi])
            if k == 0 and qi == 7: seq += ld[7:9]
            if k == 3 and qi == 7: seq += ld[9:10]
            seq += va[cuts[k]:cuts[k + 1]]
        e.extend(seq)
    e(f"s_sub_u32 s{SA_CNT}, s{SA_CNT}, 1")
    e(f"s_cmp_lg_u32 s{SA_CNT}, 0")
    e("s_cbranch_scc1 L3_attn_loop")
    e("s_nop 1")
    for m in pv(1, NQ - 1, A_P[1]): e(m)
    e("s_nop 15")
    stamp(e, 5)
    e(f"s_mul_i32 s23, s{S_W}, 12288"); e(f"v_add_u32 v4, s23, v{A_K0OFF}")
    for i in range(4):
        for q in range(3):
            e(f"ds_write_b128 v4, {vr(A_O+16*(4+i)+4*q,4)} offset:{(3*i+q)*1024}")
    e(f"s_xor_b32 s23, s{S_W}, 2"); e("s_mul_i32 s23, s23, 12288"); e(f"v_add_u32 v4, s23, v{A_K0OFF}")
    e("s_waitcnt lgkmcnt(0)"); e("s_barrier")
    for i in range(4):
        for q in range(3):
            e(f"ds_read_b128 {vr(A_S[0]+12*i+4*q,4)}, v4 offset:{(3*i+q)*1024}")
    e("s_waitcnt lgkmcnt(0)")
    for i in range(4):
        for r in range(11): e(f"v_add_f32 v{A_O+16*i+r}, v{A_O+16*i+r}, v{A_S[0]+12*i+r}")
    e.label("L3_attn_fin")
    e("s_mul_i32 s23, s34, 36864")
    e(f"s_add_u32 s23, s23, {LY.OF}")
    e("s_lshl_b32 s24, s9, 10")
    e("s_add_u32 s24, s24, s23")
    e("s_lshr_b32 s25, s9, 3")
    e("s_add_u32 s25, s25, 32")
    e("s_lshl_b32 s25, s25, 10")
    e("s_add_u32 s25, s25, s23")
    e("s_lshr_b32 s29, s9, 2"); e("s_and_b32 s29, s29, 1"); e("s_lshl_b32 s29, s29, 9")
    e("s_add_u32 s25, s25, s29")
    e("s_and_b32 s29, s9, 3"); e("s_lshl_b32 s29, s29, 2")
    e("s_add_u32 s25, s25, s29")
    e("s_mov_b64 s[32:33], %d" % (0 if force_slow else -1))
    for qi in range(4):
        O = A_O + 16 * qi
        e(f"v_mov_b32 v4, v{O+10}")
        e(f"v_mov_b32 v5, v{O+10}")
        e("s_nop 1")
        e("v_permlane32_swap_b32 v4, v5")
        e(f"v_cmp_le_f32 vcc, {hexf(2.0**-60)}, v4")
        e("s_and_b64 s[32:33], s[32:33], vcc")
        e(f"v_cmp_ge_f32 vcc, {hexf(2.0**100)}, v4")
        e("s_and_b64 s[32:33], s[32:33], vcc")
        e("v_rcp_f32 v5, v4")
        e("v_mov_b32 v6, 0")
        for r in range(10): e(f"v_mul_f32 v{O+r}, v{O+r}, v5")
        for r in range(10): e(f"v_fmac_f32 v6, 0, v{O+r}")
        e("v_cmp_o_f32 vcc, v6, v6")
        e("s_and_b64 s[32:33], s[32:33], vcc")
    e("s_cmp_eq_u32 s30, 0")
    e("s_cbranch_scc0 L3_attn_store")
    e("s_cmp_eq_u64 s[32:33], exec")
    e("s_cbranch_scc0 L3_attn_slow")
    e.label("L3_attn_store")
    e("v_and_b32 v4, 31, v0")
    e("v_lshlrev_b32 v4, 4, v4")
    for qi in range(4):
        O = A_O + 16 * qi
        t = A_P[0] + 8 * (qi % 4)
        for j in range(5): e(f"v_cvt_pk_bf16_f32 v{t+j}, v{O+2*j}, v{O+2*j+1}")
        e(f"buffer_store_dwordx4 {vr(t,4)}, v{A_K0OFF}, {R}, s24 offen")
        e("s_mov_b64 exec, 0xffffffff")
        e(f"buffer_store_dword v{t+4}, v4, {R}, s25 offen")
        e("s_mov_b64 exec, -1")
        if qi != 3:
            e("s_add_u32 s24, s24, 36864")
            e("s_add_u32 s25, s25, 36864")
    if Opt.fuse_l4:
        e(f"s_add_u32 s{gen_pre.S_DBG}, s4, {LY.CNT}"); e(f"s_addc_u32 s{gen_pre.S_DBG+1}, s5, 0")
        e("s_lshr_b32 s48, s2, 3"); e("s_and_b32 s48, s48, 3"); e(f"s_mul_i32 s48, s48, {gen_pre.CSTEP}"); e(f"s_add_u32 s48, s48, {gen_pre.CNT_O}")
        gen_pre.publish(e, 48)
        e("s_mov_b32 s66, 0")
        e("s_branch K2_final")
    else:
        fin(e)
    e.label("L3_attn_slow")
    M = A_M
    e("s_mov_b32 s30, 1")
    e("s_mov_b32 s16, s26"); e("s_mov_b32 s17, s27"); e("s_mov_b32 s18, s28")
    for i in range(64): e(f"v_mov_b32 v{A_O+i}, 0")
    for qi in range(4): e(f"v_mov_b32 v{M+qi}, 0xff800000")
    e(f"s_mov_b32 s{SA_CNT}, 32")
    e.label("L3_attn_slow_loop")
    e("s_waitcnt vmcnt(0)")
    for x in attn_loads(0): e(x)
    e("s_waitcnt vmcnt(0)")
    for qi in range(4):
        S = A_S[0]; P = A_P[0]; O = A_O + 16 * qi
        X, Ma, Mb = qk(0, qi, S)
        e(X); e("s_nop 15"); e("s_nop 1"); e(Ma); e(Mb)
        e("s_nop 11")
        e(f"v_max3_f32 v4, v{S}, v{S+1}, v{S+2}")
        for i in range(3, 31, 2): e(f"v_max3_f32 v4, v4, v{S+i}, v{S+i+1}")
        e(f"v_max_f32 v4, v4, v{S+31}")
        e("v_mov_b32 v5, v4")
        e("s_nop 1")
        e("v_permlane32_swap_b32 v4, v5")
        e("v_max_f32 v4, v4, v5")
        e(f"v_max_f32 v4, v4, v{M+qi}")
        e(f"v_sub_f32 v5, v{M+qi}, v4")
        e("v_exp_f32 v5, v5")
        e(f"v_mov_b32 v{M+qi}, v4")
        for i in range(32): e(f"v_sub_f32 v{S+i}, v{S+i}, v4")
        for i in range(32): e(f"v_exp_f32 v{S+i}, v{S+i}")
        for i in range(16): e(f"v_mul_f32 v{O+i}, v{O+i}, v5")
        for j in range(16): e(f"v_cvt_pk_bf16_f32 v{P+j}, v{S+2*j}, v{S+2*j+1}")
        e("s_nop 1")
        for m in pv(0, qi, P): e(m)
        e("s_nop 11")
    e(f"s_sub_u32 s{SA_CNT}, s{SA_CNT}, 1")
    e(f"s_cmp_lg_u32 s{SA_CNT}, 0")
    e("s_cbranch_scc1 L3_attn_slow_loop")
    e("s_nop 7")
    e("s_branch L3_attn_fin")

def gen(force_slow=False, only=None):
    e = Emit()
    kernel_head(e, NAME)
    Diag.kid = 2
    e("s_cmp_ge_u32 s2, 256")
    e("s_cbranch_scc1 L3_exit")
    e(f"s_load_dwordx2 s[4:5], s[0:1], {KA_WS}")
    if Opt.ka_warm: e(f"s_load_dwordx2 s[24:25], s[0:1], {KA_W2}")
    e("s_and_b32 s6, s2, 7")
    e("s_lshr_b32 s7, s2, 3")
    e("v_lshrrev_b32 v1, 6, v0")
    e("v_and_b32 v0, 63, v0")
    e(f"v_readfirstlane_b32 s{S_W}, v1")
    e("s_mov_b32 s30, 0")
    code_prefetch(e, NAME, "L3_exit", 5, vaddr=16, vtmp=18, vdst=20, sp=60)
    e("s_waitcnt lgkmcnt(0)")
    make_srd(e, S_SRD, 4, LY.WS_END)
    stamp(e, 0, 'any')
    dbg_start(e)
    if Opt.fuse_l2: gen_pre.gen_prephase(e)
    e("s_cmp_lt_u32 s7, 16")
    if only == "mlp":
        e("s_cbranch_scc0 L3_exit")
    else:
        e("s_cbranch_scc0 L3_attn")
    if only == "attn":
        e("s_branch L3_exit")
    gen_mlp(e)
    gen_attn(e, force_slow)
    if Opt.fuse_l4: gen_l4.final(e)
    e.label("L3_exit")
    e("s_endpgm")
    return e.text()

if __name__ == "__main__":
    t = gen()
    errs = check(t, "l3")
    for x in errs: print(x)
    print("instrs", sum(1 for l in t.split("\n") if l.startswith("    ")), "hazard errs", len(errs))
    open("l3.s", "w").write(t)
```

```python
from gen_common import *
S_WS = 12; S_SRC = 16; S_XB = 20; S_RP = 36
S_DBG = 34
IMG2 = 73728
XCH = 147456
CSTEP = 128
CNT_X, CNT_W, CNT_WO, CNT_P, CNT_O = 0, 16 * CSTEP, 24 * CSTEP, 25 * CSTEP, 41 * CSTEP
CNT_QKV, CNT_HS, CNT_WL = 45 * CSTEP, 49 * CSTEP, 65 * CSTEP

def lane_tr_parts(e, vhf, vsub, vr_, vsig):
    e(f"v_lshrrev_b32 v{vhf}, 5, v0"); e(f"v_bfe_u32 v{vsub}, v0, 4, 1"); e(f"v_bfe_u32 v{vr_}, v0, 2, 2")
    e(f"v_and_b32 v{vsig}, 1, v0"); e(f"v_lshlrev_b32 v{vsig}, 1, v{vsig}"); e(f"v_bfe_u32 v15, v0, 1, 1"); e(f"v_or_b32 v{vsig}, v{vsig}, v15")

def publish(e, off_sgpr):
    e("s_waitcnt vmcnt(0)")
    e("s_barrier")
    lab = f"Lpub_{len(e.L)}"
    e("s_cmp_eq_u32 s8, 0"); e(f"s_cbranch_scc0 {lab}")
    e("s_mov_b64 exec, 1")
    e(f"v_mov_b32 v250, s{off_sgpr}"); e("v_mov_b32 v251, 1")
    e(f"global_atomic_add v250, v251, s[{S_DBG}:{S_DBG+1}] sc1")
    e("s_mov_b64 exec, -1")
    e.label(lab)

def wait_counters(e, waits, acquire=False, sleep=None):
    lab = f"Lwait_{len(e.L)}"
    e("s_cmp_eq_u32 s8, 0"); e(f"s_cbranch_scc0 {lab}_done")
    e("s_mov_b32 s50, 0x40000")
    e("s_mov_b64 exec, 1")
    for i, (off, n) in enumerate(waits): e(f"v_mov_b32 v{246+i}, s{off}")
    e.label(lab)
    for i, (off, n) in enumerate(waits): e(f"global_load_dword v{250+i}, v{246+i}, s[{S_DBG}:{S_DBG+1}] sc1")
    e("s_waitcnt vmcnt(0)")
    e("s_mov_b32 s51, 1")
    for i, (off, n) in enumerate(waits):
        e(f"v_readfirstlane_b32 s52, v{250+i}")
        e(f"s_cmp_ge_u32 s52, {n}"); e("s_cselect_b32 s51, s51, 0")
    e("s_cmp_eq_u32 s51, 1"); e(f"s_cbranch_scc1 {lab}_ok")
    slp = Opt.poll_sleep if sleep is None else sleep
    if slp: e(f"s_sleep {slp}")
    e("s_sub_u32 s50, s50, 1"); e("s_cmp_lg_u32 s50, 0"); e(f"s_cbranch_scc1 {lab}")
    e.label(f"{lab}_ok")
    e("s_mov_b64 exec, -1")
    if acquire: e("buffer_inv sc1")
    e.label(f"{lab}_done")

def wait_counters_sgpr(e, waits):
    lab = f"Lwaits_{len(e.L)}"
    e("s_cmp_eq_u32 s8, 0"); e(f"s_cbranch_scc0 {lab}_done")
    e("s_mov_b32 s50, 0x40000")
    e.label(lab)
    e("s_mov_b32 s51, 1")
    for off, n in waits:
        e(f"s_add_u32 s46, s{S_DBG}, s{off}"); e(f"s_addc_u32 s47, s{S_DBG+1}, 0")
        e("v_mov_b32 v255x, 0".replace("v255x", "v" + str(Opt._poll_v)))
        e(f"global_load_dword v{Opt._poll_v}, v{Opt._poll_v}, s[46:47] sc1")
        e("s_waitcnt vmcnt(0)")
        e(f"v_readfirstlane_b32 s52, v{Opt._poll_v}")
        e(f"s_cmp_ge_u32 s52, {n}"); e("s_cselect_b32 s51, s51, 0")
    e("s_cmp_eq_u32 s51, 1"); e(f"s_cbranch_scc1 {lab}_done")
    e("s_sub_u32 s50, s50, 1"); e("s_cmp_lg_u32 s50, 0"); e(f"s_cbranch_scc1 {lab}")
    e.label(f"{lab}_done")

def gemm(e, NT, with_repack):
    tag = f"G{NT}"
    RB = 64 * NT
    KS = 16 * RB
    e(f"s_load_dwordx2 s[24:25], s[0:1], {KA_W2}")
    e(f"s_load_dwordx2 s[26:27], s[0:1], {KA_XA}")
    e("v_lshlrev_b32 v1, 4, v0")
    if NT == 2:
        e("v_lshrrev_b32 v5, 3, v0"); e("v_and_b32 v6, 7, v0"); e("v_bfe_u32 v7, v0, 4, 1"); e("v_lshlrev_b32 v7, 2, v7"); e("v_xor_b32 v6, v6, v7")
        e("v_mul_u32_u24 v5, 1152, v5"); e("v_lshlrev_b32 v6, 4, v6"); e("v_add_u32 v2, v5, v6"); e(f"v_add_u32 v3, {9216-1024}, v2")
        NP = 2
    else:
        for i in range(3):
            e(f"v_add_u32 v5, {64*i}, v0")
            e("v_mul_u32_u24 v6, 171, v5"); e("v_lshrrev_b32 v6, 11, v6")
            e("v_mul_u32_u24 v7, 12, v6"); e("v_sub_u32 v7, v5, v7")
            e("v_mul_u32_u24 v6, 1152, v6"); e("v_lshlrev_b32 v7, 4, v7"); e("v_add_u32 v6, v6, v7")
            e(f"v_subrev_u32 v{2+i}, {1024*i}, v6")
        NP = 3
    e("s_waitcnt lgkmcnt(0)")
    make_srd(e, S_SRC, 24, 576 * 576 * 2)
    make_srd(e, S_XB, 26, 2048 * 576 * 2)
    e("s_mul_i32 s28, s8, 18432"); e("s_add_u32 s28, s28, s10")
    e(f"s_mul_i32 s29, s8, {KS}")
    e("s_mul_i32 s31, s9, 36864"); e(f"s_add_u32 s40, s31, {LY.HS}")
    for st in range(3):
        for i in range(3):
            ch = 3 * st + i
            e(f"s_add_u32 s31, s28, {ch*4*18432}")
            e(f"s_add_u32 m0, s29, {4*ch*KS}")
            e(f"s_add_u32 s{46+i}, s40, {ch*4096}")
            for k in range(NP):
                e(f"buffer_load_dwordx4 v{2+k}, s[{S_SRC}:{S_SRC+3}], s31 offen" + (f" offset:{k*1024}" if k else "") + " lds")
        for i in range(3):
            ch = 3 * st + i
            for k in range(4):
                e(f"buffer_load_dwordx4 {ar(4*(4*ch+k),4)}, v1, s[{S_WS}:{S_WS+3}], s{46+i} offen offset:{k*1024}")
    nrp = 0
    if with_repack:
        repack_dma(e); nrp = 18
    stamp(e, 1, 'pre')
    lane_tr_parts(e, 5, 6, 7, 8)
    if NT == 2:
        e("v_lshlrev_b32 v9, 1, v6"); e("v_lshrrev_b32 v10, 1, v8"); e("v_add_u32 v9, v9, v10")
        e("v_lshrrev_b32 v10, 1, v7"); e("v_lshlrev_b32 v10, 2, v10"); e("v_xor_b32 v9, v9, v10"); e("v_lshlrev_b32 v9, 4, v9")
        e("v_and_b32 v10, 1, v8"); e("v_lshlrev_b32 v10, 3, v10"); e("v_add_u32 v9, v9, v10")
        e("v_lshlrev_b32 v10, 3, v5"); e("v_add_u32 v10, v10, v7"); e("v_lshlrev_b32 v10, 7, v10"); e("v_add_u32 v9, v9, v10")
        e("v_xor_b32 v10, 64, v9"); e("v_add_u32 v13, 36864, v9"); e("v_add_u32 v14, 36864, v10")
        def addr(ks, T, q): return f"v{[[9, 10], [13, 14]][ks//18][T]} offset:{(ks%18)*2048 + q*512}"
    else:
        e("v_lshlrev_b32 v9, 3, v5"); e("v_add_u32 v9, v9, v7"); e("v_mul_u32_u24 v9, 192, v9")
        e("v_lshlrev_b32 v10, 5, v6"); e("v_add_u32 v9, v9, v10"); e("v_lshlrev_b32 v10, 3, v8"); e("v_add_u32 v9, v9, v10")
        e(f"v_add_u32 v10, {18*3072}, v9")
        def addr(ks, T, q): return f"v{[9, 10][ks//18]} offset:{(ks%18)*3072 + q*768 + 64*T}"
    ACC = 16; WB = 64; XB = 112
    def reads(ks):
        b = WB + 4 * NT * (ks % 4)
        return [f"ds_read_b64_tr_b16 {vr(b+4*T+2*q,2)}, {addr(ks, T, q)}" for T in range(NT) for q in range(2)]
    e("v_and_b32 v11, 31, v0"); e("s_movk_i32 s32, 1152"); e("v_mul_lo_u32 v12, v11, s32"); e("v_lshlrev_b32 v4, 4, v5"); e("v_add_u32 v12, v12, v4")
    e("s_mul_i32 s41, s9, 36864"); e("s_add_u32 s41, s41, s10")
    per = 3 * NP + 12
    nx = 2 * NT
    for st in range(3):
        younger = (2 - st) * per + nrp + (nx if st else 0)
        e(f"s_waitcnt vmcnt({min(63, younger)})")
        e("s_barrier")
        if st == 0: stamp(e, 2, 'pre')
        if st == 0:
            for u in range(nx):
                e(f"buffer_load_dwordx4 {vr(XB+4*u,4)}, v12, s[{S_XB}:{S_XB+3}], s41 offen offset:{u*32}")
        k0 = 12 * st
        for k in range(3): e.extend(reads(k0 + k))
        for ks in range(k0, k0 + 12):
            left = k0 + 11 - ks
            e(f"s_waitcnt lgkmcnt({min(15, 2 * NT * min(2, left))})")
            b = WB + 4 * NT * (ks % 4)
            rd = reads(ks + 3) if ks + 3 < k0 + 12 else []
            for T in range(NT):
                e(f"v_mfma_f32_32x32x16_bf16 {vr(ACC+16*T,16)}, {vr(b+4*T,4)}, {ar(4*ks,4)}, " + ("0" if ks == 0 else vr(ACC + 16 * T, 16)))
                e.extend(rd[2 * T:2 * T + 2])
    e("s_mov_b32 s42, 0x00003f80"); e("s_mov_b32 s43, 0x3f800000"); e("s_mov_b32 s44, 0x3f803f80")
    e("s_mul_i32 s45, s9, 36"); e("s_add_u32 s45, s45, s11"); e("s_lshl_b32 s45, s45, 10"); e(f"s_add_u32 s45, s45, {LY.X1F}")
    e("v_mov_b32 v2, 0"); e("v_mov_b32 v3, 0")
    e("s_waitcnt vmcnt(0)")
    e("s_nop 7")
    for u in range(nx):
        T, hq = divmod(u, 2); b = ACC + 16 * T + 8 * hq; x = XB + 4 * u; P = 64 + 4 * u
        for j in range(4):
            e(f"v_dot2c_f32_bf16 v{b+2*j}, s42, v{x+j}")
            e(f"v_dot2c_f32_bf16 v{b+2*j+1}, s43, v{x+j}")
        e("s_nop 2")
        for j in range(4): e(f"v_cvt_pk_bf16_f32 v{P+j}, v{b+2*j}, v{b+2*j+1}")
        e(f"buffer_store_dwordx4 {vr(P,4)}, v1, s[{S_WS}:{S_WS+3}], s45 offen offset:{(u%4)*1024} sc1")
        if u == 3 and nx > 4: e("s_add_u32 s45, s45, 4096")
        for j in range(4):
            e(f"v_dot2c_f32_bf16 v2, s44, v{P+j}")
            e(f"v_dot2c_f32_bf16 v3, v{P+j}, v{P+j}")
    e("v_lshlrev_b32 v4, 14, v5"); e("v_lshlrev_b32 v6, 2, v11"); e("v_add_u32 v4, v4, v6")
    e("s_lshl_b32 s46, s33, 14"); e("s_lshl_b32 s47, s9, 7"); e("s_add_u32 s46, s46, s47"); e(f"s_add_u32 s46, s46, {LY.ST2}")
    e("s_add_u32 s47, s46, 8192")
    e(f"buffer_store_dword v2, v4, s[{S_WS}:{S_WS+3}], s46 offen sc1")
    e(f"buffer_store_dword v3, v4, s[{S_WS}:{S_WS+3}], s47 offen sc1")

def repack_dma(e):
    for i in range(18):
        e(f"s_add_u32 m0, s54, {IMG2 + i*1024}")
        e(f"s_add_u32 s55, s56, s57") if i == 0 else e("s_add_u32 s55, s55, s58")
        e(f"buffer_load_dwordx4 v16, s[{S_RP}:{S_RP+3}], s55 offen lds")

def repack_setup(e):
    e(f"s_load_dwordx2 s[60:61], s[0:1], {KA_W3}")
    e(f"s_load_dwordx2 s[62:63], s[0:1], {KA_WO}")
    e("s_cmp_lt_u32 s53, 72")
    e("s_cselect_b32 s59, 1, 0")
    e("s_movk_i32 s58, 1152"); e("s_cselect_b32 s58, 9216, s58")
    e("s_sub_u32 s56, s53, 72"); e("s_mul_i32 s55, s56, 86"); e("s_lshr_b32 s55, s55, 8")
    e("s_mul_i32 s57, s55, 3"); e("s_sub_u32 s57, s56, s57")
    e("s_mul_i32 s56, s55, 288"); e("s_lshl_b32 s54, s57, 7"); e("s_add_u32 s56, s56, s54")
    e("s_lshl_b32 s54, s53, 7"); e("s_cmp_lt_u32 s53, 72"); e("s_cselect_b32 s56, s54, s56")
    e("s_waitcnt lgkmcnt(0)")
    e("s_cmp_lt_u32 s53, 72")
    e(f"s_cselect_b32 s{S_RP}, s60, s62"); e(f"s_cselect_b32 s{S_RP+1}, s61, s63")
    e(f"s_mov_b32 s{S_RP+2}, {576*576*2}"); e(f"s_cselect_b32 s{S_RP+2}, {576*4608*2}, s{S_RP+2}")
    e("s_cmp_lt_u32 s53, 84"); e(f"s_cselect_b32 s{S_RP+2}, s{S_RP+2}, 0")
    e(f"s_and_b32 s{S_RP+1}, s{S_RP+1}, 0xffff"); e(f"s_mov_b32 s{S_RP+3}, 0x20000")
    e("v_lshrrev_b32 v17, 3, v0"); e("v_and_b32 v18, 7, v0"); e("v_bfe_u32 v19, v0, 4, 1"); e("v_mul_u32_u24 v19, s59, v19"); e("v_lshlrev_b32 v19, 2, v19"); e("v_xor_b32 v18, v18, v19")
    e("v_mul_lo_u32 v17, v17, s58"); e("v_lshlrev_b32 v18, 4, v18"); e("v_add_u32 v16, v17, v18")
    e("s_mul_i32 s57, s8, 144"); e("s_mul_i32 s57, s57, s58")
    e("s_mul_i32 s54, s8, 18432")
    e("s_lshl_b32 s58, s58, 3")

def repack_w3(e):
    lane_tr_parts(e, 5, 6, 7, 8)
    e("s_and_b32 s40, s8, 1"); e("s_lshr_b32 s41, s8, 1")
    e("v_lshlrev_b32 v9, 1, v6"); e("v_lshrrev_b32 v10, 1, v8"); e("v_add_u32 v9, v9, v10")
    e("s_lshl_b32 s42, s40, 2"); e("v_add_u32 v9, s42, v9")
    e("v_lshrrev_b32 v10, 1, v7"); e("v_lshlrev_b32 v10, 2, v10"); e("v_xor_b32 v9, v9, v10")
    e("v_lshlrev_b32 v9, 4, v9"); e("v_and_b32 v10, 1, v8"); e("v_lshlrev_b32 v10, 3, v10"); e("v_add_u32 v9, v9, v10")
    e("v_lshlrev_b32 v10, 3, v5"); e("v_add_u32 v10, v10, v7"); e("v_lshlrev_b32 v10, 7, v10"); e("v_add_u32 v9, v9, v10")
    e("s_mul_i32 s42, s41, 36864"); e(f"s_add_u32 s42, s42, {IMG2}"); e("v_add_u32 v9, s42, v9")
    F = 16
    for k in range(18):
        for q in range(2):
            e(f"ds_read_b64_tr_b16 {vr(F+4*k+2*q,2)}, v9 offset:{k*2048+q*512}")
    if Opt.rp_fast:
        for a in range(4): e(f"v_mov_b32 v{104+a}, 0x3f803f80")
        CS = 112
        e("s_nop 0")
        for k in range(18):
            if k % 3 == 0: e(f"s_waitcnt lgkmcnt({min(15, 36 - 2*(k+3))})")
            e(f"v_mfma_f32_32x32x16_bf16 {vr(CS,16)}, v[104:107], {vr(F+4*k,4)}, " + ("0" if k == 0 else vr(CS, 16)))
        e("v_lshlrev_b32 v12, 2, v0"); e("s_lshl_b32 s42, s8, 8"); e(f"s_add_u32 s42, s42, {XCH}"); e("v_add_u32 v13, s42, v12")
        e("s_nop 8")
        e(f"v_mov_b32 v10, v{CS}")
        e("ds_write_b32 v13, v10")
    else:
        e("s_mov_b32 s43, 0x3f803f80")
        for a in range(4): e(f"v_mov_b32 v{10+a}, 0")
        for k in range(18):
            if k % 3 == 0: e(f"s_waitcnt lgkmcnt({min(15, 36 - 2*(k+3))})")
            for j in range(4): e(f"v_dot2c_f32_bf16 v{10+j}, s43, v{F+4*k+j}")
        e("s_nop 2")
        e("v_add_f32 v10, v10, v11"); e("v_add_f32 v12, v12, v13"); e("v_add_f32 v10, v10, v12")
        e("v_mov_b32 v11, v10"); e("v_lshlrev_b32 v12, 2, v0"); e("s_lshl_b32 s42, s8, 8"); e("v_permlane32_swap_b32 v10, v11"); e("v_add_f32 v10, v10, v11")
        e(f"s_add_u32 s42, s42, {XCH}"); e("v_add_u32 v13, s42, v12")
        e("ds_write_b32 v13, v10")
    e("s_mov_b32 s44, 0x00003f80"); e("s_mov_b32 s45, 0x3f800000")
    e("s_xor_b32 s42, s8, 2"); e("s_lshl_b32 s42, s42, 8"); e(f"s_add_u32 s42, s42, {XCH}"); e("v_add_u32 v13, s42, v12")
    e("s_waitcnt lgkmcnt(0)"); e("s_barrier")
    e("ds_read_b32 v11, v13"); e("s_waitcnt lgkmcnt(0)")
    e("v_add_f32 v10, v10, v11"); e(f"v_mul_f32 v10, {hexf(-1/576)}, v10")
    e("s_lshl_b32 s46, s53, 1"); e("s_add_u32 s46, s46, s40")
    e(f"s_mul_i32 s47, s46, 36864"); e(f"s_add_u32 s47, s47, {LY.W3P}")
    e("s_mul_i32 s42, s41, 18432"); e("s_add_u32 s47, s47, s42")
    TS = [88, 96]
    def fink(k):
        t = TS[k % 2]
        for j in range(4): e(f"v_cvt_pk_bf16_f32 v{F+4*k+j}, v{t+2*j}, v{t+2*j+1}")
        e(f"buffer_store_dwordx4 {vr(F+4*k,4)}, v1, s[{S_WS}:{S_WS+3}], s47 offen offset:{(k%4)*1024} sc1")
        if k % 4 == 3: e("s_add_u32 s47, s47, 4096")
    if Opt.rp_fast:
        e("v_mov_b32 v11, v10")
        for k in range(18):
            t = TS[k % 2]
            for j in range(4):
                e(f"v_lshlrev_b32 v{t+2*j}, 16, v{F+4*k+j}"); e(f"v_and_b32 v{t+2*j+1}, 0xffff0000, v{F+4*k+j}")
            for j in range(4): e(f"v_pk_add_f32 {vr(t+2*j,2)}, {vr(t+2*j,2)}, v[10:11]")
            fink(k)
    else:
        for k in range(18):
            t = TS[k % 2]
            for j in range(4):
                e(f"v_dot2_f32_bf16 v{t+2*j}, v{F+4*k+j}, s44, v10")
                e(f"v_dot2_f32_bf16 v{t+2*j+1}, v{F+4*k+j}, s45, v10")
            if k > 0: fink(k - 1)
        e("s_nop 2")
        fink(17)

def repack_wo(e, skip_label):
    e("s_sub_u32 s46, s53, 72"); e("s_mul_i32 s40, s46, 86"); e("s_lshr_b32 s40, s40, 8")
    e("s_mul_i32 s41, s40, 3"); e("s_sub_u32 s41, s46, s41")
    lane_tr_parts(e, 5, 6, 7, 8)
    e("s_and_b32 s42, s8, 1"); e("s_lshr_b32 s43, s8, 1")
    e("v_lshlrev_b32 v9, 5, v6"); e("v_lshlrev_b32 v10, 3, v8"); e("v_add_u32 v9, v9, v10"); e("s_lshl_b32 s44, s42, 6"); e(f"s_add_u32 s44, s44, {IMG2}"); e("v_add_u32 v9, s44, v9")
    e("v_lshlrev_b32 v10, 2, v5"); e("v_add_u32 v10, v10, v7"); e("v_lshlrev_b32 v10, 7, v10"); e("v_add_u32 v10, v10, v9")
    e(f"s_mul_i32 s44, s43, {324*128}"); e("v_add_u32 v10, s44, v10")
    e("v_lshrrev_b32 v11, 1, v7"); e("v_lshlrev_b32 v12, 2, v5"); e("v_add_u32 v12, v12, v11"); e("v_mul_u32_u24 v12, 18, v12")
    e("v_xor_b32 v11, 1, v11"); e("v_lshlrev_b32 v11, 4, v11"); e("v_add_u32 v12, v12, v11"); e("v_and_b32 v11, 1, v7"); e("v_add_u32 v12, v12, v11")
    e("v_lshlrev_b32 v12, 7, v12"); e("v_add_u32 v12, v12, v9")
    F = 16
    for k in range(14):
        for q in range(2):
            e(f"ds_read_b64_tr_b16 {vr(F+4*k+2*q,2)}, v10 offset:{(18*k + 8*q + 2*(k&1))*128}")
    e("s_cmp_eq_u32 s43, 0"); e("s_cbranch_scc0 K2_wo_x")
    for k in range(14, 18):
        for q in range(2):
            e(f"ds_read_b64_tr_b16 {vr(F+4*k+2*q,2)}, v10 offset:{(18*k + 8*q + 2*(k&1))*128}")
    e("s_branch K2_wo_y")
    e.label("K2_wo_x")
    for k in range(14, 18):
        for q in range(2):
            e(f"ds_read_b64_tr_b16 {vr(F+4*k+2*q,2)}, v12 offset:{18*(8*(k-14) + 2*q)*128}")
    e.label("K2_wo_y")
    e("s_lshl_b32 s44, s41, 1"); e("s_add_u32 s44, s44, s42")
    e("s_cmp_eq_u32 s44, 5"); e(f"s_cbranch_scc1 {skip_label}")
    e("s_mul_i32 s45, s40, 5"); e("s_add_u32 s45, s45, s44"); e("s_mul_i32 s45, s45, 36"); e("s_mul_i32 s46, s43, 18"); e("s_add_u32 s45, s45, s46")
    e("s_lshl_b32 s47, s45, 10"); e(f"s_add_u32 s47, s47, {LY.WOP}")
    e("s_waitcnt lgkmcnt(0)")
    for k in range(18):
        e(f"buffer_store_dwordx4 {vr(F+4*k,4)}, v1, s[{S_WS}:{S_WS+3}], s47 offen offset:{(k%4)*1024}")
        if k % 4 == 3: e("s_add_u32 s47, s47, 4096")

def gen_prephase(e):
    e(f"s_load_dwordx2 s[{S_DBG}:{S_DBG+1}], s[0:1], {KA_DBG}") if not Opt.cnt_ws else None
    if Opt.cnt_ws:
        e(f"s_add_u32 s{S_DBG}, s4, {LY.CNT}"); e(f"s_addc_u32 s{S_DBG+1}, s5, 0")
    e("s_cmp_lt_u32 s7, 16"); e("s_cbranch_scc0 K2_pre_att")
    if Opt.gemm_local:
        e("s_lshr_b32 s64, s7, 3"); e("s_lshl_b32 s65, s6, 1"); e("s_add_u32 s64, s64, s65"); e("s_and_b32 s65, s7, 7")
    else:
        e("s_mov_b32 s64, s7"); e("s_mov_b32 s65, s6")
    e.label("K2_pre_gemm")
    e("s_lshl_b32 s9, s64, 2"); e("s_add_u32 s9, s9, s8")
    e("s_lshl_b32 s33, s65, 1")
    e("s_lshl_b32 s10, s65, 7"); e("s_lshl_b32 s11, s65, 2")
    gemm(e, 2, False)
    stamp(e, 3, 'pre')
    e(f"s_mul_i32 s48, s64, {CSTEP}")
    publish(e, 48)
    e("s_branch K2_pre_end")
    e.label("K2_pre_att")
    e("s_sub_u32 s53, s7, 16"); e("s_lshl_b32 s53, s53, 3"); e("s_add_u32 s53, s53, s6")
    e("s_cmp_lt_u32 s53, 16"); e("s_cbranch_scc0 K2_pre_rp")
    if Opt.gemm_local:
        e("s_lshr_b32 s64, s53, 3"); e("s_lshl_b32 s65, s6, 1"); e("s_add_u32 s64, s64, s65"); e("s_mov_b32 s65, 8")
    else:
        e("s_mov_b32 s64, s53"); e("s_mov_b32 s65, 8")
    e("s_branch K2_pre_gemm")
    e.label("K2_pre_rp")
    e("s_cmp_lt_u32 s53, 100"); e("s_cbranch_scc0 K2_pre_end")
    e("s_sub_u32 s53, s53, 16")
    e("v_lshlrev_b32 v1, 4, v0")
    repack_setup(e)
    repack_dma(e)
    e("s_waitcnt vmcnt(0)"); e("s_barrier")
    stamp(e, 4, 'pre')
    e("s_cmp_lt_u32 s53, 72"); e("s_cbranch_scc1 K2_rw3")
    repack_wo(e, "K2_pre_lds")
    e("s_branch K2_pre_lds")
    e.label("K2_rw3")
    repack_w3(e)
    stamp(e, 5, 'pre')
    e("s_mul_i32 s48, s53, 57"); e("s_lshr_b32 s48, s48, 9"); e(f"s_mul_i32 s48, s48, {CSTEP}"); e(f"s_add_u32 s48, s48, {CNT_W}")
    publish(e, 48)
    e("s_branch K2_pre_end")
    e.label("K2_pre_lds")
    if Opt.fuse_l4:
        e(f"s_movk_i32 s48, {CNT_WO}")
        publish(e, 48)
    else:
        e("s_barrier")
    e.label("K2_pre_end")
    stamp(e, 6, 'pre')

def gen_mlp_wait(e):
    e(f"s_mul_i32 s48, s7, {CSTEP}"); e(f"s_mul_i32 s49, s6, {CSTEP}"); e(f"s_add_u32 s49, s49, {CNT_W}")
    w = [(48, 9), (49, 6 if Opt.single else 9)]
    if Opt.fuse_l4 and Opt.early_wo and not Opt.single:
        e(f"s_movk_i32 s47, {CNT_WO}"); w.append((47, 12))
    wait_counters(e, w, acquire=Opt.acquire)


def gemm_early(e):
    KS = 2048
    e(f"s_load_dwordx2 s[24:25], s[0:1], {KA_W2}")
    e("v_lshrrev_b32 v5, 3, v0"); e("v_and_b32 v6, 7, v0"); e("v_bfe_u32 v7, v0, 4, 1"); e("v_lshlrev_b32 v7, 2, v7"); e("v_xor_b32 v6, v6, v7")
    e("v_mul_u32_u24 v5, 1152, v5"); e("v_lshlrev_b32 v6, 4, v6"); e("v_add_u32 v2, v5, v6"); e(f"v_add_u32 v3, {9216-1024}, v2")
    e("s_waitcnt lgkmcnt(0)")
    make_srd(e, S_SRC, 24, 576 * 576 * 2)
    e("s_mul_i32 s28, s8, 18432"); e("s_lshl_b32 s29, s65, 7"); e("s_add_u32 s28, s28, s29")
    e(f"s_mul_i32 s29, s8, {KS}")
    for ch in range(9):
        e(f"s_add_u32 m0, s29, {4*ch*KS}")
        e(f"s_add_u32 s31, s28, {ch*4*18432}")
        e(f"buffer_load_dwordx4 v2, s[{S_SRC}:{S_SRC+3}], s31 offen lds")
        e(f"buffer_load_dwordx4 v3, s[{S_SRC}:{S_SRC+3}], s31 offen offset:1024 lds")

def gemm_single(e):
    NT = 2; KS = 2048
    e("s_lshl_b32 s9, s64, 2"); e("s_add_u32 s9, s9, s8")
    e("s_lshl_b32 s33, s65, 1"); e("s_lshl_b32 s10, s65, 7"); e("s_lshl_b32 s11, s65, 2")
    e(f"s_load_dwordx2 s[26:27], s[0:1], {KA_XA}")
    e("v_lshlrev_b32 v1, 4, v0")
    e("s_waitcnt lgkmcnt(0)")
    make_srd(e, S_XB, 26, 2048 * 576 * 2)
    lane_tr_parts(e, 5, 6, 7, 8)
    e("v_lshlrev_b32 v9, 1, v6"); e("v_lshrrev_b32 v10, 1, v8"); e("v_add_u32 v9, v9, v10")
    e("v_lshrrev_b32 v10, 1, v7"); e("v_lshlrev_b32 v10, 2, v10"); e("v_xor_b32 v9, v9, v10"); e("v_lshlrev_b32 v9, 4, v9")
    e("v_and_b32 v10, 1, v8"); e("v_lshlrev_b32 v10, 3, v10"); e("v_add_u32 v9, v9, v10")
    e("v_lshlrev_b32 v10, 3, v5"); e("v_add_u32 v10, v10, v7"); e("v_lshlrev_b32 v10, 7, v10"); e("v_add_u32 v9, v9, v10")
    e("v_xor_b32 v10, 64, v9"); e("v_add_u32 v13, 36864, v9"); e("v_add_u32 v14, 36864, v10")
    ACC = 16; WB = 64; XB = 112; nx = 4
    def reads(ks):
        b = WB + 8 * (ks % 4)
        return [f"ds_read_b64_tr_b16 {vr(b+4*T+2*q,2)}, v{[[9, 10], [13, 14]][ks//18][T]} offset:{(ks%18)*2048 + q*512}" for T in range(2) for q in range(2)]
    e("v_and_b32 v11, 31, v0"); e("s_movk_i32 s32, 1152"); e("v_mul_lo_u32 v12, v11, s32"); e("v_lshlrev_b32 v4, 4, v5"); e("v_add_u32 v12, v12, v4")
    e("s_mul_i32 s41, s9, 36864"); e("s_add_u32 s41, s41, s10")
    for u in range(nx):
        e(f"buffer_load_dwordx4 {vr(XB+4*u,4)}, v12, s[{S_XB}:{S_XB+3}], s41 offen offset:{u*32}")
    stamp(e, 1, 'pre')
    e(f"s_mul_i32 s48, s64, {CSTEP}"); e(f"s_add_u32 s48, s48, {CNT_HS}")
    wait_counters(e, [(48, 8)])
    e("s_waitcnt vmcnt(0)")
    e("s_barrier")
    stamp(e, 2, 'pre')
    e("s_mul_i32 s40, s9, 36864"); e(f"s_add_u32 s40, s40, {LY.HS}")
    for j in range(36):
        e(f"buffer_load_dwordx4 {ar(4*j,4)}, v1, s[{S_WS}:{S_WS+3}], s40 offen offset:{(j%4)*1024} sc1")
        if j % 4 == 3 and j != 35: e("s_add_u32 s40, s40, 4096")
    for k in range(3): e.extend(reads(k))
    for ks in range(36):
        if ks % 4 == 0: e(f"s_waitcnt vmcnt({32 - ks})")
        e(f"s_waitcnt lgkmcnt({4 * min(2, 35 - ks)})")
        b = WB + 8 * (ks % 4)
        rd = reads(ks + 3) if ks + 3 < 36 else []
        for T in range(2):
            e(f"v_mfma_f32_32x32x16_bf16 {vr(ACC+16*T,16)}, {vr(b+4*T,4)}, {ar(4*ks,4)}, " + ("0" if ks == 0 else vr(ACC + 16 * T, 16)))
            e.extend(rd[2 * T:2 * T + 2])
    e("s_mov_b32 s42, 0x00003f80"); e("s_mov_b32 s43, 0x3f800000"); e("s_mov_b32 s44, 0x3f803f80")
    e("s_mul_i32 s45, s9, 36"); e("s_add_u32 s45, s45, s11"); e("s_lshl_b32 s45, s45, 10"); e(f"s_add_u32 s45, s45, {LY.X1F}")
    e("v_mov_b32 v2, 0"); e("v_mov_b32 v3, 0")
    e("s_nop 9")
    for u in range(nx):
        T, hq = divmod(u, 2); b = ACC + 16 * T + 8 * hq; x = XB + 4 * u; P = 64 + 4 * u
        for j in range(4):
            e(f"v_dot2c_f32_bf16 v{b+2*j}, s42, v{x+j}")
            e(f"v_dot2c_f32_bf16 v{b+2*j+1}, s43, v{x+j}")
        e("s_nop 2")
        for j in range(4): e(f"v_cvt_pk_bf16_f32 v{P+j}, v{b+2*j}, v{b+2*j+1}")
        e(f"buffer_store_dwordx4 {vr(P,4)}, v1, s[{S_WS}:{S_WS+3}], s45 offen offset:{u*1024} sc1")
        for j in range(4):
            e(f"v_dot2c_f32_bf16 v2, s44, v{P+j}")
            e(f"v_dot2c_f32_bf16 v3, v{P+j}, v{P+j}")
    e("v_lshlrev_b32 v4, 14, v5"); e("v_lshlrev_b32 v6, 2, v11"); e("v_add_u32 v4, v4, v6")
    e("s_lshl_b32 s46, s33, 14"); e("s_lshl_b32 s47, s9, 7"); e("s_add_u32 s46, s46, s47"); e(f"s_add_u32 s46, s46, {LY.ST2}")
    e("s_add_u32 s47, s46, 8192")
    e(f"buffer_store_dword v2, v4, s[{S_WS}:{S_WS+3}], s46 offen sc1")
    e(f"buffer_store_dword v3, v4, s[{S_WS}:{S_WS+3}], s47 offen sc1")
    stamp(e, 3, 'pre')
    e(f"s_mul_i32 s48, s64, {CSTEP}")
    publish(e, 48)

def unit_select(e):
    L = f"Lus_{len(e.L)}"
    e("s_mov_b32 s67, 1")
    e("s_cmp_lt_u32 s7, 16"); e(f"s_cbranch_scc0 {L}_a")
    e("s_lshr_b32 s64, s7, 3"); e("s_lshl_b32 s65, s6, 1"); e("s_add_u32 s64, s64, s65"); e("s_and_b32 s65, s7, 7")
    e(f"s_branch {L}_z")
    e.label(f"{L}_a")
    e("s_cmp_lt_u32 s7, 24"); e(f"s_cbranch_scc0 {L}_h")
    e("s_sub_u32 s68, s7, 16"); e("s_lshl_b32 s68, s68, 3"); e("s_add_u32 s68, s68, s6")
    e("s_cmp_lt_u32 s68, 16"); e(f"s_cbranch_scc0 {L}_b")
    e("s_lshr_b32 s64, s68, 3"); e("s_lshl_b32 s65, s6, 1"); e("s_add_u32 s64, s64, s65"); e("s_mov_b32 s65, 8")
    e(f"s_branch {L}_z")
    e.label(f"{L}_b")
    e("s_mov_b32 s67, 2")
    e("s_sub_u32 s68, s68, 16"); e("s_mul_i32 s64, s68, 43"); e("s_lshr_b32 s64, s64, 8")
    e("s_mul_i32 s65, s64, 3"); e("s_add_u32 s68, s68, s65")
    e(f"s_mul_i32 s65, s64, {CSTEP}"); e(f"s_add_u32 s65, s65, {CNT_W}")
    e(f"s_branch {L}_z")
    e.label(f"{L}_h")
    e("s_mov_b32 s67, 2")
    e("s_sub_u32 s68, s7, 24"); e("s_lshl_b32 s68, s68, 3"); e("s_add_u32 s68, s68, s6")
    e("s_cmp_lt_u32 s68, 24"); e(f"s_cbranch_scc0 {L}_w")
    e("s_mul_i32 s64, s68, 86"); e("s_lshr_b32 s64, s64, 8")
    e("s_mul_i32 s65, s64, 6"); e("s_add_u32 s68, s68, s65"); e("s_add_u32 s68, s68, 6")
    e(f"s_mul_i32 s65, s64, {CSTEP}"); e(f"s_add_u32 s65, s65, {CNT_WL}")
    e(f"s_branch {L}_z")
    e.label(f"{L}_w")
    e("s_cmp_lt_u32 s68, 36"); e("s_cselect_b32 s67, 2, 0")
    e("s_add_u32 s68, s68, 48")
    e(f"s_movk_i32 s65, {CNT_WO}")
    e.label(f"{L}_z")

def unit_early(e):
    L = f"Lue_{len(e.L)}"
    unit_select(e)
    e("s_cmp_eq_u32 s67, 1"); e(f"s_cbranch_scc0 {L}_r")
    gemm_early(e)
    e(f"s_branch {L}_z")
    e.label(f"{L}_r")
    e("s_mov_b32 s53, s68")
    repack_setup(e)
    repack_dma(e)
    e.label(f"{L}_z")

def unit_early_h(e):
    e("s_waitcnt vmcnt(0)"); e("s_barrier")
    unit_select(e)
    e("s_cmp_eq_u32 s67, 0"); e("s_cbranch_scc1 K_h_nounit")
    e("s_mov_b32 s53, s68")
    repack_setup(e)
    repack_dma(e)
    e.label("K_h_nounit")

def gen_prephase_single(e):
    e.label("K_pre")
    e("s_cmp_eq_u32 s67, 1"); e("s_cbranch_scc0 K_pre_rp2")
    gemm_single(e)
    e("s_branch K_pre_end")
    e.label("K_pre_h")
    e("s_cmp_eq_u32 s67, 0"); e("s_cbranch_scc1 K_pre_end")
    e.label("K_pre_rp2")
    e("v_lshlrev_b32 v1, 4, v0")
    e("s_mov_b32 s53, s68")
    e("s_waitcnt vmcnt(0)"); e("s_barrier")
    stamp(e, 4, 'pre')
    e("s_cmp_lt_u32 s53, 72"); e("s_cbranch_scc1 K_rw3")
    repack_wo(e, "K_pre_pub")
    e("s_branch K_pre_pub")
    e.label("K_rw3")
    repack_w3(e)
    e.label("K_pre_pub")
    stamp(e, 5, 'pre')
    e("s_mov_b32 s48, s65")
    publish(e, 48)
    e("s_cmp_ge_u32 s53, 72"); e("s_cbranch_scc0 K_pre_end"); e("s_cmp_eq_u32 s8, 0"); e("s_cbranch_scc0 K_pre_end")
    e("s_mov_b64 exec, 0xff")
    e(f"v_lshlrev_b32 v250, 7, v0"); e(f"v_add_u32 v250, {CNT_WL}, v250"); e("v_mov_b32 v251, 1")
    e(f"global_atomic_add v250, v251, s[{S_DBG}:{S_DBG+1}] sc1")
    e("s_mov_b64 exec, -1")
    e.label("K_pre_end")
    stamp(e, 6, 'pre')
```

```python
from gen_common import *
HEADER = open("gated_mix__softmax_full_mha__mixer_s_mlp__prompt.s.ref").read().split("; Override launch geometry")[0]
DOC = """;
"""
PLAIN = False
MAIN = "gated_mix__softmax_full_mha__mixer_s_mlp__prompt_kernel"
def build(kernels, path):
    s = HEADER
    plain = len(kernels) == 1 and PLAIN
    if plain:
        name, text, grid, block, lds, vgpr, accum = kernels[0]
        kernels = [(MAIN, text.replace(name, MAIN), grid, block, lds, vgpr, accum)]
        s += f"; @launch grid=({grid},1,1) block=({block},1,1) lds={lds}\n"
    for name, text, grid, block, lds, vgpr, accum in ([] if plain else kernels):
        s += f"; @launch kernel={name} grid=({grid},1,1) block=({block},1,1) lds={lds}\n"
    s += DOC
    s += '.amdgcn_target "amdgcn-amd-amdhsa--gfx950"\n.text\n'
    seen = []
    for name, text, grid, block, lds, vgpr, accum in kernels:
        if name in seen: continue
        seen.append(name)
        s += text
    s += '.section .rodata,"a"\n'
    seen = []
    for name, text, grid, block, lds, vgpr, accum in kernels:
        if name in seen: continue
        seen.append(name)
        s += ".p2align 6\n" + kernel_desc(name, vgpr, accum)
    open(path, "w").write(s)
    return s
```

```python
from gen_common import *
import gen_common, gen_l1, gen_l3, gen_l4, gen_pre
NAME = "k_kernel"
LDS_BYTES = gen_l1.LDS_BYTES
S_DBGP = 56

def publish_l1(e, offs, nstores=None, hvar=False):
    lab = f"Lp1_{len(e.L)}"
    e("s_mov_b64 exec, -1")
    e(f"s_load_dwordx2 s[46:47], s[0:1], {KA_DBG}")
    e(f"s_add_u32 s34, s4, {LY.CNT}"); e("s_addc_u32 s35, s5, 0")
    e("v_mov_b32 v248, 0"); e("v_mov_b32 v249, 0")
    if nstores is not None:
        e(f"s_waitcnt vmcnt({nstores}) lgkmcnt(0)"); e("s_barrier")
    else:
        e("s_waitcnt lgkmcnt(0)")
    e("s_cmp_eq_u32 s8, 0"); e(f"s_cbranch_scc0 {lab}_a")
    e("global_load_dword v249, v248, s[46:47] sc1")
    e.label(f"{lab}_a")
    if nstores is not None:
        gen_pre.unit_early(e)
    else:
        e("s_waitcnt vmcnt(0)")
    e("s_barrier")
    e("s_cmp_eq_u32 s8, 0"); e(f"s_cbranch_scc0 {lab}_z")
    e("s_mov_b32 s50, 0x40000")
    e.label(f"{lab}_b")
    e("v_readfirstlane_b32 s52, v249"); e("s_cmp_lg_u32 s52, 0"); e(f"s_cbranch_scc1 {lab}_c")
    e("global_load_dword v249, v248, s[46:47] sc1"); e("s_waitcnt vmcnt(0)")
    e("s_sub_u32 s50, s50, 1"); e("s_cmp_lg_u32 s50, 0"); e(f"s_cbranch_scc1 {lab}_b")
    e.label(f"{lab}_c")
    e("s_mov_b64 exec, 1")
    e("v_mov_b32 v251, 1")
    for o in offs:
        e(f"v_mov_b32 v250, s{o}"); e("global_atomic_add v250, v251, s[34:35] sc1")
    e("s_mov_b64 exec, -1")
    e.label(f"{lab}_z")

CUR = {"variant": None, "mark": 0}
def l1_done(e, wave_sgpr=8):
    v = CUR["variant"]; C = gen_pre.CSTEP
    stamp(e, 7, 'l1')
    if v == "h":
        e(f"s_mul_i32 s48, s{gen_l1.S_RB}, {C}"); e(f"s_add_u32 s48, s48, {gen_pre.CNT_HS}")
        e(f"s_and_b32 s49, s{gen_l1.S_CQ}, 1"); e("s_lshl_b32 s49, s49, 1"); e("s_sub_u32 s49, 1, s49"); e(f"s_add_u32 s49, s49, s{gen_l1.S_RB}"); e("s_and_b32 s49, s49, 15")
        e(f"s_mul_i32 s49, s49, {C}"); e(f"s_add_u32 s49, s49, {gen_pre.CNT_HS}")
        publish_l1(e, [48, 49])
    else:
        ns = sum(1 for l in e.L[CUR["mark"]:] if l.strip().startswith("buffer_store"))
        e(f"s_mul_i32 s48, s{gen_l1.S_CQ}, {C}"); e(f"s_add_u32 s48, s48, {gen_pre.CNT_QKV}")
        publish_l1(e, [48], nstores=ns)
    e("s_branch K_pre_h" if v == "h" else "s_branch K_pre")

def hook(e, variant):
    if variant == "q0":
        e("s_cmp_eq_u32 s2, 0"); e("s_cbranch_scc0 K_noflag"); e("s_cmp_eq_u32 s8, 3"); e("s_cbranch_scc0 K_noflag")
        e("s_mov_b64 exec, 1"); e("v_mov_b32 v30, 0"); e("v_mov_b32 v31, 1")
        e(f"global_store_dword v30, v31, s[{S_DBGP}:{S_DBGP+1}] sc1")
        e("s_mov_b64 exec, -1")
        e.label("K_noflag")

def gen(force_slow=False):
    L = gen_l1
    L.fin = l1_done
    L.HOOK = hook
    L.stamp = lambda e, i, grp=None: stamp(e, i, 'l1')
    e = Emit()
    kernel_head(e, NAME)
    Diag.kid = 2
    S_WV, S_RB, S_CT, S_CQ = L.S_WV, L.S_RB, L.S_CT, L.S_CQ
    e("s_cmp_ge_u32 s2, 256")
    e("s_cbranch_scc1 L3_exit")
    e(f"s_load_dwordx2 s[4:5], s[0:1], {KA_WS}")
    e(f"s_load_dwordx4 s[52:55], s[0:1], {KA_XA}")
    e(f"s_load_dwordx2 s[58:59], s[0:1], {KA_W1}")
    e(f"s_load_dwordx2 s[60:61], s[0:1], {KA_GW}")
    e(f"s_load_dwordx2 s[{S_DBGP}:{S_DBGP+1}], s[0:1], {KA_DBG}")
    e("s_and_b32 s6, s2, 7"); e("s_lshr_b32 s7, s2, 3")
    e("v_lshrrev_b32 v1, 6, v0"); e("v_and_b32 v0, 63, v0")
    e(f"v_readfirstlane_b32 s{S_WV}, v1")
    e(f"s_and_b32 s{S_RB}, s6, 3"); e(f"s_lshl_b32 s{S_RB}, s{S_RB}, 2"); e("s_and_b32 s3, s7, 3"); e(f"s_add_u32 s{S_RB}, s{S_RB}, s3")
    e(f"s_lshr_b32 s{S_CQ}, s6, 2"); e(f"s_lshl_b32 s{S_CQ}, s{S_CQ}, 1"); e("s_bfe_u32 s3, s7, 0x10002"); e(f"s_add_u32 s{S_CQ}, s{S_CQ}, s3")
    e("s_lshr_b32 s3, s7, 3"); e(f"s_lshl_b32 s{S_CT}, s3, 2"); e(f"s_add_u32 s{S_CT}, s{S_CT}, s{S_CQ}")
    e(f"v_lshlrev_b32 v{L.V_L16}, 4, v0")
    e("s_waitcnt lgkmcnt(0)")
    make_srd(e, L.S_WS, 4, LY.WS_END)
    stamp(e, 0, 'any')
    dbg_start(e)
    e("s_cmp_eq_u32 s2, 0"); e("s_cbranch_scc0 K_nocnt"); e(f"s_cmp_eq_u32 s{S_WV}, 3"); e("s_cbranch_scc0 K_nocnt")
    e("v_lshlrev_b32 v2, 7, v0"); e("v_mov_b32 v3, 0"); e(f"s_mov_b32 s69, {LY.CNT}")
    e(f"buffer_store_dword v3, v2, s[{L.S_WS}:{L.S_WS+3}], s69 offen sc1")
    e("s_add_u32 s69, s69, 8192")
    e(f"buffer_store_dword v3, v2, s[{L.S_WS}:{L.S_WS+3}], s69 offen sc1")
    e.label("K_nocnt")
    e("s_cmp_eq_u32 s3, 3")
    e("s_cselect_b32 s64, s58, s54"); e("s_cselect_b32 s65, s59, s55")
    e(f"s_movk_i32 s{L.S_RS}, 3456"); e(f"s_cselect_b32 s{L.S_RS}, 1152, s{L.S_RS}")
    e(f"s_mov_b32 s67, {L.SLOT}"); e(f"s_mov_b32 s68, {(-3*L.SLOT) & 0xffffffff}")
    e(f"s_cselect_b32 s66, s{S_CQ}, s{S_CT}")
    make_srd(e, L.S_X, 52, 2048 * 576 * 2)
    e(f"s_mov_b32 s{L.S_W}, s64"); e(f"s_and_b32 s{L.S_W+1}, s65, 0xffff"); e(f"s_mul_i32 s{L.S_W+2}, s{L.S_RS}, 576"); e(f"s_mov_b32 s{L.S_W+3}, 0x20000")
    make_srd(e, L.S_GW, 60, 1152)
    e(f"s_lshl_b32 s{L.S_XO}, s{S_RB}, 2"); e(f"s_add_u32 s{L.S_XO}, s{L.S_XO}, s{S_WV}"); e(f"s_mul_i32 s{L.S_XO}, s{L.S_XO}, 36864")
    e(f"s_mul_i32 s{L.S_WO}, s66, 288")
    e(f"s_lshl_b32 s{L.S_WSTEP}, s{L.S_RS}, 6")
    L.prologue_rot(e)
    L.setup_common(e)
    e("s_mov_b32 s40, 0x3f803f80")
    e("s_cmp_eq_u32 s3, 2"); e("s_cbranch_scc1 L1_v")
    e("s_cmp_eq_u32 s3, 3"); e("s_cbranch_scc1 L1_h")
    e(f"s_cmp_eq_u32 s{S_CT}, 0"); e("s_cbranch_scc0 L1_qk")
    e(f"s_mov_b32 m0, {L.GW_OFF}"); e("s_nop 0")
    e(f"buffer_load_dwordx4 v{L.V_L16}, s[{L.S_GW}:{L.S_GW+3}], 0 offen lds")
    e(f"buffer_load_dwordx4 v{L.V_L16}, s[{L.S_GW}:{L.S_GW+3}], 0 offen offset:1024 lds")
    for variant in ("q0", "qk"):
        CUR["variant"] = variant
        if variant == "qk": e.label("L1_qk")
        L.prologue_dma(e)
        L.waddr_heads(e, True)
        if variant == "q0":
            e("v_lshrrev_b32 v21, 5, v0"); e("v_lshlrev_b32 v21, 4, v21"); e(f"v_add_u32 v{L.V_GA}, {L.GW_OFF}, v21")
            e(f"s_lshl_b32 s69, s{L.S_KC}, 7"); e(f"v_add_u32 v{L.V_GA}, s69, v{L.V_GA}")
        L.zero_acc(e, variant)
        e("s_cmp_eq_u32 s3, 0")
        e(f"s_cselect_b32 s41, {hexf(L.QSCALE)}, 1.0"); e(f"s_mov_b32 s42, {LY.KF0}"); e(f"s_cselect_b32 s42, {LY.QF0}, s42"); e(f"s_mov_b32 s43, {LY.KX}"); e(f"s_cselect_b32 s43, {LY.QX}, s43")
        L.main_loop(e, variant)
        CUR["mark"] = len(e.L)
        L.epi_qk(e, variant == "q0")
    e.label("L1_v"); CUR["variant"] = "v"
    L.prologue_dma(e); L.waddr_heads(e, False); L.zero_acc(e, "v"); L.main_loop(e, "v"); CUR["mark"] = len(e.L); L.epi_v(e)
    e.label("L1_h"); CUR["variant"] = "h"
    L.prologue_dma(e); L.waddr_dense(e)
    e(f"s_lshl_b32 s69, s{S_WV}, 6"); e(f"v_add_u32 v{L.V_WC}, s69, v{L.V_WA}")
    L.zero_acc(e, "h"); L.main_loop(e, "h")
    CUR["mark"] = len(e.L)
    L.epi_h(e)
    gen_pre.gen_prephase_single(e)
    e("s_cmp_lt_u32 s7, 16")
    e("s_cbranch_scc0 L3_attn")
    gen_l3.gen_mlp(e)
    gen_l3.gen_attn(e, force_slow)
    gen_l4.final(e)
    e.label("L3_exit")
    e("s_endpgm")
    return e.text()
```

```python
from gen_common import *
S_WS = 12; S_SRC = 16; S_XB = 20; S_RP = 36
S_DBG = 34
IMG2 = 73728
XCH = 147456
CSTEP = 128
CNT_X, CNT_W, CNT_WO, CNT_P, CNT_O = 0, 16 * CSTEP, 24 * CSTEP, 25 * CSTEP, 41 * CSTEP
CNT_QKV, CNT_HS, CNT_WL = 45 * CSTEP, 49 * CSTEP, 65 * CSTEP

def lane_tr_parts(e, vhf, vsub, vr_, vsig):
    e(f"v_lshrrev_b32 v{vhf}, 5, v0"); e(f"v_bfe_u32 v{vsub}, v0, 4, 1"); e(f"v_bfe_u32 v{vr_}, v0, 2, 2")
    e(f"v_and_b32 v{vsig}, 1, v0"); e(f"v_lshlrev_b32 v{vsig}, 1, v{vsig}"); e(f"v_bfe_u32 v15, v0, 1, 1"); e(f"v_or_b32 v{vsig}, v{vsig}, v15")

def publish(e, off_sgpr):
    e("s_waitcnt vmcnt(0)")
    e("s_barrier")
    lab = f"Lpub_{len(e.L)}"
    e("s_cmp_eq_u32 s8, 0"); e(f"s_cbranch_scc0 {lab}")
    e("s_mov_b64 exec, 1")
    e(f"v_mov_b32 v250, s{off_sgpr}"); e("v_mov_b32 v251, 1")
    e(f"global_atomic_add v250, v251, s[{S_DBG}:{S_DBG+1}] sc1")
    e("s_mov_b64 exec, -1")
    e.label(lab)

def wait_counters(e, waits, acquire=False, sleep=None):
    lab = f"Lwait_{len(e.L)}"
    e("s_cmp_eq_u32 s8, 0"); e(f"s_cbranch_scc0 {lab}_done")
    e("s_mov_b32 s50, 0x40000")
    e("s_mov_b64 exec, 1")
    for i, (off, n) in enumerate(waits): e(f"v_mov_b32 v{246+i}, s{off}")
    e.label(lab)
    for i, (off, n) in enumerate(waits): e(f"global_load_dword v{250+i}, v{246+i}, s[{S_DBG}:{S_DBG+1}] sc1")
    e("s_waitcnt vmcnt(0)")
    e("s_mov_b32 s51, 1")
    for i, (off, n) in enumerate(waits):
        e(f"v_readfirstlane_b32 s52, v{250+i}")
        e(f"s_cmp_ge_u32 s52, {n}"); e("s_cselect_b32 s51, s51, 0")
    e("s_cmp_eq_u32 s51, 1"); e(f"s_cbranch_scc1 {lab}_ok")
    slp = Opt.poll_sleep if sleep is None else sleep
    if slp: e(f"s_sleep {slp}")
    e("s_sub_u32 s50, s50, 1"); e("s_cmp_lg_u32 s50, 0"); e(f"s_cbranch_scc1 {lab}")
    e.label(f"{lab}_ok")
    e("s_mov_b64 exec, -1")
    if acquire: e("buffer_inv sc1")
    e.label(f"{lab}_done")

def wait_counters_sgpr(e, waits):
    lab = f"Lwaits_{len(e.L)}"
    e("s_cmp_eq_u32 s8, 0"); e(f"s_cbranch_scc0 {lab}_done")
    e("s_mov_b32 s50, 0x40000")
    e.label(lab)
    e("s_mov_b32 s51, 1")
    for off, n in waits:
        e(f"s_add_u32 s46, s{S_DBG}, s{off}"); e(f"s_addc_u32 s47, s{S_DBG+1}, 0")
        e("v_mov_b32 v255x, 0".replace("v255x", "v" + str(Opt._poll_v)))
        e(f"global_load_dword v{Opt._poll_v}, v{Opt._poll_v}, s[46:47] sc1")
        e("s_waitcnt vmcnt(0)")
        e(f"v_readfirstlane_b32 s52, v{Opt._poll_v}")
        e(f"s_cmp_ge_u32 s52, {n}"); e("s_cselect_b32 s51, s51, 0")
    e("s_cmp_eq_u32 s51, 1"); e(f"s_cbranch_scc1 {lab}_done")
    e("s_sub_u32 s50, s50, 1"); e("s_cmp_lg_u32 s50, 0"); e(f"s_cbranch_scc1 {lab}")
    e.label(f"{lab}_done")

def gemm(e, NT, with_repack):
    tag = f"G{NT}"
    RB = 64 * NT
    KS = 16 * RB
    e(f"s_load_dwordx2 s[24:25], s[0:1], {KA_W2}")
    e(f"s_load_dwordx2 s[26:27], s[0:1], {KA_XA}")
    e("v_lshlrev_b32 v1, 4, v0")
    if NT == 2:
        e("v_lshrrev_b32 v5, 3, v0"); e("v_and_b32 v6, 7, v0"); e("v_bfe_u32 v7, v0, 4, 1"); e("v_lshlrev_b32 v7, 2, v7"); e("v_xor_b32 v6, v6, v7")
        e("v_mul_u32_u24 v5, 1152, v5"); e("v_lshlrev_b32 v6, 4, v6"); e("v_add_u32 v2, v5, v6"); e(f"v_add_u32 v3, {9216-1024}, v2")
        NP = 2
    else:
        for i in range(3):
            e(f"v_add_u32 v5, {64*i}, v0")
            e("v_mul_u32_u24 v6, 171, v5"); e("v_lshrrev_b32 v6, 11, v6")
            e("v_mul_u32_u24 v7, 12, v6"); e("v_sub_u32 v7, v5, v7")
            e("v_mul_u32_u24 v6, 1152, v6"); e("v_lshlrev_b32 v7, 4, v7"); e("v_add_u32 v6, v6, v7")
            e(f"v_subrev_u32 v{2+i}, {1024*i}, v6")
        NP = 3
    e("s_waitcnt lgkmcnt(0)")
    make_srd(e, S_SRC, 24, 576 * 576 * 2)
    make_srd(e, S_XB, 26, 2048 * 576 * 2)
    e("s_mul_i32 s28, s8, 18432"); e("s_add_u32 s28, s28, s10")
    e(f"s_mul_i32 s29, s8, {KS}")
    e("s_mul_i32 s31, s9, 36864"); e(f"s_add_u32 s40, s31, {LY.HS}")
    for st in range(3):
        for i in range(3):
            ch = 3 * st + i
            e(f"s_add_u32 s31, s28, {ch*4*18432}")
            e(f"s_add_u32 m0, s29, {4*ch*KS}")
            e(f"s_add_u32 s{46+i}, s40, {ch*4096}")
            for k in range(NP):
                e(f"buffer_load_dwordx4 v{2+k}, s[{S_SRC}:{S_SRC+3}], s31 offen" + (f" offset:{k*1024}" if k else "") + " lds")
        for i in range(3):
            ch = 3 * st + i
            for k in range(4):
                e(f"buffer_load_dwordx4 {ar(4*(4*ch+k),4)}, v1, s[{S_WS}:{S_WS+3}], s{46+i} offen offset:{k*1024}")
    nrp = 0
    if with_repack:
        repack_dma(e); nrp = 18
    stamp(e, 1, 'pre')
    lane_tr_parts(e, 5, 6, 7, 8)
    if NT == 2:
        e("v_lshlrev_b32 v9, 1, v6"); e("v_lshrrev_b32 v10, 1, v8"); e("v_add_u32 v9, v9, v10")
        e("v_lshrrev_b32 v10, 1, v7"); e("v_lshlrev_b32 v10, 2, v10"); e("v_xor_b32 v9, v9, v10"); e("v_lshlrev_b32 v9, 4, v9")
        e("v_and_b32 v10, 1, v8"); e("v_lshlrev_b32 v10, 3, v10"); e("v_add_u32 v9, v9, v10")
        e("v_lshlrev_b32 v10, 3, v5"); e("v_add_u32 v10, v10, v7"); e("v_lshlrev_b32 v10, 7, v10"); e("v_add_u32 v9, v9, v10")
        e("v_xor_b32 v10, 64, v9"); e("v_add_u32 v13, 36864, v9"); e("v_add_u32 v14, 36864, v10")
        def addr(ks, T, q): return f"v{[[9, 10], [13, 14]][ks//18][T]} offset:{(ks%18)*2048 + q*512}"
    else:
        e("v_lshlrev_b32 v9, 3, v5"); e("v_add_u32 v9, v9, v7"); e("v_mul_u32_u24 v9, 192, v9")
        e("v_lshlrev_b32 v10, 5, v6"); e("v_add_u32 v9, v9, v10"); e("v_lshlrev_b32 v10, 3, v8"); e("v_add_u32 v9, v9, v10")
        e(f"v_add_u32 v10, {18*3072}, v9")
        def addr(ks, T, q): return f"v{[9, 10][ks//18]} offset:{(ks%18)*3072 + q*768 + 64*T}"
    ACC = 16; WB = 64; XB = 112
    def reads(ks):
        b = WB + 4 * NT * (ks % 4)
        return [f"ds_read_b64_tr_b16 {vr(b+4*T+2*q,2)}, {addr(ks, T, q)}" for T in range(NT) for q in range(2)]
    e("v_and_b32 v11, 31, v0"); e("s_movk_i32 s32, 1152"); e("v_mul_lo_u32 v12, v11, s32"); e("v_lshlrev_b32 v4, 4, v5"); e("v_add_u32 v12, v12, v4")
    e("s_mul_i32 s41, s9, 36864"); e("s_add_u32 s41, s41, s10")
    per = 3 * NP + 12
    nx = 2 * NT
    for st in range(3):
        younger = (2 - st) * per + nrp + (nx if st else 0)
        e(f"s_waitcnt vmcnt({min(63, younger)})")
        e("s_barrier")
        if st == 0: stamp(e, 2, 'pre')
        if st == 0:
            for u in range(nx):
                e(f"buffer_load_dwordx4 {vr(XB+4*u,4)}, v12, s[{S_XB}:{S_XB+3}], s41 offen offset:{u*32}")
        k0 = 12 * st
        for k in range(3): e.extend(reads(k0 + k))
        for ks in range(k0, k0 + 12):
            left = k0 + 11 - ks
            e(f"s_waitcnt lgkmcnt({min(15, 2 * NT * min(2, left))})")
            b = WB + 4 * NT * (ks % 4)
            rd = reads(ks + 3) if ks + 3 < k0 + 12 else []
            for T in range(NT):
                e(f"v_mfma_f32_32x32x16_bf16 {vr(ACC+16*T,16)}, {vr(b+4*T,4)}, {ar(4*ks,4)}, " + ("0" if ks == 0 else vr(ACC + 16 * T, 16)))
                e.extend(rd[2 * T:2 * T + 2])
    e("s_mov_b32 s42, 0x00003f80"); e("s_mov_b32 s43, 0x3f800000"); e("s_mov_b32 s44, 0x3f803f80")
    e("s_mul_i32 s45, s9, 36"); e("s_add_u32 s45, s45, s11"); e("s_lshl_b32 s45, s45, 10"); e(f"s_add_u32 s45, s45, {LY.X1F}")
    e("v_mov_b32 v2, 0"); e("v_mov_b32 v3, 0")
    e("s_waitcnt vmcnt(0)")
    e("s_nop 7")
    for u in range(nx):
        T, hq = divmod(u, 2); b = ACC + 16 * T + 8 * hq; x = XB + 4 * u; P = 64 + 4 * u
        for j in range(4):
            e(f"v_dot2c_f32_bf16 v{b+2*j}, s42, v{x+j}")
            e(f"v_dot2c_f32_bf16 v{b+2*j+1}, s43, v{x+j}")
        e("s_nop 2")
        for j in range(4): e(f"v_cvt_pk_bf16_f32 v{P+j}, v{b+2*j}, v{b+2*j+1}")
        e(f"buffer_store_dwordx4 {vr(P,4)}, v1, s[{S_WS}:{S_WS+3}], s45 offen offset:{(u%4)*1024} sc1")
        if u == 3 and nx > 4: e("s_add_u32 s45, s45, 4096")
        for j in range(4):
            e(f"v_dot2c_f32_bf16 v2, s44, v{P+j}")
            e(f"v_dot2c_f32_bf16 v3, v{P+j}, v{P+j}")
    e("v_lshlrev_b32 v4, 14, v5"); e("v_lshlrev_b32 v6, 2, v11"); e("v_add_u32 v4, v4, v6")
    e("s_lshl_b32 s46, s33, 14"); e("s_lshl_b32 s47, s9, 7"); e("s_add_u32 s46, s46, s47"); e(f"s_add_u32 s46, s46, {LY.ST2}")
    e("s_add_u32 s47, s46, 8192")
    e(f"buffer_store_dword v2, v4, s[{S_WS}:{S_WS+3}], s46 offen sc1")
    e(f"buffer_store_dword v3, v4, s[{S_WS}:{S_WS+3}], s47 offen sc1")

def repack_dma(e):
    for i in range(18):
        e(f"s_add_u32 m0, s54, {IMG2 + i*1024}")
        e(f"s_add_u32 s55, s56, s57") if i == 0 else e("s_add_u32 s55, s55, s58")
        e(f"buffer_load_dwordx4 v16, s[{S_RP}:{S_RP+3}], s55 offen lds")

def repack_setup(e):
    e(f"s_load_dwordx2 s[60:61], s[0:1], {KA_W3}")
    e(f"s_load_dwordx2 s[62:63], s[0:1], {KA_WO}")
    e("s_cmp_lt_u32 s53, 72")
    e("s_cselect_b32 s59, 1, 0")
    e("s_movk_i32 s58, 1152"); e("s_cselect_b32 s58, 9216, s58")
    e("s_sub_u32 s56, s53, 72"); e("s_mul_i32 s55, s56, 86"); e("s_lshr_b32 s55, s55, 8")
    e("s_mul_i32 s57, s55, 3"); e("s_sub_u32 s57, s56, s57")
    e("s_mul_i32 s56, s55, 288"); e("s_lshl_b32 s54, s57, 7"); e("s_add_u32 s56, s56, s54")
    e("s_lshl_b32 s54, s53, 7"); e("s_cmp_lt_u32 s53, 72"); e("s_cselect_b32 s56, s54, s56")
    e("s_waitcnt lgkmcnt(0)")
    e("s_cmp_lt_u32 s53, 72")
    e(f"s_cselect_b32 s{S_RP}, s60, s62"); e(f"s_cselect_b32 s{S_RP+1}, s61, s63")
    e(f"s_mov_b32 s{S_RP+2}, {576*576*2}"); e(f"s_cselect_b32 s{S_RP+2}, {576*4608*2}, s{S_RP+2}")
    e("s_cmp_lt_u32 s53, 84"); e(f"s_cselect_b32 s{S_RP+2}, s{S_RP+2}, 0")
    e(f"s_and_b32 s{S_RP+1}, s{S_RP+1}, 0xffff"); e(f"s_mov_b32 s{S_RP+3}, 0x20000")
    e("v_lshrrev_b32 v17, 3, v0"); e("v_and_b32 v18, 7, v0"); e("v_bfe_u32 v19, v0, 4, 1"); e("v_mul_u32_u24 v19, s59, v19"); e("v_lshlrev_b32 v19, 2, v19"); e("v_xor_b32 v18, v18, v19")
    e("v_mul_lo_u32 v17, v17, s58"); e("v_lshlrev_b32 v18, 4, v18"); e("v_add_u32 v16, v17, v18")
    e("s_mul_i32 s57, s8, 144"); e("s_mul_i32 s57, s57, s58")
    e("s_mul_i32 s54, s8, 18432")
    e("s_lshl_b32 s58, s58, 3")

def repack_w3(e):
    lane_tr_parts(e, 5, 6, 7, 8)
    e("s_and_b32 s40, s8, 1"); e("s_lshr_b32 s41, s8, 1")
    e("v_lshlrev_b32 v9, 1, v6"); e("v_lshrrev_b32 v10, 1, v8"); e("v_add_u32 v9, v9, v10")
    e("s_lshl_b32 s42, s40, 2"); e("v_add_u32 v9, s42, v9")
    e("v_lshrrev_b32 v10, 1, v7"); e("v_lshlrev_b32 v10, 2, v10"); e("v_xor_b32 v9, v9, v10")
    e("v_lshlrev_b32 v9, 4, v9"); e("v_and_b32 v10, 1, v8"); e("v_lshlrev_b32 v10, 3, v10"); e("v_add_u32 v9, v9, v10")
    e("v_lshlrev_b32 v10, 3, v5"); e("v_add_u32 v10, v10, v7"); e("v_lshlrev_b32 v10, 7, v10"); e("v_add_u32 v9, v9, v10")
    e("s_mul_i32 s42, s41, 36864"); e(f"s_add_u32 s42, s42, {IMG2}"); e("v_add_u32 v9, s42, v9")
    F = 16
    for k in range(18):
        for q in range(2):
            e(f"ds_read_b64_tr_b16 {vr(F+4*k+2*q,2)}, v9 offset:{k*2048+q*512}")
    if Opt.rp_fast:
        for a in range(4): e(f"v_mov_b32 v{104+a}, 0x3f803f80")
        CS = 112
        e("s_nop 0")
        for k in range(18):
            if k % 3 == 0: e(f"s_waitcnt lgkmcnt({min(15, 36 - 2*(k+3))})")
            e(f"v_mfma_f32_32x32x16_bf16 {vr(CS,16)}, v[104:107], {vr(F+4*k,4)}, " + ("0" if k == 0 else vr(CS, 16)))
        e("v_lshlrev_b32 v12, 2, v0"); e("s_lshl_b32 s42, s8, 8"); e(f"s_add_u32 s42, s42, {XCH}"); e("v_add_u32 v13, s42, v12")
        e("s_nop 8")
        e(f"v_mov_b32 v10, v{CS}")
        e("ds_write_b32 v13, v10")
    else:
        e("s_mov_b32 s43, 0x3f803f80")
        for a in range(4): e(f"v_mov_b32 v{10+a}, 0")
        for k in range(18):
            if k % 3 == 0: e(f"s_waitcnt lgkmcnt({min(15, 36 - 2*(k+3))})")
            for j in range(4): e(f"v_dot2c_f32_bf16 v{10+j}, s43, v{F+4*k+j}")
        e("s_nop 2")
        e("v_add_f32 v10, v10, v11"); e("v_add_f32 v12, v12, v13"); e("v_add_f32 v10, v10, v12")
        e("v_mov_b32 v11, v10"); e("v_lshlrev_b32 v12, 2, v0"); e("s_lshl_b32 s42, s8, 8"); e("v_permlane32_swap_b32 v10, v11"); e("v_add_f32 v10, v10, v11")
        e(f"s_add_u32 s42, s42, {XCH}"); e("v_add_u32 v13, s42, v12")
        e("ds_write_b32 v13, v10")
    e("s_mov_b32 s44, 0x00003f80"); e("s_mov_b32 s45, 0x3f800000")
    e("s_xor_b32 s42, s8, 2"); e("s_lshl_b32 s42, s42, 8"); e(f"s_add_u32 s42, s42, {XCH}"); e("v_add_u32 v13, s42, v12")
    e("s_waitcnt lgkmcnt(0)"); e("s_barrier")
    e("ds_read_b32 v11, v13"); e("s_waitcnt lgkmcnt(0)")
    e("v_add_f32 v10, v10, v11"); e(f"v_mul_f32 v10, {hexf(-1/576)}, v10")
    e("s_lshl_b32 s46, s53, 1"); e("s_add_u32 s46, s46, s40")
    e(f"s_mul_i32 s47, s46, 36864"); e(f"s_add_u32 s47, s47, {LY.W3P}")
    e("s_mul_i32 s42, s41, 18432"); e("s_add_u32 s47, s47, s42")
    TS = [88, 96]
    def fink(k):
        t = TS[k % 2]
        for j in range(4): e(f"v_cvt_pk_bf16_f32 v{F+4*k+j}, v{t+2*j}, v{t+2*j+1}")
        e(f"buffer_store_dwordx4 {vr(F+4*k,4)}, v1, s[{S_WS}:{S_WS+3}], s47 offen offset:{(k%4)*1024} sc1")
        if k % 4 == 3: e("s_add_u32 s47, s47, 4096")
    if Opt.rp_fast:
        e("v_mov_b32 v11, v10")
        for k in range(18):
            t = TS[k % 2]
            for j in range(4):
                e(f"v_lshlrev_b32 v{t+2*j}, 16, v{F+4*k+j}"); e(f"v_and_b32 v{t+2*j+1}, 0xffff0000, v{F+4*k+j}")
            for j in range(4): e(f"v_pk_add_f32 {vr(t+2*j,2)}, {vr(t+2*j,2)}, v[10:11]")
            fink(k)
    else:
        for k in range(18):
            t = TS[k % 2]
            for j in range(4):
                e(f"v_dot2_f32_bf16 v{t+2*j}, v{F+4*k+j}, s44, v10")
                e(f"v_dot2_f32_bf16 v{t+2*j+1}, v{F+4*k+j}, s45, v10")
            if k > 0: fink(k - 1)
        e("s_nop 2")
        fink(17)

def repack_wo(e, skip_label):
    e("s_sub_u32 s46, s53, 72"); e("s_mul_i32 s40, s46, 86"); e("s_lshr_b32 s40, s40, 8")
    e("s_mul_i32 s41, s40, 3"); e("s_sub_u32 s41, s46, s41")
    lane_tr_parts(e, 5, 6, 7, 8)
    e("s_and_b32 s42, s8, 1"); e("s_lshr_b32 s43, s8, 1")
    e("v_lshlrev_b32 v9, 5, v6"); e("v_lshlrev_b32 v10, 3, v8"); e("v_add_u32 v9, v9, v10"); e("s_lshl_b32 s44, s42, 6"); e(f"s_add_u32 s44, s44, {IMG2}"); e("v_add_u32 v9, s44, v9")
    e("v_lshlrev_b32 v10, 2, v5"); e("v_add_u32 v10, v10, v7"); e("v_lshlrev_b32 v10, 7, v10"); e("v_add_u32 v10, v10, v9")
    e(f"s_mul_i32 s44, s43, {324*128}"); e("v_add_u32 v10, s44, v10")
    e("v_lshrrev_b32 v11, 1, v7"); e("v_lshlrev_b32 v12, 2, v5"); e("v_add_u32 v12, v12, v11"); e("v_mul_u32_u24 v12, 18, v12")
    e("v_xor_b32 v11, 1, v11"); e("v_lshlrev_b32 v11, 4, v11"); e("v_add_u32 v12, v12, v11"); e("v_and_b32 v11, 1, v7"); e("v_add_u32 v12, v12, v11")
    e("v_lshlrev_b32 v12, 7, v12"); e("v_add_u32 v12, v12, v9")
    F = 16
    for k in range(14):
        for q in range(2):
            e(f"ds_read_b64_tr_b16 {vr(F+4*k+2*q,2)}, v10 offset:{(18*k + 8*q + 2*(k&1))*128}")
    e("s_cmp_eq_u32 s43, 0"); e("s_cbranch_scc0 K2_wo_x")
    for k in range(14, 18):
        for q in range(2):
            e(f"ds_read_b64_tr_b16 {vr(F+4*k+2*q,2)}, v10 offset:{(18*k + 8*q + 2*(k&1))*128}")
    e("s_branch K2_wo_y")
    e.label("K2_wo_x")
    for k in range(14, 18):
        for q in range(2):
            e(f"ds_read_b64_tr_b16 {vr(F+4*k+2*q,2)}, v12 offset:{18*(8*(k-14) + 2*q)*128}")
    e.label("K2_wo_y")
    e("s_lshl_b32 s44, s41, 1"); e("s_add_u32 s44, s44, s42")
    e("s_cmp_eq_u32 s44, 5"); e(f"s_cbranch_scc1 {skip_label}")
    e("s_mul_i32 s45, s40, 5"); e("s_add_u32 s45, s45, s44"); e("s_mul_i32 s45, s45, 36"); e("s_mul_i32 s46, s43, 18"); e("s_add_u32 s45, s45, s46")
    e("s_lshl_b32 s47, s45, 10"); e(f"s_add_u32 s47, s47, {LY.WOP}")
    e("s_waitcnt lgkmcnt(0)")
    for k in range(18):
        e(f"buffer_store_dwordx4 {vr(F+4*k,4)}, v1, s[{S_WS}:{S_WS+3}], s47 offen offset:{(k%4)*1024}")
        if k % 4 == 3: e("s_add_u32 s47, s47, 4096")

def gen_prephase(e):
    e(f"s_load_dwordx2 s[{S_DBG}:{S_DBG+1}], s[0:1], {KA_DBG}") if not Opt.cnt_ws else None
    if Opt.cnt_ws:
        e(f"s_add_u32 s{S_DBG}, s4, {LY.CNT}"); e(f"s_addc_u32 s{S_DBG+1}, s5, 0")
    e("s_cmp_lt_u32 s7, 16"); e("s_cbranch_scc0 K2_pre_att")
    if Opt.gemm_local:
        e("s_lshr_b32 s64, s7, 3"); e("s_lshl_b32 s65, s6, 1"); e("s_add_u32 s64, s64, s65"); e("s_and_b32 s65, s7, 7")
    else:
        e("s_mov_b32 s64, s7"); e("s_mov_b32 s65, s6")
    e.label("K2_pre_gemm")
    e("s_lshl_b32 s9, s64, 2"); e("s_add_u32 s9, s9, s8")
    e("s_lshl_b32 s33, s65, 1")
    e("s_lshl_b32 s10, s65, 7"); e("s_lshl_b32 s11, s65, 2")
    gemm(e, 2, False)
    stamp(e, 3, 'pre')
    e(f"s_mul_i32 s48, s64, {CSTEP}")
    publish(e, 48)
    e("s_branch K2_pre_end")
    e.label("K2_pre_att")
    e("s_sub_u32 s53, s7, 16"); e("s_lshl_b32 s53, s53, 3"); e("s_add_u32 s53, s53, s6")
    e("s_cmp_lt_u32 s53, 16"); e("s_cbranch_scc0 K2_pre_rp")
    if Opt.gemm_local:
        e("s_lshr_b32 s64, s53, 3"); e("s_lshl_b32 s65, s6, 1"); e("s_add_u32 s64, s64, s65"); e("s_mov_b32 s65, 8")
    else:
        e("s_mov_b32 s64, s53"); e("s_mov_b32 s65, 8")
    e("s_branch K2_pre_gemm")
    e.label("K2_pre_rp")
    e("s_cmp_lt_u32 s53, 100"); e("s_cbranch_scc0 K2_pre_end")
    e("s_sub_u32 s53, s53, 16")
    e("v_lshlrev_b32 v1, 4, v0")
    repack_setup(e)
    repack_dma(e)
    e("s_waitcnt vmcnt(0)"); e("s_barrier")
    stamp(e, 4, 'pre')
    e("s_cmp_lt_u32 s53, 72"); e("s_cbranch_scc1 K2_rw3")
    repack_wo(e, "K2_pre_lds")
    e("s_branch K2_pre_lds")
    e.label("K2_rw3")
    repack_w3(e)
    stamp(e, 5, 'pre')
    e("s_mul_i32 s48, s53, 57"); e("s_lshr_b32 s48, s48, 9"); e(f"s_mul_i32 s48, s48, {CSTEP}"); e(f"s_add_u32 s48, s48, {CNT_W}")
    publish(e, 48)
    e("s_branch K2_pre_end")
    e.label("K2_pre_lds")
    if Opt.fuse_l4:
        e(f"s_movk_i32 s48, {CNT_WO}")
        publish(e, 48)
    else:
        e("s_barrier")
    e.label("K2_pre_end")
    stamp(e, 6, 'pre')

def gen_mlp_wait(e):
    e(f"s_mul_i32 s48, s7, {CSTEP}"); e(f"s_mul_i32 s49, s6, {CSTEP}"); e(f"s_add_u32 s49, s49, {CNT_W}")
    w = [(48, 9), (49, 6 if Opt.single else 9)]
    if Opt.fuse_l4 and Opt.early_wo and not Opt.single:
        e(f"s_movk_i32 s47, {CNT_WO}"); w.append((47, 12))
    wait_counters(e, w, acquire=Opt.acquire)


def gemm_early(e):
    KS = 2048
    e(f"s_load_dwordx2 s[24:25], s[0:1], {KA_W2}")
    e("v_lshrrev_b32 v5, 3, v0"); e("v_and_b32 v6, 7, v0"); e("v_bfe_u32 v7, v0, 4, 1"); e("v_lshlrev_b32 v7, 2, v7"); e("v_xor_b32 v6, v6, v7")
    e("v_mul_u32_u24 v5, 1152, v5"); e("v_lshlrev_b32 v6, 4, v6"); e("v_add_u32 v2, v5, v6"); e(f"v_add_u32 v3, {9216-1024}, v2")
    e("s_waitcnt lgkmcnt(0)")
    make_srd(e, S_SRC, 24, 576 * 576 * 2)
    e("s_mul_i32 s28, s8, 18432"); e("s_lshl_b32 s29, s65, 7"); e("s_add_u32 s28, s28, s29")
    e(f"s_mul_i32 s29, s8, {KS}")
    for ch in range(9):
        e(f"s_add_u32 m0, s29, {4*ch*KS}")
        e(f"s_add_u32 s31, s28, {ch*4*18432}")
        e(f"buffer_load_dwordx4 v2, s[{S_SRC}:{S_SRC+3}], s31 offen lds")
        e(f"buffer_load_dwordx4 v3, s[{S_SRC}:{S_SRC+3}], s31 offen offset:1024 lds")

def gemm_single(e):
    NT = 2; KS = 2048
    e("s_lshl_b32 s9, s64, 2"); e("s_add_u32 s9, s9, s8")
    e("s_lshl_b32 s33, s65, 1"); e("s_lshl_b32 s10, s65, 7"); e("s_lshl_b32 s11, s65, 2")
    e(f"s_load_dwordx2 s[26:27], s[0:1], {KA_XA}")
    e("v_lshlrev_b32 v1, 4, v0")
    e("s_waitcnt lgkmcnt(0)")
    make_srd(e, S_XB, 26, 2048 * 576 * 2)
    lane_tr_parts(e, 5, 6, 7, 8)
    e("v_lshlrev_b32 v9, 1, v6"); e("v_lshrrev_b32 v10, 1, v8"); e("v_add_u32 v9, v9, v10")
    e("v_lshrrev_b32 v10, 1, v7"); e("v_lshlrev_b32 v10, 2, v10"); e("v_xor_b32 v9, v9, v10"); e("v_lshlrev_b32 v9, 4, v9")
    e("v_and_b32 v10, 1, v8"); e("v_lshlrev_b32 v10, 3, v10"); e("v_add_u32 v9, v9, v10")
    e("v_lshlrev_b32 v10, 3, v5"); e("v_add_u32 v10, v10, v7"); e("v_lshlrev_b32 v10, 7, v10"); e("v_add_u32 v9, v9, v10")
    e("v_xor_b32 v10, 64, v9"); e("v_add_u32 v13, 36864, v9"); e("v_add_u32 v14, 36864, v10")
    ACC = 16; WB = 64; XB = 112; nx = 4
    def reads(ks):
        b = WB + 8 * (ks % 4)
        return [f"ds_read_b64_tr_b16 {vr(b+4*T+2*q,2)}, v{[[9, 10], [13, 14]][ks//18][T]} offset:{(ks%18)*2048 + q*512}" for T in range(2) for q in range(2)]
    e("v_and_b32 v11, 31, v0"); e("s_movk_i32 s32, 1152"); e("v_mul_lo_u32 v12, v11, s32"); e("v_lshlrev_b32 v4, 4, v5"); e("v_add_u32 v12, v12, v4")
    e("s_mul_i32 s41, s9, 36864"); e("s_add_u32 s41, s41, s10")
    for u in range(nx):
        e(f"buffer_load_dwordx4 {vr(XB+4*u,4)}, v12, s[{S_XB}:{S_XB+3}], s41 offen offset:{u*32}")
    e("s_cmp_eq_u32 s67, 3"); e("s_cselect_b32 s53, s68, 84")
    repack_setup(e)
    stamp(e, 1, 'pre')
    e(f"s_mul_i32 s48, s64, {CSTEP}"); e(f"s_add_u32 s48, s48, {CNT_HS}")
    wait_counters(e, [(48, 8)])
    e("s_waitcnt vmcnt(0)")
    e("s_barrier")
    stamp(e, 2, 'pre')
    e("s_mul_i32 s40, s9, 36864"); e(f"s_add_u32 s40, s40, {LY.HS}")
    for j in range(36):
        e(f"buffer_load_dwordx4 {ar(4*j,4)}, v1, s[{S_WS}:{S_WS+3}], s40 offen offset:{(j%4)*1024} sc1")
        if j % 4 == 3 and j != 35: e("s_add_u32 s40, s40, 4096")
    repack_dma(e)
    for k in range(3): e.extend(reads(k))
    for ks in range(36):
        if ks % 4 == 0: e(f"s_waitcnt vmcnt({32 - ks + 18})")
        e(f"s_waitcnt lgkmcnt({4 * min(2, 35 - ks)})")
        b = WB + 8 * (ks % 4)
        rd = reads(ks + 3) if ks + 3 < 36 else []
        for T in range(2):
            e(f"v_mfma_f32_32x32x16_bf16 {vr(ACC+16*T,16)}, {vr(b+4*T,4)}, {ar(4*ks,4)}, " + ("0" if ks == 0 else vr(ACC + 16 * T, 16)))
            e.extend(rd[2 * T:2 * T + 2])
    e("s_mov_b32 s42, 0x00003f80"); e("s_mov_b32 s43, 0x3f800000"); e("s_mov_b32 s44, 0x3f803f80")
    e("s_mul_i32 s45, s9, 36"); e("s_add_u32 s45, s45, s11"); e("s_lshl_b32 s45, s45, 10"); e(f"s_add_u32 s45, s45, {LY.X1F}")
    e("v_mov_b32 v2, 0"); e("v_mov_b32 v3, 0")
    e("s_nop 9")
    for u in range(nx):
        T, hq = divmod(u, 2); b = ACC + 16 * T + 8 * hq; x = XB + 4 * u; P = 64 + 4 * u
        for j in range(4):
            e(f"v_dot2c_f32_bf16 v{b+2*j}, s42, v{x+j}")
            e(f"v_dot2c_f32_bf16 v{b+2*j+1}, s43, v{x+j}")
        e("s_nop 2")
        for j in range(4): e(f"v_cvt_pk_bf16_f32 v{P+j}, v{b+2*j}, v{b+2*j+1}")
        e(f"buffer_store_dwordx4 {vr(P,4)}, v1, s[{S_WS}:{S_WS+3}], s45 offen offset:{u*1024} sc1")
        for j in range(4):
            e(f"v_dot2c_f32_bf16 v2, s44, v{P+j}")
            e(f"v_dot2c_f32_bf16 v3, v{P+j}, v{P+j}")
    e("v_lshlrev_b32 v4, 14, v5"); e("v_lshlrev_b32 v6, 2, v11"); e("v_add_u32 v4, v4, v6")
    e("s_lshl_b32 s46, s33, 14"); e("s_lshl_b32 s47, s9, 7"); e("s_add_u32 s46, s46, s47"); e(f"s_add_u32 s46, s46, {LY.ST2}")
    e("s_add_u32 s47, s46, 8192")
    e(f"buffer_store_dword v2, v4, s[{S_WS}:{S_WS+3}], s46 offen sc1")
    e(f"buffer_store_dword v3, v4, s[{S_WS}:{S_WS+3}], s47 offen sc1")
    stamp(e, 3, 'pre')
    e(f"s_mul_i32 s48, s64, {CSTEP}")
    publish(e, 48)

def unit_select(e):
    L = f"Lus_{len(e.L)}"
    e("s_mov_b32 s67, 1"); e("s_movk_i32 s68, 84"); e("s_mov_b32 s66, 0")
    e("s_cmp_lt_u32 s7, 16"); e(f"s_cbranch_scc0 {L}_a")
    e("s_lshr_b32 s64, s7, 3"); e("s_lshl_b32 s65, s6, 1"); e("s_add_u32 s64, s64, s65"); e("s_and_b32 s65, s7, 7")
    e("s_cmp_ge_u32 s7, 8"); e(f"s_cbranch_scc0 {L}_z")
    e("s_sub_u32 s68, s7, 8"); e("s_lshl_b32 s68, s68, 3"); e("s_add_u32 s68, s68, s6")
    e("s_cmp_lt_u32 s68, 36"); e(f"s_cbranch_scc0 {L}_z")
    e("s_mov_b32 s67, 3")
    e("s_cmp_lt_u32 s68, 24"); e(f"s_cbranch_scc0 {L}_w")
    e("s_mul_i32 s66, s68, 86"); e("s_lshr_b32 s66, s66, 8")
    e("s_mul_i32 s69, s66, 6"); e("s_add_u32 s68, s68, s69"); e("s_add_u32 s68, s68, 6")
    e(f"s_mul_i32 s66, s66, {CSTEP}"); e(f"s_add_u32 s66, s66, {CNT_WL}")
    e(f"s_branch {L}_z")
    e.label(f"{L}_w")
    e("s_add_u32 s68, s68, 48")
    e(f"s_movk_i32 s66, {CNT_WO}")
    e(f"s_branch {L}_z")
    e.label(f"{L}_a")
    e("s_cmp_lt_u32 s7, 24"); e(f"s_cbranch_scc1 {L}_v")
    e("s_mov_b32 s67, 0")
    e(f"s_branch {L}_z")
    e.label(f"{L}_v")
    e("s_sub_u32 s68, s7, 16"); e("s_lshl_b32 s68, s68, 3"); e("s_add_u32 s68, s68, s6")
    e("s_cmp_lt_u32 s68, 16"); e(f"s_cbranch_scc0 {L}_b")
    e("s_lshr_b32 s64, s68, 3"); e("s_lshl_b32 s65, s6, 1"); e("s_add_u32 s64, s64, s65"); e("s_mov_b32 s65, 8")
    e(f"s_branch {L}_z")
    e.label(f"{L}_b")
    e("s_mov_b32 s67, 2")
    e("s_sub_u32 s68, s68, 16"); e("s_mul_i32 s64, s68, 43"); e("s_lshr_b32 s64, s64, 8")
    e("s_mul_i32 s65, s64, 3"); e("s_add_u32 s68, s68, s65")
    e(f"s_mul_i32 s66, s64, {CSTEP}"); e(f"s_add_u32 s66, s66, {CNT_W}")
    e.label(f"{L}_z")

def unit_early(e):
    L = f"Lue_{len(e.L)}"
    unit_select(e)
    e("s_cmp_eq_u32 s67, 2"); e(f"s_cbranch_scc1 {L}_r")
    gemm_early(e)
    e("s_waitcnt vmcnt(18)")
    e(f"s_branch {L}_z")
    e.label(f"{L}_r")
    e("s_mov_b32 s53, s68")
    repack_setup(e); repack_dma(e)
    e("s_waitcnt vmcnt(18)")
    e.label(f"{L}_z")

def gen_prephase_single(e):
    e.label("K_pre")
    e("s_cmp_eq_u32 s67, 2"); e("s_cbranch_scc1 K_pre_r")
    gemm_single(e)
    e("s_cmp_eq_u32 s67, 3"); e("s_cbranch_scc0 K_pre_end")
    e("s_branch K_pre_r2")
    e.label("K_pre_r")
    e("s_waitcnt vmcnt(0)"); e("s_barrier")
    e.label("K_pre_r2")
    e("v_lshlrev_b32 v1, 4, v0")
    e("s_mov_b32 s53, s68")
    stamp(e, 4, 'pre')
    e("s_cmp_lt_u32 s53, 72"); e("s_cbranch_scc1 K_rw3")
    repack_wo(e, "K_pre_pub")
    e("s_branch K_pre_pub")
    e.label("K_rw3")
    repack_w3(e)
    e.label("K_pre_pub")
    stamp(e, 5, 'pre')
    e("s_mov_b32 s48, s66")
    publish(e, 48)
    e("s_cmp_ge_u32 s53, 72"); e("s_cbranch_scc0 K_pre_end"); e("s_cmp_eq_u32 s8, 0"); e("s_cbranch_scc0 K_pre_end")
    e("s_mov_b64 exec, 0xff")
    e(f"v_lshlrev_b32 v250, 7, v0"); e(f"v_add_u32 v250, {CNT_WL}, v250"); e("v_mov_b32 v251, 1")
    e(f"global_atomic_add v250, v251, s[{S_DBG}:{S_DBG+1}] sc1")
    e("s_mov_b64 exec, -1")
    e.label("K_pre_h")
    e.label("K_pre_end")
    stamp(e, 6, 'pre')
```

```python
from gen_common import *
S_WS = 12; S_SRC = 16; S_XB = 20; S_RP = 36
S_DBG = 34
IMG2 = 73728
XCH = 147456
CSTEP = 128
CNT_X, CNT_W, CNT_WO, CNT_P, CNT_O = 0, 16 * CSTEP, 24 * CSTEP, 25 * CSTEP, 41 * CSTEP
CNT_QKV, CNT_HS, CNT_WL = 45 * CSTEP, 49 * CSTEP, 65 * CSTEP

def lane_tr_parts(e, vhf, vsub, vr_, vsig):
    e(f"v_lshrrev_b32 v{vhf}, 5, v0"); e(f"v_bfe_u32 v{vsub}, v0, 4, 1"); e(f"v_bfe_u32 v{vr_}, v0, 2, 2")
    e(f"v_and_b32 v{vsig}, 1, v0"); e(f"v_lshlrev_b32 v{vsig}, 1, v{vsig}"); e(f"v_bfe_u32 v15, v0, 1, 1"); e(f"v_or_b32 v{vsig}, v{vsig}, v15")

def publish(e, off_sgpr):
    e("s_waitcnt vmcnt(0)")
    e("s_barrier")
    lab = f"Lpub_{len(e.L)}"
    e("s_cmp_eq_u32 s8, 0"); e(f"s_cbranch_scc0 {lab}")
    e("s_mov_b64 exec, 1")
    e(f"v_mov_b32 v250, s{off_sgpr}"); e("v_mov_b32 v251, 1")
    e(f"global_atomic_add v250, v251, s[{S_DBG}:{S_DBG+1}] sc1")
    e("s_mov_b64 exec, -1")
    e.label(lab)

def wait_counters(e, waits, acquire=False, sleep=None):
    lab = f"Lwait_{len(e.L)}"
    e("s_cmp_eq_u32 s8, 0"); e(f"s_cbranch_scc0 {lab}_done")
    e("s_mov_b32 s50, 0x40000")
    e("s_mov_b64 exec, 1")
    for i, (off, n) in enumerate(waits): e(f"v_mov_b32 v{246+i}, s{off}")
    e.label(lab)
    for i, (off, n) in enumerate(waits): e(f"global_load_dword v{250+i}, v{246+i}, s[{S_DBG}:{S_DBG+1}] sc1")
    e("s_waitcnt vmcnt(0)")
    e("s_mov_b32 s51, 1")
    for i, (off, n) in enumerate(waits):
        e(f"v_readfirstlane_b32 s52, v{250+i}")
        e(f"s_cmp_ge_u32 s52, {n}"); e("s_cselect_b32 s51, s51, 0")
    e("s_cmp_eq_u32 s51, 1"); e(f"s_cbranch_scc1 {lab}_ok")
    slp = Opt.poll_sleep if sleep is None else sleep
    if slp: e(f"s_sleep {slp}")
    e("s_sub_u32 s50, s50, 1"); e("s_cmp_lg_u32 s50, 0"); e(f"s_cbranch_scc1 {lab}")
    e.label(f"{lab}_ok")
    e("s_mov_b64 exec, -1")
    if acquire: e("buffer_inv sc1")
    e.label(f"{lab}_done")

def wait_counters_sgpr(e, waits):
    lab = f"Lwaits_{len(e.L)}"
    e("s_cmp_eq_u32 s8, 0"); e(f"s_cbranch_scc0 {lab}_done")
    e("s_mov_b32 s50, 0x40000")
    e.label(lab)
    e("s_mov_b32 s51, 1")
    for off, n in waits:
        e(f"s_add_u32 s46, s{S_DBG}, s{off}"); e(f"s_addc_u32 s47, s{S_DBG+1}, 0")
        e("v_mov_b32 v255x, 0".replace("v255x", "v" + str(Opt._poll_v)))
        e(f"global_load_dword v{Opt._poll_v}, v{Opt._poll_v}, s[46:47] sc1")
        e("s_waitcnt vmcnt(0)")
        e(f"v_readfirstlane_b32 s52, v{Opt._poll_v}")
        e(f"s_cmp_ge_u32 s52, {n}"); e("s_cselect_b32 s51, s51, 0")
    e("s_cmp_eq_u32 s51, 1"); e(f"s_cbranch_scc1 {lab}_done")
    e("s_sub_u32 s50, s50, 1"); e("s_cmp_lg_u32 s50, 0"); e(f"s_cbranch_scc1 {lab}")
    e.label(f"{lab}_done")

def gemm(e, NT, with_repack):
    tag = f"G{NT}"
    RB = 64 * NT
    KS = 16 * RB
    e(f"s_load_dwordx2 s[24:25], s[0:1], {KA_W2}")
    e(f"s_load_dwordx2 s[26:27], s[0:1], {KA_XA}")
    e("v_lshlrev_b32 v1, 4, v0")
    if NT == 2:
        e("v_lshrrev_b32 v5, 3, v0"); e("v_and_b32 v6, 7, v0"); e("v_bfe_u32 v7, v0, 4, 1"); e("v_lshlrev_b32 v7, 2, v7"); e("v_xor_b32 v6, v6, v7")
        e("v_mul_u32_u24 v5, 1152, v5"); e("v_lshlrev_b32 v6, 4, v6"); e("v_add_u32 v2, v5, v6"); e(f"v_add_u32 v3, {9216-1024}, v2")
        NP = 2
    else:
        for i in range(3):
            e(f"v_add_u32 v5, {64*i}, v0")
            e("v_mul_u32_u24 v6, 171, v5"); e("v_lshrrev_b32 v6, 11, v6")
            e("v_mul_u32_u24 v7, 12, v6"); e("v_sub_u32 v7, v5, v7")
            e("v_mul_u32_u24 v6, 1152, v6"); e("v_lshlrev_b32 v7, 4, v7"); e("v_add_u32 v6, v6, v7")
            e(f"v_subrev_u32 v{2+i}, {1024*i}, v6")
        NP = 3
    e("s_waitcnt lgkmcnt(0)")
    make_srd(e, S_SRC, 24, 576 * 576 * 2)
    make_srd(e, S_XB, 26, 2048 * 576 * 2)
    e("s_mul_i32 s28, s8, 18432"); e("s_add_u32 s28, s28, s10")
    e(f"s_mul_i32 s29, s8, {KS}")
    e("s_mul_i32 s31, s9, 36864"); e(f"s_add_u32 s40, s31, {LY.HS}")
    for st in range(3):
        for i in range(3):
            ch = 3 * st + i
            e(f"s_add_u32 s31, s28, {ch*4*18432}")
            e(f"s_add_u32 m0, s29, {4*ch*KS}")
            e(f"s_add_u32 s{46+i}, s40, {ch*4096}")
            for k in range(NP):
                e(f"buffer_load_dwordx4 v{2+k}, s[{S_SRC}:{S_SRC+3}], s31 offen" + (f" offset:{k*1024}" if k else "") + " lds")
        for i in range(3):
            ch = 3 * st + i
            for k in range(4):
                e(f"buffer_load_dwordx4 {ar(4*(4*ch+k),4)}, v1, s[{S_WS}:{S_WS+3}], s{46+i} offen offset:{k*1024}")
    nrp = 0
    if with_repack:
        repack_dma(e); nrp = 18
    stamp(e, 1, 'pre')
    lane_tr_parts(e, 5, 6, 7, 8)
    if NT == 2:
        e("v_lshlrev_b32 v9, 1, v6"); e("v_lshrrev_b32 v10, 1, v8"); e("v_add_u32 v9, v9, v10")
        e("v_lshrrev_b32 v10, 1, v7"); e("v_lshlrev_b32 v10, 2, v10"); e("v_xor_b32 v9, v9, v10"); e("v_lshlrev_b32 v9, 4, v9")
        e("v_and_b32 v10, 1, v8"); e("v_lshlrev_b32 v10, 3, v10"); e("v_add_u32 v9, v9, v10")
        e("v_lshlrev_b32 v10, 3, v5"); e("v_add_u32 v10, v10, v7"); e("v_lshlrev_b32 v10, 7, v10"); e("v_add_u32 v9, v9, v10")
        e("v_xor_b32 v10, 64, v9"); e("v_add_u32 v13, 36864, v9"); e("v_add_u32 v14, 36864, v10")
        def addr(ks, T, q): return f"v{[[9, 10], [13, 14]][ks//18][T]} offset:{(ks%18)*2048 + q*512}"
    else:
        e("v_lshlrev_b32 v9, 3, v5"); e("v_add_u32 v9, v9, v7"); e("v_mul_u32_u24 v9, 192, v9")
        e("v_lshlrev_b32 v10, 5, v6"); e("v_add_u32 v9, v9, v10"); e("v_lshlrev_b32 v10, 3, v8"); e("v_add_u32 v9, v9, v10")
        e(f"v_add_u32 v10, {18*3072}, v9")
        def addr(ks, T, q): return f"v{[9, 10][ks//18]} offset:{(ks%18)*3072 + q*768 + 64*T}"
    ACC = 16; WB = 64; XB = 112
    def reads(ks):
        b = WB + 4 * NT * (ks % 4)
        return [f"ds_read_b64_tr_b16 {vr(b+4*T+2*q,2)}, {addr(ks, T, q)}" for T in range(NT) for q in range(2)]
    e("v_and_b32 v11, 31, v0"); e("s_movk_i32 s32, 1152"); e("v_mul_lo_u32 v12, v11, s32"); e("v_lshlrev_b32 v4, 4, v5"); e("v_add_u32 v12, v12, v4")
    e("s_mul_i32 s41, s9, 36864"); e("s_add_u32 s41, s41, s10")
    per = 3 * NP + 12
    nx = 2 * NT
    for st in range(3):
        younger = (2 - st) * per + nrp + (nx if st else 0)
        e(f"s_waitcnt vmcnt({min(63, younger)})")
        e("s_barrier")
        if st == 0: stamp(e, 2, 'pre')
        if st == 0:
            for u in range(nx):
                e(f"buffer_load_dwordx4 {vr(XB+4*u,4)}, v12, s[{S_XB}:{S_XB+3}], s41 offen offset:{u*32}")
        k0 = 12 * st
        for k in range(3): e.extend(reads(k0 + k))
        for ks in range(k0, k0 + 12):
            left = k0 + 11 - ks
            e(f"s_waitcnt lgkmcnt({min(15, 2 * NT * min(2, left))})")
            b = WB + 4 * NT * (ks % 4)
            rd = reads(ks + 3) if ks + 3 < k0 + 12 else []
            for T in range(NT):
                e(f"v_mfma_f32_32x32x16_bf16 {vr(ACC+16*T,16)}, {vr(b+4*T,4)}, {ar(4*ks,4)}, " + ("0" if ks == 0 else vr(ACC + 16 * T, 16)))
                e.extend(rd[2 * T:2 * T + 2])
    e("s_mov_b32 s42, 0x00003f80"); e("s_mov_b32 s43, 0x3f800000"); e("s_mov_b32 s44, 0x3f803f80")
    e("s_mul_i32 s45, s9, 36"); e("s_add_u32 s45, s45, s11"); e("s_lshl_b32 s45, s45, 10"); e(f"s_add_u32 s45, s45, {LY.X1F}")
    e("v_mov_b32 v2, 0"); e("v_mov_b32 v3, 0")
    e("s_waitcnt vmcnt(0)")
    e("s_nop 7")
    for u in range(nx):
        T, hq = divmod(u, 2); b = ACC + 16 * T + 8 * hq; x = XB + 4 * u; P = 64 + 4 * u
        for j in range(4):
            e(f"v_dot2c_f32_bf16 v{b+2*j}, s42, v{x+j}")
            e(f"v_dot2c_f32_bf16 v{b+2*j+1}, s43, v{x+j}")
        e("s_nop 2")
        for j in range(4): e(f"v_cvt_pk_bf16_f32 v{P+j}, v{b+2*j}, v{b+2*j+1}")
        e(f"buffer_store_dwordx4 {vr(P,4)}, v1, s[{S_WS}:{S_WS+3}], s45 offen offset:{(u%4)*1024} sc1")
        if u == 3 and nx > 4: e("s_add_u32 s45, s45, 4096")
        for j in range(4):
            e(f"v_dot2c_f32_bf16 v2, s44, v{P+j}")
            e(f"v_dot2c_f32_bf16 v3, v{P+j}, v{P+j}")
    e("v_lshlrev_b32 v4, 14, v5"); e("v_lshlrev_b32 v6, 2, v11"); e("v_add_u32 v4, v4, v6")
    e("s_lshl_b32 s46, s33, 14"); e("s_lshl_b32 s47, s9, 7"); e("s_add_u32 s46, s46, s47"); e(f"s_add_u32 s46, s46, {LY.ST2}")
    e("s_add_u32 s47, s46, 8192")
    e(f"buffer_store_dword v2, v4, s[{S_WS}:{S_WS+3}], s46 offen sc1")
    e(f"buffer_store_dword v3, v4, s[{S_WS}:{S_WS+3}], s47 offen sc1")

def repack_dma(e):
    for i in range(18):
        e(f"s_add_u32 m0, s54, {IMG2 + i*1024}")
        e(f"s_add_u32 s55, s56, s57") if i == 0 else e("s_add_u32 s55, s55, s58")
        e(f"buffer_load_dwordx4 v16, s[{S_RP}:{S_RP+3}], s55 offen lds")

def repack_setup(e):
    e(f"s_load_dwordx2 s[60:61], s[0:1], {KA_W3}")
    e(f"s_load_dwordx2 s[62:63], s[0:1], {KA_WO}")
    e("s_cmp_lt_u32 s53, 72")
    e("s_cselect_b32 s59, 1, 0")
    e("s_movk_i32 s58, 1152"); e("s_cselect_b32 s58, 9216, s58")
    e("s_sub_u32 s56, s53, 72"); e("s_mul_i32 s55, s56, 86"); e("s_lshr_b32 s55, s55, 8")
    e("s_mul_i32 s57, s55, 3"); e("s_sub_u32 s57, s56, s57")
    e("s_mul_i32 s56, s55, 288"); e("s_lshl_b32 s54, s57, 7"); e("s_add_u32 s56, s56, s54")
    e("s_lshl_b32 s54, s53, 7"); e("s_cmp_lt_u32 s53, 72"); e("s_cselect_b32 s56, s54, s56")
    e("s_waitcnt lgkmcnt(0)")
    e("s_cmp_lt_u32 s53, 72")
    e(f"s_cselect_b32 s{S_RP}, s60, s62"); e(f"s_cselect_b32 s{S_RP+1}, s61, s63")
    e(f"s_mov_b32 s{S_RP+2}, {576*576*2}"); e(f"s_cselect_b32 s{S_RP+2}, {576*4608*2}, s{S_RP+2}")
    e("s_cmp_lt_u32 s53, 84"); e(f"s_cselect_b32 s{S_RP+2}, s{S_RP+2}, 0")
    e(f"s_and_b32 s{S_RP+1}, s{S_RP+1}, 0xffff"); e(f"s_mov_b32 s{S_RP+3}, 0x20000")
    e("v_lshrrev_b32 v17, 3, v0"); e("v_and_b32 v18, 7, v0"); e("v_bfe_u32 v19, v0, 4, 1"); e("v_mul_u32_u24 v19, s59, v19"); e("v_lshlrev_b32 v19, 2, v19"); e("v_xor_b32 v18, v18, v19")
    e("v_mul_lo_u32 v17, v17, s58"); e("v_lshlrev_b32 v18, 4, v18"); e("v_add_u32 v16, v17, v18")
    e("s_mul_i32 s57, s8, 144"); e("s_mul_i32 s57, s57, s58")
    e("s_mul_i32 s54, s8, 18432")
    e("s_lshl_b32 s58, s58, 3")

def repack_w3(e):
    lane_tr_parts(e, 5, 6, 7, 8)
    e("s_and_b32 s40, s8, 1"); e("s_lshr_b32 s41, s8, 1")
    e("v_lshlrev_b32 v9, 1, v6"); e("v_lshrrev_b32 v10, 1, v8"); e("v_add_u32 v9, v9, v10")
    e("s_lshl_b32 s42, s40, 2"); e("v_add_u32 v9, s42, v9")
    e("v_lshrrev_b32 v10, 1, v7"); e("v_lshlrev_b32 v10, 2, v10"); e("v_xor_b32 v9, v9, v10")
    e("v_lshlrev_b32 v9, 4, v9"); e("v_and_b32 v10, 1, v8"); e("v_lshlrev_b32 v10, 3, v10"); e("v_add_u32 v9, v9, v10")
    e("v_lshlrev_b32 v10, 3, v5"); e("v_add_u32 v10, v10, v7"); e("v_lshlrev_b32 v10, 7, v10"); e("v_add_u32 v9, v9, v10")
    e("s_mul_i32 s42, s41, 36864"); e(f"s_add_u32 s42, s42, {IMG2}"); e("v_add_u32 v9, s42, v9")
    F = 16
    for k in range(18):
        for q in range(2):
            e(f"ds_read_b64_tr_b16 {vr(F+4*k+2*q,2)}, v9 offset:{k*2048+q*512}")
    if Opt.rp_fast:
        for a in range(4): e(f"v_mov_b32 v{104+a}, 0x3f803f80")
        CS = 112
        e("s_nop 0")
        for k in range(18):
            if k % 3 == 0: e(f"s_waitcnt lgkmcnt({min(15, 36 - 2*(k+3))})")
            e(f"v_mfma_f32_32x32x16_bf16 {vr(CS,16)}, v[104:107], {vr(F+4*k,4)}, " + ("0" if k == 0 else vr(CS, 16)))
        e("v_lshlrev_b32 v12, 2, v0"); e("s_lshl_b32 s42, s8, 8"); e(f"s_add_u32 s42, s42, {XCH}"); e("v_add_u32 v13, s42, v12")
        e("s_nop 8")
        e(f"v_mov_b32 v10, v{CS}")
        e("ds_write_b32 v13, v10")
    else:
        e("s_mov_b32 s43, 0x3f803f80")
        for a in range(4): e(f"v_mov_b32 v{10+a}, 0")
        for k in range(18):
            if k % 3 == 0: e(f"s_waitcnt lgkmcnt({min(15, 36 - 2*(k+3))})")
            for j in range(4): e(f"v_dot2c_f32_bf16 v{10+j}, s43, v{F+4*k+j}")
        e("s_nop 2")
        e("v_add_f32 v10, v10, v11"); e("v_add_f32 v12, v12, v13"); e("v_add_f32 v10, v10, v12")
        e("v_mov_b32 v11, v10"); e("v_lshlrev_b32 v12, 2, v0"); e("s_lshl_b32 s42, s8, 8"); e("v_permlane32_swap_b32 v10, v11"); e("v_add_f32 v10, v10, v11")
        e(f"s_add_u32 s42, s42, {XCH}"); e("v_add_u32 v13, s42, v12")
        e("ds_write_b32 v13, v10")
    e("s_mov_b32 s44, 0x00003f80"); e("s_mov_b32 s45, 0x3f800000")
    e("s_xor_b32 s42, s8, 2"); e("s_lshl_b32 s42, s42, 8"); e(f"s_add_u32 s42, s42, {XCH}"); e("v_add_u32 v13, s42, v12")
    e("s_waitcnt lgkmcnt(0)"); e("s_barrier")
    e("ds_read_b32 v11, v13"); e("s_waitcnt lgkmcnt(0)")
    e("v_add_f32 v10, v10, v11"); e(f"v_mul_f32 v10, {hexf(-1/576)}, v10")
    e("s_lshl_b32 s46, s53, 1"); e("s_add_u32 s46, s46, s40")
    e(f"s_mul_i32 s47, s46, 36864"); e(f"s_add_u32 s47, s47, {LY.W3P}")
    e("s_mul_i32 s42, s41, 18432"); e("s_add_u32 s47, s47, s42")
    TS = [88, 96]
    def fink(k):
        t = TS[k % 2]
        for j in range(4): e(f"v_cvt_pk_bf16_f32 v{F+4*k+j}, v{t+2*j}, v{t+2*j+1}")
        e(f"buffer_store_dwordx4 {vr(F+4*k,4)}, v1, s[{S_WS}:{S_WS+3}], s47 offen offset:{(k%4)*1024} sc1")
        if k % 4 == 3: e("s_add_u32 s47, s47, 4096")
    if Opt.rp_fast:
        e("v_mov_b32 v11, v10")
        for k in range(18):
            t = TS[k % 2]
            for j in range(4):
                e(f"v_lshlrev_b32 v{t+2*j}, 16, v{F+4*k+j}"); e(f"v_and_b32 v{t+2*j+1}, 0xffff0000, v{F+4*k+j}")
            for j in range(4): e(f"v_pk_add_f32 {vr(t+2*j,2)}, {vr(t+2*j,2)}, v[10:11]")
            fink(k)
    else:
        for k in range(18):
            t = TS[k % 2]
            for j in range(4):
                e(f"v_dot2_f32_bf16 v{t+2*j}, v{F+4*k+j}, s44, v10")
                e(f"v_dot2_f32_bf16 v{t+2*j+1}, v{F+4*k+j}, s45, v10")
            if k > 0: fink(k - 1)
        e("s_nop 2")
        fink(17)

def repack_wo(e, skip_label):
    e("s_sub_u32 s46, s53, 72"); e("s_mul_i32 s40, s46, 86"); e("s_lshr_b32 s40, s40, 8")
    e("s_mul_i32 s41, s40, 3"); e("s_sub_u32 s41, s46, s41")
    lane_tr_parts(e, 5, 6, 7, 8)
    e("s_and_b32 s42, s8, 1"); e("s_lshr_b32 s43, s8, 1")
    e("v_lshlrev_b32 v9, 5, v6"); e("v_lshlrev_b32 v10, 3, v8"); e("v_add_u32 v9, v9, v10"); e("s_lshl_b32 s44, s42, 6"); e(f"s_add_u32 s44, s44, {IMG2}"); e("v_add_u32 v9, s44, v9")
    e("v_lshlrev_b32 v10, 2, v5"); e("v_add_u32 v10, v10, v7"); e("v_lshlrev_b32 v10, 7, v10"); e("v_add_u32 v10, v10, v9")
    e(f"s_mul_i32 s44, s43, {324*128}"); e("v_add_u32 v10, s44, v10")
    e("v_lshrrev_b32 v11, 1, v7"); e("v_lshlrev_b32 v12, 2, v5"); e("v_add_u32 v12, v12, v11"); e("v_mul_u32_u24 v12, 18, v12")
    e("v_xor_b32 v11, 1, v11"); e("v_lshlrev_b32 v11, 4, v11"); e("v_add_u32 v12, v12, v11"); e("v_and_b32 v11, 1, v7"); e("v_add_u32 v12, v12, v11")
    e("v_lshlrev_b32 v12, 7, v12"); e("v_add_u32 v12, v12, v9")
    F = 16
    for k in range(14):
        for q in range(2):
            e(f"ds_read_b64_tr_b16 {vr(F+4*k+2*q,2)}, v10 offset:{(18*k + 8*q + 2*(k&1))*128}")
    e("s_cmp_eq_u32 s43, 0"); e("s_cbranch_scc0 K2_wo_x")
    for k in range(14, 18):
        for q in range(2):
            e(f"ds_read_b64_tr_b16 {vr(F+4*k+2*q,2)}, v10 offset:{(18*k + 8*q + 2*(k&1))*128}")
    e("s_branch K2_wo_y")
    e.label("K2_wo_x")
    for k in range(14, 18):
        for q in range(2):
            e(f"ds_read_b64_tr_b16 {vr(F+4*k+2*q,2)}, v12 offset:{18*(8*(k-14) + 2*q)*128}")
    e.label("K2_wo_y")
    e("s_lshl_b32 s44, s41, 1"); e("s_add_u32 s44, s44, s42")
    e("s_cmp_eq_u32 s44, 5"); e(f"s_cbranch_scc1 {skip_label}")
    e("s_mul_i32 s45, s40, 5"); e("s_add_u32 s45, s45, s44"); e("s_mul_i32 s45, s45, 36"); e("s_mul_i32 s46, s43, 18"); e("s_add_u32 s45, s45, s46")
    e("s_lshl_b32 s47, s45, 10"); e(f"s_add_u32 s47, s47, {LY.WOP}")
    e("s_waitcnt lgkmcnt(0)")
    for k in range(18):
        e(f"buffer_store_dwordx4 {vr(F+4*k,4)}, v1, s[{S_WS}:{S_WS+3}], s47 offen offset:{(k%4)*1024}")
        if k % 4 == 3: e("s_add_u32 s47, s47, 4096")

def gen_prephase(e):
    e(f"s_load_dwordx2 s[{S_DBG}:{S_DBG+1}], s[0:1], {KA_DBG}") if not Opt.cnt_ws else None
    if Opt.cnt_ws:
        e(f"s_add_u32 s{S_DBG}, s4, {LY.CNT}"); e(f"s_addc_u32 s{S_DBG+1}, s5, 0")
    e("s_cmp_lt_u32 s7, 16"); e("s_cbranch_scc0 K2_pre_att")
    if Opt.gemm_local:
        e("s_lshr_b32 s64, s7, 3"); e("s_lshl_b32 s65, s6, 1"); e("s_add_u32 s64, s64, s65"); e("s_and_b32 s65, s7, 7")
    else:
        e("s_mov_b32 s64, s7"); e("s_mov_b32 s65, s6")
    e.label("K2_pre_gemm")
    e("s_lshl_b32 s9, s64, 2"); e("s_add_u32 s9, s9, s8")
    e("s_lshl_b32 s33, s65, 1")
    e("s_lshl_b32 s10, s65, 7"); e("s_lshl_b32 s11, s65, 2")
    gemm(e, 2, False)
    stamp(e, 3, 'pre')
    e(f"s_mul_i32 s48, s64, {CSTEP}")
    publish(e, 48)
    e("s_branch K2_pre_end")
    e.label("K2_pre_att")
    e("s_sub_u32 s53, s7, 16"); e("s_lshl_b32 s53, s53, 3"); e("s_add_u32 s53, s53, s6")
    e("s_cmp_lt_u32 s53, 16"); e("s_cbranch_scc0 K2_pre_rp")
    if Opt.gemm_local:
        e("s_lshr_b32 s64, s53, 3"); e("s_lshl_b32 s65, s6, 1"); e("s_add_u32 s64, s64, s65"); e("s_mov_b32 s65, 8")
    else:
        e("s_mov_b32 s64, s53"); e("s_mov_b32 s65, 8")
    e("s_branch K2_pre_gemm")
    e.label("K2_pre_rp")
    e("s_cmp_lt_u32 s53, 100"); e("s_cbranch_scc0 K2_pre_end")
    e("s_sub_u32 s53, s53, 16")
    e("v_lshlrev_b32 v1, 4, v0")
    repack_setup(e)
    repack_dma(e)
    e("s_waitcnt vmcnt(0)"); e("s_barrier")
    stamp(e, 4, 'pre')
    e("s_cmp_lt_u32 s53, 72"); e("s_cbranch_scc1 K2_rw3")
    repack_wo(e, "K2_pre_lds")
    e("s_branch K2_pre_lds")
    e.label("K2_rw3")
    repack_w3(e)
    stamp(e, 5, 'pre')
    e("s_mul_i32 s48, s53, 57"); e("s_lshr_b32 s48, s48, 9"); e(f"s_mul_i32 s48, s48, {CSTEP}"); e(f"s_add_u32 s48, s48, {CNT_W}")
    publish(e, 48)
    e("s_branch K2_pre_end")
    e.label("K2_pre_lds")
    if Opt.fuse_l4:
        e(f"s_movk_i32 s48, {CNT_WO}")
        publish(e, 48)
    else:
        e("s_barrier")
    e.label("K2_pre_end")
    stamp(e, 6, 'pre')

def gen_mlp_wait(e):
    e(f"s_mul_i32 s48, s7, {CSTEP}"); e(f"s_mul_i32 s49, s6, {CSTEP}"); e(f"s_add_u32 s49, s49, {CNT_W}")
    w = [(48, 9), (49, 6 if Opt.single else 9)]
    if Opt.fuse_l4 and Opt.early_wo and not Opt.single:
        e(f"s_movk_i32 s47, {CNT_WO}"); w.append((47, 12))
    wait_counters(e, w, acquire=Opt.acquire)


def gemm_early(e):
    KS = 2048
    e(f"s_load_dwordx2 s[24:25], s[0:1], {KA_W2}")
    e("v_lshrrev_b32 v5, 3, v0"); e("v_and_b32 v6, 7, v0"); e("v_bfe_u32 v7, v0, 4, 1"); e("v_lshlrev_b32 v7, 2, v7"); e("v_xor_b32 v6, v6, v7")
    e("v_mul_u32_u24 v5, 1152, v5"); e("v_lshlrev_b32 v6, 4, v6"); e("v_add_u32 v2, v5, v6"); e(f"v_add_u32 v3, {9216-1024}, v2")
    e("s_waitcnt lgkmcnt(0)")
    make_srd(e, S_SRC, 24, 576 * 576 * 2)
    e("s_mul_i32 s28, s8, 18432"); e("s_lshl_b32 s29, s65, 7"); e("s_add_u32 s28, s28, s29")
    e(f"s_mul_i32 s29, s8, {KS}")
    for ch in range(9):
        e(f"s_add_u32 m0, s29, {4*ch*KS}")
        e(f"s_add_u32 s31, s28, {ch*4*18432}")
        e(f"buffer_load_dwordx4 v2, s[{S_SRC}:{S_SRC+3}], s31 offen lds")
        e(f"buffer_load_dwordx4 v3, s[{S_SRC}:{S_SRC+3}], s31 offen offset:1024 lds")

def gemm_single(e):
    NT = 2; KS = 2048
    e("s_lshl_b32 s9, s64, 2"); e("s_add_u32 s9, s9, s8")
    e("s_lshl_b32 s33, s65, 1"); e("s_lshl_b32 s10, s65, 7"); e("s_lshl_b32 s11, s65, 2")
    e(f"s_load_dwordx2 s[26:27], s[0:1], {KA_XA}")
    e("v_lshlrev_b32 v1, 4, v0")
    e("s_waitcnt lgkmcnt(0)")
    make_srd(e, S_XB, 26, 2048 * 576 * 2)
    lane_tr_parts(e, 5, 6, 7, 8)
    e("v_lshlrev_b32 v9, 1, v6"); e("v_lshrrev_b32 v10, 1, v8"); e("v_add_u32 v9, v9, v10")
    e("v_lshrrev_b32 v10, 1, v7"); e("v_lshlrev_b32 v10, 2, v10"); e("v_xor_b32 v9, v9, v10"); e("v_lshlrev_b32 v9, 4, v9")
    e("v_and_b32 v10, 1, v8"); e("v_lshlrev_b32 v10, 3, v10"); e("v_add_u32 v9, v9, v10")
    e("v_lshlrev_b32 v10, 3, v5"); e("v_add_u32 v10, v10, v7"); e("v_lshlrev_b32 v10, 7, v10"); e("v_add_u32 v9, v9, v10")
    e("v_xor_b32 v10, 64, v9"); e("v_add_u32 v13, 36864, v9"); e("v_add_u32 v14, 36864, v10")
    ACC = 16; WB = 64; XB = 112; nx = 4
    def reads(ks):
        b = WB + 8 * (ks % 4)
        return [f"ds_read_b64_tr_b16 {vr(b+4*T+2*q,2)}, v{[[9, 10], [13, 14]][ks//18][T]} offset:{(ks%18)*2048 + q*512}" for T in range(2) for q in range(2)]
    e("v_and_b32 v11, 31, v0"); e("s_movk_i32 s32, 1152"); e("v_mul_lo_u32 v12, v11, s32"); e("v_lshlrev_b32 v4, 4, v5"); e("v_add_u32 v12, v12, v4")
    e("s_mul_i32 s41, s9, 36864"); e("s_add_u32 s41, s41, s10")
    for u in range(nx):
        e(f"buffer_load_dwordx4 {vr(XB+4*u,4)}, v12, s[{S_XB}:{S_XB+3}], s41 offen offset:{u*32}")
    if not Opt.unit3_early:
        e("s_cmp_eq_u32 s67, 3"); e("s_cselect_b32 s53, s68, 84")
        repack_setup(e)
    stamp(e, 1, 'pre')
    e(f"s_mul_i32 s48, s64, {CSTEP}"); e(f"s_add_u32 s48, s48, {CNT_HS}")
    wait_counters(e, [(48, 8)])
    e("s_waitcnt vmcnt(0)")
    e("s_barrier")
    stamp(e, 2, 'pre')
    e("s_mul_i32 s40, s9, 36864"); e(f"s_add_u32 s40, s40, {LY.HS}")
    for j in range(36):
        e(f"buffer_load_dwordx4 {ar(4*j,4)}, v1, s[{S_WS}:{S_WS+3}], s40 offen offset:{(j%4)*1024} sc1")
        if j % 4 == 3 and j != 35: e("s_add_u32 s40, s40, 4096")
    nx18 = 0
    if not Opt.unit3_early:
        repack_dma(e); nx18 = 18
    for k in range(3): e.extend(reads(k))
    for ks in range(36):
        if ks % 4 == 0: e(f"s_waitcnt vmcnt({32 - ks + nx18})")
        e(f"s_waitcnt lgkmcnt({4 * min(2, 35 - ks)})")
        b = WB + 8 * (ks % 4)
        rd = reads(ks + 3) if ks + 3 < 36 else []
        for T in range(2):
            e(f"v_mfma_f32_32x32x16_bf16 {vr(ACC+16*T,16)}, {vr(b+4*T,4)}, {ar(4*ks,4)}, " + ("0" if ks == 0 else vr(ACC + 16 * T, 16)))
            e.extend(rd[2 * T:2 * T + 2])
    e("s_mov_b32 s42, 0x00003f80"); e("s_mov_b32 s43, 0x3f800000"); e("s_mov_b32 s44, 0x3f803f80")
    e("s_mul_i32 s45, s9, 36"); e("s_add_u32 s45, s45, s11"); e("s_lshl_b32 s45, s45, 10"); e(f"s_add_u32 s45, s45, {LY.X1F}")
    e("v_mov_b32 v2, 0"); e("v_mov_b32 v3, 0")
    e("s_nop 9")
    for u in range(nx):
        T, hq = divmod(u, 2); b = ACC + 16 * T + 8 * hq; x = XB + 4 * u; P = 64 + 4 * u
        for j in range(4):
            e(f"v_dot2c_f32_bf16 v{b+2*j}, s42, v{x+j}")
            e(f"v_dot2c_f32_bf16 v{b+2*j+1}, s43, v{x+j}")
        e("s_nop 2")
        for j in range(4): e(f"v_cvt_pk_bf16_f32 v{P+j}, v{b+2*j}, v{b+2*j+1}")
        e(f"buffer_store_dwordx4 {vr(P,4)}, v1, s[{S_WS}:{S_WS+3}], s45 offen offset:{u*1024} sc1")
        for j in range(4):
            e(f"v_dot2c_f32_bf16 v2, s44, v{P+j}")
            e(f"v_dot2c_f32_bf16 v3, v{P+j}, v{P+j}")
    e("v_lshlrev_b32 v4, 14, v5"); e("v_lshlrev_b32 v6, 2, v11"); e("v_add_u32 v4, v4, v6")
    e("s_lshl_b32 s46, s33, 14"); e("s_lshl_b32 s47, s9, 7"); e("s_add_u32 s46, s46, s47"); e(f"s_add_u32 s46, s46, {LY.ST2}")
    e("s_add_u32 s47, s46, 8192")
    e(f"buffer_store_dword v2, v4, s[{S_WS}:{S_WS+3}], s46 offen sc1")
    e(f"buffer_store_dword v3, v4, s[{S_WS}:{S_WS+3}], s47 offen sc1")
    stamp(e, 3, 'pre')
    e(f"s_mul_i32 s48, s64, {CSTEP}")
    publish(e, 48)

def unit_select(e):
    L = f"Lus_{len(e.L)}"
    e("s_mov_b32 s67, 1"); e("s_movk_i32 s68, 84"); e("s_mov_b32 s66, 0")
    e("s_cmp_lt_u32 s7, 16"); e(f"s_cbranch_scc0 {L}_a")
    e("s_lshr_b32 s64, s7, 3"); e("s_lshl_b32 s65, s6, 1"); e("s_add_u32 s64, s64, s65"); e("s_and_b32 s65, s7, 7")
    e("s_cmp_ge_u32 s7, 8"); e(f"s_cbranch_scc0 {L}_z")
    e("s_sub_u32 s68, s7, 8"); e("s_lshl_b32 s68, s68, 3"); e("s_add_u32 s68, s68, s6")
    e("s_cmp_lt_u32 s68, 36"); e(f"s_cbranch_scc0 {L}_z")
    e("s_mov_b32 s67, 3")
    e("s_cmp_lt_u32 s68, 24"); e(f"s_cbranch_scc0 {L}_w")
    e("s_mul_i32 s66, s68, 86"); e("s_lshr_b32 s66, s66, 8")
    e("s_mul_i32 s69, s66, 6"); e("s_add_u32 s68, s68, s69"); e("s_add_u32 s68, s68, 6")
    e(f"s_mul_i32 s66, s66, {CSTEP}"); e(f"s_add_u32 s66, s66, {CNT_WL}")
    e(f"s_branch {L}_z")
    e.label(f"{L}_w")
    e("s_add_u32 s68, s68, 48")
    e(f"s_movk_i32 s66, {CNT_WO}")
    e(f"s_branch {L}_z")
    e.label(f"{L}_a")
    e("s_cmp_lt_u32 s7, 24"); e(f"s_cbranch_scc1 {L}_v")
    e("s_mov_b32 s67, 0")
    e(f"s_branch {L}_z")
    e.label(f"{L}_v")
    e("s_sub_u32 s68, s7, 16"); e("s_lshl_b32 s68, s68, 3"); e("s_add_u32 s68, s68, s6")
    e("s_cmp_lt_u32 s68, 16"); e(f"s_cbranch_scc0 {L}_b")
    e("s_lshr_b32 s64, s68, 3"); e("s_lshl_b32 s65, s6, 1"); e("s_add_u32 s64, s64, s65"); e("s_mov_b32 s65, 8")
    e(f"s_branch {L}_z")
    e.label(f"{L}_b")
    e("s_mov_b32 s67, 2")
    e("s_sub_u32 s68, s68, 16"); e("s_mul_i32 s64, s68, 43"); e("s_lshr_b32 s64, s64, 8")
    e("s_mul_i32 s65, s64, 3"); e("s_add_u32 s68, s68, s65")
    e(f"s_mul_i32 s66, s64, {CSTEP}"); e(f"s_add_u32 s66, s66, {CNT_W}")
    e.label(f"{L}_z")

def unit_early(e):
    L = f"Lue_{len(e.L)}"
    unit_select(e)
    e("s_cmp_eq_u32 s67, 2"); e(f"s_cbranch_scc1 {L}_r")
    gemm_early(e)
    if Opt.unit3_early:
        e("s_cmp_eq_u32 s67, 3"); e(f"s_cbranch_scc0 {L}_g")
        e("s_mov_b32 s53, s68")
        repack_setup(e); repack_dma(e)
        e("s_waitcnt vmcnt(36)")
        e(f"s_branch {L}_z")
        e.label(f"{L}_g")
    e("s_waitcnt vmcnt(18)")
    e(f"s_branch {L}_z")
    e.label(f"{L}_r")
    e("s_mov_b32 s53, s68")
    repack_setup(e); repack_dma(e)
    e("s_waitcnt vmcnt(18)")
    e.label(f"{L}_z")

def gen_prephase_single(e):
    e.label("K_pre")
    e("s_cmp_eq_u32 s67, 2"); e("s_cbranch_scc1 K_pre_r")
    gemm_single(e)
    e("s_cmp_eq_u32 s67, 3"); e("s_cbranch_scc0 K_pre_end")
    e("s_branch K_pre_r2")
    e.label("K_pre_r")
    e("s_waitcnt vmcnt(0)"); e("s_barrier")
    e.label("K_pre_r2")
    e("v_lshlrev_b32 v1, 4, v0")
    e("s_mov_b32 s53, s68")
    stamp(e, 4, 'pre')
    e("s_cmp_lt_u32 s53, 72"); e("s_cbranch_scc1 K_rw3")
    repack_wo(e, "K_pre_pub")
    e("s_branch K_pre_pub")
    e.label("K_rw3")
    repack_w3(e)
    e.label("K_pre_pub")
    stamp(e, 5, 'pre')
    e("s_mov_b32 s48, s66")
    publish(e, 48)
    e("s_cmp_ge_u32 s53, 72"); e("s_cbranch_scc0 K_pre_end"); e("s_cmp_eq_u32 s8, 0"); e("s_cbranch_scc0 K_pre_end")
    e("s_mov_b64 exec, 0xff")
    e(f"v_lshlrev_b32 v250, 7, v0"); e(f"v_add_u32 v250, {CNT_WL}, v250"); e("v_mov_b32 v251, 1")
    e(f"global_atomic_add v250, v251, s[{S_DBG}:{S_DBG+1}] sc1")
    e("s_mov_b64 exec, -1")
    e.label("K_pre_h")
    e.label("K_pre_end")
    stamp(e, 6, 'pre')
```
